```python
import torch

def _softmax(x, axis=-1):
    return torch.softmax(x, dim=axis)
def _gelu(x):
    return torch.nn.functional.gelu(x, approximate="tanh")
def _silu(x):
    return torch.nn.functional.silu(x)
def _sigmoid(x):
    return torch.sigmoid(x)
def _layernorm(x, axis=-1, eps=1e-5):
    m = x.mean(dim=axis, keepdim=True)
    v = x.var(dim=axis, keepdim=True, unbiased=False)
    return (x - m) / torch.sqrt(v + eps)
def _scatter_add(tgt, idx, src, axis=0):
    return tgt.clone().index_add_(axis, idx, src)
def _segment_sum(src, seg, n):
    out = torch.zeros((n,) + src.shape[1:], dtype=src.dtype)
    return out.index_add_(0, seg, src)
def _pad(x, pw):
    flat = tuple(v for pair in reversed(pw) for v in pair)
    return torch.nn.functional.pad(x, flat)

kernel_name = 'standalone__detection_seg_mask2former__vision'

def setup_inputs():

    _w = (lambda a: (lambda t: t.to(torch.bfloat16) if t.is_floating_point() else t)(torch.as_tensor(a)))
    H = W = 384
    C = 96
    Hc, Wc = H // 2, W // 2
    nh = 4
    Nq = 16
    sc = C ** -0.5
    return {
        "q": _w((lambda *s: torch.randn(*s, dtype=torch.bfloat16) * 0.2)(1, Nq, C)),
        "f_hi": _w((lambda *s: torch.randn(*s, dtype=torch.bfloat16) * 0.2)(1, H, W, C)),
        "f_lo": _w((lambda *s: torch.randn(*s, dtype=torch.bfloat16) * 0.4)(1, Hc, Wc, C)),
        "w_lat": _w((lambda *s: torch.randn(*s, dtype=torch.bfloat16) * 0.4)(C, C) * sc),
        "w_q": _w((lambda *s: torch.randn(*s, dtype=torch.bfloat16) * 3.2)(nh, C, C // nh) * sc),
        "w_k": _w((lambda *s: torch.randn(*s, dtype=torch.bfloat16) * 3.2)(nh, C, C // nh) * sc),
        "w_v": _w((lambda *s: torch.randn(*s, dtype=torch.bfloat16) * 3.2)(nh, C, C // nh) * sc),
        "w_o": _w((lambda *s: torch.randn(*s, dtype=torch.bfloat16) * 3.2)(C, C) * sc),
        "w_m": _w((lambda *s: torch.randn(*s, dtype=torch.bfloat16) * 1.6)(C, C) * sc),
    }

def reference(q, f_hi, f_lo, w_lat, w_q, w_k, w_v, w_o, w_m):
    B, Nq, C = q.shape
    _, H, W, _ = f_hi.shape
    nh = w_q.shape[0]
    dh = C // nh
    up = (lambda x, n, axis: torch.repeat_interleave(x, n, dim=axis))((lambda x, n, axis: torch.repeat_interleave(x, n, dim=axis))(f_lo, 2, axis=1), 2, axis=2)
    feat = f_hi + up @ w_lat
    feat = _layernorm(feat, axis=-1)
    kv = feat.reshape(B, H * W, C)
    m_embed = q @ w_m
    mask_bias = torch.einsum('bqc,bkc->bqk', m_embed, kv) * (C ** -0.5)
    Q = torch.einsum('bqc,hcd->bhqd', q, w_q)
    K = torch.einsum('bkc,hcd->bhkd', kv, w_k)
    V = torch.einsum('bkc,hcd->bhkd', kv, w_v)
    logits = torch.einsum('bhqd,bhkd->bhqk', Q, K) * (dh ** -0.5)
    logits = logits + mask_bias[:, None, :, :]
    attn = _softmax(logits, axis=-1)
    ctx = torch.einsum('bhqk,bhkd->bqhd', attn, V).reshape(B, Nq, C)
    return q + ctx @ w_o
```

```python
import re

def regs_of(tok):
    tok = tok.strip()
    tok = tok.lstrip('-')
    m = re.fullmatch(r'abs\((.*)\)|\|(.*)\|', tok)
    if m: tok = m.group(1) or m.group(2)
    m = re.fullmatch(r'([vsa])\[(\d+):(\d+)\]', tok)
    if m: return {f'{m.group(1)}{i}' for i in range(int(m.group(2)), int(m.group(3)) + 1)}
    m = re.fullmatch(r'([vsa])(\d+)', tok)
    if m: return {tok}
    if tok in ('vcc', 'vcc_lo', 'vcc_hi'): return {'vcc'}
    if tok in ('exec', 'exec_lo', 'exec_hi'): return {'exec'}
    if tok == 'm0': return {'m0'}
    return set()

TRANS = ('v_exp_f32', 'v_log_f32', 'v_rcp_f32', 'v_rsq_f32', 'v_sqrt_f32', 'v_sin_f32', 'v_cos_f32')

class Ins:
    def __init__(self, text):
        self.text = text
        t = text.split(';')[0].strip()
        self.label = t.endswith(':')
        self.directive = t.startswith('.') and not self.label
        self.mn = ''
        self.w = set(); self.r = set(); self.rA = set(); self.rC = set()
        self.kind = 'other'
        self.states = 1
        if self.label or self.directive or not t:
            self.kind = 'meta'; self.states = 0
            return
        parts = t.split(None, 1)
        self.mn = mn = parts[0]
        ops = []
        if len(parts) > 1:
            ops = [o.strip() for o in re.split(r',(?![^\[]*\])', parts[1])]
            if ops:
                last = ops[-1].split()
                ops[-1] = last[0]
                self.mods = last[1:]
        else:
            self.mods = []
        self.ops = ops
        R = [regs_of(o) for o in ops]
        if mn == 's_nop':
            self.kind = 'nop'; self.states = int(ops[0], 0) + 1
        elif mn.startswith('v_mfma'):
            self.kind = 'mfma'
            self.passes = 8 if '32x32x16' in mn else 4
            self.w = R[0]; self.rA = R[1] | R[2]; self.rC = R[3]; self.r = self.rA | self.rC
        elif mn.startswith('v_cmp'):
            self.kind = 'valu'; self.w = R[0]; self.r = set().union(*R[1:])
            if mn.startswith('v_cmpx'): self.w |= {'exec'}
        elif mn.startswith('v_permlane') and 'swap' in mn:
            self.kind = 'valu'; self.w = R[0] | R[1]; self.r = R[0] | R[1]
        elif mn.startswith('v_readfirstlane') or mn.startswith('v_readlane'):
            self.kind = 'valu'; self.w = R[0]; self.r = set().union(*R[1:])
        elif mn.startswith('v_'):
            self.kind = 'valu'; self.w = set(R[0]); self.r = set().union(*R[1:]) if len(R) > 1 else set()
            if mn.startswith(('v_fmac', 'v_dot2c', 'v_mac')): self.r |= R[0]
            if mn.startswith(('v_add_co', 'v_sub_co', 'v_addc_co', 'v_subb_co', 'v_mad_u64')):
                self.w |= R[1]; self.r = set().union(*R[2:])
            if mn.startswith('v_cndmask') and len(ops) == 3: self.r |= {'vcc'}
        elif mn.startswith('ds_'):
            self.kind = 'ds'
            if mn.startswith(('ds_read', 'ds_bpermute', 'ds_swizzle', 'ds_permute')) or '_rtn' in mn:
                self.w = R[0]; self.r = set().union(*R[1:])
            else:
                self.r = set().union(*R)
        elif mn.startswith(('buffer_', 'global_')):
            self.kind = 'vmem'
            lds = ('lds' in getattr(self, 'mods', [])) or '_lds_' in mn
            self.lds = lds
            if lds:
                self.r = set().union(*R) | {'m0'}
            elif 'load' in mn:
                self.w = R[0]; self.r = set().union(*R[1:])
            elif 'atomic' in mn:
                self.r = set().union(*R)
                if 'sc0' in self.mods: self.w = R[0]
            else:
                self.r = set().union(*R)
                self.store_wide = mn.endswith(('x3', 'x4'))
                self.data = R[0] if mn.startswith('buffer_') else R[1]
        elif mn.startswith('s_'):
            self.kind = 'salu'
            if mn.startswith(('s_cmp', 's_cbranch', 's_branch', 's_waitcnt', 's_barrier', 's_endpgm', 's_setprio', 's_sleep', 's_setpc', 's_bitcmp')):
                self.r = set().union(*R) if R else set()
            else:
                self.w = set(R[0]) if R else set(); self.r = set().union(*R[1:]) if len(R) > 1 else set()
                if 'saveexec' in mn: self.w |= {'exec'}
            self.branch = mn.startswith(('s_cbranch', 's_branch', 's_setpc', 's_swappc'))

def need(p, c):
    n = 0
    isv = lambda s: {x for x in s if x[0] in 'va' and x != 'vcc'}
    iss = lambda s: {x for x in s if x[0] == 's' or x == 'vcc'}
    if p.kind == 'valu':
        pv = isv(p.w); ps = iss(p.w)
        if c.kind == 'mfma' and pv & c.r: n = max(n, 2)
        if c.kind == 'valu' and 'permlane' in c.mn and pv & c.r: n = max(n, 2)
        if c.kind == 'valu' and c.mn.startswith(('v_readfirstlane', 'v_readlane')) and pv & c.r: n = max(n, 1)
        if c.kind == 'valu' and ('dpp' in c.text or 'row_' in c.text or 'quad_perm' in c.text) and pv & c.r: n = max(n, 2)
        if p.mn.replace('_e32','').replace('_e64','') in TRANS and c.kind in ('valu',) and pv & c.r and c.mn.replace('_e32','').replace('_e64','') not in TRANS: n = max(n, 1)
        if p.mn.replace('_e32','').replace('_e64','') in TRANS and c.kind in ('mfma',) and pv & c.r: n = max(n, 2)
        if ps & c.r:
            if c.kind == 'valu': n = max(n, 4 if c.mn.startswith(('v_readlane', 'v_writelane')) else 2)
            if c.kind == 'vmem': n = max(n, 5)
            if c.kind == 'salu': n = max(n, 4)
        if 'exec' in p.w:
            if c.kind == 'mfma' or 'permlane' in c.mn or c.mn.startswith('v_read'): n = max(n, 4)
            if 'dpp' in c.text: n = max(n, 5)
    if p.kind == 'salu':
        if 'm0' in p.w and c.kind == 'vmem' and getattr(c, 'lds', False): n = max(n, 1)
    if p.kind == 'mfma':
        big = p.passes == 8
        if c.kind == 'mfma':
            if p.w & c.rA: n = max(n, 12 if big else 8)
            if p.w & c.rC:
                if not (p.w == c.rC and p.passes == c.passes): n = max(n, 10 if big else 6)
            if p.w & c.w and not (p.w == c.w and p.passes == c.passes): n = max(n, 10 if big else 6)
        elif c.kind in ('valu', 'ds', 'vmem'):
            if p.w & (c.r | c.w): n = max(n, 12 if big else 8)
            if c.kind == 'valu' and p.rC & c.w: n = max(n, 7 if big else 3)
            if c.kind in ('ds', 'vmem') and p.rC & c.w: n = max(n, 7 if big else 3)
    if p.kind == 'vmem' and getattr(p, 'store_wide', False):
        if p.data & c.w: n = max(n, 2)
    return n

class Asm:
    def __init__(self):
        self.lines = []
    def __call__(self, text):
        for t in text.split('\n'):
            t = t.strip()
            if t: self.lines.append(t)
    def raw(self, text):
        self.lines.append(text)
    def finish(self, verbose=False):
        ins = [Ins(t) for t in self.lines]
        out = []
        W = 24
        nn = 0
        def window(lst):
            res = []; d = 0
            for p in reversed(lst):
                if p.kind == 'meta': continue
                res.append((p, d)); d += p.states
                if d > W: break
            return res
        for c in ins:
            if c.kind not in ('meta', 'nop'):
                k = 0
                for p, d in window(out):
                    k = max(k, need(p, c) - d)
                    if p.mn in ('s_branch', 's_endpgm', 's_setpc_b64'): break
                if k > 0:
                    while k > 0:
                        s = min(k, 16)
                        out.append(Ins(f's_nop {s-1}')); k -= s; nn += 1
            out.append(c)
        labels = {i.text.split(':')[0].strip(): n for n, i in enumerate(out) if i.label}
        problems = []
        for n, b in enumerate(out):
            if b.kind == 'salu' and b.mn.startswith(('s_cbranch', 's_branch')):
                tgt = b.ops[0]
                if tgt not in labels: continue
                pre = window(out[:n + 1])
                d2 = 0
                for c in out[labels[tgt]:]:
                    if c.kind == 'meta': continue
                    for p, d in pre:
                        if need(p, c) - (d + d2) > 0:
                            problems.append((b.text, p.text, c.text, need(p, c) - (d + d2)))
                    d2 += c.states
                    if d2 > W or c.mn in ('s_branch', 's_endpgm', 's_setpc_b64'): break
        if problems:
            for p in problems: print('HAZARD across branch:', p)
            raise SystemExit('fix hazards across branches')
        if verbose: print('inserted nops:', nn)
        return '\n'.join(('' if i.label or i.directive else '    ') + i.text for i in out) + '\n'
```

```python
import sys, math, struct
from asmlib import Asm

NAME = 'standalone__detection_seg_mask2former__vision'
def f32(x): return '0x%08x' % struct.unpack('<I', struct.pack('<f', x))[0]

HI = 0
LO = 110592
WREG = 138240
SCR = WREG + 18432
WM = 12 * 6144
WQ = 15 * 6144
LDS_BYTES = SCR + 2048
REC_BYTES = 16 * 256 * 512
STAMP_OFF = 4 << 20

def vr(b, n=1): return f'v{b}' if n == 1 else f'v[{b}:{b+n-1}]'

class Cfg:
    stamps = False
    fused = False

def header(a, launches):
    for l in launches: a.raw(l)
    a.raw('.amdgcn_target "amdgcn-amd-amdhsa--gfx950"')
    a.raw('.text')

def kstart(a, name):
    a.raw(f'.globl {name}'); a.raw('.p2align 8'); a.raw(f'.type {name},@function'); a.raw(f'{name}:')

def kdesc(name, nv, ns):
    return f'''.amdhsa_kernel {name}
  .amdhsa_next_free_vgpr {nv}
  .amdhsa_next_free_sgpr {ns}
  .amdhsa_accum_offset {(nv+3)//4*4}
  .amdhsa_group_segment_fixed_size 0
  .amdhsa_kernarg_size 96
  .amdhsa_user_sgpr_count 2
  .amdhsa_user_sgpr_kernarg_segment_ptr 1
  .amdhsa_system_sgpr_workgroup_id_x 1
.end_amdhsa_kernel
'''

SQ, SHI, SLO, SWL, SWQ, SWK, SWV, SWO, SWM, SOUT, SDBG, SWS = [f's[{4+2*i}:{5+2*i}]' for i in range(12)]
RHI, RLO, RWS = 's[28:31]', 's[32:35]', 's[36:39]'
STAMP0 = 64

def stamp(a, cfg, i):
    if cfg.stamps: a(f's_memrealtime s[{STAMP0+2*i}:{STAMP0+2*i+1}]')

def stamp_flush(a, cfg, n, rec_sreg, tmpv):
    if not cfg.stamps: return
    a('s_waitcnt lgkmcnt(0)')
    a(f's_lshl_b32 s62, {rec_sreg}, 6')
    a(f's_add_u32 s62, s62, {STAMP_OFF}')
    for i in range(16):
        a(f'v_mov_b32 v{tmpv+i}, ' + (f's{STAMP0+i}' if i < 2*n else '0'))
    a(f'v_mov_b32 v{tmpv+16}, 0')
    a('s_mov_b64 exec, 1')
    a('s_mov_b32 s56, s26\ns_mov_b32 s57, s27\ns_mov_b32 s58, 0x1000000\ns_mov_b32 s59, 0x20000')
    for i in range(4):
        a(f'buffer_store_dwordx4 {vr(tmpv+4*i,4)}, v{tmpv+16}, s[56:59], s62 offen offset:{16*i}')
    a('s_mov_b64 exec, -1')

def dma_swz(a, dst, lane, k, tmp):
    if isinstance(k, int):
        a(f'v_add_u32 v{tmp}, {64*k}, v{lane}')
    else:
        a(f'v_add_u32 v{tmp}, {k}, v{lane}')
    a(f'v_mul_u32_u24 v{tmp}, 0xaaab, v{tmp}')
    a(f'v_lshrrev_b32 v{tmp}, 21, v{tmp}')
    a(f'v_sub_u32 v{tmp}, 0, v{tmp}')
    a(f'v_and_b32 v{tmp}, 3, v{tmp}')
    a(f'v_xor_b32 v{tmp}, v{tmp}, v{lane}')
    a(f'v_lshlrev_b32 v{dst}, 4, v{tmp}')

MF32 = 'v_mfma_f32_32x32x16_bf16'
MF16 = 'v_mfma_f32_16x16x32_bf16'

def gen_main(a, cfg, name):
    kstart(a, name)
    a('s_cmp_ge_u32 s2, 256')
    a('s_cbranch_scc1 L_end')
    stamp(a, cfg, 0)
    a('s_load_dwordx16 s[4:19], s[0:1], 0')
    a('s_load_dwordx8 s[20:27], s[0:1], 64')
    a('v_lshrrev_b32 v2, 6, v0')
    a('v_and_b32 v1, 63, v0')
    a('v_readfirstlane_b32 s3, v2')
    a('s_cmp_ge_u32 s3, 4')
    a('s_cbranch_scc1 L_cons')
    gen_producer(a, cfg)
    gen_consumer(a, cfg)
    a('L_end:')
    a('s_endpgm')

def gen_producer(a, cfg):
    WL, ID, LT, X, F = 16, 88, 96, 144, 192
    W0, W1, W2, RA0, RA1, RL0, RL1 = 2, 3, 4, 5, 6, 7, 8
    T = 216
    sP = 's3'
    sT = ['s40', 's41', 's42', 's43', 's44']
    sLo0, sLo1 = 's45', 's46'
    sRound, sWait, sLat, sIss, sLoA, sLoB, sLoC, sSlot = 's47', 's48', 's49', 's50', 's51', 's52', 's53', 's54'
    t0, t1 = 's55', 's56'
    for k, w in enumerate((W0, W1, W2)): dma_swz(a, w, 1, k, T)
    a('s_mul_i32 s57, s2, 9')
    def hi_off(dst, u):
        a(f's_mul_i32 {t0}, {u}, 43691')
        a(f's_lshr_b32 {t0}, {t0}, 19')
        a(f's_mul_i32 {t0}, {t0}, 73728')
        a(f's_mul_i32 {dst}, {u}, 6144')
        a(f's_add_u32 {dst}, {dst}, {t0}')
    a(f's_add_u32 s58, s57, {sP}')
    a('s_add_u32 s59, s58, 4')
    a('s_add_u32 s60, s57, 8')
    hi_off('s61', 's58'); hi_off('s62', 's59'); hi_off('s63', 's60')
    a(f's_mul_i32 {sLo0}, s58, 3072')
    a(f's_mul_i32 {sLo1}, s59, 3072')
    a(f's_mul_i32 {t0}, {sP}, 73728')
    a(f's_add_u32 s63, s63, {t0}')
    a('s_add_u32 s58, s61, 73728')
    a('s_add_u32 s59, s62, 73728')
    a(f's_cmp_lt_u32 {sP}, 2')
    a(f's_cselect_b32 {sT[0]}, s63, s61')
    a(f's_cselect_b32 {sT[1]}, s61, s58')
    a(f's_cselect_b32 {sT[2]}, s58, s62')
    a(f's_cselect_b32 {sT[3]}, s62, s59')
    a(f's_mov_b32 {sT[4]}, s59')
    wA = 1 | (2 << 2) | (1 << 4) | (1 << 6); wB = 1 | (2 << 2) | (1 << 4)
    a(f's_cselect_b32 {sWait}, {wA}, {wB}')
    a(f's_cselect_b32 {sLat}, 11, 5')
    a(f's_cselect_b32 {sIss}, 3, 2')
    a(f's_mul_i32 {t0}, {sP}, 3072')
    a(f's_add_u32 {t0}, {t0}, {LO}')
    a(f's_add_u32 {sLoC}, {t0}, {4*3072}')
    a(f's_cmp_lt_u32 {sP}, 2')
    a(f's_cselect_b32 {sLoA}, {LO+8*3072}, {t0}')
    a(f's_cselect_b32 {sLoB}, {t0}, {sLoC}')
    a(f's_mul_i32 {sSlot}, {sP}, 6144')
    a('s_waitcnt lgkmcnt(0)')
    a('s_mov_b32 s28, s6\ns_mov_b32 s29, s7\ns_mov_b32 s30, 28311552\ns_mov_b32 s31, 0x20000')
    a('s_mov_b32 s32, s8\ns_mov_b32 s33, s9\ns_mov_b32 s34, 7077888\ns_mov_b32 s35, 0x20000')
    def half(srd, soff):
        for k, w in enumerate((W0, W1, W2)):
            a(f'buffer_load_dwordx4 v{w}, {srd}, {soff} offen offset:{1024*k} nt lds')
    def issue_hi(soff, ldsreg):
        a(f's_mov_b32 m0, {ldsreg}')
        a(f's_add_u32 {t1}, {soff}, 3072')
        half(RHI, soff)
        a(f's_add_u32 m0, {ldsreg}, 3072')
        a('s_nop 0')
        half(RHI, t1)
    a(f's_mov_b32 m0, {t0}')
    a('s_nop 0')
    half(RLO, sLo0)
    issue_hi(sT[0], sSlot)
    a(f's_add_u32 {t0}, {sSlot}, {4*6144}')
    issue_hi(sT[1], t0)
    stamp(a, cfg, 1)
    a(f'v_and_b32 v{T}, 31, v1')
    a(f'v_lshrrev_b32 v{T+1}, 5, v1')
    def rdaddr(d0, d1, px):
        a(f'v_lshrrev_b32 v{T+2}, 2, v{px}')
        a(f'v_sub_u32 v{T+2}, 0, v{T+2}')
        a(f'v_and_b32 v{T+2}, 3, v{T+2}')
        a(f'v_xor_b32 v{T+2}, v{T+2}, v{T+1}')
        a(f'v_xor_b32 v{T+3}, 2, v{T+2}')
        a(f'v_mul_u32_u24 v{T+4}, 192, v{px}')
        a(f'v_lshl_add_u32 v{d0}, v{T+2}, 4, v{T+4}')
        a(f'v_lshl_add_u32 v{d1}, v{T+3}, 4, v{T+4}')
    rdaddr(RA0, RA1, T)
    a(f'v_add_u32 v{RA0}, {sSlot}, v{RA0}')
    a(f'v_add_u32 v{RA1}, {sSlot}, v{RA1}')
    a(f'v_lshrrev_b32 v{T+5}, 1, v{T}')
    rdaddr(RL0, RL1, T+5)
    a(f'v_bfe_u32 v{T+2}, v1, 3, 1')
    a(f'v_and_b32 v{T+3}, 3, v1')
    a(f'v_lshl_add_u32 v{T+2}, v{T+2}, 2, v{T+3}')
    a(f'v_bfe_u32 v{T+3}, v1, 2, 1')
    a(f'v_cmp_eq_u32 vcc, v{T+3}, v{T+1}')
    a(f'v_and_b32 v{T+3}, 1, v{T+2}')
    a(f'v_lshlrev_b32 v{T+3}, 4, v{T+3}')
    a(f'v_mov_b32 v{T+4}, 0x3f80')
    a(f'v_lshlrev_b32 v{T+3}, v{T+3}, v{T+4}')
    a(f'v_cndmask_b32 v{T+3}, 0, v{T+3}, vcc')
    a(f'v_lshrrev_b32 v{T+2}, 1, v{T+2}')
    a(f'v_bfe_u32 v{T+4}, v1, 4, 1')
    a(f'v_lshl_add_u32 v{T+2}, v{T+4}, 2, v{T+2}')
    for i in range(8):
        a(f'v_cmp_eq_u32 vcc, {i}, v{T+2}')
        a(f'v_cndmask_b32 v{ID+i}, 0, v{T+3}, vcc')
    a(f'v_bfe_u32 v{T+2}, v1, 2, 2')
    a(f'v_lshl_add_u32 v{T+2}, v{T+1}, 3, v{T+2}')
    a(f'v_mul_u32_u24 v{T+2}, 192, v{T+2}')
    a(f'v_bfe_u32 v{T+3}, v1, 4, 1')
    a(f'v_lshl_add_u32 v{T+2}, v{T+3}, 5, v{T+2}')
    a(f'v_and_b32 v{T+3}, 1, v1')
    a(f'v_lshl_add_u32 v{T+2}, v{T+3}, 4, v{T+2}')
    a(f'v_bfe_u32 v{T+3}, v1, 1, 1')
    a(f'v_lshl_add_u32 v{T+2}, v{T+3}, 3, v{T+2}')
    a(f'v_add_u32 v{T+2}, {WREG}, v{T+2}')
    a(f's_mov_b32 {sRound}, 0')
    a('s_barrier')
    stamp(a, cfg, 2)
    n = 0
    for s in range(6):
        for t in range(3):
            for sec in range(2):
                a(f'ds_read_b64_tr_b16 {vr(WL+(t*6+s)*4+2*sec,2)}, v{T+2} offset:{s*3072+sec*768+t*64}')
                n += 1
                if n % 8 == 0: a('s_waitcnt lgkmcnt(6)')
    a('P_loop:')
    a(f's_and_b32 {t0}, {sWait}, 3')
    a(f's_lshr_b32 {sWait}, {sWait}, 2')
    a('s_waitcnt vmcnt(9)')
    a(f's_cmp_eq_u32 {t0}, 2')
    a('s_cbranch_scc1 P_waited')
    a('s_waitcnt vmcnt(6)')
    a(f's_cmp_eq_u32 {t0}, 1')
    a('s_cbranch_scc1 P_waited')
    a('s_waitcnt vmcnt(0)')
    a('P_waited:')
    if cfg.stamps:
        a(f's_cmp_eq_u32 {sRound}, 0'); a('s_cbranch_scc0 P_ns0'); stamp(a, cfg, 3); a('P_ns0:')
        a(f's_cmp_eq_u32 {sRound}, 4'); a('s_cbranch_scc0 P_ns1'); stamp(a, cfg, 5); a('P_ns1:')
        a(f's_cmp_eq_u32 {sRound}, 2'); a('s_cbranch_scc0 P_ns2'); stamp(a, cfg, 4); a('P_ns2:')
    a(f's_cmp_lt_u32 {sRound}, {sIss}')
    a('s_cbranch_scc1 P_issue')
    a('P_issued:')
    a(f's_bitcmp1_b32 {sLat}, {sRound}')
    a('s_cbranch_scc1 P_lat')
    a('P_latd:')
    a(f's_add_u32 {t0}, {sIss}, 1')
    a(f's_cmp_gt_u32 {sRound}, {t0}')
    a('s_cbranch_scc1 P_bar')
    for s in range(6):
        a(f'ds_read_b128 {vr(F+4*s,4)}, v{RA1 if s&1 else RA0} offset:{64*(s>>1)}')
    for t in range(3):
        a(f's_waitcnt lgkmcnt({5-2*t})')
        a(f'{MF32} {vr(X+16*t,16)}, {vr(ID,4)}, {vr(F+8*t,4)}, {vr(LT+16*t,16)}')
        a(f's_waitcnt lgkmcnt({4-2*t})')
        a(f'{MF32} {vr(X+16*t,16)}, {vr(ID+4,4)}, {vr(F+8*t+4,4)}, {vr(X+16*t,16)}')
    S0, S1, Q0, Q1 = T, T+1, T+2, T+3
    for i in range(48):
        s, q = (S0, Q0) if i % 2 == 0 else (S1, Q1)
        if i < 2:
            a(f'v_mov_b32 v{s}, v{X+i}')
            a(f'v_mul_f32 v{q}, v{X+i}, v{X+i}')
        else:
            a(f'v_add_f32 v{s}, v{s}, v{X+i}')
            a(f'v_fmac_f32 v{q}, v{X+i}, v{X+i}')
    a(f'v_add_f32 v{S0}, v{S0}, v{S1}')
    a(f'v_add_f32 v{Q0}, v{Q0}, v{Q1}')
    a(f'v_permlane32_swap_b32 v{S0}, v{Q0}')
    a(f'v_add_f32 v{S0}, v{S0}, v{Q0}')
    a(f'v_mov_b32 v{Q0}, v{S0}')
    a(f'v_permlane32_swap_b32 v{S0}, v{Q0}')
    a(f'v_mul_f32 v{S0}, {f32(1/96)}, v{S0}')
    a(f'v_mul_f32 v{Q0}, {f32(1/96)}, v{Q0}')
    a(f'v_fma_f32 v{Q0}, -v{S0}, v{S0}, v{Q0}')
    a(f'v_max_f32 v{Q0}, 0, v{Q0}')
    a(f'v_add_f32 v{Q0}, {f32(1e-5)}, v{Q0}')
    a(f'v_rsq_f32 v{Q0}, v{Q0}')
    a(f'v_mul_f32 v{S0}, -v{S0}, v{Q0}')
    for s in range(6):
        for i in range(8): a(f'v_fma_f32 v{X+8*s+i}, v{X+8*s+i}, v{Q0}, v{S0}')
        for i in range(4): a(f'v_cvt_pk_bf16_f32 v{F+4*s+i}, v{X+8*s+2*i}, v{X+8*s+2*i+1}')
        a(f'ds_write_b128 v{RA1 if s&1 else RA0}, {vr(F+4*s,4)} offset:{64*(s>>1)}')
    a(f'v_add_u32 v{RA0}, {4*6144}, v{RA0}')
    a(f'v_add_u32 v{RA1}, {4*6144}, v{RA1}')
    a('s_waitcnt lgkmcnt(0)')
    a('P_bar:')
    a('s_barrier')
    a(f's_add_u32 {sRound}, {sRound}, 1')
    a(f's_cmp_lt_u32 {sRound}, 5')
    a('s_cbranch_scc1 P_loop')
    stamp(a, cfg, 6)
    if cfg.stamps:
        a('s_lshl_b32 s61, s2, 3\ns_add_u32 s61, s61, s3')
        stamp_flush(a, cfg, 7, 's61', 16)
    a('s_endpgm')
    a('P_issue:')
    a(f's_cmp_lg_u32 {sRound}, 0')
    a('s_cbranch_scc1 P_issue_hi')
    a(f's_mov_b32 m0, {sLoC}')
    a('s_nop 0')
    half(RLO, sLo1)
    a('P_issue_hi:')
    a(f's_add_u32 {sSlot}, {sSlot}, {4*6144}')
    a(f's_add_u32 {t0}, {sSlot}, {4*6144}')
    issue_hi(sT[2], t0)
    a(f's_mov_b32 {sT[2]}, {sT[3]}')
    a(f's_mov_b32 {sT[3]}, {sT[4]}')
    a('s_branch P_issued')
    a('P_lat:')
    a(f'v_add_u32 v{T}, {sLoA}, v{RL0}')
    a(f'v_add_u32 v{T+1}, {sLoA}, v{RL1}')
    a(f's_mov_b32 {sLoA}, {sLoB}')
    a(f's_mov_b32 {sLoB}, {sLoC}')
    for s in range(6):
        a(f'ds_read_b128 {vr(X+4*s,4)}, v{T+1 if s&1 else T} offset:{64*(s>>1)}')
    for s in range(6):
        a(f's_waitcnt lgkmcnt({5-s})')
        for t in range(3):
            c = '0' if s == 0 else vr(LT+16*t,16)
            a(f'{MF32} {vr(LT+16*t,16)}, {vr(WL+(t*6+s)*4,4)}, {vr(X+4*s,4)}, {c}')
    a('s_branch P_latd')

def gen_consumer(a, cfg):
    sH = 's40'
    t0, t1 = 's41', 's42'
    sJ = 's43'
    LIN, REC, CA, CT0, CT1 = 2, 3, 4, 5, 6
    T = 8
    AP, U, LA, ONES = 16, 28, 52, 56
    KA = [60, 84]
    KT = [108, 132]
    S = [156, 164]
    P = [172, 176]
    WV = 180
    QB, WK, ME, QT, QP, TA = 60, 72, 96, 120, 128, 132
    a('L_cons:')
    a(f's_sub_u32 {sH}, s3, 4')
    a(f'v_lshlrev_b32 v{LIN}, 4, v1')
    a('s_getpc_b64 s[44:45]')
    a('L_pc:')
    a(f's_sub_u32 s44, s44, L_pc-{cfg.kname}')
    a('s_subb_u32 s45, s45, 0')
    a(f'v_add_u32 v{T}, -256, v0')
    a(f'v_lshlrev_b32 v{T}, 7, v{T}')
    a(f'v_min_u32 v{T}, L_codeend-{cfg.kname}-4, v{T}')
    a(f'global_load_dword v{T+1}, v{T}, s[44:45]')
    a(f's_min_u32 {t0}, {sH}, 2')
    a(f's_lshl_b32 {t1}, {t0}, 6')
    dma_swz(a, T+2, 1, t1, T+3)
    a(f's_lshl_b32 s46, {t0}, 10')
    a('s_mul_i32 s47, s2, 9\ns_add_u32 s47, s47, 8\ns_mul_i32 s47, s47, 3072\ns_add_u32 s47, s47, s46')
    a(f's_add_u32 s46, s46, {LO+8*3072}')
    a(f's_mul_i32 s48, {sH}, 4608')
    a(f'v_add_u32 v{T+4}, s48, v{LIN}')
    a(f'v_and_b32 v{T+5}, 15, v1')
    a(f'v_lshrrev_b32 v{T+6}, 4, v1')
    a(f'v_mul_u32_u24 v{T+7}, 192, v{T+5}')
    a(f'v_lshl_add_u32 v{T+7}, v{T+6}, 4, v{T+7}')
    a(f'v_bfe_u32 v16, v1, 2, 2')
    a(f'v_and_b32 v17, 3, v1')
    a(f'v_lshl_add_u32 v16, v16, 3, v17')
    a(f'v_mul_u32_u24 v16, 48, v16')
    a(f'v_lshl_add_u32 v16, v{T+6}, 4, v16')
    a(f'v_add_u32 v16, s48, v16')
    for i in range(24): a(f'v_mov_b32 v{WK+i}, 0')
    a(f's_lshl_b32 {t0}, s2, 2\ns_add_u32 {t0}, {t0}, {sH}\ns_lshl_b32 {t0}, {t0}, 7')
    a(f'v_lshlrev_b32 v{REC}, 17, v{T+5}')
    a(f'v_lshl_add_u32 v{REC}, v{T+6}, 4, v{REC}')
    a(f'v_add_u32 v{REC}, {t0}, v{REC}')
    a('s_waitcnt lgkmcnt(0)')
    a('s_mov_b32 s32, s8\ns_mov_b32 s33, s9\ns_mov_b32 s34, 7077888\ns_mov_b32 s35, 0x20000')
    a(f's_mov_b32 s36, s26\ns_mov_b32 s37, s27\ns_mov_b32 s38, {REC_BYTES}\ns_mov_b32 s39, 0x20000')
    def dma_part(ptr, ldsbase):
        a(f's_add_u32 m0, s48, {ldsbase}')
        a('s_nop 0')
        for k in range(4): a(f'global_load_lds_dwordx4 v{T+4}, {ptr} offset:{1024*k}')
        a(f's_add_u32 m0, s48, {ldsbase+4096}')
        a(f's_add_u32 s50, {ptr[2:ptr.index(":")].join(["s",""])}, 4096')
        a(f's_addc_u32 s51, s{ptr[ptr.index(":")+1:-1]}, 0')
        a('s_mov_b32 exec_hi, 0')
        a(f'global_load_lds_dwordx4 v{T+4}, s[50:51]')
        a('s_mov_b64 exec, -1')
    dma_part(SWL, WREG)
    a('s_mov_b32 m0, s46')
    a('s_nop 0')
    a(f'buffer_load_dwordx4 v{T+2}, {RLO}, s47 offen nt lds')
    dma_part(SWM, WM)
    dma_part(SWQ, WQ)
    for s in range(3): a(f'global_load_dwordx4 {vr(QB+4*s,4)}, v{T+7}, {SQ} offset:{64*s}')
    a('s_mov_b32 exec_hi, 0xffff')
    for s in range(3):
        for tt in range(2):
            a(f'global_load_dwordx4 {vr(WK+(2*s+tt)*4,4)}, v16, {SWK} offset:{1536*s+192*tt}')
    a('s_mov_b64 exec, -1')
    stamp(a, cfg, 1)
    RHO, KAP, G, N = 18, 19, T+6, T+5
    a(f'v_bfe_u32 v{RHO}, v1, 2, 2')
    a(f'v_and_b32 v{KAP}, 3, v1')
    a(f'v_sub_u32 v20, 0, v{RHO}\nv_and_b32 v20, 3, v20\nv_xor_b32 v20, v20, v{G}')
    a(f'v_mul_u32_u24 v21, 192, v{N}')
    a(f'v_lshl_add_u32 v{CA}, v20, 4, v21')
    a(f'v_lshl_add_u32 v21, v{G}, 2, v{RHO}')
    a(f'v_mul_u32_u24 v22, 48, v21')
    a(f'v_mul_u32_u24 v21, 192, v21')
    a(f'v_and_b32 v20, 1, v{KAP}')
    a(f'v_lshl_add_u32 v21, v20, 3, v21')
    a(f'v_sub_u32 v20, 0, v{G}\nv_and_b32 v20, 3, v20')
    a(f'v_lshrrev_b32 v23, 1, v{KAP}')
    a(f'v_xor_b32 v20, v20, v23')
    a(f'v_lshl_add_u32 v{CT0}, v20, 4, v21')
    a(f'v_xor_b32 v20, 2, v20')
    a(f'v_lshl_add_u32 v{CT1}, v20, 4, v21')
    a(f'v_lshl_add_u32 v7, v{KAP}, 3, v22')
    a(f's_add_u32 {t0}, s48, {WREG}')
    a(f'v_add_u32 v7, {t0}, v7')
    a(f'v_lshl_add_u32 v21, v{G}, 3, v{RHO}')
    a(f'v_mul_u32_u24 v24, 48, v21')
    a(f'v_min_u32 v20, 2, v{KAP}')
    a(f'v_lshl_add_u32 v24, v20, 4, v24')
    a(f's_add_u32 {t0}, s48, {WQ}')
    a(f'v_add_u32 v24, {t0}, v24')
    a(f'v_mul_u32_u24 v25, 192, v21')
    a(f'v_lshl_add_u32 v25, v{KAP}, 4, v25')
    a(f'v_add_u32 v25, {WM}, v25')
    for i in range(4): a(f'v_mov_b32 v{ONES+i}, 0x3f803f80')
    for i in range(28): a(f'v_mov_b32 v{U+i}, 0')
    a('s_waitcnt vmcnt(14)')
    a('s_barrier')
    stamp(a, cfg, 2)
    def me_reads(sp):
        for st in range(6):
            for sec in range(2):
                a(f'ds_read_b64_tr_b16 {vr(TA+(sp*6+st)*4+2*sec,2)}, v25 offset:{sp*6144+sec*768+(st>>1)*64+(st&1)*8}')
    me_reads(0)
    a('s_waitcnt vmcnt(6)')
    QF = 204
    a('s_waitcnt lgkmcnt(2)')
    for tt in range(2):
        for s in range(3):
            for sec in range(2):
                a(f'ds_read_b64_tr_b16 {vr(QF+(tt*3+s)*4+2*sec,2)}, v24 offset:{s*1536+sec*192+tt*8}')
    a('s_waitcnt lgkmcnt(12)')
    for st in range(6):
        a(f'{MF16} {vr(ME+4*st,4)}, {vr(TA+st*4,4)}, {vr(QB,4)}, 0')
    a('s_waitcnt lgkmcnt(0)')
    me_reads(1)
    for s in range(3):
        for tt in range(2):
            c = '0' if s == 0 else vr(QT+4*tt,4)
            a(f'{MF16} {vr(QT+4*tt,4)}, {vr(QF+(tt*3+s)*4,4)}, {vr(QB+4*s,4)}, {c}')
    a('s_waitcnt lgkmcnt(0)')
    me_reads(2)
    for st in range(6):
        a(f'{MF16} {vr(ME+4*st,4)}, {vr(TA+(6+st)*4,4)}, {vr(QB+4,4)}, {vr(ME+4*st,4)}')
    for i in range(8): a(f'v_add_f32 v{QT+i}, v{QT+i}, v{QT+i}')
    for i in range(4): a(f'v_cvt_pk_bf16_f32 v{QP+i}, v{QT+2*i}, v{QT+2*i+1}')
    a('s_waitcnt lgkmcnt(0)')
    for st in range(6):
        a(f'{MF16} {vr(ME+4*st,4)}, {vr(TA+(12+st)*4,4)}, {vr(QB+8,4)}, {vr(ME+4*st,4)}')
    a('s_waitcnt vmcnt(0)')
    for st in range(6):
        a(f'{MF16} {vr(ME+4*st,4)}, {vr(WK+4*st,4)}, {vr(QP,4)}, {vr(ME+4*st,4)}')
    sc = 96 ** -0.5 * math.log2(math.e)
    a(f's_mov_b32 {t0}, {f32(sc)}')
    for i in range(24): a(f'v_mul_f32 v{ME+i}, {t0}, v{ME+i}')
    for i in range(12): a(f'v_cvt_pk_bf16_f32 v{AP+i}, v{ME+2*i}, v{ME+2*i+1}')
    stamp(a, cfg, 3)
    a(f's_mov_b32 {sJ}, 0')
    a('C_loop:')
    a(f's_bitcmp1_b32 {sJ}, 0')
    a('s_cbranch_scc1 C_nobar')
    a('s_barrier')
    a('C_nobar:')
    if cfg.stamps:
        a(f's_cmp_eq_u32 {sJ}, 0'); a('s_cbranch_scc0 C_ns0'); stamp(a, cfg, 4); a('C_ns0:')
        a(f's_cmp_eq_u32 {sJ}, 8'); a('s_cbranch_scc0 C_ns1'); stamp(a, cfg, 5); a('C_ns1:')
    def ka_reads(x):
        for s in range(3):
            for h in range(2):
                a(f'ds_read_b128 {vr(KA[x]+(2*s+h)*4,4)}, v{CA} offset:{x*6144+3072*h+64*s}')
    def kt_reads(x, ts):
        for t6 in ts:
            for sec in range(2):
                a(f'ds_read_b64_tr_b16 {vr(KT[x]+4*t6+2*sec,2)}, v{CT1 if t6&1 else CT0} offset:{x*6144+64*(t6>>1)+3072*sec}')
    def s_mfma(x, s, h):
        c = '0' if s == 0 else vr(S[x]+4*h,4)
        a(f'{MF16} {vr(S[x]+4*h,4)}, {vr(KA[x]+(2*s+h)*4,4)}, {vr(AP+4*s,4)}, {c}')
    def pv(x, t6):
        if t6 == 6: a(f'{MF16} {vr(LA,4)}, {vr(ONES,4)}, {vr(P[x],4)}, {vr(LA,4)}')
        else: a(f'{MF16} {vr(U+4*t6,4)}, {vr(KT[x]+4*t6,4)}, {vr(P[x],4)}, {vr(U+4*t6,4)}')
    def ex(x, i): a(f'v_exp_f32 v{S[x]+i}, v{S[x]+i}')
    def cv(x, i): a(f'v_cvt_pk_bf16_f32 v{P[x]+i}, v{S[x]+2*i}, v{S[x]+2*i+1}')
    ka_reads(0); ka_reads(1)
    for s in range(3):
        a(f's_waitcnt lgkmcnt({10-2*s})')
        s_mfma(0, s, 0); s_mfma(0, s, 1)
    kt_reads(0, (0, 1, 2))
    for s in range(3):
        a(f's_waitcnt lgkmcnt({10-2*s})')
        s_mfma(1, s, 0); s_mfma(1, s, 1)
    kt_reads(0, (3, 4, 5))
    for i in range(8): ex(0, i)
    for i in range(4): cv(0, i)
    a('s_waitcnt lgkmcnt(6)')
    kt_reads(1, (0, 1, 2))
    pv(0, 6); ex(1, 0); pv(0, 0); ex(1, 1); pv(0, 1); ex(1, 2); pv(0, 2); ex(1, 3)
    a('s_waitcnt lgkmcnt(6)')
    kt_reads(1, (3, 4, 5))
    pv(0, 3); ex(1, 4); pv(0, 4); ex(1, 5); pv(0, 5); ex(1, 6); ex(1, 7)
    for i in range(4): cv(1, i)
    a(f'v_add_u32 v{CA}, 12288, v{CA}')
    a(f'v_add_u32 v{CT0}, 12288, v{CT0}')
    a(f'v_add_u32 v{CT1}, 12288, v{CT1}')
    a('s_waitcnt lgkmcnt(6)')
    pv(1, 6); pv(1, 0); pv(1, 1); pv(1, 2)
    a('s_waitcnt lgkmcnt(0)')
    pv(1, 3); pv(1, 4); pv(1, 5)
    a(f's_cmp_eq_u32 {sJ}, 0')
    a('s_cbranch_scc1 C_wv_issue')
    a('C_wv_issued:')
    a(f's_cmp_eq_u32 {sJ}, 6')
    a('s_cbranch_scc1 C_wv_read')
    a('C_wv_done:')
    a(f's_add_u32 {sJ}, {sJ}, 1')
    a(f's_cmp_lt_u32 {sJ}, 9')
    a('s_cbranch_scc1 C_loop')
    stamp(a, cfg, 6)
    UP, CX = 60, 72
    for i in range(12): a(f'v_cvt_pk_bf16_f32 v{UP+i}, v{U+2*i}, v{U+2*i+1}')
    for s in range(3):
        for tt in range(2):
            c = '0' if s == 0 else vr(CX+4*tt,4)
            a(f'{MF16} {vr(CX+4*tt,4)}, {vr(WV+(tt*3+s)*4,4)}, {vr(UP+4*s,4)}, {c}')
    a('s_mov_b32 exec_lo, 0')
    for i in range(4): a(f'v_mov_b32 v{CX+4+i}, v{LA}')
    a('s_mov_b64 exec, -1')
    a(f'buffer_store_dwordx4 {vr(CX,4)}, v{REC}, {RWS}, 0 offen')
    a(f'buffer_store_dwordx4 {vr(CX+4,4)}, v{REC}, {RWS}, 0 offen offset:64')
    stamp(a, cfg, 7)
    if cfg.stamps:
        a('s_lshl_b32 s61, s2, 3\ns_add_u32 s61, s61, s3')
        stamp_flush(a, cfg, 8, 's61', 100)
    a('s_endpgm')
    a('C_wv_issue:')
    dma_part(SWV, WREG)
    a('s_branch C_wv_issued')
    a('C_wv_read:')
    a('s_waitcnt vmcnt(0)')
    for tt in range(2):
        for s in range(3):
            for sec in range(2):
                a(f'ds_read_b64_tr_b16 {vr(WV+(tt*3+s)*4+2*sec,2)}, v7 offset:{s*1536+sec*768+tt*32}')
    a('s_waitcnt lgkmcnt(0)')
    a('s_branch C_wv_done')

def gen_combine(a, cfg, name):
    kstart(a, name)
    a('s_cmp_ge_u32 s2, 16')
    a('s_cbranch_scc1 K2_end')
    a('s_load_dwordx2 s[4:5], s[0:1], 0')
    a('s_load_dwordx2 s[18:19], s[0:1], 56')
    a('s_load_dwordx2 s[22:23], s[0:1], 72')
    a('s_load_dwordx2 s[26:27], s[0:1], 88')
    a('v_lshrrev_b32 v2, 6, v0')
    a('v_and_b32 v1, 63, v0')
    a('v_readfirstlane_b32 s3, v2')
    a('v_lshlrev_b32 v2, 4, v1')
    a('s_lshl_b32 s40, s2, 17')
    a('s_lshl_b32 s41, s3, 14')
    a('s_add_u32 s40, s40, s41')
    TOT = 20480
    a('v_lshlrev_b32 v3, 2, v0')
    a('v_mov_b32 v4, 0')
    a(f'ds_write_b32 v3, v4 offset:{TOT}')
    a('s_waitcnt lgkmcnt(0)')
    a(f's_mov_b32 s36, s26\ns_mov_b32 s37, s27\ns_mov_b32 s38, {REC_BYTES}\ns_mov_b32 s39, 0x20000')
    D = 32
    for i in range(16):
        if i % 4 == 0 and i: a('s_add_u32 s40, s40, 4096')
        a(f'buffer_load_dwordx4 {vr(D+4*i,4)}, v2, s[36:39], s40 offen offset:{1024*(i%4)}')
    a('s_mul_i32 s42, s3, 2304')
    a('v_add_u32 v5, s42, v2')
    a('s_mov_b32 m0, s42')
    a('s_nop 0')
    a('global_load_lds_dwordx4 v5, s[18:19]')
    a('global_load_lds_dwordx4 v5, s[18:19] offset:1024')
    a('s_mov_b64 exec, 0xffff')
    a('global_load_lds_dwordx4 v5, s[18:19] offset:2048')
    a('s_mov_b64 exec, -1')
    a('v_and_b32 v6, 15, v1')
    a('s_lshl_b32 s43, s3, 4')
    a('v_add_u32 v6, s43, v6')
    a('v_min_u32 v6, 95, v6')
    a('s_mul_i32 s44, s2, 96')
    a('v_add_u32 v6, s44, v6')
    a('v_lshlrev_b32 v6, 1, v6')
    a('global_load_ushort v7, v6, s[4:5]')
    final_addrs(a, TOT, 0)
    a('s_barrier')
    for i in range(1, 16):
        a(f's_waitcnt vmcnt({4+15-i})')
        for j in range(4): a(f'v_add_f32 v{D+j}, v{D+j}, v{D+4*i+j}')
    final_tail(a, TOT, D, 'K2_end')
    a('K2_end:')
    a('s_endpgm')

def final_addrs(a, TOT, WO):
    a('v_lshrrev_b32 v16, 4, v1')
    for s in range(3):
        a(f'v_add_u32 v17, {4*s}, v16')
        a('v_mul_u32_u24 v18, 0x5556, v17')
        a('v_lshrrev_b32 v18, 16, v18')
        a('v_mul_u32_u24 v19, 3, v18')
        a('v_sub_u32 v19, v17, v19')
        a('v_lshlrev_b32 v18, 7, v18')
        a(f'v_add_u32 v18, {TOT}, v18')
        a(f'v_lshl_add_u32 v{8+s}, v19, 5, v18')
        a(f'v_add_u32 v{11+s}, 96, v18')
    a('v_bfe_u32 v17, v1, 2, 2')
    a('v_lshl_add_u32 v17, v16, 3, v17')
    a('v_mul_u32_u24 v17, 192, v17')
    a('v_and_b32 v18, 3, v1')
    a('v_lshl_add_u32 v17, v18, 3, v17')
    a('s_lshl_b32 s45, s3, 5')
    a(f's_add_u32 s45, s45, {WO}')
    a('v_add_u32 v14, s45, v17')
    a('v_and_b32 v15, 31, v1')
    a('v_lshlrev_b32 v15, 4, v15')
    a(f'v_add_u32 v15, {TOT}, v15')

def final_tail(a, TOT, D, endlabel):
    for j in range(4): a(f'v_mov_b32 v{D+4+j}, v{D+j}')
    for j in range(4): a(f'v_permlane32_swap_b32 v{D+j}, v{D+4+j}')
    for j in range(4): a(f'v_add_f32 v{D+j}, v{D+j}, v{D+4+j}')
    a('s_mov_b32 exec_hi, 0')
    for j in range(4): a(f'ds_add_f32 v15, v{D+j} offset:{4*j}')
    a('s_mov_b64 exec, -1')
    a('s_waitcnt vmcnt(0) lgkmcnt(0)')
    a('s_barrier')
    a('s_cmp_ge_u32 s3, 6')
    a(f's_cbranch_scc1 {endlabel}')
    B, C, L = 40, 56, 80
    for s in range(3):
        a(f'ds_read_b32 v{L+s}, v{11+s}')
        a(f'ds_read_b128 {vr(C+8*s,4)}, v{8+s}')
        a(f'ds_read_b128 {vr(C+8*s+4,4)}, v{8+s} offset:16')
    for s in range(3):
        for sec in range(2):
            a(f'ds_read_b64_tr_b16 {vr(B+4*s+2*sec,2)}, v14 offset:{s*6144+sec*768}')
    for s in range(3):
        a(f's_waitcnt lgkmcnt({6+6-3*s})')
        a(f'v_rcp_f32 v{L+s}, v{L+s}')
        for i in range(8): a(f'v_mul_f32 v{C+8*s+i}, v{C+8*s+i}, v{L+s}')
        for i in range(4): a(f'v_cvt_pk_bf16_f32 v{C+8*s+i}, v{C+8*s+2*i}, v{C+8*s+2*i+1}')
    a('s_waitcnt lgkmcnt(0)')
    for s in range(3):
        c = '0' if s == 0 else 'v[84:87]'
        a(f'{MF16} v[84:87], {vr(C+8*s,4)}, {vr(B+4*s,4)}, {c}')
    a('v_lshlrev_b32 v7, 16, v7')
    a('v_cvt_pk_bf16_f32 v84, v84, v84')
    a('v_and_b32 v84, 0xffff0000, v84')
    a('v_add_f32 v84, v84, v7')
    a('v_cvt_pk_bf16_f32 v84, v84, v84')
    a('s_mov_b64 exec, 0xffff')
    a('global_store_short v6, v84, s[22:23]')

def build(cfg):
    a = Asm()
    k1, k2 = 'm2f_main_kernel', 'm2f_comb_kernel'
    cfg.kname = k1
    header(a, [f'; @launch kernel={k1} grid=(256,1,1) block=(512,1,1) lds={LDS_BYTES}',
               f'; @launch kernel={k2} grid=(16,1,1) block=(512,1,1) lds=24576'])
    gen_main(a, cfg, k1)
    gen_combine(a, cfg, k2)
    a.raw('L_codeend:')
    txt = a.finish(verbose=True)
    txt += '.section .rodata,"a"\n.p2align 6\n' + kdesc(k1, 256, 96) + '.p2align 6\n' + kdesc(k2, 128, 64)
    return txt

if __name__ == '__main__':
    cfg = Cfg()
    out = sys.argv[1]
    cfg.stamps = 'stamps' in sys.argv[2:]
    open(out, 'w').write(build(cfg))
```

```python
import re

def regs_of(tok):
    tok = tok.strip()
    tok = tok.lstrip('-')
    m = re.fullmatch(r'abs\((.*)\)|\|(.*)\|', tok)
    if m: tok = m.group(1) or m.group(2)
    m = re.fullmatch(r'([vsa])\[(\d+):(\d+)\]', tok)
    if m: return {f'{m.group(1)}{i}' for i in range(int(m.group(2)), int(m.group(3)) + 1)}
    m = re.fullmatch(r'([vsa])(\d+)', tok)
    if m: return {tok}
    if tok in ('vcc', 'vcc_lo', 'vcc_hi'): return {'vcc'}
    if tok in ('exec', 'exec_lo', 'exec_hi'): return {'exec'}
    if tok == 'm0': return {'m0'}
    return set()

TRANS = ('v_exp_f32', 'v_log_f32', 'v_rcp_f32', 'v_rsq_f32', 'v_sqrt_f32', 'v_sin_f32', 'v_cos_f32')

class Ins:
    def __init__(self, text):
        self.text = text
        t = text.split(';')[0].strip()
        self.label = t.endswith(':')
        self.directive = t.startswith('.') and not self.label
        self.mn = ''
        self.w = set(); self.r = set(); self.rA = set(); self.rC = set()
        self.kind = 'other'
        self.states = 1
        if self.label or self.directive or not t:
            self.kind = 'meta'; self.states = 0
            return
        t = re.sub(r'\s+quad_perm:\[[^\]]*\]', ' quad_perm', t)
        t = re.sub(r'\s+op_sel(_hi)?:\[[^\]]*\]', '', t)
        parts = t.split(None, 1)
        self.mn = mn = parts[0]
        ops = []
        if len(parts) > 1:
            ops = [o.strip() for o in re.split(r',(?![^\[]*\])', parts[1])]
            if ops:
                last = ops[-1].split()
                ops[-1] = last[0]
                self.mods = last[1:]
        else:
            self.mods = []
        self.ops = ops
        R = [regs_of(o) for o in ops]
        if mn == 's_nop':
            self.kind = 'nop'; self.states = int(ops[0], 0) + 1
        elif mn.startswith('v_mfma'):
            self.kind = 'mfma'
            self.passes = 8 if '32x32x16' in mn else 4
            self.w = R[0]; self.rA = R[1] | R[2]; self.rC = R[3]; self.r = self.rA | self.rC
        elif mn.startswith('v_cmp'):
            self.kind = 'valu'; self.w = R[0]; self.r = set().union(*R[1:])
            if mn.startswith('v_cmpx'): self.w |= {'exec'}
        elif mn.startswith('v_permlane') and 'swap' in mn:
            self.kind = 'valu'; self.w = R[0] | R[1]; self.r = R[0] | R[1]
        elif mn.startswith('v_readfirstlane') or mn.startswith('v_readlane'):
            self.kind = 'valu'; self.w = R[0]; self.r = set().union(*R[1:])
        elif mn.startswith('v_'):
            self.kind = 'valu'; self.w = set(R[0]); self.r = set().union(*R[1:]) if len(R) > 1 else set()
            if mn.startswith(('v_fmac', 'v_dot2c', 'v_mac')): self.r |= R[0]
            if mn.startswith(('v_add_co', 'v_sub_co', 'v_addc_co', 'v_subb_co', 'v_mad_u64')):
                self.w |= R[1]; self.r = set().union(*R[2:])
            if mn.startswith('v_cndmask') and len(ops) == 3: self.r |= {'vcc'}
        elif mn.startswith('ds_'):
            self.kind = 'ds'
            if mn.startswith(('ds_read', 'ds_bpermute', 'ds_swizzle', 'ds_permute')) or '_rtn' in mn:
                self.w = R[0]; self.r = set().union(*R[1:])
            else:
                self.r = set().union(*R)
        elif mn.startswith(('buffer_', 'global_')):
            self.kind = 'vmem'
            lds = ('lds' in getattr(self, 'mods', [])) or '_lds_' in mn
            self.lds = lds
            if lds:
                self.r = set().union(*R) | {'m0'}
            elif 'load' in mn:
                self.w = R[0]; self.r = set().union(*R[1:])
            elif 'atomic' in mn:
                self.r = set().union(*R)
                if 'sc0' in self.mods: self.w = R[0]
            else:
                self.r = set().union(*R)
                self.store_wide = mn.endswith(('x3', 'x4'))
                self.data = R[0] if mn.startswith('buffer_') else R[1]
        elif mn.startswith('s_'):
            self.kind = 'salu'
            if mn.startswith(('s_cmp', 's_cbranch', 's_branch', 's_waitcnt', 's_barrier', 's_endpgm', 's_setprio', 's_sleep', 's_setpc', 's_bitcmp')):
                self.r = set().union(*R) if R else set()
            else:
                self.w = set(R[0]) if R else set(); self.r = set().union(*R[1:]) if len(R) > 1 else set()
                if 'saveexec' in mn: self.w |= {'exec'}
            self.branch = mn.startswith(('s_cbranch', 's_branch', 's_setpc', 's_swappc'))

def need(p, c):
    n = 0
    isv = lambda s: {x for x in s if x[0] in 'va' and x != 'vcc'}
    iss = lambda s: {x for x in s if x[0] == 's' or x == 'vcc'}
    if p.kind == 'valu':
        pv = isv(p.w); ps = iss(p.w)
        if c.kind == 'mfma' and pv & c.r: n = max(n, 2)
        if c.kind == 'valu' and 'permlane' in c.mn and pv & c.r: n = max(n, 2)
        if c.kind == 'valu' and c.mn.startswith(('v_readfirstlane', 'v_readlane')) and pv & c.r: n = max(n, 1)
        if c.kind == 'valu' and ('dpp' in c.text or 'row_' in c.text or 'quad_perm' in c.text) and pv & c.r: n = max(n, 2)
        if p.mn.replace('_e32','').replace('_e64','') in TRANS and c.kind in ('valu',) and pv & c.r and c.mn.replace('_e32','').replace('_e64','') not in TRANS: n = max(n, 1)
        if p.mn.replace('_e32','').replace('_e64','') in TRANS and c.kind in ('mfma',) and pv & c.r: n = max(n, 2)
        if ps & c.r:
            if c.kind == 'valu': n = max(n, 4 if c.mn.startswith(('v_readlane', 'v_writelane')) else 2)
            if c.kind == 'vmem': n = max(n, 5)
            if c.kind == 'salu': n = max(n, 4)
        if 'exec' in p.w:
            if c.kind == 'mfma' or 'permlane' in c.mn or c.mn.startswith('v_read'): n = max(n, 4)
            if 'dpp' in c.text: n = max(n, 5)
    if p.kind == 'salu':
        if 'm0' in p.w and c.kind == 'vmem' and getattr(c, 'lds', False): n = max(n, 1)
    if p.kind == 'mfma':
        big = p.passes == 8
        if c.kind == 'mfma':
            if p.w & c.rA: n = max(n, 12 if big else 8)
            if p.w & c.rC:
                if not (p.w == c.rC and p.passes == c.passes): n = max(n, 10 if big else 6)
            if p.w & c.w and not (p.w == c.w and p.passes == c.passes): n = max(n, 10 if big else 6)
        elif c.kind in ('valu', 'ds', 'vmem'):
            if p.w & (c.r | c.w): n = max(n, 12 if big else 8)
            if c.kind == 'valu' and p.rC & c.w: n = max(n, 7 if big else 3)
            if c.kind in ('ds', 'vmem') and p.rC & c.w: n = max(n, 7 if big else 3)
    if p.kind == 'vmem' and getattr(p, 'store_wide', False):
        if p.data & c.w: n = max(n, 2)
    return n

class Asm:
    def __init__(self):
        self.lines = []
    def __call__(self, text):
        for t in text.split('\n'):
            t = t.strip()
            if t: self.lines.append(t)
    def raw(self, text):
        self.lines.append(text)
    def finish(self, verbose=False):
        ins = [Ins(t) for t in self.lines]
        out = []
        W = 24
        nn = 0
        def window(lst):
            seq = [p for p in lst[-80:] if p.kind != 'meta']
            t = 0; last = None; times = []
            for p in seq:
                if p.kind == 'mfma':
                    if last is not None: t = max(t, last[0] + last[1])
                    last = (t, p.passes)
                times.append(t)
                t += p.states
            res = []
            for p, ti in zip(reversed(seq), reversed(times)):
                d = t - ti - 1
                if p.kind == 'nop': continue
                res.append((p, d))
                if d > W: break
            return res
        for c in ins:
            if c.kind not in ('meta', 'nop'):
                k = 0
                for p, d in window(out):
                    k = max(k, need(p, c) - d)
                    if p.mn in ('s_branch', 's_endpgm', 's_setpc_b64'): break
                if k > 0:
                    while k > 0:
                        s = min(k, 16)
                        out.append(Ins(f's_nop {s-1}')); k -= s; nn += 1
            out.append(c)
        labels = {i.text.split(':')[0].strip(): n for n, i in enumerate(out) if i.label}
        problems = []
        for n, b in enumerate(out):
            if b.kind == 'salu' and b.mn.startswith(('s_cbranch', 's_branch')):
                tgt = b.ops[0]
                if tgt not in labels: continue
                pre = window(out[:n + 1])
                d2 = 0
                for c in out[labels[tgt]:]:
                    if c.kind == 'meta': continue
                    for p, d in pre:
                        if need(p, c) - (d + d2) > 0:
                            problems.append((b.text, p.text, c.text, need(p, c) - (d + d2)))
                    d2 += c.states
                    if d2 > W or c.mn in ('s_branch', 's_endpgm', 's_setpc_b64'): break
        if problems:
            for p in problems: print('HAZARD across branch:', p)
            raise SystemExit('fix hazards across branches')
        if verbose: print('inserted nops:', nn)
        return '\n'.join(('' if i.label or i.directive else '    ') + i.text for i in out) + '\n'

def autowait(lines, pending=None, final=None, cap=15, age=14, pborn=-999):
    out = []
    q = list(pending or [])
    born = [pborn] * len(q)
    for pos, t in enumerate(lines):
        c = Ins(t)
        if c.kind == 'meta':
            out.append(t); continue
        m = re.match(r's_waitcnt.*lgkmcnt\((\d+)\)', t)
        if m:
            n = int(m.group(1))
            if len(q) > n:
                q = q[len(q)-n:] if n else []; born = born[len(born)-n:] if n else []
            out.append(t); continue
        need_idx = -1
        touched = c.r | c.w
        for i, d in enumerate(q):
            if d & touched: need_idx = i
        n = None
        if need_idx >= 0:
            while need_idx + 1 < len(q) and pos - born[need_idx + 1] >= age: need_idx += 1
            n = len(q) - 1 - need_idx
        if c.kind == 'ds' and len(q) >= cap:
            n2 = cap - 1
            n = n2 if n is None else min(n, n2)
        if n is not None:
            out.append(f's_waitcnt lgkmcnt({n})')
            q = q[len(q)-n:] if n else []; born = born[len(born)-n:] if n else []
        out.append(t)
        if c.kind == 'ds': q.append(set(c.w)); born.append(pos)
    if final is not None and len(q) > final:
        out.append(f's_waitcnt lgkmcnt({final})')
    return out
```

```python
from asmlib import autowait
import struct
def f32(x): return '0x%08x' % struct.unpack('<I', struct.pack('<f', x))[0]
def vr(b, n=1): return f'v{b}' if n == 1 else f'v[{b}:{b+n-1}]'
MF32 = 'v_mfma_f32_32x32x16_bf16'
MF16 = 'v_mfma_f32_16x16x32_bf16'

class C:
    CA0, CA1, CT0, CT1 = 4, 5, 6, 7
    AP, U, LA, OP = 16, 40, 88, 92
    KA = [96, 168]; KT = [120, 216]; S = [144, 192]; P = [160, 208]

def ka(x, s): return f'ds_read_b128 {vr(C.KA[x]+4*s,4)}, v{C.CA1 if s&1 else C.CA0} offset:{x*12288+64*(s>>1)}'
def kt(x, ks, t): return [f'ds_read_b64_tr_b16 {vr(C.KT[x]+(ks*3+t)*4+2*sec,2)}, v{C.CT1 if sec else C.CT0} offset:{x*12288+64*t+3072*ks}' for sec in range(2)]
def sm(x, s): return f'{MF32} {vr(C.S[x],16)}, {vr(C.KA[x]+4*s,4)}, {vr(C.AP+4*s,4)}, {"0" if s == 0 else vr(C.S[x],16)}'
def pv(x, ks, t):
    if t == 3: return f'{MF16} {vr(C.LA,4)}, {vr(C.OP,4)}, {vr(C.P[x]+4*ks,4)}, {vr(C.LA,4)}'
    return f'{MF32} {vr(C.U+16*t,16)}, {vr(C.KT[x]+(ks*3+t)*4,4)}, {vr(C.P[x]+4*ks,4)}, {vr(C.U+16*t,16)}'
def ex(x, i): return f'v_exp_f32 v{C.S[x]+i}, v{C.S[x]+i}'
def cv(x, i): return f'v_cvt_pk_bf16_f32 v{C.P[x]+i}, v{C.S[x]+2*i}, v{C.S[x]+2*i+1}'
def adv(): return [f'v_add_u32 v{r}, {4*6144}, v{r}' for r in (C.CA0, C.CA1, C.CT0, C.CT1)]

def flat(l):
    o = []
    for x in l:
        if isinstance(x, (list, tuple)): o += flat(x)
        else: o.append(x)
    return o

def cons2(var=0):
    E = lambda x, a, b: [ex(x, i) for i in range(a, b)]
    V = lambda x, a, b: [cv(x, i) for i in range(a, b)]
    if var == 0:
        L = [[ka(0, s) for s in range(6)],
             sm(0,0), ka(1,0), ka(1,1), sm(0,1), ka(1,2), ka(1,3), sm(0,2), ka(1,4), ka(1,5),
             sm(0,3), kt(0,0,0), sm(0,4), kt(0,0,1), sm(0,5), kt(0,0,2),
             sm(1,0), kt(0,1,0), kt(0,1,1), sm(1,1), E(0,0,3), sm(1,2), E(0,3,6), sm(1,3), E(0,6,8), V(0,0,2),
             sm(1,4), V(0,2,4), E(0,8,10), sm(1,5), kt(0,1,2), E(0,10,12),
             pv(0,0,0), E(0,12,15), pv(0,0,1), E(0,15,16), V(0,4,8), pv(0,0,2), kt(1,0,0), E(1,0,2), pv(0,0,3), E(1,2,3),
             pv(0,1,0), kt(1,0,1), E(1,3,5), pv(0,1,1), kt(1,0,2), E(1,5,7), pv(0,1,2), E(1,7,8), V(1,0,4), pv(0,1,3), kt(1,1,0),
             pv(1,0,0), kt(1,1,1), E(1,8,10), pv(1,0,1), kt(1,1,2), E(1,10,12), pv(1,0,2), E(1,12,15), pv(1,0,3), E(1,15,16), V(1,4,8), adv(),
             pv(1,1,0), pv(1,1,1), pv(1,1,2), pv(1,1,3)]
    elif var == 1:
        L = [[ka(0, s) for s in range(6)],
             sm(0,0), ka(1,0), sm(0,1), ka(1,1), ka(1,2), sm(0,2), ka(1,3), sm(0,3), ka(1,4), ka(1,5), sm(0,4), kt(0,0,0), sm(0,5), kt(0,0,1), kt(0,0,2),
             sm(1,0), kt(0,1,0), kt(0,1,1), kt(0,1,2), E(0,0,8), V(0,0,4), sm(1,1), E(0,8,11), sm(1,2), E(0,11,14), sm(1,3), E(0,14,16), V(0,4,6), sm(1,4), V(0,6,8), kt(1,0,0), sm(1,5), kt(1,0,1), kt(1,0,2),
             pv(0,0,0), kt(1,1,0), pv(0,0,1), E(1,0,3), pv(0,0,2), E(1,3,6), pv(0,0,3), E(1,6,7),
             pv(0,1,0), E(1,7,8), V(1,0,4), pv(0,1,1), E(1,8,11), pv(0,1,2), E(1,11,14), pv(0,1,3), kt(1,1,1),
             pv(1,0,0), E(1,14,16), kt(1,1,2), pv(1,0,1), V(1,4,8), pv(1,0,2), adv(), pv(1,0,3),
             pv(1,1,0), pv(1,1,1), pv(1,1,2), pv(1,1,3)]
    return autowait(flat(L))

def cons1(extra_pre=(), extra_mid=()):
    E = lambda x, a, b: [ex(x, i) for i in range(a, b)]
    V = lambda x, a, b: [cv(x, i) for i in range(a, b)]
    L = [[ka(0, s) for s in range(6)],
         sm(0,0), kt(0,0,0), sm(0,1), kt(0,0,1), sm(0,2), kt(0,0,2), sm(0,3), kt(0,1,0), sm(0,4), kt(0,1,1), sm(0,5), kt(0,1,2), list(extra_pre),
         E(0,0,8), V(0,0,4), pv(0,0,0), E(0,8,11), pv(0,0,1), E(0,11,14), pv(0,0,2), E(0,14,16), V(0,4,6), pv(0,0,3), V(0,6,8), list(extra_mid),
         pv(0,1,0), pv(0,1,1), pv(0,1,2), pv(0,1,3)]
    return autowait(flat(L))

class P:
    RA0, RA1 = 5, 6
    SLV = [9, 10, 11]
    LT = [16, 64, 112]
    X, F = 160, 208
    ID, OP, SM, SL, T = 232, 240, 244, 248, 252

def p_head(k):
    L = []
    for s in (0, 2, 4, 1, 3, 5):
        L.append(f'ds_read_b128 {vr(P.F+4*s,4)}, v{P.RA1 if s&1 else P.RA0} offset:{64*(s>>1)}')
    L.append(f'v_mov_b32 v{P.SL}, v{P.SLV[k]}')
    for t in range(3):
        L.append(f's_waitcnt lgkmcnt({5-t})')
        L.append(f'{MF32} {vr(P.X+16*t,16)}, {vr(P.ID,4)}, {vr(P.F+8*t,4)}, {vr(P.LT[k]+16*t,16)}')
    return L

def p_tail(var=0):
    X, F, T, SM, SL = P.X, P.F, P.T, P.SM, P.SL
    Q0, Q1 = T, T+1
    L = []; a = L.append
    def identb(t): a(f'{MF32} {vr(X+16*t,16)}, {vr(P.ID+4,4)}, {vr(F+8*t+4,4)}, {vr(X+16*t,16)}')
    def summ(s): a(f'{MF16} {vr(SM,4)}, {vr(P.OP,4)}, {vr(F+4*s,4)}, {vr(SL,4) if s == 0 else vr(SM,4)}')
    sqi = [0]
    def sq(n):
        for _ in range(n):
            i = sqi[0]; sqi[0] += 1
            q = Q0 if i % 2 == 0 else Q1
            a(f'v_mul_f32 v{q}, v{X+i}, v{X+i}' if i < 2 else f'v_fmac_f32 v{q}, v{X+i}, v{X+i}')
    a('s_waitcnt lgkmcnt(0)')
    identb(0); identb(1); summ(0); sq(2); identb(2); sq(6)
    for s in range(1, 6):
        summ(s); sq(2)
    sq(48 - sqi[0])
    a(f'v_add_f32 v{Q0}, v{Q0}, v{Q1}')
    a(f'v_mul_f32 v{SM}, {f32(1/96)}, v{SM}')
    a(f'v_mov_b32 v{Q1}, v{Q0}')
    a(f'v_mul_f32 v{SM+1}, v{SM}, v{SM}')
    a(f'v_subrev_f32 v{SM+1}, {f32(1e-5)}, v{SM+1}')
    a(f'v_permlane32_swap_b32 v{Q0}, v{Q1}')
    a(f'v_add_f32 v{Q0}, v{Q0}, v{Q1}')
    a(f'v_fma_f32 v{Q0}, v{Q0}, s62, -v{SM+1}')
    a(f'v_max_f32 v{Q0}, {f32(1e-5)}, v{Q0}')
    a(f'v_rsq_f32 v{Q0}, v{Q0}')
    a('s_nop 0')
    a(f'v_mul_f32 v{Q1}, -v{SM}, v{Q0}')
    for s in range(6):
        for i in range(8): a(f'v_fma_f32 v{X+8*s+i}, v{X+8*s+i}, v{Q0}, v{Q1}')
        for i in range(4): a(f'v_cvt_pk_bf16_f32 v{F+4*s+i}, v{X+8*s+2*i}, v{X+8*s+2*i+1}')
        if var == 1:
            a(f'ds_write_b64 v{P.RA1 if s&1 else P.RA0}, {vr(F+4*s,2)} offset:{64*(s>>1)}')
            a(f'ds_write_b64 v{P.RA1 if s&1 else P.RA0}, {vr(F+4*s+2,2)} offset:{64*(s>>1)+8}')
        else:
            a(f'ds_write_b128 v{P.RA1 if s&1 else P.RA0}, {vr(F+4*s,4)} offset:{64*(s>>1)}')
    a(f'v_add_u32 v{P.RA0}, {4*6144}, v{P.RA0}')
    a(f'v_add_u32 v{P.RA1}, {4*6144}, v{P.RA1}')
    a('s_waitcnt lgkmcnt(0)')
    return L
```

```python
import sys, math, struct
from asmlib import Asm, autowait
import blocks as B
from blocks import vr, f32, MF32, MF16, flat

KNAME = 'standalone__detection_seg_mask2former__vision_kernel'

HI = 0
WM = 12 * 6144
QS = 15 * 6144
WQ = 16 * 6144
LO = 110592 + 6144
WREG = LO + 27648
SCR = WREG + 18432
TOT = SCR
PF = SCR + 512
TKT = SCR + 528
CNT = SCR + 544
XCH = LO + 2048
WO = 0
FIN = 20480
CTX = 28672
LDS_BYTES = SCR + 1024
assert LDS_BYTES <= 163840 and XCH % 4096 == 0
REC_BYTES = 16 * 256 * 256
STAMP_OFF = 4 << 20
FSW = sum(((((-(px >> 2)) & 3) ^ ((px >> 1) & 1)) << (2 * px)) for px in range(16))

class Cfg:
    stamps = False
    cyc = False
    repf = 0
    cvar = 0
    g0pos = 1
    fine = 0
    wvpos = 2
    h0pos = 1
    cpp = 2
    cmain = 0

SQ, SHI, SLO, SWL, SWQ, SWK, SWV, SWO, SWM, SOUT, SDBG, SWS = [f's[{4+2*i}:{5+2*i}]' for i in range(12)]
RHI, RLO, RWS = 's[28:31]', 's[32:35]', 's[36:39]'
SF = 's63'
STAMP0 = 64

def stamp(a, cfg, i):
    if cfg.stamps: a(f"{'s_memtime' if cfg.cyc else 's_memrealtime'} s[{STAMP0+2*i}:{STAMP0+2*i+1}]")

def stamp_flush(a, cfg, tmpv=100):
    if not cfg.stamps: return
    a('s_waitcnt lgkmcnt(0)')
    a('s_lshl_b32 s61, s2, 3\ns_add_u32 s61, s61, s3')
    a(f's_lshl_b32 s62, s61, 7')
    a(f's_add_u32 s62, s62, {STAMP_OFF}')
    for i in range(32): a(f'v_mov_b32 v{tmpv+i}, s{STAMP0+i}')
    a(f'v_mov_b32 v{tmpv+32}, 0')
    a('s_mov_b64 exec, 1')
    a('s_mov_b32 s56, s26\ns_mov_b32 s57, s27\ns_mov_b32 s58, 0x1000000\ns_mov_b32 s59, 0x20000')
    for i in range(8):
        a(f'buffer_store_dwordx4 {vr(tmpv+4*i,4)}, v{tmpv+32}, s[56:59], s62 offen offset:{16*i}')
    a('s_mov_b64 exec, -1')

def dma_swz(a, dst, k, tmp):
    a(f'v_add_u32 v{tmp}, {64*k if isinstance(k,int) else k}, v1')
    a(f'v_mul_u32_u24 v{tmp}, 0xaaab, v{tmp}')
    a(f'v_lshrrev_b32 v{tmp}, 18, v{tmp}')
    a(f'v_and_b32 v{tmp}, 0x1e, v{tmp}')
    a(f'v_bfe_u32 v{tmp}, {SF}, v{tmp}, 2')
    a(f'v_xor_b32 v{tmp}, v{tmp}, v1')
    a(f'v_lshlrev_b32 v{dst}, 4, v{tmp}')

def dma_part(a, ptr, ldsbase, voff, spart):
    lo = int(ptr[2:ptr.index(':')])
    a(f's_add_u32 m0, {spart}, {ldsbase}')
    a(f's_add_u32 s50, s{lo}, 4096')
    for k in range(4): a(f'global_load_lds_dwordx4 v{voff}, {ptr} offset:{1024*k}')
    a(f's_addc_u32 s51, s{lo+1}, 0')
    a(f's_add_u32 m0, {spart}, {ldsbase+4096}')
    a('s_mov_b32 exec_hi, 0')
    a(f'global_load_lds_dwordx4 v{voff}, s[50:51]')
    a('s_mov_b32 exec_hi, -1')

def dma_extra(a, ptr, ldsbase, voff, sbase):
    lo = int(ptr[2:ptr.index(':')])
    a(f's_add_u32 s50, s{lo}, 4096')
    a(f's_addc_u32 s51, s{lo+1}, 0')
    a(f's_add_u32 m0, {sbase}, {ldsbase+4096}')
    a('s_nop 0')
    a(f'global_load_lds_dwordx4 v{voff}, s[50:51]')

def dma_main(a, ptr, ldsbase, voff, sbase):
    a(f's_add_u32 m0, {sbase}, {ldsbase}')
    a('s_nop 0')
    for k in range(4): a(f'global_load_lds_dwordx4 v{voff}, {ptr} offset:{1024*k}')

def arrive(a, which, va, vd, rtn=False):
    a(f'v_mov_b32 v{va}, {CNT + 4*which}')
    a(f'v_mov_b32 v{vd}, 1')
    a('s_mov_b64 exec, 1')
    a(f'ds_add_rtn_u32 v{vd}, v{va}, v{vd}' if rtn else f'ds_add_u32 v{va}, v{vd}')
    a('s_mov_b64 exec, -1')

def await_cnt(a, which, tag, va, vd, n=4, setaddr=True):
    if setaddr: a(f'v_mov_b32 v{va}, {CNT + 4*which}')
    a(f'{tag}:')
    a(f'ds_read_b32 v{vd}, v{va}')
    a('s_waitcnt lgkmcnt(0)')
    a(f'v_readfirstlane_b32 s50, v{vd}')
    a(f's_cmp_lt_u32 s50, {n}')
    a(f's_cbranch_scc1 {tag}')

def lds_sync(a, which, tag, va, vd, n=4):
    arrive(a, which, va, vd, rtn=True)
    a('s_waitcnt lgkmcnt(0)')
    a(f'v_readfirstlane_b32 s50, v{vd}')
    a(f's_cmp_ge_u32 s50, {n-1}')
    a(f's_cbranch_scc1 {tag}_ok')
    await_cnt(a, which, tag + '_spin', va, vd, n, setaddr=False)
    a(f'{tag}_ok:')

def code_prefetch(a, tag, vt, tidoff, sp='s[44:45]', start=KNAME):
    lo = int(sp[2:sp.index(':')])
    a(f's_getpc_b64 {sp}')
    a(f'{tag}:')
    a(f's_add_u32 s{lo}, s{lo}, {start}-{tag}')
    a(f's_addc_u32 s{lo+1}, s{lo+1}, {"-1" if start == KNAME else "0"}')
    a(f'v_add_u32 v{vt}, {tidoff}, v0')
    a(f'v_lshlrev_b32 v{vt}, 7, v{vt}')
    a(f'v_min_u32 v{vt}, L_codeend-{start}-4, v{vt}')
    a(f'global_load_dword v{vt+1}, v{vt}, {sp}')

def gen_entry(a, cfg):
    a('s_cmp_ge_u32 s2, 256')
    a('s_cbranch_scc1 L_end')
    if cfg.stamps:
        for i in range(32): a(f's_mov_b32 s{STAMP0+i}, 0')
    stamp(a, cfg, 0)
    a('s_load_dwordx16 s[4:19], s[0:1], 0')
    a('s_load_dwordx8 s[20:27], s[0:1], 64')
    a('v_lshrrev_b32 v2, 6, v0')
    a('v_and_b32 v1, 63, v0')
    a('v_readfirstlane_b32 s3, v2')
    a(f's_mov_b32 {SF}, {FSW:#x}')
    a('s_mul_i32 s57, s2, 9')
    a(f's_mov_b32 s62, {f32(1/96)}')
    a('s_cmp_ge_u32 s3, 4')
    a('s_cbranch_scc1 L_cons')

def gen_producer(a, cfg):
    W0, W1, W2, RA0, RA1, RL0, RL1 = 2, 3, 4, 5, 6, 7, 8
    SLV, LT, X, F = B.P.SLV, B.P.LT, B.P.X, B.P.F
    WL, FA = 160, 232
    ID, OP, SM, SL, T = B.P.ID, B.P.OP, B.P.SM, B.P.SL, B.P.T
    FLA, FLV = 14, 15
    U = 112
    sP = 's3'
    sH0, sH1, sLo0, sLo1 = 's40', 's41', 's43', 's44'
    sSlot, sLoP, RET = 's45', 's46', 's[48:49]'
    t0, t1, t2 = 's52', 's53', 's54'
    for k, w in enumerate((W0, W1, W2)): dma_swz(a, w, k, U)
    a(f'v_lshlrev_b32 v{U+3}, 4, v1')
    for i in range(4): a(f'v_mov_b32 v{U+4+i}, 0')
    a(f'v_add_u32 v{U+8}, {SCR}, v{U+3}')
    a(f'ds_write_b128 v{U+8}, {vr(U+4,4)}')
    a(f's_add_u32 s58, s57, {sP}')
    a(f's_mul_i32 {sLo0}, s58, 3072')
    a(f's_mul_i32 {sLoP}, {sP}, 3072')
    a(f's_add_u32 {sLoP}, {sLoP}, {LO}')
    a('s_mov_b32 s34, 7077888\ns_mov_b32 s35, 0x20000')
    a(f's_add_u32 {sLo1}, {sLo0}, {4*3072}')
    a(f's_min_u32 {t0}, {sP}, 2')
    a(f's_lshl_b32 s47, {sP}, 2')
    a(f's_add_u32 s47, s47, {t0}')
    a(f's_lshl_b32 s47, s47, 10')
    a(f'v_add_u32 v15, s47, v{U+3}')
    a(f's_cmp_ge_u32 {sP}, 2')
    a('s_waitcnt lgkmcnt(0)')
    a('s_cbranch_scc1 P_nox')
    dma_extra(a, SWL, WREG, 15, 's47')
    a('P_nox:')
    dma_main(a, SWL, WREG, 15, 's47')
    def half(srd, soff):
        for k, w in enumerate((W0, W1, W2)):
            a(f'buffer_load_dwordx4 v{w}, {srd}, {soff} offen offset:{1024*k} nt lds')
    a('s_mov_b32 s32, s8\ns_mov_b32 s33, s9')
    a(f's_mov_b32 m0, {sLoP}')
    a('s_mov_b32 s28, s6')
    half(RLO, sLo0)
    a('s_barrier')
    a('s_add_u32 s60, s57, 8')
    a('s_mov_b32 s29, s7\ns_mov_b32 s30, 28311552\ns_mov_b32 s31, 0x20000')
    def hi_off(dst, u):
        a(f's_mul_i32 {t0}, {u}, 43691')
        a(f's_lshr_b32 {t0}, {t0}, 19')
        a(f's_mul_i32 {t0}, {t0}, 73728')
        a(f's_mul_i32 {dst}, {u}, 6144')
        a(f's_add_u32 {dst}, {dst}, {t0}')
    a('s_add_u32 s59, s58, 4')
    hi_off(sH0, 's58'); hi_off(sH1, 's59'); hi_off('s42', 's60')
    a(f's_mul_i32 {t0}, {sP}, 73728')
    a(f's_add_u32 s42, s42, {t0}')
    a(f's_mul_i32 {sSlot}, {sP}, 6144')
    a(f's_add_u32 {t2}, {sH0}, 73728')
    a(f's_cmp_lt_u32 {sP}, 2')
    a(f's_cselect_b32 s55, s42, {sH0}')
    a(f's_cselect_b32 s56, {sH0}, {t2}')
    def issue_h(soff, rnd, hf, add=0):
        a(f's_add_u32 m0, {sSlot}, {rnd*4*6144+3072*hf}')
        if add + hf:
            a(f's_add_u32 {t0}, {soff}, {add+3072*hf}'); src = t0
        else:
            a('s_nop 0'); src = soff
        half(RHI, src)
    stamp(a, cfg, 1)
    a(f'v_and_b32 v{U}, 31, v1')
    a(f'v_lshrrev_b32 v{U+1}, 5, v1')
    def rdaddr(d0, d1, px, base):
        a(f'v_lshlrev_b32 v{U+2}, 1, v{px}')
        a(f'v_and_b32 v{U+2}, 0x1e, v{U+2}')
        a(f'v_bfe_u32 v{U+2}, {SF}, v{U+2}, 2')
        a(f'v_xor_b32 v{U+2}, v{U+2}, v{U+1}')
        a(f'v_xor_b32 v{U+3}, 2, v{U+2}')
        a(f'v_mul_u32_u24 v{U+4}, 192, v{px}')
        a(f'v_add_u32 v{U+4}, {base}, v{U+4}')
        a(f'v_lshl_add_u32 v{d0}, v{U+2}, 4, v{U+4}')
        a(f'v_lshl_add_u32 v{d1}, v{U+3}, 4, v{U+4}')
    rdaddr(RA0, RA1, U, sSlot)
    a(f'v_lshrrev_b32 v{U+5}, 1, v{U}')
    rdaddr(RL0, RL1, U+5, sLoP)
    a(f's_sub_u32 {t0}, {LO+8*3072}, {sLoP}')
    a(f'v_add_u32 v12, {t0}, v{RL0}')
    a(f'v_add_u32 v13, {t0}, v{RL1}')
    a(f'v_bfe_u32 v14, v1, 2, 2')
    a(f'v_lshl_add_u32 v14, v{U+1}, 3, v14')
    a(f'v_mul_u32_u24 v14, 192, v14')
    a(f'v_bfe_u32 v{U+3}, v1, 4, 1')
    a(f'v_lshl_add_u32 v14, v{U+3}, 5, v14')
    a(f'v_and_b32 v{U+3}, 1, v1')
    a(f'v_lshl_add_u32 v14, v{U+3}, 4, v14')
    a(f'v_bfe_u32 v{U+3}, v1, 1, 1')
    a(f'v_lshl_add_u32 v14, v{U+3}, 3, v14')
    a(f'v_add_u32 v14, {WREG}, v14')
    a(f's_waitcnt vmcnt(0)')
    stamp(a, cfg, 10)
    arrive(a, 0, 16, 17)
    a(f's_add_u32 m0, {sLoP}, {4*3072}')
    a('s_nop 0')
    half(RLO, sLo1)
    def lo_reads(dst, r0, r1, off):
        return [f'ds_read_b128 {vr(dst+4*s,4)}, v{r1 if s&1 else r0} offset:{off+64*(s>>1)}' for s in range(6)]
    for l in lo_reads(FA, RL0, RL1, 0): a(l)
    if cfg.h0pos == 0: issue_h('s55', 0, 0)
    await_cnt(a, 0, 'P_sy0', 16, 17, 4, setaddr=False)
    stamp(a, cfg, 2)
    def wl_reads(t, s):
        return [f'ds_read_b64_tr_b16 {vr(WL+(t*6+s)*4+2*sec,2)}, v14 offset:{s*3072+sec*768+t*64}' for sec in range(2)]
    def lat_mfma(k, t, s, fr):
        c = '0' if s == 0 else vr(LT[k]+16*t,16)
        return f'{MF32} {vr(LT[k]+16*t,16)}, {vr(WL+(t*6+s)*4,4)}, {vr(fr+4*s,4)}, {c}'
    pend = []
    def sumL(k, t):
        for i in range(16):
            pend.append(f'v_mov_b32 v{SLV[k]}, v{LT[k]}' if (t == 0 and i == 0) else f'v_add_f32 v{SLV[k]}, v{SLV[k]}, v{LT[k]+16*t+i}')
    def drain(n):
        o = pend[:n]; del pend[:n]; return o
    L = [wl_reads(0, s) for s in range(4)]
    seq = [(t, s) for t in range(3) for s in range(6)]
    for i, (t, s) in enumerate(seq):
        L.append(lat_mfma(0, t, s, FA))
        if i + 4 < 18: L.append(wl_reads(*seq[i+4]))
        if s >= 1: L.append(drain(4))
        if s == 5: sumL(0, t)
    for l in autowait(flat(L), age=99): a(l)
    if cfg.h0pos == 1: issue_h('s55', 0, 0)
    a('s_waitcnt vmcnt(3)')
    for l in lo_reads(LT[2], RL0, RL1, 4*3072): a(l)
    issue_h('s55', 0, 1)
    a('s_waitcnt lgkmcnt(0)')
    for t in range(3):
        for s in range(6):
            a(lat_mfma(1, t, s, LT[2]))
            if s >= 1:
                for l in drain(4): a(l)
        sumL(1, t)
    stamp(a, cfg, 3)
    issue_h('s56', 1, 0)
    a(f's_cmp_lt_u32 {sP}, 2')
    a('s_cbranch_scc0 P_noc')
    save = list(pend)
    await_cnt(a, 1, 'P_sy1', U+24, U+25, 4)
    for l in lo_reads(FA, 12, 13, 0): a(l)
    for l in drain(16): a(l)
    a('s_waitcnt lgkmcnt(0)')
    for t in range(3):
        for s in range(6):
            a(lat_mfma(2, t, s, FA))
            if s >= 1:
                for l in drain(4): a(l)
        sumL(2, t)
    for l in drain(99): a(l)
    a('s_branch P_cdone')
    a('P_noc:')
    a('s_nop 4')
    for l in save: a(l)
    a('P_cdone:')
    for k in range(3): a(f'v_mov_b32 v{T+k}, v{SLV[k]}')
    Y = X
    a(f'v_lshrrev_b32 v{Y+1}, 5, v1')
    a(f'v_bfe_u32 v{Y+2}, v1, 3, 1')
    for k in range(3): a(f'v_permlane32_swap_b32 v{T+k}, v{SLV[k]}')
    for k in range(3): a(f'v_add_f32 v{SLV[k]}, v{SLV[k]}, v{T+k}')
    a(f'v_and_b32 v{Y+3}, 3, v1')
    a(f'v_lshl_add_u32 v{Y+2}, v{Y+2}, 2, v{Y+3}')
    a(f'v_bfe_u32 v{Y+3}, v1, 2, 1')
    a(f'v_cmp_eq_u32 vcc, v{Y+3}, v{Y+1}')
    a(f'v_and_b32 v{Y+6}, 1, v{Y+2}')
    a(f'v_lshlrev_b32 v{Y+6}, 4, v{Y+6}')
    a(f'v_mov_b32 v{Y+4}, 0x3f80')
    a(f'v_lshlrev_b32 v{Y+6}, v{Y+6}, v{Y+4}')
    a(f'v_cndmask_b32 v{Y+6}, 0, v{Y+6}, vcc')
    a(f'v_lshrrev_b32 v{Y+2}, 1, v{Y+2}')
    a(f'v_bfe_u32 v{Y+4}, v1, 4, 1')
    a(f'v_lshl_add_u32 v{Y+2}, v{Y+4}, 2, v{Y+2}')
    a(f'v_cmp_eq_u32 s[58:59], v{Y+3}, v{Y+4}')
    a(f'v_mov_b32 v{Y+7}, 0x3f803f80')
    for i in range(0, 8, 2):
        a(f'v_cmp_eq_u32 vcc, {i}, v{Y+2}')
        a(f'v_cmp_eq_u32 s[60:61], {i+1}, v{Y+2}')
        a(f'v_cndmask_b32 v{OP+i//2}, 0, v{Y+7}, s[58:59]')
        a(f'v_cndmask_b32 v{ID+i}, 0, v{Y+6}, vcc')
        a(f'v_cndmask_b32 v{ID+i+1}, 0, v{Y+6}, s[60:61]')
    a(f's_lshl_b32 {t0}, {sP}, 2')
    a(f's_add_u32 {t0}, {t0}, {PF}')
    a(f'v_mov_b32 v{FLA}, {t0}')
    a(f'v_mov_b32 v{FLV}, 0')
    a(f's_cmp_lt_u32 {sP}, 2')
    a('s_cbranch_scc0 P_scriptB')
    a('s_waitcnt vmcnt(3)'); stamp(a, cfg, 4)
    issue_h('s56', 1, 1)
    a(f's_call_b64 {RET}, P_h2')
    issue_h(sH0, 2, 0, 73728)
    a('s_waitcnt vmcnt(3)'); stamp(a, cfg, 5)
    issue_h(sH0, 2, 1, 73728)
    a(f's_call_b64 {RET}, P_h0')
    await_cnt(a, 3, 'P_wa3', 12, 13, 4)
    issue_h(sH1, 3, 0)
    a('s_waitcnt vmcnt(3)'); stamp(a, cfg, 6)
    issue_h(sH1, 3, 1)
    a(f's_call_b64 {RET}, P_h0')
    await_cnt(a, 4, 'P_wa4', 12, 13, 4)
    issue_h(sH1, 4, 0, 73728)
    a('s_waitcnt vmcnt(3)'); stamp(a, cfg, 7)
    issue_h(sH1, 4, 1, 73728)
    a(f's_call_b64 {RET}, P_h1')
    a(f's_call_b64 {RET}, P_h1w')
    a('s_barrier')
    a('s_branch P_fin')
    a('P_scriptB:')
    a('s_waitcnt vmcnt(3)'); stamp(a, cfg, 4)
    issue_h('s56', 1, 1)
    a(f's_call_b64 {RET}, P_h0')
    issue_h(sH1, 2, 0)
    a('s_waitcnt vmcnt(3)'); stamp(a, cfg, 5)
    issue_h(sH1, 2, 1)
    a(f's_call_b64 {RET}, P_h0')
    await_cnt(a, 3, 'P_wb3', 12, 13, 4)
    issue_h(sH1, 3, 0, 73728)
    a('s_waitcnt vmcnt(3)'); stamp(a, cfg, 6)
    issue_h(sH1, 3, 1, 73728)
    a(f's_call_b64 {RET}, P_h1')
    a('s_waitcnt vmcnt(0)'); stamp(a, cfg, 7)
    a(f's_cmp_eq_u32 {sP}, 2')
    a('s_cbranch_scc0 P_notk')
    a(f'v_mov_b32 v12, 1\nv_mov_b32 v13, 0')
    a('s_mov_b64 exec, 1')
    a(f'global_atomic_add v12, v13, v12, {SDBG} sc0 sc1')
    a('s_mov_b64 exec, -1')
    a('P_notk:')
    a(f's_call_b64 {RET}, P_h1')
    a(f's_cmp_eq_u32 {sP}, 2')
    a('s_cbranch_scc0 P_notk2')
    a('s_waitcnt vmcnt(0)')
    a(f'v_mov_b32 v13, {TKT}')
    a('s_mov_b64 exec, 1')
    a(f'ds_write_b32 v13, v12')
    a('s_mov_b64 exec, -1')
    a('s_waitcnt lgkmcnt(0)')
    stamp(a, cfg, 8)
    a('P_notk2:')
    if cfg.repf: code_prefetch(a, 'L_pc2', 16, -128, 's[50:51]')
    a('s_barrier')
    a('P_fin:')
    stamp(a, cfg, 9)
    a(f'v_mov_b32 v9, {TKT}')
    a('ds_read_b32 v9, v9')
    a('s_waitcnt lgkmcnt(0)')
    a('v_readfirstlane_b32 s47, v9')
    a('s_cmp_ge_u32 s47, 16')
    a('s_cbranch_scc1 L_exit')
    a(f's_mul_i32 s48, {sP}, 4608')
    a('v_lshlrev_b32 v2, 4, v1')
    a('v_add_u32 v12, s48, v2')
    dma_part(a, SWO, WO, 12, 's48')
    a(f's_mov_b32 s36, s26\ns_mov_b32 s37, s27\ns_mov_b32 s38, {REC_BYTES}\ns_mov_b32 s39, 0x20000')
    a('s_barrier')
    a('s_branch L_comb')
    for k in (0, 2):
        a(f'P_h{k}:')
        for l in B.p_head(k): a(l)
        a('s_branch P_s1')
    a('P_h1w:')
    a('s_waitcnt vmcnt(0)')
    stamp(a, cfg, 8)
    a('P_h1:')
    for l in B.p_head(1): a(l)
    a('P_s1:')
    tail = B.p_tail(0)
    for l in tail[:-1]: a(l)
    a(f'v_add_u32 v{FLV}, 1, v{FLV}')
    a('s_waitcnt lgkmcnt(0)')
    a(f'ds_write_b32 v{FLA}, v{FLV}')
    a(f's_setpc_b64 {RET}')

def gen_consumer(a, cfg):
    sH = 's40'
    t0, t1 = 's41', 's42'
    RET = 's[44:45]'
    sR = 's43'
    LIN, REC, WVA, XA = 2, 3, 8, 9
    CA0, CA1, CT0, CT1 = B.C.CA0, B.C.CA1, B.C.CT0, B.C.CT1
    PART = 12
    AP, U, LA, OP = B.C.AP, B.C.U, B.C.LA, B.C.OP
    WV = 168
    QB, WK, ME, QT, QP, TA, QF = 96, 108, 132, 156, 164, 168, 16
    T = 240
    a('L_cons:')
    a(f's_sub_u32 {sH}, s3, 4')
    a(f'v_lshlrev_b32 v{LIN}, 4, v1')
    a(f's_mul_i32 s48, {sH}, 4608')
    a(f'v_add_u32 v{PART}, s48, v{LIN}')
    a(f's_min_u32 {t0}, {sH}, 2')
    a(f's_lshl_b32 s46, {sH}, 2')
    a(f's_add_u32 s46, s46, {t0}')
    a(f's_lshl_b32 s46, s46, 10')
    a(f'v_add_u32 v13, s46, v{LIN}')
    a(f's_lshl_b32 {t1}, {t0}, 6')
    dma_swz(a, 11, t1, T)
    a(f's_lshl_b32 s54, {t0}, 10')
    a('s_add_u32 s47, s57, 8\ns_mul_i32 s47, s47, 3072\ns_add_u32 s47, s47, s54')
    a(f'v_add_u32 v10, s54, v{LIN}')
    a('s_lshr_b32 s50, s2, 3\ns_and_b32 s50, s50, 31\ns_mul_i32 s50, s50, 640')
    a(f'v_lshlrev_b32 v14, 7, v1')
    a(f'v_add_u32 v14, s50, v14')
    a(f'v_min_u32 v14, 18428, v14')
    N, G, RHO, KAP = T+4, T+5, T+6, T+7
    a(f'v_and_b32 v{N}, 15, v1')
    a(f'v_lshrrev_b32 v{G}, 4, v1')
    a(f'v_bfe_u32 v{RHO}, v1, 2, 2')
    a(f'v_and_b32 v{KAP}, 3, v1')
    a(f'v_mul_u32_u24 v{T+8}, 192, v{N}')
    a(f'v_lshl_add_u32 v{T+8}, v{G}, 4, v{T+8}')
    a(f'v_lshl_add_u32 v{T+9}, v{RHO}, 3, v{KAP}')
    a(f'v_mul_u32_u24 v{T+9}, 48, v{T+9}')
    a(f'v_lshl_add_u32 v{T+9}, v{G}, 4, v{T+9}')
    a(f'v_add_u32 v{T+9}, s48, v{T+9}')
    for i in range(24): a(f'v_mov_b32 v{WK+i}, 0')
    a('s_mov_b32 s34, 7077888\ns_mov_b32 s35, 0x20000')
    a('s_waitcnt lgkmcnt(0)')
    a(f's_cmp_eq_u32 {sH}, 0\ns_cselect_b64 s[50:51], {SWV}, {SWQ}')
    a(f's_cmp_eq_u32 {sH}, 2\ns_cselect_b64 s[50:51], {SWK}, s[50:51]')
    a(f's_cmp_eq_u32 {sH}, 3\ns_cselect_b64 s[50:51], {SWM}, s[50:51]')
    a('s_mov_b64 exec, 31')
    a(f'global_load_dword v15, v14, s[50:51]')
    a('s_mov_b64 exec, -1')
    a('s_mov_b32 s32, s8\ns_mov_b32 s33, s9')
    a('s_barrier')
    a(f's_cmp_ge_u32 {sH}, 2')
    a('s_cbranch_scc1 C_nox')
    code_prefetch(a, 'L_pc', 14, -256)
    dma_extra(a, SWM, WM, 13, 's46')
    dma_extra(a, SWQ, WQ, 13, 's46')
    a('C_nox:')
    a(f's_cmp_ge_u32 {sH}, 3')
    a('s_cbranch_scc1 C_noy')
    a(f's_add_u32 m0, s54, {LO+8*3072}')
    a('s_nop 0')
    a(f'buffer_load_dwordx4 v11, {RLO}, s47 offen nt lds')
    a(f's_add_u32 m0, s54, {QS}')
    a('s_nop 0')
    a(f'global_load_lds_dwordx4 v10, {SQ}')
    a('C_noy:')
    dma_main(a, SWM, WM, 13, 's46')
    dma_main(a, SWQ, WQ, 13, 's46')
    stamp(a, cfg, 1)
    a(f's_mov_b32 s36, s26\ns_mov_b32 s37, s27\ns_mov_b32 s38, {REC_BYTES}\ns_mov_b32 s39, 0x20000')
    a(f's_lshl_b32 {t0}, s2, 2\ns_add_u32 {t0}, {t0}, {sH}\ns_lshl_b32 {t0}, {t0}, 6')
    a(f'v_lshlrev_b32 v{REC}, 16, v{N}')
    a(f'v_lshl_add_u32 v{REC}, v{G}, 4, v{REC}')
    a(f'v_add_u32 v{REC}, {t0}, v{REC}')
    a(f's_and_b32 s49, {sH}, 1')
    a('s_mul_i32 s52, s49, 6144')
    a(f'v_and_b32 v{T+10}, 31, v1')
    a(f'v_lshrrev_b32 v{T+11}, 5, v1')
    a(f'v_lshlrev_b32 v{T+12}, 1, v{N}')
    a(f'v_bfe_u32 v{T+12}, {SF}, v{T+12}, 2')
    a(f'v_xor_b32 v{T+12}, v{T+12}, v{T+11}')
    a(f'v_mul_u32_u24 v{T+13}, 192, v{T+10}')
    a(f'v_add_u32 v{T+13}, s52, v{T+13}')
    a(f'v_lshl_add_u32 v{CA0}, v{T+12}, 4, v{T+13}')
    a(f'v_xor_b32 v{T+12}, 2, v{T+12}')
    a(f'v_lshl_add_u32 v{CA1}, v{T+12}, 4, v{T+13}')
    a(f'v_lshl_add_u32 v{T+12}, v{T+11}, 2, v{RHO}')
    a(f'v_bfe_u32 v{T+13}, v1, 4, 1')
    a(f'v_lshrrev_b32 v{T+14}, 1, v{KAP}')
    a(f'v_lshl_add_u32 v{T+14}, v{T+13}, 1, v{T+14}')
    a(f'v_and_b32 v{T+15}, 1, v{KAP}')
    a(f'v_lshlrev_b32 v{T+15}, 3, v{T+15}')
    a(f'v_add_u32 v{T+15}, s52, v{T+15}')
    for sec, dst in ((0, CT0), (1, CT1)):
        if sec: a(f'v_add_u32 v{T+12}, 8, v{T+12}')
        a(f'v_lshlrev_b32 v{dst}, 1, v{T+12}')
        a(f'v_bfe_u32 v{dst}, {SF}, v{dst}, 2')
        a(f'v_xor_b32 v{dst}, v{dst}, v{T+14}')
        a(f'v_lshl_add_u32 v{dst}, v{dst}, 4, v{T+15}')
        a(f'v_mul_u32_u24 v10, 192, v{T+12}')
        a(f'v_add_u32 v{dst}, v{dst}, v10')
    a(f'v_lshl_add_u32 v{WVA}, v{T+11}, 2, v{RHO}')
    a(f'v_lshl_add_u32 v{WVA}, v{T+13}, 4, v{WVA}')
    a(f'v_mul_u32_u24 v{WVA}, 48, v{WVA}')
    a(f'v_lshl_add_u32 v{WVA}, v{KAP}, 3, v{WVA}')
    a(f'v_add_u32 v{WVA}, {WREG}, v{WVA}')
    a(f's_xor_b32 {t0}, {sH}, 1')
    a(f's_mul_i32 s53, {t0}, 4608')
    a(f'v_mov_b32 v10, s48')
    a(f'v_mov_b32 v11, s53')
    a(f'v_cmp_eq_u32 vcc, 0, v{T+13}')
    a(f'v_mul_u32_u24 v{XA}, 192, v{N}')
    a(f'v_lshl_add_u32 v{XA}, v{T+11}, 4, v{XA}')
    a(f'v_cndmask_b32 v10, v11, v10, vcc')
    a(f'v_add_u32 v{XA}, v{XA}, v10')
    a(f'v_add_u32 v{XA}, {WQ}, v{XA}')
    a(f'v_lshl_add_u32 v{T+12}, v{G}, 3, v{RHO}')
    a(f'v_mul_u32_u24 v10, 48, v{T+12}')
    a(f'v_min_u32 v11, 2, v{KAP}')
    a(f'v_lshl_add_u32 v10, v11, 4, v10')
    a(f's_add_u32 {t0}, s48, {WQ}')
    a(f'v_add_u32 v10, {t0}, v10')
    a(f'v_add_u32 v13, {t0}, v{T+8}')
    a(f'v_add_u32 v{T+8}, {QS}, v{T+8}')
    a(f'v_mul_u32_u24 v11, 192, v{T+12}')
    a(f'v_lshl_add_u32 v11, v{KAP}, 4, v11')
    a(f'v_add_u32 v11, {WM}, v11')
    a(f'v_and_b32 v{T+12}, 1, v1')
    a(f'v_cmp_eq_u32 vcc, v{T+12}, v{T+13}')
    a(f'v_mov_b32 v{T+12}, 0x3f803f80')
    for i in range(52):
        a(f'v_mov_b32 v{U+i}, 0')
        if i == 4:
            for k in range(4): a(f'v_cndmask_b32 v{OP+k}, 0, v{T+12}, vcc')
    a('s_waitcnt vmcnt(4)')
    arrive(a, 1, 14, 15)
    a('s_mov_b32 exec_hi, 0xffff')
    for s in range(3):
        for tt in range(2):
            a(f'global_load_dwordx4 {vr(WK+(2*s+tt)*4,4)}, v{T+9}, {SWK} offset:{1536*s+192*tt}')
    a('s_mov_b32 exec_hi, -1')
    if cfg.cpp: a(f's_setprio {cfg.cpp}')
    await_cnt(a, 1, 'C_sy1', 14, 15, 4, setaddr=False)
    stamp(a, cfg, 2)
    def me_rd(sp, st): return [f'ds_read_b64_tr_b16 {vr(TA+(sp*6+st)*4+2*sec,2)}, v11 offset:{sp*6144+sec*768+(st>>1)*64+(st&1)*8}' for sec in range(2)]
    seq = [(sp, st) for sp in range(3) for st in range(6)]
    L = [f'ds_read_b128 {vr(QB+4*s,4)}, v{T+8} offset:{64*s}' for s in range(3)]
    L += [me_rd(*seq[i]) for i in range(5)]
    for i, (sp, st) in enumerate(seq):
        c = '0' if sp == 0 else vr(ME+4*st,4)
        L.append(f'{MF16} {vr(ME+4*st,4)}, {vr(TA+(sp*6+st)*4,4)}, {vr(QB+4*sp,4)}, {c}')
        if i + 5 < 18: L.append(me_rd(*seq[i+5]))
    for l in autowait(flat(L), age=99): a(l)
    a('s_waitcnt vmcnt(6)')
    lds_sync(a, 2, 'C_sy2', 14, 15)
    stamp(a, cfg, 15)
    L = []
    for s in range(3):
        for tt in range(2):
            for sec in range(2):
                L.append(f'ds_read_b64_tr_b16 {vr(QF+(tt*3+s)*4+2*sec,2)}, v10 offset:{s*1536+sec*192+tt*8}')
    for s in range(3):
        for tt in range(2):
            c = '0' if s == 0 else vr(QT+4*tt,4)
            L.append(f'{MF16} {vr(QT+4*tt,4)}, {vr(QF+(tt*3+s)*4,4)}, {vr(QB+4*s,4)}, {c}')
    for l in autowait(L, age=99): a(l)
    for i in range(8): a(f'v_add_f32 v{QT+i}, v{QT+i}, v{QT+i}')
    for i in range(4): a(f'v_cvt_pk_bf16_f32 v{QP+i}, v{QT+2*i}, v{QT+2*i+1}')
    a('s_waitcnt vmcnt(0)')
    for st in range(6):
        a(f'{MF16} {vr(ME+4*st,4)}, {vr(WK+4*st,4)}, {vr(QP,4)}, {vr(ME+4*st,4)}')
    for i in range(4): a(f'v_mov_b32 v{T+i}, -1')
    a(f'buffer_store_dwordx4 {vr(T,4)}, v{REC}, {RWS}, 0 offen sc1')
    sc = 96 ** -0.5 * math.log2(math.e)
    a(f's_mov_b32 {t0}, {f32(sc)}')
    for s in range(3):
        for i in range(8): a(f'v_mul_f32 v{ME+8*s+i}, {t0}, v{ME+8*s+i}')
        for i in range(4): a(f'v_cvt_pk_bf16_f32 v{ME+8*s+i}, v{ME+8*s+2*i}, v{ME+8*s+2*i+1}')
        a(f'ds_write_b128 v13, {vr(ME+8*s,4)} offset:{64*s}')
    a('s_waitcnt lgkmcnt(0)')
    lds_sync(a, 3, 'C_sy3', 14, 15)
    stamp(a, cfg, 3)
    for s in range(6): a(f'ds_read_b128 {vr(AP+4*s,4)}, v{XA} offset:{32*s}')
    a(f'v_mov_b32 v10, {PF}')
    a(f's_mov_b32 {sR}, 1')
    a('s_waitcnt lgkmcnt(0)')
    arrive(a, 4, 14, 15)
    if cfg.cpp: a(f's_setprio {cfg.cmain}')
    a(f's_call_b64 {RET}, C_blk')
    stamp(a, cfg, 5)
    a('s_waitcnt vmcnt(0)')
    arrive(a, 5, 14, 15, rtn=True)
    a('s_waitcnt lgkmcnt(0)')
    a('v_readfirstlane_b32 s50, v15')
    a('s_cmp_lg_u32 s50, 3')
    a('s_cbranch_scc1 C_noclr')
    a(f'v_mov_b32 v{T}, 1\nv_mov_b32 v{T+1}, 0')
    a('s_mov_b64 exec, 1')
    a(f'global_atomic_add v{T+1}, v{T}, {SDBG} offset:128 sc1')
    a('s_mov_b64 exec, -1')
    a('C_noclr:')
    a(f's_call_b64 {RET}, C_blk')
    stamp(a, cfg, 6)
    if cfg.wvpos == 2: dma_part(a, SWV, WREG, PART, 's48')
    a(f's_call_b64 {RET}, C_blk')
    stamp(a, cfg, 7)
    if cfg.wvpos == 3: dma_part(a, SWV, WREG, PART, 's48')
    a(f's_call_b64 {RET}, C_blk')
    stamp(a, cfg, 4)
    a('s_waitcnt vmcnt(0)')
    lds_sync(a, 6, 'C_sy6', 14, 15)
    a(f'v_add_u32 v10, s48, v{WVA}')
    a(f'v_add_u32 v11, s53, v{WVA}')
    L = []
    for hh in range(2):
        for tt in range(2):
            for t in range(3):
                for sec in range(2):
                    L.append(f'ds_read_b64_tr_b16 {vr(WV+(hh*6+tt*3+t)*4+2*sec,2)}, v{10+hh} offset:{t*1536+sec*384+tt*32}')
    for l in autowait(L): a(l)
    a(f's_lshl_b32 {t0}, {sH}, 11')
    a(f's_add_u32 {t0}, {t0}, {XCH}')
    a(f'v_add_u32 v10, {t0}, v{LIN}')
    a(f'v_xor_b32 v11, 0x800, v10')
    a(f'v_mov_b32 v13, {TKT}')
    a('s_waitcnt lgkmcnt(0)')
    a('s_barrier')
    stamp(a, cfg, 8)
    for l in B.cons1(extra_pre=['ds_read_b32 v13, v13'], extra_mid=['v_readfirstlane_b32 s47, v13']): a(l)
    stamp(a, cfg, 9)
    UP, CX = 96, 120
    for t in range(3):
        for i in range(8): a(f'v_cvt_pk_bf16_f32 v{UP+8*t+i}, v{U+16*t+2*i}, v{U+16*t+2*i+1}')
        for i in range(4): a(f'v_permlane16_swap_b32 v{UP+8*t+i}, v{UP+8*t+4+i}')
        for hh in (1, 0):
            for tt in range(2):
                c = '0' if t == 0 else vr(CX+8*hh+4*tt,4)
                a(f'{MF16} {vr(CX+8*hh+4*tt,4)}, {vr(WV+(hh*6+tt*3+t)*4,4)}, {vr(UP+8*t+4*hh,4)}, {c}')
    a('s_mov_b32 exec_lo, 0')
    a(f'v_mov_b32 v{CX+12}, v{LA+1}')
    a('s_mov_b32 exec_lo, -1')
    a(f'ds_write_b128 v11, {vr(CX+8,4)}')
    a(f'ds_write_b128 v11, {vr(CX+12,4)} offset:1024')
    a('s_mov_b32 exec_lo, 0')
    a(f'v_mov_b32 v{CX+4}, v{LA}')
    a('s_mov_b32 exec_lo, -1')
    a('s_waitcnt lgkmcnt(0)')
    a('s_barrier')
    a(f'ds_read_b128 {vr(CX+8,4)}, v10')
    a(f'ds_read_b128 {vr(CX+12,4)}, v10 offset:1024')
    a('s_waitcnt lgkmcnt(1)')
    for i in range(4): a(f'v_add_f32 v{CX+i}, v{CX+i}, v{CX+8+i}')
    a(f'v_cvt_pk_bf16_f32 v{CX}, v{CX}, v{CX+1}')
    a(f'v_cvt_pk_bf16_f32 v{CX+1}, v{CX+2}, v{CX+3}')
    a('s_waitcnt lgkmcnt(0)')
    for i in range(4, 8): a(f'v_add_f32 v{CX+i}, v{CX+i}, v{CX+8+i}')
    a('s_mov_b32 exec_lo, 0')
    a(f'v_cvt_pk_bf16_f32 v{CX+5}, v{CX+4}, v{CX+4}')
    a(f'v_and_b32 v{CX+5}, 0xffff0000, v{CX+5}')
    a(f'v_sub_f32 v{CX+5}, v{CX+4}, v{CX+5}')
    a('s_mov_b32 exec_lo, -1')
    a(f'v_cvt_pk_bf16_f32 v{CX+2}, v{CX+4}, v{CX+5}')
    a(f'v_cvt_pk_bf16_f32 v{CX+3}, v{CX+6}, v{CX+7}')
    for i in range(4): a(f'v_min_u32 v{CX+i}, -2, v{CX+i}')
    a(f'buffer_store_dwordx4 {vr(CX,4)}, v{REC}, {RWS}, 0 offen sc1')
    stamp(a, cfg, 10)
    a('s_cmp_ge_u32 s47, 16')
    a('s_cbranch_scc1 L_exit')
    a('s_branch L_comb')
    a('C_wait:')
    a('s_sleep 1')
    a('C_blk:')
    a(f'ds_read_b128 {vr(T,4)}, v10')
    a('s_waitcnt lgkmcnt(0)')
    a(f'v_min3_u32 v{T}, v{T}, v{T+1}, v{T+2}')
    a(f'v_min_u32 v{T}, v{T}, v{T+3}')
    a(f'v_readfirstlane_b32 s50, v{T}')
    a(f's_cmp_lt_u32 s50, {sR}')
    a('s_cbranch_scc1 C_wait')
    for l in B.cons2(cfg.cvar): a(l)
    a(f's_add_u32 {sR}, {sR}, 1')
    a(f's_setpc_b64 {RET}')

def gen_combine(a, cfg):
    D, ACC, T = 32, 20, 28
    a('L_comb:')
    a('v_lshlrev_b32 v2, 4, v1')
    a('s_lshl_b32 s40, s47, 16')
    a('s_lshl_b32 s41, s3, 13')
    a('s_add_u32 s40, s40, s41')
    a('s_add_u32 s41, s40, 4096')
    a('v_mov_b32 v17, 0')
    a(f'global_load_dword v18, v17, {SDBG} offset:128 sc1')
    a('v_and_b32 v6, 15, v1')
    a('s_lshl_b32 s43, s3, 4')
    a('v_add_u32 v6, s43, v6')
    a('v_min_u32 v6, 95, v6')
    a('s_mul_i32 s44, s47, 96')
    a('v_add_u32 v6, s44, v6')
    a('v_lshlrev_b32 v6, 1, v6')
    a(f'global_load_ushort v7, v6, {SQ}')
    a('v_lshrrev_b32 v16, 4, v1')
    a('v_bfe_u32 v28, v1, 2, 2')
    a('v_lshl_add_u32 v29, v16, 3, v28')
    a('v_mul_u32_u24 v29, 192, v29')
    a('v_and_b32 v19, 3, v1')
    a('v_lshl_add_u32 v29, v19, 3, v29')
    a('s_lshl_b32 s45, s3, 5')
    a(f'v_add_u32 v14, s45, v29')
    a('v_lshlrev_b32 v15, 4, v28')
    a('v_lshl_add_u32 v15, v19, 1, v15')
    a('v_and_b32 v28, 1, v16')
    a('v_add_u32 v15, v15, v28')
    a('v_lshrrev_b32 v28, 1, v16')
    a('v_lshl_add_u32 v15, v28, 3, v15')
    a('v_mul_u32_u24 v15, 80, v15')
    a('s_lshl_b32 s45, s3, 3')
    a(f's_add_u32 s45, s45, {FIN}')
    a(f'v_add_u32 v15, s45, v15')
    a('v_mul_u32_u24 v8, 80, v1')
    a(f'v_add_u32 v8, {FIN}, v8')
    a('s_lshl_b32 s45, s3, 8')
    a(f's_add_u32 s45, s45, {CTX}')
    a('v_and_b32 v28, 15, v1')
    a('v_lshlrev_b32 v9, 2, v28')
    a('v_mad_u32_u24 v9, v16, 48, v9')
    a('v_mov_b32 v29, 192')
    a('v_cmp_lt_u32 vcc, 11, v28')
    a('v_lshlrev_b32 v10, 4, v16')
    a('v_add_u32 v10, s45, v10')
    a('v_cndmask_b32 v9, v9, v29, vcc')
    a('v_add_u32 v9, s45, v9')
    for i in range(8): a(f'v_mov_b32 v{ACC+i}, 0')
    a('s_mov_b32 s42, 0xffff0000')
    stamp(a, cfg, 11)
    a('K_gate:')
    a('s_waitcnt vmcnt(0)')
    a('v_readfirstlane_b32 s46, v18')
    a('s_cmp_ge_u32 s46, 256')
    a('s_cbranch_scc0 K_gate_wait')
    stamp(a, cfg, 12)
    def load(i): a(f'buffer_load_dwordx4 {vr(D+4*i,4)}, v2, {RWS}, {"s40" if i<4 else "s41"} offen offset:{1024*(i%4)} sc1')
    for i in range(8): load(i)
    for i in range(8):
        a(f's_waitcnt vmcnt({7-i})')
        a(f'K_chk{i}:')
        a(f'v_max3_u32 v{T}, v{D+4*i}, v{D+4*i+1}, v{D+4*i+2}')
        a(f'v_max_u32 v{T}, v{T}, v{D+4*i+3}')
        a(f'v_cmp_eq_u32 vcc, -1, v{T}')
        a(f's_cbranch_vccnz K_retry{i}')
        for j in range(4):
            a(f'v_lshlrev_b32 v{T}, 16, v{D+4*i+j}')
            a(f'v_and_b32 v{T+1}, s42, v{D+4*i+j}')
            a(f'v_add_f32 v{ACC+2*j}, v{ACC+2*j}, v{T}')
            a(f'v_add_f32 v{ACC+2*j+1}, v{ACC+2*j+1}, v{T+1}')
    stamp(a, cfg, 13)
    for k in range(4): a(f'v_permlane32_swap_b32 v{ACC+k}, v{ACC+k+4}')
    for k in range(4): a(f'v_add_f32 v{ACC+k}, v{ACC+k}, v{ACC+k+4}')
    for k in range(2): a(f'v_permlane16_swap_b32 v{ACC+k}, v{ACC+k+2}')
    for k in range(2): a(f'v_add_f32 v{ACC+k}, v{ACC+k}, v{ACC+k+2}')
    if cfg.fine: stamp(a, cfg, 4)
    a(f'ds_write_b64 v15, {vr(ACC,2)}')
    Bq, C = 40, 56
    a('s_waitcnt vmcnt(0) lgkmcnt(0)')
    if cfg.fine: stamp(a, cfg, 1)
    a('s_barrier')
    if cfg.fine: stamp(a, cfg, 2)
    a('s_cmp_ge_u32 s3, 6')
    a('s_cbranch_scc1 L_exit')
    for k in range(4): a(f'ds_read_b128 {vr(C+4*k,4)}, v8 offset:{16*k}')
    for s in range(3):
        for sec in range(2):
            a(f'ds_read_b64_tr_b16 {vr(Bq+4*s+2*sec,2)}, v14 offset:{s*6144+sec*768}')
    a('v_lshlrev_b32 v7, 16, v7')
    a('s_waitcnt lgkmcnt(8)')
    for i in range(4): a(f'v_add_f32 v{C+i}, v{C+i}, v{C+4+i}')
    a('s_waitcnt lgkmcnt(6)')
    for i in range(4): a(f'v_add_f32 v{C+8+i}, v{C+8+i}, v{C+12+i}')
    for i in range(4): a(f'v_add_f32 v{C+i}, v{C+i}, v{C+8+i}')
    a(f'v_add_f32 v{C}, v{C}, v{C+2}')
    a(f'v_add_f32 v{C+1}, v{C+1}, v{C+3}')
    a(f'v_add_f32 v{C+2}, v{C}, v{C+1}')
    a(f'v_mov_b32_dpp v{C+2}, v{C+2} row_newbcast:12 row_mask:0xf bank_mask:0xf')
    a(f'v_rcp_f32 v{C+2}, v{C+2}')
    a(f'v_mul_f32 v{C}, v{C}, v{C+2}')
    a(f'v_mul_f32 v{C+1}, v{C+1}, v{C+2}')
    a(f'v_cvt_pk_bf16_f32 v{C}, v{C}, v{C+1}')
    a(f'ds_write_b32 v9, v{C}')
    for s in range(3): a(f'ds_read_b128 {vr(C+4+4*s,4)}, v10 offset:{64*s}')
    if cfg.fine: stamp(a, cfg, 3)
    for s in range(3):
        c = '0' if s == 0 else 'v[88:91]'
        a(f's_waitcnt lgkmcnt({2-s})')
        a(f'{MF16} v[88:91], {vr(C+4+4*s,4)}, {vr(Bq+4*s,4)}, {c}')
    a('v_cvt_pk_bf16_f32 v88, v88, v88')
    a('v_and_b32 v88, 0xffff0000, v88')
    a('v_add_f32 v88, v88, v7')
    a('v_cvt_pk_bf16_f32 v88, v88, v88')
    a('s_mov_b64 exec, 0xffff')
    a(f'global_store_short v6, v88, {SOUT}')
    a('s_mov_b64 exec, -1')
    stamp(a, cfg, 14)
    a('L_exit:')
    stamp_flush(a, cfg)
    a('L_end:')
    a('s_endpgm')
    a('K_gate_wait:')
    a('s_sleep 8')
    a(f'global_load_dword v18, v17, {SDBG} offset:128 sc1')
    a('s_branch K_gate')
    for i in range(8):
        a(f'K_retry{i}:')
        a(f's_call_b64 s[48:49], K_load{i}')
        a(f's_branch K_chk{i}')
    for i in range(8):
        a(f'K_load{i}:')
        load(i)
    a('s_waitcnt vmcnt(0)')
    a('s_setpc_b64 s[48:49]')

def build(cfg):
    a = Asm()
    a.raw(f'; @launch grid=(256,1,1) block=(512,1,1) lds={LDS_BYTES}')
    a.raw('.amdgcn_target "amdgcn-amd-amdhsa--gfx950"')
    a.raw('.text')
    a.raw(f'.globl {KNAME}'); a.raw('.p2align 8'); a.raw(f'.type {KNAME},@function'); a.raw(f'{KNAME}:')
    gen_entry(a, cfg)
    gen_producer(a, cfg)
    gen_consumer(a, cfg)
    gen_combine(a, cfg)
    a.raw('L_codeend:')
    txt = a.finish(verbose=True)
    txt = txt.replace('    ; @launch', '; @launch')
    txt += f'''.section .rodata,"a"
.p2align 6
.amdhsa_kernel {KNAME}
  .amdhsa_next_free_vgpr 256
  .amdhsa_next_free_sgpr 100
  .amdhsa_accum_offset 256
  .amdhsa_group_segment_fixed_size 0
  .amdhsa_kernarg_size 96
  .amdhsa_user_sgpr_count 2
  .amdhsa_user_sgpr_kernarg_segment_ptr 1
  .amdhsa_system_sgpr_workgroup_id_x 1
.end_amdhsa_kernel
'''
    return txt

if __name__ == '__main__':
    cfg = Cfg()
    out = sys.argv[1]
    for o in sys.argv[2:]:
        if '=' in o:
            k, v = o.split('='); setattr(cfg, k, int(v))
        else: setattr(cfg, o, True)
    open(out, 'w').write(build(cfg))
```

```python
from asmlib import autowait
import struct
def f32(x): return '0x%08x' % struct.unpack('<I', struct.pack('<f', x))[0]
def vr(b, n=1): return f'v{b}' if n == 1 else f'v[{b}:{b+n-1}]'
MF32 = 'v_mfma_f32_32x32x16_bf16'
MF16 = 'v_mfma_f32_16x16x32_bf16'

class C:
    CA0, CA1, CT0, CT1 = 4, 5, 6, 7
    AP, U, LA, OP = 16, 40, 88, 92
    KA = [96, 160]; KT = [120, 96]; S = [144, 184]; P = [144, 184]
    WV = 200

def ka(x, s): return f'ds_read_b128 {vr(C.KA[x]+4*s,4)}, v{C.CA1 if s&1 else C.CA0} offset:{x*12288+64*(s>>1)}'
def kt(x, ks, t): return [f'ds_read_b64_tr_b16 {vr(C.KT[x]+(ks*3+t)*4+2*sec,2)}, v{C.CT1 if sec else C.CT0} offset:{x*12288+64*t+3072*ks}' for sec in range(2)]
def sm(x, s): return f'{MF32} {vr(C.S[x],16)}, {vr(C.KA[x]+4*s,4)}, {vr(C.AP+4*s,4)}, {"0" if s == 0 else vr(C.S[x],16)}'
def pv(x, ks, t):
    if t == 3: return f'{MF16} {vr(C.LA,4)}, {vr(C.OP,4)}, {vr(C.P[x]+4*ks,4)}, {vr(C.LA,4)}'
    return f'{MF32} {vr(C.U+16*t,16)}, {vr(C.KT[x]+(ks*3+t)*4,4)}, {vr(C.P[x]+4*ks,4)}, {vr(C.U+16*t,16)}'
def ex(x, i): return f'v_exp_f32 v{C.S[x]+i}, v{C.S[x]+i}'
def cv(x, i): return f'v_cvt_pk_bf16_f32 v{C.P[x]+i}, v{C.S[x]+2*i}, v{C.S[x]+2*i+1}'
def adv(): return [f'v_add_u32 v{r}, {4*6144}, v{r}' for r in (C.CA0, C.CA1, C.CT0, C.CT1)]

def flat(l):
    o = []
    for x in l:
        if isinstance(x, (list, tuple)): o += flat(x)
        else: o.append(x)
    return o

def cons2(var=0):
    E = lambda x, a, b: [ex(x, i) for i in range(a, b)]
    V = lambda x, a, b: [cv(x, i) for i in range(a, b)]
    if var == 0:
        L = [[ka(0, s) for s in range(6)],
             sm(0,0), ka(1,0), ka(1,1), sm(0,1), ka(1,2), ka(1,3), sm(0,2), ka(1,4), ka(1,5),
             sm(0,3), kt(0,0,0), sm(0,4), kt(0,0,1), sm(0,5), kt(0,0,2),
             sm(1,0), kt(0,1,0), kt(0,1,1), sm(1,1), E(0,0,3), sm(1,2), E(0,3,6), sm(1,3), E(0,6,8), V(0,0,2),
             sm(1,4), V(0,2,4), E(0,8,10), sm(1,5), kt(0,1,2), E(0,10,12),
             pv(0,0,0), E(0,12,15), pv(0,0,1), E(0,15,16), V(0,4,8), pv(0,0,2), kt(1,0,0), E(1,0,2), pv(0,0,3), E(1,2,3),
             pv(0,1,0), kt(1,0,1), E(1,3,5), pv(0,1,1), kt(1,0,2), E(1,5,7), pv(0,1,2), E(1,7,8), V(1,0,4), pv(0,1,3), kt(1,1,0),
             pv(1,0,0), kt(1,1,1), E(1,8,10), pv(1,0,1), kt(1,1,2), E(1,10,12), pv(1,0,2), E(1,12,15), pv(1,0,3), E(1,15,16), V(1,4,8), adv(),
             pv(1,1,0), pv(1,1,1), pv(1,1,2), pv(1,1,3)]
    elif var == 1:
        L = [[ka(0, s) for s in range(6)],
             sm(0,0), ka(1,0), sm(0,1), ka(1,1), ka(1,2), sm(0,2), ka(1,3), sm(0,3), ka(1,4), ka(1,5), sm(0,4), kt(0,0,0), sm(0,5), kt(0,0,1), kt(0,0,2),
             sm(1,0), kt(0,1,0), kt(0,1,1), kt(0,1,2), E(0,0,8), V(0,0,4), sm(1,1), E(0,8,11), sm(1,2), E(0,11,14), sm(1,3), E(0,14,16), V(0,4,6), sm(1,4), V(0,6,8), kt(1,0,0), sm(1,5), kt(1,0,1), kt(1,0,2),
             pv(0,0,0), kt(1,1,0), pv(0,0,1), E(1,0,3), pv(0,0,2), E(1,3,6), pv(0,0,3), E(1,6,7),
             pv(0,1,0), E(1,7,8), V(1,0,4), pv(0,1,1), E(1,8,11), pv(0,1,2), E(1,11,14), pv(0,1,3), kt(1,1,1),
             pv(1,0,0), E(1,14,16), kt(1,1,2), pv(1,0,1), V(1,4,8), pv(1,0,2), adv(), pv(1,0,3),
             pv(1,1,0), pv(1,1,1), pv(1,1,2), pv(1,1,3)]
    return autowait(flat(L))

def cons1(extra_pre=(), extra_mid=()):
    E = lambda x, a, b: [ex(x, i) for i in range(a, b)]
    V = lambda x, a, b: [cv(x, i) for i in range(a, b)]
    L = [[ka(0, s) for s in range(6)],
         sm(0,0), kt(0,0,0), sm(0,1), kt(0,0,1), sm(0,2), kt(0,0,2), sm(0,3), kt(0,1,0), sm(0,4), kt(0,1,1), sm(0,5), kt(0,1,2), list(extra_pre),
         E(0,0,8), V(0,0,4), pv(0,0,0), E(0,8,11), pv(0,0,1), E(0,11,14), pv(0,0,2), E(0,14,16), V(0,4,6), pv(0,0,3), V(0,6,8), list(extra_mid),
         pv(0,1,0), pv(0,1,1), pv(0,1,2), pv(0,1,3)]
    return autowait(flat(L))

class P:
    RA0, RA1 = 5, 6
    WL = 16
    LT = 88
    X, F = 136, 184
    ID, OP, SM, SL, T = 208, 216, 220, 224, 228

def p_reads():
    return [f'ds_read_b128 {vr(P.F+4*s,4)}, v{P.RA1 if s&1 else P.RA0} offset:{64*(s>>1)}' for s in (0, 2, 4, 1, 3, 5)]

def p_head(g1=(), g2=(), hiprio=None, reads=True):
    L = []
    if hiprio is not None: L.append(f's_setprio {hiprio}')
    if reads: L += p_reads()
    L += list(g1)
    g2 = list(g2)
    for t in range(3):
        L.append(f's_waitcnt lgkmcnt({5-t})')
        L.append(f'{MF32} {vr(P.X+16*t,16)}, {vr(P.ID,4)}, {vr(P.F+8*t,4)}, {vr(P.LT+16*t,16)}')
        if g2:
            L += g2[:3] if t == 0 else g2[2+t:3+t]
    return L

def p_tail(var=0, lowprio=None):
    X, F, T, SM, SL = P.X, P.F, P.T, P.SM, P.SL
    Q0, Q1 = T, T+1
    L = []; a = L.append
    def identb(t): a(f'{MF32} {vr(X+16*t,16)}, {vr(P.ID+4,4)}, {vr(F+8*t+4,4)}, {vr(X+16*t,16)}')
    def summ(s): a(f'{MF16} {vr(SM,4)}, {vr(P.OP,4)}, {vr(F+4*s,4)}, {vr(SL,4) if s == 0 else vr(SM,4)}')
    sqi = [0]
    def sq(n):
        for _ in range(n):
            i = sqi[0]; sqi[0] += 1
            q = Q0 if i % 2 == 0 else Q1
            a(f'v_mul_f32 v{q}, v{X+i}, v{X+i}' if i < 2 else f'v_fmac_f32 v{q}, v{X+i}, v{X+i}')
    a('s_waitcnt lgkmcnt(0)')
    identb(0); identb(1); summ(0); sq(2); identb(2); sq(6)
    for s in range(1, 6):
        summ(s)
        if s == 5 and lowprio is not None: a(f's_setprio {lowprio}')
        sq(2)
    sq(48 - sqi[0])
    a(f'v_add_f32 v{Q0}, v{Q0}, v{Q1}')
    a(f'v_mul_f32 v{SM}, {f32(1/96)}, v{SM}')
    a(f'v_mov_b32 v{Q1}, v{Q0}')
    a(f'v_mul_f32 v{SM+1}, v{SM}, v{SM}')
    a(f'v_subrev_f32 v{SM+1}, {f32(1e-5)}, v{SM+1}')
    a(f'v_permlane32_swap_b32 v{Q0}, v{Q1}')
    a(f'v_add_f32 v{Q0}, v{Q0}, v{Q1}')
    a(f'v_fma_f32 v{Q0}, v{Q0}, s62, -v{SM+1}')
    a(f'v_max_f32 v{Q0}, {f32(1e-5)}, v{Q0}')
    a(f'v_rsq_f32 v{Q0}, v{Q0}')
    a('s_nop 0')
    a(f'v_mul_f32 v{Q1}, -v{SM}, v{Q0}')
    for s in range(6):
        for i in range(8): a(f'v_fma_f32 v{X+8*s+i}, v{X+8*s+i}, v{Q0}, v{Q1}')
        for i in range(4): a(f'v_cvt_pk_bf16_f32 v{F+4*s+i}, v{X+8*s+2*i}, v{X+8*s+2*i+1}')
        if var == 1:
            a(f'ds_write_b64 v{P.RA1 if s&1 else P.RA0}, {vr(F+4*s,2)} offset:{64*(s>>1)}')
            a(f'ds_write_b64 v{P.RA1 if s&1 else P.RA0}, {vr(F+4*s+2,2)} offset:{64*(s>>1)+8}')
        else:
            a(f'ds_write_b128 v{P.RA1 if s&1 else P.RA0}, {vr(F+4*s,4)} offset:{64*(s>>1)}')
    a(f'v_add_u32 v{P.RA0}, {4*6144}, v{P.RA0}')
    a(f'v_add_u32 v{P.RA1}, {4*6144}, v{P.RA1}')
    a('s_waitcnt lgkmcnt(0)')
    return L
```

```python
import sys, math, struct
from asmlib import Asm, autowait
import blocks as B
from blocks import vr, f32, MF32, MF16, flat

KNAME = 'standalone__detection_seg_mask2former__vision_kernel'

HI = 0
WM = 12 * 6144
QS = 15 * 6144
WQ = 16 * 6144
LO = 110592 + 6144
WREG = LO + 27648
SCR = WREG + 18432
TOT = SCR
PF = SCR + 512
TKT = SCR + 528
CNT = SCR + 544
XCH = LO + 2048
WO = 0
FIN = 20480
CTX = 28672
LDS_BYTES = SCR + 1024
assert LDS_BYTES <= 163840 and XCH % 4096 == 0
LREC = 16 * 256 * 256
REC_BYTES = LREC + 16 * 4 * 256 * 8
STAMP_OFF = 4 << 20
FSW = sum(((((-(px >> 2)) & 3) ^ ((px >> 1) & 1)) << (2 * px)) for px in range(16))

class Cfg:
    stamps = False
    cyc = False
    repf = 0
    cvar = 0
    g0pos = 1
    fine = 0
    wvpos = 2
    h0pos = 1
    cpp = 2
    cmain = 0
    pp = 0
    deep = 1
    h1early = 0
    pwait = 1
    ksleep = 0
    r1late = 1
    pm = 2
    pv = 0
    pl = 2
    cearly = 0
    trp = 0
    trc = 0
    touch = 0

SQ, SHI, SLO, SWL, SWQ, SWK, SWV, SWO, SWM, SOUT, SDBG, SWS = [f's[{4+2*i}:{5+2*i}]' for i in range(12)]
RHI, RLO, RWS = 's[28:31]', 's[32:35]', 's[36:39]'
SF = 's63'
STAMP0 = 64

def stamp(a, cfg, i, inner=False):
    if cfg.trp and not inner and i != 0: return
    if inner and not cfg.trp: return
    if cfg.stamps: a(f"{'s_memtime' if cfg.cyc else 's_memrealtime'} s[{STAMP0+2*i}:{STAMP0+2*i+1}]")

def stamp_flush(a, cfg, tmpv=100):
    if not cfg.stamps: return
    a('s_waitcnt lgkmcnt(0)')
    a('s_lshl_b32 s61, s2, 3\ns_add_u32 s61, s61, s3')
    a(f's_lshl_b32 s62, s61, 7')
    a(f's_add_u32 s62, s62, {STAMP_OFF}')
    for i in range(32): a(f'v_mov_b32 v{tmpv+i}, s{STAMP0+i}')
    a(f'v_mov_b32 v{tmpv+32}, 0')
    a('s_mov_b64 exec, 1')
    a('s_mov_b32 s56, s26\ns_mov_b32 s57, s27\ns_mov_b32 s58, 0x1000000\ns_mov_b32 s59, 0x20000')
    for i in range(8):
        a(f'buffer_store_dwordx4 {vr(tmpv+4*i,4)}, v{tmpv+32}, s[56:59], s62 offen offset:{16*i}')
    a('s_mov_b64 exec, -1')

def dma_swz(a, dst, k, tmp):
    a(f'v_add_u32 v{tmp}, {64*k if isinstance(k,int) else k}, v1')
    a(f'v_mul_u32_u24 v{tmp}, 0xaaab, v{tmp}')
    a(f'v_lshrrev_b32 v{tmp}, 18, v{tmp}')
    a(f'v_and_b32 v{tmp}, 0x1e, v{tmp}')
    a(f'v_bfe_u32 v{tmp}, {SF}, v{tmp}, 2')
    a(f'v_xor_b32 v{tmp}, v{tmp}, v1')
    a(f'v_lshlrev_b32 v{dst}, 4, v{tmp}')

def dma_part(a, ptr, ldsbase, voff, spart):
    lo = int(ptr[2:ptr.index(':')])
    a(f's_add_u32 m0, {spart}, {ldsbase}')
    a(f's_add_u32 s50, s{lo}, 4096')
    for k in range(4): a(f'global_load_lds_dwordx4 v{voff}, {ptr} offset:{1024*k}')
    a(f's_addc_u32 s51, s{lo+1}, 0')
    a(f's_add_u32 m0, {spart}, {ldsbase+4096}')
    a('s_mov_b32 exec_hi, 0')
    a(f'global_load_lds_dwordx4 v{voff}, s[50:51]')
    a('s_mov_b32 exec_hi, -1')

def dma_extra(a, ptr, ldsbase, voff, sbase):
    lo = int(ptr[2:ptr.index(':')])
    a(f's_add_u32 s50, s{lo}, 4096')
    a(f's_addc_u32 s51, s{lo+1}, 0')
    a(f's_add_u32 m0, {sbase}, {ldsbase+4096}')
    a('s_nop 0')
    a(f'global_load_lds_dwordx4 v{voff}, s[50:51]')

def dma_main(a, ptr, ldsbase, voff, sbase):
    a(f's_add_u32 m0, {sbase}, {ldsbase}')
    a('s_nop 0')
    for k in range(4): a(f'global_load_lds_dwordx4 v{voff}, {ptr} offset:{1024*k}')

def arrive(a, which, va, vd, rtn=False):
    a(f'v_mov_b32 v{va}, {CNT + 4*which}')
    a(f'v_mov_b32 v{vd}, 1')
    a('s_mov_b64 exec, 1')
    a(f'ds_add_rtn_u32 v{vd}, v{va}, v{vd}' if rtn else f'ds_add_u32 v{va}, v{vd}')
    a('s_mov_b64 exec, -1')

def await_cnt(a, which, tag, va, vd, n=4, setaddr=True):
    if setaddr: a(f'v_mov_b32 v{va}, {CNT + 4*which}')
    a(f'{tag}:')
    a(f'ds_read_b32 v{vd}, v{va}')
    a('s_waitcnt lgkmcnt(0)')
    a(f'v_readfirstlane_b32 s50, v{vd}')
    a(f's_cmp_lt_u32 s50, {n}')
    a(f's_cbranch_scc1 {tag}')

def lds_sync(a, which, tag, va, vd, n=4):
    arrive(a, which, va, vd, rtn=True)
    a('s_waitcnt lgkmcnt(0)')
    a(f'v_readfirstlane_b32 s50, v{vd}')
    a(f's_cmp_ge_u32 s50, {n-1}')
    a(f's_cbranch_scc1 {tag}_ok')
    await_cnt(a, which, tag + '_spin', va, vd, n, setaddr=False)
    a(f'{tag}_ok:')

def code_prefetch(a, tag, vt, tidoff, sp='s[44:45]', start=KNAME):
    lo = int(sp[2:sp.index(':')])
    a(f's_getpc_b64 {sp}')
    a(f'{tag}:')
    a(f's_add_u32 s{lo}, s{lo}, {start}-{tag}')
    a(f's_addc_u32 s{lo+1}, s{lo+1}, {"-1" if start == KNAME else "0"}')
    a(f'v_add_u32 v{vt}, {tidoff}, v0')
    a(f'v_lshlrev_b32 v{vt}, 7, v{vt}')
    a(f'v_min_u32 v{vt}, L_codeend-{start}-4, v{vt}')
    a(f'global_load_dword v{vt+1}, v{vt}, {sp}')

def nonce_slow(a, tag, back, v):
    a(f'{tag}:')
    a('s_memrealtime s[50:51]')
    a('s_waitcnt lgkmcnt(0)')
    a('s_or_b32 s47, s50, 1')
    a(f'v_mov_b32 v{v}, s47\nv_mov_b32 v{v+1}, 0\nv_mov_b32 v{v+2}, 0')
    a('s_mov_b64 exec, 1')
    a(f'global_atomic_cmpswap v{v}, v{v+2}, {vr(v,2)}, {SDBG} sc0 sc1')
    a('s_mov_b64 exec, -1')
    a('s_waitcnt vmcnt(0)')
    a(f'v_readfirstlane_b32 s50, v{v}')
    a('s_cmp_eq_u32 s50, 0')
    a('s_cselect_b32 s47, s47, s50')
    a(f's_branch {back}')

def gen_entry(a, cfg):
    a('s_cmp_ge_u32 s2, 256')
    a('s_cbranch_scc1 L_end')
    if cfg.stamps:
        for i in range(32): a(f's_mov_b32 s{STAMP0+i}, 0')
    stamp(a, cfg, 0)
    a('s_load_dwordx16 s[4:19], s[0:1], 0')
    a('s_load_dwordx8 s[20:27], s[0:1], 64')
    a('v_lshrrev_b32 v2, 6, v0')
    a('v_and_b32 v1, 63, v0')
    a('v_readfirstlane_b32 s3, v2')
    a(f's_mov_b32 {SF}, {FSW:#x}')
    a('s_mul_i32 s57, s2, 9')
    a(f's_mov_b32 s62, {f32(1/96)}')
    a('s_cmp_ge_u32 s3, 4')
    a('s_cbranch_scc1 L_cons')

def gen_producer(a, cfg):
    W0, W1, W2, RA0, RA1, RL0, RL1 = 2, 3, 4, 5, 6, 7, 8
    WL, LT, X, F = B.P.WL, B.P.LT, B.P.X, B.P.F
    ID, OP, SM, SL, T = B.P.ID, B.P.OP, B.P.SM, B.P.SL, B.P.T
    FLA, FLV = 14, 15
    U = 232
    sP = 's3'
    sH0, sH1, sH8, sLo0, sLo1 = 's40', 's41', 's42', 's43', 's44'
    sSlot, sLoP, RET = 's45', 's46', 's[48:49]'
    t0, t1, t2 = 's52', 's53', 's54'
    M1, O1, M2, O2 = 's55', 's56', 's58', 's59'
    for k, w in enumerate((W0, W1, W2)): dma_swz(a, w, k, U)
    a(f'v_lshlrev_b32 v{U+3}, 4, v1')
    for i in range(4): a(f'v_mov_b32 v{U+4+i}, 0')
    a(f'v_add_u32 v{U+8}, {SCR}, v{U+3}')
    a(f'ds_write_b128 v{U+8}, {vr(U+4,4)}')
    a(f's_add_u32 s58, s57, {sP}')
    a(f's_mul_i32 {sLo0}, s58, 3072')
    a(f's_mul_i32 {sLoP}, {sP}, 3072')
    a(f's_add_u32 {sLoP}, {sLoP}, {LO}')
    a('s_mov_b32 s34, 7077888\ns_mov_b32 s35, 0x20000')
    a(f's_add_u32 {sLo1}, {sLo0}, {4*3072}')
    a(f's_min_u32 {t0}, {sP}, 2')
    a(f's_lshl_b32 s47, {sP}, 2')
    a(f's_add_u32 s47, s47, {t0}')
    a(f's_lshl_b32 s47, s47, 10')
    a(f'v_add_u32 v15, s47, v{U+3}')
    a(f's_cmp_ge_u32 {sP}, 2')
    a('s_waitcnt lgkmcnt(0)')
    a('s_cbranch_scc1 P_nox')
    dma_extra(a, SWL, WREG, 15, 's47')
    a('P_nox:')
    dma_main(a, SWL, WREG, 15, 's47')
    def half(srd, soff):
        return [f'buffer_load_dwordx4 v{w}, {srd}, {soff} offen offset:{1024*k} nt lds' for k, w in enumerate((W0, W1, W2))]
    a('s_mov_b32 s32, s8\ns_mov_b32 s33, s9')
    a(f's_mov_b32 m0, {sLoP}')
    a('s_mov_b32 s28, s6')
    for l in half(RLO, sLo0): a(l)
    a('s_barrier')
    a('s_add_u32 s60, s57, 8')
    a('s_mov_b32 s29, s7\ns_mov_b32 s30, 28311552\ns_mov_b32 s31, 0x20000')
    def hi_off(dst, u):
        a(f's_mul_i32 {t0}, {u}, 43691')
        a(f's_lshr_b32 {t0}, {t0}, 19')
        a(f's_mul_i32 {t0}, {t0}, 73728')
        a(f's_mul_i32 {dst}, {u}, 6144')
        a(f's_add_u32 {dst}, {dst}, {t0}')
    a('s_add_u32 s59, s58, 4')
    hi_off(sH0, 's58'); hi_off(sH1, 's59'); hi_off(sH8, 's60')
    a(f's_mul_i32 {t0}, {sP}, 73728')
    a(f's_add_u32 {sH8}, {sH8}, {t0}')
    a(f's_mul_i32 {sSlot}, {sP}, 6144')
    def issue_h(soff, rnd, hf, add=0):
        a(f's_add_u32 m0, {sSlot}, {rnd*4*6144+3072*hf}')
        if add + hf:
            a(f's_add_u32 {t0}, {soff}, {add+3072*hf}'); src = t0
        else:
            a('s_nop 0'); src = soff
        for l in half(RHI, src): a(l)
    stamp(a, cfg, 1)
    a(f'v_and_b32 v{U}, 31, v1')
    a(f'v_lshrrev_b32 v{U+1}, 5, v1')
    def rdaddr(d0, d1, px, base):
        a(f'v_lshlrev_b32 v{U+2}, 1, v{px}')
        a(f'v_and_b32 v{U+2}, 0x1e, v{U+2}')
        a(f'v_bfe_u32 v{U+2}, {SF}, v{U+2}, 2')
        a(f'v_xor_b32 v{U+2}, v{U+2}, v{U+1}')
        a(f'v_xor_b32 v{U+3}, 2, v{U+2}')
        a(f'v_mul_u32_u24 v{U+4}, 192, v{px}')
        a(f'v_add_u32 v{U+4}, {base}, v{U+4}')
        a(f'v_lshl_add_u32 v{d0}, v{U+2}, 4, v{U+4}')
        a(f'v_lshl_add_u32 v{d1}, v{U+3}, 4, v{U+4}')
    rdaddr(RA0, RA1, U, sSlot)
    a(f'v_lshrrev_b32 v{U+5}, 1, v{U}')
    rdaddr(RL0, RL1, U+5, sLoP)
    a(f'v_bfe_u32 v14, v1, 2, 2')
    a(f'v_lshl_add_u32 v14, v{U+1}, 3, v14')
    a(f'v_mul_u32_u24 v14, 192, v14')
    a(f'v_bfe_u32 v{U+8}, v1, 4, 1')
    a(f'v_lshl_add_u32 v14, v{U+8}, 5, v14')
    a(f'v_and_b32 v{U+3}, 1, v1')
    a(f'v_lshl_add_u32 v14, v{U+3}, 4, v14')
    a(f'v_bfe_u32 v{U+3}, v1, 1, 1')
    a(f'v_lshl_add_u32 v14, v{U+3}, 3, v14')
    a(f'v_add_u32 v14, {WREG}, v14')
    a(f'v_bfe_u32 v{U+2}, v1, 3, 1')
    a(f'v_and_b32 v{U+3}, 3, v1')
    a(f'v_lshl_add_u32 v{U+2}, v{U+2}, 2, v{U+3}')
    a(f'v_bfe_u32 v{U+3}, v1, 2, 1')
    a(f'v_cmp_eq_u32 vcc, v{U+3}, v{U+1}')
    a(f'v_and_b32 v{U+6}, 1, v{U+2}')
    a(f'v_lshlrev_b32 v{U+6}, 4, v{U+6}')
    a(f'v_mov_b32 v{U+4}, 0x3f80')
    a(f'v_lshlrev_b32 v{U+6}, v{U+6}, v{U+4}')
    a(f'v_cndmask_b32 v{U+6}, 0, v{U+6}, vcc')
    a(f'v_lshrrev_b32 v{U+2}, 1, v{U+2}')
    a(f'v_lshl_add_u32 v{U+2}, v{U+8}, 2, v{U+2}')
    a(f'v_cmp_eq_u32 s[58:59], v{U+3}, v{U+8}')
    a(f'v_mov_b32 v{U+7}, 0x3f803f80')
    for i in range(0, 8, 2):
        a(f'v_cmp_eq_u32 vcc, {i}, v{U+2}')
        a(f'v_cmp_eq_u32 s[60:61], {i+1}, v{U+2}')
        a(f'v_cndmask_b32 v{OP+i//2}, 0, v{U+7}, s[58:59]')
        a(f'v_cndmask_b32 v{ID+i}, 0, v{U+6}, vcc')
        a(f'v_cndmask_b32 v{ID+i+1}, 0, v{U+6}, s[60:61]')
    a(f's_waitcnt vmcnt(0)')
    stamp(a, cfg, 10)
    arrive(a, 0, 12, 13)
    issue_h(sH0, 0, 0)
    def lo_reads(r0, r1, off=0):
        return [f'ds_read_b128 {vr(X+4*s,4)}, v{r1 if s&1 else r0} offset:{off+64*(s>>1)}' for s in range(6)]
    for l in lo_reads(RL0, RL1): a(l)
    if cfg.h1early: issue_h(sH0, 0, 1)
    await_cnt(a, 0, 'P_sy0', 12, 13, 4, setaddr=False)
    stamp(a, cfg, 2)
    def wl_reads(t, s):
        return [f'ds_read_b64_tr_b16 {vr(WL+(t*6+s)*4+2*sec,2)}, v14 offset:{s*3072+sec*768+t*64}' for sec in range(2)]
    def lat_mfma(t, s):
        c = '0' if s == 0 else vr(LT+16*t,16)
        return f'{MF32} {vr(LT+16*t,16)}, {vr(WL+(t*6+s)*4,4)}, {vr(X+4*s,4)}, {c}'
    def lateral(first):
        pend = []
        L = [wl_reads(0, s) for s in range(4)] if first else []
        seq = [(t, s) for t in range(3) for s in range(6)]
        for i, (t, s) in enumerate(seq):
            L.append(lat_mfma(t, s))
            if first and i + 4 < 18: L.append(wl_reads(*seq[i+4]))
            if s >= 1: L.append(pend[:4]); del pend[:4]
            if s == 5:
                pend += [f'v_mov_b32 v{SL}, v{LT}' if (t == 0 and j == 0) else f'v_add_f32 v{SL}, v{SL}, v{LT+16*t+j}' for j in range(16)]
        return flat(L), pend
    def sl_fin():
        return [f'v_mov_b32 v{SL+1}, v{SL}', 's_nop 1', f'v_permlane32_swap_b32 v{SL}, v{SL+1}', f'v_add_f32 v{SL}, v{SL}, v{SL+1}']
    L, pend = lateral(True)
    for l in autowait(L, age=99): a(l)
    if not cfg.h1early: issue_h(sH0, 0, 1)
    issue_h(sH0, 1, 0, 73728)
    for l in pend + sl_fin(): a(l)
    stamp(a, cfg, 3)
    a(f's_lshl_b32 {t0}, {sP}, 2')
    a(f's_add_u32 {t0}, {t0}, {PF}')
    a(f'v_mov_b32 v{FLA}, {t0}')
    a(f'v_mov_b32 v{FLV}, 0')
    a(f's_cmp_lt_u32 {sP}, 2')
    a('s_cbranch_scc0 P_scriptB')
    def script(tag, tiles, lats):
        n = len(tiles)
        q = ['h0', 'h1', 'h2']
        nxt = [3]
        done = set()
        def param(M, O):
            h = nxt[0]; r, hf = divmod(h, 2)
            if r >= 3 and r not in done:
                done.add(r); await_cnt(a, r, f'P_w{tag}{r}', 12, 13, 4)
            a(f's_add_u32 {M}, {sSlot}, {r*4*6144+3072*hf}')
            a(f's_add_u32 {O}, {tiles[r][0]}, {tiles[r][1]+3072*hf}')
            nxt[0] += 1
            return f'h{h}'
        for r in range(n):
            ng = min(2, 2*n - nxt[0])
            if r == 1 and cfg.r1late: ng = 1
            new = []
            if ng >= 1: new.append(param(M1, O1))
            if ng >= 2: new.append(param(M2, O2))
            need = [f'h{2*r}', f'h{2*r+1}'] + (['lo'] if lats[r] == 4*3072 else [])
            idx = max([q.index(x) for x in need if x in q] + [-1])
            last = r == n - 1
            if lats[r] is not None:
                if lats[r] == 4*3072:
                    i2 = q.index('lo') if 'lo' in q else -1
                    if i2 >= 0:
                        a(f's_waitcnt vmcnt({3*(len(q)-1-i2)})');
                    a(f'v_add_u32 v12, {lats[r]}, v{RL0}\nv_add_u32 v13, {lats[r]}, v{RL1}')
                else:
                    await_cnt(a, 1, f'P_l8{tag}', 12, 13, 4)
                    a(f's_sub_u32 {t0}, {LO+8*3072}, {sLoP}')
                    a(f'v_add_u32 v12, {t0}, v{RL0}\nv_add_u32 v13, {t0}, v{RL1}')
                a(f's_call_b64 {RET}, P_lat')
            if last and tag == 'a':
                a(f's_call_b64 {RET}, P_h0w'); break
            a(f's_waitcnt vmcnt({3*(len(q)-1-idx)})'); stamp(a, cfg, 4+r)
            q = q[idx+1:] + new
            if last: break
            stamp(a, cfg, 1, True)
            a(f's_call_b64 {RET}, P_h{ng}')
            stamp(a, cfg, 14, True)
            if cfg.trp == r + 1: a('s_branch L_exit')
            if r == 1 and cfg.r1late:
                q.append(param(M1, O1))
                a(f's_mov_b32 m0, {M1}')
                a('s_nop 0')
                for l in half(RHI, O1): a(l)
            if r == 0:
                a(f's_add_u32 m0, {sLoP}, {4*3072}')
                a('s_nop 0')
                for l in half(RLO, sLo1): a(l)
                q.append('lo')
    script('a', [(sH0, 0), (sH0, 73728), (sH8, 0), (sH1, 0), (sH1, 73728)], [None, None, 'u8', 4*3072, None])
    a('s_barrier')
    a('s_branch P_fin')
    a('P_scriptB:')
    script('b', [(sH0, 0), (sH0, 73728), (sH1, 0), (sH1, 73728)], [None, None, 4*3072, None])
    a(f's_call_b64 {RET}, P_h0')
    if cfg.trp: a('s_branch L_exit')
    a('s_cmp_ge_u32 s2, 16')
    a('s_cbranch_scc1 L_exit')
    a('s_barrier')
    a('P_fin:')
    if cfg.trp: a('s_branch L_exit')
    stamp(a, cfg, 9)
    a('s_cmp_ge_u32 s2, 16')
    a('s_cbranch_scc1 L_exit')
    a('s_setprio 0')
    a(f's_mul_i32 s48, {sP}, 4608')
    a('v_lshlrev_b32 v2, 4, v1')
    a('v_add_u32 v12, s48, v2')
    a(f's_load_dword s47, {SDBG}, 0')
    dma_part(a, SWO, WO, 12, 's48')
    a('s_waitcnt lgkmcnt(0)')
    a('s_cmp_eq_u32 s47, 0')
    a('s_cbranch_scc1 P_getnonce')
    a('P_getnonce_d:')
    a(f's_mov_b32 s36, s26\ns_mov_b32 s37, s27\ns_mov_b32 s38, {REC_BYTES}\ns_mov_b32 s39, 0x20000')
    if cfg.pwait: await_cnt(a, 7, 'P_w7', 12, 13, 4)
    a('s_branch L_comb')
    nonce_slow(a, 'P_getnonce', 'P_getnonce_d', 20)
    a('P_lat:')
    if cfg.pp: a(f's_setprio {cfg.pl}')
    L, pend = lateral(False)
    for l in autowait(lo_reads(12, 13) + L, age=99): a(l)
    a('s_nop 9')
    for l in pend + sl_fin(): a(l)
    a(f's_setpc_b64 {RET}')
    hp = cfg.pm if cfg.pp else None
    g1 = [f's_mov_b32 m0, {M1}', 's_nop 0'] + half(RHI, O1)
    g2 = [f's_mov_b32 m0, {M2}', 's_nop 0'] + half(RHI, O2)
    def traced(lines, first, n):
        step = max(1, len(lines) // n); k = first
        for i, l in enumerate(lines):
            if i % step == 0 and k < first + n:
                stamp(a, cfg, k, True); k += 1
            a(l)
    a('P_h2:')
    traced(B.p_head(g1, g2, hp), 2, 3)
    a('s_branch P_s1')
    a('P_h1:')
    traced(B.p_head(g1, (), hp), 2, 3)
    a('s_branch P_s1')
    a('P_h0w:')
    a('s_waitcnt vmcnt(0)')
    stamp(a, cfg, 8)
    a('P_h0:')
    for l in B.p_head((), (), hp): a(l)
    a('P_s1:')
    tail = B.p_tail(0, cfg.pv if cfg.pp else None)
    traced(tail[:-1], 5, 9)
    a(f'v_add_u32 v{FLV}, 1, v{FLV}')
    a('s_waitcnt lgkmcnt(0)')
    a(f'ds_write_b32 v{FLA}, v{FLV}')
    a(f's_setpc_b64 {RET}')

def gen_consumer(a, cfg):
    sH = 's40'
    t0, t1 = 's41', 's42'
    RET = 's[44:45]'
    sR = 's43'
    LIN, REC, WVA, XA = 2, 3, 8, 9
    CA0, CA1, CT0, CT1 = B.C.CA0, B.C.CA1, B.C.CT0, B.C.CT1
    PART = 12
    AP, U, LA, OP = B.C.AP, B.C.U, B.C.LA, B.C.OP
    WV = B.C.WV
    QB, WK, ME, QT, QP, TA, QF = 96, 108, 132, 156, 164, 168, 16
    T = 240
    T2 = 248
    a('L_cons:')
    if cfg.cearly: a(f's_setprio {cfg.cpp}')
    a('s_memrealtime s[58:59]')
    a(f's_sub_u32 {sH}, s3, 4')
    a(f'v_lshlrev_b32 v{LIN}, 4, v1')
    a(f's_mul_i32 s48, {sH}, 4608')
    a(f'v_add_u32 v{PART}, s48, v{LIN}')
    a(f's_min_u32 {t0}, {sH}, 2')
    a(f's_lshl_b32 s46, {sH}, 2')
    a(f's_add_u32 s46, s46, {t0}')
    a(f's_lshl_b32 s46, s46, 10')
    a(f'v_add_u32 v13, s46, v{LIN}')
    a(f's_lshl_b32 {t1}, {t0}, 6')
    dma_swz(a, 11, t1, T)
    a(f's_lshl_b32 s54, {t0}, 10')
    a('s_add_u32 s47, s57, 8\ns_mul_i32 s47, s47, 3072\ns_add_u32 s47, s47, s54')
    a(f'v_add_u32 v10, s54, v{LIN}')
    a('s_lshr_b32 s50, s2, 3\ns_and_b32 s50, s50, 31\ns_mul_i32 s50, s50, 640')
    a(f'v_lshlrev_b32 v14, 7, v1')
    a(f'v_add_u32 v14, s50, v14')
    a(f'v_min_u32 v14, 18428, v14')
    N, G, RHO, KAP = T+4, T+5, T+6, T+7
    a(f'v_and_b32 v{N}, 15, v1')
    a(f'v_lshrrev_b32 v{G}, 4, v1')
    a(f'v_bfe_u32 v{RHO}, v1, 2, 2')
    a(f'v_and_b32 v{KAP}, 3, v1')
    a(f'v_mul_u32_u24 v{T+8}, 192, v{N}')
    a(f'v_lshl_add_u32 v{T+8}, v{G}, 4, v{T+8}')
    a(f'v_lshl_add_u32 v{T+9}, v{RHO}, 3, v{KAP}')
    a(f'v_mul_u32_u24 v{T+9}, 48, v{T+9}')
    a(f'v_lshl_add_u32 v{T+9}, v{G}, 4, v{T+9}')
    a(f'v_add_u32 v{T+9}, s48, v{T+9}')
    for i in range(24): a(f'v_mov_b32 v{WK+i}, 0')
    a('s_mov_b32 s34, 7077888\ns_mov_b32 s35, 0x20000')
    a('s_waitcnt lgkmcnt(0)')
    a(f's_cmp_eq_u32 {sH}, 0\ns_cselect_b64 s[50:51], {SWV}, {SWQ}')
    a(f's_cmp_eq_u32 {sH}, 2\ns_cselect_b64 s[50:51], {SWK}, s[50:51]')
    a(f's_cmp_eq_u32 {sH}, 3\ns_cselect_b64 s[50:51], {SWM}, s[50:51]')
    a('s_mov_b64 exec, 31')
    a(f'global_load_dword v15, v14, s[50:51]')
    a('s_mov_b64 exec, -1')
    a('s_mov_b32 s32, s8\ns_mov_b32 s33, s9')
    a('s_barrier')
    a(f's_lshl_b32 s50, s2, 2\ns_xor_b32 s50, s50, {sH}\ns_cmp_eq_u32 s50, 3')
    a('s_cbranch_scc1 C_mknonce')
    a('C_mknonce_d:')
    a(f's_cmp_ge_u32 {sH}, 2')
    a('s_cbranch_scc1 C_nox')
    code_prefetch(a, 'L_pc', 14, -256)
    dma_extra(a, SWM, WM, 13, 's46')
    dma_extra(a, SWQ, WQ, 13, 's46')
    a('C_nox:')
    a(f's_cmp_ge_u32 {sH}, 3')
    a('s_cbranch_scc1 C_noy')
    a(f's_add_u32 m0, s54, {LO+8*3072}')
    a('s_nop 0')
    a(f'buffer_load_dwordx4 v11, {RLO}, s47 offen nt lds')
    a(f's_add_u32 m0, s54, {QS}')
    a('s_nop 0')
    a(f'global_load_lds_dwordx4 v10, {SQ}')
    a('C_noy:')
    dma_main(a, SWM, WM, 13, 's46')
    dma_main(a, SWQ, WQ, 13, 's46')
    stamp(a, cfg, 1)
    a(f's_mov_b32 s36, s26\ns_mov_b32 s37, s27\ns_mov_b32 s38, {REC_BYTES}\ns_mov_b32 s39, 0x20000')
    a(f's_lshl_b32 {t0}, s2, 2\ns_add_u32 {t0}, {t0}, {sH}\ns_lshl_b32 {t0}, {t0}, 6')
    a(f'v_lshlrev_b32 v{REC}, 16, v{N}')
    a(f'v_lshl_add_u32 v{REC}, v{G}, 4, v{REC}')
    a(f'v_add_u32 v{REC}, {t0}, v{REC}')
    a(f's_and_b32 s49, {sH}, 1')
    a('s_mul_i32 s52, s49, 6144')
    a(f'v_and_b32 v{T+10}, 31, v1')
    a(f'v_lshrrev_b32 v{T+11}, 5, v1')
    a(f'v_lshlrev_b32 v{T+12}, 1, v{N}')
    a(f'v_bfe_u32 v{T+12}, {SF}, v{T+12}, 2')
    a(f'v_xor_b32 v{T+12}, v{T+12}, v{T+11}')
    a(f'v_mul_u32_u24 v{T+13}, 192, v{T+10}')
    a(f'v_add_u32 v{T+13}, s52, v{T+13}')
    a(f'v_lshl_add_u32 v{CA0}, v{T+12}, 4, v{T+13}')
    a(f'v_xor_b32 v{T+12}, 2, v{T+12}')
    a(f'v_lshl_add_u32 v{CA1}, v{T+12}, 4, v{T+13}')
    a(f'v_lshl_add_u32 v{T+12}, v{T+11}, 2, v{RHO}')
    a(f'v_bfe_u32 v{T+13}, v1, 4, 1')
    a(f'v_lshrrev_b32 v{T+14}, 1, v{KAP}')
    a(f'v_lshl_add_u32 v{T+14}, v{T+13}, 1, v{T+14}')
    a(f'v_and_b32 v{T+15}, 1, v{KAP}')
    a(f'v_lshlrev_b32 v{T+15}, 3, v{T+15}')
    a(f'v_add_u32 v{T+15}, s52, v{T+15}')
    for sec, dst in ((0, CT0), (1, CT1)):
        if sec: a(f'v_add_u32 v{T+12}, 8, v{T+12}')
        a(f'v_lshlrev_b32 v{dst}, 1, v{T+12}')
        a(f'v_bfe_u32 v{dst}, {SF}, v{dst}, 2')
        a(f'v_xor_b32 v{dst}, v{dst}, v{T+14}')
        a(f'v_lshl_add_u32 v{dst}, v{dst}, 4, v{T+15}')
        a(f'v_mul_u32_u24 v10, 192, v{T+12}')
        a(f'v_add_u32 v{dst}, v{dst}, v10')
    a(f'v_lshl_add_u32 v{WVA}, v{T+11}, 2, v{RHO}')
    a(f'v_lshl_add_u32 v{WVA}, v{T+13}, 4, v{WVA}')
    a(f'v_mul_u32_u24 v{WVA}, 48, v{WVA}')
    a(f'v_lshl_add_u32 v{WVA}, v{KAP}, 3, v{WVA}')
    a(f'v_add_u32 v{WVA}, {WREG}, v{WVA}')
    a(f's_xor_b32 {t0}, {sH}, 1')
    a(f's_mul_i32 s53, {t0}, 4608')
    a(f'v_mov_b32 v10, s48')
    a(f'v_mov_b32 v11, s53')
    a(f'v_cmp_eq_u32 vcc, 0, v{T+13}')
    a(f'v_mul_u32_u24 v{XA}, 192, v{N}')
    a(f'v_lshl_add_u32 v{XA}, v{T+11}, 4, v{XA}')
    a(f'v_cndmask_b32 v10, v11, v10, vcc')
    a(f'v_add_u32 v{XA}, v{XA}, v10')
    a(f'v_add_u32 v{XA}, {WQ}, v{XA}')
    a(f'v_lshl_add_u32 v{T+12}, v{G}, 3, v{RHO}')
    a(f'v_mul_u32_u24 v10, 48, v{T+12}')
    a(f'v_min_u32 v11, 2, v{KAP}')
    a(f'v_lshl_add_u32 v10, v11, 4, v10')
    a(f's_add_u32 {t0}, s48, {WQ}')
    a(f'v_add_u32 v10, {t0}, v10')
    a(f'v_add_u32 v13, {t0}, v{T+8}')
    a(f'v_add_u32 v{T+8}, {QS}, v{T+8}')
    a(f'v_mul_u32_u24 v11, 192, v{T+12}')
    a(f'v_lshl_add_u32 v11, v{KAP}, 4, v11')
    a(f'v_add_u32 v11, {WM}, v11')
    a(f'v_and_b32 v{T+12}, 1, v1')
    a(f'v_cmp_eq_u32 vcc, v{T+12}, v{T+13}')
    a(f'v_mov_b32 v{T+12}, 0x3f803f80')
    for i in range(52):
        a(f'v_mov_b32 v{U+i}, 0')
        if i == 4:
            for k in range(4): a(f'v_cndmask_b32 v{OP+k}, 0, v{T+12}, vcc')
    a('s_waitcnt vmcnt(4)')
    arrive(a, 1, 14, 15)
    a('s_mov_b32 exec_hi, 0xffff')
    for s in range(3):
        for tt in range(2):
            a(f'global_load_dwordx4 {vr(WK+(2*s+tt)*4,4)}, v{T+9}, {SWK} offset:{1536*s+192*tt}')
    a('s_mov_b32 exec_hi, -1')
    if cfg.cpp: a(f's_setprio {cfg.cpp}')
    await_cnt(a, 1, 'C_sy1', 14, 15, 4, setaddr=False)
    stamp(a, cfg, 2)
    def me_rd(sp, st): return [f'ds_read_b64_tr_b16 {vr(TA+(sp*6+st)*4+2*sec,2)}, v11 offset:{sp*6144+sec*768+(st>>1)*64+(st&1)*8}' for sec in range(2)]
    seq = [(sp, st) for sp in range(3) for st in range(6)]
    L = [f'ds_read_b128 {vr(QB+4*s,4)}, v{T+8} offset:{64*s}' for s in range(3)]
    L += [me_rd(*seq[i]) for i in range(5)]
    for i, (sp, st) in enumerate(seq):
        c = '0' if sp == 0 else vr(ME+4*st,4)
        L.append(f'{MF16} {vr(ME+4*st,4)}, {vr(TA+(sp*6+st)*4,4)}, {vr(QB+4*sp,4)}, {c}')
        if i + 5 < 18: L.append(me_rd(*seq[i+5]))
    for l in autowait(flat(L), age=99): a(l)
    a('s_waitcnt vmcnt(6)')
    lds_sync(a, 2, 'C_sy2', 14, 15)
    stamp(a, cfg, 15)
    L = []
    for s in range(3):
        for tt in range(2):
            for sec in range(2):
                L.append(f'ds_read_b64_tr_b16 {vr(QF+(tt*3+s)*4+2*sec,2)}, v10 offset:{s*1536+sec*192+tt*8}')
    for s in range(3):
        for tt in range(2):
            c = '0' if s == 0 else vr(QT+4*tt,4)
            L.append(f'{MF16} {vr(QT+4*tt,4)}, {vr(QF+(tt*3+s)*4,4)}, {vr(QB+4*s,4)}, {c}')
    for l in autowait(L, age=99): a(l)
    for i in range(8): a(f'v_add_f32 v{QT+i}, v{QT+i}, v{QT+i}')
    for i in range(4): a(f'v_cvt_pk_bf16_f32 v{QP+i}, v{QT+2*i}, v{QT+2*i+1}')
    a('s_waitcnt vmcnt(0)')
    for st in range(6):
        a(f'{MF16} {vr(ME+4*st,4)}, {vr(WK+4*st,4)}, {vr(QP,4)}, {vr(ME+4*st,4)}')
    sc = 96 ** -0.5 * math.log2(math.e)
    a(f's_mov_b32 {t0}, {f32(sc)}')
    for s in range(3):
        for i in range(8): a(f'v_mul_f32 v{ME+8*s+i}, {t0}, v{ME+8*s+i}')
        for i in range(4): a(f'v_cvt_pk_bf16_f32 v{ME+8*s+i}, v{ME+8*s+2*i}, v{ME+8*s+2*i+1}')
        a(f'ds_write_b128 v13, {vr(ME+8*s,4)} offset:{64*s}')
    a('s_waitcnt lgkmcnt(0)')
    lds_sync(a, 3, 'C_sy3', 14, 15)
    stamp(a, cfg, 3)
    for s in range(6): a(f'ds_read_b128 {vr(AP+4*s,4)}, v{XA} offset:{32*s}')
    a(f'v_mov_b32 v10, {PF}')
    a(f's_mov_b32 {sR}, 1')
    a('s_waitcnt lgkmcnt(0)')
    arrive(a, 4, 14, 15)
    if cfg.cpp: a(f's_setprio {cfg.cmain}')
    a(f's_call_b64 {RET}, C_blk')
    stamp(a, cfg, 5)
    dma_part(a, SWV, WREG, PART, 's48')
    if cfg.touch:
        a(f'buffer_load_dword v{T2}, v{REC}, {RWS}, 0 offen')
        a(f'v_and_b32 v{T2+1}, 15, v1')
        a(f'v_lshlrev_b32 v{T2+1}, 13, v{T2+1}')
        a(f'v_add_u32 v{T2+1}, {LREC}, v{T2+1}')
        a(f'buffer_load_dword v{T2+1}, v{T2+1}, {RWS}, 0 offen')
        a(f'v_mov_b32 v{T2+2}, 0')
        a(f'global_load_dword v{T2+2}, v{T2+2}, {SOUT}')
    a(f's_call_b64 {RET}, C_blk')
    stamp(a, cfg, 6)
    a(f's_load_dword s47, {SDBG}, 0')
    a('s_waitcnt vmcnt(0) lgkmcnt(0)')
    a('s_cmp_eq_u32 s47, 0')
    a('s_cbranch_scc1 C_getnonce')
    a('C_getnonce_d:')
    arrive(a, 6, 14, 15)
    a(f's_call_b64 {RET}, C_blk')
    stamp(a, cfg, 7)
    await_cnt(a, 6, 'C_sy6', 14, 15, 4, setaddr=False)
    a(f'v_add_u32 v14, s48, v{WVA}')
    a(f'v_add_u32 v15, s53, v{WVA}')
    L = []
    for hh in range(2):
        for tt in range(2):
            for t in range(3):
                for sec in range(2):
                    L.append(f'ds_read_b64_tr_b16 {vr(WV+(hh*6+tt*3+t)*4+2*sec,2)}, v{14+hh} offset:{t*1536+sec*384+tt*32}')
    for l in autowait(L): a(l)
    a(f's_call_b64 {RET}, C_blk')
    stamp(a, cfg, 4)
    a(f's_lshl_b32 {t0}, {sH}, 11')
    a(f's_add_u32 {t0}, {t0}, {XCH}')
    a(f'v_add_u32 v10, {t0}, v{LIN}')
    a(f'v_xor_b32 v11, 0x800, v10')
    a(f's_lshl_b32 {t0}, {sH}, 2')
    a(f's_add_u32 {t0}, {t0}, {CNT+32}')
    a(f'v_mov_b32 v13, {t0}')
    a(f'v_xor_b32 v14, 4, v13')
    a(f'v_mov_b32 v15, 1')
    a(f's_lshl_b32 {t0}, {sH}, 8\ns_add_u32 {t0}, {t0}, s2\ns_lshl_b32 {t0}, {t0}, 3\ns_add_u32 {t0}, {t0}, {LREC}')
    a('v_and_b32 v12, 15, v1')
    a('v_lshlrev_b32 v12, 13, v12')
    a(f'v_add_u32 v12, {t0}, v12')
    a(f'v_mov_b32 v{T2+1}, s47')
    a('s_setprio 3')
    a('s_barrier')
    stamp(a, cfg, 8)
    for l in B.cons1(): a(l)
    stamp(a, cfg, 9)
    UP, CX = 96, 120
    for t in range(3):
        for i in range(8): a(f'v_cvt_pk_bf16_f32 v{UP+8*t+i}, v{U+16*t+2*i}, v{U+16*t+2*i+1}')
        for i in range(4): a(f'v_permlane16_swap_b32 v{UP+8*t+i}, v{UP+8*t+4+i}')
        for hh in (1, 0):
            for tt in range(2):
                c = '0' if t == 0 else vr(CX+8*hh+4*tt,4)
                a(f'{MF16} {vr(CX+8*hh+4*tt,4)}, {vr(WV+(hh*6+tt*3+t)*4,4)}, {vr(UP+8*t+4*hh,4)}, {c}')
    a('s_mov_b32 exec_lo, 0')
    a(f'v_mov_b32 v{CX+12}, v{LA+1}')
    a('s_mov_b32 exec_lo, -1')
    a(f'ds_write_b128 v11, {vr(CX+8,4)}')
    a(f'ds_write_b128 v11, {vr(CX+12,4)} offset:1024')
    a('s_mov_b32 exec_lo, 0')
    a(f'v_mov_b32 v{CX+4}, v{LA}')
    a('s_mov_b32 exec_lo, -1')
    a('ds_write_b32 v14, v15')
    a('C_xw:')
    a('ds_read_b32 v15, v13')
    a(f'ds_read_b128 {vr(CX+8,4)}, v10')
    a(f'ds_read_b128 {vr(CX+12,4)}, v10 offset:1024')
    a('s_waitcnt lgkmcnt(2)')
    a('v_cmp_eq_u32 vcc, 0, v15')
    a('s_cbranch_vccnz C_xw')
    a('s_waitcnt lgkmcnt(1)')
    for i in range(4): a(f'v_add_f32 v{CX+i}, v{CX+i}, v{CX+8+i}')
    a(f'v_cvt_pk_bf16_f32 v{CX}, v{CX}, v{CX+1}')
    a(f'v_cvt_pk_bf16_f32 v{CX+1}, v{CX+2}, v{CX+3}')
    a('s_waitcnt lgkmcnt(0)')
    a(f'v_add_f32 v{T2}, v{CX+4}, v{CX+12}')
    for i in range(5, 8): a(f'v_add_f32 v{CX+i}, v{CX+i}, v{CX+8+i}')
    a(f'v_cvt_pk_bf16_f32 v{CX+2}, v{T2}, v{CX+5}')
    a(f'v_cvt_pk_bf16_f32 v{CX+4}, v{CX+6}, v{CX+7}')
    a(f'v_mov_b32 v{CX+3}, s47')
    a('s_nop 0')
    a(f'v_permlane32_swap_b32 v{CX+2}, v{CX+4}')
    a(f'buffer_store_dwordx4 {vr(CX,4)}, v{REC}, {RWS}, 0 offen sc1')
    a('s_mov_b32 exec_lo, 0\ns_mov_b32 exec_hi, 0xffff')
    a(f'buffer_store_dwordx2 {vr(T2,2)}, v12, {RWS}, 0 offen sc1')
    a('s_mov_b64 exec, -1')
    stamp(a, cfg, 10)
    a('s_cmp_ge_u32 s2, 16')
    a('s_cbranch_scc1 L_exit')
    if cfg.pwait: arrive(a, 7, 14, 15)
    a('s_setprio 0')
    a('s_branch L_comb')
    a('C_mknonce:')
    a('s_or_b32 s50, s58, 1')
    a('v_mov_b32 v20, s50\nv_mov_b32 v21, 0\nv_mov_b32 v22, 0')
    a('s_mov_b64 exec, 1')
    a(f'global_atomic_cmpswap v22, v[20:21], {SDBG} sc1')
    a('s_mov_b64 exec, -1')
    a('s_branch C_mknonce_d')
    nonce_slow(a, 'C_getnonce', 'C_getnonce_d', T2)
    a('C_wait:')
    a('s_sleep 1')
    a('C_blk:')
    stamp(a, cfg, 1, True)
    a(f'ds_read_b128 {vr(T2+4,4)}, v10')
    a('s_waitcnt lgkmcnt(0)')
    a(f'v_min3_u32 v{T2+4}, v{T2+4}, v{T2+5}, v{T2+6}')
    a(f'v_min_u32 v{T2+4}, v{T2+4}, v{T2+7}')
    a(f'v_readfirstlane_b32 s50, v{T2+4}')
    a(f's_cmp_lt_u32 s50, {sR}')
    a('s_cbranch_scc1 C_wait')
    lines = B.cons2(cfg.cvar)
    step = len(lines) // 11; k = 2
    for i, l in enumerate(lines):
        if i % step == 0 and k < 13:
            stamp(a, cfg, k, True); k += 1
        a(l)
    stamp(a, cfg, 13, True)
    if cfg.trp:
        a(f's_cmp_eq_u32 {sR}, {cfg.trc}')
        a('s_cbranch_scc1 L_exit')
    a(f's_add_u32 {sR}, {sR}, 1')
    a(f's_setpc_b64 {RET}')

def gen_combine(a, cfg):
    D, ACC, T = 32, 20, 28
    NS = 9
    a('L_comb:')
    if cfg.trp: a('s_branch L_exit')
    a('v_lshlrev_b32 v2, 4, v1')
    a('s_lshl_b32 s40, s2, 16')
    a('s_lshl_b32 s41, s3, 13')
    a('s_add_u32 s40, s40, s41')
    a('s_add_u32 s41, s40, 4096')
    def load(i):
        if i < 8: a(f'buffer_load_dwordx4 {vr(D+4*i,4)}, v2, {RWS}, {"s40" if i<4 else "s41"} offen offset:{1024*(i%4)} sc1')
        else: a(f'buffer_load_dwordx4 {vr(D+4*i,4)}, v3, {RWS}, s42 offen sc1')
    stamp(a, cfg, 11)
    for i in range(8): load(i)
    a('v_lshrrev_b32 v16, 4, v1')
    a('v_bfe_u32 v28, v1, 2, 2')
    a('v_and_b32 v19, 3, v1')
    a('v_lshlrev_b32 v3, 11, v28')
    a('v_lshl_add_u32 v3, v16, 6, v3')
    a('v_lshl_add_u32 v3, v19, 4, v3')
    a(f's_lshl_b32 s42, s2, 13\ns_lshl_b32 s43, s3, 8\ns_add_u32 s42, s42, s43\ns_add_u32 s42, s42, {LREC}')
    load(8)
    a('v_and_b32 v6, 15, v1')
    a('s_lshl_b32 s43, s3, 4')
    a('v_add_u32 v6, s43, v6')
    a('v_min_u32 v6, 95, v6')
    a('s_mul_i32 s44, s2, 96')
    a('v_add_u32 v6, s44, v6')
    a('v_lshlrev_b32 v6, 1, v6')
    a(f'global_load_ushort v7, v6, {SQ}')
    a('v_lshl_add_u32 v29, v16, 3, v28')
    a('v_mul_u32_u24 v29, 192, v29')
    a('v_lshl_add_u32 v29, v19, 3, v29')
    a('s_lshl_b32 s45, s3, 5')
    a(f'v_add_u32 v14, s45, v29')
    a('v_mov_b32 v17, 0x75316420')
    a('s_mov_b32 exec_lo, 0')
    a('v_mov_b32 v17, 0xfedcb9a8')
    a('s_mov_b32 exec_lo, -1')
    a('v_and_b32 v29, 1, v16')
    a('v_lshl_add_u32 v29, v29, 2, v19')
    a('v_lshlrev_b32 v29, 2, v29')
    a('v_bfe_u32 v29, v17, v29, 4')
    a('v_lshl_add_u32 v15, v28, 4, v29')
    a('v_mul_u32_u24 v15, 80, v15')
    a('s_lshl_b32 s45, s3, 3')
    a(f's_add_u32 s45, s45, {FIN}')
    a(f'v_add_u32 v15, s45, v15')
    a('v_mul_u32_u24 v8, 80, v1')
    a(f'v_add_u32 v8, {FIN}, v8')
    a('s_lshl_b32 s45, s3, 8')
    a(f's_add_u32 s45, s45, {CTX}')
    a('v_and_b32 v28, 15, v1')
    a('v_lshlrev_b32 v9, 2, v28')
    a('v_mad_u32_u24 v9, v16, 48, v9')
    a('v_mov_b32 v29, 192')
    a('v_cmp_lt_u32 vcc, 11, v28')
    a('v_lshlrev_b32 v10, 4, v16')
    a('v_add_u32 v10, s45, v10')
    a('v_cndmask_b32 v9, v9, v29, vcc')
    a('v_add_u32 v9, s45, v9')
    for i in range(8): a(f'v_mov_b32 v{ACC+i}, 0')
    a('s_mov_b32 s46, 0xffff0000')
    for i in range(8):
        a(f's_waitcnt vmcnt({9-i})')
        if i == 0: stamp(a, cfg, 12)
        a(f'K_chk{i}:')
        a(f'v_cmp_ne_u32 vcc, s47, v{D+4*i+3}')
        a(f'v_lshlrev_b32 v{T}, 16, v{D+4*i}')
        a(f's_cbranch_vccnz K_retry{i}')
        for j in range(3):
            if j: a(f'v_lshlrev_b32 v{T}, 16, v{D+4*i+j}')
            a(f'v_and_b32 v{T+1}, s46, v{D+4*i+j}')
            a(f'v_add_f32 v{ACC+2*j}, v{ACC+2*j}, v{T}')
            a(f'v_add_f32 v{ACC+2*j+1}, v{ACC+2*j+1}, v{T+1}')
    a('s_waitcnt vmcnt(1)')
    a('K_chk8:')
    a(f'v_cmp_ne_u32 vcc, s47, v{D+33}')
    a(f'v_cmp_ne_u32 s[50:51], s47, v{D+35}')
    a(f'v_add_f32 v{ACC+6}, v{D+32}, v{D+34}')
    a('s_or_b64 vcc, vcc, s[50:51]')
    a('s_cbranch_scc1 K_retry8')
    stamp(a, cfg, 13)
    for k in range(4): a(f'v_permlane32_swap_b32 v{ACC+k}, v{ACC+k+4}')
    for k in range(4): a(f'v_add_f32 v{ACC+k}, v{ACC+k}, v{ACC+k+4}')
    for k in range(2): a(f'v_permlane16_swap_b32 v{ACC+k}, v{ACC+k+2}')
    for k in range(2): a(f'v_add_f32 v{ACC+k}, v{ACC+k}, v{ACC+k+2}')
    a(f'ds_write_b64 v15, {vr(ACC,2)}')
    Bq, C = 40, 56
    a('s_waitcnt vmcnt(0) lgkmcnt(0)')
    a('s_barrier')
    if cfg.fine: stamp(a, cfg, 15)
    a('s_cmp_ge_u32 s3, 6')
    a('s_cbranch_scc1 L_exit')
    for k in range(4): a(f'ds_read_b128 {vr(C+4*k,4)}, v8 offset:{16*k}')
    for s in range(3):
        for sec in range(2):
            a(f'ds_read_b64_tr_b16 {vr(Bq+4*s+2*sec,2)}, v14 offset:{s*6144+sec*768}')
    a('v_lshlrev_b32 v7, 16, v7')
    a('s_waitcnt lgkmcnt(8)')
    for i in range(4): a(f'v_add_f32 v{C+i}, v{C+i}, v{C+4+i}')
    a('s_waitcnt lgkmcnt(6)')
    for i in range(4): a(f'v_add_f32 v{C+8+i}, v{C+8+i}, v{C+12+i}')
    for i in (0, 2, 1, 3): a(f'v_add_f32 v{C+i}, v{C+i}, v{C+8+i}')
    a(f'v_add_f32 v{C}, v{C}, v{C+2}')
    a(f'v_add_f32 v{C+1}, v{C+1}, v{C+3}')
    a(f'v_add_f32_dpp v{C+2}, v{C}, v{C} quad_perm:[1,0,3,2] row_mask:0xf bank_mask:0xf')
    a(f'v_add_f32_dpp v{C+2}, v{C+2}, v{C+2} quad_perm:[2,3,0,1] row_mask:0xf bank_mask:0xf')
    a(f'v_mov_b32_dpp v{C+2}, v{C+2} row_newbcast:12 row_mask:0xf bank_mask:0xf')
    a(f'v_rcp_f32 v{C+2}, v{C+2}')
    a(f'v_mul_f32 v{C}, v{C}, v{C+2}')
    a(f'v_mul_f32 v{C+1}, v{C+1}, v{C+2}')
    a(f'v_cvt_pk_bf16_f32 v{C}, v{C}, v{C+1}')
    a(f'ds_write_b32 v9, v{C}')
    for s in range(3): a(f'ds_read_b128 {vr(C+4+4*s,4)}, v10 offset:{64*s}')
    for s in range(3):
        c = '0' if s == 0 else 'v[88:91]'
        a(f's_waitcnt lgkmcnt({2-s})')
        a(f'{MF16} v[88:91], {vr(C+4+4*s,4)}, {vr(Bq+4*s,4)}, {c}')
    a('v_cvt_pk_bf16_f32 v88, v88, v88')
    a('v_and_b32 v88, 0xffff0000, v88')
    a('v_add_f32 v88, v88, v7')
    a('v_cvt_pk_bf16_f32 v88, v88, v88')
    a('s_mov_b64 exec, 0xffff')
    a(f'global_store_short v6, v88, {SOUT}')
    a('s_mov_b64 exec, -1')
    stamp(a, cfg, 14)
    a('L_exit:')
    stamp_flush(a, cfg)
    a('L_end:')
    a('s_endpgm')
    for i in range(NS):
        a(f'K_retry{i}:')
        if cfg.ksleep: a(f's_sleep {cfg.ksleep}')
        a(f's_call_b64 s[48:49], K_load{i}')
        a(f's_branch K_chk{i}')
    for i in range(NS):
        a(f'K_load{i}:')
        load(i)
    a('s_waitcnt vmcnt(0)')
    a('s_setpc_b64 s[48:49]')

def build(cfg):
    a = Asm()
    a.raw(f'; @launch grid=(256,1,1) block=(512,1,1) lds={LDS_BYTES}')
    a.raw('.amdgcn_target "amdgcn-amd-amdhsa--gfx950"')
    a.raw('.text')
    a.raw(f'.globl {KNAME}'); a.raw('.p2align 8'); a.raw(f'.type {KNAME},@function'); a.raw(f'{KNAME}:')
    gen_entry(a, cfg)
    gen_producer(a, cfg)
    gen_consumer(a, cfg)
    gen_combine(a, cfg)
    a.raw('L_codeend:')
    txt = a.finish(verbose=True)
    txt = txt.replace('    ; @launch', '; @launch')
    txt += f'''.section .rodata,"a"
.p2align 6
.amdhsa_kernel {KNAME}
  .amdhsa_next_free_vgpr 256
  .amdhsa_next_free_sgpr 100
  .amdhsa_accum_offset 256
  .amdhsa_group_segment_fixed_size 0
  .amdhsa_kernarg_size 96
  .amdhsa_user_sgpr_count 2
  .amdhsa_user_sgpr_kernarg_segment_ptr 1
  .amdhsa_system_sgpr_workgroup_id_x 1
.end_amdhsa_kernel
'''
    return txt

if __name__ == '__main__':
    cfg = Cfg()
    out = sys.argv[1]
    for o in sys.argv[2:]:
        if '=' in o:
            k, v = o.split('='); setattr(cfg, k, int(v))
        else: setattr(cfg, o, True)
    open(out, 'w').write(build(cfg))
```

```python
from asmlib import autowait
import struct
def f32(x): return '0x%08x' % struct.unpack('<I', struct.pack('<f', x))[0]
def vr(b, n=1): return f'v{b}' if n == 1 else f'v[{b}:{b+n-1}]'
MF32 = 'v_mfma_f32_32x32x16_bf16'
MF16 = 'v_mfma_f32_16x16x32_bf16'

class C:
    CA0, CA1, CT0, CT1 = 4, 5, 6, 7
    AP, U, LA, OP = 16, 40, 88, 92
    KA = [96, 160]; KT = [120, 96]; S = [144, 184]; P = [144, 184]
    WV = 200
    TB = 12288
    ADV = True

def ka(x, s): return f'ds_read_b128 {vr(C.KA[x]+4*s,4)}, v{C.CA1 if s&1 else C.CA0} offset:{x*C.TB+64*(s>>1)}'
def kt(x, ks, t): return [f'ds_read_b64_tr_b16 {vr(C.KT[x]+(ks*3+t)*4+2*sec,2)}, v{C.CT1 if sec else C.CT0} offset:{x*C.TB+64*t+3072*ks}' for sec in range(2)]
def sm(x, s): return f'{MF32} {vr(C.S[x],16)}, {vr(C.KA[x]+4*s,4)}, {vr(C.AP+4*s,4)}, {"0" if s == 0 else vr(C.S[x],16)}'
def pv(x, ks, t):
    if t == 3: return f'{MF16} {vr(C.LA,4)}, {vr(C.OP,4)}, {vr(C.P[x]+4*ks,4)}, {vr(C.LA,4)}'
    return f'{MF32} {vr(C.U+16*t,16)}, {vr(C.KT[x]+(ks*3+t)*4,4)}, {vr(C.P[x]+4*ks,4)}, {vr(C.U+16*t,16)}'
def ex(x, i): return f'v_exp_f32 v{C.S[x]+i}, v{C.S[x]+i}'
def cv(x, i): return f'v_cvt_pk_bf16_f32 v{C.P[x]+i}, v{C.S[x]+2*i}, v{C.S[x]+2*i+1}'
def adv(): return [] if not C.ADV else [f'v_add_u32 v{r}, {4*6144}, v{r}' for r in (C.CA0, C.CA1, C.CT0, C.CT1)]

def flat(l):
    o = []
    for x in l:
        if isinstance(x, (list, tuple)): o += flat(x)
        else: o.append(x)
    return o

def cons2(var=0):
    E = lambda x, a, b: [ex(x, i) for i in range(a, b)]
    V = lambda x, a, b: [cv(x, i) for i in range(a, b)]
    if var == 0:
        L = [[ka(0, s) for s in range(6)],
             sm(0,0), ka(1,0), ka(1,1), sm(0,1), ka(1,2), ka(1,3), sm(0,2), ka(1,4), ka(1,5),
             sm(0,3), kt(0,0,0), sm(0,4), kt(0,0,1), sm(0,5), kt(0,0,2),
             sm(1,0), kt(0,1,0), kt(0,1,1), sm(1,1), E(0,0,3), sm(1,2), E(0,3,6), sm(1,3), E(0,6,8), V(0,0,2),
             sm(1,4), V(0,2,4), E(0,8,10), sm(1,5), kt(0,1,2), E(0,10,12),
             pv(0,0,0), E(0,12,15), pv(0,0,1), E(0,15,16), V(0,4,8), pv(0,0,2), kt(1,0,0), E(1,0,2), pv(0,0,3), E(1,2,3),
             pv(0,1,0), kt(1,0,1), E(1,3,5), pv(0,1,1), kt(1,0,2), E(1,5,7), pv(0,1,2), E(1,7,8), V(1,0,4), pv(0,1,3), kt(1,1,0),
             pv(1,0,0), kt(1,1,1), E(1,8,10), pv(1,0,1), kt(1,1,2), E(1,10,12), pv(1,0,2), E(1,12,15), pv(1,0,3), E(1,15,16), V(1,4,8), adv(),
             pv(1,1,0), pv(1,1,1), pv(1,1,2), pv(1,1,3)]
    elif var == 1:
        L = [[ka(0, s) for s in range(6)],
             sm(0,0), ka(1,0), sm(0,1), ka(1,1), ka(1,2), sm(0,2), ka(1,3), sm(0,3), ka(1,4), ka(1,5), sm(0,4), kt(0,0,0), sm(0,5), kt(0,0,1), kt(0,0,2),
             sm(1,0), kt(0,1,0), kt(0,1,1), kt(0,1,2), E(0,0,8), V(0,0,4), sm(1,1), E(0,8,11), sm(1,2), E(0,11,14), sm(1,3), E(0,14,16), V(0,4,6), sm(1,4), V(0,6,8), kt(1,0,0), sm(1,5), kt(1,0,1), kt(1,0,2),
             pv(0,0,0), kt(1,1,0), pv(0,0,1), E(1,0,3), pv(0,0,2), E(1,3,6), pv(0,0,3), E(1,6,7),
             pv(0,1,0), E(1,7,8), V(1,0,4), pv(0,1,1), E(1,8,11), pv(0,1,2), E(1,11,14), pv(0,1,3), kt(1,1,1),
             pv(1,0,0), E(1,14,16), kt(1,1,2), pv(1,0,1), V(1,4,8), pv(1,0,2), adv(), pv(1,0,3),
             pv(1,1,0), pv(1,1,1), pv(1,1,2), pv(1,1,3)]
    return autowait(flat(L))

def cons1(extra_pre=(), extra_mid=()):
    E = lambda x, a, b: [ex(x, i) for i in range(a, b)]
    V = lambda x, a, b: [cv(x, i) for i in range(a, b)]
    L = [[ka(0, s) for s in range(6)],
         sm(0,0), kt(0,0,0), sm(0,1), kt(0,0,1), sm(0,2), kt(0,0,2), sm(0,3), kt(0,1,0), sm(0,4), kt(0,1,1), sm(0,5), kt(0,1,2), list(extra_pre),
         E(0,0,8), V(0,0,4), pv(0,0,0), E(0,8,11), pv(0,0,1), E(0,11,14), pv(0,0,2), E(0,14,16), V(0,4,6), pv(0,0,3), V(0,6,8), list(extra_mid),
         pv(0,1,0), pv(0,1,1), pv(0,1,2), pv(0,1,3)]
    return autowait(flat(L))

class P:
    RA0, RA1 = 5, 6
    WL = 16
    LT = 88
    X, F = 136, 184
    ID, OP, SM, SL, T = 208, 216, 220, 224, 228

def p_reads():
    return [f'ds_read_b128 {vr(P.F+4*s,4)}, v{P.RA1 if s&1 else P.RA0} offset:{64*(s>>1)}' for s in (0, 2, 4, 1, 3, 5)]

def p_head(g1=(), g2=(), hiprio=None, reads=True):
    L = []
    if hiprio is not None: L.append(f's_setprio {hiprio}')
    if reads: L += p_reads()
    L += list(g1)
    g2 = list(g2)
    for t in range(3):
        L.append(f's_waitcnt lgkmcnt({5-t})')
        L.append(f'{MF32} {vr(P.X+16*t,16)}, {vr(P.ID,4)}, {vr(P.F+8*t,4)}, {vr(P.LT+16*t,16)}')
        if g2:
            L += g2[:3] if t == 0 else g2[2+t:3+t]
    return L

def p_tail(var=0, lowprio=None):
    X, F, T, SM, SL = P.X, P.F, P.T, P.SM, P.SL
    Q0, Q1 = T, T+1
    L = []; a = L.append
    def identb(t): a(f'{MF32} {vr(X+16*t,16)}, {vr(P.ID+4,4)}, {vr(F+8*t+4,4)}, {vr(X+16*t,16)}')
    def summ(s): a(f'{MF16} {vr(SM,4)}, {vr(P.OP,4)}, {vr(F+4*s,4)}, {vr(SL,4) if s == 0 else vr(SM,4)}')
    sqi = [0]
    def sq(n):
        for _ in range(n):
            i = sqi[0]; sqi[0] += 1
            q = Q0 if i % 2 == 0 else Q1
            a(f'v_mul_f32 v{q}, v{X+i}, v{X+i}' if i < 2 else f'v_fmac_f32 v{q}, v{X+i}, v{X+i}')
    a('s_waitcnt lgkmcnt(0)')
    identb(0); identb(1); summ(0); sq(2); identb(2); sq(6)
    for s in range(1, 6):
        summ(s)
        if s == 5 and lowprio is not None: a(f's_setprio {lowprio}')
        sq(2)
    sq(48 - sqi[0])
    a(f'v_add_f32 v{Q0}, v{Q0}, v{Q1}')
    a(f'v_mul_f32 v{SM}, {f32(1/96)}, v{SM}')
    a(f'v_mov_b32 v{Q1}, v{Q0}')
    a(f'v_mul_f32 v{SM+1}, v{SM}, v{SM}')
    a(f'v_subrev_f32 v{SM+1}, {f32(1e-5)}, v{SM+1}')
    a(f'v_permlane32_swap_b32 v{Q0}, v{Q1}')
    a(f'v_add_f32 v{Q0}, v{Q0}, v{Q1}')
    a(f'v_fma_f32 v{Q0}, v{Q0}, s62, -v{SM+1}')
    a(f'v_max_f32 v{Q0}, {f32(1e-5)}, v{Q0}')
    a(f'v_rsq_f32 v{Q0}, v{Q0}')
    a('s_nop 0')
    a(f'v_mul_f32 v{Q1}, -v{SM}, v{Q0}')
    for s in range(6):
        for i in range(8): a(f'v_fma_f32 v{X+8*s+i}, v{X+8*s+i}, v{Q0}, v{Q1}')
        for i in range(4): a(f'v_cvt_pk_bf16_f32 v{F+4*s+i}, v{X+8*s+2*i}, v{X+8*s+2*i+1}')
        if var == 1:
            a(f'ds_write_b64 v{P.RA1 if s&1 else P.RA0}, {vr(F+4*s,2)} offset:{64*(s>>1)}')
            a(f'ds_write_b64 v{P.RA1 if s&1 else P.RA0}, {vr(F+4*s+2,2)} offset:{64*(s>>1)+8}')
        else:
            a(f'ds_write_b128 v{P.RA1 if s&1 else P.RA0}, {vr(F+4*s,4)} offset:{64*(s>>1)}')
    a(f'v_add_u32 v{P.RA0}, {4*6144}, v{P.RA0}')
    a(f'v_add_u32 v{P.RA1}, {4*6144}, v{P.RA1}')
    a('s_waitcnt lgkmcnt(0)')
    return L


def p_tail_pk(lowprio=None, sqpk=True, nmpk=True, wr_end=False):
    X, F, T, SM, SL = P.X, P.F, P.T, P.SM, P.SL
    Q0, Q1 = T, T+1
    L = []; a = L.append
    def identb(t): a(f'{MF32} {vr(X+16*t,16)}, {vr(P.ID+4,4)}, {vr(F+8*t+4,4)}, {vr(X+16*t,16)}')
    def summ(s): a(f'{MF16} {vr(SM,4)}, {vr(P.OP,4)}, {vr(F+4*s,4)}, {vr(SL,4) if s == 0 else vr(SM,4)}')
    a('s_waitcnt lgkmcnt(0)')
    if sqpk:
        identb(0); identb(1); identb(2)
        for s in range(6): summ(s)
        if lowprio is not None: a(f's_setprio {lowprio}')
        for i in range(24):
            acc = T + 2*(i % 2)
            x = vr(X+2*i, 2)
            a(f'v_pk_mul_f32 {vr(acc,2)}, {x}, {x}' if i < 2 else f'v_pk_fma_f32 {vr(acc,2)}, {x}, {x}, {vr(acc,2)}')
        a(f'v_pk_add_f32 {vr(T,2)}, {vr(T,2)}, {vr(T+2,2)}')
    else:
        sqi = [0]
        def sq(n):
            for _ in range(n):
                i = sqi[0]; sqi[0] += 1
                q = Q0 if i % 2 == 0 else Q1
                a(f'v_mul_f32 v{q}, v{X+i}, v{X+i}' if i < 2 else f'v_fmac_f32 v{q}, v{X+i}, v{X+i}')
        identb(0); identb(1); summ(0); sq(2); identb(2); sq(6)
        for s in range(1, 6):
            summ(s)
            if s == 5 and lowprio is not None: a(f's_setprio {lowprio}')
            sq(2)
        sq(48 - sqi[0])
    a(f'v_add_f32 v{Q0}, v{Q0}, v{Q1}')
    a(f'v_mul_f32 v{SM}, {f32(1/96)}, v{SM}')
    a(f'v_mov_b32 v{Q1}, v{Q0}')
    a(f'v_mul_f32 v{SM+1}, v{SM}, v{SM}')
    a(f'v_subrev_f32 v{SM+1}, {f32(1e-5)}, v{SM+1}')
    a(f'v_permlane32_swap_b32 v{Q0}, v{Q1}')
    a(f'v_add_f32 v{Q0}, v{Q0}, v{Q1}')
    a(f'v_fma_f32 v{Q0}, v{Q0}, s62, -v{SM+1}')
    a(f'v_max_f32 v{Q0}, {f32(1e-5)}, v{Q0}')
    a(f'v_rsq_f32 v{Q0}, v{Q0}')
    a('s_nop 0')
    a(f'v_mul_f32 v{Q1}, -v{SM}, v{Q0}')
    if nmpk:
        for i in range(24):
            x = vr(X+2*i, 2)
            a(f'v_pk_fma_f32 {x}, {x}, {vr(Q0,2)}, {vr(Q0,2)} op_sel:[0,0,1] op_sel_hi:[1,0,1]')
    for s in range(6):
        if not nmpk:
            for i in range(8): a(f'v_fma_f32 v{X+8*s+i}, v{X+8*s+i}, v{Q0}, v{Q1}')
        for i in range(4): a(f'v_cvt_pk_bf16_f32 v{F+4*s+i}, v{X+8*s+2*i}, v{X+8*s+2*i+1}')
        a(f'ds_write_b128 v{P.RA1 if s&1 else P.RA0}, {vr(F+4*s,4)} offset:{64*(s>>1)}')
    a(f'v_add_u32 v{P.RA0}, {4*6144}, v{P.RA0}')
    a(f'v_add_u32 v{P.RA1}, {4*6144}, v{P.RA1}')
    a('s_waitcnt lgkmcnt(0)')
    return L
```

```python
import sys, math, struct
from asmlib import Asm, autowait
import blocks as B
from blocks import vr, f32, MF32, MF16, flat

KNAME = 'standalone__detection_seg_mask2former__vision_kernel'

HI = 0
WM = 12 * 6144
QS = 15 * 6144
WQ = 16 * 6144
LO = 110592 + 6144
WREG = LO + 27648
SCR = WREG + 18432
TOT = SCR
PF = SCR + 512
TKT = SCR + 528
CNT = SCR + 544
XCH = 15 * 8192
WO = 0
FIN = 20480
CTX = 32768
LDS_BYTES = SCR + 1024
assert LDS_BYTES <= 163840 and LO <= XCH and XCH + 8192 <= WREG
B.C.TB = 6144
LREC = 16 * 256 * 256
MREC = LREC
REC_BYTES = MREC + 16 * 4 * 256 * 8
BOUND = 80.0
THR = BOUND * BOUND / 96 / (1 + 2 ** -8) ** 2
STAMP_OFF = 4 << 20
FSW = sum(((((-(px >> 2)) & 3) ^ ((px >> 1) & 1)) << (2 * px)) for px in range(16))

class Cfg:
    stamps = False
    cyc = False
    repf = 0
    cvar = 0
    g0pos = 1
    fine = 0
    wvpos = 2
    h0pos = 1
    cpp = 0
    cmain = 0
    pp = 0
    deep = 1
    h1early = 0
    pwait = 1
    ksleep = 0
    r1late = 1
    pm = 2
    pv = 0
    pl = 2
    cearly = 0
    trp = 0
    trc = 0
    touch = 3
    t0pre = 0
    wkpos = 0
    dry = 0
    tokpos = 14
    wvr = 2
    ktrace = 0
    pollnt = 0
    roll = 0
    dyn = 4
    c2 = None
    c3 = None
    c4 = None

SQ, SHI, SLO, SWL, SWQ, SWK, SWV, SWO, SWM, SOUT, SDBG, SWS = [f's[{4+2*i}:{5+2*i}]' for i in range(12)]
RHI, RLO, RWS = 's[28:31]', 's[32:35]', 's[36:39]'
SF = 's63'
STAMP0 = 64

def stamp(a, cfg, i, inner=False):
    if cfg.trp and not inner and i != 0: return
    if inner and not cfg.trp: return
    if cfg.stamps: a(f"{'s_memtime' if cfg.cyc else 's_memrealtime'} s[{STAMP0+2*i}:{STAMP0+2*i+1}]")

def stamp_flush(a, cfg, tmpv=100):
    if not cfg.stamps: return
    a('s_cmp_eq_u32 s98, 0')
    a('s_cbranch_scc1 L_nosl')
    a('s_sleep 100')
    a('L_nosl:')
    a('s_waitcnt lgkmcnt(0)')
    a('s_lshl_b32 s61, s2, 3\ns_add_u32 s61, s61, s3')
    a(f's_lshl_b32 s62, s61, 7')
    a(f's_add_u32 s62, s62, {STAMP_OFF}')
    for i in range(32): a(f'v_mov_b32 v{tmpv+i}, s{STAMP0+i}')
    a(f'v_mov_b32 v{tmpv+32}, 0')
    a('s_mov_b64 exec, 1')
    a('s_mov_b32 s56, s26\ns_mov_b32 s57, s27\ns_mov_b32 s58, 0x1000000\ns_mov_b32 s59, 0x20000')
    for i in range(8):
        a(f'buffer_store_dwordx4 {vr(tmpv+4*i,4)}, v{tmpv+32}, s[56:59], s62 offen offset:{16*i}')
    a('s_mov_b64 exec, -1')

def dma_swz(a, dst, k, tmp):
    a(f'v_add_u32 v{tmp}, {64*k if isinstance(k,int) else k}, v1')
    a(f'v_mul_u32_u24 v{tmp}, 0xaaab, v{tmp}')
    a(f'v_lshrrev_b32 v{tmp}, 18, v{tmp}')
    a(f'v_and_b32 v{tmp}, 0x1e, v{tmp}')
    a(f'v_bfe_u32 v{tmp}, {SF}, v{tmp}, 2')
    a(f'v_xor_b32 v{tmp}, v{tmp}, v1')
    a(f'v_lshlrev_b32 v{dst}, 4, v{tmp}')

def dma_part(a, ptr, ldsbase, voff, spart):
    lo = int(ptr[2:ptr.index(':')])
    a(f's_add_u32 m0, {spart}, {ldsbase}')
    a(f's_add_u32 s50, s{lo}, 4096')
    for k in range(4): a(f'global_load_lds_dwordx4 v{voff}, {ptr} offset:{1024*k}')
    a(f's_addc_u32 s51, s{lo+1}, 0')
    a(f's_add_u32 m0, {spart}, {ldsbase+4096}')
    a('s_mov_b32 exec_hi, 0')
    a(f'global_load_lds_dwordx4 v{voff}, s[50:51]')
    a('s_mov_b32 exec_hi, -1')

def dma_extra(a, ptr, ldsbase, voff, sbase):
    lo = int(ptr[2:ptr.index(':')])
    a(f's_add_u32 s50, s{lo}, 4096')
    a(f's_addc_u32 s51, s{lo+1}, 0')
    a(f's_add_u32 m0, {sbase}, {ldsbase+4096}')
    a('s_nop 0')
    a(f'global_load_lds_dwordx4 v{voff}, s[50:51]')

def dma_main(a, ptr, ldsbase, voff, sbase):
    a(f's_add_u32 m0, {sbase}, {ldsbase}')
    a('s_nop 0')
    for k in range(4): a(f'global_load_lds_dwordx4 v{voff}, {ptr} offset:{1024*k}')

def arrive(a, which, va, vd, rtn=False):
    a(f'v_mov_b32 v{va}, {CNT + 4*which}')
    a(f'v_mov_b32 v{vd}, 1')
    a('s_mov_b64 exec, 1')
    a(f'ds_add_rtn_u32 v{vd}, v{va}, v{vd}' if rtn else f'ds_add_u32 v{va}, v{vd}')
    a('s_mov_b64 exec, -1')

def await_cnt(a, which, tag, va, vd, n=4, setaddr=True):
    if setaddr: a(f'v_mov_b32 v{va}, {CNT + 4*which}')
    a(f'{tag}:')
    a(f'ds_read_b32 v{vd}, v{va}')
    a('s_waitcnt lgkmcnt(0)')
    a(f'v_readfirstlane_b32 s50, v{vd}')
    a(f's_cmp_lt_u32 s50, {n}')
    a(f's_cbranch_scc1 {tag}')

def lds_sync(a, which, tag, va, vd, n=4):
    arrive(a, which, va, vd, rtn=True)
    a('s_waitcnt lgkmcnt(0)')
    a(f'v_readfirstlane_b32 s50, v{vd}')
    a(f's_cmp_ge_u32 s50, {n-1}')
    a(f's_cbranch_scc1 {tag}_ok')
    await_cnt(a, which, tag + '_spin', va, vd, n, setaddr=False)
    a(f'{tag}_ok:')

def code_prefetch(a, tag, vt, tidoff, sp='s[44:45]', start=KNAME):
    lo = int(sp[2:sp.index(':')])
    a(f's_getpc_b64 {sp}')
    a(f'{tag}:')
    a(f's_add_u32 s{lo}, s{lo}, {start}-{tag}')
    a(f's_addc_u32 s{lo+1}, s{lo+1}, {"-1" if start == KNAME else "0"}')
    a(f'v_add_u32 v{vt}, {tidoff}, v0')
    a(f'v_lshlrev_b32 v{vt}, 7, v{vt}')
    a(f'v_min_u32 v{vt}, L_codeend-{start}-4, v{vt}')
    a(f'global_load_dword v{vt if vt == 0 else vt+1}, v{vt}, {sp}')

def nonce_slow(a, tag, back, v):
    a(f'{tag}:')
    a('s_memrealtime s[50:51]')
    a('s_waitcnt lgkmcnt(0)')
    a('s_or_b32 s47, s50, 1')
    a(f'v_mov_b32 v{v}, s47\nv_mov_b32 v{v+1}, 0\nv_mov_b32 v{v+2}, 0')
    a('s_mov_b64 exec, 1')
    a(f'global_atomic_cmpswap v{v}, v{v+2}, {vr(v,2)}, {SDBG} sc0 sc1')
    a('s_mov_b64 exec, -1')
    a('s_waitcnt vmcnt(0)')
    a(f'v_readfirstlane_b32 s50, v{v}')
    a('s_cmp_eq_u32 s50, 0')
    a('s_cselect_b32 s47, s47, s50')
    a(f's_branch {back}')

def gen_entry(a, cfg):
    a('s_cmp_ge_u32 s2, 256')
    a('s_cbranch_scc1 L_end')
    if cfg.stamps:
        for i in range(32): a(f's_mov_b32 s{STAMP0+i}, 0')
        a('s_mov_b32 s98, 1')
    stamp(a, cfg, 0)
    a('s_load_dwordx16 s[4:19], s[0:1], 0')
    a('s_load_dwordx8 s[20:27], s[0:1], 64')
    a('v_lshrrev_b32 v2, 6, v0')
    a('v_and_b32 v1, 63, v0')
    a('v_readfirstlane_b32 s3, v2')
    a(f's_mov_b32 {SF}, {FSW:#x}')
    a('s_mul_i32 s57, s2, 9')
    a(f's_mov_b32 s62, {f32(1/96)}')
    a('s_cmp_ge_u32 s3, 4')
    a('s_cbranch_scc1 L_cons')

def gen_producer(a, cfg):
    W0, W1, W2, RA0, RA1, RL0, RL1 = 2, 3, 4, 5, 6, 7, 8
    WL, LT, X, F = B.P.WL, B.P.LT, B.P.X, B.P.F
    ID, OP, SM, SL, T = B.P.ID, B.P.OP, B.P.SM, B.P.SL, B.P.T
    FLA, FLV = 14, 15
    U = 232
    sP = 's3'
    sH0, sH1, sH8, sLo0, sLo1 = 's40', 's41', 's42', 's43', 's44'
    sSlot, sLoP, RET = 's45', 's46', 's[48:49]'
    t0, t1, t2 = 's52', 's53', 's54'
    M1, O1, M2, O2 = 's55', 's56', 's58', 's59'
    for k, w in enumerate((W0, W1, W2)): dma_swz(a, w, k, U)
    a(f'v_lshlrev_b32 v{U+3}, 4, v1')
    for i in range(4): a(f'v_mov_b32 v{U+4+i}, 0')
    a(f'v_add_u32 v{U+8}, {SCR}, v{U+3}')
    a(f'ds_write_b128 v{U+8}, {vr(U+4,4)}')
    a(f's_add_u32 s58, s57, {sP}')
    a(f's_mul_i32 {sLo0}, s58, 3072')
    a(f's_mul_i32 {sLoP}, {sP}, 3072')
    a(f's_add_u32 {sLoP}, {sLoP}, {LO}')
    a('s_mov_b32 s34, 7077888\ns_mov_b32 s35, 0x20000')
    a(f's_add_u32 {sLo1}, {sLo0}, {4*3072}')
    def hi_off(dst, u):
        a(f's_mul_i32 {t0}, {u}, 43691')
        a(f's_lshr_b32 {t0}, {t0}, 19')
        a(f's_mul_i32 {t0}, {t0}, 73728')
        a(f's_mul_i32 {dst}, {u}, 6144')
        a(f's_add_u32 {dst}, {dst}, {t0}')
    a(f's_mul_i32 {sSlot}, {sP}, 6144')
    a('s_add_u32 s60, s57, 8')
    a('s_mul_i32 s61, s60, 3072')
    a(f's_cmp_lt_u32 {sP}, 2')
    a(f's_cselect_b32 s55, s61, {sLo0}')
    a(f's_cselect_b32 s56, {LO+8*3072}, {sLoP}')
    a('s_mov_b32 s30, 28311552\ns_mov_b32 s31, 0x20000')
    a(f's_min_u32 {t0}, {sP}, 2')
    a(f's_lshl_b32 s47, {sP}, 2')
    a(f's_add_u32 s47, s47, {t0}')
    a(f's_lshl_b32 s47, s47, 10')
    a(f'v_add_u32 v15, s47, v{U+3}')
    a(f's_cmp_ge_u32 {sP}, 2')
    a('s_waitcnt lgkmcnt(0)')
    a('s_cbranch_scc1 P_nox')
    dma_extra(a, SWL, WREG, 15, 's47')
    a('P_nox:')
    dma_main(a, SWL, WREG, 15, 's47')
    def half(srd, soff):
        return [f'buffer_load_dwordx4 v{w}, {srd}, {soff} offen offset:{1024*k} nt lds' for k, w in enumerate((W0, W1, W2))]
    a('s_mov_b32 s32, s8\ns_mov_b32 s33, s9')
    a(f's_mov_b32 m0, s56')
    a('s_mov_b32 s28, s6')
    for l in half(RLO, 's55'): a(l)
    a('s_mov_b32 s29, s7')
    def issue_h(soff, rnd, hf, add=0):
        a(f's_add_u32 m0, {sSlot}, {rnd*4*6144+3072*hf}')
        if add + hf:
            a(f's_add_u32 {t0}, {soff}, {add+3072*hf}'); src = t0
        else:
            a('s_nop 0'); src = soff
        for l in half(RHI, src): a(l)
    a('s_barrier')
    a('s_add_u32 s59, s58, 4')
    hi_off(sH0, 's58'); hi_off(sH1, 's59'); hi_off(sH8, 's60')
    a(f's_mul_i32 {t0}, {sP}, 73728')
    a(f's_add_u32 {sH8}, {sH8}, {t0}')
    a(f's_cmp_lt_u32 {sP}, 2')
    a(f's_cselect_b32 s47, {sH8}, {sH0}')
    a(f's_sub_u32 s56, s56, {sLoP}')
    stamp(a, cfg, 1)
    a(f'v_and_b32 v{U}, 31, v1')
    a(f'v_lshrrev_b32 v{U+1}, 5, v1')
    def rdaddr(d0, d1, px, base):
        a(f'v_lshlrev_b32 v{U+2}, 1, v{px}')
        a(f'v_and_b32 v{U+2}, 0x1e, v{U+2}')
        a(f'v_bfe_u32 v{U+2}, {SF}, v{U+2}, 2')
        a(f'v_xor_b32 v{U+2}, v{U+2}, v{U+1}')
        a(f'v_xor_b32 v{U+3}, 2, v{U+2}')
        a(f'v_mul_u32_u24 v{U+4}, 192, v{px}')
        a(f'v_add_u32 v{U+4}, {base}, v{U+4}')
        a(f'v_lshl_add_u32 v{d0}, v{U+2}, 4, v{U+4}')
        a(f'v_lshl_add_u32 v{d1}, v{U+3}, 4, v{U+4}')
    rdaddr(RA0, RA1, U, sSlot)
    a(f'v_lshrrev_b32 v{U+5}, 1, v{U}')
    rdaddr(RL0, RL1, U+5, sLoP)
    a(f'v_bfe_u32 v14, v1, 2, 2')
    a(f'v_lshl_add_u32 v14, v{U+1}, 3, v14')
    a(f'v_mul_u32_u24 v14, 192, v14')
    a(f'v_bfe_u32 v{U+8}, v1, 4, 1')
    a(f'v_lshl_add_u32 v14, v{U+8}, 5, v14')
    a(f'v_and_b32 v{U+3}, 1, v1')
    a(f'v_lshl_add_u32 v14, v{U+3}, 4, v14')
    a(f'v_bfe_u32 v{U+3}, v1, 1, 1')
    a(f'v_lshl_add_u32 v14, v{U+3}, 3, v14')
    a(f'v_add_u32 v14, {WREG}, v14')
    a(f'v_bfe_u32 v{U+2}, v1, 3, 1')
    a(f'v_and_b32 v{U+3}, 3, v1')
    a(f'v_lshl_add_u32 v{U+2}, v{U+2}, 2, v{U+3}')
    a(f'v_bfe_u32 v{U+3}, v1, 2, 1')
    a(f'v_cmp_eq_u32 vcc, v{U+3}, v{U+1}')
    a(f'v_and_b32 v{U+6}, 1, v{U+2}')
    a(f'v_lshlrev_b32 v{U+6}, 4, v{U+6}')
    a(f'v_mov_b32 v{U+4}, 0x3f80')
    a(f'v_lshlrev_b32 v{U+6}, v{U+6}, v{U+4}')
    a(f'v_cndmask_b32 v{U+6}, 0, v{U+6}, vcc')
    a(f'v_lshrrev_b32 v{U+2}, 1, v{U+2}')
    a(f'v_lshl_add_u32 v{U+2}, v{U+8}, 2, v{U+2}')
    a(f'v_cmp_eq_u32 s[58:59], v{U+3}, v{U+8}')
    a(f'v_mov_b32 v{U+7}, 0x3f803f80')
    for i in range(0, 8, 2):
        a(f'v_cmp_eq_u32 vcc, {i}, v{U+2}')
        a(f'v_cmp_eq_u32 s[60:61], {i+1}, v{U+2}')
        a(f'v_cndmask_b32 v{OP+i//2}, 0, v{U+7}, s[58:59]')
        a(f'v_cndmask_b32 v{ID+i}, 0, v{U+6}, vcc')
        a(f'v_cndmask_b32 v{ID+i+1}, 0, v{U+6}, s[60:61]')
    if cfg.dry:
        a('s_mov_b64 exec, 0')
        a(f's_cmp_eq_u32 {sP}, 1')
        a('s_cbranch_scc1 P_dry1')
        a(f's_cmp_eq_u32 {sP}, 2')
        a('s_cbranch_scc1 P_dry2')
        a(f's_cmp_eq_u32 {sP}, 3')
        a('s_cbranch_scc1 P_dryd')
        a(f's_call_b64 {RET}, P_h0')
        a('P_dryd:')
        a('s_mov_b64 exec, -1')
        stamp(a, cfg, 15)
    if cfg.tokpos == 0:
        await_cnt(a, 5, 'P_sy5', 12, 13, 4)
        if cfg.t0pre < 1: issue_h(sH0, 0, 0)
        issue_h(sH0, 0, 1)
        a(f's_waitcnt vmcnt(6)')
    else:
        a(f's_waitcnt vmcnt(0)')
    stamp(a, cfg, 10)
    arrive(a, 0, 12, 13)
    def lo_reads(r0, r1, off=0):
        return [f'ds_read_b128 {vr(X+4*s,4)}, v{r1 if s&1 else r0} offset:{off+64*(s>>1)}' for s in range(6)]
    a(f'v_add_u32 v{U}, s56, v{RL0}\nv_add_u32 v{U+1}, s56, v{RL1}')
    for l in lo_reads(U, U+1): a(l)
    await_cnt(a, 0, 'P_sy0', 12, 13, 4, setaddr=False)
    stamp(a, cfg, 2)
    def wl_reads(t, s):
        return [f'ds_read_b64_tr_b16 {vr(WL+(t*6+s)*4+2*sec,2)}, v14 offset:{s*3072+sec*768+t*64}' for sec in range(2)]
    def lat_mfma(t, s):
        c = '0' if s == 0 else vr(LT+16*t,16)
        return f'{MF32} {vr(LT+16*t,16)}, {vr(WL+(t*6+s)*4,4)}, {vr(X+4*s,4)}, {c}'
    def lateral(first):
        pend = []
        L = [wl_reads(0, s) for s in range(4)] if first else []
        seq = [(t, s) for t in range(3) for s in range(6)]
        for i, (t, s) in enumerate(seq):
            L.append(lat_mfma(t, s))
            if first and i + 4 < 18: L.append(wl_reads(*seq[i+4]))
            if s >= 1: L.append(pend[:4]); del pend[:4]
            if s == 5:
                pend += [f'v_mov_b32 v{SL}, v{LT}' if (t == 0 and j == 0) else f'v_add_f32 v{SL}, v{SL}, v{LT+16*t+j}' for j in range(16)]
        return flat(L), pend
    def sl_fin():
        return [f'v_mov_b32 v{SL+1}, v{SL}', 's_nop 1', f'v_permlane32_swap_b32 v{SL}, v{SL+1}', f'v_add_f32 v{SL}, v{SL}, v{SL+1}']
    L, pend = lateral(True)
    L = autowait(L, age=99)
    if cfg.tokpos:
        k = [i for i, l in enumerate(L) if l.startswith('v_mfma')][cfg.tokpos]
        for l in L[:k]: a(l)
        a('s_waitcnt lgkmcnt(0)')
        await_cnt(a, 5, 'P_sy5', 12, 13, 4)
        issue_h('s47', 0, 0)
        issue_h('s47', 0, 1)
        L = L[k:]
    for l in L: a(l)
    for l in pend + sl_fin(): a(l)
    arrive(a, 16, 12, 13)
    stamp(a, cfg, 3)
    a(f's_lshl_b32 {t0}, {sP}, 2')
    a(f's_add_u32 {t0}, {t0}, {PF}')
    a(f'v_mov_b32 v{FLA}, {t0}')
    a(f'v_mov_b32 v{FLV}, 0')
    a(f's_cmp_lt_u32 {sP}, 2')
    a('s_cbranch_scc0 P_scriptB')
    def script(tag, tiles, lats, los):
        n = len(tiles)
        q = ['h0', 'h1']
        nxt = [2]
        done = set()
        def guard(r):
            if r >= 3 and not done:
                done.add(r); await_cnt(a, 4, f'P_w{tag}{r}', 12, 13, 4)
        def param(M, O):
            h = nxt[0]; r, hf = divmod(h, 2)
            guard(r)
            a(f's_add_u32 {M}, {sSlot}, {r*4*6144+3072*hf}')
            a(f's_add_u32 {O}, {tiles[r][0]}, {tiles[r][1]+3072*hf}')
            nxt[0] += 1
            return f'h{h}'
        def now_h():
            h = nxt[0]; r, hf = divmod(h, 2)
            guard(r)
            issue_h(tiles[r][0], r, hf, tiles[r][1]); nxt[0] += 1
            q.append(f'h{h}')
        def now_lo(key):
            a(f's_add_u32 m0, {sLoP}, {0 if key == "lo0" else 4*3072}')
            a('s_nop 0')
            for l in half(RLO, sLo0 if key == 'lo0' else sLo1): a(l)
            q.append(key)
        for key in los.get(-1, []): now_lo(key)
        now_h()
        for r in range(n):
            ng = min(2, 2*n - nxt[0])
            if r == 1 and cfg.r1late: ng = 1
            new = []
            if ng >= 1: new.append(param(M1, O1))
            if ng >= 2: new.append(param(M2, O2))
            last = r == n - 1
            if lats[r] is not None:
                key = lats[r]
                if key in q:
                    i2 = q.index(key)
                    a(f's_waitcnt vmcnt({3*(len(q)-1-i2)})'); del q[:i2+1]
                off = 0 if key == 'lo0' else 4*3072
                a(f'v_add_u32 v12, {off}, v{RL0}\nv_add_u32 v13, {off}, v{RL1}')
                a(f's_call_b64 {RET}, P_lat')
            idx = max([q.index(x) for x in (f'h{2*r}', f'h{2*r+1}') if x in q] + [-1])
            if last and tag == 'a':
                a(f's_call_b64 {RET}, P_h0w'); break
            a(f's_waitcnt vmcnt({3*(len(q)-1-idx)})'); stamp(a, cfg, 4+r)
            del q[:idx+1]; q.extend(new)
            if last: break
            a(f's_call_b64 {RET}, P_h{ng}')
            if r == 1 and cfg.r1late: now_h()
            for key in los.get(r, []): now_lo(key)
            if tag == 'b' and r == cfg.wvr:
                await_cnt(a, 16, 'P_wl', 12, 13, 4)
                a(f's_sub_u32 {t0}, {sP}, 2\ns_mul_i32 {t0}, {t0}, 9216')
                a(f'v_lshlrev_b32 v12, 4, v1\nv_add_u32 v12, {t0}, v12')
                for k in range(3):
                    a(f's_add_u32 m0, {t0}, {WREG+3072*k}')
                    a(f's_add_u32 s50, s16, {3072*k}\ns_addc_u32 s51, s17, 0')
                    for j in range(3): a(f'global_load_lds_dwordx4 v12, s[50:51] offset:{1024*j}')
                    q.append('wv')
                if cfg.touch:
                    a(f's_mov_b32 s36, s26\ns_mov_b32 s37, s27\ns_mov_b32 s38, {REC_BYTES}\ns_mov_b32 s39, 0x20000')
                    a('v_and_b32 v12, 15, v1\nv_lshlrev_b32 v12, 16, v12')
                    if cfg.touch >= 2:
                        a('v_lshrrev_b32 v13, 4, v1\nv_lshl_add_u32 v12, v13, 6, v12')
                        a(f's_lshl_b32 {t0}, s2, 8')
                        a(f'buffer_load_dword v232, v12, {RWS}, {t0} offen' + (' sc1' if cfg.touch == 3 else ''))
                    else:
                        a(f'buffer_load_dword v232, v12, {RWS}, 0 offen')
                    a(f'v_mov_b32 v12, 0')
                    a(f'global_load_dword v234, v12, {SOUT}')
                    a(f'global_load_dword v233, v12, {SQ}')
                    q.append('touch')
    script('a', [None, (sH0, 0), (sH0, 73728), (sH1, 0), (sH1, 73728)], [None, 'lo0', None, 'lo1', None], {-1: ['lo0'], 1: ['lo1']})
    a('s_barrier')
    a('s_branch P_fin')
    a('P_scriptB:')
    script('b', [None, (sH0, 73728), (sH1, 0), (sH1, 73728)], [None, None, 'lo1', None], {0: ['lo1']})
    if cfg.wvr < 2: arrive(a, 6, 12, 13)
    a(f's_call_b64 {RET}, P_h0')
    if cfg.wvr == 2:
        a('s_waitcnt vmcnt(0)')
        arrive(a, 6, 12, 13)
    if cfg.trp: a('s_branch L_exit')
    if cfg.stamps: a('s_mov_b32 s98, 0')
    a('s_cmp_ge_u32 s2, 16')
    a('s_cbranch_scc1 L_exit')
    if cfg.stamps: a('s_mov_b32 s98, 1')
    await_cnt(a, 17, 'P_w17', 12, 13, 4)
    a(f's_sub_u32 {t0}, {sP}, 2\ns_mul_i32 {t0}, {t0}, 9216')
    a(f'v_lshlrev_b32 v12, 4, v1\nv_add_u32 v12, {t0}, v12')
    for k in range(3):
        a(f's_add_u32 m0, {t0}, {WO+3072*k}')
        a(f's_add_u32 s50, s18, {3072*k}\ns_addc_u32 s51, s19, 0')
        for j in range(3): a(f'global_load_lds_dwordx4 v12, s[50:51] offset:{1024*j}')
    a('s_barrier')
    a('P_fin:')
    if cfg.trp: a('s_branch L_exit')
    stamp(a, cfg, 9)
    a('s_cmp_ge_u32 s2, 16')
    a('s_cbranch_scc1 L_exit')
    a('s_setprio 0')
    a(f's_load_dword s47, {SDBG}, 0')
    a('s_waitcnt lgkmcnt(0)')
    a('s_cmp_eq_u32 s47, 0')
    a('s_cbranch_scc1 P_getnonce')
    a('P_getnonce_d:')
    a(f's_mov_b32 s36, s26\ns_mov_b32 s37, s27\ns_mov_b32 s38, {REC_BYTES}\ns_mov_b32 s39, 0x20000')
    await_cnt(a, 7, 'P_w7', 12, 13, 4)
    a('s_cmp_lt_u32 s50, 0x100')
    a('s_cbranch_scc1 L_comb')
    a('s_branch Z_comb')
    nonce_slow(a, 'P_getnonce', 'P_getnonce_d', 20)
    if cfg.dry:
        a('P_dry1:')
        a('s_call_b64 s[60:61], C_blk2')
        a('s_branch P_dryd')
        a('P_dry2:')
        a(f's_call_b64 {RET}, P_lat')
        a('s_branch P_dryd')
    a('P_lat:')
    if cfg.pp: a(f's_setprio {cfg.pl}')
    L, pend = lateral(False)
    for l in autowait(lo_reads(12, 13) + L, age=99): a(l)
    a('s_nop 9')
    for l in pend + sl_fin(): a(l)
    a(f's_setpc_b64 {RET}')
    hp = cfg.pm if cfg.pp else None
    g1 = [f's_mov_b32 m0, {M1}', 's_nop 0'] + half(RHI, O1)
    g2 = [f's_mov_b32 m0, {M2}', 's_nop 0'] + half(RHI, O2)
    def traced(lines, first, n):
        step = max(1, len(lines) // n); k = first
        for i, l in enumerate(lines):
            if i % step == 0 and k < first + n:
                stamp(a, cfg, k, True); k += 1
            a(l)
    a('P_h2:')
    traced(B.p_head(g1, g2, hp), 2, 3)
    a('s_branch P_s1')
    a('P_h1:')
    traced(B.p_head(g1, (), hp), 2, 3)
    a('s_branch P_s1')
    a('P_h0w:')
    a('s_waitcnt vmcnt(0)')
    stamp(a, cfg, 8)
    a('P_h0:')
    for l in B.p_head((), (), hp): a(l)
    a('P_s1:')
    tail = B.p_tail(0, cfg.pv if cfg.pp else None)
    traced(tail[:-1], 5, 9)
    a(f'v_add_u32 v{FLV}, 1, v{FLV}')
    a('s_waitcnt lgkmcnt(0)')
    a(f'ds_write_b32 v{FLA}, v{FLV}')
    a(f's_setpc_b64 {RET}')

def gen_consumer(a, cfg):
    sH = 's40'
    t0, t1 = 's41', 's42'
    RET = 's[60:61]'
    sR = 's43'
    LIN, REC, WVA, XA = 2, 3, 8, 9
    CA0, CA1, CT0, CT1 = B.C.CA0, B.C.CA1, B.C.CT0, B.C.CT1
    PART = 12
    AP, U, LA, OP = B.C.AP, B.C.U, B.C.LA, B.C.OP
    WV = B.C.WV
    QB, WK, ME, QT, QP, TA, QF = 96, 108, 132, 156, 164, 168, 16
    T = 240
    T2 = 248
    a('L_cons:')
    if cfg.cearly: a(f's_setprio {cfg.cpp}')
    a('s_memrealtime s[58:59]')
    code_prefetch(a, 'L_pc', 0, -256)
    a(f's_sub_u32 {sH}, s3, 4')
    a(f'v_lshlrev_b32 v{LIN}, 4, v1')
    a(f's_mul_i32 s48, {sH}, 4608')
    a(f'v_add_u32 v{PART}, s48, v{LIN}')
    a(f's_min_u32 {t0}, {sH}, 2')
    a(f's_lshl_b32 s46, {sH}, 2')
    a(f's_add_u32 s46, s46, {t0}')
    a(f's_lshl_b32 s46, s46, 10')
    a(f'v_add_u32 v13, s46, v{LIN}')
    a(f's_lshl_b32 s54, {t0}, 10')
    a(f'v_add_u32 v10, s54, v{LIN}')
    a('s_lshr_b32 s50, s2, 3\ns_and_b32 s50, s50, 31\ns_mul_i32 s50, s50, 640')
    a(f'v_lshlrev_b32 v14, 7, v1')
    a(f'v_add_u32 v14, s50, v14')
    a(f'v_min_u32 v14, 18428, v14')
    N, G, RHO, KAP = T+4, T+5, T+6, T+7
    a(f'v_and_b32 v{N}, 15, v1')
    a(f'v_lshrrev_b32 v{G}, 4, v1')
    a(f'v_bfe_u32 v{RHO}, v1, 2, 2')
    a(f'v_and_b32 v{KAP}, 3, v1')
    a(f'v_mul_u32_u24 v{T+8}, 192, v{N}')
    a(f'v_lshl_add_u32 v{T+8}, v{G}, 4, v{T+8}')
    a(f'v_lshl_add_u32 v{T+9}, v{RHO}, 3, v{KAP}')
    a(f'v_mul_u32_u24 v{T+9}, 48, v{T+9}')
    a(f'v_lshl_add_u32 v{T+9}, v{G}, 4, v{T+9}')
    a(f'v_add_u32 v{T+9}, s48, v{T+9}')
    for i in range(24): a(f'v_mov_b32 v{WK+i}, 0')
    a('s_waitcnt lgkmcnt(0)')
    a(f's_cmp_eq_u32 {sH}, 0\ns_cselect_b64 s[50:51], {SWV}, {SWQ}')
    a(f's_cmp_eq_u32 {sH}, 2\ns_cselect_b64 s[50:51], {SWK}, s[50:51]')
    a(f's_cmp_eq_u32 {sH}, 3\ns_cselect_b64 s[50:51], {SWM}, s[50:51]')
    a('s_mov_b64 exec, 31')
    a(f'global_load_dword v15, v14, s[50:51]')
    a('s_mov_b64 exec, -1')
    a('s_barrier')
    a(f's_lshl_b32 s50, s2, 2\ns_xor_b32 s50, s50, {sH}\ns_cmp_eq_u32 s50, 3')
    a('s_cbranch_scc1 C_mknonce')
    a('C_mknonce_d:')
    a(f's_cmp_ge_u32 {sH}, 2')
    a('s_cbranch_scc1 C_nox')
    dma_extra(a, SWM, WM, 13, 's46')
    dma_extra(a, SWQ, WQ, 13, 's46')
    a('C_nox:')
    a(f's_cmp_ge_u32 {sH}, 3')
    a('s_cbranch_scc1 C_noy')
    a(f's_add_u32 m0, s54, {QS}')
    a('s_nop 0')
    a(f'global_load_lds_dwordx4 v10, {SQ}')
    a('C_noy:')
    dma_main(a, SWM, WM, 13, 's46')
    dma_main(a, SWQ, WQ, 13, 's46')
    if cfg.wkpos == 1: arrive(a, 5, 16, 17)
    a('s_mov_b32 exec_hi, 0xffff')
    for s in range(3):
        for tt in range(2):
            a(f'global_load_dwordx4 {vr(WK+(2*s+tt)*4,4)}, v{T+9}, {SWK} offset:{1536*s+192*tt}')
    a('s_mov_b32 exec_hi, -1')
    if cfg.wkpos == 0: arrive(a, 5, 16, 17)
    stamp(a, cfg, 1)
    a(f's_mov_b32 s36, s26\ns_mov_b32 s37, s27\ns_mov_b32 s38, {REC_BYTES}\ns_mov_b32 s39, 0x20000')
    a(f's_and_b32 s49, {sH}, 1\ns_lshl_b32 s55, s49, 1\ns_lshr_b32 s56, {sH}, 1\ns_add_u32 s55, s55, s56')
    a(f's_lshl_b32 {t0}, s2, 2\ns_add_u32 {t0}, {t0}, s55\ns_lshl_b32 {t0}, {t0}, 6')
    a(f'v_lshlrev_b32 v{REC}, 16, v{N}')
    a(f'v_lshl_add_u32 v{REC}, v{G}, 4, v{REC}')
    a(f'v_add_u32 v{REC}, {t0}, v{REC}')
    a('s_mul_i32 s52, s56, 12288')
    a(f'v_and_b32 v{T+10}, 31, v1')
    a(f'v_lshrrev_b32 v{T+11}, 5, v1')
    a(f'v_lshlrev_b32 v{T+12}, 1, v{N}')
    a(f'v_bfe_u32 v{T+12}, {SF}, v{T+12}, 2')
    a(f'v_xor_b32 v{T+12}, v{T+12}, v{T+11}')
    a(f'v_mul_u32_u24 v{T+13}, 192, v{T+10}')
    a(f'v_add_u32 v{T+13}, s52, v{T+13}')
    a(f'v_lshl_add_u32 v{CA0}, v{T+12}, 4, v{T+13}')
    a(f'v_xor_b32 v{T+12}, 2, v{T+12}')
    a(f'v_lshl_add_u32 v{CA1}, v{T+12}, 4, v{T+13}')
    a(f'v_lshl_add_u32 v{T+12}, v{T+11}, 2, v{RHO}')
    a(f'v_bfe_u32 v{T+13}, v1, 4, 1')
    a(f'v_lshrrev_b32 v{T+14}, 1, v{KAP}')
    a(f'v_lshl_add_u32 v{T+14}, v{T+13}, 1, v{T+14}')
    a(f'v_and_b32 v{T+15}, 1, v{KAP}')
    a(f'v_lshlrev_b32 v{T+15}, 3, v{T+15}')
    a(f'v_add_u32 v{T+15}, s52, v{T+15}')
    for sec, dst in ((0, CT0), (1, CT1)):
        if sec: a(f'v_add_u32 v{T+12}, 8, v{T+12}')
        a(f'v_lshlrev_b32 v{dst}, 1, v{T+12}')
        a(f'v_bfe_u32 v{dst}, {SF}, v{dst}, 2')
        a(f'v_xor_b32 v{dst}, v{dst}, v{T+14}')
        a(f'v_lshl_add_u32 v{dst}, v{dst}, 4, v{T+15}')
        a(f'v_mul_u32_u24 v10, 192, v{T+12}')
        a(f'v_add_u32 v{dst}, v{dst}, v10')
    a(f'v_lshl_add_u32 v{WVA}, v{T+11}, 2, v{RHO}')
    a(f'v_lshl_add_u32 v{WVA}, v{T+13}, 4, v{WVA}')
    a(f'v_mul_u32_u24 v{WVA}, 48, v{WVA}')
    a(f'v_lshl_add_u32 v{WVA}, v{KAP}, 3, v{WVA}')
    a(f'v_add_u32 v{WVA}, {WREG}, v{WVA}')
    a(f's_xor_b32 {t0}, s55, 1')
    a(f's_mul_i32 s53, {t0}, 4608')
    a(f's_mul_i32 s46, s55, 4608')
    a(f'v_mov_b32 v10, s46')
    a(f'v_mov_b32 v11, s53')
    a(f'v_cmp_eq_u32 vcc, 0, v{T+13}')
    a(f'v_mul_u32_u24 v{XA}, 192, v{N}')
    a(f'v_lshl_add_u32 v{XA}, v{T+11}, 4, v{XA}')
    a(f'v_cndmask_b32 v10, v11, v10, vcc')
    a(f'v_add_u32 v{XA}, v{XA}, v10')
    a(f'v_add_u32 v{XA}, {WQ}, v{XA}')
    a(f'v_lshl_add_u32 v{T+12}, v{G}, 3, v{RHO}')
    a(f'v_mul_u32_u24 v10, 48, v{T+12}')
    a(f'v_min_u32 v11, 2, v{KAP}')
    a(f'v_lshl_add_u32 v10, v11, 4, v10')
    a(f's_add_u32 {t0}, s48, {WQ}')
    a(f'v_add_u32 v10, {t0}, v10')
    a(f'v_add_u32 v13, {t0}, v{T+8}')
    a(f'v_add_u32 v{T+8}, {QS}, v{T+8}')
    a(f'v_mul_u32_u24 v11, 192, v{T+12}')
    a(f'v_lshl_add_u32 v11, v{KAP}, 4, v11')
    a(f'v_add_u32 v11, {WM}, v11')
    a(f'v_and_b32 v{T+12}, 1, v1')
    a(f'v_cmp_eq_u32 vcc, v{T+12}, v{T+13}')
    a(f'v_mov_b32 v{T+12}, 0x3f803f80')
    for i in range(52):
        a(f'v_mov_b32 v{U+i}, 0')
        if i == 4:
            for k in range(4): a(f'v_cndmask_b32 v{OP+k}, 0, v{T+12}, vcc')
    a('s_waitcnt vmcnt(10)')
    arrive(a, 1, 14, 15)
    if cfg.cpp: a(f's_setprio {cfg.cpp}')
    await_cnt(a, 1, 'C_sy1', 14, 15, 4, setaddr=False)
    stamp(a, cfg, 2)
    def me_rd(sp, st): return [f'ds_read_b64_tr_b16 {vr(TA+(sp*6+st)*4+2*sec,2)}, v11 offset:{sp*6144+sec*768+(st>>1)*64+(st&1)*8}' for sec in range(2)]
    seq = [(sp, st) for sp in range(3) for st in range(6)]
    L = [f'ds_read_b128 {vr(QB+4*s,4)}, v{T+8} offset:{64*s}' for s in range(3)]
    L += [me_rd(*seq[i]) for i in range(5)]
    for i, (sp, st) in enumerate(seq):
        c = '0' if sp == 0 else vr(ME+4*st,4)
        L.append(f'{MF16} {vr(ME+4*st,4)}, {vr(TA+(sp*6+st)*4,4)}, {vr(QB+4*sp,4)}, {c}')
        if i + 5 < 18: L.append(me_rd(*seq[i+5]))
    for l in autowait(flat(L), age=99): a(l)
    a('s_waitcnt vmcnt(6)')
    lds_sync(a, 2, 'C_sy2', 14, 15)
    stamp(a, cfg, 15)
    L = []
    for s in range(3):
        for tt in range(2):
            for sec in range(2):
                L.append(f'ds_read_b64_tr_b16 {vr(QF+(tt*3+s)*4+2*sec,2)}, v10 offset:{s*1536+sec*192+tt*8}')
    for s in range(3):
        for tt in range(2):
            c = '0' if s == 0 else vr(QT+4*tt,4)
            L.append(f'{MF16} {vr(QT+4*tt,4)}, {vr(QF+(tt*3+s)*4,4)}, {vr(QB+4*s,4)}, {c}')
    for l in autowait(L, age=99): a(l)
    for i in range(8): a(f'v_add_f32 v{QT+i}, v{QT+i}, v{QT+i}')
    for i in range(4): a(f'v_cvt_pk_bf16_f32 v{QP+i}, v{QT+2*i}, v{QT+2*i+1}')
    a('s_waitcnt vmcnt(0)')
    for st in range(6):
        a(f'{MF16} {vr(ME+4*st,4)}, {vr(WK+4*st,4)}, {vr(QP,4)}, {vr(ME+4*st,4)}')
    sc = 96 ** -0.5 * math.log2(math.e)
    a(f's_mov_b32 {t0}, {f32(sc)}')
    for s in range(3):
        for i in range(8): a(f'v_mul_f32 v{ME+8*s+i}, {t0}, v{ME+8*s+i}')
        for i in range(4): a(f'v_cvt_pk_bf16_f32 v{ME+8*s+i}, v{ME+8*s+2*i}, v{ME+8*s+2*i+1}')
        a(f'ds_write_b128 v13, {vr(ME+8*s,4)} offset:{64*s}')
        a(f'{MF16} {vr(QT,4)}, {vr(ME+8*s,4)}, {vr(ME+8*s,4)}, {"0" if s == 0 else vr(QT,4)}')
    a(f's_mov_b32 {t0}, {f32(THR)}')
    a(f'v_mov_b32 v14, {CNT + 4*3}')
    a(f'v_max3_f32 v{QT}, v{QT}, v{QT+1}, v{QT+2}')
    a(f'v_max_f32 v{QT}, v{QT}, v{QT+3}')
    a(f'v_cmp_nge_f32 vcc, {t0}, v{QT}')
    a('s_cmp_eq_u64 vcc, 0')
    a('s_cselect_b32 s51, 1, 0x101')
    a('v_mov_b32 v15, s51')
    a('s_waitcnt lgkmcnt(0)')
    a('s_mov_b64 exec, 1')
    a('ds_add_rtn_u32 v15, v14, v15')
    a('s_mov_b64 exec, -1')
    a('s_waitcnt lgkmcnt(0)')
    a('v_readfirstlane_b32 s50, v15')
    a('s_add_u32 s50, s50, s51')
    a('s_cmp_eq_u32 s50, 4')
    a('s_cbranch_scc1 C_sy3_ok')
    await_cnt(a, 3, 'C_sy3', 14, 15, 4, setaddr=False)
    a('s_cmp_eq_u32 s50, 4')
    a('s_cbranch_scc0 Z_sy3')
    a('C_sy3_ok:')
    stamp(a, cfg, 3)
    cons_main(a, cfg, False)
    a('C_mknonce:')
    a('s_or_b32 s50, s58, 1')
    a('v_mov_b32 v20, s50\nv_mov_b32 v21, 0\nv_mov_b32 v22, 0')
    a('s_mov_b64 exec, 1')
    a(f'global_atomic_cmpswap v22, v[20:21], {SDBG} sc1')
    a('s_mov_b64 exec, -1')
    a('s_branch C_mknonce_d')
    nonce_slow(a, 'C_getnonce', 'C_getnonce_d', T2)
    a('C_wait:')
    a('s_sleep 1')
    a('C_blk:')
    stamp(a, cfg, 1, True)
    a(f'ds_read_b64 {vr(T2+4,2)}, v10')
    a('s_waitcnt lgkmcnt(0)')
    a(f'v_min_u32 v{T2+4}, v{T2+4}, v{T2+5}')
    a(f'v_readfirstlane_b32 s50, v{T2+4}')
    a(f's_cmp_lt_u32 s50, {sR}')
    a('s_cbranch_scc1 C_wait')
    a('C_blk2:')
    lines = B.cons2(cfg.cvar)
    step = len(lines) // 11; k = 2
    for i, l in enumerate(lines):
        if i % step == 0 and k < 13:
            stamp(a, cfg, k, True); k += 1
        a(l)
    stamp(a, cfg, 13, True)
    if cfg.trp:
        a(f's_cmp_eq_u32 {sR}, {cfg.trc}')
        a('s_cbranch_scc1 L_exit')
    a(f's_add_u32 {sR}, {sR}, 1')
    a(f's_setpc_b64 {RET}')


def slow_rescale(NEW):
    MX = 160; U, LA = B.C.U, B.C.LA
    L = [f'v_max_f32 v{NEW}, v{NEW}, v{MX}',
         f'v_sub_f32 v{MX+4}, v{MX}, v{NEW}',
         f'v_exp_f32 v{MX+4}, v{MX+4}',
         f'v_mov_b32 v{MX}, v{NEW}', 's_nop 1',
         f'v_mov_b32 v{MX+5}, v{MX+4}', f'v_mov_b32 v{MX+6}, v{MX+4}', 's_nop 1',
         f'v_permlane16_swap_b32 v{MX+5}, v{MX+6}', 's_nop 1']
    L += [f'v_mul_f32 v{U+i}, v{U+i}, v{MX+4}' for i in range(48)]
    L += [f'v_mul_f32 v{LA+i}, v{LA+i}, v{MX+5+(i&1)}' for i in range(4)]
    return L

def slow_tile(off):
    MX = 160; S = B.C.S[0]
    tb = B.C.TB
    B.C.TB = off
    sv = (B.C.KA, B.C.KT, B.C.S, B.C.P)
    B.C.KA = [sv[0][0]] * 2; B.C.KT = [sv[1][0]] * 2; B.C.S = [S] * 2; B.C.P = [S] * 2
    L = [B.ka(1, s) for s in range(6)] + ['s_waitcnt lgkmcnt(0)']
    L += [B.kt(1, ks, t) for ks in range(2) for t in range(3)]
    L += [B.sm(1, s) for s in range(6)] + ['s_nop 15', 's_nop 15']
    L += [f'v_max3_f32 v{MX+1}, v{S}, v{S+1}, v{S+2}']
    L += [f'v_max3_f32 v{MX+1}, v{MX+1}, v{S+3+2*i}, v{S+4+2*i}' for i in range(6)]
    L += [f'v_max_f32 v{MX+1}, v{MX+1}, v{S+15}', f'v_mov_b32 v{MX+2}, v{MX+1}', 's_nop 1',
          f'v_permlane32_swap_b32 v{MX+1}, v{MX+2}', 's_nop 1', f'v_max_f32 v{MX+1}, v{MX+1}, v{MX+2}']
    L += slow_rescale(MX+1)
    L += [f'v_sub_f32 v{S+i}, v{S+i}, v{MX}' for i in range(16)]
    L += [B.ex(1, i) for i in range(16)] + ['s_nop 1'] + [B.cv(1, i) for i in range(8)]
    L += ['s_waitcnt lgkmcnt(0)', 's_nop 1']
    L += [B.pv(1, ks, t) for ks in range(2) for t in range(4)] + ['s_nop 15', 's_nop 15']
    B.C.TB = tb
    B.C.KA, B.C.KT, B.C.S, B.C.P = sv
    return flat(L)

def cons_main(a, cfg, slow):
    sH = 's40'
    t0, t1 = 's41', 's42'
    RET = 's[60:61]'
    sR = 's43'
    LIN, REC, WVA, XA = 2, 3, 8, 9
    CA0, CA1, CT0, CT1 = B.C.CA0, B.C.CA1, B.C.CT0, B.C.CT1
    AP, U, LA, OP = B.C.AP, B.C.U, B.C.LA, B.C.OP
    WV = B.C.WV
    T2 = 248
    Z = 'Z' if slow else 'C'
    MX = 160
    if slow:
        cfg = Cfg(); cfg.stamps = False
        a('Z_sy3:')
        a('ds_read_b32 v15, v14')
        a('s_waitcnt lgkmcnt(0)')
        a('v_readfirstlane_b32 s50, v15')
        a('s_and_b32 s50, s50, 0xff')
        a('s_cmp_lt_u32 s50, 4')
        a('s_cbranch_scc1 Z_sy3')
        a(f'v_mov_b32 v{MX}, {f32(-3e38)}')
    for s in range(6): a(f'ds_read_b128 {vr(AP+4*s,4)}, v{XA} offset:{32*s}')
    a(f's_lshl_b32 {t0}, s56, 3\ns_add_u32 {t0}, {t0}, {PF}')
    a(f'v_mov_b32 v10, {t0}')
    a(f's_mov_b32 {sR}, 1')
    a('s_waitcnt lgkmcnt(0)')
    arrive(a, 4, 14, 15)
    if cfg.cpp: a(f's_setprio {cfg.cmain}')
    a(f's_call_b64 {RET}, {Z}_blk')
    stamp(a, cfg, 5)
    if cfg.c2 is not None: a(f's_setprio {cfg.c2}')
    a(f's_call_b64 {RET}, {Z}_blk')
    stamp(a, cfg, 6)
    arrive(a, 17, 14, 15)
    a(f's_load_dword s47, {SDBG}, 0')
    if cfg.c3 is not None: a(f's_setprio {cfg.c3}')
    a(f's_call_b64 {RET}, {Z}_blk')
    stamp(a, cfg, 7)
    if cfg.c4 is not None: a(f's_setprio {cfg.c4}')
    await_cnt(a, 6, f'{Z}_sy6', 14, 15, 2)
    a('s_cmp_eq_u32 s47, 0')
    a(f's_cbranch_scc1 {Z}_getnonce')
    a(f'{Z}_getnonce_d:')
    a(f'v_add_u32 v14, s46, v{WVA}')
    a(f'v_add_u32 v15, s53, v{WVA}')
    L = []
    for hh in range(2):
        for tt in range(2):
            for t in range(3):
                for sec in range(2):
                    L.append(f'ds_read_b64_tr_b16 {vr(WV+(hh*6+tt*3+t)*4+2*sec,2)}, v{14+hh} offset:{t*1536+sec*384+tt*32}')
    for l in autowait(L): a(l)
    a(f's_lshl_b32 {t0}, {sH}, 11')
    a(f's_add_u32 {t0}, {t0}, {XCH}')
    a(f'v_add_u32 v9, {t0}, v{LIN}')
    a(f'v_xor_b32 v11, 0x1000, v9')
    a(f's_lshl_b32 {t0}, {sH}, 2')
    a(f's_add_u32 {t0}, {t0}, {CNT+32}')
    a(f'v_mov_b32 v8, {t0}')
    a(f'v_xor_b32 v14, 8, v8')
    a(f'v_mov_b32 v15, 1')
    if slow:
        a(f's_lshl_b32 {t0}, s55, 8\ns_add_u32 {t0}, {t0}, s2\ns_lshl_b32 {t0}, {t0}, 3\ns_add_u32 {t0}, {t0}, {MREC}')
        a('v_and_b32 v12, 15, v1')
        a('v_lshlrev_b32 v12, 13, v12')
        a(f'v_add_u32 v12, {t0}, v12')
    mk_tag(a, T2+1)
    a('s_mov_b32 s44, 0\ns_mov_b32 s45, -1')
    a('s_cmp_eq_u32 s56, 0')
    a(f's_cbranch_scc1 {Z}_r3s')
    a(f's_call_b64 {RET}, {Z}_blk')
    a(f's_mov_b32 s51, {(13 - 18) * 6144}')
    for r in (CA0, CA1, CT0, CT1): a(f'v_add_u32 v{r}, s51, v{r}')
    a(f'{Z}_r3s:')
    a(f's_lshl_b32 {t0}, s56, 2\ns_add_u32 {t0}, {t0}, {PF}')
    a(f'v_mov_b32 v10, {t0}')
    a(f'{Z}_r3w:')
    a(f'ds_read_b32 v{T2+4}, v10')
    a('s_waitcnt lgkmcnt(0)')
    a(f'v_readfirstlane_b32 s50, v{T2+4}')
    a('s_cmp_lt_u32 s50, 4')
    a(f's_cbranch_scc1 {Z}_r3w')
    a(f's_branch {Z}_one')
    a(f'{Z}_r4:')
    for r in (CA0, CA1, CT0, CT1): a(f'v_add_u32 v{r}, 24576, v{r}')
    stamp(a, cfg, 4)
    a('s_setprio 3')
    a('s_cmp_eq_u32 s2, s2')
    a('s_barrier')
    stamp(a, cfg, 8)
    a(f'{Z}_one:')
    for l in (slow_tile(0) if slow else B.cons1()): a(l)
    a(f's_cbranch_scc0 {Z}_r4')
    stamp(a, cfg, 9)
    if slow:
        a(f's_lshl_b32 {t0}, {sH}, 7')
        a(f's_add_u32 {t0}, {t0}, {TOT}')
        a(f'v_and_b32 v{MX+1}, 31, v1')
        a(f'v_lshlrev_b32 v{MX+1}, 2, v{MX+1}')
        a(f'v_add_u32 v{MX+1}, {t0}, v{MX+1}')
        a(f'ds_write_b32 v{MX+1}, v{MX}')
        a('s_waitcnt lgkmcnt(0)')
        lds_sync(a, 18, 'Z_sy18', MX+2, MX+3)
        a(f'v_xor_b32 v{MX+1}, {256+64}, v{MX+1}')
        a(f'ds_read_b32 v{MX+2}, v{MX+1}')
        a('s_waitcnt lgkmcnt(0)')
        for l in slow_rescale(MX+2): a(l)
        a(f'v_mov_b32 v{MX+1}, s47')
        a('s_mov_b32 exec_lo, 0\ns_mov_b32 exec_hi, 0xffff')
        a(f'buffer_store_dwordx2 {vr(MX,2)}, v12, {RWS}, 0 offen sc1')
        a('s_mov_b64 exec, -1')
    UP, CX = 96, 120
    def cvtU(t): return [f'v_cvt_pk_bf16_f32 v{UP+8*t+i}, v{U+16*t+2*i}, v{U+16*t+2*i+1}' for i in range(8)]
    def swp(t): return [f'v_permlane16_swap_b32 v{UP+8*t+i}, v{UP+8*t+4+i}' for i in range(4)]
    def pj(hh, tt, t):
        c = '0' if t == 0 else vr(CX+8*hh+4*tt,4)
        return f'{MF16} {vr(CX+8*hh+4*tt,4)}, {vr(WV+(hh*6+tt*3+t)*4,4)}, {vr(UP+8*t+4*hh,4)}, {c}'
    c0, c1, c2 = cvtU(0), cvtU(1), cvtU(2)
    EN = T2
    E = [c0, c1[:2], swp(0), c1[2:4],
         pj(1,0,0), c1[4:6], pj(1,1,0), c1[6:8], pj(0,0,0), c2[:2], pj(0,1,0), swp(1), c2[2:4],
         pj(1,0,1), c2[4:6], pj(1,1,1), c2[6:8], pj(0,0,1), swp(2), pj(0,1,1),
         pj(1,0,2), f'v_cndmask_b32 v{EN}, v{LA}, v{LA+1}, s[44:45]',
         pj(1,1,2), f'v_and_b32 v{EN+2}, s46, v{EN}',
         pj(0,0,2), f'v_sub_f32 v{EN}, v{EN}, v{EN+2}',
         pj(0,1,2), f'v_cndmask_b32 v{EN}, v{EN+2}, v{EN}, s[52:53]',
         f'v_bfi_b32 v{EN}, s46, v{EN}, v{T2+1}',
         f'ds_write_b128 v11, {vr(CX+8,4)}',
         f'v_cndmask_b32 v{CX+12}, v{CX+12}, v{EN}, s[44:45]',
         f'ds_write_b128 v11, {vr(CX+12,4)} offset:1024',
         'ds_write_b32 v14, v15']
    for l in flat(E): a(l)
    a(f'{Z}_xw:')
    a('ds_read_b32 v15, v8')
    a(f'ds_read_b128 {vr(CX+8,4)}, v9')
    a(f'ds_read_b128 {vr(CX+12,4)}, v9 offset:1024')
    a('s_waitcnt lgkmcnt(2)')
    a('v_cmp_eq_u32 vcc, 0, v15')
    a(f's_cbranch_vccnz {Z}_xw')
    a('s_waitcnt lgkmcnt(1)')
    for i in range(4): a(f'v_add_f32 v{CX+i}, v{CX+i}, v{CX+8+i}')
    a(f'v_cvt_pk_bf16_f32 v{CX}, v{CX}, v{CX+1}')
    a(f'v_cvt_pk_bf16_f32 v{CX+1}, v{CX+2}, v{CX+3}')
    a('s_waitcnt lgkmcnt(0)')
    for i in range(4, 8): a(f'v_add_f32 v{CX+i}, v{CX+i}, v{CX+8+i}')
    a(f'v_cvt_pk_bf16_f32 v{CX+2}, v{CX+4}, v{CX+5}')
    a(f'v_cvt_pk_bf16_f32 v{CX+4}, v{CX+6}, v{CX+7}')
    a(f'v_cndmask_b32 v{CX+3}, v{EN}, v{CX+12}, s[44:45]')
    a(f'v_permlane32_swap_b32 v{CX+2}, v{CX+4}')
    a(f'buffer_store_dwordx4 {vr(CX,4)}, v{REC}, {RWS}, 0 offen sc1')
    stamp(a, cfg, 10)
    a('s_cmp_ge_u32 s2, 16')
    a('s_cbranch_scc1 L_exit')
    if slow:
        a(f'v_mov_b32 v14, {CNT + 4*7}')
        a(f'v_mov_b32 v15, 0x101')
        a('s_mov_b64 exec, 1')
        a('ds_add_u32 v14, v15')
        a('s_mov_b64 exec, -1')
        a('s_setprio 0')
        a('s_branch Z_comb')
        nonce_slow(a, 'Z_getnonce', 'Z_getnonce_d', T2)
        a('Z_wait:')
        a('s_sleep 1')
        a('Z_blk:')
        a(f'ds_read_b64 {vr(T2+4,2)}, v10')
        a('s_waitcnt lgkmcnt(0)')
        a(f'v_min_u32 v{T2+4}, v{T2+4}, v{T2+5}')
        a(f'v_readfirstlane_b32 s50, v{T2+4}')
        a(f's_cmp_lt_u32 s50, {sR}')
        a('s_cbranch_scc1 Z_wait')
        for l in slow_tile(0) + slow_tile(6144) + B.adv(): a(l)
        a(f's_add_u32 {sR}, {sR}, 1')
        a(f's_setpc_b64 {RET}')
        return
    arrive(a, 7, 14, 15)
    a('s_setprio 0')
    a('s_branch L_comb')

def mk_tag(a, v):
    a('s_and_b32 s50, s47, 0xbfff')
    a('s_lshr_b32 s51, s47, 16')
    a('s_and_b32 s51, s51, 0xbfff')
    a('s_mov_b32 s52, 0xffff0000\ns_mov_b32 s53, 0xffff0000\ns_mov_b32 s46, 0xffff0000')
    a(f'v_mov_b32 v{v}, s50')
    a(f'v_mov_b32 v{v+1}, s51')
    a(f'v_cndmask_b32 v{v}, v{v}, v{v+1}, s[52:53]')

def comb_tag(a, v):
    a('s_and_b32 s50, s47, 0xbfff')
    a('s_lshr_b32 s51, s47, 16')
    a('s_and_b32 s51, s51, 0xbfff')
    a('s_mov_b32 s48, 0xaaaaaaaa\ns_mov_b32 s49, 0xaaaaaaaa')
    a(f'v_mov_b32 v{v}, s50')
    a(f'v_mov_b32 v{v+1}, s51')
    a(f'v_cndmask_b32 v{v}, v{v}, v{v+1}, s[48:49]')

def comb_q(a):
    a('v_and_b32 v6, 15, v1')
    a('s_lshl_b32 s43, s3, 4')
    a('v_add_u32 v6, s43, v6')
    a('v_min_u32 v6, 95, v6')
    a('s_mul_i32 s44, s2, 96')
    a('v_add_u32 v6, s44, v6')
    a('v_lshlrev_b32 v6, 1, v6')
    a(f'global_load_ushort v7, v6, {SQ}')

def comb_setup(a, withq=True):
    if withq: comb_q(a)
    a('v_lshl_add_u32 v29, v16, 3, v28')
    a('v_mul_u32_u24 v29, 192, v29')
    a('v_lshl_add_u32 v29, v19, 3, v29')
    a('s_lshl_b32 s45, s3, 5')
    a(f'v_add_u32 v14, s45, v29')
    a('v_and_b32 v28, 15, v1')
    a('v_mul_u32_u24 v15, 384, v16')
    a('v_lshl_add_u32 v15, v28, 4, v15')
    a('s_mul_i32 s45, s3, 1536')
    a(f's_add_u32 s45, s45, {FIN}')
    a(f'v_add_u32 v15, s45, v15')
    a('v_and_b32 v29, 7, v1')
    a('v_lshlrev_b32 v8, 2, v29')
    a('s_mov_b32 s45, 0x75316240')
    a('v_bfe_u32 v8, s45, v8, 4')
    a('v_add_u32 v8, 48, v8')
    a('v_cmp_lt_u32 vcc, 7, v28')
    a('v_lshlrev_b32 v17, 6, v16')
    a('v_cndmask_b32 v8, v29, v8, vcc')
    a('v_lshl_add_u32 v8, v8, 3, v17')
    a(f'v_add_u32 v8, {FIN}, v8')
    a('s_lshl_b32 s45, s3, 8')
    a(f's_add_u32 s45, s45, {CTX}')
    a('v_lshlrev_b32 v9, 2, v28')
    a('v_mad_u32_u24 v9, v16, 48, v9')
    a('v_mov_b32 v29, 192')
    a('v_cmp_lt_u32 vcc, 11, v28')
    a('v_lshlrev_b32 v10, 4, v16')
    a('v_add_u32 v10, s45, v10')
    a('v_cndmask_b32 v9, v9, v29, vcc')
    a('v_add_u32 v9, s45, v9')

def gen_slow_combine(a):
    D, ACC, T = 32, 20, 28
    MA, MW = 64, 96
    a('Z_comb:')
    a('v_lshlrev_b32 v2, 4, v1')
    a('s_lshl_b32 s40, s2, 16')
    a('s_lshl_b32 s41, s3, 13')
    a('s_add_u32 s40, s40, s41')
    a('s_add_u32 s41, s40, 4096')
    a('v_lshrrev_b32 v16, 4, v1')
    a('v_bfe_u32 v28, v1, 2, 2')
    a('v_and_b32 v19, 3, v1')
    a('v_lshlrev_b32 v3, 11, v28')
    a('v_lshl_add_u32 v4, v16, 3, v3')
    a('v_lshl_add_u32 v3, v16, 9, v3')
    a('v_lshl_add_u32 v3, v19, 7, v3')
    a(f's_lshl_b32 s42, s2, 13\ns_add_u32 s42, s42, {MREC}')
    a(f's_lshl_b32 s52, s3, 8\ns_add_u32 s52, s52, s42')
    comb_setup(a)
    comb_tag(a, 12)
    for i in range(8): a(f'v_mov_b32 v{ACC+i}, 0')
    a('s_branch Z_poll')
    a('Z_again:')
    a('s_sleep 4')
    a('Z_poll:')
    for i in range(8): a(f'buffer_load_dwordx4 {vr(D+4*i,4)}, v2, {RWS}, {"s40" if i<4 else "s41"} offen offset:{1024*(i%4)} sc1')
    for i in range(8): a(f'buffer_load_dwordx4 {vr(MA+4*i,4)}, v3, {RWS}, s42 offen offset:{16*i} sc1')
    for i in range(8): a(f'buffer_load_dwordx2 {vr(MW+2*i,2)}, v4, {RWS}, s52 offen offset:{32*i} sc1')
    a('s_waitcnt vmcnt(0)')
    a(f'v_mov_b32 v{T}, 0')
    for i in range(8):
        a(f'v_xor_b32 v{T+1}, v12, v{D+4*i+3}')
        a(f'v_and_b32 v{T+1}, 0xffff, v{T+1}')
        a(f'v_or_b32 v{T}, v{T}, v{T+1}')
    for t in [MA+2*i+1 for i in range(16)] + [MW+2*i+1 for i in range(8)]:
        a(f'v_xor_b32 v{T+1}, s47, v{t}')
        a(f'v_or_b32 v{T}, v{T}, v{T+1}')
    a(f'v_cmp_ne_u32 vcc, 0, v{T}')
    a('s_nop 4')
    a('s_cbranch_vccnz Z_again')
    M = MA
    for i in range(1, 16): a(f'v_max_f32 v{M}, v{M}, v{MA+2*i}')
    a('s_nop 1')
    a(f'v_mov_b32_dpp v{M+1}, v{M} quad_perm:[1,0,3,2] row_mask:0xf bank_mask:0xf')
    a(f'v_max_f32 v{M}, v{M}, v{M+1}')
    a('s_nop 1')
    a(f'v_mov_b32_dpp v{M+1}, v{M} quad_perm:[2,3,0,1] row_mask:0xf bank_mask:0xf')
    a(f'v_max_f32 v{M}, v{M}, v{M+1}')
    def allrows(r, op):
        for sw in ('v_permlane16_swap_b32', 'v_permlane32_swap_b32'):
            a(f'v_mov_b32 v{T}, v{r}')
            a('s_nop 1')
            a(f'{sw} v{r}, v{T}')
            a('s_nop 1')
            a(f'{op} v{r}, v{r}, v{T}')
    allrows(M, 'v_max_f32')
    a('s_mov_b32 s46, 0xffff0000')
    for i in range(8):
        a(f'v_sub_f32 v{MW+2*i}, v{MW+2*i}, v{M}')
        a(f'v_exp_f32 v{MW+2*i}, v{MW+2*i}')
        a('s_nop 1')
        for j in range(4):
            a(f'v_lshlrev_b32 v{T}, 16, v{D+4*i+j}')
            a(f'v_and_b32 v{T+1}, s46, v{D+4*i+j}')
            if j < 3: a(f'v_fmac_f32 v{ACC+2*j}, v{T}, v{MW+2*i}')
            a(f'v_fmac_f32 v{ACC+2*j+1}, v{T+1}, v{MW+2*i}')
    for j in range(8): allrows(ACC+j, 'v_add_f32')
    a('v_cmp_eq_u32 vcc, 0, v16')
    a('s_nop 1')
    for j in range(4): a(f'v_cndmask_b32 v{ACC+j}, v{ACC+4+j}, v{ACC+j}, vcc')
    a('s_nop 1')
    a('s_branch K_red')

def gen_combine(a, cfg):
    D, ACC, T = 128, 20, 28
    NS = 9
    a('L_comb:')
    if cfg.trp: a('s_branch L_exit')
    a('v_lshlrev_b32 v2, 4, v1')
    a('s_lshl_b32 s40, s2, 16')
    a('s_lshl_b32 s41, s3, 13')
    a('s_add_u32 s40, s40, s41')
    a('s_add_u32 s41, s40, 4096')
    def load(i):
        a(f'buffer_load_dwordx4 {vr(D+4*i,4)}, v2, {RWS}, {"s40" if i<4 else "s41"} offen offset:{1024*(i%4)} sc1' + (' nt' if cfg.pollnt else ''))
    PM = lambda i: f's[{6+2*i}:{7+2*i}]'
    SEL = 24
    stamp(a, cfg, 11)
    if cfg.ktrace:
        for j in list(range(1, 8)) + [12]: a(f's_mov_b64 s[{STAMP0+2*j}:{STAMP0+2*j+1}], 0')
    if cfg.roll or cfg.dyn: comb_q(a)
    for i in range(8): load(i)
    a('v_lshrrev_b32 v16, 4, v1')
    a('v_bfe_u32 v28, v1, 2, 2')
    a('v_and_b32 v19, 3, v1')
    comb_setup(a, not (cfg.roll or cfg.dyn))
    comb_tag(a, 12)
    a('v_and_b32 v29, 1, v1')
    a('v_lshlrev_b32 v29, 4, v29')
    a('v_mov_b32 v17, 0x3f80')
    a('v_lshlrev_b32 v29, v29, v17')
    a('v_lshrrev_b32 v28, 1, v28')
    for r in range(4):
        a(f'v_cmp_eq_u32 vcc, {r}, v28')
        a(f'v_cndmask_b32 v{SEL+r}, 0, v29, vcc')
    if cfg.dyn:
        K = cfg.dyn
        J = lambda k: f's{6+k}'
        for i in range(4): a(f'v_mov_b32 v{ACC+i}, 0')
        a('s_mov_b32 s42, 0xff')
        a('s_mov_b32 s43, 7')
        def pick(k):
            a('s_lshl_b32 s44, -2, s43')
            a('s_and_b32 s44, s44, s42')
            a('s_cselect_b32 s44, s44, s42')
            a('s_ff1_i32_b32 s43, s44')
            a('s_lshl_b32 s44, s43, 10')
            a('s_add_u32 s44, s44, s40')
            a(f's_mov_b32 {J(k)}, s43')
            a(f'buffer_load_dwordx4 {vr(D+4*k,4)}, v2, {RWS}, s44 offen sc1')
        for i in range(8):
            a(f's_waitcnt vmcnt({7-i+min(i,K)})')
            if i == 0: stamp(a, cfg, 12)
            a(f'v_cmp_ne_u16 vcc, v12, v{D+4*i+3}')
            a(f's_cbranch_vccnz K_f{i}')
            a(f'{MF16} {vr(ACC,4)}, {vr(SEL,4)}, {vr(D+4*i,4)}, {vr(ACC,4)}')
            a(f's_bitset0_b32 s42, {i}')
            if i == 7:
                a('s_cmp_eq_u32 s42, 0')
                a('s_cbranch_scc1 K_red0')
            a(f'K_f{i}:')
            if i < K: pick(i)
        a('K_chk:')
        for k in range(K):
            a(f's_waitcnt vmcnt({K-1})')
            if cfg.ktrace and k == 0:
                a('s_waitcnt lgkmcnt(0)')
                for j in range(1, 7): a(f's_mov_b64 s[{STAMP0+2*j}:{STAMP0+2*j+1}], s[{STAMP0+2*j+2}:{STAMP0+2*j+3}]')
                a(f's_mov_b64 s[{STAMP0+14}:{STAMP0+15}], s[{STAMP0+24}:{STAMP0+25}]')
                stamp(a, cfg, 12)
            a(f'v_cmp_ne_u16 vcc, v12, v{D+4*k+3}')
            a(f's_cbranch_vccnz K_n{k}')
            a(f's_bitcmp0_b32 s42, {J(k)}')
            a(f's_cbranch_scc1 K_n{k}')
            a(f'{MF16} {vr(ACC,4)}, {vr(SEL,4)}, {vr(D+4*k,4)}, {vr(ACC,4)}')
            a(f's_bitset0_b32 s42, {J(k)}')
            a('s_cmp_eq_u32 s42, 0')
            a('s_cbranch_scc1 K_red0')
            a(f'K_n{k}:')
            pick(k)
        a('s_branch K_chk')
        a('K_red0:')
        a('s_nop 4')
    elif cfg.roll:
        for i in range(4): a(f'v_mov_b32 v{ACC+i}, 0')
        a('s_mov_b32 s42, 0xff')
        a('K_chk:')
        for i in range(8):
            a('s_waitcnt vmcnt(7)')
            if cfg.ktrace and i == 0:
                a('s_waitcnt lgkmcnt(0)')
                for j in range(1, 7): a(f's_mov_b64 s[{STAMP0+2*j}:{STAMP0+2*j+1}], s[{STAMP0+2*j+2}:{STAMP0+2*j+3}]')
                a(f's_mov_b64 s[{STAMP0+14}:{STAMP0+15}], s[{STAMP0+24}:{STAMP0+25}]')
            if i == 0: stamp(a, cfg, 12)
            a(f'v_cmp_ne_u16 vcc, v12, v{D+4*i+3}')
            a('s_cmp_lg_u64 vcc, 0')
            a('s_cselect_b64 exec, -1, 0')
            load(i)
            a('s_mov_b64 exec, -1')
            a(f's_cbranch_scc1 K_n{i}')
            a(f's_bitcmp0_b32 s42, {i}')
            a(f's_cbranch_scc1 K_n{i}')
            a(f'{MF16} {vr(ACC,4)}, {vr(SEL,4)}, {vr(D+4*i,4)}, {vr(ACC,4)}')
            a(f's_bitset0_b32 s42, {i}')
            a('s_cmp_eq_u32 s42, 0')
            a('s_cbranch_scc1 K_red0')
            a(f'K_n{i}:')
        a('s_branch K_chk')
        a('K_red0:')
        a('s_nop 4')
    else:
        a('K_chk:')
        a('s_waitcnt vmcnt(0)')
        if cfg.ktrace:
            a('s_waitcnt lgkmcnt(0)')
            for j in range(1, 7): a(f's_mov_b64 s[{STAMP0+2*j}:{STAMP0+2*j+1}], s[{STAMP0+2*j+2}:{STAMP0+2*j+3}]')
            a(f's_mov_b64 s[{STAMP0+14}:{STAMP0+15}], s[{STAMP0+24}:{STAMP0+25}]')
        stamp(a, cfg, 12)
        for i in range(8):
            a(f'v_cmp_ne_u16 {PM(i)}, v12, v{D+4*i+3}')
            a(f'{MF16} {vr(ACC,4)}, {vr(SEL,4)}, {vr(D+4*i,4)}, {"0" if i == 0 else vr(ACC,4)}')
            if i == 2: a(f's_or_b64 s[50:51], {PM(0)}, {PM(1)}')
            if i > 2: a(f's_or_b64 s[50:51], s[50:51], {PM(i-1)}')
        a(f's_or_b64 s[50:51], s[50:51], {PM(7)}')
        a('s_cbranch_scc1 K_retry')
    a('K_red:')
    stamp(a, cfg, 13)
    a(f'ds_write_b128 v15, {vr(ACC,4)}')
    Bq, C = 40, 56
    a('s_waitcnt lgkmcnt(0)')
    a('s_barrier')
    if cfg.fine: stamp(a, cfg, 15)
    a('s_cmp_ge_u32 s3, 6')
    a('s_cbranch_scc1 L_exit6')
    for k in range(4): a(f'ds_read2st64_b64 {vr(C+4*k,4)}, v8 offset0:{6*k} offset1:{6*k+3}')
    for s in range(3):
        for sec in range(2):
            a(f'ds_read_b64_tr_b16 {vr(Bq+4*s+2*sec,2)}, v14 offset:{s*6144+sec*768}')
    a('v_lshlrev_b32 v7, 16, v7')
    a('s_waitcnt lgkmcnt(8)')
    for i in range(4): a(f'v_add_f32 v{C+i}, v{C+i}, v{C+4+i}')
    a('s_waitcnt lgkmcnt(6)')
    for i in range(4): a(f'v_add_f32 v{C+8+i}, v{C+8+i}, v{C+12+i}')
    for i in (0, 2, 1, 3): a(f'v_add_f32 v{C+i}, v{C+i}, v{C+8+i}')
    a(f'v_add_f32 v{C}, v{C}, v{C+2}')
    a(f'v_add_f32 v{C+1}, v{C+1}, v{C+3}')
    a(f'v_add_f32_dpp v{C+2}, v{C+1}, v{C+1} quad_perm:[1,0,3,2] row_mask:0xf bank_mask:0xf')
    a(f'v_add_f32_dpp v{C+2}, v{C+2}, v{C+2} quad_perm:[2,3,0,1] row_mask:0xf bank_mask:0xf')
    a(f'v_mov_b32_dpp v{C+2}, v{C+2} row_newbcast:12 row_mask:0xf bank_mask:0xf')
    a(f'v_rcp_f32 v{C+2}, v{C+2}')
    a(f'v_mul_f32 v{C}, v{C}, v{C+2}')
    a(f'v_mul_f32 v{C+1}, v{C+1}, v{C+2}')
    a(f'v_cvt_pk_bf16_f32 v{C}, v{C}, v{C+1}')
    a(f'ds_write_b32 v9, v{C}')
    for s in range(3): a(f'ds_read_b128 {vr(C+4+4*s,4)}, v10 offset:{64*s}')
    for s in range(3):
        c = '0' if s == 0 else 'v[88:91]'
        a(f's_waitcnt lgkmcnt({2-s})')
        a(f'{MF16} v[88:91], {vr(C+4+4*s,4)}, {vr(Bq+4*s,4)}, {c}')
    a('v_cvt_pk_bf16_f32 v88, v88, v88')
    a('v_and_b32 v88, 0xffff0000, v88')
    a('v_add_f32 v88, v88, v7')
    a('v_cvt_pk_bf16_f32 v88, v88, v88')
    a('s_mov_b64 exec, 0xffff')
    a('s_waitcnt vmcnt(0)')
    a(f'global_store_short v6, v88, {SOUT}')
    a('s_mov_b64 exec, -1')
    stamp(a, cfg, 14)
    a('L_exit:')
    stamp_flush(a, cfg)
    a('L_end:')
    a('s_endpgm')
    a('L_exit6:')
    a('s_waitcnt vmcnt(0)')
    a('s_branch L_exit')
    if cfg.roll or cfg.dyn: return
    a('K_retry:')
    if cfg.ksleep: a(f's_sleep {cfg.ksleep}')
    for i in range(8):
        a(f's_cmp_lg_u64 {PM(i)}, 0')
        a('s_cselect_b64 exec, -1, 0')
        load(i)
    a('s_mov_b64 exec, -1')
    a('s_branch K_chk')

def build(cfg):
    a = Asm()
    a.raw(f'; @launch grid=(256,1,1) block=(512,1,1) lds={LDS_BYTES}')
    a.raw('.amdgcn_target "amdgcn-amd-amdhsa--gfx950"')
    a.raw('.text')
    a.raw(f'.globl {KNAME}'); a.raw('.p2align 8'); a.raw(f'.type {KNAME},@function'); a.raw(f'{KNAME}:')
    gen_entry(a, cfg)
    gen_producer(a, cfg)
    gen_consumer(a, cfg)
    gen_combine(a, cfg)
    a.raw('L_codeend:')
    cons_main(a, cfg, True)
    gen_slow_combine(a)
    txt = a.finish(verbose=True)
    txt = txt.replace('    ; @launch', '; @launch')
    txt += f'''.section .rodata,"a"
.p2align 6
.amdhsa_kernel {KNAME}
  .amdhsa_next_free_vgpr 256
  .amdhsa_next_free_sgpr 100
  .amdhsa_accum_offset 256
  .amdhsa_group_segment_fixed_size 0
  .amdhsa_kernarg_size 96
  .amdhsa_user_sgpr_count 2
  .amdhsa_user_sgpr_kernarg_segment_ptr 1
  .amdhsa_system_sgpr_workgroup_id_x 1
.end_amdhsa_kernel
'''
    return txt

if __name__ == '__main__':
    cfg = Cfg()
    out = sys.argv[1]
    for o in sys.argv[2:]:
        if '=' in o:
            k, v = o.split('='); setattr(cfg, k, int(v))
        else: setattr(cfg, o, True)
    open(out, 'w').write(build(cfg))
```

```python
import sys, math, struct
from asmlib import Asm, autowait
import blocks as B
from blocks import vr, f32, MF32, MF16, flat

KNAME = 'standalone__detection_seg_mask2former__vision_kernel'

HI = 0
WM = 12 * 6144
QS = 15 * 6144
WQ = 16 * 6144
LO = 110592 + 6144
WREG = LO + 27648
SCR = WREG + 18432
TOT = SCR
PF = SCR + 512
TKT = SCR + 528
CNT = SCR + 544
XCH = 15 * 8192
WO = 0
FIN = 20480
CTX = 32768
LDS_BYTES = SCR + 1024
assert LDS_BYTES <= 163840 and LO <= XCH and XCH + 8192 <= WREG
B.C.TB = 6144
LREC = 16 * 256 * 256
MREC = LREC
REC_BYTES = MREC + 16 * 4 * 256 * 8
BOUND = 80.0
THR = BOUND * BOUND / 96 / (1 + 2 ** -8) ** 2
STAMP_OFF = 4 << 20
FSW = sum(((((-(px >> 2)) & 3) ^ ((px >> 1) & 1)) << (2 * px)) for px in range(16))

class Cfg:
    stamps = False
    cyc = False
    repf = 0
    cvar = 0
    g0pos = 1
    fine = 0
    wvpos = 2
    h0pos = 1
    cpp = 0
    cmain = 0
    pp = 0
    deep = 1
    h1early = 0
    pwait = 1
    ksleep = 0
    r1late = 1
    pm = 2
    pv = 0
    pl = 2
    cearly = 0
    trp = 0
    trc = 0
    touch = 3
    t0pre = 0
    wkpos = 0
    dry = 0
    tokpos = 14
    wvr = 2
    ktrace = 0
    pollnt = 0
    roll = 0
    dyn = 4
    diag = 0
    c2 = None
    c3 = None
    c4 = None

SQ, SHI, SLO, SWL, SWQ, SWK, SWV, SWO, SWM, SOUT, SDBG, SWS = [f's[{4+2*i}:{5+2*i}]' for i in range(12)]
RHI, RLO, RWS = 's[28:31]', 's[32:35]', 's[36:39]'
SF = 's63'
STAMP0 = 64

def stamp(a, cfg, i, inner=False):
    if cfg.trp and not inner and i != 0: return
    if inner and not cfg.trp: return
    if cfg.stamps: a(f"{'s_memtime' if cfg.cyc else 's_memrealtime'} s[{STAMP0+2*i}:{STAMP0+2*i+1}]")

def stamp_flush(a, cfg, tmpv=100):
    if not cfg.stamps: return
    a('s_cmp_eq_u32 s98, 0')
    a('s_cbranch_scc1 L_nosl')
    a('s_sleep 100')
    a('L_nosl:')
    a('s_waitcnt lgkmcnt(0)')
    a('s_lshl_b32 s61, s2, 3\ns_add_u32 s61, s61, s3')
    a(f's_lshl_b32 s62, s61, 7')
    a(f's_add_u32 s62, s62, {STAMP_OFF}')
    for i in range(32): a(f'v_mov_b32 v{tmpv+i}, s{STAMP0+i}')
    a(f'v_mov_b32 v{tmpv+32}, 0')
    a('s_mov_b64 exec, 1')
    a('s_mov_b32 s56, s26\ns_mov_b32 s57, s27\ns_mov_b32 s58, 0x1000000\ns_mov_b32 s59, 0x20000')
    for i in range(8):
        a(f'buffer_store_dwordx4 {vr(tmpv+4*i,4)}, v{tmpv+32}, s[56:59], s62 offen offset:{16*i}')
    a('s_mov_b64 exec, -1')

def dma_swz(a, dst, k, tmp):
    a(f'v_add_u32 v{tmp}, {64*k if isinstance(k,int) else k}, v1')
    a(f'v_mul_u32_u24 v{tmp}, 0xaaab, v{tmp}')
    a(f'v_lshrrev_b32 v{tmp}, 18, v{tmp}')
    a(f'v_and_b32 v{tmp}, 0x1e, v{tmp}')
    a(f'v_bfe_u32 v{tmp}, {SF}, v{tmp}, 2')
    a(f'v_xor_b32 v{tmp}, v{tmp}, v1')
    a(f'v_lshlrev_b32 v{dst}, 4, v{tmp}')

def dma_part(a, ptr, ldsbase, voff, spart):
    lo = int(ptr[2:ptr.index(':')])
    a(f's_add_u32 m0, {spart}, {ldsbase}')
    a(f's_add_u32 s50, s{lo}, 4096')
    for k in range(4): a(f'global_load_lds_dwordx4 v{voff}, {ptr} offset:{1024*k}')
    a(f's_addc_u32 s51, s{lo+1}, 0')
    a(f's_add_u32 m0, {spart}, {ldsbase+4096}')
    a('s_mov_b32 exec_hi, 0')
    a(f'global_load_lds_dwordx4 v{voff}, s[50:51]')
    a('s_mov_b32 exec_hi, -1')

def dma_extra(a, ptr, ldsbase, voff, sbase):
    lo = int(ptr[2:ptr.index(':')])
    a(f's_add_u32 s50, s{lo}, 4096')
    a(f's_addc_u32 s51, s{lo+1}, 0')
    a(f's_add_u32 m0, {sbase}, {ldsbase+4096}')
    a('s_nop 0')
    a(f'global_load_lds_dwordx4 v{voff}, s[50:51]')

def dma_main(a, ptr, ldsbase, voff, sbase):
    a(f's_add_u32 m0, {sbase}, {ldsbase}')
    a('s_nop 0')
    for k in range(4): a(f'global_load_lds_dwordx4 v{voff}, {ptr} offset:{1024*k}')

def arrive(a, which, va, vd, rtn=False):
    a(f'v_mov_b32 v{va}, {CNT + 4*which}')
    a(f'v_mov_b32 v{vd}, 1')
    a('s_mov_b64 exec, 1')
    a(f'ds_add_rtn_u32 v{vd}, v{va}, v{vd}' if rtn else f'ds_add_u32 v{va}, v{vd}')
    a('s_mov_b64 exec, -1')

def await_cnt(a, which, tag, va, vd, n=4, setaddr=True):
    if setaddr: a(f'v_mov_b32 v{va}, {CNT + 4*which}')
    a(f'{tag}:')
    a(f'ds_read_b32 v{vd}, v{va}')
    a('s_waitcnt lgkmcnt(0)')
    a(f'v_readfirstlane_b32 s50, v{vd}')
    a(f's_cmp_lt_u32 s50, {n}')
    a(f's_cbranch_scc1 {tag}')

def lds_sync(a, which, tag, va, vd, n=4):
    arrive(a, which, va, vd, rtn=True)
    a('s_waitcnt lgkmcnt(0)')
    a(f'v_readfirstlane_b32 s50, v{vd}')
    a(f's_cmp_ge_u32 s50, {n-1}')
    a(f's_cbranch_scc1 {tag}_ok')
    await_cnt(a, which, tag + '_spin', va, vd, n, setaddr=False)
    a(f'{tag}_ok:')

def code_prefetch(a, tag, vt, tidoff, sp='s[44:45]', start=KNAME):
    lo = int(sp[2:sp.index(':')])
    a(f's_getpc_b64 {sp}')
    a(f'{tag}:')
    a(f's_add_u32 s{lo}, s{lo}, {start}-{tag}')
    a(f's_addc_u32 s{lo+1}, s{lo+1}, {"-1" if start == KNAME else "0"}')
    a(f'v_add_u32 v{vt}, {tidoff}, v0')
    a(f'v_lshlrev_b32 v{vt}, 7, v{vt}')
    a(f'v_min_u32 v{vt}, L_codeend-{start}-4, v{vt}')
    a(f'global_load_dword v{vt if vt == 0 else vt+1}, v{vt}, {sp}')

def nonce_slow(a, tag, back, v):
    a(f'{tag}:')
    a('s_memrealtime s[50:51]')
    a('s_waitcnt lgkmcnt(0)')
    a('s_or_b32 s47, s50, 1')
    a(f'v_mov_b32 v{v}, s47\nv_mov_b32 v{v+1}, 0\nv_mov_b32 v{v+2}, 0')
    a('s_mov_b64 exec, 1')
    a(f'global_atomic_cmpswap v{v}, v{v+2}, {vr(v,2)}, {SDBG} sc0 sc1')
    a('s_mov_b64 exec, -1')
    a('s_waitcnt vmcnt(0)')
    a(f'v_readfirstlane_b32 s50, v{v}')
    a('s_cmp_eq_u32 s50, 0')
    a('s_cselect_b32 s47, s47, s50')
    a(f's_branch {back}')

def gen_entry(a, cfg):
    a('s_cmp_ge_u32 s2, 256')
    a('s_cbranch_scc1 L_end')
    if cfg.stamps:
        for i in range(32): a(f's_mov_b32 s{STAMP0+i}, 0')
        a('s_mov_b32 s98, 1')
    stamp(a, cfg, 0)
    if cfg.diag: a('s_memrealtime s[96:97]')
    a('s_load_dwordx16 s[4:19], s[0:1], 0')
    a('s_load_dwordx8 s[20:27], s[0:1], 64')
    a('v_lshrrev_b32 v2, 6, v0')
    a('v_and_b32 v1, 63, v0')
    a('v_readfirstlane_b32 s3, v2')
    a(f's_mov_b32 {SF}, {FSW:#x}')
    a('s_mul_i32 s57, s2, 9')
    a(f's_mov_b32 s62, {f32(1/96)}')
    a('s_cmp_ge_u32 s3, 4')
    a('s_cbranch_scc1 L_cons')

def gen_producer(a, cfg):
    W0, W1, W2, RA0, RA1, RL0, RL1 = 2, 3, 4, 5, 6, 7, 8
    WL, LT, X, F = B.P.WL, B.P.LT, B.P.X, B.P.F
    ID, OP, SM, SL, T = B.P.ID, B.P.OP, B.P.SM, B.P.SL, B.P.T
    FLA, FLV = 14, 15
    U = 232
    sP = 's3'
    sH0, sH1, sH8, sLo0, sLo1 = 's40', 's41', 's42', 's43', 's44'
    sSlot, sLoP, RET = 's45', 's46', 's[48:49]'
    t0, t1, t2 = 's52', 's53', 's54'
    M1, O1, M2, O2 = 's55', 's56', 's58', 's59'
    for k, w in enumerate((W0, W1, W2)): dma_swz(a, w, k, U)
    a(f'v_lshlrev_b32 v{U+3}, 4, v1')
    for i in range(4): a(f'v_mov_b32 v{U+4+i}, 0')
    a(f'v_add_u32 v{U+8}, {SCR}, v{U+3}')
    a(f'ds_write_b128 v{U+8}, {vr(U+4,4)}')
    a(f's_add_u32 s58, s57, {sP}')
    a(f's_mul_i32 {sLo0}, s58, 3072')
    a(f's_mul_i32 {sLoP}, {sP}, 3072')
    a(f's_add_u32 {sLoP}, {sLoP}, {LO}')
    a('s_mov_b32 s34, 7077888\ns_mov_b32 s35, 0x20000')
    a(f's_add_u32 {sLo1}, {sLo0}, {4*3072}')
    def hi_off(dst, u):
        a(f's_mul_i32 {t0}, {u}, 43691')
        a(f's_lshr_b32 {t0}, {t0}, 19')
        a(f's_mul_i32 {t0}, {t0}, 73728')
        a(f's_mul_i32 {dst}, {u}, 6144')
        a(f's_add_u32 {dst}, {dst}, {t0}')
    a(f's_mul_i32 {sSlot}, {sP}, 6144')
    a('s_add_u32 s60, s57, 8')
    a('s_mul_i32 s61, s60, 3072')
    a(f's_cmp_lt_u32 {sP}, 2')
    a(f's_cselect_b32 s55, s61, {sLo0}')
    a(f's_cselect_b32 s56, {LO+8*3072}, {sLoP}')
    a('s_mov_b32 s30, 28311552\ns_mov_b32 s31, 0x20000')
    a(f's_min_u32 {t0}, {sP}, 2')
    a(f's_lshl_b32 s47, {sP}, 2')
    a(f's_add_u32 s47, s47, {t0}')
    a(f's_lshl_b32 s47, s47, 10')
    a(f'v_add_u32 v15, s47, v{U+3}')
    a(f's_cmp_ge_u32 {sP}, 2')
    a('s_waitcnt lgkmcnt(0)')
    a('s_cbranch_scc1 P_nox')
    dma_extra(a, SWL, WREG, 15, 's47')
    a('P_nox:')
    dma_main(a, SWL, WREG, 15, 's47')
    def half(srd, soff):
        return [f'buffer_load_dwordx4 v{w}, {srd}, {soff} offen offset:{1024*k} nt lds' for k, w in enumerate((W0, W1, W2))]
    a('s_mov_b32 s32, s8\ns_mov_b32 s33, s9')
    a(f's_mov_b32 m0, s56')
    a('s_mov_b32 s28, s6')
    for l in half(RLO, 's55'): a(l)
    a('s_mov_b32 s29, s7')
    def issue_h(soff, rnd, hf, add=0):
        a(f's_add_u32 m0, {sSlot}, {rnd*4*6144+3072*hf}')
        if add + hf:
            a(f's_add_u32 {t0}, {soff}, {add+3072*hf}'); src = t0
        else:
            a('s_nop 0'); src = soff
        for l in half(RHI, src): a(l)
    a('s_barrier')
    a('s_add_u32 s59, s58, 4')
    hi_off(sH0, 's58'); hi_off(sH1, 's59'); hi_off(sH8, 's60')
    a(f's_mul_i32 {t0}, {sP}, 73728')
    a(f's_add_u32 {sH8}, {sH8}, {t0}')
    a(f's_cmp_lt_u32 {sP}, 2')
    a(f's_cselect_b32 s47, {sH8}, {sH0}')
    a(f's_sub_u32 s56, s56, {sLoP}')
    stamp(a, cfg, 1)
    a(f'v_and_b32 v{U}, 31, v1')
    a(f'v_lshrrev_b32 v{U+1}, 5, v1')
    def rdaddr(d0, d1, px, base):
        a(f'v_lshlrev_b32 v{U+2}, 1, v{px}')
        a(f'v_and_b32 v{U+2}, 0x1e, v{U+2}')
        a(f'v_bfe_u32 v{U+2}, {SF}, v{U+2}, 2')
        a(f'v_xor_b32 v{U+2}, v{U+2}, v{U+1}')
        a(f'v_xor_b32 v{U+3}, 2, v{U+2}')
        a(f'v_mul_u32_u24 v{U+4}, 192, v{px}')
        a(f'v_add_u32 v{U+4}, {base}, v{U+4}')
        a(f'v_lshl_add_u32 v{d0}, v{U+2}, 4, v{U+4}')
        a(f'v_lshl_add_u32 v{d1}, v{U+3}, 4, v{U+4}')
    rdaddr(RA0, RA1, U, sSlot)
    a(f'v_lshrrev_b32 v{U+5}, 1, v{U}')
    rdaddr(RL0, RL1, U+5, sLoP)
    a(f'v_bfe_u32 v14, v1, 2, 2')
    a(f'v_lshl_add_u32 v14, v{U+1}, 3, v14')
    a(f'v_mul_u32_u24 v14, 192, v14')
    a(f'v_bfe_u32 v{U+8}, v1, 4, 1')
    a(f'v_lshl_add_u32 v14, v{U+8}, 5, v14')
    a(f'v_and_b32 v{U+3}, 1, v1')
    a(f'v_lshl_add_u32 v14, v{U+3}, 4, v14')
    a(f'v_bfe_u32 v{U+3}, v1, 1, 1')
    a(f'v_lshl_add_u32 v14, v{U+3}, 3, v14')
    a(f'v_add_u32 v14, {WREG}, v14')
    a(f'v_bfe_u32 v{U+2}, v1, 3, 1')
    a(f'v_and_b32 v{U+3}, 3, v1')
    a(f'v_lshl_add_u32 v{U+2}, v{U+2}, 2, v{U+3}')
    a(f'v_bfe_u32 v{U+3}, v1, 2, 1')
    a(f'v_cmp_eq_u32 vcc, v{U+3}, v{U+1}')
    a(f'v_and_b32 v{U+6}, 1, v{U+2}')
    a(f'v_lshlrev_b32 v{U+6}, 4, v{U+6}')
    a(f'v_mov_b32 v{U+4}, 0x3f80')
    a(f'v_lshlrev_b32 v{U+6}, v{U+6}, v{U+4}')
    a(f'v_cndmask_b32 v{U+6}, 0, v{U+6}, vcc')
    a(f'v_lshrrev_b32 v{U+2}, 1, v{U+2}')
    a(f'v_lshl_add_u32 v{U+2}, v{U+8}, 2, v{U+2}')
    a(f'v_cmp_eq_u32 s[58:59], v{U+3}, v{U+8}')
    a(f'v_mov_b32 v{U+7}, 0x3f803f80')
    for i in range(0, 8, 2):
        a(f'v_cmp_eq_u32 vcc, {i}, v{U+2}')
        a(f'v_cmp_eq_u32 s[60:61], {i+1}, v{U+2}')
        a(f'v_cndmask_b32 v{OP+i//2}, 0, v{U+7}, s[58:59]')
        a(f'v_cndmask_b32 v{ID+i}, 0, v{U+6}, vcc')
        a(f'v_cndmask_b32 v{ID+i+1}, 0, v{U+6}, s[60:61]')
    if cfg.dry:
        a('s_mov_b64 exec, 0')
        a(f's_cmp_eq_u32 {sP}, 1')
        a('s_cbranch_scc1 P_dry1')
        a(f's_cmp_eq_u32 {sP}, 2')
        a('s_cbranch_scc1 P_dry2')
        a(f's_cmp_eq_u32 {sP}, 3')
        a('s_cbranch_scc1 P_dryd')
        a(f's_call_b64 {RET}, P_h0')
        a('P_dryd:')
        a('s_mov_b64 exec, -1')
        stamp(a, cfg, 15)
    if cfg.tokpos == 0:
        await_cnt(a, 5, 'P_sy5', 12, 13, 4)
        if cfg.t0pre < 1: issue_h(sH0, 0, 0)
        issue_h(sH0, 0, 1)
        a(f's_waitcnt vmcnt(6)')
    else:
        a(f's_waitcnt vmcnt(0)')
    stamp(a, cfg, 10)
    arrive(a, 0, 12, 13)
    def lo_reads(r0, r1, off=0):
        return [f'ds_read_b128 {vr(X+4*s,4)}, v{r1 if s&1 else r0} offset:{off+64*(s>>1)}' for s in range(6)]
    a(f'v_add_u32 v{U}, s56, v{RL0}\nv_add_u32 v{U+1}, s56, v{RL1}')
    for l in lo_reads(U, U+1): a(l)
    await_cnt(a, 0, 'P_sy0', 12, 13, 4, setaddr=False)
    stamp(a, cfg, 2)
    def wl_reads(t, s):
        return [f'ds_read_b64_tr_b16 {vr(WL+(t*6+s)*4+2*sec,2)}, v14 offset:{s*3072+sec*768+t*64}' for sec in range(2)]
    def lat_mfma(t, s):
        c = '0' if s == 0 else vr(LT+16*t,16)
        return f'{MF32} {vr(LT+16*t,16)}, {vr(WL+(t*6+s)*4,4)}, {vr(X+4*s,4)}, {c}'
    def lateral(first):
        pend = []
        L = [wl_reads(0, s) for s in range(4)] if first else []
        seq = [(t, s) for t in range(3) for s in range(6)]
        for i, (t, s) in enumerate(seq):
            L.append(lat_mfma(t, s))
            if first and i + 4 < 18: L.append(wl_reads(*seq[i+4]))
            if s >= 1: L.append(pend[:4]); del pend[:4]
            if s == 5:
                pend += [f'v_mov_b32 v{SL}, v{LT}' if (t == 0 and j == 0) else f'v_add_f32 v{SL}, v{SL}, v{LT+16*t+j}' for j in range(16)]
        return flat(L), pend
    def sl_fin():
        return [f'v_mov_b32 v{SL+1}, v{SL}', 's_nop 1', f'v_permlane32_swap_b32 v{SL}, v{SL+1}', f'v_add_f32 v{SL}, v{SL}, v{SL+1}']
    L, pend = lateral(True)
    L = autowait(L, age=99)
    if cfg.tokpos:
        k = [i for i, l in enumerate(L) if l.startswith('v_mfma')][cfg.tokpos]
        for l in L[:k]: a(l)
        a('s_waitcnt lgkmcnt(0)')
        await_cnt(a, 5, 'P_sy5', 12, 13, 4)
        issue_h('s47', 0, 0)
        issue_h('s47', 0, 1)
        L = L[k:]
    for l in L: a(l)
    for l in pend + sl_fin(): a(l)
    arrive(a, 16, 12, 13)
    stamp(a, cfg, 3)
    a(f's_lshl_b32 {t0}, {sP}, 2')
    a(f's_add_u32 {t0}, {t0}, {PF}')
    a(f'v_mov_b32 v{FLA}, {t0}')
    a(f'v_mov_b32 v{FLV}, 0')
    a(f's_cmp_lt_u32 {sP}, 2')
    a('s_cbranch_scc0 P_scriptB')
    def script(tag, tiles, lats, los):
        n = len(tiles)
        q = ['h0', 'h1']
        nxt = [2]
        done = set()
        def guard(r):
            if r >= 3 and not done:
                done.add(r); await_cnt(a, 4, f'P_w{tag}{r}', 12, 13, 4)
        def param(M, O):
            h = nxt[0]; r, hf = divmod(h, 2)
            guard(r)
            a(f's_add_u32 {M}, {sSlot}, {r*4*6144+3072*hf}')
            a(f's_add_u32 {O}, {tiles[r][0]}, {tiles[r][1]+3072*hf}')
            nxt[0] += 1
            return f'h{h}'
        def now_h():
            h = nxt[0]; r, hf = divmod(h, 2)
            guard(r)
            issue_h(tiles[r][0], r, hf, tiles[r][1]); nxt[0] += 1
            q.append(f'h{h}')
        def now_lo(key):
            a(f's_add_u32 m0, {sLoP}, {0 if key == "lo0" else 4*3072}')
            a('s_nop 0')
            for l in half(RLO, sLo0 if key == 'lo0' else sLo1): a(l)
            q.append(key)
        for key in los.get(-1, []): now_lo(key)
        now_h()
        for r in range(n):
            ng = min(2, 2*n - nxt[0])
            if r == 1 and cfg.r1late: ng = 1
            new = []
            if ng >= 1: new.append(param(M1, O1))
            if ng >= 2: new.append(param(M2, O2))
            last = r == n - 1
            if lats[r] is not None:
                key = lats[r]
                if key in q:
                    i2 = q.index(key)
                    a(f's_waitcnt vmcnt({3*(len(q)-1-i2)})'); del q[:i2+1]
                off = 0 if key == 'lo0' else 4*3072
                a(f'v_add_u32 v12, {off}, v{RL0}\nv_add_u32 v13, {off}, v{RL1}')
                a(f's_call_b64 {RET}, P_lat')
            idx = max([q.index(x) for x in (f'h{2*r}', f'h{2*r+1}') if x in q] + [-1])
            if last and tag == 'a':
                a(f's_call_b64 {RET}, P_h0w'); break
            a(f's_waitcnt vmcnt({3*(len(q)-1-idx)})'); stamp(a, cfg, 4+r)
            del q[:idx+1]; q.extend(new)
            if last: break
            a(f's_call_b64 {RET}, P_h{ng}')
            if r == 1 and cfg.r1late: now_h()
            for key in los.get(r, []): now_lo(key)
            if tag == 'b' and r == cfg.wvr:
                await_cnt(a, 16, 'P_wl', 12, 13, 4)
                a(f's_sub_u32 {t0}, {sP}, 2\ns_mul_i32 {t0}, {t0}, 9216')
                a(f'v_lshlrev_b32 v12, 4, v1\nv_add_u32 v12, {t0}, v12')
                for k in range(3):
                    a(f's_add_u32 m0, {t0}, {WREG+3072*k}')
                    a(f's_add_u32 s50, s16, {3072*k}\ns_addc_u32 s51, s17, 0')
                    for j in range(3): a(f'global_load_lds_dwordx4 v12, s[50:51] offset:{1024*j}')
                    q.append('wv')
                if cfg.touch:
                    a(f's_mov_b32 s36, s26\ns_mov_b32 s37, s27\ns_mov_b32 s38, {REC_BYTES}\ns_mov_b32 s39, 0x20000')
                    a('v_and_b32 v12, 15, v1\nv_lshlrev_b32 v12, 16, v12')
                    if cfg.touch >= 2:
                        a('v_lshrrev_b32 v13, 4, v1\nv_lshl_add_u32 v12, v13, 6, v12')
                        a(f's_lshl_b32 {t0}, s2, 8')
                        a(f'buffer_load_dword v232, v12, {RWS}, {t0} offen' + (' sc1' if cfg.touch == 3 else ''))
                    else:
                        a(f'buffer_load_dword v232, v12, {RWS}, 0 offen')
                    a(f'v_mov_b32 v12, 0')
                    a(f'global_load_dword v234, v12, {SOUT}')
                    a(f'global_load_dword v233, v12, {SQ}')
                    q.append('touch')
    script('a', [None, (sH0, 0), (sH0, 73728), (sH1, 0), (sH1, 73728)], [None, 'lo0', None, 'lo1', None], {-1: ['lo0'], 1: ['lo1']})
    a('s_barrier')
    a('s_branch P_fin')
    a('P_scriptB:')
    script('b', [None, (sH0, 73728), (sH1, 0), (sH1, 73728)], [None, None, 'lo1', None], {0: ['lo1']})
    if cfg.wvr < 2: arrive(a, 6, 12, 13)
    a(f's_call_b64 {RET}, P_h0')
    if cfg.wvr == 2:
        a('s_waitcnt vmcnt(0)')
        arrive(a, 6, 12, 13)
    if cfg.trp: a('s_branch L_exit')
    if cfg.stamps: a('s_mov_b32 s98, 0')
    a('s_cmp_ge_u32 s2, 16')
    a('s_cbranch_scc1 L_exit')
    if cfg.stamps: a('s_mov_b32 s98, 1')
    await_cnt(a, 17, 'P_w17', 12, 13, 4)
    a(f's_sub_u32 {t0}, {sP}, 2\ns_mul_i32 {t0}, {t0}, 9216')
    a(f'v_lshlrev_b32 v12, 4, v1\nv_add_u32 v12, {t0}, v12')
    for k in range(3):
        a(f's_add_u32 m0, {t0}, {WO+3072*k}')
        a(f's_add_u32 s50, s18, {3072*k}\ns_addc_u32 s51, s19, 0')
        for j in range(3): a(f'global_load_lds_dwordx4 v12, s[50:51] offset:{1024*j}')
    a('s_barrier')
    a('P_fin:')
    if cfg.trp: a('s_branch L_exit')
    stamp(a, cfg, 9)
    a('s_cmp_ge_u32 s2, 16')
    a('s_cbranch_scc1 L_exit')
    a('s_setprio 0')
    a(f's_load_dword s47, {SDBG}, 0')
    a('s_waitcnt lgkmcnt(0)')
    a('s_cmp_eq_u32 s47, 0')
    a('s_cbranch_scc1 P_getnonce')
    a('P_getnonce_d:')
    a(f's_mov_b32 s36, s26\ns_mov_b32 s37, s27\ns_mov_b32 s38, {REC_BYTES}\ns_mov_b32 s39, 0x20000')
    await_cnt(a, 7, 'P_w7', 12, 13, 4)
    a('s_cmp_lt_u32 s50, 0x100')
    a('s_cbranch_scc1 L_comb')
    a('s_branch Z_comb')
    nonce_slow(a, 'P_getnonce', 'P_getnonce_d', 20)
    if cfg.dry:
        a('P_dry1:')
        a('s_call_b64 s[60:61], C_blk2')
        a('s_branch P_dryd')
        a('P_dry2:')
        a(f's_call_b64 {RET}, P_lat')
        a('s_branch P_dryd')
    a('P_lat:')
    if cfg.pp: a(f's_setprio {cfg.pl}')
    L, pend = lateral(False)
    for l in autowait(lo_reads(12, 13) + L, age=99): a(l)
    a('s_nop 9')
    for l in pend + sl_fin(): a(l)
    a(f's_setpc_b64 {RET}')
    hp = cfg.pm if cfg.pp else None
    g1 = [f's_mov_b32 m0, {M1}', 's_nop 0'] + half(RHI, O1)
    g2 = [f's_mov_b32 m0, {M2}', 's_nop 0'] + half(RHI, O2)
    def traced(lines, first, n):
        step = max(1, len(lines) // n); k = first
        for i, l in enumerate(lines):
            if i % step == 0 and k < first + n:
                stamp(a, cfg, k, True); k += 1
            a(l)
    a('P_h2:')
    traced(B.p_head(g1, g2, hp), 2, 3)
    a('s_branch P_s1')
    a('P_h1:')
    traced(B.p_head(g1, (), hp), 2, 3)
    a('s_branch P_s1')
    a('P_h0w:')
    a('s_waitcnt vmcnt(0)')
    stamp(a, cfg, 8)
    a('P_h0:')
    for l in B.p_head((), (), hp): a(l)
    a('P_s1:')
    tail = B.p_tail(0, cfg.pv if cfg.pp else None)
    traced(tail[:-1], 5, 9)
    a(f'v_add_u32 v{FLV}, 1, v{FLV}')
    a('s_waitcnt lgkmcnt(0)')
    a(f'ds_write_b32 v{FLA}, v{FLV}')
    a(f's_setpc_b64 {RET}')

def gen_consumer(a, cfg):
    sH = 's40'
    t0, t1 = 's41', 's42'
    RET = 's[60:61]'
    sR = 's43'
    LIN, REC, WVA, XA = 2, 3, 8, 9
    CA0, CA1, CT0, CT1 = B.C.CA0, B.C.CA1, B.C.CT0, B.C.CT1
    PART = 12
    AP, U, LA, OP = B.C.AP, B.C.U, B.C.LA, B.C.OP
    WV = B.C.WV
    QB, WK, ME, QT, QP, TA, QF = 96, 108, 132, 156, 164, 168, 16
    T = 240
    T2 = 248
    a('L_cons:')
    if cfg.cearly: a(f's_setprio {cfg.cpp}')
    a('s_memrealtime s[58:59]')
    code_prefetch(a, 'L_pc', 0, -256)
    a(f's_sub_u32 {sH}, s3, 4')
    a(f'v_lshlrev_b32 v{LIN}, 4, v1')
    a(f's_mul_i32 s48, {sH}, 4608')
    a(f'v_add_u32 v{PART}, s48, v{LIN}')
    a(f's_min_u32 {t0}, {sH}, 2')
    a(f's_lshl_b32 s46, {sH}, 2')
    a(f's_add_u32 s46, s46, {t0}')
    a(f's_lshl_b32 s46, s46, 10')
    a(f'v_add_u32 v13, s46, v{LIN}')
    a(f's_lshl_b32 s54, {t0}, 10')
    a(f'v_add_u32 v10, s54, v{LIN}')
    a('s_lshr_b32 s50, s2, 3\ns_and_b32 s50, s50, 31\ns_mul_i32 s50, s50, 640')
    a(f'v_lshlrev_b32 v14, 7, v1')
    a(f'v_add_u32 v14, s50, v14')
    a(f'v_min_u32 v14, 18428, v14')
    N, G, RHO, KAP = T+4, T+5, T+6, T+7
    a(f'v_and_b32 v{N}, 15, v1')
    a(f'v_lshrrev_b32 v{G}, 4, v1')
    a(f'v_bfe_u32 v{RHO}, v1, 2, 2')
    a(f'v_and_b32 v{KAP}, 3, v1')
    a(f'v_mul_u32_u24 v{T+8}, 192, v{N}')
    a(f'v_lshl_add_u32 v{T+8}, v{G}, 4, v{T+8}')
    a(f'v_lshl_add_u32 v{T+9}, v{RHO}, 3, v{KAP}')
    a(f'v_mul_u32_u24 v{T+9}, 48, v{T+9}')
    a(f'v_lshl_add_u32 v{T+9}, v{G}, 4, v{T+9}')
    a(f'v_add_u32 v{T+9}, s48, v{T+9}')
    for i in range(24): a(f'v_mov_b32 v{WK+i}, 0')
    a('s_waitcnt lgkmcnt(0)')
    a(f's_cmp_eq_u32 {sH}, 0\ns_cselect_b64 s[50:51], {SWV}, {SWQ}')
    a(f's_cmp_eq_u32 {sH}, 2\ns_cselect_b64 s[50:51], {SWK}, s[50:51]')
    a(f's_cmp_eq_u32 {sH}, 3\ns_cselect_b64 s[50:51], {SWM}, s[50:51]')
    a('s_mov_b64 exec, 31')
    a(f'global_load_dword v15, v14, s[50:51]')
    a('s_mov_b64 exec, -1')
    a('s_barrier')
    a(f's_lshl_b32 s50, s2, 2\ns_xor_b32 s50, s50, {sH}\ns_cmp_eq_u32 s50, 3')
    a('s_cbranch_scc1 C_mknonce')
    a('C_mknonce_d:')
    a(f's_cmp_ge_u32 {sH}, 2')
    a('s_cbranch_scc1 C_nox')
    dma_extra(a, SWM, WM, 13, 's46')
    dma_extra(a, SWQ, WQ, 13, 's46')
    a('C_nox:')
    a(f's_cmp_ge_u32 {sH}, 3')
    a('s_cbranch_scc1 C_noy')
    a(f's_add_u32 m0, s54, {QS}')
    a('s_nop 0')
    a(f'global_load_lds_dwordx4 v10, {SQ}')
    a('C_noy:')
    dma_main(a, SWM, WM, 13, 's46')
    dma_main(a, SWQ, WQ, 13, 's46')
    if cfg.wkpos == 1: arrive(a, 5, 16, 17)
    a('s_mov_b32 exec_hi, 0xffff')
    for s in range(3):
        for tt in range(2):
            a(f'global_load_dwordx4 {vr(WK+(2*s+tt)*4,4)}, v{T+9}, {SWK} offset:{1536*s+192*tt}')
    a('s_mov_b32 exec_hi, -1')
    if cfg.wkpos == 0: arrive(a, 5, 16, 17)
    stamp(a, cfg, 1)
    a(f's_mov_b32 s36, s26\ns_mov_b32 s37, s27\ns_mov_b32 s38, {REC_BYTES}\ns_mov_b32 s39, 0x20000')
    a(f's_and_b32 s49, {sH}, 1\ns_lshl_b32 s55, s49, 1\ns_lshr_b32 s56, {sH}, 1\ns_add_u32 s55, s55, s56')
    a(f's_lshl_b32 {t0}, s2, 2\ns_add_u32 {t0}, {t0}, s55\ns_lshl_b32 {t0}, {t0}, 6')
    a(f'v_lshlrev_b32 v{REC}, 16, v{N}')
    a(f'v_lshl_add_u32 v{REC}, v{G}, 4, v{REC}')
    a(f'v_add_u32 v{REC}, {t0}, v{REC}')
    a('s_mul_i32 s52, s56, 12288')
    a(f'v_and_b32 v{T+10}, 31, v1')
    a(f'v_lshrrev_b32 v{T+11}, 5, v1')
    a(f'v_lshlrev_b32 v{T+12}, 1, v{N}')
    a(f'v_bfe_u32 v{T+12}, {SF}, v{T+12}, 2')
    a(f'v_xor_b32 v{T+12}, v{T+12}, v{T+11}')
    a(f'v_mul_u32_u24 v{T+13}, 192, v{T+10}')
    a(f'v_add_u32 v{T+13}, s52, v{T+13}')
    a(f'v_lshl_add_u32 v{CA0}, v{T+12}, 4, v{T+13}')
    a(f'v_xor_b32 v{T+12}, 2, v{T+12}')
    a(f'v_lshl_add_u32 v{CA1}, v{T+12}, 4, v{T+13}')
    a(f'v_lshl_add_u32 v{T+12}, v{T+11}, 2, v{RHO}')
    a(f'v_bfe_u32 v{T+13}, v1, 4, 1')
    a(f'v_lshrrev_b32 v{T+14}, 1, v{KAP}')
    a(f'v_lshl_add_u32 v{T+14}, v{T+13}, 1, v{T+14}')
    a(f'v_and_b32 v{T+15}, 1, v{KAP}')
    a(f'v_lshlrev_b32 v{T+15}, 3, v{T+15}')
    a(f'v_add_u32 v{T+15}, s52, v{T+15}')
    for sec, dst in ((0, CT0), (1, CT1)):
        if sec: a(f'v_add_u32 v{T+12}, 8, v{T+12}')
        a(f'v_lshlrev_b32 v{dst}, 1, v{T+12}')
        a(f'v_bfe_u32 v{dst}, {SF}, v{dst}, 2')
        a(f'v_xor_b32 v{dst}, v{dst}, v{T+14}')
        a(f'v_lshl_add_u32 v{dst}, v{dst}, 4, v{T+15}')
        a(f'v_mul_u32_u24 v10, 192, v{T+12}')
        a(f'v_add_u32 v{dst}, v{dst}, v10')
    a(f'v_lshl_add_u32 v{WVA}, v{T+11}, 2, v{RHO}')
    a(f'v_lshl_add_u32 v{WVA}, v{T+13}, 4, v{WVA}')
    a(f'v_mul_u32_u24 v{WVA}, 48, v{WVA}')
    a(f'v_lshl_add_u32 v{WVA}, v{KAP}, 3, v{WVA}')
    a(f'v_add_u32 v{WVA}, {WREG}, v{WVA}')
    a(f's_xor_b32 {t0}, s55, 1')
    a(f's_mul_i32 s53, {t0}, 4608')
    a(f's_mul_i32 s46, s55, 4608')
    a(f'v_mov_b32 v10, s46')
    a(f'v_mov_b32 v11, s53')
    a(f'v_cmp_eq_u32 vcc, 0, v{T+13}')
    a(f'v_mul_u32_u24 v{XA}, 192, v{N}')
    a(f'v_lshl_add_u32 v{XA}, v{T+11}, 4, v{XA}')
    a(f'v_cndmask_b32 v10, v11, v10, vcc')
    a(f'v_add_u32 v{XA}, v{XA}, v10')
    a(f'v_add_u32 v{XA}, {WQ}, v{XA}')
    a(f'v_lshl_add_u32 v{T+12}, v{G}, 3, v{RHO}')
    a(f'v_mul_u32_u24 v10, 48, v{T+12}')
    a(f'v_min_u32 v11, 2, v{KAP}')
    a(f'v_lshl_add_u32 v10, v11, 4, v10')
    a(f's_add_u32 {t0}, s48, {WQ}')
    a(f'v_add_u32 v10, {t0}, v10')
    a(f'v_add_u32 v13, {t0}, v{T+8}')
    a(f'v_add_u32 v{T+8}, {QS}, v{T+8}')
    a(f'v_mul_u32_u24 v11, 192, v{T+12}')
    a(f'v_lshl_add_u32 v11, v{KAP}, 4, v11')
    a(f'v_add_u32 v11, {WM}, v11')
    a(f'v_and_b32 v{T+12}, 1, v1')
    a(f'v_cmp_eq_u32 vcc, v{T+12}, v{T+13}')
    a(f'v_mov_b32 v{T+12}, 0x3f803f80')
    for i in range(52):
        a(f'v_mov_b32 v{U+i}, 0')
        if i == 4:
            for k in range(4): a(f'v_cndmask_b32 v{OP+k}, 0, v{T+12}, vcc')
    a('s_waitcnt vmcnt(10)')
    arrive(a, 1, 14, 15)
    if cfg.cpp: a(f's_setprio {cfg.cpp}')
    await_cnt(a, 1, 'C_sy1', 14, 15, 4, setaddr=False)
    stamp(a, cfg, 2)
    def me_rd(sp, st): return [f'ds_read_b64_tr_b16 {vr(TA+(sp*6+st)*4+2*sec,2)}, v11 offset:{sp*6144+sec*768+(st>>1)*64+(st&1)*8}' for sec in range(2)]
    seq = [(sp, st) for sp in range(3) for st in range(6)]
    L = [f'ds_read_b128 {vr(QB+4*s,4)}, v{T+8} offset:{64*s}' for s in range(3)]
    L += [me_rd(*seq[i]) for i in range(5)]
    for i, (sp, st) in enumerate(seq):
        c = '0' if sp == 0 else vr(ME+4*st,4)
        L.append(f'{MF16} {vr(ME+4*st,4)}, {vr(TA+(sp*6+st)*4,4)}, {vr(QB+4*sp,4)}, {c}')
        if i + 5 < 18: L.append(me_rd(*seq[i+5]))
    for l in autowait(flat(L), age=99): a(l)
    a('s_waitcnt vmcnt(6)')
    lds_sync(a, 2, 'C_sy2', 14, 15)
    stamp(a, cfg, 15)
    L = []
    for s in range(3):
        for tt in range(2):
            for sec in range(2):
                L.append(f'ds_read_b64_tr_b16 {vr(QF+(tt*3+s)*4+2*sec,2)}, v10 offset:{s*1536+sec*192+tt*8}')
    for s in range(3):
        for tt in range(2):
            c = '0' if s == 0 else vr(QT+4*tt,4)
            L.append(f'{MF16} {vr(QT+4*tt,4)}, {vr(QF+(tt*3+s)*4,4)}, {vr(QB+4*s,4)}, {c}')
    for l in autowait(L, age=99): a(l)
    for i in range(8): a(f'v_add_f32 v{QT+i}, v{QT+i}, v{QT+i}')
    for i in range(4): a(f'v_cvt_pk_bf16_f32 v{QP+i}, v{QT+2*i}, v{QT+2*i+1}')
    a('s_waitcnt vmcnt(0)')
    for st in range(6):
        a(f'{MF16} {vr(ME+4*st,4)}, {vr(WK+4*st,4)}, {vr(QP,4)}, {vr(ME+4*st,4)}')
    sc = 96 ** -0.5 * math.log2(math.e)
    a(f's_mov_b32 {t0}, {f32(sc)}')
    for s in range(3):
        for i in range(8): a(f'v_mul_f32 v{ME+8*s+i}, {t0}, v{ME+8*s+i}')
        for i in range(4): a(f'v_cvt_pk_bf16_f32 v{ME+8*s+i}, v{ME+8*s+2*i}, v{ME+8*s+2*i+1}')
        a(f'ds_write_b128 v13, {vr(ME+8*s,4)} offset:{64*s}')
        a(f'{MF16} {vr(QT,4)}, {vr(ME+8*s,4)}, {vr(ME+8*s,4)}, {"0" if s == 0 else vr(QT,4)}')
    a(f's_mov_b32 {t0}, {f32(THR)}')
    a(f'v_mov_b32 v14, {CNT + 4*3}')
    a(f'v_max3_f32 v{QT}, v{QT}, v{QT+1}, v{QT+2}')
    a(f'v_max_f32 v{QT}, v{QT}, v{QT+3}')
    a(f'v_cmp_nge_f32 vcc, {t0}, v{QT}')
    a('s_cmp_eq_u64 vcc, 0')
    a('s_cselect_b32 s51, 1, 0x101')
    a('v_mov_b32 v15, s51')
    a('s_waitcnt lgkmcnt(0)')
    a('s_mov_b64 exec, 1')
    a('ds_add_rtn_u32 v15, v14, v15')
    a('s_mov_b64 exec, -1')
    a('s_waitcnt lgkmcnt(0)')
    a('v_readfirstlane_b32 s50, v15')
    a('s_add_u32 s50, s50, s51')
    a('s_cmp_eq_u32 s50, 4')
    a('s_cbranch_scc1 C_sy3_ok')
    await_cnt(a, 3, 'C_sy3', 14, 15, 4, setaddr=False)
    a('s_cmp_eq_u32 s50, 4')
    a('s_cbranch_scc0 Z_sy3')
    a('C_sy3_ok:')
    stamp(a, cfg, 3)
    cons_main(a, cfg, False)
    a('C_mknonce:')
    a('s_or_b32 s50, s58, 1')
    a('v_mov_b32 v20, s50\nv_mov_b32 v21, 0\nv_mov_b32 v22, 0')
    a('s_mov_b64 exec, 1')
    a(f'global_atomic_cmpswap v22, v[20:21], {SDBG} sc1')
    a('s_mov_b64 exec, -1')
    a('s_branch C_mknonce_d')
    nonce_slow(a, 'C_getnonce', 'C_getnonce_d', T2)
    a('C_wait:')
    a('s_sleep 1')
    a('C_blk:')
    stamp(a, cfg, 1, True)
    a(f'ds_read_b64 {vr(T2+4,2)}, v10')
    a('s_waitcnt lgkmcnt(0)')
    a(f'v_min_u32 v{T2+4}, v{T2+4}, v{T2+5}')
    a(f'v_readfirstlane_b32 s50, v{T2+4}')
    a(f's_cmp_lt_u32 s50, {sR}')
    a('s_cbranch_scc1 C_wait')
    a('C_blk2:')
    lines = B.cons2(cfg.cvar)
    step = len(lines) // 11; k = 2
    for i, l in enumerate(lines):
        if i % step == 0 and k < 13:
            stamp(a, cfg, k, True); k += 1
        a(l)
    stamp(a, cfg, 13, True)
    if cfg.trp:
        a(f's_cmp_eq_u32 {sR}, {cfg.trc}')
        a('s_cbranch_scc1 L_exit')
    a(f's_add_u32 {sR}, {sR}, 1')
    a(f's_setpc_b64 {RET}')


def slow_rescale(NEW):
    MX = 160; U, LA = B.C.U, B.C.LA
    L = [f'v_max_f32 v{NEW}, v{NEW}, v{MX}',
         f'v_sub_f32 v{MX+4}, v{MX}, v{NEW}',
         f'v_exp_f32 v{MX+4}, v{MX+4}',
         f'v_mov_b32 v{MX}, v{NEW}', 's_nop 1',
         f'v_mov_b32 v{MX+5}, v{MX+4}', f'v_mov_b32 v{MX+6}, v{MX+4}', 's_nop 1',
         f'v_permlane16_swap_b32 v{MX+5}, v{MX+6}', 's_nop 1']
    L += [f'v_mul_f32 v{U+i}, v{U+i}, v{MX+4}' for i in range(48)]
    L += [f'v_mul_f32 v{LA+i}, v{LA+i}, v{MX+5+(i&1)}' for i in range(4)]
    return L

def slow_tile(off):
    MX = 160; S = B.C.S[0]
    tb = B.C.TB
    B.C.TB = off
    sv = (B.C.KA, B.C.KT, B.C.S, B.C.P)
    B.C.KA = [sv[0][0]] * 2; B.C.KT = [sv[1][0]] * 2; B.C.S = [S] * 2; B.C.P = [S] * 2
    L = [B.ka(1, s) for s in range(6)] + ['s_waitcnt lgkmcnt(0)']
    L += [B.kt(1, ks, t) for ks in range(2) for t in range(3)]
    L += [B.sm(1, s) for s in range(6)] + ['s_nop 15', 's_nop 15']
    L += [f'v_max3_f32 v{MX+1}, v{S}, v{S+1}, v{S+2}']
    L += [f'v_max3_f32 v{MX+1}, v{MX+1}, v{S+3+2*i}, v{S+4+2*i}' for i in range(6)]
    L += [f'v_max_f32 v{MX+1}, v{MX+1}, v{S+15}', f'v_mov_b32 v{MX+2}, v{MX+1}', 's_nop 1',
          f'v_permlane32_swap_b32 v{MX+1}, v{MX+2}', 's_nop 1', f'v_max_f32 v{MX+1}, v{MX+1}, v{MX+2}']
    L += slow_rescale(MX+1)
    L += [f'v_sub_f32 v{S+i}, v{S+i}, v{MX}' for i in range(16)]
    L += [B.ex(1, i) for i in range(16)] + ['s_nop 1'] + [B.cv(1, i) for i in range(8)]
    L += ['s_waitcnt lgkmcnt(0)', 's_nop 1']
    L += [B.pv(1, ks, t) for ks in range(2) for t in range(4)] + ['s_nop 15', 's_nop 15']
    B.C.TB = tb
    B.C.KA, B.C.KT, B.C.S, B.C.P = sv
    return flat(L)

def cons_main(a, cfg, slow):
    sH = 's40'
    t0, t1 = 's41', 's42'
    RET = 's[60:61]'
    sR = 's43'
    LIN, REC, WVA, XA = 2, 3, 8, 9
    CA0, CA1, CT0, CT1 = B.C.CA0, B.C.CA1, B.C.CT0, B.C.CT1
    AP, U, LA, OP = B.C.AP, B.C.U, B.C.LA, B.C.OP
    WV = B.C.WV
    T2 = 248
    Z = 'Z' if slow else 'C'
    MX = 160
    if slow:
        cfg = Cfg(); cfg.stamps = False
        a('Z_sy3:')
        a('ds_read_b32 v15, v14')
        a('s_waitcnt lgkmcnt(0)')
        a('v_readfirstlane_b32 s50, v15')
        a('s_and_b32 s50, s50, 0xff')
        a('s_cmp_lt_u32 s50, 4')
        a('s_cbranch_scc1 Z_sy3')
        a(f'v_mov_b32 v{MX}, {f32(-3e38)}')
    for s in range(6): a(f'ds_read_b128 {vr(AP+4*s,4)}, v{XA} offset:{32*s}')
    a(f's_lshl_b32 {t0}, s56, 3\ns_add_u32 {t0}, {t0}, {PF}')
    a(f'v_mov_b32 v10, {t0}')
    a(f's_mov_b32 {sR}, 1')
    a('s_waitcnt lgkmcnt(0)')
    arrive(a, 4, 14, 15)
    if cfg.cpp: a(f's_setprio {cfg.cmain}')
    a(f's_call_b64 {RET}, {Z}_blk')
    stamp(a, cfg, 5)
    if cfg.c2 is not None: a(f's_setprio {cfg.c2}')
    a(f's_call_b64 {RET}, {Z}_blk')
    stamp(a, cfg, 6)
    arrive(a, 17, 14, 15)
    a(f's_load_dword s47, {SDBG}, 0')
    if cfg.c3 is not None: a(f's_setprio {cfg.c3}')
    a(f's_call_b64 {RET}, {Z}_blk')
    stamp(a, cfg, 7)
    if cfg.c4 is not None: a(f's_setprio {cfg.c4}')
    await_cnt(a, 6, f'{Z}_sy6', 14, 15, 2)
    a('s_cmp_eq_u32 s47, 0')
    a(f's_cbranch_scc1 {Z}_getnonce')
    a(f'{Z}_getnonce_d:')
    a(f'v_add_u32 v14, s46, v{WVA}')
    a(f'v_add_u32 v15, s53, v{WVA}')
    L = []
    for hh in range(2):
        for tt in range(2):
            for t in range(3):
                for sec in range(2):
                    L.append(f'ds_read_b64_tr_b16 {vr(WV+(hh*6+tt*3+t)*4+2*sec,2)}, v{14+hh} offset:{t*1536+sec*384+tt*32}')
    for l in autowait(L): a(l)
    a(f's_lshl_b32 {t0}, {sH}, 11')
    a(f's_add_u32 {t0}, {t0}, {XCH}')
    a(f'v_add_u32 v9, {t0}, v{LIN}')
    a(f'v_xor_b32 v11, 0x1000, v9')
    a(f's_lshl_b32 {t0}, {sH}, 2')
    a(f's_add_u32 {t0}, {t0}, {CNT+32}')
    a(f'v_mov_b32 v8, {t0}')
    a(f'v_xor_b32 v14, 8, v8')
    a(f'v_mov_b32 v15, 1')
    if slow:
        a(f's_lshl_b32 {t0}, s55, 8\ns_add_u32 {t0}, {t0}, s2\ns_lshl_b32 {t0}, {t0}, 3\ns_add_u32 {t0}, {t0}, {MREC}')
        a('v_and_b32 v12, 15, v1')
        a('v_lshlrev_b32 v12, 13, v12')
        a(f'v_add_u32 v12, {t0}, v12')
    mk_tag(a, T2+1)
    a('s_mov_b32 s44, 0\ns_mov_b32 s45, -1')
    a('s_cmp_eq_u32 s56, 0')
    a(f's_cbranch_scc1 {Z}_r3s')
    a(f's_call_b64 {RET}, {Z}_blk')
    a(f's_mov_b32 s51, {(13 - 18) * 6144}')
    for r in (CA0, CA1, CT0, CT1): a(f'v_add_u32 v{r}, s51, v{r}')
    a(f'{Z}_r3s:')
    a(f's_lshl_b32 {t0}, s56, 2\ns_add_u32 {t0}, {t0}, {PF}')
    a(f'v_mov_b32 v10, {t0}')
    a(f'{Z}_r3w:')
    a(f'ds_read_b32 v{T2+4}, v10')
    a('s_waitcnt lgkmcnt(0)')
    a(f'v_readfirstlane_b32 s50, v{T2+4}')
    a('s_cmp_lt_u32 s50, 4')
    a(f's_cbranch_scc1 {Z}_r3w')
    a(f's_branch {Z}_one')
    a(f'{Z}_r4:')
    for r in (CA0, CA1, CT0, CT1): a(f'v_add_u32 v{r}, 24576, v{r}')
    stamp(a, cfg, 4)
    a('s_setprio 3')
    a('s_cmp_eq_u32 s2, s2')
    a('s_barrier')
    stamp(a, cfg, 8)
    a(f'{Z}_one:')
    for l in (slow_tile(0) if slow else B.cons1()): a(l)
    a(f's_cbranch_scc0 {Z}_r4')
    stamp(a, cfg, 9)
    if slow:
        a(f's_lshl_b32 {t0}, {sH}, 7')
        a(f's_add_u32 {t0}, {t0}, {TOT}')
        a(f'v_and_b32 v{MX+1}, 31, v1')
        a(f'v_lshlrev_b32 v{MX+1}, 2, v{MX+1}')
        a(f'v_add_u32 v{MX+1}, {t0}, v{MX+1}')
        a(f'ds_write_b32 v{MX+1}, v{MX}')
        a('s_waitcnt lgkmcnt(0)')
        lds_sync(a, 18, 'Z_sy18', MX+2, MX+3)
        a(f'v_xor_b32 v{MX+1}, {256+64}, v{MX+1}')
        a(f'ds_read_b32 v{MX+2}, v{MX+1}')
        a('s_waitcnt lgkmcnt(0)')
        for l in slow_rescale(MX+2): a(l)
        a(f'v_mov_b32 v{MX+1}, s47')
        a('s_mov_b32 exec_lo, 0\ns_mov_b32 exec_hi, 0xffff')
        a(f'buffer_store_dwordx2 {vr(MX,2)}, v12, {RWS}, 0 offen sc1')
        a('s_mov_b64 exec, -1')
    UP, CX = 96, 120
    def cvtU(t): return [f'v_cvt_pk_bf16_f32 v{UP+8*t+i}, v{U+16*t+2*i}, v{U+16*t+2*i+1}' for i in range(8)]
    def swp(t): return [f'v_permlane16_swap_b32 v{UP+8*t+i}, v{UP+8*t+4+i}' for i in range(4)]
    def pj(hh, tt, t):
        c = '0' if t == 0 else vr(CX+8*hh+4*tt,4)
        return f'{MF16} {vr(CX+8*hh+4*tt,4)}, {vr(WV+(hh*6+tt*3+t)*4,4)}, {vr(UP+8*t+4*hh,4)}, {c}'
    c0, c1, c2 = cvtU(0), cvtU(1), cvtU(2)
    EN = T2
    E = [c0, c1[:2], swp(0), c1[2:4],
         pj(1,0,0), c1[4:6], pj(1,1,0), c1[6:8], pj(0,0,0), c2[:2], pj(0,1,0), swp(1), c2[2:4],
         pj(1,0,1), c2[4:6], pj(1,1,1), c2[6:8], pj(0,0,1), swp(2), pj(0,1,1),
         pj(1,0,2), f'v_cndmask_b32 v{EN}, v{LA}, v{LA+1}, s[44:45]',
         pj(1,1,2), f'v_and_b32 v{EN+2}, s46, v{EN}',
         pj(0,0,2), f'v_sub_f32 v{EN}, v{EN}, v{EN+2}',
         pj(0,1,2), f'v_cndmask_b32 v{EN}, v{EN+2}, v{EN}, s[52:53]',
         f'v_bfi_b32 v{EN}, s46, v{EN}, v{T2+1}',
         f'ds_write_b128 v11, {vr(CX+8,4)}',
         f'v_cndmask_b32 v{CX+12}, v{CX+12}, v{EN}, s[44:45]',
         f'ds_write_b128 v11, {vr(CX+12,4)} offset:1024',
         'ds_write_b32 v14, v15']
    for l in flat(E): a(l)
    a(f'{Z}_xw:')
    a('ds_read_b32 v15, v8')
    a(f'ds_read_b128 {vr(CX+8,4)}, v9')
    a(f'ds_read_b128 {vr(CX+12,4)}, v9 offset:1024')
    a('s_waitcnt lgkmcnt(2)')
    a('v_cmp_eq_u32 vcc, 0, v15')
    a(f's_cbranch_vccnz {Z}_xw')
    a('s_waitcnt lgkmcnt(1)')
    for i in range(4): a(f'v_add_f32 v{CX+i}, v{CX+i}, v{CX+8+i}')
    a(f'v_cvt_pk_bf16_f32 v{CX}, v{CX}, v{CX+1}')
    a(f'v_cvt_pk_bf16_f32 v{CX+1}, v{CX+2}, v{CX+3}')
    a('s_waitcnt lgkmcnt(0)')
    for i in range(4, 8): a(f'v_add_f32 v{CX+i}, v{CX+i}, v{CX+8+i}')
    a(f'v_cvt_pk_bf16_f32 v{CX+2}, v{CX+4}, v{CX+5}')
    a(f'v_cvt_pk_bf16_f32 v{CX+4}, v{CX+6}, v{CX+7}')
    a(f'v_cndmask_b32 v{CX+3}, v{EN}, v{CX+12}, s[44:45]')
    a(f'v_permlane32_swap_b32 v{CX+2}, v{CX+4}')
    a(f'buffer_store_dwordx4 {vr(CX,4)}, v{REC}, {RWS}, 0 offen sc1')
    stamp(a, cfg, 10)
    a('s_cmp_ge_u32 s2, 16')
    a('s_cbranch_scc1 L_exit')
    if slow:
        a(f'v_mov_b32 v14, {CNT + 4*7}')
        a(f'v_mov_b32 v15, 0x101')
        a('s_mov_b64 exec, 1')
        a('ds_add_u32 v14, v15')
        a('s_mov_b64 exec, -1')
        a('s_setprio 0')
        a('s_branch Z_comb')
        nonce_slow(a, 'Z_getnonce', 'Z_getnonce_d', T2)
        a('Z_wait:')
        a('s_sleep 1')
        a('Z_blk:')
        a(f'ds_read_b64 {vr(T2+4,2)}, v10')
        a('s_waitcnt lgkmcnt(0)')
        a(f'v_min_u32 v{T2+4}, v{T2+4}, v{T2+5}')
        a(f'v_readfirstlane_b32 s50, v{T2+4}')
        a(f's_cmp_lt_u32 s50, {sR}')
        a('s_cbranch_scc1 Z_wait')
        for l in slow_tile(0) + slow_tile(6144) + B.adv(): a(l)
        a(f's_add_u32 {sR}, {sR}, 1')
        a(f's_setpc_b64 {RET}')
        return
    arrive(a, 7, 14, 15)
    a('s_setprio 0')
    a('s_branch L_comb')

def mk_tag(a, v):
    a('s_and_b32 s50, s47, 0xbfff')
    a('s_lshr_b32 s51, s47, 16')
    a('s_and_b32 s51, s51, 0xbfff')
    a('s_mov_b32 s52, 0xffff0000\ns_mov_b32 s53, 0xffff0000\ns_mov_b32 s46, 0xffff0000')
    a(f'v_mov_b32 v{v}, s50')
    a(f'v_mov_b32 v{v+1}, s51')
    a(f'v_cndmask_b32 v{v}, v{v}, v{v+1}, s[52:53]')

def comb_tag(a, v):
    a('s_and_b32 s50, s47, 0xbfff')
    a('s_lshr_b32 s51, s47, 16')
    a('s_and_b32 s51, s51, 0xbfff')
    a('s_mov_b32 s48, 0xaaaaaaaa\ns_mov_b32 s49, 0xaaaaaaaa')
    a(f'v_mov_b32 v{v}, s50')
    a(f'v_mov_b32 v{v+1}, s51')
    a(f'v_cndmask_b32 v{v}, v{v}, v{v+1}, s[48:49]')

def comb_q(a):
    a('v_and_b32 v6, 15, v1')
    a('s_lshl_b32 s43, s3, 4')
    a('v_add_u32 v6, s43, v6')
    a('v_min_u32 v6, 95, v6')
    a('s_mul_i32 s44, s2, 96')
    a('v_add_u32 v6, s44, v6')
    a('v_lshlrev_b32 v6, 1, v6')
    a(f'global_load_ushort v7, v6, {SQ}')

def comb_setup(a, withq=True):
    if withq: comb_q(a)
    a('v_lshl_add_u32 v29, v16, 3, v28')
    a('v_mul_u32_u24 v29, 192, v29')
    a('v_lshl_add_u32 v29, v19, 3, v29')
    a('s_lshl_b32 s45, s3, 5')
    a(f'v_add_u32 v14, s45, v29')
    a('v_and_b32 v28, 15, v1')
    a('v_mul_u32_u24 v15, 384, v16')
    a('v_lshl_add_u32 v15, v28, 4, v15')
    a('s_mul_i32 s45, s3, 1536')
    a(f's_add_u32 s45, s45, {FIN}')
    a(f'v_add_u32 v15, s45, v15')
    a('v_and_b32 v29, 7, v1')
    a('v_lshlrev_b32 v8, 2, v29')
    a('s_mov_b32 s45, 0x75316240')
    a('v_bfe_u32 v8, s45, v8, 4')
    a('v_add_u32 v8, 48, v8')
    a('v_cmp_lt_u32 vcc, 7, v28')
    a('v_lshlrev_b32 v17, 6, v16')
    a('v_cndmask_b32 v8, v29, v8, vcc')
    a('v_lshl_add_u32 v8, v8, 3, v17')
    a(f'v_add_u32 v8, {FIN}, v8')
    a('s_lshl_b32 s45, s3, 8')
    a(f's_add_u32 s45, s45, {CTX}')
    a('v_lshlrev_b32 v9, 2, v28')
    a('v_mad_u32_u24 v9, v16, 48, v9')
    a('v_mov_b32 v29, 192')
    a('v_cmp_lt_u32 vcc, 11, v28')
    a('v_lshlrev_b32 v10, 4, v16')
    a('v_add_u32 v10, s45, v10')
    a('v_cndmask_b32 v9, v9, v29, vcc')
    a('v_add_u32 v9, s45, v9')

def gen_slow_combine(a):
    D, ACC, T = 32, 20, 28
    MA, MW = 64, 96
    a('Z_comb:')
    a('v_lshlrev_b32 v2, 4, v1')
    a('s_lshl_b32 s40, s2, 16')
    a('s_lshl_b32 s41, s3, 13')
    a('s_add_u32 s40, s40, s41')
    a('s_add_u32 s41, s40, 4096')
    a('v_lshrrev_b32 v16, 4, v1')
    a('v_bfe_u32 v28, v1, 2, 2')
    a('v_and_b32 v19, 3, v1')
    a('v_lshlrev_b32 v3, 11, v28')
    a('v_lshl_add_u32 v4, v16, 3, v3')
    a('v_lshl_add_u32 v3, v16, 9, v3')
    a('v_lshl_add_u32 v3, v19, 7, v3')
    a(f's_lshl_b32 s42, s2, 13\ns_add_u32 s42, s42, {MREC}')
    a(f's_lshl_b32 s52, s3, 8\ns_add_u32 s52, s52, s42')
    comb_setup(a)
    comb_tag(a, 12)
    for i in range(8): a(f'v_mov_b32 v{ACC+i}, 0')
    a('s_branch Z_poll')
    a('Z_again:')
    a('s_sleep 4')
    a('Z_poll:')
    for i in range(8): a(f'buffer_load_dwordx4 {vr(D+4*i,4)}, v2, {RWS}, {"s40" if i<4 else "s41"} offen offset:{1024*(i%4)} sc1')
    for i in range(8): a(f'buffer_load_dwordx4 {vr(MA+4*i,4)}, v3, {RWS}, s42 offen offset:{16*i} sc1')
    for i in range(8): a(f'buffer_load_dwordx2 {vr(MW+2*i,2)}, v4, {RWS}, s52 offen offset:{32*i} sc1')
    a('s_waitcnt vmcnt(0)')
    a(f'v_mov_b32 v{T}, 0')
    for i in range(8):
        a(f'v_xor_b32 v{T+1}, v12, v{D+4*i+3}')
        a(f'v_and_b32 v{T+1}, 0xffff, v{T+1}')
        a(f'v_or_b32 v{T}, v{T}, v{T+1}')
    for t in [MA+2*i+1 for i in range(16)] + [MW+2*i+1 for i in range(8)]:
        a(f'v_xor_b32 v{T+1}, s47, v{t}')
        a(f'v_or_b32 v{T}, v{T}, v{T+1}')
    a(f'v_cmp_ne_u32 vcc, 0, v{T}')
    a('s_nop 4')
    a('s_cbranch_vccnz Z_again')
    M = MA
    for i in range(1, 16): a(f'v_max_f32 v{M}, v{M}, v{MA+2*i}')
    a('s_nop 1')
    a(f'v_mov_b32_dpp v{M+1}, v{M} quad_perm:[1,0,3,2] row_mask:0xf bank_mask:0xf')
    a(f'v_max_f32 v{M}, v{M}, v{M+1}')
    a('s_nop 1')
    a(f'v_mov_b32_dpp v{M+1}, v{M} quad_perm:[2,3,0,1] row_mask:0xf bank_mask:0xf')
    a(f'v_max_f32 v{M}, v{M}, v{M+1}')
    def allrows(r, op):
        for sw in ('v_permlane16_swap_b32', 'v_permlane32_swap_b32'):
            a(f'v_mov_b32 v{T}, v{r}')
            a('s_nop 1')
            a(f'{sw} v{r}, v{T}')
            a('s_nop 1')
            a(f'{op} v{r}, v{r}, v{T}')
    allrows(M, 'v_max_f32')
    a('s_mov_b32 s46, 0xffff0000')
    for i in range(8):
        a(f'v_sub_f32 v{MW+2*i}, v{MW+2*i}, v{M}')
        a(f'v_exp_f32 v{MW+2*i}, v{MW+2*i}')
        a('s_nop 1')
        for j in range(4):
            a(f'v_lshlrev_b32 v{T}, 16, v{D+4*i+j}')
            a(f'v_and_b32 v{T+1}, s46, v{D+4*i+j}')
            if j < 3: a(f'v_fmac_f32 v{ACC+2*j}, v{T}, v{MW+2*i}')
            a(f'v_fmac_f32 v{ACC+2*j+1}, v{T+1}, v{MW+2*i}')
    for j in range(8): allrows(ACC+j, 'v_add_f32')
    a('v_cmp_eq_u32 vcc, 0, v16')
    a('s_nop 1')
    for j in range(4): a(f'v_cndmask_b32 v{ACC+j}, v{ACC+4+j}, v{ACC+j}, vcc')
    a('s_nop 1')
    a('s_branch K_red')

def gen_combine(a, cfg):
    D, ACC, T = 128, 20, 28
    NS = 9
    a('L_comb:')
    if cfg.trp: a('s_branch L_exit')
    a('v_lshlrev_b32 v2, 4, v1')
    a('s_lshl_b32 s40, s2, 16')
    a('s_lshl_b32 s41, s3, 13')
    a('s_add_u32 s40, s40, s41')
    a('s_add_u32 s41, s40, 4096')
    def load(i):
        a(f'buffer_load_dwordx4 {vr(D+4*i,4)}, v2, {RWS}, {"s40" if i<4 else "s41"} offen offset:{1024*(i%4)} sc1' + (' nt' if cfg.pollnt else ''))
    PM = lambda i: f's[{6+2*i}:{7+2*i}]'
    SEL = 24
    stamp(a, cfg, 11)
    if cfg.ktrace:
        for j in list(range(1, 8)) + [12]: a(f's_mov_b64 s[{STAMP0+2*j}:{STAMP0+2*j+1}], 0')
    if cfg.roll or cfg.dyn: comb_q(a)
    for i in range(8): load(i)
    a('v_lshrrev_b32 v16, 4, v1')
    a('v_bfe_u32 v28, v1, 2, 2')
    a('v_and_b32 v19, 3, v1')
    comb_setup(a, not (cfg.roll or cfg.dyn))
    comb_tag(a, 12)
    a('v_and_b32 v29, 1, v1')
    a('v_lshlrev_b32 v29, 4, v29')
    a('v_mov_b32 v17, 0x3f80')
    a('v_lshlrev_b32 v29, v29, v17')
    a('v_lshrrev_b32 v28, 1, v28')
    for r in range(4):
        a(f'v_cmp_eq_u32 vcc, {r}, v28')
        a(f'v_cndmask_b32 v{SEL+r}, 0, v29, vcc')
    if cfg.dyn:
        K = cfg.dyn
        J = lambda k: f's{6+k}'
        for i in range(4): a(f'v_mov_b32 v{ACC+i}, 0')
        a('s_mov_b32 s42, 0xff')
        a('s_mov_b32 s43, 7')
        def pick(k):
            a('s_lshl_b32 s44, -2, s43')
            a('s_and_b32 s44, s44, s42')
            a('s_cselect_b32 s44, s44, s42')
            a('s_ff1_i32_b32 s43, s44')
            a('s_lshl_b32 s44, s43, 10')
            a('s_add_u32 s44, s44, s40')
            a(f's_mov_b32 {J(k)}, s43')
            a(f'buffer_load_dwordx4 {vr(D+4*k,4)}, v2, {RWS}, s44 offen sc1')
        for i in range(8):
            a(f's_waitcnt vmcnt({7-i+min(i,K)})')
            if i == 0: stamp(a, cfg, 12)
            a(f'v_cmp_ne_u16 vcc, v12, v{D+4*i+3}')
            a(f's_cbranch_vccnz K_f{i}')
            a(f'{MF16} {vr(ACC,4)}, {vr(SEL,4)}, {vr(D+4*i,4)}, {vr(ACC,4)}')
            a(f's_bitset0_b32 s42, {i}')
            if i == 7:
                a('s_cmp_eq_u32 s42, 0')
                a('s_cbranch_scc1 K_red0')
            a(f'K_f{i}:')
            if i < K: pick(i)
        a('K_chk:')
        for k in range(K):
            a(f's_waitcnt vmcnt({K-1})')
            if cfg.ktrace and k == 0:
                a('s_waitcnt lgkmcnt(0)')
                for j in range(1, 7): a(f's_mov_b64 s[{STAMP0+2*j}:{STAMP0+2*j+1}], s[{STAMP0+2*j+2}:{STAMP0+2*j+3}]')
                a(f's_mov_b64 s[{STAMP0+14}:{STAMP0+15}], s[{STAMP0+24}:{STAMP0+25}]')
                stamp(a, cfg, 12)
            a(f'v_cmp_ne_u16 vcc, v12, v{D+4*k+3}')
            a(f's_cbranch_vccnz K_n{k}')
            a(f's_bitcmp0_b32 s42, {J(k)}')
            a(f's_cbranch_scc1 K_n{k}')
            a(f'{MF16} {vr(ACC,4)}, {vr(SEL,4)}, {vr(D+4*k,4)}, {vr(ACC,4)}')
            a(f's_bitset0_b32 s42, {J(k)}')
            a('s_cmp_eq_u32 s42, 0')
            a('s_cbranch_scc1 K_red0')
            a(f'K_n{k}:')
            pick(k)
        a('s_branch K_chk')
        a('K_red0:')
        a('s_nop 4')
    elif cfg.roll:
        for i in range(4): a(f'v_mov_b32 v{ACC+i}, 0')
        a('s_mov_b32 s42, 0xff')
        a('K_chk:')
        for i in range(8):
            a('s_waitcnt vmcnt(7)')
            if cfg.ktrace and i == 0:
                a('s_waitcnt lgkmcnt(0)')
                for j in range(1, 7): a(f's_mov_b64 s[{STAMP0+2*j}:{STAMP0+2*j+1}], s[{STAMP0+2*j+2}:{STAMP0+2*j+3}]')
                a(f's_mov_b64 s[{STAMP0+14}:{STAMP0+15}], s[{STAMP0+24}:{STAMP0+25}]')
            if i == 0: stamp(a, cfg, 12)
            a(f'v_cmp_ne_u16 vcc, v12, v{D+4*i+3}')
            a('s_cmp_lg_u64 vcc, 0')
            a('s_cselect_b64 exec, -1, 0')
            load(i)
            a('s_mov_b64 exec, -1')
            a(f's_cbranch_scc1 K_n{i}')
            a(f's_bitcmp0_b32 s42, {i}')
            a(f's_cbranch_scc1 K_n{i}')
            a(f'{MF16} {vr(ACC,4)}, {vr(SEL,4)}, {vr(D+4*i,4)}, {vr(ACC,4)}')
            a(f's_bitset0_b32 s42, {i}')
            a('s_cmp_eq_u32 s42, 0')
            a('s_cbranch_scc1 K_red0')
            a(f'K_n{i}:')
        a('s_branch K_chk')
        a('K_red0:')
        a('s_nop 4')
    else:
        a('K_chk:')
        a('s_waitcnt vmcnt(0)')
        if cfg.ktrace:
            a('s_waitcnt lgkmcnt(0)')
            for j in range(1, 7): a(f's_mov_b64 s[{STAMP0+2*j}:{STAMP0+2*j+1}], s[{STAMP0+2*j+2}:{STAMP0+2*j+3}]')
            a(f's_mov_b64 s[{STAMP0+14}:{STAMP0+15}], s[{STAMP0+24}:{STAMP0+25}]')
        stamp(a, cfg, 12)
        for i in range(8):
            a(f'v_cmp_ne_u16 {PM(i)}, v12, v{D+4*i+3}')
            a(f'{MF16} {vr(ACC,4)}, {vr(SEL,4)}, {vr(D+4*i,4)}, {"0" if i == 0 else vr(ACC,4)}')
            if i == 2: a(f's_or_b64 s[50:51], {PM(0)}, {PM(1)}')
            if i > 2: a(f's_or_b64 s[50:51], s[50:51], {PM(i-1)}')
        a(f's_or_b64 s[50:51], s[50:51], {PM(7)}')
        a('s_cbranch_scc1 K_retry')
    a('K_red:')
    stamp(a, cfg, 13)
    a(f'ds_write_b128 v15, {vr(ACC,4)}')
    Bq, C = 40, 56
    a('s_waitcnt lgkmcnt(0)')
    a('s_barrier')
    if cfg.fine: stamp(a, cfg, 15)
    a('s_cmp_ge_u32 s3, 6')
    a('s_cbranch_scc1 L_exit6')
    for k in range(4): a(f'ds_read2st64_b64 {vr(C+4*k,4)}, v8 offset0:{6*k} offset1:{6*k+3}')
    for s in range(3):
        for sec in range(2):
            a(f'ds_read_b64_tr_b16 {vr(Bq+4*s+2*sec,2)}, v14 offset:{s*6144+sec*768}')
    a('v_lshlrev_b32 v7, 16, v7')
    a('s_waitcnt lgkmcnt(8)')
    for i in range(4): a(f'v_add_f32 v{C+i}, v{C+i}, v{C+4+i}')
    a('s_waitcnt lgkmcnt(6)')
    for i in range(4): a(f'v_add_f32 v{C+8+i}, v{C+8+i}, v{C+12+i}')
    for i in (0, 2, 1, 3): a(f'v_add_f32 v{C+i}, v{C+i}, v{C+8+i}')
    a(f'v_add_f32 v{C}, v{C}, v{C+2}')
    a(f'v_add_f32 v{C+1}, v{C+1}, v{C+3}')
    a(f'v_add_f32_dpp v{C+2}, v{C+1}, v{C+1} quad_perm:[1,0,3,2] row_mask:0xf bank_mask:0xf')
    a(f'v_add_f32_dpp v{C+2}, v{C+2}, v{C+2} quad_perm:[2,3,0,1] row_mask:0xf bank_mask:0xf')
    a(f'v_mov_b32_dpp v{C+2}, v{C+2} row_newbcast:12 row_mask:0xf bank_mask:0xf')
    a(f'v_rcp_f32 v{C+2}, v{C+2}')
    a(f'v_mul_f32 v{C}, v{C}, v{C+2}')
    a(f'v_mul_f32 v{C+1}, v{C+1}, v{C+2}')
    a(f'v_cvt_pk_bf16_f32 v{C}, v{C}, v{C+1}')
    a(f'ds_write_b32 v9, v{C}')
    for s in range(3): a(f'ds_read_b128 {vr(C+4+4*s,4)}, v10 offset:{64*s}')
    for s in range(3):
        c = '0' if s == 0 else 'v[88:91]'
        a(f's_waitcnt lgkmcnt({2-s})')
        a(f'{MF16} v[88:91], {vr(C+4+4*s,4)}, {vr(Bq+4*s,4)}, {c}')
    a('v_cvt_pk_bf16_f32 v88, v88, v88')
    a('v_and_b32 v88, 0xffff0000, v88')
    a('v_add_f32 v88, v88, v7')
    a('v_cvt_pk_bf16_f32 v88, v88, v88')
    a('s_mov_b64 exec, 0xffff')
    a('s_waitcnt vmcnt(0)')
    a(f'global_store_short v6, v88, {SOUT}')
    a('s_mov_b64 exec, -1')
    stamp(a, cfg, 14)
    if cfg.diag:
        a('s_memrealtime s[98:99]')
        a('s_waitcnt lgkmcnt(0)')
        a('v_mov_b32 v20, s98\nv_mov_b32 v21, 36')
        a('s_mov_b64 exec, 1')
        a(f'global_atomic_umax v21, v20, {SDBG}')
        a('s_mov_b64 exec, -1')
    a('L_exit:')
    if cfg.diag:
        a('s_cmp_eq_u32 s3, 4')
        a('s_cbranch_scc0 L_end')
        a('s_memrealtime s[98:99]')
        a('s_getreg_b32 s50, hwreg(HW_REG_XCC_ID, 0, 4)')
        a('s_and_b32 s50, s50, 7')
        a('s_lshl_b32 s50, s50, 2')
        a('s_add_u32 s50, s50, 4')
        a('s_waitcnt lgkmcnt(0)')
        a('v_mov_b32 v20, s96\nv_mov_b32 v21, s50\nv_mov_b32 v22, s98\nv_mov_b32 v23, 40')
        a('s_mov_b64 exec, 1')
        a(f'global_store_dword v21, v20, {SDBG}')
        a('s_cmp_lt_u32 s2, 16')
        a('s_cbranch_scc1 L_end')
        a(f'global_atomic_umax v23, v22, {SDBG}')
        a('s_mov_b64 exec, -1')
    stamp_flush(a, cfg)
    a('L_end:')
    a('s_endpgm')
    a('L_exit6:')
    a('s_waitcnt vmcnt(0)')
    a('s_branch L_exit')
    if cfg.roll or cfg.dyn: return
    a('K_retry:')
    if cfg.ksleep: a(f's_sleep {cfg.ksleep}')
    for i in range(8):
        a(f's_cmp_lg_u64 {PM(i)}, 0')
        a('s_cselect_b64 exec, -1, 0')
        load(i)
    a('s_mov_b64 exec, -1')
    a('s_branch K_chk')

def build(cfg):
    a = Asm()
    a.raw(f'; @launch grid=(256,1,1) block=(512,1,1) lds={LDS_BYTES}')
    a.raw('.amdgcn_target "amdgcn-amd-amdhsa--gfx950"')
    a.raw('.text')
    a.raw(f'.globl {KNAME}'); a.raw('.p2align 8'); a.raw(f'.type {KNAME},@function'); a.raw(f'{KNAME}:')
    gen_entry(a, cfg)
    gen_producer(a, cfg)
    gen_consumer(a, cfg)
    gen_combine(a, cfg)
    a.raw('L_codeend:')
    cons_main(a, cfg, True)
    gen_slow_combine(a)
    txt = a.finish(verbose=True)
    txt = txt.replace('    ; @launch', '; @launch')
    txt += f'''.section .rodata,"a"
.p2align 6
.amdhsa_kernel {KNAME}
  .amdhsa_next_free_vgpr 256
  .amdhsa_next_free_sgpr 100
  .amdhsa_accum_offset 256
  .amdhsa_group_segment_fixed_size 0
  .amdhsa_kernarg_size 96
  .amdhsa_user_sgpr_count 2
  .amdhsa_user_sgpr_kernarg_segment_ptr 1
  .amdhsa_system_sgpr_workgroup_id_x 1
.end_amdhsa_kernel
'''
    return txt

if __name__ == '__main__':
    cfg = Cfg()
    out = sys.argv[1]
    for o in sys.argv[2:]:
        if '=' in o:
            k, v = o.split('='); setattr(cfg, k, int(v))
        else: setattr(cfg, o, True)
    open(out, 'w').write(build(cfg))
```

```python
from asmlib import autowait
import struct
def f32(x): return '0x%08x' % struct.unpack('<I', struct.pack('<f', x))[0]
def vr(b, n=1): return f'v{b}' if n == 1 else f'v[{b}:{b+n-1}]'
MF32 = 'v_mfma_f32_32x32x16_bf16'
MF16 = 'v_mfma_f32_16x16x32_bf16'

class C:
    CA0, CA1, CT0, CT1 = 4, 5, 6, 7
    AP, U, LA, OP = 16, 40, 88, 92
    KA = [96, 160]; KT = [120, 96]; S = [144, 184]; P = [144, 184]
    WV = 200
    TB = 12288
    ADV = True

def ka(x, s): return f'ds_read_b128 {vr(C.KA[x]+4*s,4)}, v{C.CA1 if s&1 else C.CA0} offset:{x*C.TB+64*(s>>1)}'
def kt(x, ks, t): return [f'ds_read_b64_tr_b16 {vr(C.KT[x]+(ks*3+t)*4+2*sec,2)}, v{C.CT1 if sec else C.CT0} offset:{x*C.TB+64*t+3072*ks}' for sec in range(2)]
def sm(x, s): return f'{MF32} {vr(C.S[x],16)}, {vr(C.KA[x]+4*s,4)}, {vr(C.AP+4*s,4)}, {"0" if s == 0 else vr(C.S[x],16)}'
def pv(x, ks, t):
    if t == 3: return f'{MF16} {vr(C.LA,4)}, {vr(C.OP,4)}, {vr(C.P[x]+4*ks,4)}, {vr(C.LA,4)}'
    return f'{MF32} {vr(C.U+16*t,16)}, {vr(C.KT[x]+(ks*3+t)*4,4)}, {vr(C.P[x]+4*ks,4)}, {vr(C.U+16*t,16)}'
def ex(x, i): return f'v_exp_f32 v{C.S[x]+i}, v{C.S[x]+i}'
def cv(x, i): return f'v_cvt_pk_bf16_f32 v{C.P[x]+i}, v{C.S[x]+2*i}, v{C.S[x]+2*i+1}'
def adv(): return [] if not C.ADV else [f'v_add_u32 v{r}, {4*6144}, v{r}' for r in (C.CA0, C.CA1, C.CT0, C.CT1)]

def flat(l):
    o = []
    for x in l:
        if isinstance(x, (list, tuple)): o += flat(x)
        else: o.append(x)
    return o

def cons2(var=0):
    E = lambda x, a, b: [ex(x, i) for i in range(a, b)]
    V = lambda x, a, b: [cv(x, i) for i in range(a, b)]
    if var == 0:
        L = [[ka(0, s) for s in range(6)],
             sm(0,0), ka(1,0), ka(1,1), sm(0,1), ka(1,2), ka(1,3), sm(0,2), ka(1,4), ka(1,5),
             sm(0,3), kt(0,0,0), sm(0,4), kt(0,0,1), sm(0,5), kt(0,0,2),
             sm(1,0), kt(0,1,0), kt(0,1,1), sm(1,1), E(0,0,3), sm(1,2), E(0,3,6), sm(1,3), E(0,6,8), V(0,0,2),
             sm(1,4), V(0,2,4), E(0,8,10), sm(1,5), kt(0,1,2), E(0,10,12),
             pv(0,0,0), E(0,12,15), pv(0,0,1), E(0,15,16), V(0,4,8), pv(0,0,2), kt(1,0,0), E(1,0,2), pv(0,0,3), E(1,2,3),
             pv(0,1,0), kt(1,0,1), E(1,3,5), pv(0,1,1), kt(1,0,2), E(1,5,7), pv(0,1,2), E(1,7,8), V(1,0,4), pv(0,1,3), kt(1,1,0),
             pv(1,0,0), kt(1,1,1), E(1,8,10), pv(1,0,1), kt(1,1,2), E(1,10,12), pv(1,0,2), E(1,12,15), pv(1,0,3), E(1,15,16), V(1,4,8), adv(),
             pv(1,1,0), pv(1,1,1), pv(1,1,2), pv(1,1,3)]
    elif var == 1:
        L = [[ka(0, s) for s in range(6)],
             sm(0,0), ka(1,0), sm(0,1), ka(1,1), ka(1,2), sm(0,2), ka(1,3), sm(0,3), ka(1,4), ka(1,5), sm(0,4), kt(0,0,0), sm(0,5), kt(0,0,1), kt(0,0,2),
             sm(1,0), kt(0,1,0), kt(0,1,1), kt(0,1,2), E(0,0,8), V(0,0,4), sm(1,1), E(0,8,11), sm(1,2), E(0,11,14), sm(1,3), E(0,14,16), V(0,4,6), sm(1,4), V(0,6,8), kt(1,0,0), sm(1,5), kt(1,0,1), kt(1,0,2),
             pv(0,0,0), kt(1,1,0), pv(0,0,1), E(1,0,3), pv(0,0,2), E(1,3,6), pv(0,0,3), E(1,6,7),
             pv(0,1,0), E(1,7,8), V(1,0,4), pv(0,1,1), E(1,8,11), pv(0,1,2), E(1,11,14), pv(0,1,3), kt(1,1,1),
             pv(1,0,0), E(1,14,16), kt(1,1,2), pv(1,0,1), V(1,4,8), pv(1,0,2), adv(), pv(1,0,3),
             pv(1,1,0), pv(1,1,1), pv(1,1,2), pv(1,1,3)]
    return autowait(flat(L))

def cons1(extra_pre=(), extra_mid=()):
    E = lambda x, a, b: [ex(x, i) for i in range(a, b)]
    V = lambda x, a, b: [cv(x, i) for i in range(a, b)]
    L = [[ka(0, s) for s in range(6)],
         sm(0,0), kt(0,0,0), sm(0,1), kt(0,0,1), sm(0,2), kt(0,0,2), sm(0,3), kt(0,1,0), sm(0,4), kt(0,1,1), sm(0,5), kt(0,1,2), list(extra_pre),
         E(0,0,8), V(0,0,4), pv(0,0,0), E(0,8,11), pv(0,0,1), E(0,11,14), pv(0,0,2), E(0,14,16), V(0,4,6), pv(0,0,3), V(0,6,8), list(extra_mid),
         pv(0,1,0), pv(0,1,1), pv(0,1,2), pv(0,1,3)]
    return autowait(flat(L))

def ka_regs(x, s): return {f'v{C.KA[x]+4*s+i}' for i in range(4)}
PEND6 = lambda: [ka_regs(0, s) for s in range(6)]

def tail_pf(x, advl, flag):
    k = lambda s: ka(0, s)
    if x == 1:
        return [advl, flag, k(0), k(1), k(2), pv(1,1,3), pv(1,1,0), k(3), pv(1,1,1), k(4), pv(1,1,2), k(5)]
    return [advl, flag, k(0), k(1), k(2), pv(0,1,3), k(3), pv(0,1,0), k(4), pv(0,1,1), k(5), pv(0,1,2)]

def cons2p(advl, flag, top=()):
    E = lambda x, a, b: [ex(x, i) for i in range(a, b)]
    V = lambda x, a, b: [cv(x, i) for i in range(a, b)]
    L = [sm(0,0), ka(1,0), ka(1,1), list(top), sm(0,1), ka(1,2), ka(1,3), sm(0,2), ka(1,4), ka(1,5),
         sm(0,3), kt(0,0,0), sm(0,4), kt(0,0,1), sm(0,5), kt(0,0,2),
         sm(1,0), kt(0,1,0), kt(0,1,1), sm(1,1), E(0,0,3), sm(1,2), E(0,3,6), sm(1,3), E(0,6,8), V(0,0,2),
         sm(1,4), V(0,2,4), E(0,8,10), sm(1,5), kt(0,1,2), E(0,10,12),
         pv(0,0,0), E(0,12,15), pv(0,0,1), E(0,15,16), V(0,4,8), pv(0,0,2), kt(1,0,0), E(1,0,2), pv(0,0,3), E(1,2,3),
         pv(0,1,0), kt(1,0,1), E(1,3,5), pv(0,1,1), kt(1,0,2), E(1,5,7), pv(0,1,2), E(1,7,8), V(1,0,4), pv(0,1,3), kt(1,1,0),
         pv(1,0,0), kt(1,1,1), E(1,8,10), pv(1,0,1), kt(1,1,2), E(1,10,12), pv(1,0,2), E(1,12,15), pv(1,0,3), E(1,15,16), V(1,4,8),
         's_waitcnt lgkmcnt(0)', tail_pf(1, advl, flag)]
    return autowait(flat(L), pending=PEND6(), pborn=-8)

def cons1p(advl, flag, fill=()):
    E = lambda x, a, b: [ex(x, i) for i in range(a, b)]
    V = lambda x, a, b: [cv(x, i) for i in range(a, b)]
    L = [sm(0,0), kt(0,0,0), sm(0,1), kt(0,0,1), sm(0,2), kt(0,0,2), sm(0,3), kt(0,1,0), sm(0,4), kt(0,1,1), sm(0,5), kt(0,1,2), list(fill),
         E(0,0,8), V(0,0,4), pv(0,0,0), E(0,8,11), pv(0,0,1), E(0,11,14), pv(0,0,2), E(0,14,16), V(0,4,6), pv(0,0,3), V(0,6,8),
         's_waitcnt lgkmcnt(0)', tail_pf(0, advl, flag)]
    return autowait(flat(L), pending=PEND6(), pborn=-8)

def cons1x(wv, pre=False, fill=()):
    E = lambda x, a, b: [ex(x, i) for i in range(a, b)]
    V = lambda x, a, b: [cv(x, i) for i in range(a, b)]
    wv = list(wv)
    def W(n):
        o = wv[:n]; del wv[:n]; return o
    def mix(l, n):
        o = []
        for x in l: o += [x] + W(n)
        return o
    L = [[] if pre else [ka(0, s) for s in range(6)],
         sm(0,0), kt(0,0,0), sm(0,1), kt(0,0,1), sm(0,2), kt(0,0,2), sm(0,3), kt(0,1,0), sm(0,4), kt(0,1,1), sm(0,5), kt(0,1,2), list(fill),
         E(0,0,8), V(0,0,4), 's_waitcnt lgkmcnt(0)', pv(0,0,0), mix(E(0,8,11), 2), pv(0,0,1), mix(E(0,11,14), 2), pv(0,0,2), E(0,14,16), V(0,4,6), pv(0,0,3), V(0,6,8),
         pv(0,1,3), pv(0,1,0), pv(0,1,1), pv(0,1,2)]
    assert not wv
    return autowait(flat(L), final=0, pending=PEND6() if pre else None, pborn=-8)

def cons2x(wv, tb, pre=False, fill=()):
    E = lambda x, a, b: [ex(x, i) for i in range(a, b)]
    V = lambda x, a, b: [cv(x, i) for i in range(a, b)]
    wv = list(wv)
    def W(n):
        o = wv[:n]; del wv[:n]; return o
    sv = C.TB; C.TB = tb
    fill = list(fill); h = (len(fill) + 2) // 3
    L = [[] if pre else [ka(0, s) for s in range(6)],
         sm(0,0), ka(1,0), ka(1,1), sm(0,1), ka(1,2), ka(1,3), sm(0,2), ka(1,4), ka(1,5),
         sm(0,3), kt(0,0,0), fill[:h], sm(0,4), kt(0,0,1), fill[h:2*h], sm(0,5), kt(0,0,2), fill[2*h:],
         sm(1,0), kt(0,1,0), kt(0,1,1), sm(1,1), E(0,0,3), sm(1,2), E(0,3,6), sm(1,3), E(0,6,8), V(0,0,2),
         sm(1,4), V(0,2,4), E(0,8,10), sm(1,5), kt(0,1,2), E(0,10,12),
         pv(0,0,0), W(2), E(0,12,15), pv(0,0,1), W(2), E(0,15,16), V(0,4,8), pv(0,0,2), kt(1,0,0), E(1,0,2), pv(0,0,3), W(2), E(1,2,3),
         pv(0,1,0), kt(1,0,1), E(1,3,5), pv(0,1,1), kt(1,0,2), E(1,5,7), pv(0,1,2), W(2), E(1,7,8), V(1,0,4), pv(0,1,3), kt(1,1,0),
         pv(1,0,0), kt(1,1,1), E(1,8,10), pv(1,0,1), kt(1,1,2), E(1,10,12), pv(1,0,2), W(2), E(1,12,15), pv(1,0,3), W(2), E(1,15,16), V(1,4,8),
         pv(1,1,3), pv(1,1,0), pv(1,1,1), pv(1,1,2)]
    C.TB = sv
    assert not wv
    return autowait(flat(L), final=0, pending=PEND6() if pre else None, pborn=-8)

def cons1w(wv, var=0):
    E = lambda x, a, b: [ex(x, i) for i in range(a, b)]
    V = lambda x, a, b: [cv(x, i) for i in range(a, b)]
    wv = list(wv)
    def W(n):
        o = wv[:n]; del wv[:n]; return o
    def mix(l, n):
        o = []
        for x in l: o += [x] + W(n)
        return o
    head = [[ka(0, s) for s in range(6)],
            sm(0,0), kt(0,0,0), sm(0,1), kt(0,0,1), sm(0,2), kt(0,0,2), sm(0,3), kt(0,1,0), sm(0,4), kt(0,1,1), sm(0,5), kt(0,1,2)]
    if var == 0:
        if len(wv) == 12:
            L = head + [E(0,0,8), V(0,0,4), 's_waitcnt lgkmcnt(0)', pv(0,0,0), mix(E(0,8,11), 1), pv(0,0,1), mix(E(0,11,14), 1), pv(0,0,2), mix(E(0,14,16), 1), V(0,4,6), pv(0,0,3), V(0,6,8),
                        pv(0,1,0), W(2), pv(0,1,1), W(2), pv(0,1,2), pv(0,1,3)]
        else:
            L = head + [W(4), 's_waitcnt lgkmcnt(6)', mix(E(0,0,8), 1), V(0,0,4), 's_waitcnt lgkmcnt(6)', pv(0,0,0), mix(E(0,8,11), 1), pv(0,0,1), mix(E(0,11,14), 1), pv(0,0,2), mix(E(0,14,16), 1), V(0,4,6), pv(0,0,3), V(0,6,8),
                        's_waitcnt lgkmcnt(6)', pv(0,1,0), W(2), pv(0,1,1), W(2), pv(0,1,2), pv(0,1,3)]
    elif var == 1:
        L = head + [E(0,0,8), V(0,0,4), 's_waitcnt lgkmcnt(0)', pv(0,0,0), mix(E(0,8,11), 2), pv(0,0,1), mix(E(0,11,14), 2), pv(0,0,2), 's_waitcnt lgkmcnt(8)', mix(E(0,14,16), 2), V(0,4,6), pv(0,0,3), V(0,6,8),
                    's_waitcnt lgkmcnt(6)', pv(0,1,0), W(4), pv(0,1,1), W(4), pv(0,1,2), pv(0,1,3)]
    assert not wv
    return autowait(flat(L), final=0)

def cons2w(wv, tb):
    E = lambda x, a, b: [ex(x, i) for i in range(a, b)]
    V = lambda x, a, b: [cv(x, i) for i in range(a, b)]
    wv = list(wv)
    def W(n):
        o = wv[:n]; del wv[:n]; return o
    sv = C.TB; C.TB = tb
    L = [[ka(0, s) for s in range(6)],
         sm(0,0), ka(1,0), ka(1,1), sm(0,1), ka(1,2), ka(1,3), sm(0,2), ka(1,4), ka(1,5),
         sm(0,3), kt(0,0,0), sm(0,4), kt(0,0,1), sm(0,5), kt(0,0,2),
         sm(1,0), kt(0,1,0), kt(0,1,1), sm(1,1), E(0,0,3), sm(1,2), E(0,3,6), sm(1,3), E(0,6,8), V(0,0,2),
         sm(1,4), V(0,2,4), E(0,8,10), sm(1,5), kt(0,1,2), E(0,10,12),
         pv(0,0,0), E(0,12,15), pv(0,0,1), E(0,15,16), V(0,4,8), pv(0,0,2), kt(1,0,0), E(1,0,2), pv(0,0,3), E(1,2,3),
         pv(0,1,0), kt(1,0,1), E(1,3,5), pv(0,1,1), kt(1,0,2), E(1,5,7), pv(0,1,2), E(1,7,8), V(1,0,4), pv(0,1,3), kt(1,1,0),
         pv(1,0,0), kt(1,1,1), E(1,8,10), pv(1,0,1), kt(1,1,2), E(1,10,12), pv(1,0,2), W(2), E(1,12,15), pv(1,0,3), W(2), E(1,15,16), V(1,4,8),
         pv(1,1,0), W(4), pv(1,1,1), W(4), pv(1,1,2), pv(1,1,3)]
    C.TB = sv
    assert not wv
    return autowait(flat(L), final=0)

class P:
    RA0, RA1 = 5, 6
    WL = 16
    LT = 88
    X, F = 136, 184
    ID, OP, SM, SL, T = 208, 216, 220, 224, 228

def p_reads():
    return [f'ds_read_b128 {vr(P.F+4*s,4)}, v{P.RA1 if s&1 else P.RA0} offset:{64*(s>>1)}' for s in (0, 2, 4, 1, 3, 5)]

def p_head(g1=(), g2=(), hiprio=None, reads=True):
    L = []
    if hiprio is not None: L.append(f's_setprio {hiprio}')
    if reads: L += p_reads()
    L += list(g1)
    g2 = list(g2)
    for t in range(3):
        L.append(f's_waitcnt lgkmcnt({5-t})')
        L.append(f'{MF32} {vr(P.X+16*t,16)}, {vr(P.ID,4)}, {vr(P.F+8*t,4)}, {vr(P.LT+16*t,16)}')
        if g2:
            L += g2[:3] if t == 0 else g2[2+t:3+t]
    return L

def p_tail(var=0, lowprio=None):
    X, F, T, SM, SL = P.X, P.F, P.T, P.SM, P.SL
    Q0, Q1 = T, T+1
    L = []; a = L.append
    def identb(t): a(f'{MF32} {vr(X+16*t,16)}, {vr(P.ID+4,4)}, {vr(F+8*t+4,4)}, {vr(X+16*t,16)}')
    def summ(s): a(f'{MF16} {vr(SM,4)}, {vr(P.OP,4)}, {vr(F+4*s,4)}, {vr(SL,4) if s == 0 else vr(SM,4)}')
    sqi = [0]
    def sq(n):
        for _ in range(n):
            i = sqi[0]; sqi[0] += 1
            q = Q0 if i % 2 == 0 else Q1
            a(f'v_mul_f32 v{q}, v{X+i}, v{X+i}' if i < 2 else f'v_fmac_f32 v{q}, v{X+i}, v{X+i}')
    a('s_waitcnt lgkmcnt(0)')
    identb(0); identb(1); summ(0); sq(2); identb(2); sq(6)
    for s in range(1, 6):
        summ(s)
        if s == 5 and lowprio is not None: a(f's_setprio {lowprio}')
        sq(2)
    sq(48 - sqi[0])
    a(f'v_add_f32 v{Q0}, v{Q0}, v{Q1}')
    a(f'v_mul_f32 v{SM}, {f32(1/96)}, v{SM}')
    a(f'v_mov_b32 v{Q1}, v{Q0}')
    a(f'v_mul_f32 v{SM+1}, v{SM}, v{SM}')
    a(f'v_subrev_f32 v{SM+1}, {f32(1e-5)}, v{SM+1}')
    a(f'v_permlane32_swap_b32 v{Q0}, v{Q1}')
    a(f'v_add_f32 v{Q0}, v{Q0}, v{Q1}')
    a(f'v_fma_f32 v{Q0}, v{Q0}, s62, -v{SM+1}')
    a(f'v_max_f32 v{Q0}, {f32(1e-5)}, v{Q0}')
    a(f'v_rsq_f32 v{Q0}, v{Q0}')
    a('s_nop 0')
    a(f'v_mul_f32 v{Q1}, -v{SM}, v{Q0}')
    for s in range(6):
        for i in range(8): a(f'v_fma_f32 v{X+8*s+i}, v{X+8*s+i}, v{Q0}, v{Q1}')
        for i in range(4): a(f'v_cvt_pk_bf16_f32 v{F+4*s+i}, v{X+8*s+2*i}, v{X+8*s+2*i+1}')
        if var == 1:
            a(f'ds_write_b64 v{P.RA1 if s&1 else P.RA0}, {vr(F+4*s,2)} offset:{64*(s>>1)}')
            a(f'ds_write_b64 v{P.RA1 if s&1 else P.RA0}, {vr(F+4*s+2,2)} offset:{64*(s>>1)+8}')
        else:
            a(f'ds_write_b128 v{P.RA1 if s&1 else P.RA0}, {vr(F+4*s,4)} offset:{64*(s>>1)}')
    a(f'v_add_u32 v{P.RA0}, {4*6144}, v{P.RA0}')
    a(f'v_add_u32 v{P.RA1}, {4*6144}, v{P.RA1}')
    a('s_waitcnt lgkmcnt(0)')
    return L


def p_tail_pk(lowprio=None, sqpk=True, nmpk=True, wr_end=False):
    X, F, T, SM, SL = P.X, P.F, P.T, P.SM, P.SL
    Q0, Q1 = T, T+1
    L = []; a = L.append
    def identb(t): a(f'{MF32} {vr(X+16*t,16)}, {vr(P.ID+4,4)}, {vr(F+8*t+4,4)}, {vr(X+16*t,16)}')
    def summ(s): a(f'{MF16} {vr(SM,4)}, {vr(P.OP,4)}, {vr(F+4*s,4)}, {vr(SL,4) if s == 0 else vr(SM,4)}')
    a('s_waitcnt lgkmcnt(0)')
    if sqpk:
        identb(0); identb(1); identb(2)
        for s in range(6): summ(s)
        if lowprio is not None: a(f's_setprio {lowprio}')
        for i in range(24):
            acc = T + 2*(i % 2)
            x = vr(X+2*i, 2)
            a(f'v_pk_mul_f32 {vr(acc,2)}, {x}, {x}' if i < 2 else f'v_pk_fma_f32 {vr(acc,2)}, {x}, {x}, {vr(acc,2)}')
        a(f'v_pk_add_f32 {vr(T,2)}, {vr(T,2)}, {vr(T+2,2)}')
    else:
        sqi = [0]
        def sq(n):
            for _ in range(n):
                i = sqi[0]; sqi[0] += 1
                q = Q0 if i % 2 == 0 else Q1
                a(f'v_mul_f32 v{q}, v{X+i}, v{X+i}' if i < 2 else f'v_fmac_f32 v{q}, v{X+i}, v{X+i}')
        identb(0); identb(1); summ(0); sq(2); identb(2); sq(6)
        for s in range(1, 6):
            summ(s)
            if s == 5 and lowprio is not None: a(f's_setprio {lowprio}')
            sq(2)
        sq(48 - sqi[0])
    a(f'v_add_f32 v{Q0}, v{Q0}, v{Q1}')
    a(f'v_mul_f32 v{SM}, {f32(1/96)}, v{SM}')
    a(f'v_mov_b32 v{Q1}, v{Q0}')
    a(f'v_mul_f32 v{SM+1}, v{SM}, v{SM}')
    a(f'v_subrev_f32 v{SM+1}, {f32(1e-5)}, v{SM+1}')
    a(f'v_permlane32_swap_b32 v{Q0}, v{Q1}')
    a(f'v_add_f32 v{Q0}, v{Q0}, v{Q1}')
    a(f'v_fma_f32 v{Q0}, v{Q0}, s62, -v{SM+1}')
    a(f'v_max_f32 v{Q0}, {f32(1e-5)}, v{Q0}')
    a(f'v_rsq_f32 v{Q0}, v{Q0}')
    a('s_nop 0')
    a(f'v_mul_f32 v{Q1}, -v{SM}, v{Q0}')
    if nmpk:
        for i in range(24):
            x = vr(X+2*i, 2)
            a(f'v_pk_fma_f32 {x}, {x}, {vr(Q0,2)}, {vr(Q0,2)} op_sel:[0,0,1] op_sel_hi:[1,0,1]')
    for s in range(6):
        if not nmpk:
            for i in range(8): a(f'v_fma_f32 v{X+8*s+i}, v{X+8*s+i}, v{Q0}, v{Q1}')
        for i in range(4): a(f'v_cvt_pk_bf16_f32 v{F+4*s+i}, v{X+8*s+2*i}, v{X+8*s+2*i+1}')
        a(f'ds_write_b128 v{P.RA1 if s&1 else P.RA0}, {vr(F+4*s,4)} offset:{64*(s>>1)}')
    a(f'v_add_u32 v{P.RA0}, {4*6144}, v{P.RA0}')
    a(f'v_add_u32 v{P.RA1}, {4*6144}, v{P.RA1}')
    a('s_waitcnt lgkmcnt(0)')
    return L
```

```python
import sys, math, struct
from asmlib import Asm, autowait
import blocks as B
from blocks import vr, f32, MF32, MF16, flat

KNAME = 'standalone__detection_seg_mask2former__vision_kernel'

HI = 0
WM = 12 * 6144
QS = 15 * 6144
WQ = 16 * 6144
LO = 110592 + 6144
WREG = LO + 27648
SCR = WREG + 18432
TOT = SCR
PF = SCR + 512
TKT = SCR + 528
CNT = SCR + 544
XCH = LO
XST = 6912
WO = 0
FIN = 20480
CTX = 32768
LDS_BYTES = SCR + 1024
assert LDS_BYTES <= 163840 and LO <= XCH and XCH + 4 * XST <= WREG
B.C.TB = 6144
LREC = 16 * 256 * 256
MREC = LREC
REC_BYTES = MREC + 16 * 4 * 256 * 8
BOUND = 80.0
THR = BOUND * BOUND / 96 / (1 + 2 ** -8) ** 2
STAMP_OFF = 4 << 20
FSW = sum(((((-(px >> 2)) & 3) ^ ((px >> 1) & 1)) << (2 * px)) for px in range(16))

class Cfg:
    stamps = False
    cyc = False
    repf = 0
    cvar = 0
    g0pos = 1
    fine = 0
    wvpos = 2
    h0pos = 1
    cpp = 0
    cmain = 0
    pp = 0
    deep = 1
    h1early = 0
    pwait = 1
    ksleep = 0
    r1late = 0
    pm = 2
    pv = 0
    pl = 2
    cearly = 0
    trp = 0
    trc = 0
    touch = 3
    t0pre = 0
    wkpos = 1
    dry = 0
    tokpos = -1
    wvr = 2
    ktrace = 0
    pollnt = 0
    roll = 0
    dyn = 5
    diag = 0
    early = 0
    tok2 = 1
    bist = 0
    mfirst = 1
    b2 = 0
    wvar = 0
    etr = 0
    xv = 0
    xd = 2
    fake = 0
    fsc = 0
    wsl = 0
    c2 = None
    c3 = None
    c4 = None

SQ, SHI, SLO, SWL, SWQ, SWK, SWV, SWO, SWM, SOUT, SDBG, SWS = [f's[{4+2*i}:{5+2*i}]' for i in range(12)]
RHI, RLO, RWS = 's[28:31]', 's[32:35]', 's[36:39]'
SF = 's63'
STAMP0 = 64

def TM(cfg): return 's_memtime' if cfg.cyc else 's_memrealtime'

def stamp(a, cfg, i, inner=False):
    if cfg.b2 and i in (11, 12, 13, 14, 15) : return
    if cfg.bist:
        import inspect
        src = inspect.stack()[1].code_context[0]
        if 'bist' not in src and i in (4, 5, 6, 7, 8, 11, 12, 13, 14) and inspect.stack()[1].function != 'script': return
    if cfg.trp and not inner and i != 0: return
    if inner and not cfg.trp: return
    if cfg.stamps: a(f"{'s_memtime' if cfg.cyc else 's_memrealtime'} s[{STAMP0+2*i}:{STAMP0+2*i+1}]")

def stamp_flush(a, cfg, tmpv=100):
    if not cfg.stamps: return
    a('s_cmp_eq_u32 s98, 0')
    a('s_cbranch_scc1 L_nosl')
    a('s_sleep 100')
    a('L_nosl:')
    a('s_waitcnt lgkmcnt(0)')
    a('s_lshl_b32 s61, s2, 3\ns_add_u32 s61, s61, s3')
    a(f's_lshl_b32 s62, s61, 7')
    a(f's_add_u32 s62, s62, {STAMP_OFF}')
    for i in range(32): a(f'v_mov_b32 v{tmpv+i}, s{STAMP0+i}')
    a(f'v_mov_b32 v{tmpv+32}, 0')
    a('s_mov_b64 exec, 1')
    a('s_mov_b32 s56, s26\ns_mov_b32 s57, s27\ns_mov_b32 s58, 0x1000000\ns_mov_b32 s59, 0x20000')
    for i in range(8):
        a(f'buffer_store_dwordx4 {vr(tmpv+4*i,4)}, v{tmpv+32}, s[56:59], s62 offen offset:{16*i}')
    a('s_mov_b64 exec, -1')

def dma_swz(a, dst, k, tmp):
    a(f'v_add_u32 v{tmp}, {64*k if isinstance(k,int) else k}, v1')
    a(f'v_mul_u32_u24 v{tmp}, 0xaaab, v{tmp}')
    a(f'v_lshrrev_b32 v{tmp}, 18, v{tmp}')
    a(f'v_and_b32 v{tmp}, 0x1e, v{tmp}')
    a(f'v_bfe_u32 v{tmp}, {SF}, v{tmp}, 2')
    a(f'v_xor_b32 v{tmp}, v{tmp}, v1')
    a(f'v_lshlrev_b32 v{dst}, 4, v{tmp}')

def dma_part(a, ptr, ldsbase, voff, spart):
    lo = int(ptr[2:ptr.index(':')])
    a(f's_add_u32 m0, {spart}, {ldsbase}')
    a(f's_add_u32 s50, s{lo}, 4096')
    for k in range(4): a(f'global_load_lds_dwordx4 v{voff}, {ptr} offset:{1024*k}')
    a(f's_addc_u32 s51, s{lo+1}, 0')
    a(f's_add_u32 m0, {spart}, {ldsbase+4096}')
    a('s_mov_b32 exec_hi, 0')
    a(f'global_load_lds_dwordx4 v{voff}, s[50:51]')
    a('s_mov_b32 exec_hi, -1')

def dma_extra(a, ptr, ldsbase, voff, sbase):
    lo = int(ptr[2:ptr.index(':')])
    a(f's_add_u32 s50, s{lo}, 4096')
    a(f's_addc_u32 s51, s{lo+1}, 0')
    a(f's_add_u32 m0, {sbase}, {ldsbase+4096}')
    a('s_nop 0')
    a(f'global_load_lds_dwordx4 v{voff}, s[50:51]')

def dma_main(a, ptr, ldsbase, voff, sbase):
    a(f's_add_u32 m0, {sbase}, {ldsbase}')
    a('s_nop 0')
    for k in range(4): a(f'global_load_lds_dwordx4 v{voff}, {ptr} offset:{1024*k}')

def arrive(a, which, va, vd, rtn=False):
    a(f'v_mov_b32 v{va}, {CNT + 4*which}')
    a(f'v_mov_b32 v{vd}, 1')
    a('s_mov_b64 exec, 1')
    a(f'ds_add_rtn_u32 v{vd}, v{va}, v{vd}' if rtn else f'ds_add_u32 v{va}, v{vd}')
    a('s_mov_b64 exec, -1')

def await_cnt(a, which, tag, va, vd, n=4, setaddr=True):
    if setaddr: a(f'v_mov_b32 v{va}, {CNT + 4*which}')
    a(f'{tag}:')
    a(f'ds_read_b32 v{vd}, v{va}')
    a('s_waitcnt lgkmcnt(0)')
    a(f'v_readfirstlane_b32 s50, v{vd}')
    a(f's_cmp_lt_u32 s50, {n}')
    a(f's_cbranch_scc1 {tag}')

def lds_sync(a, which, tag, va, vd, n=4):
    arrive(a, which, va, vd, rtn=True)
    a('s_waitcnt lgkmcnt(0)')
    a(f'v_readfirstlane_b32 s50, v{vd}')
    a(f's_cmp_ge_u32 s50, {n-1}')
    a(f's_cbranch_scc1 {tag}_ok')
    await_cnt(a, which, tag + '_spin', va, vd, n, setaddr=False)
    a(f'{tag}_ok:')

def code_prefetch(a, tag, vt, tidoff, sp='s[44:45]', start=KNAME):
    lo = int(sp[2:sp.index(':')])
    a(f's_getpc_b64 {sp}')
    a(f'{tag}:')
    a(f's_add_u32 s{lo}, s{lo}, {start}-{tag}')
    a(f's_addc_u32 s{lo+1}, s{lo+1}, {"-1" if start == KNAME else "0"}')
    a(f'v_add_u32 v{vt}, {tidoff}, v0')
    a(f'v_lshlrev_b32 v{vt}, 7, v{vt}')
    a(f'v_min_u32 v{vt}, L_codeend-{start}-4, v{vt}')
    a(f'global_load_dword v{vt if vt == 0 else vt+1}, v{vt}, {sp}')

def nonce_slow(a, tag, back, v):
    a(f'{tag}:')
    a('s_memrealtime s[50:51]')
    a('s_waitcnt lgkmcnt(0)')
    a('s_or_b32 s47, s50, 1')
    a(f'v_mov_b32 v{v}, s47\nv_mov_b32 v{v+1}, 0\nv_mov_b32 v{v+2}, 0')
    a('s_mov_b64 exec, 1')
    a(f'global_atomic_cmpswap v{v}, v{v+2}, {vr(v,2)}, {SDBG} sc0 sc1')
    a('s_mov_b64 exec, -1')
    a('s_waitcnt vmcnt(0)')
    a(f'v_readfirstlane_b32 s50, v{v}')
    a('s_cmp_eq_u32 s50, 0')
    a('s_cselect_b32 s47, s47, s50')
    a(f's_branch {back}')

def gen_entry(a, cfg):
    a('s_cmp_ge_u32 s2, 256')
    a('s_cbranch_scc1 L_end')
    if cfg.stamps:
        for i in range(32): a(f's_mov_b32 s{STAMP0+i}, 0')
        a('s_mov_b32 s98, 1')
    stamp(a, cfg, 0)
    if cfg.diag: a('s_memrealtime s[96:97]')
    a('s_load_dwordx16 s[4:19], s[0:1], 0')
    a('s_load_dwordx8 s[20:27], s[0:1], 64')
    a('v_lshrrev_b32 v2, 6, v0')
    a('v_and_b32 v1, 63, v0')
    a('v_readfirstlane_b32 s3, v2')
    a(f's_mov_b32 {SF}, {FSW:#x}')
    a('s_mul_i32 s57, s2, 9')
    a(f's_mov_b32 s62, {f32(1/96)}')
    a('s_cmp_ge_u32 s3, 4')
    a('s_cbranch_scc1 L_cons')

def gen_producer(a, cfg):
    W0, W1, W2, RA0, RA1, RL0, RL1 = 2, 3, 4, 5, 6, 7, 8
    WL, LT, X, F = B.P.WL, B.P.LT, B.P.X, B.P.F
    ID, OP, SM, SL, T = B.P.ID, B.P.OP, B.P.SM, B.P.SL, B.P.T
    FLA, FLV = 14, 15
    U = 232
    sP = 's3'
    sH0, sH1, sH8, sLo0, sLo1 = 's40', 's41', 's42', 's43', 's44'
    sSlot, sLoP, RET = 's45', 's46', 's[48:49]'
    t0, t1, t2 = 's52', 's53', 's54'
    M1, O1, M2, O2 = 's55', 's56', 's58', 's59'
    for k, w in enumerate((W0, W1, W2)): dma_swz(a, w, k, U)
    a(f'v_lshlrev_b32 v{U+3}, 4, v1')
    for i in range(4): a(f'v_mov_b32 v{U+4+i}, 0')
    a(f'v_add_u32 v{U+8}, {SCR}, v{U+3}')
    a(f'ds_write_b128 v{U+8}, {vr(U+4,4)}')
    a(f's_add_u32 s58, s57, {sP}')
    a(f's_mul_i32 {sLo0}, s58, 3072')
    a(f's_mul_i32 {sLoP}, {sP}, 3072')
    a(f's_add_u32 {sLoP}, {sLoP}, {LO}')
    a('s_mov_b32 s34, 7077888\ns_mov_b32 s35, 0x20000')
    a(f's_add_u32 {sLo1}, {sLo0}, {4*3072}')
    def hi_off(dst, u):
        a(f's_mul_i32 {t0}, {u}, 43691')
        a(f's_lshr_b32 {t0}, {t0}, 19')
        a(f's_mul_i32 {t0}, {t0}, 73728')
        a(f's_mul_i32 {dst}, {u}, 6144')
        a(f's_add_u32 {dst}, {dst}, {t0}')
    a(f's_mul_i32 {sSlot}, {sP}, 6144')
    a('s_add_u32 s60, s57, 8')
    a('s_mul_i32 s61, s60, 3072')
    a(f's_cmp_lt_u32 {sP}, 2')
    a(f's_cselect_b32 s55, s61, {sLo0}')
    a(f's_cselect_b32 s56, {LO+8*3072}, {sLoP}')
    a('s_mov_b32 s30, 28311552\ns_mov_b32 s31, 0x20000')
    a(f's_min_u32 {t0}, {sP}, 2')
    a(f's_lshl_b32 s47, {sP}, 2')
    a(f's_add_u32 s47, s47, {t0}')
    a(f's_lshl_b32 s47, s47, 10')
    a(f'v_add_u32 v15, s47, v{U+3}')
    a('s_add_u32 s59, s58, 4')
    hi_off(sH0, 's58'); hi_off(sH1, 's59'); hi_off(sH8, 's60')
    a(f's_mul_i32 {t0}, {sP}, 73728')
    a(f's_add_u32 {sH8}, {sH8}, {t0}')
    a(f's_cmp_lt_u32 {sP}, 2')
    a(f's_cselect_b32 s57, {sH8}, {sH0}')
    if cfg.bist: stamp(a, cfg, 12)
    a(f's_cmp_ge_u32 {sP}, 2')
    a('s_waitcnt lgkmcnt(0)')
    if cfg.bist: stamp(a, cfg, 13)
    a('s_cbranch_scc1 P_nox')
    dma_extra(a, SWL, WREG, 15, 's47')
    a('P_nox:')
    dma_main(a, SWL, WREG, 15, 's47')
    def half(srd, soff):
        return [f'buffer_load_dwordx4 v{w}, {srd}, {soff} offen offset:{1024*k} nt lds' for k, w in enumerate((W0, W1, W2))]
    a('s_mov_b32 s32, s8\ns_mov_b32 s33, s9')
    a(f's_mov_b32 m0, s56')
    a('s_mov_b32 s28, s6')
    for l in half(RLO, 's55'): a(l)
    a('s_mov_b32 s29, s7')
    def issue_h(soff, rnd, hf, add=0):
        a(f's_add_u32 m0, {sSlot}, {rnd*4*6144+3072*hf}')
        if add + hf:
            a(f's_add_u32 {t0}, {soff}, {add+3072*hf}'); src = t0
        else:
            a('s_nop 0'); src = soff
        for l in half(RHI, src): a(l)
    for hf in range(cfg.t0pre): issue_h('s57', 0, hf)
    if cfg.bist: stamp(a, cfg, 11)
    a('s_barrier')
    a(f's_sub_u32 s56, s56, {sLoP}')
    stamp(a, cfg, 1)
    a(f'v_and_b32 v{U}, 31, v1')
    a(f'v_lshrrev_b32 v{U+1}, 5, v1')
    def rdaddr(d0, d1, px, base):
        a(f'v_lshlrev_b32 v{U+2}, 1, v{px}')
        a(f'v_and_b32 v{U+2}, 0x1e, v{U+2}')
        a(f'v_bfe_u32 v{U+2}, {SF}, v{U+2}, 2')
        a(f'v_xor_b32 v{U+2}, v{U+2}, v{U+1}')
        a(f'v_xor_b32 v{U+3}, 2, v{U+2}')
        a(f'v_mul_u32_u24 v{U+4}, 192, v{px}')
        a(f'v_add_u32 v{U+4}, {base}, v{U+4}')
        a(f'v_lshl_add_u32 v{d0}, v{U+2}, 4, v{U+4}')
        a(f'v_lshl_add_u32 v{d1}, v{U+3}, 4, v{U+4}')
    rdaddr(RA0, RA1, U, sSlot)
    a(f'v_lshrrev_b32 v{U+5}, 1, v{U}')
    rdaddr(RL0, RL1, U+5, sLoP)
    a(f'v_bfe_u32 v14, v1, 2, 2')
    a(f'v_lshl_add_u32 v14, v{U+1}, 3, v14')
    a(f'v_mul_u32_u24 v14, 192, v14')
    a(f'v_bfe_u32 v{U+8}, v1, 4, 1')
    a(f'v_lshl_add_u32 v14, v{U+8}, 5, v14')
    a(f'v_and_b32 v{U+3}, 1, v1')
    a(f'v_lshl_add_u32 v14, v{U+3}, 4, v14')
    a(f'v_bfe_u32 v{U+3}, v1, 1, 1')
    a(f'v_lshl_add_u32 v14, v{U+3}, 3, v14')
    a(f'v_add_u32 v14, {WREG}, v14')
    a(f'v_bfe_u32 v{U+2}, v1, 3, 1')
    a(f'v_and_b32 v{U+3}, 3, v1')
    a(f'v_lshl_add_u32 v{U+2}, v{U+2}, 2, v{U+3}')
    a(f'v_bfe_u32 v{U+3}, v1, 2, 1')
    a(f'v_cmp_eq_u32 vcc, v{U+3}, v{U+1}')
    a(f'v_and_b32 v{U+6}, 1, v{U+2}')
    a(f'v_lshlrev_b32 v{U+6}, 4, v{U+6}')
    a(f'v_mov_b32 v{U+4}, 0x3f80')
    a(f'v_lshlrev_b32 v{U+6}, v{U+6}, v{U+4}')
    a(f'v_cndmask_b32 v{U+6}, 0, v{U+6}, vcc')
    a(f'v_lshrrev_b32 v{U+2}, 1, v{U+2}')
    a(f'v_lshl_add_u32 v{U+2}, v{U+8}, 2, v{U+2}')
    a(f'v_cmp_eq_u32 s[58:59], v{U+3}, v{U+8}')
    a(f'v_mov_b32 v{U+7}, 0x3f803f80')
    for i in range(0, 8, 2):
        a(f'v_cmp_eq_u32 vcc, {i}, v{U+2}')
        a(f'v_cmp_eq_u32 s[60:61], {i+1}, v{U+2}')
        a(f'v_cndmask_b32 v{OP+i//2}, 0, v{U+7}, s[58:59]')
        a(f'v_cndmask_b32 v{ID+i}, 0, v{U+6}, vcc')
        a(f'v_cndmask_b32 v{ID+i+1}, 0, v{U+6}, s[60:61]')
    if cfg.dry:
        a('s_mov_b64 exec, 0')
        a(f's_cmp_eq_u32 {sP}, 1')
        a('s_cbranch_scc1 P_dry1')
        a(f's_cmp_eq_u32 {sP}, 2')
        a('s_cbranch_scc1 P_dry2')
        a(f's_cmp_eq_u32 {sP}, 3')
        a('s_cbranch_scc1 P_dryd')
        a(f's_call_b64 {RET}, P_h0')
        a('P_dryd:')
        a('s_mov_b64 exec, -1')
        stamp(a, cfg, 15)
    if cfg.tokpos == 0 and cfg.t0pre < 2:
        await_cnt(a, 5, 'P_sy5', 12, 13, 4)
        for hf in range(cfg.t0pre, 2): issue_h('s57', 0, hf)
        a(f's_waitcnt vmcnt(6)')
    else:
        a(f's_waitcnt vmcnt({3*cfg.t0pre})')
    stamp(a, cfg, 10)
    arrive(a, 0, 12, 13)
    def lo_reads(r0, r1, off=0):
        return [f'ds_read_b128 {vr(X+4*s,4)}, v{r1 if s&1 else r0} offset:{off+64*(s>>1)}' for s in range(6)]
    a(f'v_add_u32 v{U}, s56, v{RL0}\nv_add_u32 v{U+1}, s56, v{RL1}')
    if cfg.tokpos < 0:
        await_cnt(a, 5, 'P_sy5', 15, 13, 4)
        for hf in range(cfg.t0pre, 2): issue_h('s57', 0, hf)
    for l in lo_reads(U, U+1): a(l)
    await_cnt(a, 0, 'P_sy0', 12, 13, 4, setaddr=False)
    stamp(a, cfg, 2)
    def wl_reads(t, s):
        return [f'ds_read_b64_tr_b16 {vr(WL+(t*6+s)*4+2*sec,2)}, v14 offset:{s*3072+sec*768+t*64}' for sec in range(2)]
    def lat_mfma(t, s):
        c = '0' if s == 0 else vr(LT+16*t,16)
        return f'{MF32} {vr(LT+16*t,16)}, {vr(WL+(t*6+s)*4,4)}, {vr(X+4*s,4)}, {c}'
    def lateral(first):
        pend = []
        L = [wl_reads(0, s) for s in range(4)] if first else []
        seq = [(t, s) for t in range(3) for s in range(6)]
        for i, (t, s) in enumerate(seq):
            L.append(lat_mfma(t, s))
            if first and i + 4 < 18: L.append(wl_reads(*seq[i+4]))
            if s >= 1: L.append(pend[:4]); del pend[:4]
            if s == 5:
                pend += [f'v_mov_b32 v{SL}, v{LT}' if (t == 0 and j == 0) else f'v_add_f32 v{SL}, v{SL}, v{LT+16*t+j}' for j in range(16)]
        return flat(L), pend
    def sl_fin():
        return [f'v_mov_b32 v{SL+1}, v{SL}', 's_nop 1', f'v_permlane32_swap_b32 v{SL}, v{SL+1}', f'v_add_f32 v{SL}, v{SL}, v{SL+1}']
    L, pend = lateral(True)
    L = autowait(L, age=99)
    if cfg.tokpos > 0 and cfg.t0pre < 2:
        k = [i for i, l in enumerate(L) if l.startswith('v_mfma')][cfg.tokpos]
        for l in L[:k]: a(l)
        a('s_waitcnt lgkmcnt(0)')
        await_cnt(a, 5, 'P_sy5', 12, 13, 4)
        for hf in range(cfg.t0pre, 2): issue_h('s57', 0, hf)
        L = L[k:]
    for l in L: a(l)
    for l in pend + sl_fin(): a(l)
    arrive(a, 16, 12, 13)
    stamp(a, cfg, 3)
    a(f's_lshl_b32 {t0}, {sP}, 2')
    a(f's_add_u32 {t0}, {t0}, {PF}')
    a(f'v_mov_b32 v{FLA}, {t0}')
    a(f'v_mov_b32 v{FLV}, 0')
    a(f's_cmp_lt_u32 {sP}, 2')
    a('s_cbranch_scc0 P_scriptB')
    def script(tag, tiles, lats, los):
        n = len(tiles)
        q = ['h0', 'h1']
        nxt = [2]
        done = set()
        def guard(r):
            if r >= 3 and not done:
                done.add(r); await_cnt(a, 4, f'P_w{tag}{r}', 12, 13, 4)
        def param(M, O):
            h = nxt[0]; r, hf = divmod(h, 2)
            guard(r)
            a(f's_add_u32 {M}, {sSlot}, {r*4*6144+3072*hf}')
            a(f's_add_u32 {O}, {tiles[r][0]}, {tiles[r][1]+3072*hf}')
            nxt[0] += 1
            return f'h{h}'
        def now_h():
            h = nxt[0]; r, hf = divmod(h, 2)
            guard(r)
            issue_h(tiles[r][0], r, hf, tiles[r][1]); nxt[0] += 1
            q.append(f'h{h}')
        def now_lo(key):
            a(f's_add_u32 m0, {sLoP}, {0 if key == "lo0" else 4*3072}')
            a('s_nop 0')
            for l in half(RLO, sLo0 if key == 'lo0' else sLo1): a(l)
            q.append(key)
        if cfg.t0pre == 2 and cfg.tok2: await_cnt(a, 5, f'P_sy5{tag}', 12, 13, 4)
        for key in los.get(-1, []): now_lo(key)
        for _ in range(cfg.early): now_h()
        for r in range(n):
            ng = min(2, 2*n - nxt[0])
            if r == 1 and cfg.r1late: ng = 1
            new = []
            if ng >= 1: new.append(param(M1, O1))
            if ng >= 2: new.append(param(M2, O2))
            last = r == n - 1
            if cfg.b2 and r >= 1: a(f"{TM(cfg)} s[{STAMP0+2*(10+r)}:{STAMP0+2*(10+r)+1}]")
            if lats[r] is not None:
                key = lats[r]
                if key in q:
                    i2 = q.index(key)
                    a(f's_waitcnt vmcnt({3*(len(q)-1-i2)})'); del q[:i2+1]
                off = 0 if key == 'lo0' else 4*3072
                a(f'v_add_u32 v12, {off}, v{RL0}\nv_add_u32 v13, {off}, v{RL1}')
                a(f's_call_b64 {RET}, P_lat')
            idx = max([q.index(x) for x in (f'h{2*r}', f'h{2*r+1}') if x in q] + [-1])
            if cfg.b2 and lats[r] is not None: a(f"{TM(cfg)} s[{STAMP0+2*(1 if r < 2 else 2)}:{STAMP0+2*(1 if r < 2 else 2)+1}]")
            if last and tag == 'a':
                a(f's_call_b64 {RET}, P_h0w'); break
            a(f's_waitcnt vmcnt({3*(len(q)-1-idx)})'); stamp(a, cfg, 4+r)
            del q[:idx+1]; q.extend(new)
            if last: break
            a(f's_call_b64 {RET}, P_h{ng}')
            if r == 1 and cfg.r1late: now_h()
            for key in los.get(r, []): now_lo(key)
            if tag == 'b' and r == cfg.wvr:
                await_cnt(a, 16, 'P_wl', 12, 13, 4)
                a(f's_sub_u32 {t0}, {sP}, 2\ns_mul_i32 {t0}, {t0}, 9216')
                a(f'v_lshlrev_b32 v12, 4, v1\nv_add_u32 v12, {t0}, v12')
                for k in range(3):
                    a(f's_add_u32 m0, {t0}, {WREG+3072*k}')
                    a(f's_add_u32 s50, s16, {3072*k}\ns_addc_u32 s51, s17, 0')
                    for j in range(3): a(f'global_load_lds_dwordx4 v12, s[50:51] offset:{1024*j}')
                    q.append('wv')
                if cfg.touch:
                    a(f's_mov_b32 s36, s26\ns_mov_b32 s37, s27\ns_mov_b32 s38, {REC_BYTES}\ns_mov_b32 s39, 0x20000')
                    a('v_and_b32 v12, 15, v1\nv_lshlrev_b32 v12, 16, v12')
                    if cfg.touch >= 2:
                        a('v_lshrrev_b32 v13, 4, v1\nv_lshl_add_u32 v12, v13, 6, v12')
                        a(f's_lshl_b32 {t0}, s2, 8')
                        a(f'buffer_load_dword v232, v12, {RWS}, {t0} offen' + (' sc1' if cfg.touch == 3 else ''))
                    else:
                        a(f'buffer_load_dword v232, v12, {RWS}, 0 offen')
                    a(f'v_mov_b32 v12, 0')
                    a(f'global_load_dword v234, v12, {SOUT}')
                    a(f'global_load_dword v233, v12, {SQ}')
                    q.append('touch')
    script('a', [None, (sH0, 0), (sH0, 73728), (sH1, 0), (sH1, 73728)], [None, 'lo0', None, 'lo1', None], {-1: ['lo0'], 1: ['lo1']})
    if cfg.b2: a(f"{TM(cfg)} s[{STAMP0+30}:{STAMP0+31}]")
    a('s_branch P_fin')
    a('P_scriptB:')
    script('b', [None, (sH0, 73728), (sH1, 0), (sH1, 73728)], [None, None, 'lo1', None], {0: ['lo1']})
    a(f's_call_b64 {RET}, P_h0')
    if cfg.b2: a(f"{TM(cfg)} s[{STAMP0+30}:{STAMP0+31}]")
    a(f'v_mov_b32 v{FLV}, 5')
    a('s_waitcnt vmcnt(0)')
    a(f'ds_write_b32 v{FLA}, v{FLV}')
    if cfg.trp: a('s_branch L_exit')
    if cfg.stamps: a('s_mov_b32 s98, 0')
    a('s_cmp_ge_u32 s2, 16')
    a('s_cbranch_scc1 L_exit')
    if cfg.stamps: a('s_mov_b32 s98, 1')
    await_cnt(a, 17, 'P_w17', 12, 13, 4)
    a(f's_sub_u32 {t0}, {sP}, 2\ns_mul_i32 {t0}, {t0}, 9216')
    a(f'v_lshlrev_b32 v12, 4, v1\nv_add_u32 v12, {t0}, v12')
    for k in range(3):
        a(f's_add_u32 m0, {t0}, {WO+3072*k}')
        a(f's_add_u32 s50, s18, {3072*k}\ns_addc_u32 s51, s19, 0')
        for j in range(3): a(f'global_load_lds_dwordx4 v12, s[50:51] offset:{1024*j}')
    a('P_fin:')
    if cfg.trp: a('s_branch L_exit')
    stamp(a, cfg, 9)
    a('s_cmp_ge_u32 s2, 16')
    a('s_cbranch_scc1 L_exit')
    a('s_setprio 0')
    a(f's_load_dword s47, {SDBG}, 0')
    a('s_waitcnt lgkmcnt(0)')
    a('s_cmp_eq_u32 s47, 0')
    a('s_cbranch_scc1 P_getnonce')
    a('P_getnonce_d:')
    a(f's_mov_b32 s36, s26\ns_mov_b32 s37, s27\ns_mov_b32 s38, {REC_BYTES}\ns_mov_b32 s39, 0x20000')
    await_cnt(a, 7, 'P_w7', 12, 13, 4)
    a('s_cmp_lt_u32 s50, 0x100')
    a('s_cbranch_scc1 L_comb')
    a('s_branch Z_comb')
    nonce_slow(a, 'P_getnonce', 'P_getnonce_d', 20)
    if cfg.dry:
        a('P_dry1:')
        a('s_call_b64 s[60:61], C_blk2')
        a('s_branch P_dryd')
        a('P_dry2:')
        a(f's_call_b64 {RET}, P_lat')
        a('s_branch P_dryd')
    a('P_lat:')
    if cfg.pp: a(f's_setprio {cfg.pl}')
    L, pend = lateral(False)
    for l in autowait(lo_reads(12, 13) + L, age=99): a(l)
    a('s_nop 9')
    for l in pend + sl_fin(): a(l)
    a(f's_setpc_b64 {RET}')
    hp = cfg.pm if cfg.pp else None
    g1 = [f's_mov_b32 m0, {M1}', 's_nop 0'] + half(RHI, O1)
    g2 = [f's_mov_b32 m0, {M2}', 's_nop 0'] + half(RHI, O2)
    def traced(lines, first, n):
        step = max(1, len(lines) // n); k = first
        for i, l in enumerate(lines):
            if i % step == 0 and k < first + n:
                stamp(a, cfg, k, True); k += 1
            a(l)
    a('P_h2:')
    traced(B.p_head(g1, g2, hp), 2, 3)
    a('s_branch P_s1')
    a('P_h1:')
    traced(B.p_head(g1, (), hp), 2, 3)
    a('s_branch P_s1')
    a('P_h0w:')
    a('s_waitcnt vmcnt(0)')
    stamp(a, cfg, 8)
    a('P_h0:')
    for l in B.p_head((), (), hp): a(l)
    a('P_s1:')
    tail = B.p_tail(0, cfg.pv if cfg.pp else None)
    traced(tail[:-1], 5, 9)
    a(f'v_add_u32 v{FLV}, 1, v{FLV}')
    a('s_waitcnt lgkmcnt(0)')
    a(f'ds_write_b32 v{FLA}, v{FLV}')
    a(f's_setpc_b64 {RET}')

def gen_consumer(a, cfg):
    sH = 's40'
    t0, t1 = 's41', 's42'
    RET = 's[60:61]'
    sR = 's43'
    LIN, REC, WVA, XA = 2, 3, 8, 9
    CA0, CA1, CT0, CT1 = B.C.CA0, B.C.CA1, B.C.CT0, B.C.CT1
    PART = 12
    AP, U, LA, OP = B.C.AP, B.C.U, B.C.LA, B.C.OP
    WV = B.C.WV
    QB, WK, ME, QT, QP, TA, QF = 96, 108, 132, 156, 164, 168, 16
    T = 240
    T2 = 248
    a('L_cons:')
    if cfg.cearly: a(f's_setprio {cfg.cpp}')
    a('s_memrealtime s[58:59]')
    code_prefetch(a, 'L_pc', 0, -256)
    a(f's_sub_u32 {sH}, s3, 4')
    a(f'v_lshlrev_b32 v{LIN}, 4, v1')
    a(f's_mul_i32 s48, {sH}, 4608')
    a(f'v_add_u32 v{PART}, s48, v{LIN}')
    a(f's_min_u32 {t0}, {sH}, 2')
    a(f's_lshl_b32 s46, {sH}, 2')
    a(f's_add_u32 s46, s46, {t0}')
    a(f's_lshl_b32 s46, s46, 10')
    a(f'v_add_u32 v13, s46, v{LIN}')
    a(f's_lshl_b32 s54, {t0}, 10')
    a(f'v_add_u32 v10, s54, v{LIN}')
    a('s_lshr_b32 s50, s2, 3\ns_and_b32 s50, s50, 31\ns_mul_i32 s50, s50, 640')
    a(f'v_lshlrev_b32 v14, 7, v1')
    a(f'v_add_u32 v14, s50, v14')
    a(f'v_min_u32 v14, 18428, v14')
    N, G, RHO, KAP = T+4, T+5, T+6, T+7
    a(f'v_and_b32 v{N}, 15, v1')
    a(f'v_lshrrev_b32 v{G}, 4, v1')
    a(f'v_bfe_u32 v{RHO}, v1, 2, 2')
    a(f'v_and_b32 v{KAP}, 3, v1')
    a(f'v_mul_u32_u24 v{T+8}, 192, v{N}')
    a(f'v_lshl_add_u32 v{T+8}, v{G}, 4, v{T+8}')
    a(f'v_lshl_add_u32 v{T+9}, v{RHO}, 3, v{KAP}')
    a(f'v_mul_u32_u24 v{T+9}, 48, v{T+9}')
    a(f'v_lshl_add_u32 v{T+9}, v{G}, 4, v{T+9}')
    a(f'v_add_u32 v{T+9}, s48, v{T+9}')
    if cfg.bist: stamp(a, cfg, 12)
    a('s_waitcnt lgkmcnt(0)')
    if cfg.bist: stamp(a, cfg, 13)
    a(f's_cmp_eq_u32 {sH}, 0\ns_cselect_b64 s[50:51], {SWV}, {SWQ}')
    a(f's_cmp_eq_u32 {sH}, 2\ns_cselect_b64 s[50:51], {SWK}, s[50:51]')
    a(f's_cmp_eq_u32 {sH}, 3\ns_cselect_b64 s[50:51], {SWM}, s[50:51]')
    a('s_mov_b64 exec, 31')
    a(f'global_load_dword v15, v14, s[50:51]')
    a('s_mov_b64 exec, -1')
    if cfg.bist: stamp(a, cfg, 11)
    a('s_barrier')
    if cfg.bist: stamp(a, cfg, 14)
    a(f's_lshl_b32 s50, s2, 2\ns_xor_b32 s50, s50, {sH}\ns_cmp_eq_u32 s50, 3')
    a('s_cbranch_scc1 C_mknonce')
    a('C_mknonce_d:')
    if cfg.fake: arrive(a, 5, 14, 15)
    if not cfg.fake:
        M1S, M1L, M2S, M2L = (SWM, WM, SWQ, WQ) if cfg.mfirst else (SWQ, WQ, SWM, WM)
        a(f's_cmp_ge_u32 {sH}, 3')
        a('s_cbranch_scc1 C_noy')
        a(f's_add_u32 m0, s54, {QS}')
        a(f's_cmp_ge_u32 {sH}, 2')
        a(f'global_load_lds_dwordx4 v10, {SQ}')
        a('s_cbranch_scc1 C_noy')
        dma_extra(a, M1S, M1L, 13, 's46')
        a('C_noy:')
        dma_main(a, M1S, M1L, 13, 's46')
        a('s_mov_b32 s57, s46')
        a(f'v_mov_b32 v{PART}, v13')
        for i in range(24): a(f'v_mov_b32 v{WK+i}, 0')
    stamp(a, cfg, 1)
    a(f's_mov_b32 s36, s26\ns_mov_b32 s37, s27\ns_mov_b32 s38, {REC_BYTES}\ns_mov_b32 s39, 0x20000')
    a(f's_and_b32 s49, {sH}, 1\ns_lshl_b32 s55, s49, 1\ns_lshr_b32 s56, {sH}, 1\ns_add_u32 s55, s55, s56')
    a(f's_lshl_b32 {t0}, s2, 2\ns_add_u32 {t0}, {t0}, s55\ns_lshl_b32 {t0}, {t0}, 6')
    a(f'v_lshlrev_b32 v{REC}, 16, v{N}')
    a(f'v_lshl_add_u32 v{REC}, v{G}, 4, v{REC}')
    a(f'v_add_u32 v{REC}, {t0}, v{REC}')
    a('s_mul_i32 s52, s56, 12288')
    a(f'v_and_b32 v{T+10}, 31, v1')
    a(f'v_lshrrev_b32 v{T+11}, 5, v1')
    a(f'v_lshlrev_b32 v{T+12}, 1, v{N}')
    a(f'v_bfe_u32 v{T+12}, {SF}, v{T+12}, 2')
    a(f'v_xor_b32 v{T+12}, v{T+12}, v{T+11}')
    a(f'v_mul_u32_u24 v{T+13}, 192, v{T+10}')
    a(f'v_add_u32 v{T+13}, s52, v{T+13}')
    a(f'v_lshl_add_u32 v{CA0}, v{T+12}, 4, v{T+13}')
    a(f'v_xor_b32 v{T+12}, 2, v{T+12}')
    a(f'v_lshl_add_u32 v{CA1}, v{T+12}, 4, v{T+13}')
    a(f'v_lshl_add_u32 v{T+12}, v{T+11}, 2, v{RHO}')
    a(f'v_bfe_u32 v{T+13}, v1, 4, 1')
    a(f'v_lshrrev_b32 v{T+14}, 1, v{KAP}')
    a(f'v_lshl_add_u32 v{T+14}, v{T+13}, 1, v{T+14}')
    a(f'v_and_b32 v{T+15}, 1, v{KAP}')
    a(f'v_lshlrev_b32 v{T+15}, 3, v{T+15}')
    a(f'v_add_u32 v{T+15}, s52, v{T+15}')
    for sec, dst in ((0, CT0), (1, CT1)):
        if sec: a(f'v_add_u32 v{T+12}, 8, v{T+12}')
        a(f'v_lshlrev_b32 v{dst}, 1, v{T+12}')
        a(f'v_bfe_u32 v{dst}, {SF}, v{dst}, 2')
        a(f'v_xor_b32 v{dst}, v{dst}, v{T+14}')
        a(f'v_lshl_add_u32 v{dst}, v{dst}, 4, v{T+15}')
        a(f'v_mul_u32_u24 v10, 192, v{T+12}')
        a(f'v_add_u32 v{dst}, v{dst}, v10')
    a(f'v_lshl_add_u32 v{WVA}, v{T+11}, 2, v{RHO}')
    a(f'v_lshl_add_u32 v{WVA}, v{T+13}, 4, v{WVA}')
    a(f'v_mul_u32_u24 v{WVA}, 48, v{WVA}')
    a(f'v_lshl_add_u32 v{WVA}, v{KAP}, 3, v{WVA}')
    a(f'v_add_u32 v{WVA}, {WREG}, v{WVA}')
    a(f's_xor_b32 {t0}, s55, 1')
    a(f's_mul_i32 s53, {t0}, 4608')
    a(f's_mul_i32 s46, s55, 4608')
    a(f'v_mov_b32 v10, s46')
    a(f'v_mov_b32 v11, s53')
    a(f'v_cmp_eq_u32 vcc, 0, v{T+13}')
    a(f'v_mul_u32_u24 v{XA}, 192, v{N}')
    a(f'v_lshl_add_u32 v{XA}, v{T+11}, 4, v{XA}')
    a(f'v_cndmask_b32 v10, v11, v10, vcc')
    a(f'v_add_u32 v{XA}, v{XA}, v10')
    a(f'v_add_u32 v{XA}, {WQ}, v{XA}')
    a(f'v_lshl_add_u32 v{T+12}, v{G}, 3, v{RHO}')
    a(f'v_mul_u32_u24 v10, 48, v{T+12}')
    a(f'v_min_u32 v11, 2, v{KAP}')
    a(f'v_lshl_add_u32 v10, v11, 4, v10')
    a(f's_add_u32 {t0}, s48, {WQ}')
    a(f'v_add_u32 v10, {t0}, v10')
    a(f'v_add_u32 v13, {t0}, v{T+8}')
    a(f'v_add_u32 v{T+8}, {QS}, v{T+8}')
    a(f'v_mul_u32_u24 v11, 192, v{T+12}')
    a(f'v_lshl_add_u32 v11, v{KAP}, 4, v11')
    a(f'v_add_u32 v11, {WM}, v11')
    a(f'v_and_b32 v{T+12}, 1, v1')
    a(f'v_cmp_eq_u32 vcc, v{T+12}, v{T+13}')
    a(f'v_mov_b32 v{T+12}, 0x3f803f80')
    for i in range(52):
        a(f'v_mov_b32 v{U+i}, 0')
        if i == 4:
            for k in range(4): a(f'v_cndmask_b32 v{OP+k}, 0, v{T+12}, vcc')
    if cfg.fake:
        a(f's_add_u32 s58, s58, {cfg.fake}')
        a('C_fk:')
        a('s_memrealtime s[50:51]')
        a('s_waitcnt lgkmcnt(0)')
        a('s_sub_u32 s50, s50, s58')
        a('s_cmp_lt_i32 s50, 0')
        a('s_cbranch_scc1 C_fk')
        stamp(a, cfg, 2)
        a(f's_mul_i32 s50, {sH}, 3072')
        a(f's_add_u32 s50, s50, {8<<20}')
        a(f's_add_u32 s50, s26, s50\ns_addc_u32 s51, s27, 0')
        a(f's_add_u32 m0, s48, {WQ}')
        a('s_nop 0')
        for k in range(3): a(f'global_load_lds_dwordx4 v{LIN}, s[50:51] offset:{1024*k}' + (' sc1' if cfg.fsc else ''))
        a('s_waitcnt vmcnt(0)')
        stamp(a, cfg, 15)
        lds_sync(a, 3, 'C_sy3', 14, 15)
        a('s_cmp_eq_u32 s2, 999')
        a('s_cbranch_scc1 Z_sy3')
    else:
        if cfg.bist: stamp(a, cfg, 7)
        a(f's_cmp_ge_u32 {sH}, 2')
        a('s_cbranch_scc1 C_nox')
        dma_extra(a, M2S, M2L, PART, 's57')
        a('C_nox:')
        dma_main(a, M2S, M2L, PART, 's57')
        if cfg.wkpos == 1: arrive(a, 5, 14, 15)
        a('s_mov_b32 exec_hi, 0xffff')
        for s in range(3):
            for tt in range(2):
                a(f'global_load_dwordx4 {vr(WK+(2*s+tt)*4,4)}, v{T+9}, {SWK} offset:{1536*s+192*tt}')
        a('s_mov_b32 exec_hi, -1')
        if cfg.wkpos == 0: arrive(a, 5, 14, 15)
        if cfg.bist: stamp(a, cfg, 6)
        a('s_waitcnt vmcnt(6)')
        if cfg.bist: stamp(a, cfg, 5)
        lds_sync(a, 1, 'C_sy1', 14, 15)
        if cfg.cpp: a(f's_setprio {cfg.cpp}')
        stamp(a, cfg, 2)
        def me_rd(sp, st): return [f'ds_read_b64_tr_b16 {vr(TA+(sp*6+st)*4+2*sec,2)}, v11 offset:{sp*6144+sec*768+(st>>1)*64+(st&1)*8}' for sec in range(2)]
        def q_rd(s, tt): return [f'ds_read_b64_tr_b16 {vr(QF+(tt*3+s)*4+2*sec,2)}, v10 offset:{s*1536+sec*192+tt*8}' for sec in range(2)]
        def q_mm(s, tt): return f'{MF16} {vr(QT+4*tt,4)}, {vr(QF+(tt*3+s)*4,4)}, {vr(QB+4*s,4)}, {"0" if s == 0 else vr(QT+4*tt,4)}'
        def me_mm(sp, st): return f'{MF16} {vr(ME+4*st,4)}, {vr(TA+(sp*6+st)*4,4)}, {vr(QB+4*sp,4)}, {"0" if sp == 0 else vr(ME+4*st,4)}'
        seq = [(sp, st) for sp in range(3) for st in range(6)]
        qseq = [(s, tt) for s in range(3) for tt in range(2)]
        qb = [f'ds_read_b128 {vr(QB+4*s,4)}, v{T+8} offset:{64*s}' for s in range(3)]
        L = [qb[0], q_rd(0,0), q_rd(0,1), qb[1], q_rd(1,0), q_rd(1,1), qb[2], q_rd(2,0), q_rd(2,1)]
        for i, (s_, tt) in enumerate(qseq):
            L.append(q_mm(s_, tt)); L.append(me_rd(*seq[i]))
        post = [f'v_add_f32 v{QT+i}, v{QT+i}, v{QT+i}' for i in range(8)] + [f'v_cvt_pk_bf16_f32 v{QP+i}, v{QT+2*i}, v{QT+2*i+1}' for i in range(4)]
        for i, (sp, st) in enumerate(seq):
            L.append(me_mm(sp, st))
            if i + 6 < 18: L.append(me_rd(*seq[i+6]))
            if i >= 3: L.append(post[:1]); del post[:1]
        L.append(post)
        for l in autowait(flat(L), age=99): a(l)
        if cfg.bist: stamp(a, cfg, 4)
        a('s_waitcnt vmcnt(0)')
        if cfg.bist: stamp(a, cfg, 8)
        stamp(a, cfg, 15)
        for st in range(6):
            a(f'{MF16} {vr(ME+4*st,4)}, {vr(WK+4*st,4)}, {vr(QP,4)}, {vr(ME+4*st,4)}')
        sc = 96 ** -0.5 * math.log2(math.e)
        a(f's_mov_b32 {t0}, {f32(sc)}')
        for s in range(3):
            for i in range(8): a(f'v_mul_f32 v{ME+8*s+i}, {t0}, v{ME+8*s+i}')
            for i in range(4): a(f'v_cvt_pk_bf16_f32 v{ME+8*s+i}, v{ME+8*s+2*i}, v{ME+8*s+2*i+1}')
            a(f'ds_write_b128 v13, {vr(ME+8*s,4)} offset:{64*s}')
            a(f'{MF16} {vr(QT,4)}, {vr(ME+8*s,4)}, {vr(ME+8*s,4)}, {"0" if s == 0 else vr(QT,4)}')
        a(f's_mov_b32 {t0}, {f32(THR)}')
        a(f'v_mov_b32 v14, {CNT + 4*3}')
        a(f'v_max3_f32 v{QT}, v{QT}, v{QT+1}, v{QT+2}')
        a(f'v_max_f32 v{QT}, v{QT}, v{QT+3}')
        a(f'v_cmp_nge_f32 vcc, {t0}, v{QT}')
        a('s_cmp_eq_u64 vcc, 0')
        a('s_cselect_b32 s51, 1, 0x101')
        a('v_mov_b32 v15, s51')
        a('s_waitcnt lgkmcnt(0)')
        a('s_mov_b64 exec, 1')
        a('ds_add_rtn_u32 v15, v14, v15')
        a('s_mov_b64 exec, -1')
        a('s_waitcnt lgkmcnt(0)')
        a('v_readfirstlane_b32 s50, v15')
        a('s_add_u32 s50, s50, s51')
        a('s_cmp_eq_u32 s50, 4')
        a('s_cbranch_scc1 C_sy3_ok')
        await_cnt(a, 3, 'C_sy3', 14, 15, 4, setaddr=False)
        a('s_cmp_eq_u32 s50, 4')
        a('s_cbranch_scc0 Z_sy3')
    if not cfg.fake: a('C_sy3_ok:')
    stamp(a, cfg, 3)
    cons_main(a, cfg, False)
    a('C_mknonce:')
    a('s_or_b32 s50, s58, 1')
    a('v_mov_b32 v20, s50\nv_mov_b32 v21, 0\nv_mov_b32 v22, 0')
    a('s_mov_b64 exec, 1')
    a(f'global_atomic_cmpswap v22, v[20:21], {SDBG} sc1')
    a('s_mov_b64 exec, -1')
    a('s_branch C_mknonce_d')
    nonce_slow(a, 'C_getnonce', 'C_getnonce_d', T2)

def slow_rescale(NEW):
    MX = 160; U, LA = B.C.U, B.C.LA
    L = [f'v_max_f32 v{NEW}, v{NEW}, v{MX}',
         f'v_sub_f32 v{MX+4}, v{MX}, v{NEW}',
         f'v_exp_f32 v{MX+4}, v{MX+4}',
         f'v_mov_b32 v{MX}, v{NEW}', 's_nop 1',
         f'v_mov_b32 v{MX+5}, v{MX+4}', f'v_mov_b32 v{MX+6}, v{MX+4}', 's_nop 1',
         f'v_permlane16_swap_b32 v{MX+5}, v{MX+6}', 's_nop 1']
    L += [f'v_mul_f32 v{U+i}, v{U+i}, v{MX+4}' for i in range(48)]
    L += [f'v_mul_f32 v{LA+i}, v{LA+i}, v{MX+5+(i&1)}' for i in range(4)]
    return L

def slow_tile(off):
    MX = 160; S = B.C.S[0]
    tb = B.C.TB
    B.C.TB = off
    sv = (B.C.KA, B.C.KT, B.C.S, B.C.P)
    B.C.KA = [sv[0][0]] * 2; B.C.KT = [sv[1][0]] * 2; B.C.S = [S] * 2; B.C.P = [S] * 2
    L = [B.ka(1, s) for s in range(6)] + ['s_waitcnt lgkmcnt(0)']
    L += [B.kt(1, ks, t) for ks in range(2) for t in range(3)]
    L += [B.sm(1, s) for s in range(6)] + ['s_nop 15', 's_nop 15']
    L += [f'v_max3_f32 v{MX+1}, v{S}, v{S+1}, v{S+2}']
    L += [f'v_max3_f32 v{MX+1}, v{MX+1}, v{S+3+2*i}, v{S+4+2*i}' for i in range(6)]
    L += [f'v_max_f32 v{MX+1}, v{MX+1}, v{S+15}', f'v_mov_b32 v{MX+2}, v{MX+1}', 's_nop 1',
          f'v_permlane32_swap_b32 v{MX+1}, v{MX+2}', 's_nop 1', f'v_max_f32 v{MX+1}, v{MX+1}, v{MX+2}']
    L += slow_rescale(MX+1)
    L += [f'v_sub_f32 v{S+i}, v{S+i}, v{MX}' for i in range(16)]
    L += [B.ex(1, i) for i in range(16)] + ['s_nop 1'] + [B.cv(1, i) for i in range(8)]
    L += ['s_waitcnt lgkmcnt(0)', 's_nop 1']
    L += [B.pv(1, ks, t) for ks in range(2) for t in range(4)] + ['s_nop 15', 's_nop 15']
    B.C.TB = tb
    B.C.KA, B.C.KT, B.C.S, B.C.P = sv
    return flat(L)

def cons_main(a, cfg, slow):
    sH = 's40'
    t0, t1 = 's41', 's42'
    RET = 's[60:61]'
    sR = 's43'
    LIN, REC, WVA, XA = 2, 3, 8, 9
    CA0, CA1, CT0, CT1 = B.C.CA0, B.C.CA1, B.C.CT0, B.C.CT1
    AP, U, LA, OP = B.C.AP, B.C.U, B.C.LA, B.C.OP
    WV = B.C.WV
    T2 = 248
    Z = 'Z' if slow else 'C'
    MX = 160
    if slow:
        xv = cfg.xv; cfg = Cfg(); cfg.stamps = False; cfg.xv = xv
        a('Z_sy3:')
        a('ds_read_b32 v15, v14')
        a('s_waitcnt lgkmcnt(0)')
        a('v_readfirstlane_b32 s50, v15')
        a('s_and_b32 s50, s50, 0xff')
        a('s_cmp_lt_u32 s50, 4')
        a('s_cbranch_scc1 Z_sy3')
        a(f'v_mov_b32 v{MX}, {f32(-3e38)}')
    WA0, FLA, XO, XP, FO, FP, ONE, MRA, THRV = 12, 13, 9, 11, 8, 0, 251, 254, 255
    XLW, XLR = 224, 225
    for s in range(6): a(f'ds_read_b128 {vr(AP+4*s,4)}, v{XA} offset:{32*s}')
    a(f's_lshl_b32 {t0}, s56, 3\ns_add_u32 {t0}, {t0}, {PF}')
    a(f'v_mov_b32 v10, {t0}')
    a(f's_mov_b32 {sR}, 1')
    a('s_waitcnt lgkmcnt(0)')
    arrive(a, 4, 14, 15)
    a(f'v_add_u32 v{WA0}, s46, v{WVA}')
    a(f's_mul_i32 {t0}, {sH}, {XST}')
    a(f's_xor_b32 {t1}, {sH}, 2')
    a(f's_mul_i32 {t1}, {t1}, {XST}')
    a(f's_add_u32 {t0}, {t0}, {XCH}')
    a(f's_add_u32 {t1}, {t1}, {XCH+3072}')
    a(f'v_add_u32 v{XO}, {t0}, v{LIN}')
    a(f'v_lshlrev_b32 v{XLR}, 2, v1')
    a(f'v_add_u32 v{XLW}, {t1}, v{XLR}')
    a(f'v_add_u32 v{XLR}, {t0}, v{XLR}')
    a(f's_mov_b32 s52, 0xffff0000\ns_mov_b32 s53, 0xffff0000')
    if cfg.xv == 0:
        a(f'v_add_u32 v{XP}, {t1}, v{LIN}')
    else:
        a(f'v_mov_b32 v{XP}, {t0}')
        a(f'v_mov_b32 v14, {t1}')
        a(f'v_and_b32 v15, 15, v1')
        a(f'v_cndmask_b32 v{XP}, v{XP}, v14, s[52:53]')
        a(f'v_lshl_add_u32 v{XP}, v15, 4, v{XP}')
        a(f'v_lshrrev_b32 v15, 5, v1')
        a(f'v_lshl_add_u32 v{XP}, v15, 9, v{XP}')
    a(f'v_and_b32 v{FLA}, 3, v1')
    a(f's_xor_b32 {t0}, s56, 1')
    a(f'v_cmp_eq_u32 vcc, {t0}, v{FLA}')
    a(f'v_lshlrev_b32 v{FLA}, 2, v{FLA}')
    a(f'v_add_u32 v{FLA}, {PF}, v{FLA}')
    a(f'v_cndmask_b32 v{THRV}, 5, 4, vcc')
    a(f's_lshl_b32 {t0}, {sH}, 2')
    a(f's_add_u32 {t0}, {t0}, {CNT+32}')
    a(f'v_mov_b32 v{FO}, {t0}')
    a(f'v_xor_b32 v{FP}, 8, v{FO}')
    a(f'v_mov_b32 v{ONE}, 1')
    a('s_mov_b32 s44, 0\ns_mov_b32 s45, -1')
    if slow:
        a(f's_lshl_b32 {t0}, s55, 8\ns_add_u32 {t0}, {t0}, s2\ns_lshl_b32 {t0}, {t0}, 3\ns_add_u32 {t0}, {t0}, {MREC}')
        a(f'v_and_b32 v{MRA}, 15, v1')
        a(f'v_lshlrev_b32 v{MRA}, 13, v{MRA}')
        a(f'v_add_u32 v{MRA}, {t0}, v{MRA}')
    wvr = [f'ds_read_b64_tr_b16 {vr(WV+(tt*3+t)*4+2*sec,2)}, v{WA0} offset:{t*1536+sec*384+tt*32}'
           for t in range(3) for tt in range(2) for sec in range(2)]
    if not slow:
        VF, THR, INC = T2+4, 226, 227
        sAdv, sStop = 's60', 's61'
        flag = f'ds_read_b32 v{VF}, v{FLA}'
        def waitloop(tag, go, prio=None):
            a(f'{tag}:')
            if cfg.wsl: a(f's_sleep {cfg.wsl}')
            a(flag)
            a('s_waitcnt lgkmcnt(0)')
            a(f'v_cmp_lt_u32 vcc, v{VF}, v{THR}')
            a(f's_cbranch_vccnz {tag}')
            for s_ in range(6): a(B.ka(0, s_))
            a(f's_branch {go}')
        def check(wait, go):
            a('s_waitcnt lgkmcnt(6)')
            a(f'v_cmp_lt_u32 vcc, v{VF}, v{THR}')
            a(f's_cbranch_vccnz {wait}')
            a(f'{go}:')
        class Lst:
            def __init__(s_): s_.l = []
            def __call__(s_, t): s_.l += [x.strip() for x in t.split('\n') if x.strip()]
        hook = Lst(); arrive(hook, 17, 14, 15); mk_tag(hook, T2+1)
        a(f'v_bfe_u32 v{INC}, v1, 1, 1')
        a(f'v_cmp_eq_u32 vcc, s56, v{INC}')
        a(f's_add_u32 {sStop}, s56, 3')
        a(f's_mov_b32 {sR}, 0')
        a(f'v_cndmask_b32 v{INC}, 0, 1, vcc')
        a(f'v_mov_b32 v{THR}, v{INC}')
        if cfg.cpp: a(f's_setprio {cfg.cmain}')
        a('s_branch C_wait')
        a('C_loop:')
        check('C_wait', 'C_go')
        if cfg.stamps and not cfg.b2:
            pass
        if cfg.b2 and not cfg.etr:
            for j in (11, 12, 13): a(f's_mov_b64 s[{STAMP0+2*j}:{STAMP0+2*j+1}], s[{STAMP0+2*j+2}:{STAMP0+2*j+3}]')
            a(f"{TM(cfg)} s[{STAMP0+28}:{STAMP0+29}]")
        top = [f's_add_u32 {sR}, {sR}, 1', f'v_add_u32 v{THR}, v{THR}, v{INC}', f's_cmp_eq_u32 {sR}, 4', f's_cselect_b32 {sAdv}, -1, 4', f's_mul_i32 {sAdv}, {sAdv}, 6144']
        advl = [f'v_add_u32 v{r}, {sAdv}, v{r}' for r in (CA0, CA1, CT0, CT1)]
        for l in B.cons2p(advl, flag, top): a(l)
        if cfg.stamps:
            for j in (5, 6): a(f's_mov_b64 s[{STAMP0+2*j}:{STAMP0+2*j+1}], s[{STAMP0+2*j+2}:{STAMP0+2*j+3}]')
            stamp(a, cfg, 7)
        a(f's_cmp_eq_u32 {sR}, {sStop}')
        a('s_cbranch_scc1 C_done')
        a(f's_load_dword s47, {SDBG}, 0')
        a('s_branch C_loop')
        waitloop('C_wait', 'C_go')
        a('C_done:')
        a('s_cmp_eq_u32 s47, 0')
        a('s_cbranch_scc1 C_getnonce')
        a('C_getnonce_d:')
        a('s_cmp_eq_u32 s56, 0')
        a('s_cbranch_scc1 C_r3s')
        a(f'v_mov_b32 v{THR}, v{THRV}')
        stamp(a, cfg, 4)
        check('C_w13', 'C_g13')
        stamp(a, cfg, 8)
        a('s_setprio 3')
        for l in B.cons2x(wvr, 24576, True, hook.l): a(l)
        a('s_branch C_epi')
        waitloop('C_w13', 'C_g13')
        waitloop('C_w12', 'C_g12')
        waitloop('C_w16', 'C_g16')
        a('C_r3s:')
        check('C_w12', 'C_g12')
        adv = [f'v_add_u32 v{r}, 24576, v{r}' for r in (CA0, CA1, CT0, CT1)]
        for l in B.cons1p(adv, flag, hook.l + [f'v_mov_b32 v{THR}, v{THRV}']): a(l)
        stamp(a, cfg, 4)
        check('C_w16', 'C_g16')
        stamp(a, cfg, 8)
        a('s_setprio 3')
        for l in B.cons1x(wvr, True): a(l)
    if slow:
        if cfg.cpp: a(f's_setprio {cfg.cmain}')
        a(f's_call_b64 {RET}, {Z}_blk')
        stamp(a, cfg, 5)
        a(f's_load_dword s47, {SDBG}, 0')
        if cfg.c2 is not None: a(f's_setprio {cfg.c2}')
        a(f's_call_b64 {RET}, {Z}_blk')
        stamp(a, cfg, 6)
        arrive(a, 17, 14, 15)
        a('s_cmp_eq_u32 s47, 0')
        a(f's_cbranch_scc1 {Z}_getnonce')
        a(f'{Z}_getnonce_d:')
        mk_tag(a, T2+1)
        if cfg.c3 is not None: a(f's_setprio {cfg.c3}')
        a(f's_call_b64 {RET}, {Z}_blk')
        stamp(a, cfg, 7)
        if cfg.c4 is not None: a(f's_setprio {cfg.c4}')
        def lastwait(tag):
            a(f'{tag}:')
            a(f'ds_read_b32 v{T2+4}, v{FLA}')
            a('s_waitcnt lgkmcnt(0)')
            a(f'v_cmp_lt_u32 vcc, v{T2+4}, v{THRV}')
            a(f's_cbranch_vccnz {tag}')
            stamp(a, cfg, 8)
            a('s_setprio 3')
        a('s_cmp_eq_u32 s56, 0')
        a(f's_cbranch_scc1 {Z}_r3s')
        a(f's_call_b64 {RET}, {Z}_blk')
        a(f's_mov_b32 s51, {(13 - 18) * 6144}')
        for r in (CA0, CA1, CT0, CT1): a(f'v_add_u32 v{r}, s51, v{r}')
        stamp(a, cfg, 4)
        lastwait(f'{Z}_r4w1')
        if slow:
            for l in slow_tile(0) + slow_tile(24576) + autowait(wvr, final=0): a(l)
        else:
            for l in B.cons2x(wvr, 24576): a(l)
        a(f's_branch {Z}_epi')
        a(f'{Z}_r3s:')
        a(f'v_mov_b32 v10, {PF}')
        a(f'{Z}_r3w:')
        a(f'ds_read_b32 v{T2+4}, v10')
        a('s_waitcnt lgkmcnt(0)')
        a(f'v_readfirstlane_b32 s50, v{T2+4}')
        a('s_cmp_lt_u32 s50, 4')
        a(f's_cbranch_scc1 {Z}_r3w')
        adv = [f'v_add_u32 v{r}, 24576, v{r}' for r in (CA0, CA1, CT0, CT1)]
        for l in (slow_tile(0) + adv if slow else B.cons1(extra_mid=adv)): a(l)
        stamp(a, cfg, 4)
        lastwait(f'{Z}_r4w0')
        if slow:
            for l in slow_tile(0) + autowait(wvr, final=0): a(l)
        else:
            for l in B.cons1x(wvr): a(l)
    a(f'{Z}_epi:')
    stamp(a, cfg, 9)
    if slow:
        a(f's_lshl_b32 {t0}, {sH}, 7')
        a(f's_add_u32 {t0}, {t0}, {TOT}')
        a(f'v_and_b32 v{MX+1}, 31, v1')
        a(f'v_lshlrev_b32 v{MX+1}, 2, v{MX+1}')
        a(f'v_add_u32 v{MX+1}, {t0}, v{MX+1}')
        a(f'ds_write_b32 v{MX+1}, v{MX}')
        a('s_waitcnt lgkmcnt(0)')
        lds_sync(a, 18, 'Z_sy18', MX+2, MX+3)
        a(f'v_xor_b32 v{MX+1}, {256+64}, v{MX+1}')
        a(f'ds_read_b32 v{MX+2}, v{MX+1}')
        a('s_waitcnt lgkmcnt(0)')
        for l in slow_rescale(MX+2): a(l)
        a(f'v_mov_b32 v{MX+1}, s47')
        a('s_mov_b32 exec_lo, 0\ns_mov_b32 exec_hi, 0xffff')
        a(f'buffer_store_dwordx2 {vr(MX,2)}, v{MRA}, {RWS}, 0 offen sc1')
        a('s_mov_b64 exec, -1')
    UP, CX, RX, RS = 96, 120, 128, 144
    def cvtU(t): return [f'v_cvt_pk_bf16_f32 v{UP+8*t+i}, v{U+16*t+2*i}, v{U+16*t+2*i+1}' for i in range(8)]
    def pj(src, tt, t, first=False):
        return f'{MF16} {vr(CX+4*tt,4)}, {vr(WV+(tt*3+t)*4,4)}, {vr(src,4)}, {"0" if first else vr(CX+4*tt,4)}'
    def snd(t, hi): return f'ds_write_b128 v{XP}, {vr(UP+8*t+4*hi,4)} offset:{1024*t+256*hi}'
    def own(t): return f'ds_read_b128 {vr(RS+4*t,4)}, v{XO} offset:{1024*t}'
    EN = T2
    enc = [f'v_cndmask_b32 v{EN}, v{LA}, v{LA+1}, s[44:45]', f'v_and_b32 v{EN+2}, s46, v{EN}', f'v_sub_f32 v{EN}, v{EN}, v{EN+2}',
           f'v_cndmask_b32 v{EN}, v{EN+2}, v{EN}, s[52:53]', f'v_bfi_b32 v{EN}, s46, v{EN}, v{T2+1}']
    c0, c1, c2 = cvtU(0), cvtU(1), cvtU(2)
    E = [enc, f'ds_write_b32 v{XLW}, v{EN} offset:3072',
         c0[:4], snd(0,0), c0[4:], snd(0,1), c1[:4], snd(1,0), own(0), c1[4:], snd(1,1), c2[:4], snd(2,0), own(1), c2[4:], snd(2,1),
         f'ds_write_b32 v{FP}, v{ONE}', own(2)]
    if cfg.xv == 0:
        def swp(t): return [f'v_permlane16_swap_b32 v{UP+8*t+i}, v{UP+8*t+4+i}' for i in range(4)]
        def snd(t, hi=0): return f'ds_write_b128 v{XP}, {vr(UP+8*t+4,4)} offset:{1024*t}'
        E = [enc, f'ds_write_b32 v{XLW}, v{EN} offset:3072',
             c0, c1[:2], swp(0), c1[2:4], snd(0), c1[4:8], c2[:2], swp(1), c2[2:4], snd(1), c2[4:8], 's_nop 0', swp(2), 's_nop 0', snd(2),
             f'ds_write_b32 v{FP}, v{ONE}']
    for l in flat(E):
        if cfg.etr and not slow and l == snd(0,0): a(f"{TM(cfg)} s[{STAMP0+22}:{STAMP0+23}]")
        if cfg.etr and not slow and l.startswith(f'ds_write_b32 v{FP}'): a(f"{TM(cfg)} s[{STAMP0+24}:{STAMP0+25}]")
        a(l)
    def poll():
        a(f'ds_read_b32 v15, v{FO}')
        for t in range(3): a(f'ds_read_b128 {vr(RX+4*t,4)}, v{XO} offset:{3072+1024*t}')
        a(f'ds_read_b32 v{RX+12}, v{XLR} offset:6144')
    if cfg.xv == 0:
        mm = [pj(UP,0,0,True), pj(UP,1,0,True), pj(UP+8,0,1), pj(UP+8,1,1), pj(UP+16,0,2), pj(UP+16,1,2)]
        for l in mm[:cfg.xd]: a(l)
        poll()
        for l in mm[cfg.xd:]: a(l)
    else:
        poll()
        a('s_waitcnt lgkmcnt(7)')
        a(pj(RS,0,0,True)); a(pj(RS,1,0,True)); a(pj(RS+4,0,1)); a(pj(RS+4,1,1))
        a('s_waitcnt lgkmcnt(5)')
        a(pj(RS+8,0,2)); a(pj(RS+8,1,2))
    if cfg.etr and not slow: a(f"{TM(cfg)} s[{STAMP0+26}:{STAMP0+27}]")
    a(f'{Z}_xw:')
    a('s_waitcnt lgkmcnt(4)')
    a('v_cmp_eq_u32 vcc, 0, v15')
    a(f's_cbranch_vccnz {Z}_xr')
    if cfg.etr and not slow: a(f"{TM(cfg)} s[{STAMP0+28}:{STAMP0+29}]")
    for t in range(3):
        a(f's_waitcnt lgkmcnt({3-t})')
        a(pj(RX+4*t,0,t)); a(pj(RX+4*t,1,t))
    a('s_waitcnt lgkmcnt(0)')
    a(f'v_cndmask_b32 v{EN}, v{EN}, v{RX+12}, s[44:45]')
    a(f'v_cvt_pk_bf16_f32 v{CX}, v{CX}, v{CX+1}')
    a(f'v_cvt_pk_bf16_f32 v{CX+1}, v{CX+2}, v{CX+3}')
    a(f'v_mov_b32 v{CX+3}, v{EN}')
    a(f'v_cvt_pk_bf16_f32 v{CX+2}, v{CX+4}, v{CX+5}')
    a(f'v_cvt_pk_bf16_f32 v{CX+4}, v{CX+6}, v{CX+7}')
    a(f'v_permlane32_swap_b32 v{CX+2}, v{CX+4}')
    a(f'buffer_store_dwordx4 {vr(CX,4)}, v{REC}, {RWS}, 0 offen sc1')
    stamp(a, cfg, 10)
    a('s_cmp_ge_u32 s2, 16')
    a('s_cbranch_scc1 L_exit')
    if slow:
        a(f'v_mov_b32 v14, {CNT + 4*7}')
        a(f'v_mov_b32 v15, 0x101')
        a('s_mov_b64 exec, 1')
        a('ds_add_u32 v14, v15')
        a('s_mov_b64 exec, -1')
        a('s_setprio 0')
        a('s_branch Z_comb')
        a('Z_xr:'); poll(); a('s_branch Z_xw')
        nonce_slow(a, 'Z_getnonce', 'Z_getnonce_d', T2)
        a('Z_wait:')
        a('s_sleep 1')
        a('Z_blk:')
        a(f'ds_read_b64 {vr(T2+4,2)}, v10')
        a('s_waitcnt lgkmcnt(0)')
        a(f'v_min_u32 v{T2+4}, v{T2+4}, v{T2+5}')
        a(f'v_readfirstlane_b32 s50, v{T2+4}')
        a(f's_cmp_lt_u32 s50, {sR}')
        a('s_cbranch_scc1 Z_wait')
        for l in slow_tile(0) + slow_tile(6144) + B.adv(): a(l)
        a(f's_add_u32 {sR}, {sR}, 1')
        a(f's_setpc_b64 {RET}')
        return
    arrive(a, 7, 14, 15)
    a('s_setprio 0')
    a('s_branch L_comb')
    a('C_xr:'); poll(); a('s_branch C_xw')

def mk_tag(a, v):
    a('s_and_b32 s50, s47, 0xbfff')
    a('s_lshr_b32 s51, s47, 16')
    a('s_and_b32 s51, s51, 0xbfff')
    a('s_mov_b32 s46, 0xffff0000')
    a(f'v_mov_b32 v{v}, s50')
    a(f'v_mov_b32 v{v+1}, s51')
    a(f'v_cndmask_b32 v{v}, v{v}, v{v+1}, s[52:53]')

def comb_tag(a, v):
    a('s_and_b32 s50, s47, 0xbfff')
    a('s_lshr_b32 s51, s47, 16')
    a('s_and_b32 s51, s51, 0xbfff')
    a('s_mov_b32 s48, 0xaaaaaaaa\ns_mov_b32 s49, 0xaaaaaaaa')
    a(f'v_mov_b32 v{v}, s50')
    a(f'v_mov_b32 v{v+1}, s51')
    a(f'v_cndmask_b32 v{v}, v{v}, v{v+1}, s[48:49]')

def comb_q(a):
    a('v_and_b32 v6, 15, v1')
    a('s_lshl_b32 s43, s3, 4')
    a('v_add_u32 v6, s43, v6')
    a('v_min_u32 v6, 95, v6')
    a('s_mul_i32 s44, s2, 96')
    a('v_add_u32 v6, s44, v6')
    a('v_lshlrev_b32 v6, 1, v6')
    a(f'global_load_ushort v7, v6, {SQ}')

def comb_setup(a, withq=True):
    if withq: comb_q(a)
    a('v_lshl_add_u32 v29, v16, 3, v28')
    a('v_mul_u32_u24 v29, 192, v29')
    a('v_lshl_add_u32 v29, v19, 3, v29')
    a('s_lshl_b32 s45, s3, 5')
    a(f'v_add_u32 v14, s45, v29')
    a('v_and_b32 v28, 15, v1')
    a('v_mul_u32_u24 v15, 384, v16')
    a('v_lshl_add_u32 v15, v28, 4, v15')
    a('s_mul_i32 s45, s3, 1536')
    a(f's_add_u32 s45, s45, {FIN}')
    a(f'v_add_u32 v15, s45, v15')
    a('v_and_b32 v29, 7, v1')
    a('v_lshlrev_b32 v8, 2, v29')
    a('s_mov_b32 s45, 0x75316240')
    a('v_bfe_u32 v8, s45, v8, 4')
    a('v_add_u32 v8, 48, v8')
    a('v_cmp_lt_u32 vcc, 7, v28')
    a('v_lshlrev_b32 v17, 6, v16')
    a('v_cndmask_b32 v8, v29, v8, vcc')
    a('v_lshl_add_u32 v8, v8, 3, v17')
    a(f'v_add_u32 v8, {FIN}, v8')
    a('s_lshl_b32 s45, s3, 8')
    a(f's_add_u32 s45, s45, {CTX}')
    a('v_lshlrev_b32 v9, 2, v28')
    a('v_mad_u32_u24 v9, v16, 48, v9')
    a('v_mov_b32 v29, 192')
    a('v_cmp_lt_u32 vcc, 11, v28')
    a('v_lshlrev_b32 v10, 4, v16')
    a('v_add_u32 v10, s45, v10')
    a('v_cndmask_b32 v9, v9, v29, vcc')
    a('v_add_u32 v9, s45, v9')

def gen_slow_combine(a):
    D, ACC, T = 32, 20, 28
    MA, MW = 64, 96
    a('Z_comb:')
    a('v_lshlrev_b32 v2, 4, v1')
    a('s_lshl_b32 s40, s2, 16')
    a('s_lshl_b32 s41, s3, 13')
    a('s_add_u32 s40, s40, s41')
    a('s_add_u32 s41, s40, 4096')
    a('v_lshrrev_b32 v16, 4, v1')
    a('v_bfe_u32 v28, v1, 2, 2')
    a('v_and_b32 v19, 3, v1')
    a('v_lshlrev_b32 v3, 11, v28')
    a('v_lshl_add_u32 v4, v16, 3, v3')
    a('v_lshl_add_u32 v3, v16, 9, v3')
    a('v_lshl_add_u32 v3, v19, 7, v3')
    a(f's_lshl_b32 s42, s2, 13\ns_add_u32 s42, s42, {MREC}')
    a(f's_lshl_b32 s52, s3, 8\ns_add_u32 s52, s52, s42')
    comb_setup(a)
    comb_tag(a, 12)
    for i in range(8): a(f'v_mov_b32 v{ACC+i}, 0')
    a('s_branch Z_poll')
    a('Z_again:')
    a('s_sleep 4')
    a('Z_poll:')
    for i in range(8): a(f'buffer_load_dwordx4 {vr(D+4*i,4)}, v2, {RWS}, {"s40" if i<4 else "s41"} offen offset:{1024*(i%4)} sc1')
    for i in range(8): a(f'buffer_load_dwordx4 {vr(MA+4*i,4)}, v3, {RWS}, s42 offen offset:{16*i} sc1')
    for i in range(8): a(f'buffer_load_dwordx2 {vr(MW+2*i,2)}, v4, {RWS}, s52 offen offset:{32*i} sc1')
    a('s_waitcnt vmcnt(0)')
    a(f'v_mov_b32 v{T}, 0')
    for i in range(8):
        a(f'v_xor_b32 v{T+1}, v12, v{D+4*i+3}')
        a(f'v_and_b32 v{T+1}, 0xffff, v{T+1}')
        a(f'v_or_b32 v{T}, v{T}, v{T+1}')
    for t in [MA+2*i+1 for i in range(16)] + [MW+2*i+1 for i in range(8)]:
        a(f'v_xor_b32 v{T+1}, s47, v{t}')
        a(f'v_or_b32 v{T}, v{T}, v{T+1}')
    a(f'v_cmp_ne_u32 vcc, 0, v{T}')
    a('s_nop 4')
    a('s_cbranch_vccnz Z_again')
    M = MA
    for i in range(1, 16): a(f'v_max_f32 v{M}, v{M}, v{MA+2*i}')
    a('s_nop 1')
    a(f'v_mov_b32_dpp v{M+1}, v{M} quad_perm:[1,0,3,2] row_mask:0xf bank_mask:0xf')
    a(f'v_max_f32 v{M}, v{M}, v{M+1}')
    a('s_nop 1')
    a(f'v_mov_b32_dpp v{M+1}, v{M} quad_perm:[2,3,0,1] row_mask:0xf bank_mask:0xf')
    a(f'v_max_f32 v{M}, v{M}, v{M+1}')
    def allrows(r, op):
        for sw in ('v_permlane16_swap_b32', 'v_permlane32_swap_b32'):
            a(f'v_mov_b32 v{T}, v{r}')
            a('s_nop 1')
            a(f'{sw} v{r}, v{T}')
            a('s_nop 1')
            a(f'{op} v{r}, v{r}, v{T}')
    allrows(M, 'v_max_f32')
    a('s_mov_b32 s46, 0xffff0000')
    for i in range(8):
        a(f'v_sub_f32 v{MW+2*i}, v{MW+2*i}, v{M}')
        a(f'v_exp_f32 v{MW+2*i}, v{MW+2*i}')
        a('s_nop 1')
        for j in range(4):
            a(f'v_lshlrev_b32 v{T}, 16, v{D+4*i+j}')
            a(f'v_and_b32 v{T+1}, s46, v{D+4*i+j}')
            if j < 3: a(f'v_fmac_f32 v{ACC+2*j}, v{T}, v{MW+2*i}')
            a(f'v_fmac_f32 v{ACC+2*j+1}, v{T+1}, v{MW+2*i}')
    for j in range(8): allrows(ACC+j, 'v_add_f32')
    a('v_cmp_eq_u32 vcc, 0, v16')
    a('s_nop 1')
    for j in range(4): a(f'v_cndmask_b32 v{ACC+j}, v{ACC+4+j}, v{ACC+j}, vcc')
    a('s_nop 1')
    a('s_branch K_red')

def gen_combine(a, cfg):
    D, ACC, T = 128, 20, 28
    NS = 9
    a('L_comb:')
    if cfg.trp: a('s_branch L_exit')
    a('v_lshlrev_b32 v2, 4, v1')
    a('s_lshl_b32 s40, s2, 16')
    a('s_lshl_b32 s41, s3, 13')
    a('s_add_u32 s40, s40, s41')
    a('s_add_u32 s41, s40, 4096')
    def load(i):
        a(f'buffer_load_dwordx4 {vr(D+4*i,4)}, v2, {RWS}, {"s40" if i<4 else "s41"} offen offset:{1024*(i%4)} sc1' + (' nt' if cfg.pollnt else ''))
    PM = lambda i: f's[{6+2*i}:{7+2*i}]'
    SEL = 24
    stamp(a, cfg, 11)
    if cfg.ktrace:
        for j in list(range(1, 8)) + [12]: a(f's_mov_b64 s[{STAMP0+2*j}:{STAMP0+2*j+1}], 0')
    if cfg.roll or cfg.dyn: comb_q(a)
    for i in range(8): load(i)
    a('v_lshrrev_b32 v16, 4, v1')
    a('v_bfe_u32 v28, v1, 2, 2')
    a('v_and_b32 v19, 3, v1')
    comb_setup(a, not (cfg.roll or cfg.dyn))
    comb_tag(a, 12)
    a('v_and_b32 v29, 1, v1')
    a('v_lshlrev_b32 v29, 4, v29')
    a('v_mov_b32 v17, 0x3f80')
    a('v_lshlrev_b32 v29, v29, v17')
    a('v_lshrrev_b32 v28, 1, v28')
    for r in range(4):
        a(f'v_cmp_eq_u32 vcc, {r}, v28')
        a(f'v_cndmask_b32 v{SEL+r}, 0, v29, vcc')
    if cfg.dyn:
        K = cfg.dyn
        J = lambda k: f's{6+k}'
        for i in range(4): a(f'v_mov_b32 v{ACC+i}, 0')
        a('s_mov_b32 s42, 0xff')
        a('s_mov_b32 s43, 7')
        def pick(k):
            a('s_lshl_b32 s44, -2, s43')
            a('s_and_b32 s44, s44, s42')
            a('s_cselect_b32 s44, s44, s42')
            a('s_ff1_i32_b32 s43, s44')
            a('s_lshl_b32 s44, s43, 10')
            a('s_add_u32 s44, s44, s40')
            a(f's_mov_b32 {J(k)}, s43')
            a(f'buffer_load_dwordx4 {vr(D+4*k,4)}, v2, {RWS}, s44 offen sc1')
        for i in range(8):
            a(f's_waitcnt vmcnt({7-i+min(i,K)})')
            if i == 0: stamp(a, cfg, 12)
            a(f'v_cmp_ne_u16 vcc, v12, v{D+4*i+3}')
            a(f's_cbranch_vccnz K_f{i}')
            a(f'{MF16} {vr(ACC,4)}, {vr(SEL,4)}, {vr(D+4*i,4)}, {vr(ACC,4)}')
            a(f's_bitset0_b32 s42, {i}')
            if i == 7:
                a('s_cmp_eq_u32 s42, 0')
                a('s_cbranch_scc1 K_red0')
            a(f'K_f{i}:')
            if i < K: pick(i)
        a('K_chk:')
        for k in range(K):
            a(f's_waitcnt vmcnt({K-1})')
            if cfg.ktrace and k == 0:
                a('s_waitcnt lgkmcnt(0)')
                for j in range(1, 7): a(f's_mov_b64 s[{STAMP0+2*j}:{STAMP0+2*j+1}], s[{STAMP0+2*j+2}:{STAMP0+2*j+3}]')
                a(f's_mov_b64 s[{STAMP0+14}:{STAMP0+15}], s[{STAMP0+24}:{STAMP0+25}]')
                stamp(a, cfg, 12)
            a(f'v_cmp_ne_u16 vcc, v12, v{D+4*k+3}')
            a(f's_cbranch_vccnz K_n{k}')
            a(f's_bitcmp0_b32 s42, {J(k)}')
            a(f's_cbranch_scc1 K_n{k}')
            a(f'{MF16} {vr(ACC,4)}, {vr(SEL,4)}, {vr(D+4*k,4)}, {vr(ACC,4)}')
            a(f's_bitset0_b32 s42, {J(k)}')
            a('s_cmp_eq_u32 s42, 0')
            a('s_cbranch_scc1 K_red0')
            a(f'K_n{k}:')
            pick(k)
        a('s_branch K_chk')
        a('K_red0:')
        a('s_nop 4')
    elif cfg.roll:
        for i in range(4): a(f'v_mov_b32 v{ACC+i}, 0')
        a('s_mov_b32 s42, 0xff')
        a('K_chk:')
        for i in range(8):
            a('s_waitcnt vmcnt(7)')
            if cfg.ktrace and i == 0:
                a('s_waitcnt lgkmcnt(0)')
                for j in range(1, 7): a(f's_mov_b64 s[{STAMP0+2*j}:{STAMP0+2*j+1}], s[{STAMP0+2*j+2}:{STAMP0+2*j+3}]')
                a(f's_mov_b64 s[{STAMP0+14}:{STAMP0+15}], s[{STAMP0+24}:{STAMP0+25}]')
            if i == 0: stamp(a, cfg, 12)
            a(f'v_cmp_ne_u16 vcc, v12, v{D+4*i+3}')
            a('s_cmp_lg_u64 vcc, 0')
            a('s_cselect_b64 exec, -1, 0')
            load(i)
            a('s_mov_b64 exec, -1')
            a(f's_cbranch_scc1 K_n{i}')
            a(f's_bitcmp0_b32 s42, {i}')
            a(f's_cbranch_scc1 K_n{i}')
            a(f'{MF16} {vr(ACC,4)}, {vr(SEL,4)}, {vr(D+4*i,4)}, {vr(ACC,4)}')
            a(f's_bitset0_b32 s42, {i}')
            a('s_cmp_eq_u32 s42, 0')
            a('s_cbranch_scc1 K_red0')
            a(f'K_n{i}:')
        a('s_branch K_chk')
        a('K_red0:')
        a('s_nop 4')
    else:
        a('K_chk:')
        a('s_waitcnt vmcnt(0)')
        if cfg.ktrace:
            a('s_waitcnt lgkmcnt(0)')
            for j in range(1, 7): a(f's_mov_b64 s[{STAMP0+2*j}:{STAMP0+2*j+1}], s[{STAMP0+2*j+2}:{STAMP0+2*j+3}]')
            a(f's_mov_b64 s[{STAMP0+14}:{STAMP0+15}], s[{STAMP0+24}:{STAMP0+25}]')
        stamp(a, cfg, 12)
        for i in range(8):
            a(f'v_cmp_ne_u16 {PM(i)}, v12, v{D+4*i+3}')
            a(f'{MF16} {vr(ACC,4)}, {vr(SEL,4)}, {vr(D+4*i,4)}, {"0" if i == 0 else vr(ACC,4)}')
            if i == 2: a(f's_or_b64 s[50:51], {PM(0)}, {PM(1)}')
            if i > 2: a(f's_or_b64 s[50:51], s[50:51], {PM(i-1)}')
        a(f's_or_b64 s[50:51], s[50:51], {PM(7)}')
        a('s_cbranch_scc1 K_retry')
    a('K_red:')
    stamp(a, cfg, 13)
    a(f'ds_write_b128 v15, {vr(ACC,4)}')
    Bq, C = 40, 56
    a('s_waitcnt lgkmcnt(0)')
    a('s_barrier')
    if cfg.fine: stamp(a, cfg, 15)
    a('s_cmp_ge_u32 s3, 6')
    a('s_cbranch_scc1 L_exit6')
    for k in range(4): a(f'ds_read2st64_b64 {vr(C+4*k,4)}, v8 offset0:{6*k} offset1:{6*k+3}')
    for s in range(3):
        for sec in range(2):
            a(f'ds_read_b64_tr_b16 {vr(Bq+4*s+2*sec,2)}, v14 offset:{s*6144+sec*768}')
    a('v_lshlrev_b32 v7, 16, v7')
    a('s_waitcnt lgkmcnt(8)')
    for i in range(4): a(f'v_add_f32 v{C+i}, v{C+i}, v{C+4+i}')
    a('s_waitcnt lgkmcnt(6)')
    for i in range(4): a(f'v_add_f32 v{C+8+i}, v{C+8+i}, v{C+12+i}')
    for i in (0, 2, 1, 3): a(f'v_add_f32 v{C+i}, v{C+i}, v{C+8+i}')
    a(f'v_add_f32 v{C}, v{C}, v{C+2}')
    a(f'v_add_f32 v{C+1}, v{C+1}, v{C+3}')
    a(f'v_add_f32_dpp v{C+2}, v{C+1}, v{C+1} quad_perm:[1,0,3,2] row_mask:0xf bank_mask:0xf')
    a(f'v_add_f32_dpp v{C+2}, v{C+2}, v{C+2} quad_perm:[2,3,0,1] row_mask:0xf bank_mask:0xf')
    a(f'v_mov_b32_dpp v{C+2}, v{C+2} row_newbcast:12 row_mask:0xf bank_mask:0xf')
    a(f'v_rcp_f32 v{C+2}, v{C+2}')
    a(f'v_mul_f32 v{C}, v{C}, v{C+2}')
    a(f'v_mul_f32 v{C+1}, v{C+1}, v{C+2}')
    a(f'v_cvt_pk_bf16_f32 v{C}, v{C}, v{C+1}')
    a(f'ds_write_b32 v9, v{C}')
    for s in range(3): a(f'ds_read_b128 {vr(C+4+4*s,4)}, v10 offset:{64*s}')
    for s in range(3):
        c = '0' if s == 0 else 'v[88:91]'
        a(f's_waitcnt lgkmcnt({2-s})')
        a(f'{MF16} v[88:91], {vr(C+4+4*s,4)}, {vr(Bq+4*s,4)}, {c}')
    a('v_cvt_pk_bf16_f32 v88, v88, v88')
    a('v_and_b32 v88, 0xffff0000, v88')
    a('v_add_f32 v88, v88, v7')
    a('v_cvt_pk_bf16_f32 v88, v88, v88')
    a('s_mov_b64 exec, 0xffff')
    a('s_waitcnt vmcnt(0)')
    a(f'global_store_short v6, v88, {SOUT}')
    a('s_mov_b64 exec, -1')
    stamp(a, cfg, 14)
    if cfg.diag:
        a('s_memrealtime s[98:99]')
        a('s_waitcnt lgkmcnt(0)')
        a('v_mov_b32 v20, s98\nv_mov_b32 v21, 36')
        a('s_mov_b64 exec, 1')
        a(f'global_atomic_umax v21, v20, {SDBG}')
        a('s_mov_b64 exec, -1')
    a('L_exit:')
    if cfg.diag:
        a('s_cmp_eq_u32 s3, 4')
        a('s_cbranch_scc0 L_end')
        a('s_memrealtime s[98:99]')
        a('s_getreg_b32 s50, hwreg(HW_REG_XCC_ID, 0, 4)')
        a('s_and_b32 s50, s50, 7')
        a('s_lshl_b32 s50, s50, 2')
        a('s_add_u32 s50, s50, 4')
        a('s_waitcnt lgkmcnt(0)')
        a('v_mov_b32 v20, s96\nv_mov_b32 v21, s50\nv_mov_b32 v22, s98\nv_mov_b32 v23, 40')
        a('s_mov_b64 exec, 1')
        a(f'global_store_dword v21, v20, {SDBG}')
        a('s_cmp_lt_u32 s2, 16')
        a('s_cbranch_scc1 L_end')
        a(f'global_atomic_umax v23, v22, {SDBG}')
        a('s_mov_b64 exec, -1')
    stamp_flush(a, cfg)
    a('L_end:')
    a('s_endpgm')
    a('L_exit6:')
    a('s_waitcnt vmcnt(0)')
    a('s_branch L_exit')
    if cfg.roll or cfg.dyn: return
    a('K_retry:')
    if cfg.ksleep: a(f's_sleep {cfg.ksleep}')
    for i in range(8):
        a(f's_cmp_lg_u64 {PM(i)}, 0')
        a('s_cselect_b64 exec, -1, 0')
        load(i)
    a('s_mov_b64 exec, -1')
    a('s_branch K_chk')

def build(cfg):
    a = Asm()
    a.raw(f'; @launch grid=(256,1,1) block=(512,1,1) lds={LDS_BYTES}')
    a.raw('.amdgcn_target "amdgcn-amd-amdhsa--gfx950"')
    a.raw('.text')
    a.raw(f'.globl {KNAME}'); a.raw('.p2align 8'); a.raw(f'.type {KNAME},@function'); a.raw(f'{KNAME}:')
    gen_entry(a, cfg)
    gen_producer(a, cfg)
    gen_consumer(a, cfg)
    gen_combine(a, cfg)
    a.raw('L_codeend:')
    cons_main(a, cfg, True)
    gen_slow_combine(a)
    txt = a.finish(verbose=True)
    txt = txt.replace('    ; @launch', '; @launch')
    txt += f'''.section .rodata,"a"
.p2align 6
.amdhsa_kernel {KNAME}
  .amdhsa_next_free_vgpr 256
  .amdhsa_next_free_sgpr 100
  .amdhsa_accum_offset 256
  .amdhsa_group_segment_fixed_size 0
  .amdhsa_kernarg_size 96
  .amdhsa_user_sgpr_count 2
  .amdhsa_user_sgpr_kernarg_segment_ptr 1
  .amdhsa_system_sgpr_workgroup_id_x 1
.end_amdhsa_kernel
'''
    return txt

if __name__ == '__main__':
    cfg = Cfg()
    out = sys.argv[1]
    for o in sys.argv[2:]:
        if '=' in o:
            k, v = o.split('='); setattr(cfg, k, int(v))
        else: setattr(cfg, o, True)
    open(out, 'w').write(build(cfg))
```

```python
import sys, math, struct
from asmlib import Asm, autowait
import blocks as B
from blocks import vr, f32, MF32, MF16, flat

KNAME = 'standalone__detection_seg_mask2former__vision_kernel'

HI = 0
WM = 12 * 6144
QS = 15 * 6144
WQ = 16 * 6144
LO = 110592 + 6144
WREG = LO + 27648
SCR = WREG + 18432
TOT = SCR
PF = SCR + 512
TKT = SCR + 528
CNT = SCR + 544
XCH = LO
XST = 6912
WO = 0
FIN = 20480
CTX = 32768
LDS_BYTES = SCR + 1024
assert LDS_BYTES <= 163840 and LO <= XCH and XCH + 4 * XST <= WREG
B.C.TB = 6144
LREC = 16 * 256 * 256
MREC = LREC
REC_BYTES = MREC + 16 * 4 * 256 * 8
BOUND = 80.0
THR = BOUND * BOUND / 96 / (1 + 2 ** -8) ** 2
STAMP_OFF = 4 << 20
FSW = sum(((((-(px >> 2)) & 3) ^ ((px >> 1) & 1)) << (2 * px)) for px in range(16))

class Cfg:
    stamps = False
    cyc = False
    repf = 0
    cvar = 0
    g0pos = 1
    fine = 0
    wvpos = 2
    h0pos = 1
    cpp = 0
    cmain = 0
    pp = 0
    deep = 1
    h1early = 0
    pwait = 1
    ksleep = 0
    r1late = 0
    pm = 2
    pv = 0
    pl = 2
    cearly = 0
    trp = 0
    trc = 0
    touch = 3
    t0pre = 0
    wkpos = 1
    dry = 0
    tokpos = -1
    wvr = 2
    ktrace = 0
    pollnt = 0
    roll = 0
    dyn = 5
    diag = 0
    early = 0
    tok2 = 1
    bist = 0
    mfirst = 1
    b2 = 0
    wvar = 0
    etr = 0
    xv = 0
    xd = 2
    fake = 0
    fsc = 0
    wsl = 0
    pk = 0
    uni = 0
    spec = 1
    tord = 0
    lopos = -1
    c2 = None
    c3 = None
    c4 = None

SQ, SHI, SLO, SWL, SWQ, SWK, SWV, SWO, SWM, SOUT, SDBG, SWS = [f's[{4+2*i}:{5+2*i}]' for i in range(12)]
RHI, RLO, RWS = 's[28:31]', 's[32:35]', 's[36:39]'
SF = 's63'
STAMP0 = 64

def TM(cfg): return 's_memtime' if cfg.cyc else 's_memrealtime'

def stamp(a, cfg, i, inner=False):
    if cfg.b2 and i in (11, 12, 13, 14, 15) : return
    if cfg.bist:
        import inspect
        src = inspect.stack()[1].code_context[0]
        if 'bist' not in src and i in (4, 5, 6, 7, 8, 11, 12, 13, 14) and inspect.stack()[1].function != 'script': return
    if cfg.trp and not inner and i != 0: return
    if inner and not cfg.trp: return
    if cfg.stamps: a(f"{'s_memtime' if cfg.cyc else 's_memrealtime'} s[{STAMP0+2*i}:{STAMP0+2*i+1}]")

def stamp_flush(a, cfg, tmpv=100):
    if not cfg.stamps: return
    a('s_cmp_eq_u32 s98, 0')
    a('s_cbranch_scc1 L_nosl')
    a('s_sleep 100')
    a('L_nosl:')
    a('s_waitcnt lgkmcnt(0)')
    a('s_lshl_b32 s61, s2, 3\ns_add_u32 s61, s61, s3')
    a(f's_lshl_b32 s62, s61, 7')
    a(f's_add_u32 s62, s62, {STAMP_OFF}')
    for i in range(32): a(f'v_mov_b32 v{tmpv+i}, s{STAMP0+i}')
    a(f'v_mov_b32 v{tmpv+32}, 0')
    a('s_mov_b64 exec, 1')
    a('s_mov_b32 s56, s26\ns_mov_b32 s57, s27\ns_mov_b32 s58, 0x1000000\ns_mov_b32 s59, 0x20000')
    for i in range(8):
        a(f'buffer_store_dwordx4 {vr(tmpv+4*i,4)}, v{tmpv+32}, s[56:59], s62 offen offset:{16*i}')
    a('s_mov_b64 exec, -1')

def dma_swz(a, dst, k, tmp, dst2):
    a(f'v_add_u32 v{tmp}, {64*k if isinstance(k,int) else k}, v1')
    a(f'v_mul_u32_u24 v{tmp}, 0xaaab, v{tmp}')
    a(f'v_lshrrev_b32 v{tmp}, 18, v{tmp}')
    a(f'v_and_b32 v{dst2}, 0x1e, v{tmp}')
    a(f'v_bfe_u32 v{tmp}, {SF}, v{dst2}, 2')
    a(f'v_xor_b32 v{tmp}, v{tmp}, v1')
    a(f'v_lshlrev_b32 v{dst}, 4, v{tmp}')

def dma_part(a, ptr, ldsbase, voff, spart):
    lo = int(ptr[2:ptr.index(':')])
    a(f's_add_u32 m0, {spart}, {ldsbase}')
    a(f's_add_u32 s50, s{lo}, 4096')
    for k in range(4): a(f'global_load_lds_dwordx4 v{voff}, {ptr} offset:{1024*k}')
    a(f's_addc_u32 s51, s{lo+1}, 0')
    a(f's_add_u32 m0, {spart}, {ldsbase+4096}')
    a('s_mov_b32 exec_hi, 0')
    a(f'global_load_lds_dwordx4 v{voff}, s[50:51]')
    a('s_mov_b32 exec_hi, -1')

def dma_extra(a, ptr, ldsbase, voff, sbase):
    lo = int(ptr[2:ptr.index(':')])
    a(f's_add_u32 s50, s{lo}, 4096')
    a(f's_addc_u32 s51, s{lo+1}, 0')
    a(f's_add_u32 m0, {sbase}, {ldsbase+4096}')
    a('s_nop 0')
    a(f'global_load_lds_dwordx4 v{voff}, s[50:51]')

def dma_main(a, ptr, ldsbase, voff, sbase):
    a(f's_add_u32 m0, {sbase}, {ldsbase}')
    a('s_nop 0')
    for k in range(4): a(f'global_load_lds_dwordx4 v{voff}, {ptr} offset:{1024*k}')

def arrive(a, which, va, vd, rtn=False):
    a(f'v_mov_b32 v{va}, {CNT + 4*which}')
    a(f'v_mov_b32 v{vd}, 1')
    a('s_mov_b64 exec, 1')
    a(f'ds_add_rtn_u32 v{vd}, v{va}, v{vd}' if rtn else f'ds_add_u32 v{va}, v{vd}')
    a('s_mov_b64 exec, -1')

def await_cnt(a, which, tag, va, vd, n=4, setaddr=True):
    if setaddr: a(f'v_mov_b32 v{va}, {CNT + 4*which}')
    a(f'{tag}:')
    a(f'ds_read_b32 v{vd}, v{va}')
    a('s_waitcnt lgkmcnt(0)')
    a(f'v_readfirstlane_b32 s50, v{vd}')
    a(f's_cmp_lt_u32 s50, {n}')
    a(f's_cbranch_scc1 {tag}')

def lds_sync(a, which, tag, va, vd, n=4):
    arrive(a, which, va, vd, rtn=True)
    a('s_waitcnt lgkmcnt(0)')
    a(f'v_readfirstlane_b32 s50, v{vd}')
    a(f's_cmp_ge_u32 s50, {n-1}')
    a(f's_cbranch_scc1 {tag}_ok')
    await_cnt(a, which, tag + '_spin', va, vd, n, setaddr=False)
    a(f'{tag}_ok:')

def code_prefetch(a, tag, vt, tidoff, sp='s[44:45]', start=KNAME):
    lo = int(sp[2:sp.index(':')])
    a(f's_getpc_b64 {sp}')
    a(f'{tag}:')
    a(f's_add_u32 s{lo}, s{lo}, {start}-{tag}')
    a(f's_addc_u32 s{lo+1}, s{lo+1}, {"-1" if start == KNAME else "0"}')
    a(f'v_add_u32 v{vt}, {tidoff}, v0')
    a(f'v_lshlrev_b32 v{vt}, 7, v{vt}')
    a(f'v_min_u32 v{vt}, L_codeend-{start}-4, v{vt}')
    a(f'global_load_dword v{vt if vt == 0 else vt+1}, v{vt}, {sp}')

def nonce_slow(a, tag, back, v):
    a(f'{tag}:')
    a('s_memrealtime s[50:51]')
    a('s_waitcnt lgkmcnt(0)')
    a('s_or_b32 s47, s50, 1')
    a(f'v_mov_b32 v{v}, s47\nv_mov_b32 v{v+1}, 0\nv_mov_b32 v{v+2}, 0')
    a('s_mov_b64 exec, 1')
    a(f'global_atomic_cmpswap v{v}, v{v+2}, {vr(v,2)}, {SDBG} sc0 sc1')
    a('s_mov_b64 exec, -1')
    a('s_waitcnt vmcnt(0)')
    a(f'v_readfirstlane_b32 s50, v{v}')
    a('s_cmp_eq_u32 s50, 0')
    a('s_cselect_b32 s47, s47, s50')
    a(f's_branch {back}')

def gen_entry(a, cfg):
    a('s_cmp_ge_u32 s2, 256')
    a('s_cbranch_scc1 L_end')
    if cfg.stamps:
        for i in range(32): a(f's_mov_b32 s{STAMP0+i}, 0')
        a('s_mov_b32 s98, 1')
    stamp(a, cfg, 0)
    if cfg.diag: a('s_memrealtime s[96:97]')
    a('s_load_dwordx16 s[4:19], s[0:1], 0')
    a('s_load_dwordx8 s[20:27], s[0:1], 64')
    a('v_lshrrev_b32 v2, 6, v0')
    a('v_and_b32 v1, 63, v0')
    a('v_readfirstlane_b32 s3, v2')
    a(f's_mov_b32 {SF}, {FSW:#x}')
    a(f's_mov_b32 s62, {f32(1/96)}')
    a('s_cmp_ge_u32 s3, 4')
    a('s_cbranch_scc1 L_cons')

def gen_producer(a, cfg):
    W0, W1, W2, RA0, RA1, RL0, RL1 = 2, 3, 4, 5, 6, 7, 8
    S0, S1, S2 = 9, 10, 11
    WL, LT, X, F = B.P.WL, B.P.LT, B.P.X, B.P.F
    ID, OP, SM, SL, T = B.P.ID, B.P.OP, B.P.SM, B.P.SL, B.P.T
    FLA, FLV = 14, 15
    U = 232
    F0 = U + 12
    sP = 's3'
    sH0, sHS, sH8, sLo0, sSh = 's40', 's41', 's42', 's43', 's44'
    sSlot, sLoP, RET = 's45', 's46', 's[48:49]'
    t0, t1, t2 = 's52', 's53', 's54'
    M1, O1, M2, O2 = 's55', 's56', 's58', 's59'
    for k, (w, sw) in enumerate(((W0, S0), (W1, S1), (W2, S2))): dma_swz(a, w, k, U, sw)
    a(f'v_lshlrev_b32 v{U+3}, 4, v1')
    for i in range(4): a(f'v_mov_b32 v{U+4+i}, 0')
    a(f'v_add_u32 v{U+8}, {SCR}, v{U+3}')
    a(f'ds_write_b128 v{U+8}, {vr(U+4,4)}')
    a(f's_lshl_b32 s58, s2, 2')
    a(f's_add_u32 s58, s58, {sP}')
    a(f's_mul_i32 {sLo0}, s58, 6144')
    a(f's_mul_i32 {sSlot}, {sP}, 6144')
    a(f's_add_u32 {sLoP}, {sSlot}, {LO}')
    a('s_mov_b32 s34, 7077888\ns_mov_b32 s35, 0x20000')
    a('s_add_u32 s60, s2, 2048')
    a('s_mul_i32 s61, s60, 3072')
    a(f's_cmp_lt_u32 {sP}, 2')
    a(f's_cselect_b32 s55, s61, {sLo0}')
    a(f's_cselect_b32 s56, {LO+8*3072}, {sLoP}')
    a('s_mov_b32 s30, 28311552\ns_mov_b32 s31, 0x20000')
    a(f's_min_u32 {t0}, {sP}, 2')
    a(f's_lshl_b32 s47, {sP}, 2')
    a(f's_add_u32 s47, s47, {t0}')
    a(f's_lshl_b32 s47, s47, 10')
    a(f'v_add_u32 v15, s47, v{U+3}')
    a(f's_mul_i32 {t0}, s58, 43691')
    a(f's_lshr_b32 {t0}, {t0}, 18')
    a(f's_mul_i32 {t0}, {t0}, 73728')
    a(f's_mul_i32 {sH0}, s58, 12288')
    a(f's_add_u32 {sH0}, {sH0}, {t0}')
    a(f's_mul_i32 {t0}, s60, 43691')
    a(f's_lshr_b32 {t0}, {t0}, 19')
    a(f's_add_u32 {t0}, {t0}, {sP}')
    a(f's_mul_i32 {t0}, {t0}, 73728')
    a(f's_mul_i32 {sH8}, s60, 6144')
    a(f's_add_u32 {sH8}, {sH8}, {t0}')
    a(f's_cmp_lt_u32 {sP}, 2')
    a(f's_cselect_b32 s57, {sH8}, {sH0}')
    a(f's_cselect_b32 {sSh}, 1, 0')
    a(f's_cselect_b32 {t0}, 0, 96')
    a(f's_lshr_b32 {sHS}, 6144, {sSh}')
    if cfg.bist: stamp(a, cfg, 12)
    a(f's_cmp_lt_u32 {sP}, 2')
    a('s_waitcnt lgkmcnt(0)')
    if cfg.bist: stamp(a, cfg, 13)
    def half(srd, soff, regs=(W0, W1, W2)):
        return [f'buffer_load_dwordx4 v{w}, {srd}, {soff} offen offset:{1024*k} nt lds' for k, w in enumerate(regs)]
    a('s_mov_b32 s32, s8\ns_mov_b32 s33, s9')
    a('s_cbranch_scc1 P_sm')
    a(f's_add_u32 m0, s56, 3072')
    a(f's_add_u32 {t1}, s55, 3072')
    for l in half(RLO, t1): a(l)
    a('s_branch P_nox')
    a('P_sm:')
    dma_extra(a, SWL, WREG, 15, 's47')
    a('P_nox:')
    dma_main(a, SWL, WREG, 15, 's47')
    a(f's_mov_b32 m0, s56')
    a('s_mov_b32 s28, s6')
    for l in half(RLO, 's55'): a(l)
    a('s_mov_b32 s29, s7')
    SR = (S0, S1, S2)
    def issue_h(soff, rnd, hf, add=0):
        a(f's_add_u32 m0, {sSlot}, {rnd*4*6144+3072*hf}')
        if add + hf:
            a(f's_add_u32 {t0}, {soff}, {add+6144*hf}'); src = t0
        else:
            a('s_nop 0'); src = soff
        for l in half(RHI, src, SR): a(l)
    def issue_first(hf):
        a(f's_add_u32 m0, {sSlot}, {3072*hf}')
        if hf:
            a(f's_add_u32 {t0}, s57, {sHS}'); src = t0
        else:
            a('s_nop 0'); src = 's57'
        for l in half(RHI, src, (F0, F0+1, F0+2)): a(l)
    if cfg.bist: stamp(a, cfg, 11)
    a('s_barrier')
    for k, (w, sw) in enumerate(((W0, S0), (W1, S1), (W2, S2))):
        a(f'v_mad_u32_u24 v{F0+k}, v{sw}, {t0}, v{w}')
        a(f'v_mul_u32_u24 v{sw}, 96, v{sw}')
        a(f'v_add_u32 v{sw}, v{sw}, v{w}')
    stamp(a, cfg, 1)
    a(f'v_and_b32 v{U}, 31, v1')
    a(f'v_lshrrev_b32 v{U+1}, 5, v1')
    def rdaddr(d0, d1, px, base):
        a(f'v_lshlrev_b32 v{U+2}, 1, v{px}')
        a(f'v_and_b32 v{U+2}, 0x1e, v{U+2}')
        a(f'v_bfe_u32 v{U+2}, {SF}, v{U+2}, 2')
        a(f'v_xor_b32 v{U+2}, v{U+2}, v{U+1}')
        a(f'v_xor_b32 v{U+3}, 2, v{U+2}')
        a(f'v_mul_u32_u24 v{U+4}, 192, v{px}')
        a(f'v_add_u32 v{U+4}, {base}, v{U+4}')
        a(f'v_lshl_add_u32 v{d0}, v{U+2}, 4, v{U+4}')
        a(f'v_lshl_add_u32 v{d1}, v{U+3}, 4, v{U+4}')
    rdaddr(RA0, RA1, U, sSlot)
    a(f'v_lshrrev_b32 v{U+5}, {sSh}, v{U}')
    rdaddr(RL0, RL1, U+5, 's56')
    a(f'v_bfe_u32 v14, v1, 2, 2')
    a(f'v_lshl_add_u32 v14, v{U+1}, 3, v14')
    a(f'v_mul_u32_u24 v14, 192, v14')
    a(f'v_bfe_u32 v{U+8}, v1, 4, 1')
    a(f'v_lshl_add_u32 v14, v{U+8}, 5, v14')
    a(f'v_and_b32 v{U+3}, 1, v1')
    a(f'v_lshl_add_u32 v14, v{U+3}, 4, v14')
    a(f'v_bfe_u32 v{U+3}, v1, 1, 1')
    a(f'v_lshl_add_u32 v14, v{U+3}, 3, v14')
    a(f'v_add_u32 v14, {WREG}, v14')
    a(f'v_bfe_u32 v{U+2}, v1, 3, 1')
    a(f'v_and_b32 v{U+3}, 3, v1')
    a(f'v_lshl_add_u32 v{U+2}, v{U+2}, 2, v{U+3}')
    a(f'v_bfe_u32 v{U+3}, v1, 2, 1')
    a(f'v_cmp_eq_u32 vcc, v{U+3}, v{U+1}')
    a(f'v_and_b32 v{U+6}, 1, v{U+2}')
    a(f'v_lshlrev_b32 v{U+6}, 4, v{U+6}')
    a(f'v_mov_b32 v{U+4}, 0x3f80')
    a(f'v_lshlrev_b32 v{U+6}, v{U+6}, v{U+4}')
    a(f'v_cndmask_b32 v{U+6}, 0, v{U+6}, vcc')
    a(f'v_lshrrev_b32 v{U+2}, 1, v{U+2}')
    a(f'v_lshl_add_u32 v{U+2}, v{U+8}, 2, v{U+2}')
    a(f'v_cmp_eq_u32 s[58:59], v{U+3}, v{U+8}')
    a(f'v_mov_b32 v{U+7}, 0x3f803f80')
    for i in range(0, 8, 2):
        a(f'v_cmp_eq_u32 vcc, {i}, v{U+2}')
        a(f'v_cmp_eq_u32 s[60:61], {i+1}, v{U+2}')
        a(f'v_cndmask_b32 v{OP+i//2}, 0, v{U+7}, s[58:59]')
        a(f'v_cndmask_b32 v{ID+i}, 0, v{U+6}, vcc')
        a(f'v_cndmask_b32 v{ID+i+1}, 0, v{U+6}, s[60:61]')
    if cfg.dry:
        a('s_mov_b64 exec, 0')
        a(f's_cmp_eq_u32 {sP}, 1')
        a('s_cbranch_scc1 P_dry1')
        a(f's_cmp_eq_u32 {sP}, 2')
        a('s_cbranch_scc1 P_dry2')
        a(f's_cmp_eq_u32 {sP}, 3')
        a('s_cbranch_scc1 P_dryd')
        a(f's_call_b64 {RET}, P_h0')
        a('P_dryd:')
        a('s_mov_b64 exec, -1')
        stamp(a, cfg, 15)
    if cfg.tokpos == 0 and cfg.t0pre < 2:
        await_cnt(a, 5, 'P_sy5', 12, 13, 4)
        for hf in range(2): issue_first(hf)
        a(f's_waitcnt vmcnt(6)')
    else:
        a(f's_waitcnt vmcnt({3*cfg.t0pre})')
    stamp(a, cfg, 10)
    arrive(a, 0, 12, 13)
    def lo_reads(r0, r1, off=0):
        return [f'ds_read_b128 {vr(X+4*s,4)}, v{r1 if s&1 else r0} offset:{off+64*(s>>1)}' for s in range(6)]
    if cfg.tokpos < 0:
        await_cnt(a, 5, 'P_sy5', 15, 13, 4)
        for hf in range(2): issue_first(hf)
    for l in lo_reads(RL0, RL1): a(l)
    await_cnt(a, 0, 'P_sy0', 12, 13, 4, setaddr=False)
    stamp(a, cfg, 2)
    def wl_reads(t, s):
        return [f'ds_read_b64_tr_b16 {vr(WL+(t*6+s)*4+2*sec,2)}, v14 offset:{s*3072+sec*768+t*64}' for sec in range(2)]
    def lat_mfma(t, s):
        c = '0' if s == 0 else vr(LT+16*t,16)
        return f'{MF32} {vr(LT+16*t,16)}, {vr(WL+(t*6+s)*4,4)}, {vr(X+4*s,4)}, {c}'
    def lateral(first):
        pend = []
        L = [wl_reads(0, s) for s in range(4)] if first else []
        seq = [(t, s) for t in range(3) for s in range(6)]
        for i, (t, s) in enumerate(seq):
            L.append(lat_mfma(t, s))
            if first and i + 4 < 18: L.append(wl_reads(*seq[i+4]))
            if s >= 1: L.append(pend[:4]); del pend[:4]
            if s == 5:
                pend += [f'v_mov_b32 v{SL}, v{LT}' if (t == 0 and j == 0) else f'v_add_f32 v{SL}, v{SL}, v{LT+16*t+j}' for j in range(16)]
        return flat(L), pend
    def sl_fin():
        return [f'v_mov_b32 v{SL+1}, v{SL}', 's_nop 1', f'v_permlane32_swap_b32 v{SL}, v{SL+1}', f'v_add_f32 v{SL}, v{SL}, v{SL+1}']
    L, pend = lateral(True)
    L = autowait(L, age=99)
    if cfg.tokpos > 0 and cfg.t0pre < 2:
        k = [i for i, l in enumerate(L) if l.startswith('v_mfma')][cfg.tokpos]
        for l in L[:k]: a(l)
        a('s_waitcnt lgkmcnt(0)')
        await_cnt(a, 5, 'P_sy5', 12, 13, 4)
        for hf in range(2): issue_first(hf)
        L = L[k:]
    for l in L: a(l)
    for l in pend + sl_fin(): a(l)
    arrive(a, 16, 12, 13)
    stamp(a, cfg, 3)
    a(f's_lshl_b32 {t0}, {sP}, 2')
    a(f's_add_u32 {t0}, {t0}, {PF}')
    a(f'v_mov_b32 v{FLA}, {t0}')
    a(f'v_mov_b32 v{FLV}, 0')
    a(f's_cmp_lt_u32 {sP}, 2')
    a('s_cbranch_scc0 P_scriptB')
    def script(tag, tiles, lats, los):
        n = len(tiles)
        q = ['h0', 'h1']
        nxt = [2]
        done = set()
        def guard(r):
            if r >= 3 and not done:
                done.add(r); await_cnt(a, 4, f'P_w{tag}{r}', 12, 13, 4)
        def param(M, O):
            h = nxt[0]; r, hf = divmod(h, 2)
            guard(r)
            a(f's_add_u32 {M}, {sSlot}, {r*4*6144+3072*hf}')
            a(f's_add_u32 {O}, {tiles[r][0]}, {tiles[r][1]+6144*hf}')
            nxt[0] += 1
            return f'h{h}'
        def now_h():
            h = nxt[0]; r, hf = divmod(h, 2)
            guard(r)
            issue_h(tiles[r][0], r, hf, tiles[r][1]); nxt[0] += 1
            q.append(f'h{h}')
        def now_lo(key):
            for hf in range(2):
                a(f's_add_u32 m0, {sLoP}, {3072*hf}')
                a(f's_add_u32 {t0}, {sLo0}, {3072*hf}')
                for l in half(RLO, t0): a(l)
                q.append(key if hf else 'lox')
        if cfg.t0pre == 2 and cfg.tok2: await_cnt(a, 5, f'P_sy5{tag}', 12, 13, 4)
        for key in los.get(-1, []): now_lo(key)
        for _ in range(cfg.early): now_h()
        for r in range(n):
            ng = min(2, 2*n - nxt[0])
            if r == 1 and cfg.r1late: ng = 1
            new = []
            if ng >= 1: new.append(param(M1, O1))
            if ng >= 2: new.append(param(M2, O2))
            last = r == n - 1
            if cfg.b2 and r >= 1: a(f"{TM(cfg)} s[{STAMP0+2*(10+r)}:{STAMP0+2*(10+r)+1}]")
            if lats[r] is not None:
                key = lats[r]
                if key in q:
                    i2 = q.index(key)
                    a(f's_waitcnt vmcnt({3*(len(q)-1-i2)})'); del q[:i2+1]
                off = LO - r * 24576
                a(f'v_add_u32 v12, {off}, v{RA0}\nv_add_u32 v13, {off}, v{RA1}')
                a(f's_call_b64 {RET}, P_lat')
            idx = max([q.index(x) for x in (f'h{2*r}', f'h{2*r+1}') if x in q] + [-1])
            if cfg.b2 and lats[r] is not None: a(f"{TM(cfg)} s[{STAMP0+2*(1 if r < 2 else 2)}:{STAMP0+2*(1 if r < 2 else 2)+1}]")
            if last and tag == 'a':
                a(f's_call_b64 {RET}, P_h0w'); break
            a(f's_waitcnt vmcnt({3*(len(q)-1-idx)})'); stamp(a, cfg, 4+r)
            del q[:idx+1]; q.extend(new)
            if last: break
            a(f's_call_b64 {RET}, P_h{ng}')
            if r == 1 and cfg.r1late: now_h()
            for key in los.get(r, []): now_lo(key)
            if tag == 'b' and r == cfg.wvr:
                await_cnt(a, 16, 'P_wl', 12, 13, 4)
                a(f's_sub_u32 {t0}, {sP}, 2\ns_mul_i32 {t0}, {t0}, 9216')
                a(f'v_lshlrev_b32 v12, 4, v1\nv_add_u32 v12, {t0}, v12')
                for k in range(3):
                    a(f's_add_u32 m0, {t0}, {WREG+3072*k}')
                    a(f's_add_u32 s50, s16, {3072*k}\ns_addc_u32 s51, s17, 0')
                    for j in range(3): a(f'global_load_lds_dwordx4 v12, s[50:51] offset:{1024*j}')
                    q.append('wv')
                if cfg.touch:
                    a(f's_mov_b32 s36, s26\ns_mov_b32 s37, s27\ns_mov_b32 s38, {REC_BYTES}\ns_mov_b32 s39, 0x20000')
                    a('v_and_b32 v12, 15, v1\nv_lshlrev_b32 v12, 16, v12')
                    if cfg.touch >= 2:
                        a('v_lshrrev_b32 v13, 4, v1\nv_lshl_add_u32 v12, v13, 6, v12')
                        a(f's_lshl_b32 {t0}, s2, 8')
                        a(f'buffer_load_dword v232, v12, {RWS}, {t0} offen' + (' sc1' if cfg.touch == 3 else ''))
                    else:
                        a(f'buffer_load_dword v232, v12, {RWS}, 0 offen')
                    a(f'v_mov_b32 v12, 0')
                    a(f'global_load_dword v234, v12, {SOUT}')
                    a(f'global_load_dword v233, v12, {SQ}')
                    q.append('touch')
    TL = [(sH0, 0), (sH0, 192), (sH0, 73728), (sH0, 73728+192)]
    if cfg.tord: TL = [TL[0], TL[2], TL[1], TL[3]]
    script('a', [None] + TL, [None, 'lo0', None, None, None], {cfg.lopos: ['lo0']})
    if cfg.b2: a(f"{TM(cfg)} s[{STAMP0+30}:{STAMP0+31}]")
    a('s_branch P_fin')
    a('P_scriptB:')
    script('b', [None] + TL[1:], [None, None, None, None], {})
    a(f's_call_b64 {RET}, P_h0')
    if cfg.b2: a(f"{TM(cfg)} s[{STAMP0+30}:{STAMP0+31}]")
    a(f'v_mov_b32 v{FLV}, 5')
    a('s_waitcnt vmcnt(0)')
    a(f'ds_write_b32 v{FLA}, v{FLV}')
    if cfg.trp: a('s_branch L_exit')
    if cfg.stamps: a('s_mov_b32 s98, 0')
    a('s_cmp_ge_u32 s2, 16')
    a('s_cbranch_scc1 L_exit')
    if cfg.stamps: a('s_mov_b32 s98, 1')
    await_cnt(a, 17, 'P_w17', 12, 13, 4)
    a(f's_sub_u32 {t0}, {sP}, 2\ns_mul_i32 {t0}, {t0}, 9216')
    a(f'v_lshlrev_b32 v12, 4, v1\nv_add_u32 v12, {t0}, v12')
    for k in range(3):
        a(f's_add_u32 m0, {t0}, {WO+3072*k}')
        a(f's_add_u32 s50, s18, {3072*k}\ns_addc_u32 s51, s19, 0')
        for j in range(3): a(f'global_load_lds_dwordx4 v12, s[50:51] offset:{1024*j}')
    a('P_fin:')
    if cfg.trp: a('s_branch L_exit')
    stamp(a, cfg, 9)
    a('s_cmp_ge_u32 s2, 16')
    a('s_cbranch_scc1 L_exit')
    a('s_setprio 0')
    a(f's_load_dword s47, {SDBG}, 0')
    a('s_waitcnt lgkmcnt(0)')
    a('s_cmp_eq_u32 s47, 0')
    a('s_cbranch_scc1 P_getnonce')
    a('P_getnonce_d:')
    a(f's_mov_b32 s36, s26\ns_mov_b32 s37, s27\ns_mov_b32 s38, {REC_BYTES}\ns_mov_b32 s39, 0x20000')
    await_cnt(a, 7, 'P_w7', 12, 13, 4)
    a('s_cmp_lt_u32 s50, 0x100')
    a('s_cbranch_scc1 L_comb')
    a('s_branch Z_comb')
    nonce_slow(a, 'P_getnonce', 'P_getnonce_d', 20)
    if cfg.dry:
        a('P_dry1:')
        a('s_call_b64 s[60:61], C_blk2')
        a('s_branch P_dryd')
        a('P_dry2:')
        a(f's_call_b64 {RET}, P_lat')
        a('s_branch P_dryd')
    a('P_lat:')
    if cfg.pp: a(f's_setprio {cfg.pl}')
    L, pend = lateral(False)
    for l in autowait(lo_reads(12, 13) + L, age=99): a(l)
    a('s_nop 9')
    for l in pend + sl_fin(): a(l)
    a(f's_setpc_b64 {RET}')
    hp = cfg.pm if cfg.pp else None
    g1 = [f's_mov_b32 m0, {M1}', 's_nop 0'] + half(RHI, O1, SR)
    g2 = [f's_mov_b32 m0, {M2}', 's_nop 0'] + half(RHI, O2, SR)
    def traced(lines, first, n):
        step = max(1, len(lines) // n); k = first
        for i, l in enumerate(lines):
            if i % step == 0 and k < first + n:
                stamp(a, cfg, k, True); k += 1
            a(l)
    a('P_h2:')
    traced(B.p_head(g1, g2, hp), 2, 3)
    a('s_branch P_s1')
    a('P_h1:')
    traced(B.p_head(g1, (), hp), 2, 3)
    a('s_branch P_s1')
    a('P_h0w:')
    a('s_waitcnt vmcnt(0)')
    stamp(a, cfg, 8)
    a('P_h0:')
    for l in B.p_head((), (), hp): a(l)
    a('P_s1:')
    tail = B.p_tail(0, cfg.pv if cfg.pp else None) if not cfg.pk else B.p_tail_pk(cfg.pv if cfg.pp else None, bool(cfg.pk & 1), bool(cfg.pk & 2))
    traced(tail[:-1], 5, 9)
    a(f'v_add_u32 v{FLV}, 1, v{FLV}')
    a('s_waitcnt lgkmcnt(0)')
    a(f'ds_write_b32 v{FLA}, v{FLV}')
    a(f's_setpc_b64 {RET}')

def gen_consumer(a, cfg):
    sH = 's40'
    t0, t1 = 's41', 's42'
    RET = 's[60:61]'
    sR = 's43'
    LIN, REC, WVA, XA = 2, 3, 8, 9
    CA0, CA1, CT0, CT1 = B.C.CA0, B.C.CA1, B.C.CT0, B.C.CT1
    PART = 12
    AP, U, LA, OP = B.C.AP, B.C.U, B.C.LA, B.C.OP
    WV = B.C.WV
    QB, WK, ME, QT, QP, TA, QF = 96, 108, 132, 156, 164, 168, 16
    T = 240
    T2 = 248
    a('L_cons:')
    if cfg.cearly: a(f's_setprio {cfg.cpp}')
    a('s_memrealtime s[58:59]')
    code_prefetch(a, 'L_pc', 0, -256)
    a(f's_sub_u32 {sH}, s3, 4')
    a(f'v_lshlrev_b32 v{LIN}, 4, v1')
    a(f's_mul_i32 s48, {sH}, 4608')
    a(f'v_add_u32 v{PART}, s48, v{LIN}')
    a(f's_min_u32 {t0}, {sH}, 2')
    a(f's_lshl_b32 s46, {sH}, 2')
    a(f's_add_u32 s46, s46, {t0}')
    a(f's_lshl_b32 s46, s46, 10')
    a(f'v_add_u32 v13, s46, v{LIN}')
    a(f's_lshl_b32 s54, {t0}, 10')
    a(f'v_add_u32 v10, s54, v{LIN}')
    a('s_lshr_b32 s50, s2, 3\ns_and_b32 s50, s50, 31\ns_mul_i32 s50, s50, 640')
    a(f'v_lshlrev_b32 v14, 7, v1')
    a(f'v_add_u32 v14, s50, v14')
    a(f'v_min_u32 v14, 18428, v14')
    N, G, RHO, KAP = T+4, T+5, T+6, T+7
    a(f'v_and_b32 v{N}, 15, v1')
    a(f'v_lshrrev_b32 v{G}, 4, v1')
    a(f'v_bfe_u32 v{RHO}, v1, 2, 2')
    a(f'v_and_b32 v{KAP}, 3, v1')
    a(f'v_mul_u32_u24 v{T+8}, 192, v{N}')
    a(f'v_lshl_add_u32 v{T+8}, v{G}, 4, v{T+8}')
    a(f'v_lshl_add_u32 v{T+9}, v{RHO}, 3, v{KAP}')
    a(f'v_mul_u32_u24 v{T+9}, 48, v{T+9}')
    a(f'v_lshl_add_u32 v{T+9}, v{G}, 4, v{T+9}')
    a(f'v_add_u32 v{T+9}, s48, v{T+9}')
    if cfg.bist: stamp(a, cfg, 12)
    a('s_waitcnt lgkmcnt(0)')
    if cfg.bist: stamp(a, cfg, 13)
    a(f's_cmp_eq_u32 {sH}, 0\ns_cselect_b64 s[50:51], {SWV}, {SWQ}')
    a(f's_cmp_eq_u32 {sH}, 2\ns_cselect_b64 s[50:51], {SWK}, s[50:51]')
    a(f's_cmp_eq_u32 {sH}, 3\ns_cselect_b64 s[50:51], {SWM}, s[50:51]')
    a('s_mov_b64 exec, 31')
    a(f'global_load_dword v15, v14, s[50:51]')
    a('s_mov_b64 exec, -1')
    if cfg.bist: stamp(a, cfg, 11)
    a('s_barrier')
    if cfg.bist: stamp(a, cfg, 14)
    a(f's_lshl_b32 s50, s2, 2\ns_xor_b32 s50, s50, {sH}\ns_cmp_eq_u32 s50, 3')
    a('s_cbranch_scc1 C_mknonce')
    a('C_mknonce_d:')
    if cfg.fake: arrive(a, 5, 14, 15)
    if not cfg.fake:
        M1S, M1L, M2S, M2L = (SWM, WM, SWQ, WQ) if cfg.mfirst else (SWQ, WQ, SWM, WM)
        a(f's_cmp_ge_u32 {sH}, 3')
        a('s_cbranch_scc1 C_noy')
        a(f's_add_u32 m0, s54, {QS}')
        a(f's_cmp_ge_u32 {sH}, 2')
        a(f'global_load_lds_dwordx4 v10, {SQ}')
        a('s_cbranch_scc1 C_noy')
        dma_extra(a, M1S, M1L, 13, 's46')
        a('C_noy:')
        dma_main(a, M1S, M1L, 13, 's46')
        a('s_mov_b32 s57, s46')
        a(f'v_mov_b32 v{PART}, v13')
        for i in range(24): a(f'v_mov_b32 v{WK+i}, 0')
    stamp(a, cfg, 1)
    a(f's_mov_b32 s36, s26\ns_mov_b32 s37, s27\ns_mov_b32 s38, {REC_BYTES}\ns_mov_b32 s39, 0x20000')
    a(f's_and_b32 s49, {sH}, 1\ns_lshl_b32 s55, s49, 1\ns_lshr_b32 s56, {sH}, 1\ns_add_u32 s55, s55, s56')
    a(f's_lshl_b32 {t0}, s2, 2\ns_add_u32 {t0}, {t0}, s55\ns_lshl_b32 {t0}, {t0}, 6')
    a(f'v_lshlrev_b32 v{REC}, 16, v{N}')
    a(f'v_lshl_add_u32 v{REC}, v{G}, 4, v{REC}')
    a(f'v_add_u32 v{REC}, {t0}, v{REC}')
    a('s_mul_i32 s52, s56, 12288')
    a(f'v_and_b32 v{T+10}, 31, v1')
    a(f'v_lshrrev_b32 v{T+11}, 5, v1')
    a(f'v_lshlrev_b32 v{T+12}, 1, v{N}')
    a(f'v_bfe_u32 v{T+12}, {SF}, v{T+12}, 2')
    a(f'v_xor_b32 v{T+12}, v{T+12}, v{T+11}')
    a(f'v_mul_u32_u24 v{T+13}, 192, v{T+10}')
    a(f'v_add_u32 v{T+13}, s52, v{T+13}')
    a(f'v_lshl_add_u32 v{CA0}, v{T+12}, 4, v{T+13}')
    a(f'v_xor_b32 v{T+12}, 2, v{T+12}')
    a(f'v_lshl_add_u32 v{CA1}, v{T+12}, 4, v{T+13}')
    a(f'v_lshl_add_u32 v{T+12}, v{T+11}, 2, v{RHO}')
    a(f'v_bfe_u32 v{T+13}, v1, 4, 1')
    a(f'v_lshrrev_b32 v{T+14}, 1, v{KAP}')
    a(f'v_lshl_add_u32 v{T+14}, v{T+13}, 1, v{T+14}')
    a(f'v_and_b32 v{T+15}, 1, v{KAP}')
    a(f'v_lshlrev_b32 v{T+15}, 3, v{T+15}')
    a(f'v_add_u32 v{T+15}, s52, v{T+15}')
    for sec, dst in ((0, CT0), (1, CT1)):
        if sec: a(f'v_add_u32 v{T+12}, 8, v{T+12}')
        a(f'v_lshlrev_b32 v{dst}, 1, v{T+12}')
        a(f'v_bfe_u32 v{dst}, {SF}, v{dst}, 2')
        a(f'v_xor_b32 v{dst}, v{dst}, v{T+14}')
        a(f'v_lshl_add_u32 v{dst}, v{dst}, 4, v{T+15}')
        a(f'v_mul_u32_u24 v10, 192, v{T+12}')
        a(f'v_add_u32 v{dst}, v{dst}, v10')
    a(f'v_lshl_add_u32 v{WVA}, v{T+11}, 2, v{RHO}')
    a(f'v_lshl_add_u32 v{WVA}, v{T+13}, 4, v{WVA}')
    a(f'v_mul_u32_u24 v{WVA}, 48, v{WVA}')
    a(f'v_lshl_add_u32 v{WVA}, v{KAP}, 3, v{WVA}')
    a(f'v_add_u32 v{WVA}, {WREG}, v{WVA}')
    a(f's_xor_b32 {t0}, s55, 1')
    a(f's_mul_i32 s53, {t0}, 4608')
    a(f's_mul_i32 s46, s55, 4608')
    a(f'v_mov_b32 v10, s46')
    a(f'v_mov_b32 v11, s53')
    a(f'v_cmp_eq_u32 vcc, 0, v{T+13}')
    a(f'v_mul_u32_u24 v{XA}, 192, v{N}')
    a(f'v_lshl_add_u32 v{XA}, v{T+11}, 4, v{XA}')
    a(f'v_cndmask_b32 v10, v11, v10, vcc')
    a(f'v_add_u32 v{XA}, v{XA}, v10')
    a(f'v_add_u32 v{XA}, {WQ}, v{XA}')
    a(f'v_lshl_add_u32 v{T+12}, v{G}, 3, v{RHO}')
    a(f'v_mul_u32_u24 v10, 48, v{T+12}')
    a(f'v_min_u32 v11, 2, v{KAP}')
    a(f'v_lshl_add_u32 v10, v11, 4, v10')
    a(f's_add_u32 {t0}, s48, {WQ}')
    a(f'v_add_u32 v10, {t0}, v10')
    a(f'v_add_u32 v13, {t0}, v{T+8}')
    a(f'v_add_u32 v{T+8}, {QS}, v{T+8}')
    a(f'v_mul_u32_u24 v11, 192, v{T+12}')
    a(f'v_lshl_add_u32 v11, v{KAP}, 4, v11')
    a(f'v_add_u32 v11, {WM}, v11')
    a(f'v_and_b32 v{T+12}, 1, v1')
    a(f'v_cmp_eq_u32 vcc, v{T+12}, v{T+13}')
    a(f'v_mov_b32 v{T+12}, 0x3f803f80')
    for i in range(52):
        a(f'v_mov_b32 v{U+i}, 0')
        if i == 4:
            for k in range(4): a(f'v_cndmask_b32 v{OP+k}, 0, v{T+12}, vcc')
    if cfg.fake:
        a(f's_add_u32 s58, s58, {cfg.fake}')
        a('C_fk:')
        a('s_memrealtime s[50:51]')
        a('s_waitcnt lgkmcnt(0)')
        a('s_sub_u32 s50, s50, s58')
        a('s_cmp_lt_i32 s50, 0')
        a('s_cbranch_scc1 C_fk')
        stamp(a, cfg, 2)
        a(f's_mul_i32 s50, {sH}, 3072')
        a(f's_add_u32 s50, s50, {8<<20}')
        a(f's_add_u32 s50, s26, s50\ns_addc_u32 s51, s27, 0')
        a(f's_add_u32 m0, s48, {WQ}')
        a('s_nop 0')
        for k in range(3): a(f'global_load_lds_dwordx4 v{LIN}, s[50:51] offset:{1024*k}' + (' sc1' if cfg.fsc else ''))
        a('s_waitcnt vmcnt(0)')
        stamp(a, cfg, 15)
        lds_sync(a, 3, 'C_sy3', 14, 15)
        a('s_cmp_eq_u32 s2, 999')
        a('s_cbranch_scc1 Z_sy3')
    else:
        if cfg.bist: stamp(a, cfg, 7)
        a(f's_cmp_ge_u32 {sH}, 2')
        a('s_cbranch_scc1 C_nox')
        dma_extra(a, M2S, M2L, PART, 's57')
        a('C_nox:')
        dma_main(a, M2S, M2L, PART, 's57')
        if cfg.wkpos == 1: arrive(a, 5, 14, 15)
        a('s_mov_b32 exec_hi, 0xffff')
        for s in range(3):
            for tt in range(2):
                a(f'global_load_dwordx4 {vr(WK+(2*s+tt)*4,4)}, v{T+9}, {SWK} offset:{1536*s+192*tt}')
        a('s_mov_b32 exec_hi, -1')
        if cfg.wkpos == 0: arrive(a, 5, 14, 15)
        if cfg.bist: stamp(a, cfg, 6)
        a('s_waitcnt vmcnt(6)')
        if cfg.bist: stamp(a, cfg, 5)
        lds_sync(a, 1, 'C_sy1', 14, 15)
        if cfg.cpp: a(f's_setprio {cfg.cpp}')
        stamp(a, cfg, 2)
        def me_rd(sp, st): return [f'ds_read_b64_tr_b16 {vr(TA+(sp*6+st)*4+2*sec,2)}, v11 offset:{sp*6144+sec*768+(st>>1)*64+(st&1)*8}' for sec in range(2)]
        def q_rd(s, tt): return [f'ds_read_b64_tr_b16 {vr(QF+(tt*3+s)*4+2*sec,2)}, v10 offset:{s*1536+sec*192+tt*8}' for sec in range(2)]
        def q_mm(s, tt): return f'{MF16} {vr(QT+4*tt,4)}, {vr(QF+(tt*3+s)*4,4)}, {vr(QB+4*s,4)}, {"0" if s == 0 else vr(QT+4*tt,4)}'
        def me_mm(sp, st): return f'{MF16} {vr(ME+4*st,4)}, {vr(TA+(sp*6+st)*4,4)}, {vr(QB+4*sp,4)}, {"0" if sp == 0 else vr(ME+4*st,4)}'
        seq = [(sp, st) for sp in range(3) for st in range(6)]
        qseq = [(s, tt) for s in range(3) for tt in range(2)]
        qb = [f'ds_read_b128 {vr(QB+4*s,4)}, v{T+8} offset:{64*s}' for s in range(3)]
        L = [qb[0], q_rd(0,0), q_rd(0,1), qb[1], q_rd(1,0), q_rd(1,1), qb[2], q_rd(2,0), q_rd(2,1)]
        for i, (s_, tt) in enumerate(qseq):
            L.append(q_mm(s_, tt)); L.append(me_rd(*seq[i]))
        post = [f'v_add_f32 v{QT+i}, v{QT+i}, v{QT+i}' for i in range(8)] + [f'v_cvt_pk_bf16_f32 v{QP+i}, v{QT+2*i}, v{QT+2*i+1}' for i in range(4)]
        for i, (sp, st) in enumerate(seq):
            L.append(me_mm(sp, st))
            if i + 6 < 18: L.append(me_rd(*seq[i+6]))
            if i >= 3: L.append(post[:1]); del post[:1]
        L.append(post)
        for l in autowait(flat(L), age=99): a(l)
        if cfg.bist: stamp(a, cfg, 4)
        a('s_waitcnt vmcnt(0)')
        if cfg.bist: stamp(a, cfg, 8)
        stamp(a, cfg, 15)
        for st in range(6):
            a(f'{MF16} {vr(ME+4*st,4)}, {vr(WK+4*st,4)}, {vr(QP,4)}, {vr(ME+4*st,4)}')
        sc = 96 ** -0.5 * math.log2(math.e)
        a(f's_mov_b32 {t0}, {f32(sc)}')
        for s in range(3):
            for i in range(8): a(f'v_mul_f32 v{ME+8*s+i}, {t0}, v{ME+8*s+i}')
            for i in range(4): a(f'v_cvt_pk_bf16_f32 v{ME+8*s+i}, v{ME+8*s+2*i}, v{ME+8*s+2*i+1}')
            a(f'ds_write_b128 v13, {vr(ME+8*s,4)} offset:{64*s}')
            a(f'{MF16} {vr(QT,4)}, {vr(ME+8*s,4)}, {vr(ME+8*s,4)}, {"0" if s == 0 else vr(QT,4)}')
        a(f's_mov_b32 {t0}, {f32(THR)}')
        a(f'v_mov_b32 v14, {CNT + 4*3}')
        a(f'v_max3_f32 v{QT}, v{QT}, v{QT+1}, v{QT+2}')
        a(f'v_max_f32 v{QT}, v{QT}, v{QT+3}')
        a(f'v_cmp_nge_f32 vcc, {t0}, v{QT}')
        a('s_cmp_eq_u64 vcc, 0')
        a('s_cselect_b32 s51, 1, 0x101')
        a('v_mov_b32 v15, s51')
        a('s_waitcnt lgkmcnt(0)')
        a('s_mov_b64 exec, 1')
        a('ds_add_rtn_u32 v15, v14, v15')
        a('s_mov_b64 exec, -1')
        a('s_waitcnt lgkmcnt(0)')
        a('v_readfirstlane_b32 s50, v15')
        a('s_add_u32 s50, s50, s51')
        a('s_cmp_eq_u32 s50, 4')
        a('s_cbranch_scc1 C_sy3_ok')
        await_cnt(a, 3, 'C_sy3', 14, 15, 4, setaddr=False)
        a('s_cmp_eq_u32 s50, 4')
        a('s_cbranch_scc0 Z_sy3')
    if not cfg.fake: a('C_sy3_ok:')
    stamp(a, cfg, 3)
    cons_main(a, cfg, False)
    a('C_mknonce:')
    a('s_or_b32 s50, s58, 1')
    a('v_mov_b32 v20, s50\nv_mov_b32 v21, 0\nv_mov_b32 v22, 0')
    a('s_mov_b64 exec, 1')
    a(f'global_atomic_cmpswap v22, v[20:21], {SDBG} sc1')
    a('s_mov_b64 exec, -1')
    a('s_branch C_mknonce_d')
    nonce_slow(a, 'C_getnonce', 'C_getnonce_d', T2)

def slow_rescale(NEW):
    MX = 160; U, LA = B.C.U, B.C.LA
    L = [f'v_max_f32 v{NEW}, v{NEW}, v{MX}',
         f'v_sub_f32 v{MX+4}, v{MX}, v{NEW}',
         f'v_exp_f32 v{MX+4}, v{MX+4}',
         f'v_mov_b32 v{MX}, v{NEW}', 's_nop 1',
         f'v_mov_b32 v{MX+5}, v{MX+4}', f'v_mov_b32 v{MX+6}, v{MX+4}', 's_nop 1',
         f'v_permlane16_swap_b32 v{MX+5}, v{MX+6}', 's_nop 1']
    L += [f'v_mul_f32 v{U+i}, v{U+i}, v{MX+4}' for i in range(48)]
    L += [f'v_mul_f32 v{LA+i}, v{LA+i}, v{MX+5+(i&1)}' for i in range(4)]
    return L

def slow_tile(off):
    MX = 160; S = B.C.S[0]
    tb = B.C.TB
    B.C.TB = off
    sv = (B.C.KA, B.C.KT, B.C.S, B.C.P)
    B.C.KA = [sv[0][0]] * 2; B.C.KT = [sv[1][0]] * 2; B.C.S = [S] * 2; B.C.P = [S] * 2
    L = [B.ka(1, s) for s in range(6)] + ['s_waitcnt lgkmcnt(0)']
    L += [B.kt(1, ks, t) for ks in range(2) for t in range(3)]
    L += [B.sm(1, s) for s in range(6)] + ['s_nop 15', 's_nop 15']
    L += [f'v_max3_f32 v{MX+1}, v{S}, v{S+1}, v{S+2}']
    L += [f'v_max3_f32 v{MX+1}, v{MX+1}, v{S+3+2*i}, v{S+4+2*i}' for i in range(6)]
    L += [f'v_max_f32 v{MX+1}, v{MX+1}, v{S+15}', f'v_mov_b32 v{MX+2}, v{MX+1}', 's_nop 1',
          f'v_permlane32_swap_b32 v{MX+1}, v{MX+2}', 's_nop 1', f'v_max_f32 v{MX+1}, v{MX+1}, v{MX+2}']
    L += slow_rescale(MX+1)
    L += [f'v_sub_f32 v{S+i}, v{S+i}, v{MX}' for i in range(16)]
    L += [B.ex(1, i) for i in range(16)] + ['s_nop 1'] + [B.cv(1, i) for i in range(8)]
    L += ['s_waitcnt lgkmcnt(0)', 's_nop 1']
    L += [B.pv(1, ks, t) for ks in range(2) for t in range(4)] + ['s_nop 15', 's_nop 15']
    B.C.TB = tb
    B.C.KA, B.C.KT, B.C.S, B.C.P = sv
    return flat(L)

def cons_main(a, cfg, slow):
    sH = 's40'
    t0, t1 = 's41', 's42'
    RET = 's[60:61]'
    sR = 's43'
    LIN, REC, WVA, XA = 2, 3, 8, 9
    CA0, CA1, CT0, CT1 = B.C.CA0, B.C.CA1, B.C.CT0, B.C.CT1
    AP, U, LA, OP = B.C.AP, B.C.U, B.C.LA, B.C.OP
    WV = B.C.WV
    T2 = 248
    Z = 'Z' if slow else 'C'
    OOL = []
    MX = 160
    if slow:
        xv = cfg.xv; cfg = Cfg(); cfg.stamps = False; cfg.xv = xv
        a('Z_sy3:')
        a('ds_read_b32 v15, v14')
        a('s_waitcnt lgkmcnt(0)')
        a('v_readfirstlane_b32 s50, v15')
        a('s_and_b32 s50, s50, 0xff')
        a('s_cmp_lt_u32 s50, 4')
        a('s_cbranch_scc1 Z_sy3')
        a(f'v_mov_b32 v{MX}, {f32(-3e38)}')
    WA0, FLA, XO, XP, FO, FP, ONE, MRA, THRV = 12, 13, 9, 11, 8, 0, 251, 254, 255
    XLW, XLR = 224, 225
    for s in range(6): a(f'ds_read_b128 {vr(AP+4*s,4)}, v{XA} offset:{32*s}')
    a(f's_lshl_b32 {t0}, s56, 3\ns_add_u32 {t0}, {t0}, {PF}')
    a(f'v_mov_b32 v10, {t0}')
    a(f's_mov_b32 {sR}, 1')
    a('s_waitcnt lgkmcnt(0)')
    arrive(a, 4, 14, 15)
    a(f'v_add_u32 v{WA0}, s46, v{WVA}')
    a(f's_mul_i32 {t0}, {sH}, {XST}')
    a(f's_xor_b32 {t1}, {sH}, 2')
    a(f's_mul_i32 {t1}, {t1}, {XST}')
    a(f's_add_u32 {t0}, {t0}, {XCH}')
    a(f's_add_u32 {t1}, {t1}, {XCH+3072}')
    a(f'v_add_u32 v{XO}, {t0}, v{LIN}')
    a(f'v_lshlrev_b32 v{XLR}, 2, v1')
    a(f'v_add_u32 v{XLW}, {t1}, v{XLR}')
    a(f'v_add_u32 v{XLR}, {t0}, v{XLR}')
    a(f's_mov_b32 s52, 0xffff0000\ns_mov_b32 s53, 0xffff0000')
    if cfg.xv == 0:
        a(f'v_add_u32 v{XP}, {t1}, v{LIN}')
    else:
        a(f'v_mov_b32 v{XP}, {t0}')
        a(f'v_mov_b32 v14, {t1}')
        a(f'v_and_b32 v15, 15, v1')
        a(f'v_cndmask_b32 v{XP}, v{XP}, v14, s[52:53]')
        a(f'v_lshl_add_u32 v{XP}, v15, 4, v{XP}')
        a(f'v_lshrrev_b32 v15, 5, v1')
        a(f'v_lshl_add_u32 v{XP}, v15, 9, v{XP}')
    a(f'v_and_b32 v{FLA}, 3, v1')
    a(f's_xor_b32 {t0}, s56, 1')
    a(f'v_cmp_eq_u32 vcc, {t0}, v{FLA}')
    a(f'v_lshlrev_b32 v{FLA}, 2, v{FLA}')
    a(f'v_add_u32 v{FLA}, {PF}, v{FLA}')
    a(f'v_cndmask_b32 v{THRV}, 5, 4, vcc')
    a(f's_lshl_b32 {t0}, {sH}, 2')
    a(f's_add_u32 {t0}, {t0}, {CNT+32}')
    a(f'v_mov_b32 v{FO}, {t0}')
    a(f'v_xor_b32 v{FP}, 8, v{FO}')
    a(f'v_mov_b32 v{ONE}, 1')
    a('s_mov_b32 s44, 0\ns_mov_b32 s45, -1')
    if slow:
        a(f's_lshl_b32 {t0}, s55, 8\ns_add_u32 {t0}, {t0}, s2\ns_lshl_b32 {t0}, {t0}, 3\ns_add_u32 {t0}, {t0}, {MREC}')
        a(f'v_and_b32 v{MRA}, 15, v1')
        a(f'v_lshlrev_b32 v{MRA}, 13, v{MRA}')
        a(f'v_add_u32 v{MRA}, {t0}, v{MRA}')
    wvr = [f'ds_read_b64_tr_b16 {vr(WV+(tt*3+t)*4+2*sec,2)}, v{WA0} offset:{t*1536+sec*384+tt*32}'
           for t in range(3) for tt in range(2) for sec in range(2)]
    if not slow:
        VF, THR, INC = T2+4, 226, 227
        sAdv, sStop = 's60', 's61'
        flag = f'ds_read_b32 v{VF}, v{FLA}'
        def waitloop(tag, go, prio=None):
            a(f'{tag}:')
            if cfg.wsl: a(f's_sleep {cfg.wsl}')
            a(flag)
            a('s_waitcnt lgkmcnt(0)')
            a(f'v_cmp_lt_u32 vcc, v{VF}, v{THR}')
            a(f's_cbranch_vccnz {tag}')
            for s_ in range(6): a(B.ka(0, s_))
            a(f's_branch {go}')
        def check(wait, go):
            a('s_waitcnt lgkmcnt(6)')
            a(f'v_cmp_lt_u32 vcc, v{VF}, v{THR}')
            a(f's_cbranch_vccnz {wait}')
            a(f'{go}:')
        class Lst:
            def __init__(s_): s_.l = []
            def __call__(s_, t): s_.l += [x.strip() for x in t.split('\n') if x.strip()]
        hook = Lst(); arrive(hook, 17, 14, 15); mk_tag(hook, T2+1)
        a(f'v_bfe_u32 v{INC}, v1, 1, 1')
        a(f'v_cmp_eq_u32 vcc, s56, v{INC}')
        a(f's_add_u32 {sStop}, s56, 3')
        a(f's_mov_b32 {sR}, 0')
        a(f'v_cndmask_b32 v{INC}, 0, 1, vcc')
        a(f'v_mov_b32 v{THR}, v{INC}')
        if cfg.cpp: a(f's_setprio {cfg.cmain}')
        a('s_branch C_wait')
        a('C_loop:')
        check('C_wait', 'C_go')
        if cfg.stamps and not cfg.b2:
            pass
        if cfg.b2 and not cfg.etr:
            for j in (11, 12, 13): a(f's_mov_b64 s[{STAMP0+2*j}:{STAMP0+2*j+1}], s[{STAMP0+2*j+2}:{STAMP0+2*j+3}]')
            a(f"{TM(cfg)} s[{STAMP0+28}:{STAMP0+29}]")
        top = [f's_add_u32 {sR}, {sR}, 1', f'v_add_u32 v{THR}, v{THR}, v{INC}', f's_cmp_eq_u32 {sR}, 4', f's_cselect_b32 {sAdv}, -1, 4', f's_mul_i32 {sAdv}, {sAdv}, 6144']
        advl = [f'v_add_u32 v{r}, {sAdv}, v{r}' for r in (CA0, CA1, CT0, CT1)]
        for l in B.cons2p(advl, flag, top): a(l)
        if cfg.stamps:
            for j in (5, 6): a(f's_mov_b64 s[{STAMP0+2*j}:{STAMP0+2*j+1}], s[{STAMP0+2*j+2}:{STAMP0+2*j+3}]')
            stamp(a, cfg, 7)
        a(f's_cmp_eq_u32 {sR}, {sStop}')
        a('s_cbranch_scc1 C_done')
        a(f's_load_dword s47, {SDBG}, 0')
        a('s_branch C_loop')
        waitloop('C_wait', 'C_go')
        a('C_done:')
        a('s_cmp_eq_u32 s47, 0')
        a('s_cbranch_scc1 C_getnonce')
        a('C_getnonce_d:')
        def specloop(tag, go):
            a(f'{tag}:')
            a(flag)
            for s_ in range(6): a(B.ka(0, s_))
            a('s_waitcnt lgkmcnt(6)')
            a(f'v_cmp_lt_u32 vcc, v{VF}, v{THR}')
            a(f's_cbranch_vccz {go}')
            a(f's_branch {tag}')
        if cfg.uni:
            a(f'v_mov_b32 v{THR}, v{THRV}')
            stamp(a, cfg, 4)
            check('C_w13', 'C_g13')
            stamp(a, cfg, 8)
            a('s_setprio 3')
            for l in B.cons2x(wvr, 24576, True, hook.l): a(l)
            OOL.append(lambda: (specloop if cfg.spec else waitloop)('C_w13', 'C_g13'))
        else:
            a('s_cmp_eq_u32 s56, 0')
            a('s_cbranch_scc1 C_r3s')
            a(f'v_mov_b32 v{THR}, v{THRV}')
            stamp(a, cfg, 4)
            check('C_w13', 'C_g13')
            stamp(a, cfg, 8)
            a('s_setprio 3')
            for l in B.cons2x(wvr, 24576, True, hook.l): a(l)
            a('s_branch C_epi')
            (specloop if cfg.spec else waitloop)('C_w13', 'C_g13')
            waitloop('C_w12', 'C_g12')
            (specloop if cfg.spec else waitloop)('C_w16', 'C_g16')
            a('C_r3s:')
            check('C_w12', 'C_g12')
            adv = [f'v_add_u32 v{r}, 24576, v{r}' for r in (CA0, CA1, CT0, CT1)]
            for l in B.cons1p(adv, flag, hook.l + [f'v_mov_b32 v{THR}, v{THRV}']): a(l)
            stamp(a, cfg, 4)
            check('C_w16', 'C_g16')
            stamp(a, cfg, 8)
            a('s_setprio 3')
            for l in B.cons1x(wvr, True): a(l)
    if slow:
        if cfg.cpp: a(f's_setprio {cfg.cmain}')
        a(f's_call_b64 {RET}, {Z}_blk')
        stamp(a, cfg, 5)
        a(f's_load_dword s47, {SDBG}, 0')
        if cfg.c2 is not None: a(f's_setprio {cfg.c2}')
        a(f's_call_b64 {RET}, {Z}_blk')
        stamp(a, cfg, 6)
        arrive(a, 17, 14, 15)
        a('s_cmp_eq_u32 s47, 0')
        a(f's_cbranch_scc1 {Z}_getnonce')
        a(f'{Z}_getnonce_d:')
        mk_tag(a, T2+1)
        if cfg.c3 is not None: a(f's_setprio {cfg.c3}')
        a(f's_call_b64 {RET}, {Z}_blk')
        stamp(a, cfg, 7)
        if cfg.c4 is not None: a(f's_setprio {cfg.c4}')
        def lastwait(tag):
            a(f'{tag}:')
            a(f'ds_read_b32 v{T2+4}, v{FLA}')
            a('s_waitcnt lgkmcnt(0)')
            a(f'v_cmp_lt_u32 vcc, v{T2+4}, v{THRV}')
            a(f's_cbranch_vccnz {tag}')
            stamp(a, cfg, 8)
            a('s_setprio 3')
        a('s_cmp_eq_u32 s56, 0')
        a(f's_cbranch_scc1 {Z}_r3s')
        a(f's_call_b64 {RET}, {Z}_blk')
        a(f's_mov_b32 s51, {(13 - 18) * 6144}')
        for r in (CA0, CA1, CT0, CT1): a(f'v_add_u32 v{r}, s51, v{r}')
        stamp(a, cfg, 4)
        lastwait(f'{Z}_r4w1')
        if slow:
            for l in slow_tile(0) + slow_tile(24576) + autowait(wvr, final=0): a(l)
        else:
            for l in B.cons2x(wvr, 24576): a(l)
        a(f's_branch {Z}_epi')
        a(f'{Z}_r3s:')
        a(f'v_mov_b32 v10, {PF}')
        a(f'{Z}_r3w:')
        a(f'ds_read_b32 v{T2+4}, v10')
        a('s_waitcnt lgkmcnt(0)')
        a(f'v_readfirstlane_b32 s50, v{T2+4}')
        a('s_cmp_lt_u32 s50, 4')
        a(f's_cbranch_scc1 {Z}_r3w')
        adv = [f'v_add_u32 v{r}, 24576, v{r}' for r in (CA0, CA1, CT0, CT1)]
        for l in (slow_tile(0) + adv if slow else B.cons1(extra_mid=adv)): a(l)
        stamp(a, cfg, 4)
        lastwait(f'{Z}_r4w0')
        if slow:
            for l in slow_tile(0) + autowait(wvr, final=0): a(l)
        else:
            for l in B.cons1x(wvr): a(l)
    a(f'{Z}_epi:')
    stamp(a, cfg, 9)
    if slow:
        a(f's_lshl_b32 {t0}, {sH}, 7')
        a(f's_add_u32 {t0}, {t0}, {TOT}')
        a(f'v_and_b32 v{MX+1}, 31, v1')
        a(f'v_lshlrev_b32 v{MX+1}, 2, v{MX+1}')
        a(f'v_add_u32 v{MX+1}, {t0}, v{MX+1}')
        a(f'ds_write_b32 v{MX+1}, v{MX}')
        a('s_waitcnt lgkmcnt(0)')
        lds_sync(a, 18, 'Z_sy18', MX+2, MX+3)
        a(f'v_xor_b32 v{MX+1}, {256+64}, v{MX+1}')
        a(f'ds_read_b32 v{MX+2}, v{MX+1}')
        a('s_waitcnt lgkmcnt(0)')
        for l in slow_rescale(MX+2): a(l)
        a(f'v_mov_b32 v{MX+1}, s47')
        a('s_mov_b32 exec_lo, 0\ns_mov_b32 exec_hi, 0xffff')
        a(f'buffer_store_dwordx2 {vr(MX,2)}, v{MRA}, {RWS}, 0 offen sc1')
        a('s_mov_b64 exec, -1')
    UP, CX, RX, RS = 96, 120, 128, 144
    def cvtU(t): return [f'v_cvt_pk_bf16_f32 v{UP+8*t+i}, v{U+16*t+2*i}, v{U+16*t+2*i+1}' for i in range(8)]
    def pj(src, tt, t, first=False):
        return f'{MF16} {vr(CX+4*tt,4)}, {vr(WV+(tt*3+t)*4,4)}, {vr(src,4)}, {"0" if first else vr(CX+4*tt,4)}'
    def snd(t, hi): return f'ds_write_b128 v{XP}, {vr(UP+8*t+4*hi,4)} offset:{1024*t+256*hi}'
    def own(t): return f'ds_read_b128 {vr(RS+4*t,4)}, v{XO} offset:{1024*t}'
    EN = T2
    enc = [f'v_cndmask_b32 v{EN}, v{LA}, v{LA+1}, s[44:45]', f'v_and_b32 v{EN+2}, s46, v{EN}', f'v_sub_f32 v{EN}, v{EN}, v{EN+2}',
           f'v_cndmask_b32 v{EN}, v{EN+2}, v{EN}, s[52:53]', f'v_bfi_b32 v{EN}, s46, v{EN}, v{T2+1}']
    c0, c1, c2 = cvtU(0), cvtU(1), cvtU(2)
    E = [enc, f'ds_write_b32 v{XLW}, v{EN} offset:3072',
         c0[:4], snd(0,0), c0[4:], snd(0,1), c1[:4], snd(1,0), own(0), c1[4:], snd(1,1), c2[:4], snd(2,0), own(1), c2[4:], snd(2,1),
         f'ds_write_b32 v{FP}, v{ONE}', own(2)]
    if cfg.xv == 0:
        def swp(t): return [f'v_permlane16_swap_b32 v{UP+8*t+i}, v{UP+8*t+4+i}' for i in range(4)]
        def snd(t, hi=0): return f'ds_write_b128 v{XP}, {vr(UP+8*t+4,4)} offset:{1024*t}'
        E = [enc, f'ds_write_b32 v{XLW}, v{EN} offset:3072',
             c0, c1[:2], swp(0), c1[2:4], snd(0), c1[4:8], c2[:2], swp(1), c2[2:4], snd(1), c2[4:8], 's_nop 0', swp(2), 's_nop 0', snd(2),
             f'ds_write_b32 v{FP}, v{ONE}']
    for l in flat(E):
        if cfg.etr and not slow and l == snd(0,0): a(f"{TM(cfg)} s[{STAMP0+22}:{STAMP0+23}]")
        if cfg.etr and not slow and l.startswith(f'ds_write_b32 v{FP}'): a(f"{TM(cfg)} s[{STAMP0+24}:{STAMP0+25}]")
        a(l)
    def poll():
        a(f'ds_read_b32 v15, v{FO}')
        for t in range(3): a(f'ds_read_b128 {vr(RX+4*t,4)}, v{XO} offset:{3072+1024*t}')
        a(f'ds_read_b32 v{RX+12}, v{XLR} offset:6144')
    if cfg.xv == 0:
        mm = [pj(UP,0,0,True), pj(UP,1,0,True), pj(UP+8,0,1), pj(UP+8,1,1), pj(UP+16,0,2), pj(UP+16,1,2)]
        for l in mm[:cfg.xd]: a(l)
        poll()
        for l in mm[cfg.xd:]: a(l)
    else:
        poll()
        a('s_waitcnt lgkmcnt(7)')
        a(pj(RS,0,0,True)); a(pj(RS,1,0,True)); a(pj(RS+4,0,1)); a(pj(RS+4,1,1))
        a('s_waitcnt lgkmcnt(5)')
        a(pj(RS+8,0,2)); a(pj(RS+8,1,2))
    if cfg.etr and not slow: a(f"{TM(cfg)} s[{STAMP0+26}:{STAMP0+27}]")
    a(f'{Z}_xw:')
    a('s_waitcnt lgkmcnt(4)')
    a('v_cmp_eq_u32 vcc, 0, v15')
    a(f's_cbranch_vccnz {Z}_xr')
    if cfg.etr and not slow: a(f"{TM(cfg)} s[{STAMP0+28}:{STAMP0+29}]")
    for t in range(3):
        a(f's_waitcnt lgkmcnt({3-t})')
        a(pj(RX+4*t,0,t)); a(pj(RX+4*t,1,t))
    a('s_waitcnt lgkmcnt(0)')
    a(f'v_cndmask_b32 v{EN}, v{EN}, v{RX+12}, s[44:45]')
    a(f'v_cvt_pk_bf16_f32 v{CX}, v{CX}, v{CX+1}')
    a(f'v_cvt_pk_bf16_f32 v{CX+1}, v{CX+2}, v{CX+3}')
    a(f'v_mov_b32 v{CX+3}, v{EN}')
    a(f'v_cvt_pk_bf16_f32 v{CX+2}, v{CX+4}, v{CX+5}')
    a(f'v_cvt_pk_bf16_f32 v{CX+4}, v{CX+6}, v{CX+7}')
    a(f'v_permlane32_swap_b32 v{CX+2}, v{CX+4}')
    a(f'buffer_store_dwordx4 {vr(CX,4)}, v{REC}, {RWS}, 0 offen sc1')
    stamp(a, cfg, 10)
    a('s_cmp_ge_u32 s2, 16')
    a('s_cbranch_scc1 L_exit')
    if slow:
        a(f'v_mov_b32 v14, {CNT + 4*7}')
        a(f'v_mov_b32 v15, 0x101')
        a('s_mov_b64 exec, 1')
        a('ds_add_u32 v14, v15')
        a('s_mov_b64 exec, -1')
        a('s_setprio 0')
        a('s_branch Z_comb')
        a('Z_xr:'); poll(); a('s_branch Z_xw')
        nonce_slow(a, 'Z_getnonce', 'Z_getnonce_d', T2)
        a('Z_wait:')
        a('s_sleep 1')
        a('Z_blk:')
        a(f'ds_read_b64 {vr(T2+4,2)}, v10')
        a('s_waitcnt lgkmcnt(0)')
        a(f'v_min_u32 v{T2+4}, v{T2+4}, v{T2+5}')
        a(f'v_readfirstlane_b32 s50, v{T2+4}')
        a(f's_cmp_lt_u32 s50, {sR}')
        a('s_cbranch_scc1 Z_wait')
        for l in slow_tile(0) + slow_tile(6144) + B.adv(): a(l)
        a(f's_add_u32 {sR}, {sR}, 1')
        a(f's_setpc_b64 {RET}')
        return
    arrive(a, 7, 14, 15)
    a('s_setprio 0')
    a('s_branch L_comb')
    a('C_xr:'); poll(); a('s_branch C_xw')
    for f in OOL: f()

def mk_tag(a, v):
    a('s_and_b32 s50, s47, 0xbfff')
    a('s_lshr_b32 s51, s47, 16')
    a('s_and_b32 s51, s51, 0xbfff')
    a('s_mov_b32 s46, 0xffff0000')
    a(f'v_mov_b32 v{v}, s50')
    a(f'v_mov_b32 v{v+1}, s51')
    a(f'v_cndmask_b32 v{v}, v{v}, v{v+1}, s[52:53]')

def comb_tag(a, v):
    a('s_and_b32 s50, s47, 0xbfff')
    a('s_lshr_b32 s51, s47, 16')
    a('s_and_b32 s51, s51, 0xbfff')
    a('s_mov_b32 s48, 0xaaaaaaaa\ns_mov_b32 s49, 0xaaaaaaaa')
    a(f'v_mov_b32 v{v}, s50')
    a(f'v_mov_b32 v{v+1}, s51')
    a(f'v_cndmask_b32 v{v}, v{v}, v{v+1}, s[48:49]')

def comb_q(a):
    a('v_and_b32 v6, 15, v1')
    a('s_lshl_b32 s43, s3, 4')
    a('v_add_u32 v6, s43, v6')
    a('v_min_u32 v6, 95, v6')
    a('s_mul_i32 s44, s2, 96')
    a('v_add_u32 v6, s44, v6')
    a('v_lshlrev_b32 v6, 1, v6')
    a(f'global_load_ushort v7, v6, {SQ}')

def comb_setup(a, withq=True):
    if withq: comb_q(a)
    a('v_lshl_add_u32 v29, v16, 3, v28')
    a('v_mul_u32_u24 v29, 192, v29')
    a('v_lshl_add_u32 v29, v19, 3, v29')
    a('s_lshl_b32 s45, s3, 5')
    a(f'v_add_u32 v14, s45, v29')
    a('v_and_b32 v28, 15, v1')
    a('v_mul_u32_u24 v15, 384, v16')
    a('v_lshl_add_u32 v15, v28, 4, v15')
    a('s_mul_i32 s45, s3, 1536')
    a(f's_add_u32 s45, s45, {FIN}')
    a(f'v_add_u32 v15, s45, v15')
    a('v_and_b32 v29, 7, v1')
    a('v_lshlrev_b32 v8, 2, v29')
    a('s_mov_b32 s45, 0x75316240')
    a('v_bfe_u32 v8, s45, v8, 4')
    a('v_add_u32 v8, 48, v8')
    a('v_cmp_lt_u32 vcc, 7, v28')
    a('v_lshlrev_b32 v17, 6, v16')
    a('v_cndmask_b32 v8, v29, v8, vcc')
    a('v_lshl_add_u32 v8, v8, 3, v17')
    a(f'v_add_u32 v8, {FIN}, v8')
    a('s_lshl_b32 s45, s3, 8')
    a(f's_add_u32 s45, s45, {CTX}')
    a('v_lshlrev_b32 v9, 2, v28')
    a('v_mad_u32_u24 v9, v16, 48, v9')
    a('v_mov_b32 v29, 192')
    a('v_cmp_lt_u32 vcc, 11, v28')
    a('v_lshlrev_b32 v10, 4, v16')
    a('v_add_u32 v10, s45, v10')
    a('v_cndmask_b32 v9, v9, v29, vcc')
    a('v_add_u32 v9, s45, v9')

def gen_slow_combine(a):
    D, ACC, T = 32, 20, 28
    MA, MW = 64, 96
    a('Z_comb:')
    a('v_lshlrev_b32 v2, 4, v1')
    a('s_lshl_b32 s40, s2, 16')
    a('s_lshl_b32 s41, s3, 13')
    a('s_add_u32 s40, s40, s41')
    a('s_add_u32 s41, s40, 4096')
    a('v_lshrrev_b32 v16, 4, v1')
    a('v_bfe_u32 v28, v1, 2, 2')
    a('v_and_b32 v19, 3, v1')
    a('v_lshlrev_b32 v3, 11, v28')
    a('v_lshl_add_u32 v4, v16, 3, v3')
    a('v_lshl_add_u32 v3, v16, 9, v3')
    a('v_lshl_add_u32 v3, v19, 7, v3')
    a(f's_lshl_b32 s42, s2, 13\ns_add_u32 s42, s42, {MREC}')
    a(f's_lshl_b32 s52, s3, 8\ns_add_u32 s52, s52, s42')
    comb_setup(a)
    comb_tag(a, 12)
    for i in range(8): a(f'v_mov_b32 v{ACC+i}, 0')
    a('s_branch Z_poll')
    a('Z_again:')
    a('s_sleep 4')
    a('Z_poll:')
    for i in range(8): a(f'buffer_load_dwordx4 {vr(D+4*i,4)}, v2, {RWS}, {"s40" if i<4 else "s41"} offen offset:{1024*(i%4)} sc1')
    for i in range(8): a(f'buffer_load_dwordx4 {vr(MA+4*i,4)}, v3, {RWS}, s42 offen offset:{16*i} sc1')
    for i in range(8): a(f'buffer_load_dwordx2 {vr(MW+2*i,2)}, v4, {RWS}, s52 offen offset:{32*i} sc1')
    a('s_waitcnt vmcnt(0)')
    a(f'v_mov_b32 v{T}, 0')
    for i in range(8):
        a(f'v_xor_b32 v{T+1}, v12, v{D+4*i+3}')
        a(f'v_and_b32 v{T+1}, 0xffff, v{T+1}')
        a(f'v_or_b32 v{T}, v{T}, v{T+1}')
    for t in [MA+2*i+1 for i in range(16)] + [MW+2*i+1 for i in range(8)]:
        a(f'v_xor_b32 v{T+1}, s47, v{t}')
        a(f'v_or_b32 v{T}, v{T}, v{T+1}')
    a(f'v_cmp_ne_u32 vcc, 0, v{T}')
    a('s_nop 4')
    a('s_cbranch_vccnz Z_again')
    M = MA
    for i in range(1, 16): a(f'v_max_f32 v{M}, v{M}, v{MA+2*i}')
    a('s_nop 1')
    a(f'v_mov_b32_dpp v{M+1}, v{M} quad_perm:[1,0,3,2] row_mask:0xf bank_mask:0xf')
    a(f'v_max_f32 v{M}, v{M}, v{M+1}')
    a('s_nop 1')
    a(f'v_mov_b32_dpp v{M+1}, v{M} quad_perm:[2,3,0,1] row_mask:0xf bank_mask:0xf')
    a(f'v_max_f32 v{M}, v{M}, v{M+1}')
    def allrows(r, op):
        for sw in ('v_permlane16_swap_b32', 'v_permlane32_swap_b32'):
            a(f'v_mov_b32 v{T}, v{r}')
            a('s_nop 1')
            a(f'{sw} v{r}, v{T}')
            a('s_nop 1')
            a(f'{op} v{r}, v{r}, v{T}')
    allrows(M, 'v_max_f32')
    a('s_mov_b32 s46, 0xffff0000')
    for i in range(8):
        a(f'v_sub_f32 v{MW+2*i}, v{MW+2*i}, v{M}')
        a(f'v_exp_f32 v{MW+2*i}, v{MW+2*i}')
        a('s_nop 1')
        for j in range(4):
            a(f'v_lshlrev_b32 v{T}, 16, v{D+4*i+j}')
            a(f'v_and_b32 v{T+1}, s46, v{D+4*i+j}')
            if j < 3: a(f'v_fmac_f32 v{ACC+2*j}, v{T}, v{MW+2*i}')
            a(f'v_fmac_f32 v{ACC+2*j+1}, v{T+1}, v{MW+2*i}')
    for j in range(8): allrows(ACC+j, 'v_add_f32')
    a('v_cmp_eq_u32 vcc, 0, v16')
    a('s_nop 1')
    for j in range(4): a(f'v_cndmask_b32 v{ACC+j}, v{ACC+4+j}, v{ACC+j}, vcc')
    a('s_nop 1')
    a('s_branch K_red')

def gen_combine(a, cfg):
    D, ACC, T = 128, 20, 28
    NS = 9
    a('L_comb:')
    if cfg.trp: a('s_branch L_exit')
    a('v_lshlrev_b32 v2, 4, v1')
    a('s_lshl_b32 s40, s2, 16')
    a('s_lshl_b32 s41, s3, 13')
    a('s_add_u32 s40, s40, s41')
    a('s_add_u32 s41, s40, 4096')
    def load(i):
        a(f'buffer_load_dwordx4 {vr(D+4*i,4)}, v2, {RWS}, {"s40" if i<4 else "s41"} offen offset:{1024*(i%4)} sc1' + (' nt' if cfg.pollnt else ''))
    PM = lambda i: f's[{6+2*i}:{7+2*i}]'
    SEL = 24
    stamp(a, cfg, 11)
    if cfg.ktrace:
        for j in list(range(1, 8)) + [12]: a(f's_mov_b64 s[{STAMP0+2*j}:{STAMP0+2*j+1}], 0')
    if cfg.roll or cfg.dyn: comb_q(a)
    for i in range(8): load(i)
    a('v_lshrrev_b32 v16, 4, v1')
    a('v_bfe_u32 v28, v1, 2, 2')
    a('v_and_b32 v19, 3, v1')
    comb_setup(a, not (cfg.roll or cfg.dyn))
    comb_tag(a, 12)
    a('v_and_b32 v29, 1, v1')
    a('v_lshlrev_b32 v29, 4, v29')
    a('v_mov_b32 v17, 0x3f80')
    a('v_lshlrev_b32 v29, v29, v17')
    a('v_lshrrev_b32 v28, 1, v28')
    for r in range(4):
        a(f'v_cmp_eq_u32 vcc, {r}, v28')
        a(f'v_cndmask_b32 v{SEL+r}, 0, v29, vcc')
    if cfg.dyn:
        K = cfg.dyn
        J = lambda k: f's{6+k}'
        for i in range(4): a(f'v_mov_b32 v{ACC+i}, 0')
        a('s_mov_b32 s42, 0xff')
        a('s_mov_b32 s43, 7')
        def pick(k):
            a('s_lshl_b32 s44, -2, s43')
            a('s_and_b32 s44, s44, s42')
            a('s_cselect_b32 s44, s44, s42')
            a('s_ff1_i32_b32 s43, s44')
            a('s_lshl_b32 s44, s43, 10')
            a('s_add_u32 s44, s44, s40')
            a(f's_mov_b32 {J(k)}, s43')
            a(f'buffer_load_dwordx4 {vr(D+4*k,4)}, v2, {RWS}, s44 offen sc1')
        for i in range(8):
            a(f's_waitcnt vmcnt({7-i+min(i,K)})')
            if i == 0: stamp(a, cfg, 12)
            a(f'v_cmp_ne_u16 vcc, v12, v{D+4*i+3}')
            a(f's_cbranch_vccnz K_f{i}')
            a(f'{MF16} {vr(ACC,4)}, {vr(SEL,4)}, {vr(D+4*i,4)}, {vr(ACC,4)}')
            a(f's_bitset0_b32 s42, {i}')
            if i == 7:
                a('s_cmp_eq_u32 s42, 0')
                a('s_cbranch_scc1 K_red0')
            a(f'K_f{i}:')
            if i < K: pick(i)
        a('K_chk:')
        for k in range(K):
            a(f's_waitcnt vmcnt({K-1})')
            if cfg.ktrace and k == 0:
                a('s_waitcnt lgkmcnt(0)')
                for j in range(1, 7): a(f's_mov_b64 s[{STAMP0+2*j}:{STAMP0+2*j+1}], s[{STAMP0+2*j+2}:{STAMP0+2*j+3}]')
                a(f's_mov_b64 s[{STAMP0+14}:{STAMP0+15}], s[{STAMP0+24}:{STAMP0+25}]')
                stamp(a, cfg, 12)
            a(f'v_cmp_ne_u16 vcc, v12, v{D+4*k+3}')
            a(f's_cbranch_vccnz K_n{k}')
            a(f's_bitcmp0_b32 s42, {J(k)}')
            a(f's_cbranch_scc1 K_n{k}')
            a(f'{MF16} {vr(ACC,4)}, {vr(SEL,4)}, {vr(D+4*k,4)}, {vr(ACC,4)}')
            a(f's_bitset0_b32 s42, {J(k)}')
            a('s_cmp_eq_u32 s42, 0')
            a('s_cbranch_scc1 K_red0')
            a(f'K_n{k}:')
            pick(k)
        a('s_branch K_chk')
        a('K_red0:')
        a('s_nop 4')
    elif cfg.roll:
        for i in range(4): a(f'v_mov_b32 v{ACC+i}, 0')
        a('s_mov_b32 s42, 0xff')
        a('K_chk:')
        for i in range(8):
            a('s_waitcnt vmcnt(7)')
            if cfg.ktrace and i == 0:
                a('s_waitcnt lgkmcnt(0)')
                for j in range(1, 7): a(f's_mov_b64 s[{STAMP0+2*j}:{STAMP0+2*j+1}], s[{STAMP0+2*j+2}:{STAMP0+2*j+3}]')
                a(f's_mov_b64 s[{STAMP0+14}:{STAMP0+15}], s[{STAMP0+24}:{STAMP0+25}]')
            if i == 0: stamp(a, cfg, 12)
            a(f'v_cmp_ne_u16 vcc, v12, v{D+4*i+3}')
            a('s_cmp_lg_u64 vcc, 0')
            a('s_cselect_b64 exec, -1, 0')
            load(i)
            a('s_mov_b64 exec, -1')
            a(f's_cbranch_scc1 K_n{i}')
            a(f's_bitcmp0_b32 s42, {i}')
            a(f's_cbranch_scc1 K_n{i}')
            a(f'{MF16} {vr(ACC,4)}, {vr(SEL,4)}, {vr(D+4*i,4)}, {vr(ACC,4)}')
            a(f's_bitset0_b32 s42, {i}')
            a('s_cmp_eq_u32 s42, 0')
            a('s_cbranch_scc1 K_red0')
            a(f'K_n{i}:')
        a('s_branch K_chk')
        a('K_red0:')
        a('s_nop 4')
    else:
        a('K_chk:')
        a('s_waitcnt vmcnt(0)')
        if cfg.ktrace:
            a('s_waitcnt lgkmcnt(0)')
            for j in range(1, 7): a(f's_mov_b64 s[{STAMP0+2*j}:{STAMP0+2*j+1}], s[{STAMP0+2*j+2}:{STAMP0+2*j+3}]')
            a(f's_mov_b64 s[{STAMP0+14}:{STAMP0+15}], s[{STAMP0+24}:{STAMP0+25}]')
        stamp(a, cfg, 12)
        for i in range(8):
            a(f'v_cmp_ne_u16 {PM(i)}, v12, v{D+4*i+3}')
            a(f'{MF16} {vr(ACC,4)}, {vr(SEL,4)}, {vr(D+4*i,4)}, {"0" if i == 0 else vr(ACC,4)}')
            if i == 2: a(f's_or_b64 s[50:51], {PM(0)}, {PM(1)}')
            if i > 2: a(f's_or_b64 s[50:51], s[50:51], {PM(i-1)}')
        a(f's_or_b64 s[50:51], s[50:51], {PM(7)}')
        a('s_cbranch_scc1 K_retry')
    a('K_red:')
    stamp(a, cfg, 13)
    a(f'ds_write_b128 v15, {vr(ACC,4)}')
    Bq, C = 40, 56
    a('s_waitcnt lgkmcnt(0)')
    a('s_barrier')
    if cfg.fine: stamp(a, cfg, 15)
    a('s_cmp_ge_u32 s3, 6')
    a('s_cbranch_scc1 L_exit6')
    for k in range(4): a(f'ds_read2st64_b64 {vr(C+4*k,4)}, v8 offset0:{6*k} offset1:{6*k+3}')
    for s in range(3):
        for sec in range(2):
            a(f'ds_read_b64_tr_b16 {vr(Bq+4*s+2*sec,2)}, v14 offset:{s*6144+sec*768}')
    a('v_lshlrev_b32 v7, 16, v7')
    a('s_waitcnt lgkmcnt(8)')
    for i in range(4): a(f'v_add_f32 v{C+i}, v{C+i}, v{C+4+i}')
    a('s_waitcnt lgkmcnt(6)')
    for i in range(4): a(f'v_add_f32 v{C+8+i}, v{C+8+i}, v{C+12+i}')
    for i in (0, 2, 1, 3): a(f'v_add_f32 v{C+i}, v{C+i}, v{C+8+i}')
    a(f'v_add_f32 v{C}, v{C}, v{C+2}')
    a(f'v_add_f32 v{C+1}, v{C+1}, v{C+3}')
    a(f'v_add_f32_dpp v{C+2}, v{C+1}, v{C+1} quad_perm:[1,0,3,2] row_mask:0xf bank_mask:0xf')
    a(f'v_add_f32_dpp v{C+2}, v{C+2}, v{C+2} quad_perm:[2,3,0,1] row_mask:0xf bank_mask:0xf')
    a(f'v_mov_b32_dpp v{C+2}, v{C+2} row_newbcast:12 row_mask:0xf bank_mask:0xf')
    a(f'v_rcp_f32 v{C+2}, v{C+2}')
    a(f'v_mul_f32 v{C}, v{C}, v{C+2}')
    a(f'v_mul_f32 v{C+1}, v{C+1}, v{C+2}')
    a(f'v_cvt_pk_bf16_f32 v{C}, v{C}, v{C+1}')
    a(f'ds_write_b32 v9, v{C}')
    for s in range(3): a(f'ds_read_b128 {vr(C+4+4*s,4)}, v10 offset:{64*s}')
    for s in range(3):
        c = '0' if s == 0 else 'v[88:91]'
        a(f's_waitcnt lgkmcnt({2-s})')
        a(f'{MF16} v[88:91], {vr(C+4+4*s,4)}, {vr(Bq+4*s,4)}, {c}')
    a('v_cvt_pk_bf16_f32 v88, v88, v88')
    a('v_and_b32 v88, 0xffff0000, v88')
    a('v_add_f32 v88, v88, v7')
    a('v_cvt_pk_bf16_f32 v88, v88, v88')
    a('s_mov_b64 exec, 0xffff')
    a('s_waitcnt vmcnt(0)')
    a(f'global_store_short v6, v88, {SOUT}')
    a('s_mov_b64 exec, -1')
    stamp(a, cfg, 14)
    if cfg.diag:
        a('s_memrealtime s[98:99]')
        a('s_waitcnt lgkmcnt(0)')
        a('v_mov_b32 v20, s98\nv_mov_b32 v21, 36')
        a('s_mov_b64 exec, 1')
        a(f'global_atomic_umax v21, v20, {SDBG}')
        a('s_mov_b64 exec, -1')
    a('L_exit:')
    if cfg.diag:
        a('s_cmp_eq_u32 s3, 4')
        a('s_cbranch_scc0 L_end')
        a('s_memrealtime s[98:99]')
        a('s_getreg_b32 s50, hwreg(HW_REG_XCC_ID, 0, 4)')
        a('s_and_b32 s50, s50, 7')
        a('s_lshl_b32 s50, s50, 2')
        a('s_add_u32 s50, s50, 4')
        a('s_waitcnt lgkmcnt(0)')
        a('v_mov_b32 v20, s96\nv_mov_b32 v21, s50\nv_mov_b32 v22, s98\nv_mov_b32 v23, 40')
        a('s_mov_b64 exec, 1')
        a(f'global_store_dword v21, v20, {SDBG}')
        a('s_cmp_lt_u32 s2, 16')
        a('s_cbranch_scc1 L_end')
        a(f'global_atomic_umax v23, v22, {SDBG}')
        a('s_mov_b64 exec, -1')
    stamp_flush(a, cfg)
    a('L_end:')
    a('s_endpgm')
    a('L_exit6:')
    a('s_waitcnt vmcnt(0)')
    a('s_branch L_exit')
    if cfg.roll or cfg.dyn: return
    a('K_retry:')
    if cfg.ksleep: a(f's_sleep {cfg.ksleep}')
    for i in range(8):
        a(f's_cmp_lg_u64 {PM(i)}, 0')
        a('s_cselect_b64 exec, -1, 0')
        load(i)
    a('s_mov_b64 exec, -1')
    a('s_branch K_chk')

def build(cfg):
    a = Asm()
    a.raw(f'; @launch grid=(256,1,1) block=(512,1,1) lds={LDS_BYTES}')
    a.raw('.amdgcn_target "amdgcn-amd-amdhsa--gfx950"')
    a.raw('.text')
    a.raw(f'.globl {KNAME}'); a.raw('.p2align 8'); a.raw(f'.type {KNAME},@function'); a.raw(f'{KNAME}:')
    gen_entry(a, cfg)
    gen_producer(a, cfg)
    gen_consumer(a, cfg)
    gen_combine(a, cfg)
    a.raw('L_codeend:')
    cons_main(a, cfg, True)
    gen_slow_combine(a)
    txt = a.finish(verbose=True)
    txt = txt.replace('    ; @launch', '; @launch')
    txt += f'''.section .rodata,"a"
.p2align 6
.amdhsa_kernel {KNAME}
  .amdhsa_next_free_vgpr 256
  .amdhsa_next_free_sgpr 100
  .amdhsa_accum_offset 256
  .amdhsa_group_segment_fixed_size 0
  .amdhsa_kernarg_size 96
  .amdhsa_user_sgpr_count 2
  .amdhsa_user_sgpr_kernarg_segment_ptr 1
  .amdhsa_system_sgpr_workgroup_id_x 1
.end_amdhsa_kernel
'''
    return txt

if __name__ == '__main__':
    cfg = Cfg()
    out = sys.argv[1]
    for o in sys.argv[2:]:
        if '=' in o:
            k, v = o.split('='); setattr(cfg, k, int(v))
        else: setattr(cfg, o, True)
    open(out, 'w').write(build(cfg))
```

```python
import sys, math, struct
from asmlib import Asm, autowait
import blocks as B
from blocks import vr, f32, MF32, MF16, flat

KNAME = 'standalone__detection_seg_mask2former__vision_kernel'

HI = 0
WM = 12 * 6144
QS = 15 * 6144
WQ = 16 * 6144
LO = 110592 + 6144
WREG = LO + 27648
SCR = WREG + 18432
TOT = SCR
PF = SCR + 512
TKT = SCR + 528
CNT = SCR + 544
XCH = LO
XST = 6912
WO = 0
FIN = 20480
CTX = 32768
LDS_BYTES = SCR + 1024
assert LDS_BYTES <= 163840 and LO <= XCH and XCH + 4 * XST <= WREG
B.C.TB = 6144
LREC = 16 * 256 * 256
MREC = LREC
REC_BYTES = MREC + 16 * 4 * 256 * 8
BOUND = 80.0
THR = BOUND * BOUND / 96 / (1 + 2 ** -8) ** 2
STAMP_OFF = 4 << 20
FSW = sum(((((-(px >> 2)) & 3) ^ ((px >> 1) & 1)) << (2 * px)) for px in range(16))

class Cfg:
    stamps = False
    cyc = False
    repf = 0
    cvar = 0
    g0pos = 1
    fine = 0
    wvpos = 2
    h0pos = 1
    cpp = 0
    cmain = 0
    pp = 0
    deep = 1
    h1early = 0
    pwait = 1
    ksleep = 0
    r1late = 0
    pm = 2
    pv = 0
    pl = 2
    cearly = 0
    trp = 0
    trc = 0
    touch = 3
    t0pre = 0
    wkpos = 2
    dry = 0
    tokpos = -1
    wvr = 2
    ktrace = 0
    pollnt = 0
    roll = 0
    dyn = 5
    diag = 0
    early = 0
    tok2 = 1
    bist = 0
    mfirst = 1
    b2 = 0
    wvar = 0
    etr = 0
    xv = 0
    xd = 2
    fake = 0
    fsc = 0
    wsl = 0
    pk = 0
    uni = 0
    spec = 1
    tlb = 0
    spf = 0
    spn = 15
    c2 = None
    c3 = None
    c4 = None

SQ, SHI, SLO, SWL, SWQ, SWK, SWV, SWO, SWM, SOUT, SDBG, SWS = [f's[{4+2*i}:{5+2*i}]' for i in range(12)]
RHI, RLO, RWS = 's[28:31]', 's[32:35]', 's[36:39]'
SF = 's63'
STAMP0 = 64

def TM(cfg): return 's_memtime' if cfg.cyc else 's_memrealtime'

def stamp(a, cfg, i, inner=False):
    if cfg.b2 and i in (11, 12, 13, 14, 15) : return
    if cfg.bist:
        import inspect
        src = inspect.stack()[1].code_context[0]
        if 'bist' not in src and i in (4, 5, 6, 7, 8, 11, 12, 13, 14) and inspect.stack()[1].function != 'script': return
    if cfg.trp and not inner and i != 0: return
    if inner and not cfg.trp: return
    if cfg.stamps: a(f"{'s_memtime' if cfg.cyc else 's_memrealtime'} s[{STAMP0+2*i}:{STAMP0+2*i+1}]")

def stamp_flush(a, cfg, tmpv=100):
    if not cfg.stamps: return
    a('s_cmp_eq_u32 s100, 0')
    a('s_cbranch_scc1 L_nosl')
    a('s_sleep 100')
    a('L_nosl:')
    a('s_waitcnt lgkmcnt(0)')
    a('s_lshl_b32 s61, s2, 3\ns_add_u32 s61, s61, s3')
    a(f's_lshl_b32 s62, s61, 7')
    a(f's_add_u32 s62, s62, {STAMP_OFF}')
    for i in range(32): a(f'v_mov_b32 v{tmpv+i}, s{STAMP0+i}')
    a(f'v_mov_b32 v{tmpv+32}, 0')
    a('s_mov_b64 exec, 1')
    a('s_mov_b32 s56, s26\ns_mov_b32 s57, s27\ns_mov_b32 s58, 0x1000000\ns_mov_b32 s59, 0x20000')
    for i in range(8):
        a(f'buffer_store_dwordx4 {vr(tmpv+4*i,4)}, v{tmpv+32}, s[56:59], s62 offen offset:{16*i}')
    a('s_mov_b64 exec, -1')

def dma_swz(a, dst, k, tmp):
    a(f'v_add_u32 v{tmp}, {64*k if isinstance(k,int) else k}, v1')
    a(f'v_mul_u32_u24 v{tmp}, 0xaaab, v{tmp}')
    a(f'v_lshrrev_b32 v{tmp}, 18, v{tmp}')
    a(f'v_and_b32 v{tmp}, 0x1e, v{tmp}')
    a(f'v_bfe_u32 v{tmp}, {SF}, v{tmp}, 2')
    a(f'v_xor_b32 v{tmp}, v{tmp}, v1')
    a(f'v_lshlrev_b32 v{dst}, 4, v{tmp}')

def dma_part(a, ptr, ldsbase, voff, spart):
    lo = int(ptr[2:ptr.index(':')])
    a(f's_add_u32 m0, {spart}, {ldsbase}')
    a(f's_add_u32 s50, s{lo}, 4096')
    for k in range(4): a(f'global_load_lds_dwordx4 v{voff}, {ptr} offset:{1024*k}')
    a(f's_addc_u32 s51, s{lo+1}, 0')
    a(f's_add_u32 m0, {spart}, {ldsbase+4096}')
    a('s_mov_b32 exec_hi, 0')
    a(f'global_load_lds_dwordx4 v{voff}, s[50:51]')
    a('s_mov_b32 exec_hi, -1')

def dma_extra(a, ptr, ldsbase, voff, sbase):
    lo = int(ptr[2:ptr.index(':')])
    a(f's_add_u32 s50, s{lo}, 4096')
    a(f's_addc_u32 s51, s{lo+1}, 0')
    a(f's_add_u32 m0, {sbase}, {ldsbase+4096}')
    a('s_nop 0')
    a(f'global_load_lds_dwordx4 v{voff}, s[50:51]')

def dma_main(a, ptr, ldsbase, voff, sbase):
    a(f's_add_u32 m0, {sbase}, {ldsbase}')
    a('s_nop 0')
    for k in range(4): a(f'global_load_lds_dwordx4 v{voff}, {ptr} offset:{1024*k}')

def arrive(a, which, va, vd, rtn=False):
    a(f'v_mov_b32 v{va}, {CNT + 4*which}')
    a(f'v_mov_b32 v{vd}, 1')
    a('s_mov_b64 exec, 1')
    a(f'ds_add_rtn_u32 v{vd}, v{va}, v{vd}' if rtn else f'ds_add_u32 v{va}, v{vd}')
    a('s_mov_b64 exec, -1')

def await_cnt(a, which, tag, va, vd, n=4, setaddr=True):
    if setaddr: a(f'v_mov_b32 v{va}, {CNT + 4*which}')
    a(f'{tag}:')
    a(f'ds_read_b32 v{vd}, v{va}')
    a('s_waitcnt lgkmcnt(0)')
    a(f'v_readfirstlane_b32 s50, v{vd}')
    a(f's_cmp_lt_u32 s50, {n}')
    a(f's_cbranch_scc1 {tag}')

def lds_sync(a, which, tag, va, vd, n=4):
    arrive(a, which, va, vd, rtn=True)
    a('s_waitcnt lgkmcnt(0)')
    a(f'v_readfirstlane_b32 s50, v{vd}')
    a(f's_cmp_ge_u32 s50, {n-1}')
    a(f's_cbranch_scc1 {tag}_ok')
    await_cnt(a, which, tag + '_spin', va, vd, n, setaddr=False)
    a(f'{tag}_ok:')

def code_prefetch(a, tag, vt, tidoff, sp='s[44:45]', start=KNAME):
    lo = int(sp[2:sp.index(':')])
    a(f's_getpc_b64 {sp}')
    a(f'{tag}:')
    a(f's_add_u32 s{lo}, s{lo}, {start}-{tag}')
    a(f's_addc_u32 s{lo+1}, s{lo+1}, {"-1" if start == KNAME else "0"}')
    a(f'v_add_u32 v{vt}, {tidoff}, v0')
    a(f'v_lshlrev_b32 v{vt}, 7, v{vt}')
    a(f'v_min_u32 v{vt}, L_codeend-{start}-4, v{vt}')
    a(f'global_load_dword v{vt if vt == 0 else vt+1}, v{vt}, {sp}')

def nonce_slow(a, tag, back, v):
    a(f'{tag}:')
    a('s_memrealtime s[50:51]')
    a('s_waitcnt lgkmcnt(0)')
    a('s_or_b32 s47, s50, 1')
    a(f'v_mov_b32 v{v}, s47\nv_mov_b32 v{v+1}, 0\nv_mov_b32 v{v+2}, 0')
    a('s_mov_b64 exec, 1')
    a(f'global_atomic_cmpswap v{v}, v{v+2}, {vr(v,2)}, {SDBG} sc0 sc1')
    a('s_mov_b64 exec, -1')
    a('s_waitcnt vmcnt(0)')
    a(f'v_readfirstlane_b32 s50, v{v}')
    a('s_cmp_eq_u32 s50, 0')
    a('s_cselect_b32 s47, s47, s50')
    a(f's_branch {back}')

def gen_entry(a, cfg):
    a('s_cmp_ge_u32 s2, 256')
    a('s_cbranch_scc1 L_end')
    if cfg.stamps:
        for i in range(32): a(f's_mov_b32 s{STAMP0+i}, 0')
        a('s_mov_b32 s100, 1')
    stamp(a, cfg, 0)
    if cfg.diag: a('s_memrealtime s[96:97]')
    a('s_load_dwordx16 s[4:19], s[0:1], 0')
    a('s_load_dwordx8 s[20:27], s[0:1], 64')
    a('v_lshrrev_b32 v2, 6, v0')
    a('v_and_b32 v1, 63, v0')
    a('v_readfirstlane_b32 s3, v2')
    a(f's_mov_b32 {SF}, {FSW:#x}')
    a('s_mul_i32 s57, s2, 9')
    a(f's_mov_b32 s62, {f32(1/96)}')
    a('s_cmp_ge_u32 s3, 4')
    a('s_cbranch_scc1 L_cons')

def gen_producer(a, cfg):
    W0, W1, W2, RA0, RA1, RL0, RL1 = 2, 3, 4, 5, 6, 7, 8
    WL, LT, X, F = B.P.WL, B.P.LT, B.P.X, B.P.F
    ID, OP, SM, SL, T = B.P.ID, B.P.OP, B.P.SM, B.P.SL, B.P.T
    FLA, FLV = 14, 15
    U = 232
    sP = 's3'
    sH0, sH1, sH8, sLo0, sLo1 = 's40', 's41', 's42', 's43', 's44'
    sSlot, sLoP, RET = 's45', 's46', 's[48:49]'
    t0, t1, t2 = 's52', 's53', 's54'
    M1, O1, M2, O2 = 's55', 's56', 's58', 's59'
    for k, w in enumerate((W0, W1, W2)): dma_swz(a, w, k, U)
    a(f'v_lshlrev_b32 v{U+3}, 4, v1')
    for i in range(4): a(f'v_mov_b32 v{U+4+i}, 0')
    a(f'v_add_u32 v{U+8}, {SCR}, v{U+3}')
    a(f'ds_write_b128 v{U+8}, {vr(U+4,4)}')
    a(f's_add_u32 s58, s57, {sP}')
    a(f's_mul_i32 {sLo0}, s58, 3072')
    a(f's_mul_i32 {sLoP}, {sP}, 3072')
    a(f's_add_u32 {sLoP}, {sLoP}, {LO}')
    a('s_mov_b32 s34, 7077888\ns_mov_b32 s35, 0x20000')
    a(f's_add_u32 {sLo1}, {sLo0}, {4*3072}')
    def hi_off(dst, u):
        a(f's_mul_i32 {t0}, {u}, 43691')
        a(f's_lshr_b32 {t0}, {t0}, 19')
        a(f's_mul_i32 {t0}, {t0}, 73728')
        a(f's_mul_i32 {dst}, {u}, 6144')
        a(f's_add_u32 {dst}, {dst}, {t0}')
    a(f's_mul_i32 {sSlot}, {sP}, 6144')
    a('s_add_u32 s60, s57, 8')
    a('s_mul_i32 s61, s60, 3072')
    a(f's_cmp_lt_u32 {sP}, 2')
    a(f's_cselect_b32 s55, s61, {sLo0}')
    a(f's_cselect_b32 s56, {LO+8*3072}, {sLoP}')
    a('s_mov_b32 s30, 28311552\ns_mov_b32 s31, 0x20000')
    a(f's_min_u32 {t0}, {sP}, 2')
    a(f's_lshl_b32 s47, {sP}, 2')
    a(f's_add_u32 s47, s47, {t0}')
    a(f's_lshl_b32 s47, s47, 10')
    a(f'v_add_u32 v15, s47, v{U+3}')
    a('s_add_u32 s59, s58, 4')
    hi_off(sH0, 's58'); hi_off(sH1, 's59'); hi_off(sH8, 's60')
    a(f's_mul_i32 {t0}, {sP}, 73728')
    a(f's_add_u32 {sH8}, {sH8}, {t0}')
    a(f's_cmp_lt_u32 {sP}, 2')
    a(f's_cselect_b32 s57, {sH8}, {sH0}')
    if cfg.bist: stamp(a, cfg, 12)
    a(f's_cmp_ge_u32 {sP}, 2')
    a('s_waitcnt lgkmcnt(0)')
    if cfg.bist: stamp(a, cfg, 13)
    a('s_cbranch_scc1 P_nox')
    dma_extra(a, SWL, WREG, 15, 's47')
    a('P_nox:')
    dma_main(a, SWL, WREG, 15, 's47')
    def half(srd, soff):
        return [f'buffer_load_dwordx4 v{w}, {srd}, {soff} offen offset:{1024*k} nt lds' for k, w in enumerate((W0, W1, W2))]
    a('s_mov_b32 s32, s8\ns_mov_b32 s33, s9')
    a(f's_mov_b32 m0, s56')
    a('s_mov_b32 s28, s6')
    for l in half(RLO, 's55'): a(l)
    a('s_mov_b32 s29, s7')
    def issue_h(soff, rnd, hf, add=0):
        a(f's_add_u32 m0, {sSlot}, {rnd*4*6144+3072*hf}')
        if add + hf:
            a(f's_add_u32 {t0}, {soff}, {add+3072*hf}'); src = t0
        else:
            a('s_nop 0'); src = soff
        for l in half(RHI, src): a(l)
    for hf in range(cfg.t0pre): issue_h('s57', 0, hf)
    if cfg.spf & 1:
        a('s_add_u32 s98, s6, s57\ns_addc_u32 s99, s7, 0')
        for i in range(cfg.spn): a(f's_load_dword s96, s[98:99], {128*i}')
    if cfg.tlb:
        a(f's_load_dword s96, {SHI}, s57')
        a(f's_add_u32 s97, {sH0}, 79000')
        a(f's_min_u32 s97, s97, 28311548')
        a(f's_and_b32 s97, s97, -4')
        a(f's_load_dword s97, {SHI}, s97')
    if cfg.bist: stamp(a, cfg, 11)
    a('s_barrier')
    a(f's_sub_u32 s56, s56, {sLoP}')
    stamp(a, cfg, 1)
    a(f'v_and_b32 v{U}, 31, v1')
    a(f'v_lshrrev_b32 v{U+1}, 5, v1')
    def rdaddr(d0, d1, px, base):
        a(f'v_lshlrev_b32 v{U+2}, 1, v{px}')
        a(f'v_and_b32 v{U+2}, 0x1e, v{U+2}')
        a(f'v_bfe_u32 v{U+2}, {SF}, v{U+2}, 2')
        a(f'v_xor_b32 v{U+2}, v{U+2}, v{U+1}')
        a(f'v_xor_b32 v{U+3}, 2, v{U+2}')
        a(f'v_mul_u32_u24 v{U+4}, 192, v{px}')
        a(f'v_add_u32 v{U+4}, {base}, v{U+4}')
        a(f'v_lshl_add_u32 v{d0}, v{U+2}, 4, v{U+4}')
        a(f'v_lshl_add_u32 v{d1}, v{U+3}, 4, v{U+4}')
    rdaddr(RA0, RA1, U, sSlot)
    a(f'v_lshrrev_b32 v{U+5}, 1, v{U}')
    rdaddr(RL0, RL1, U+5, sLoP)
    a(f'v_bfe_u32 v14, v1, 2, 2')
    a(f'v_lshl_add_u32 v14, v{U+1}, 3, v14')
    a(f'v_mul_u32_u24 v14, 192, v14')
    a(f'v_bfe_u32 v{U+8}, v1, 4, 1')
    a(f'v_lshl_add_u32 v14, v{U+8}, 5, v14')
    a(f'v_and_b32 v{U+3}, 1, v1')
    a(f'v_lshl_add_u32 v14, v{U+3}, 4, v14')
    a(f'v_bfe_u32 v{U+3}, v1, 1, 1')
    a(f'v_lshl_add_u32 v14, v{U+3}, 3, v14')
    a(f'v_add_u32 v14, {WREG}, v14')
    a(f'v_bfe_u32 v{U+2}, v1, 3, 1')
    a(f'v_and_b32 v{U+3}, 3, v1')
    a(f'v_lshl_add_u32 v{U+2}, v{U+2}, 2, v{U+3}')
    a(f'v_bfe_u32 v{U+3}, v1, 2, 1')
    a(f'v_cmp_eq_u32 vcc, v{U+3}, v{U+1}')
    a(f'v_and_b32 v{U+6}, 1, v{U+2}')
    a(f'v_lshlrev_b32 v{U+6}, 4, v{U+6}')
    a(f'v_mov_b32 v{U+4}, 0x3f80')
    a(f'v_lshlrev_b32 v{U+6}, v{U+6}, v{U+4}')
    a(f'v_cndmask_b32 v{U+6}, 0, v{U+6}, vcc')
    a(f'v_lshrrev_b32 v{U+2}, 1, v{U+2}')
    a(f'v_lshl_add_u32 v{U+2}, v{U+8}, 2, v{U+2}')
    a(f'v_cmp_eq_u32 s[58:59], v{U+3}, v{U+8}')
    a(f'v_mov_b32 v{U+7}, 0x3f803f80')
    for i in range(0, 8, 2):
        a(f'v_cmp_eq_u32 vcc, {i}, v{U+2}')
        a(f'v_cmp_eq_u32 s[60:61], {i+1}, v{U+2}')
        a(f'v_cndmask_b32 v{OP+i//2}, 0, v{U+7}, s[58:59]')
        a(f'v_cndmask_b32 v{ID+i}, 0, v{U+6}, vcc')
        a(f'v_cndmask_b32 v{ID+i+1}, 0, v{U+6}, s[60:61]')
    if cfg.dry:
        a('s_mov_b64 exec, 0')
        a(f's_cmp_eq_u32 {sP}, 1')
        a('s_cbranch_scc1 P_dry1')
        a(f's_cmp_eq_u32 {sP}, 2')
        a('s_cbranch_scc1 P_dry2')
        a(f's_cmp_eq_u32 {sP}, 3')
        a('s_cbranch_scc1 P_dryd')
        a(f's_call_b64 {RET}, P_h0')
        a('P_dryd:')
        a('s_mov_b64 exec, -1')
        stamp(a, cfg, 15)
    if cfg.tokpos == 0 and cfg.t0pre < 2:
        await_cnt(a, 5, 'P_sy5', 12, 13, 4)
        for hf in range(cfg.t0pre, 2): issue_h('s57', 0, hf)
        a(f's_waitcnt vmcnt(6)')
    else:
        a(f's_waitcnt vmcnt({3*cfg.t0pre})')
    stamp(a, cfg, 10)
    arrive(a, 0, 12, 13)
    def lo_reads(r0, r1, off=0):
        return [f'ds_read_b128 {vr(X+4*s,4)}, v{r1 if s&1 else r0} offset:{off+64*(s>>1)}' for s in range(6)]
    a(f'v_add_u32 v{U}, s56, v{RL0}\nv_add_u32 v{U+1}, s56, v{RL1}')
    if cfg.tokpos < 0:
        await_cnt(a, 5, 'P_sy5', 15, 13, 4)
        for hf in range(cfg.t0pre, 2): issue_h('s57', 0, hf)
    for l in lo_reads(U, U+1): a(l)
    await_cnt(a, 0, 'P_sy0', 12, 13, 4, setaddr=False)
    stamp(a, cfg, 2)
    def wl_reads(t, s):
        return [f'ds_read_b64_tr_b16 {vr(WL+(t*6+s)*4+2*sec,2)}, v14 offset:{s*3072+sec*768+t*64}' for sec in range(2)]
    def lat_mfma(t, s):
        c = '0' if s == 0 else vr(LT+16*t,16)
        return f'{MF32} {vr(LT+16*t,16)}, {vr(WL+(t*6+s)*4,4)}, {vr(X+4*s,4)}, {c}'
    def lateral(first):
        pend = []
        L = [wl_reads(0, s) for s in range(4)] if first else []
        seq = [(t, s) for t in range(3) for s in range(6)]
        for i, (t, s) in enumerate(seq):
            L.append(lat_mfma(t, s))
            if first and i + 4 < 18: L.append(wl_reads(*seq[i+4]))
            if s >= 1: L.append(pend[:4]); del pend[:4]
            if s == 5:
                pend += [f'v_mov_b32 v{SL}, v{LT}' if (t == 0 and j == 0) else f'v_add_f32 v{SL}, v{SL}, v{LT+16*t+j}' for j in range(16)]
        return flat(L), pend
    def sl_fin():
        return [f'v_mov_b32 v{SL+1}, v{SL}', 's_nop 1', f'v_permlane32_swap_b32 v{SL}, v{SL+1}', f'v_add_f32 v{SL}, v{SL}, v{SL+1}']
    L, pend = lateral(True)
    L = autowait(L, age=99)
    if cfg.tokpos > 0 and cfg.t0pre < 2:
        k = [i for i, l in enumerate(L) if l.startswith('v_mfma')][cfg.tokpos]
        for l in L[:k]: a(l)
        a('s_waitcnt lgkmcnt(0)')
        await_cnt(a, 5, 'P_sy5', 12, 13, 4)
        for hf in range(cfg.t0pre, 2): issue_h('s57', 0, hf)
        L = L[k:]
    for l in L: a(l)
    for l in pend + sl_fin(): a(l)
    arrive(a, 16, 12, 13)
    stamp(a, cfg, 3)
    a(f's_lshl_b32 {t0}, {sP}, 2')
    a(f's_add_u32 {t0}, {t0}, {PF}')
    a(f'v_mov_b32 v{FLA}, {t0}')
    a(f'v_mov_b32 v{FLV}, 0')
    a(f's_cmp_lt_u32 {sP}, 2')
    a('s_cbranch_scc0 P_scriptB')
    def script(tag, tiles, lats, los):
        n = len(tiles)
        q = ['h0', 'h1']
        nxt = [2]
        done = set()
        def guard(r):
            if r >= 3 and not done:
                done.add(r); await_cnt(a, 4, f'P_w{tag}{r}', 12, 13, 4)
        def param(M, O):
            h = nxt[0]; r, hf = divmod(h, 2)
            guard(r)
            a(f's_add_u32 {M}, {sSlot}, {r*4*6144+3072*hf}')
            a(f's_add_u32 {O}, {tiles[r][0]}, {tiles[r][1]+3072*hf}')
            nxt[0] += 1
            return f'h{h}'
        def now_h():
            h = nxt[0]; r, hf = divmod(h, 2)
            guard(r)
            issue_h(tiles[r][0], r, hf, tiles[r][1]); nxt[0] += 1
            q.append(f'h{h}')
        def now_lo(key):
            a(f's_add_u32 m0, {sLoP}, {0 if key == "lo0" else 4*3072}')
            a('s_nop 0')
            for l in half(RLO, sLo0 if key == 'lo0' else sLo1): a(l)
            q.append(key)
        if cfg.t0pre == 2 and cfg.tok2: await_cnt(a, 5, f'P_sy5{tag}', 12, 13, 4)
        for key in los.get(-1, []): now_lo(key)
        for _ in range(cfg.early): now_h()
        for r in range(n):
            ng = min(2, 2*n - nxt[0])
            if r == 1 and cfg.r1late: ng = 1
            new = []
            if ng >= 1: new.append(param(M1, O1))
            if ng >= 2: new.append(param(M2, O2))
            last = r == n - 1
            if cfg.b2 and r >= 1: a(f"{TM(cfg)} s[{STAMP0+2*(10+r)}:{STAMP0+2*(10+r)+1}]")
            if lats[r] is not None:
                key = lats[r]
                if key in q:
                    i2 = q.index(key)
                    a(f's_waitcnt vmcnt({3*(len(q)-1-i2)})'); del q[:i2+1]
                off = 0 if key == 'lo0' else 4*3072
                a(f'v_add_u32 v12, {off}, v{RL0}\nv_add_u32 v13, {off}, v{RL1}')
                a(f's_call_b64 {RET}, P_lat')
            idx = max([q.index(x) for x in (f'h{2*r}', f'h{2*r+1}') if x in q] + [-1])
            if cfg.b2 and lats[r] is not None: a(f"{TM(cfg)} s[{STAMP0+2*(1 if r < 2 else 2)}:{STAMP0+2*(1 if r < 2 else 2)+1}]")
            if last and tag == 'a':
                a(f's_call_b64 {RET}, P_h0w'); break
            a(f's_waitcnt vmcnt({3*(len(q)-1-idx)})'); stamp(a, cfg, 4+r)
            del q[:idx+1]; q.extend(new)
            if last: break
            a(f's_call_b64 {RET}, P_h{ng}')
            if r == 1 and cfg.r1late: now_h()
            for key in los.get(r, []): now_lo(key)
            if tag == 'b' and r == cfg.wvr:
                await_cnt(a, 16, 'P_wl', 12, 13, 4)
                a(f's_sub_u32 {t0}, {sP}, 2\ns_mul_i32 {t0}, {t0}, 9216')
                a(f'v_lshlrev_b32 v12, 4, v1\nv_add_u32 v12, {t0}, v12')
                for k in range(3):
                    a(f's_add_u32 m0, {t0}, {WREG+3072*k}')
                    a(f's_add_u32 s50, s16, {3072*k}\ns_addc_u32 s51, s17, 0')
                    for j in range(3): a(f'global_load_lds_dwordx4 v12, s[50:51] offset:{1024*j}')
                    q.append('wv')
                if cfg.touch:
                    a(f's_mov_b32 s36, s26\ns_mov_b32 s37, s27\ns_mov_b32 s38, {REC_BYTES}\ns_mov_b32 s39, 0x20000')
                    a('v_and_b32 v12, 15, v1\nv_lshlrev_b32 v12, 16, v12')
                    if cfg.touch >= 2:
                        a('v_lshrrev_b32 v13, 4, v1\nv_lshl_add_u32 v12, v13, 6, v12')
                        a(f's_lshl_b32 {t0}, s2, 8')
                        a(f'buffer_load_dword v232, v12, {RWS}, {t0} offen' + (' sc1' if cfg.touch == 3 else ''))
                    else:
                        a(f'buffer_load_dword v232, v12, {RWS}, 0 offen')
                    a(f'v_mov_b32 v12, 0')
                    a(f'global_load_dword v234, v12, {SOUT}')
                    a(f'global_load_dword v233, v12, {SQ}')
                    q.append('touch')
    script('a', [None, (sH0, 0), (sH0, 73728), (sH1, 0), (sH1, 73728)], [None, 'lo0', None, 'lo1', None], {-1: ['lo0'], 1: ['lo1']})
    if cfg.b2: a(f"{TM(cfg)} s[{STAMP0+30}:{STAMP0+31}]")
    a('s_branch P_fin')
    a('P_scriptB:')
    script('b', [None, (sH0, 73728), (sH1, 0), (sH1, 73728)], [None, None, 'lo1', None], {0: ['lo1']})
    a(f's_call_b64 {RET}, P_h0')
    if cfg.b2: a(f"{TM(cfg)} s[{STAMP0+30}:{STAMP0+31}]")
    a(f'v_mov_b32 v{FLV}, 5')
    a('s_waitcnt vmcnt(0)')
    a(f'ds_write_b32 v{FLA}, v{FLV}')
    if cfg.trp: a('s_branch L_exit')
    if cfg.stamps: a('s_mov_b32 s100, 0')
    a('s_cmp_ge_u32 s2, 16')
    a('s_cbranch_scc1 L_exit')
    if cfg.stamps: a('s_mov_b32 s100, 1')
    await_cnt(a, 17, 'P_w17', 12, 13, 4)
    a(f's_sub_u32 {t0}, {sP}, 2\ns_mul_i32 {t0}, {t0}, 9216')
    a(f'v_lshlrev_b32 v12, 4, v1\nv_add_u32 v12, {t0}, v12')
    for k in range(3):
        a(f's_add_u32 m0, {t0}, {WO+3072*k}')
        a(f's_add_u32 s50, s18, {3072*k}\ns_addc_u32 s51, s19, 0')
        for j in range(3): a(f'global_load_lds_dwordx4 v12, s[50:51] offset:{1024*j}')
    a('P_fin:')
    if cfg.trp: a('s_branch L_exit')
    stamp(a, cfg, 9)
    a('s_cmp_ge_u32 s2, 16')
    a('s_cbranch_scc1 L_exit')
    a('s_setprio 0')
    a(f's_load_dword s47, {SDBG}, 0')
    a('s_waitcnt lgkmcnt(0)')
    a('s_cmp_eq_u32 s47, 0')
    a('s_cbranch_scc1 P_getnonce')
    a('P_getnonce_d:')
    a(f's_mov_b32 s36, s26\ns_mov_b32 s37, s27\ns_mov_b32 s38, {REC_BYTES}\ns_mov_b32 s39, 0x20000')
    await_cnt(a, 7, 'P_w7', 12, 13, 4)
    a('s_cmp_lt_u32 s50, 0x100')
    a('s_cbranch_scc1 L_comb')
    a('s_branch Z_comb')
    nonce_slow(a, 'P_getnonce', 'P_getnonce_d', 20)
    if cfg.dry:
        a('P_dry1:')
        a('s_call_b64 s[60:61], C_blk2')
        a('s_branch P_dryd')
        a('P_dry2:')
        a(f's_call_b64 {RET}, P_lat')
        a('s_branch P_dryd')
    a('P_lat:')
    if cfg.pp: a(f's_setprio {cfg.pl}')
    L, pend = lateral(False)
    for l in autowait(lo_reads(12, 13) + L, age=99): a(l)
    a('s_nop 9')
    for l in pend + sl_fin(): a(l)
    a(f's_setpc_b64 {RET}')
    hp = cfg.pm if cfg.pp else None
    g1 = [f's_mov_b32 m0, {M1}', 's_nop 0'] + half(RHI, O1)
    g2 = [f's_mov_b32 m0, {M2}', 's_nop 0'] + half(RHI, O2)
    def traced(lines, first, n):
        step = max(1, len(lines) // n); k = first
        for i, l in enumerate(lines):
            if i % step == 0 and k < first + n:
                stamp(a, cfg, k, True); k += 1
            a(l)
    a('P_h2:')
    traced(B.p_head(g1, g2, hp), 2, 3)
    a('s_branch P_s1')
    a('P_h1:')
    traced(B.p_head(g1, (), hp), 2, 3)
    a('s_branch P_s1')
    a('P_h0w:')
    a('s_waitcnt vmcnt(0)')
    stamp(a, cfg, 8)
    a('P_h0:')
    for l in B.p_head((), (), hp): a(l)
    a('P_s1:')
    tail = B.p_tail(0, cfg.pv if cfg.pp else None) if not cfg.pk else B.p_tail_pk(cfg.pv if cfg.pp else None, bool(cfg.pk & 1), bool(cfg.pk & 2))
    traced(tail[:-1], 5, 9)
    a(f'v_add_u32 v{FLV}, 1, v{FLV}')
    a('s_waitcnt lgkmcnt(0)')
    a(f'ds_write_b32 v{FLA}, v{FLV}')
    a(f's_setpc_b64 {RET}')

def gen_consumer(a, cfg):
    sH = 's40'
    t0, t1 = 's41', 's42'
    RET = 's[60:61]'
    sR = 's43'
    LIN, REC, WVA, XA = 2, 3, 8, 9
    CA0, CA1, CT0, CT1 = B.C.CA0, B.C.CA1, B.C.CT0, B.C.CT1
    PART = 12
    AP, U, LA, OP = B.C.AP, B.C.U, B.C.LA, B.C.OP
    WV = B.C.WV
    QB, WK, ME, QT, QP, TA, QF = 96, 108, 132, 156, 164, 168, 16
    T = 240
    T2 = 248
    a('L_cons:')
    if cfg.cearly: a(f's_setprio {cfg.cpp}')
    a('s_memrealtime s[58:59]')
    code_prefetch(a, 'L_pc', 0, -256)
    a(f's_sub_u32 {sH}, s3, 4')
    a(f'v_lshlrev_b32 v{LIN}, 4, v1')
    a(f's_mul_i32 s48, {sH}, 4608')
    a(f'v_add_u32 v{PART}, s48, v{LIN}')
    a(f's_min_u32 {t0}, {sH}, 2')
    a(f's_lshl_b32 s46, {sH}, 2')
    a(f's_add_u32 s46, s46, {t0}')
    a(f's_lshl_b32 s46, s46, 10')
    a(f'v_add_u32 v13, s46, v{LIN}')
    a(f's_lshl_b32 s54, {t0}, 10')
    a(f'v_add_u32 v10, s54, v{LIN}')
    a('s_lshr_b32 s50, s2, 3\ns_and_b32 s50, s50, 31\ns_mul_i32 s50, s50, 640')
    a(f'v_lshlrev_b32 v14, 7, v1')
    a(f'v_add_u32 v14, s50, v14')
    a(f'v_min_u32 v14, 18428, v14')
    N, G, RHO, KAP = T+4, T+5, T+6, T+7
    a(f'v_and_b32 v{N}, 15, v1')
    a(f'v_lshrrev_b32 v{G}, 4, v1')
    a(f'v_bfe_u32 v{RHO}, v1, 2, 2')
    a(f'v_and_b32 v{KAP}, 3, v1')
    a(f'v_mul_u32_u24 v{T+8}, 192, v{N}')
    a(f'v_lshl_add_u32 v{T+8}, v{G}, 4, v{T+8}')
    a(f'v_lshl_add_u32 v{T+9}, v{RHO}, 3, v{KAP}')
    a(f'v_mul_u32_u24 v{T+9}, 48, v{T+9}')
    a(f'v_lshl_add_u32 v{T+9}, v{G}, 4, v{T+9}')
    a(f'v_add_u32 v{T+9}, s48, v{T+9}')
    if cfg.spf & 6:
        a(f's_cmp_lt_u32 {sH}, 2')
        a(f's_cselect_b32 s96, 8, {sH}')
        a(f's_cselect_b32 s97, {sH}, 0')
        a('s_add_u32 s96, s96, s57')
        a('s_mul_i32 s98, s96, 43691')
        a('s_lshr_b32 s98, s98, 19')
        a('s_add_u32 s98, s98, s97')
        a('s_mul_i32 s98, s98, 73728')
        a('s_mul_i32 s96, s96, 6144')
        a('s_add_u32 s97, s96, s98')
    if cfg.bist: stamp(a, cfg, 12)
    a('s_waitcnt lgkmcnt(0)')
    if cfg.bist: stamp(a, cfg, 13)
    if cfg.spf & 6:
        a('s_add_u32 s98, s6, s97\ns_addc_u32 s99, s7, 0')
    a(f's_cmp_eq_u32 {sH}, 0\ns_cselect_b64 s[50:51], {SWV}, {SWQ}')
    a(f's_cmp_eq_u32 {sH}, 2\ns_cselect_b64 s[50:51], {SWK}, s[50:51]')
    a(f's_cmp_eq_u32 {sH}, 3\ns_cselect_b64 s[50:51], {SWM}, s[50:51]')
    a('s_mov_b64 exec, 31')
    a(f'global_load_dword v15, v14, s[50:51]')
    a('s_mov_b64 exec, -1')
    o2 = cfg.spn if cfg.spf & 1 else 0
    if cfg.spf & 2:
        for i in range(cfg.spn): a(f's_load_dword s96, s[98:99], {128*(o2+i)}')
        o2 += cfg.spn
    if cfg.bist: stamp(a, cfg, 11)
    a('s_barrier')
    if cfg.bist: stamp(a, cfg, 14)
    a(f's_lshl_b32 s50, s2, 2\ns_xor_b32 s50, s50, {sH}\ns_cmp_eq_u32 s50, 3')
    a('s_cbranch_scc1 C_mknonce')
    a('C_mknonce_d:')
    if cfg.fake: arrive(a, 5, 14, 15)
    if not cfg.fake:
        M1S, M1L, M2S, M2L = (SWM, WM, SWQ, WQ) if cfg.mfirst else (SWQ, WQ, SWM, WM)
        a(f's_cmp_ge_u32 {sH}, 3')
        a('s_cbranch_scc1 C_noy')
        a(f's_add_u32 m0, s54, {QS}')
        a(f's_cmp_ge_u32 {sH}, 2')
        a(f'global_load_lds_dwordx4 v10, {SQ}')
        a('s_cbranch_scc1 C_noy')
        dma_extra(a, M1S, M1L, 13, 's46')
        a('C_noy:')
        dma_main(a, M1S, M1L, 13, 's46')
        if cfg.wkpos == 2: arrive(a, 5, 14, 15)
        a('s_mov_b32 s57, s46')
        a(f'v_mov_b32 v{PART}, v13')
        for i in range(24): a(f'v_mov_b32 v{WK+i}, 0')
    stamp(a, cfg, 1)
    a(f's_mov_b32 s36, s26\ns_mov_b32 s37, s27\ns_mov_b32 s38, {REC_BYTES}\ns_mov_b32 s39, 0x20000')
    a(f's_and_b32 s49, {sH}, 1\ns_lshl_b32 s55, s49, 1\ns_lshr_b32 s56, {sH}, 1\ns_add_u32 s55, s55, s56')
    a(f's_lshl_b32 {t0}, s2, 2\ns_add_u32 {t0}, {t0}, s55\ns_lshl_b32 {t0}, {t0}, 6')
    a(f'v_lshlrev_b32 v{REC}, 16, v{N}')
    a(f'v_lshl_add_u32 v{REC}, v{G}, 4, v{REC}')
    a(f'v_add_u32 v{REC}, {t0}, v{REC}')
    a('s_mul_i32 s52, s56, 12288')
    a(f'v_and_b32 v{T+10}, 31, v1')
    a(f'v_lshrrev_b32 v{T+11}, 5, v1')
    a(f'v_lshlrev_b32 v{T+12}, 1, v{N}')
    a(f'v_bfe_u32 v{T+12}, {SF}, v{T+12}, 2')
    a(f'v_xor_b32 v{T+12}, v{T+12}, v{T+11}')
    a(f'v_mul_u32_u24 v{T+13}, 192, v{T+10}')
    a(f'v_add_u32 v{T+13}, s52, v{T+13}')
    a(f'v_lshl_add_u32 v{CA0}, v{T+12}, 4, v{T+13}')
    a(f'v_xor_b32 v{T+12}, 2, v{T+12}')
    a(f'v_lshl_add_u32 v{CA1}, v{T+12}, 4, v{T+13}')
    a(f'v_lshl_add_u32 v{T+12}, v{T+11}, 2, v{RHO}')
    a(f'v_bfe_u32 v{T+13}, v1, 4, 1')
    a(f'v_lshrrev_b32 v{T+14}, 1, v{KAP}')
    a(f'v_lshl_add_u32 v{T+14}, v{T+13}, 1, v{T+14}')
    a(f'v_and_b32 v{T+15}, 1, v{KAP}')
    a(f'v_lshlrev_b32 v{T+15}, 3, v{T+15}')
    a(f'v_add_u32 v{T+15}, s52, v{T+15}')
    for sec, dst in ((0, CT0), (1, CT1)):
        if sec: a(f'v_add_u32 v{T+12}, 8, v{T+12}')
        a(f'v_lshlrev_b32 v{dst}, 1, v{T+12}')
        a(f'v_bfe_u32 v{dst}, {SF}, v{dst}, 2')
        a(f'v_xor_b32 v{dst}, v{dst}, v{T+14}')
        a(f'v_lshl_add_u32 v{dst}, v{dst}, 4, v{T+15}')
        a(f'v_mul_u32_u24 v10, 192, v{T+12}')
        a(f'v_add_u32 v{dst}, v{dst}, v10')
    a(f'v_lshl_add_u32 v{WVA}, v{T+11}, 2, v{RHO}')
    a(f'v_lshl_add_u32 v{WVA}, v{T+13}, 4, v{WVA}')
    a(f'v_mul_u32_u24 v{WVA}, 48, v{WVA}')
    a(f'v_lshl_add_u32 v{WVA}, v{KAP}, 3, v{WVA}')
    a(f'v_add_u32 v{WVA}, {WREG}, v{WVA}')
    a(f's_xor_b32 {t0}, s55, 1')
    a(f's_mul_i32 s53, {t0}, 4608')
    a(f's_mul_i32 s46, s55, 4608')
    a(f'v_mov_b32 v10, s46')
    a(f'v_mov_b32 v11, s53')
    a(f'v_cmp_eq_u32 vcc, 0, v{T+13}')
    a(f'v_mul_u32_u24 v{XA}, 192, v{N}')
    a(f'v_lshl_add_u32 v{XA}, v{T+11}, 4, v{XA}')
    a(f'v_cndmask_b32 v10, v11, v10, vcc')
    a(f'v_add_u32 v{XA}, v{XA}, v10')
    a(f'v_add_u32 v{XA}, {WQ}, v{XA}')
    a(f'v_lshl_add_u32 v{T+12}, v{G}, 3, v{RHO}')
    a(f'v_mul_u32_u24 v10, 48, v{T+12}')
    a(f'v_min_u32 v11, 2, v{KAP}')
    a(f'v_lshl_add_u32 v10, v11, 4, v10')
    a(f's_add_u32 {t0}, s48, {WQ}')
    a(f'v_add_u32 v10, {t0}, v10')
    a(f'v_add_u32 v13, {t0}, v{T+8}')
    a(f'v_add_u32 v{T+8}, {QS}, v{T+8}')
    a(f'v_mul_u32_u24 v11, 192, v{T+12}')
    a(f'v_lshl_add_u32 v11, v{KAP}, 4, v11')
    a(f'v_add_u32 v11, {WM}, v11')
    a(f'v_and_b32 v{T+12}, 1, v1')
    a(f'v_cmp_eq_u32 vcc, v{T+12}, v{T+13}')
    a(f'v_mov_b32 v{T+12}, 0x3f803f80')
    for i in range(52):
        a(f'v_mov_b32 v{U+i}, 0')
        if i == 4:
            for k in range(4): a(f'v_cndmask_b32 v{OP+k}, 0, v{T+12}, vcc')
    if cfg.fake:
        a(f's_add_u32 s58, s58, {cfg.fake}')
        a('C_fk:')
        a('s_memrealtime s[50:51]')
        a('s_waitcnt lgkmcnt(0)')
        a('s_sub_u32 s50, s50, s58')
        a('s_cmp_lt_i32 s50, 0')
        a('s_cbranch_scc1 C_fk')
        stamp(a, cfg, 2)
        a(f's_mul_i32 s50, {sH}, 3072')
        a(f's_add_u32 s50, s50, {8<<20}')
        a(f's_add_u32 s50, s26, s50\ns_addc_u32 s51, s27, 0')
        a(f's_add_u32 m0, s48, {WQ}')
        a('s_nop 0')
        for k in range(3): a(f'global_load_lds_dwordx4 v{LIN}, s[50:51] offset:{1024*k}' + (' sc1' if cfg.fsc else ''))
        a('s_waitcnt vmcnt(0)')
        stamp(a, cfg, 15)
        lds_sync(a, 3, 'C_sy3', 14, 15)
        a('s_cmp_eq_u32 s2, 999')
        a('s_cbranch_scc1 Z_sy3')
    else:
        if cfg.spf & 4:
            for i in range(min(cfg.spn, 48 - o2)): a(f's_load_dword s96, s[98:99], {128*(o2+i)}')
        if cfg.bist: stamp(a, cfg, 7)
        if cfg.wkpos == 3: arrive(a, 5, 14, 15)
        a(f's_cmp_ge_u32 {sH}, 2')
        a('s_cbranch_scc1 C_nox')
        dma_extra(a, M2S, M2L, PART, 's57')
        a('C_nox:')
        dma_main(a, M2S, M2L, PART, 's57')
        if cfg.wkpos == 1: arrive(a, 5, 14, 15)
        a('s_mov_b32 exec_hi, 0xffff')
        for s in range(3):
            for tt in range(2):
                a(f'global_load_dwordx4 {vr(WK+(2*s+tt)*4,4)}, v{T+9}, {SWK} offset:{1536*s+192*tt}')
        a('s_mov_b32 exec_hi, -1')
        if cfg.wkpos == 0: arrive(a, 5, 14, 15)
        if cfg.bist: stamp(a, cfg, 6)
        a('s_waitcnt vmcnt(6)')
        if cfg.bist: stamp(a, cfg, 5)
        lds_sync(a, 1, 'C_sy1', 14, 15)
        if cfg.cpp: a(f's_setprio {cfg.cpp}')
        stamp(a, cfg, 2)
        def me_rd(sp, st): return [f'ds_read_b64_tr_b16 {vr(TA+(sp*6+st)*4+2*sec,2)}, v11 offset:{sp*6144+sec*768+(st>>1)*64+(st&1)*8}' for sec in range(2)]
        def q_rd(s, tt): return [f'ds_read_b64_tr_b16 {vr(QF+(tt*3+s)*4+2*sec,2)}, v10 offset:{s*1536+sec*192+tt*8}' for sec in range(2)]
        def q_mm(s, tt): return f'{MF16} {vr(QT+4*tt,4)}, {vr(QF+(tt*3+s)*4,4)}, {vr(QB+4*s,4)}, {"0" if s == 0 else vr(QT+4*tt,4)}'
        def me_mm(sp, st): return f'{MF16} {vr(ME+4*st,4)}, {vr(TA+(sp*6+st)*4,4)}, {vr(QB+4*sp,4)}, {"0" if sp == 0 else vr(ME+4*st,4)}'
        seq = [(sp, st) for sp in range(3) for st in range(6)]
        qseq = [(s, tt) for s in range(3) for tt in range(2)]
        qb = [f'ds_read_b128 {vr(QB+4*s,4)}, v{T+8} offset:{64*s}' for s in range(3)]
        L = [qb[0], q_rd(0,0), q_rd(0,1), qb[1], q_rd(1,0), q_rd(1,1), qb[2], q_rd(2,0), q_rd(2,1)]
        for i, (s_, tt) in enumerate(qseq):
            L.append(q_mm(s_, tt)); L.append(me_rd(*seq[i]))
        post = [f'v_add_f32 v{QT+i}, v{QT+i}, v{QT+i}' for i in range(8)] + [f'v_cvt_pk_bf16_f32 v{QP+i}, v{QT+2*i}, v{QT+2*i+1}' for i in range(4)]
        for i, (sp, st) in enumerate(seq):
            L.append(me_mm(sp, st))
            if i + 6 < 18: L.append(me_rd(*seq[i+6]))
            if i >= 3: L.append(post[:1]); del post[:1]
        L.append(post)
        for l in autowait(flat(L), age=99): a(l)
        if cfg.bist: stamp(a, cfg, 4)
        a('s_waitcnt vmcnt(0)')
        if cfg.bist: stamp(a, cfg, 8)
        stamp(a, cfg, 15)
        for st in range(6):
            a(f'{MF16} {vr(ME+4*st,4)}, {vr(WK+4*st,4)}, {vr(QP,4)}, {vr(ME+4*st,4)}')
        sc = 96 ** -0.5 * math.log2(math.e)
        a(f's_mov_b32 {t0}, {f32(sc)}')
        for s in range(3):
            for i in range(8): a(f'v_mul_f32 v{ME+8*s+i}, {t0}, v{ME+8*s+i}')
            for i in range(4): a(f'v_cvt_pk_bf16_f32 v{ME+8*s+i}, v{ME+8*s+2*i}, v{ME+8*s+2*i+1}')
            a(f'ds_write_b128 v13, {vr(ME+8*s,4)} offset:{64*s}')
            a(f'{MF16} {vr(QT,4)}, {vr(ME+8*s,4)}, {vr(ME+8*s,4)}, {"0" if s == 0 else vr(QT,4)}')
        a(f's_mov_b32 {t0}, {f32(THR)}')
        a(f'v_mov_b32 v14, {CNT + 4*3}')
        a(f'v_max3_f32 v{QT}, v{QT}, v{QT+1}, v{QT+2}')
        a(f'v_max_f32 v{QT}, v{QT}, v{QT+3}')
        a(f'v_cmp_nge_f32 vcc, {t0}, v{QT}')
        a('s_cmp_eq_u64 vcc, 0')
        a('s_cselect_b32 s51, 1, 0x101')
        a('v_mov_b32 v15, s51')
        a('s_waitcnt lgkmcnt(0)')
        a('s_mov_b64 exec, 1')
        a('ds_add_rtn_u32 v15, v14, v15')
        a('s_mov_b64 exec, -1')
        a('s_waitcnt lgkmcnt(0)')
        a('v_readfirstlane_b32 s50, v15')
        a('s_add_u32 s50, s50, s51')
        a('s_cmp_eq_u32 s50, 4')
        a('s_cbranch_scc1 C_sy3_ok')
        await_cnt(a, 3, 'C_sy3', 14, 15, 4, setaddr=False)
        a('s_cmp_eq_u32 s50, 4')
        a('s_cbranch_scc0 Z_sy3')
    if not cfg.fake: a('C_sy3_ok:')
    stamp(a, cfg, 3)
    cons_main(a, cfg, False)
    a('C_mknonce:')
    a('s_or_b32 s50, s58, 1')
    a('v_mov_b32 v20, s50\nv_mov_b32 v21, 0\nv_mov_b32 v22, 0')
    a('s_mov_b64 exec, 1')
    a(f'global_atomic_cmpswap v22, v[20:21], {SDBG} sc1')
    a('s_mov_b64 exec, -1')
    a('s_branch C_mknonce_d')
    nonce_slow(a, 'C_getnonce', 'C_getnonce_d', T2)

def slow_rescale(NEW):
    MX = 160; U, LA = B.C.U, B.C.LA
    L = [f'v_max_f32 v{NEW}, v{NEW}, v{MX}',
         f'v_sub_f32 v{MX+4}, v{MX}, v{NEW}',
         f'v_exp_f32 v{MX+4}, v{MX+4}',
         f'v_mov_b32 v{MX}, v{NEW}', 's_nop 1',
         f'v_mov_b32 v{MX+5}, v{MX+4}', f'v_mov_b32 v{MX+6}, v{MX+4}', 's_nop 1',
         f'v_permlane16_swap_b32 v{MX+5}, v{MX+6}', 's_nop 1']
    L += [f'v_mul_f32 v{U+i}, v{U+i}, v{MX+4}' for i in range(48)]
    L += [f'v_mul_f32 v{LA+i}, v{LA+i}, v{MX+5+(i&1)}' for i in range(4)]
    return L

def slow_tile(off):
    MX = 160; S = B.C.S[0]
    tb = B.C.TB
    B.C.TB = off
    sv = (B.C.KA, B.C.KT, B.C.S, B.C.P)
    B.C.KA = [sv[0][0]] * 2; B.C.KT = [sv[1][0]] * 2; B.C.S = [S] * 2; B.C.P = [S] * 2
    L = [B.ka(1, s) for s in range(6)] + ['s_waitcnt lgkmcnt(0)']
    L += [B.kt(1, ks, t) for ks in range(2) for t in range(3)]
    L += [B.sm(1, s) for s in range(6)] + ['s_nop 15', 's_nop 15']
    L += [f'v_max3_f32 v{MX+1}, v{S}, v{S+1}, v{S+2}']
    L += [f'v_max3_f32 v{MX+1}, v{MX+1}, v{S+3+2*i}, v{S+4+2*i}' for i in range(6)]
    L += [f'v_max_f32 v{MX+1}, v{MX+1}, v{S+15}', f'v_mov_b32 v{MX+2}, v{MX+1}', 's_nop 1',
          f'v_permlane32_swap_b32 v{MX+1}, v{MX+2}', 's_nop 1', f'v_max_f32 v{MX+1}, v{MX+1}, v{MX+2}']
    L += slow_rescale(MX+1)
    L += [f'v_sub_f32 v{S+i}, v{S+i}, v{MX}' for i in range(16)]
    L += [B.ex(1, i) for i in range(16)] + ['s_nop 1'] + [B.cv(1, i) for i in range(8)]
    L += ['s_waitcnt lgkmcnt(0)', 's_nop 1']
    L += [B.pv(1, ks, t) for ks in range(2) for t in range(4)] + ['s_nop 15', 's_nop 15']
    B.C.TB = tb
    B.C.KA, B.C.KT, B.C.S, B.C.P = sv
    return flat(L)

def cons_main(a, cfg, slow):
    sH = 's40'
    t0, t1 = 's41', 's42'
    RET = 's[60:61]'
    sR = 's43'
    LIN, REC, WVA, XA = 2, 3, 8, 9
    CA0, CA1, CT0, CT1 = B.C.CA0, B.C.CA1, B.C.CT0, B.C.CT1
    AP, U, LA, OP = B.C.AP, B.C.U, B.C.LA, B.C.OP
    WV = B.C.WV
    T2 = 248
    Z = 'Z' if slow else 'C'
    OOL = []
    MX = 160
    if slow:
        xv = cfg.xv; cfg = Cfg(); cfg.stamps = False; cfg.xv = xv
        a('Z_sy3:')
        a('ds_read_b32 v15, v14')
        a('s_waitcnt lgkmcnt(0)')
        a('v_readfirstlane_b32 s50, v15')
        a('s_and_b32 s50, s50, 0xff')
        a('s_cmp_lt_u32 s50, 4')
        a('s_cbranch_scc1 Z_sy3')
        a(f'v_mov_b32 v{MX}, {f32(-3e38)}')
    WA0, FLA, XO, XP, FO, FP, ONE, MRA, THRV = 12, 13, 9, 11, 8, 0, 251, 254, 255
    XLW, XLR = 224, 225
    for s in range(6): a(f'ds_read_b128 {vr(AP+4*s,4)}, v{XA} offset:{32*s}')
    a(f's_lshl_b32 {t0}, s56, 3\ns_add_u32 {t0}, {t0}, {PF}')
    a(f'v_mov_b32 v10, {t0}')
    a(f's_mov_b32 {sR}, 1')
    a('s_waitcnt lgkmcnt(0)')
    arrive(a, 4, 14, 15)
    a(f'v_add_u32 v{WA0}, s46, v{WVA}')
    a(f's_mul_i32 {t0}, {sH}, {XST}')
    a(f's_xor_b32 {t1}, {sH}, 2')
    a(f's_mul_i32 {t1}, {t1}, {XST}')
    a(f's_add_u32 {t0}, {t0}, {XCH}')
    a(f's_add_u32 {t1}, {t1}, {XCH+3072}')
    a(f'v_add_u32 v{XO}, {t0}, v{LIN}')
    a(f'v_lshlrev_b32 v{XLR}, 2, v1')
    a(f'v_add_u32 v{XLW}, {t1}, v{XLR}')
    a(f'v_add_u32 v{XLR}, {t0}, v{XLR}')
    a(f's_mov_b32 s52, 0xffff0000\ns_mov_b32 s53, 0xffff0000')
    if cfg.xv == 0:
        a(f'v_add_u32 v{XP}, {t1}, v{LIN}')
    else:
        a(f'v_mov_b32 v{XP}, {t0}')
        a(f'v_mov_b32 v14, {t1}')
        a(f'v_and_b32 v15, 15, v1')
        a(f'v_cndmask_b32 v{XP}, v{XP}, v14, s[52:53]')
        a(f'v_lshl_add_u32 v{XP}, v15, 4, v{XP}')
        a(f'v_lshrrev_b32 v15, 5, v1')
        a(f'v_lshl_add_u32 v{XP}, v15, 9, v{XP}')
    a(f'v_and_b32 v{FLA}, 3, v1')
    a(f's_xor_b32 {t0}, s56, 1')
    a(f'v_cmp_eq_u32 vcc, {t0}, v{FLA}')
    a(f'v_lshlrev_b32 v{FLA}, 2, v{FLA}')
    a(f'v_add_u32 v{FLA}, {PF}, v{FLA}')
    a(f'v_cndmask_b32 v{THRV}, 5, 4, vcc')
    a(f's_lshl_b32 {t0}, {sH}, 2')
    a(f's_add_u32 {t0}, {t0}, {CNT+32}')
    a(f'v_mov_b32 v{FO}, {t0}')
    a(f'v_xor_b32 v{FP}, 8, v{FO}')
    a(f'v_mov_b32 v{ONE}, 1')
    a('s_mov_b32 s44, 0\ns_mov_b32 s45, -1')
    if slow:
        a(f's_lshl_b32 {t0}, s55, 8\ns_add_u32 {t0}, {t0}, s2\ns_lshl_b32 {t0}, {t0}, 3\ns_add_u32 {t0}, {t0}, {MREC}')
        a(f'v_and_b32 v{MRA}, 15, v1')
        a(f'v_lshlrev_b32 v{MRA}, 13, v{MRA}')
        a(f'v_add_u32 v{MRA}, {t0}, v{MRA}')
    wvr = [f'ds_read_b64_tr_b16 {vr(WV+(tt*3+t)*4+2*sec,2)}, v{WA0} offset:{t*1536+sec*384+tt*32}'
           for t in range(3) for tt in range(2) for sec in range(2)]
    if not slow:
        VF, THR, INC = T2+4, 226, 227
        sAdv, sStop = 's60', 's61'
        flag = f'ds_read_b32 v{VF}, v{FLA}'
        def waitloop(tag, go, prio=None):
            a(f'{tag}:')
            if cfg.wsl: a(f's_sleep {cfg.wsl}')
            a(flag)
            a('s_waitcnt lgkmcnt(0)')
            a(f'v_cmp_lt_u32 vcc, v{VF}, v{THR}')
            a(f's_cbranch_vccnz {tag}')
            for s_ in range(6): a(B.ka(0, s_))
            a(f's_branch {go}')
        def check(wait, go):
            a('s_waitcnt lgkmcnt(6)')
            a(f'v_cmp_lt_u32 vcc, v{VF}, v{THR}')
            a(f's_cbranch_vccnz {wait}')
            a(f'{go}:')
        class Lst:
            def __init__(s_): s_.l = []
            def __call__(s_, t): s_.l += [x.strip() for x in t.split('\n') if x.strip()]
        hook = Lst(); arrive(hook, 17, 14, 15); mk_tag(hook, T2+1)
        a(f'v_bfe_u32 v{INC}, v1, 1, 1')
        a(f'v_cmp_eq_u32 vcc, s56, v{INC}')
        a(f's_add_u32 {sStop}, s56, 3')
        a(f's_mov_b32 {sR}, 0')
        a(f'v_cndmask_b32 v{INC}, 0, 1, vcc')
        a(f'v_mov_b32 v{THR}, v{INC}')
        if cfg.cpp: a(f's_setprio {cfg.cmain}')
        a('s_branch C_wait')
        a('C_loop:')
        check('C_wait', 'C_go')
        if cfg.stamps and not cfg.b2:
            pass
        if cfg.b2 and not cfg.etr:
            for j in (11, 12, 13): a(f's_mov_b64 s[{STAMP0+2*j}:{STAMP0+2*j+1}], s[{STAMP0+2*j+2}:{STAMP0+2*j+3}]')
            a(f"{TM(cfg)} s[{STAMP0+28}:{STAMP0+29}]")
        top = [f's_add_u32 {sR}, {sR}, 1', f'v_add_u32 v{THR}, v{THR}, v{INC}', f's_cmp_eq_u32 {sR}, 4', f's_cselect_b32 {sAdv}, -1, 4', f's_mul_i32 {sAdv}, {sAdv}, 6144']
        advl = [f'v_add_u32 v{r}, {sAdv}, v{r}' for r in (CA0, CA1, CT0, CT1)]
        for l in B.cons2p(advl, flag, top): a(l)
        if cfg.stamps:
            for j in (5, 6): a(f's_mov_b64 s[{STAMP0+2*j}:{STAMP0+2*j+1}], s[{STAMP0+2*j+2}:{STAMP0+2*j+3}]')
            stamp(a, cfg, 7)
        a(f's_cmp_eq_u32 {sR}, {sStop}')
        a('s_cbranch_scc1 C_done')
        a(f's_load_dword s47, {SDBG}, 0')
        a('s_branch C_loop')
        waitloop('C_wait', 'C_go')
        a('C_done:')
        a('s_cmp_eq_u32 s47, 0')
        a('s_cbranch_scc1 C_getnonce')
        a('C_getnonce_d:')
        def specloop(tag, go):
            a(f'{tag}:')
            a(flag)
            for s_ in range(6): a(B.ka(0, s_))
            a('s_waitcnt lgkmcnt(6)')
            a(f'v_cmp_lt_u32 vcc, v{VF}, v{THR}')
            a(f's_cbranch_vccz {go}')
            a(f's_branch {tag}')
        if cfg.uni:
            a(f'v_mov_b32 v{THR}, v{THRV}')
            stamp(a, cfg, 4)
            check('C_w13', 'C_g13')
            stamp(a, cfg, 8)
            a('s_setprio 3')
            for l in B.cons2x(wvr, 24576, True, hook.l): a(l)
            OOL.append(lambda: (specloop if cfg.spec else waitloop)('C_w13', 'C_g13'))
        else:
            a('s_cmp_eq_u32 s56, 0')
            a('s_cbranch_scc1 C_r3s')
            a(f'v_mov_b32 v{THR}, v{THRV}')
            stamp(a, cfg, 4)
            check('C_w13', 'C_g13')
            stamp(a, cfg, 8)
            a('s_setprio 3')
            for l in B.cons2x(wvr, 24576, True, hook.l): a(l)
            a('s_branch C_epi')
            (specloop if cfg.spec else waitloop)('C_w13', 'C_g13')
            waitloop('C_w12', 'C_g12')
            (specloop if cfg.spec else waitloop)('C_w16', 'C_g16')
            a('C_r3s:')
            check('C_w12', 'C_g12')
            adv = [f'v_add_u32 v{r}, 24576, v{r}' for r in (CA0, CA1, CT0, CT1)]
            for l in B.cons1p(adv, flag, hook.l + [f'v_mov_b32 v{THR}, v{THRV}']): a(l)
            stamp(a, cfg, 4)
            check('C_w16', 'C_g16')
            stamp(a, cfg, 8)
            a('s_setprio 3')
            for l in B.cons1x(wvr, True): a(l)
    if slow:
        if cfg.cpp: a(f's_setprio {cfg.cmain}')
        a(f's_call_b64 {RET}, {Z}_blk')
        stamp(a, cfg, 5)
        a(f's_load_dword s47, {SDBG}, 0')
        if cfg.c2 is not None: a(f's_setprio {cfg.c2}')
        a(f's_call_b64 {RET}, {Z}_blk')
        stamp(a, cfg, 6)
        arrive(a, 17, 14, 15)
        a('s_cmp_eq_u32 s47, 0')
        a(f's_cbranch_scc1 {Z}_getnonce')
        a(f'{Z}_getnonce_d:')
        mk_tag(a, T2+1)
        if cfg.c3 is not None: a(f's_setprio {cfg.c3}')
        a(f's_call_b64 {RET}, {Z}_blk')
        stamp(a, cfg, 7)
        if cfg.c4 is not None: a(f's_setprio {cfg.c4}')
        def lastwait(tag):
            a(f'{tag}:')
            a(f'ds_read_b32 v{T2+4}, v{FLA}')
            a('s_waitcnt lgkmcnt(0)')
            a(f'v_cmp_lt_u32 vcc, v{T2+4}, v{THRV}')
            a(f's_cbranch_vccnz {tag}')
            stamp(a, cfg, 8)
            a('s_setprio 3')
        a('s_cmp_eq_u32 s56, 0')
        a(f's_cbranch_scc1 {Z}_r3s')
        a(f's_call_b64 {RET}, {Z}_blk')
        a(f's_mov_b32 s51, {(13 - 18) * 6144}')
        for r in (CA0, CA1, CT0, CT1): a(f'v_add_u32 v{r}, s51, v{r}')
        stamp(a, cfg, 4)
        lastwait(f'{Z}_r4w1')
        if slow:
            for l in slow_tile(0) + slow_tile(24576) + autowait(wvr, final=0): a(l)
        else:
            for l in B.cons2x(wvr, 24576): a(l)
        a(f's_branch {Z}_epi')
        a(f'{Z}_r3s:')
        a(f'v_mov_b32 v10, {PF}')
        a(f'{Z}_r3w:')
        a(f'ds_read_b32 v{T2+4}, v10')
        a('s_waitcnt lgkmcnt(0)')
        a(f'v_readfirstlane_b32 s50, v{T2+4}')
        a('s_cmp_lt_u32 s50, 4')
        a(f's_cbranch_scc1 {Z}_r3w')
        adv = [f'v_add_u32 v{r}, 24576, v{r}' for r in (CA0, CA1, CT0, CT1)]
        for l in (slow_tile(0) + adv if slow else B.cons1(extra_mid=adv)): a(l)
        stamp(a, cfg, 4)
        lastwait(f'{Z}_r4w0')
        if slow:
            for l in slow_tile(0) + autowait(wvr, final=0): a(l)
        else:
            for l in B.cons1x(wvr): a(l)
    a(f'{Z}_epi:')
    stamp(a, cfg, 9)
    if slow:
        a(f's_lshl_b32 {t0}, {sH}, 7')
        a(f's_add_u32 {t0}, {t0}, {TOT}')
        a(f'v_and_b32 v{MX+1}, 31, v1')
        a(f'v_lshlrev_b32 v{MX+1}, 2, v{MX+1}')
        a(f'v_add_u32 v{MX+1}, {t0}, v{MX+1}')
        a(f'ds_write_b32 v{MX+1}, v{MX}')
        a('s_waitcnt lgkmcnt(0)')
        lds_sync(a, 18, 'Z_sy18', MX+2, MX+3)
        a(f'v_xor_b32 v{MX+1}, {256+64}, v{MX+1}')
        a(f'ds_read_b32 v{MX+2}, v{MX+1}')
        a('s_waitcnt lgkmcnt(0)')
        for l in slow_rescale(MX+2): a(l)
        a(f'v_mov_b32 v{MX+1}, s47')
        a('s_mov_b32 exec_lo, 0\ns_mov_b32 exec_hi, 0xffff')
        a(f'buffer_store_dwordx2 {vr(MX,2)}, v{MRA}, {RWS}, 0 offen sc1')
        a('s_mov_b64 exec, -1')
    UP, CX, RX, RS = 96, 120, 128, 144
    def cvtU(t): return [f'v_cvt_pk_bf16_f32 v{UP+8*t+i}, v{U+16*t+2*i}, v{U+16*t+2*i+1}' for i in range(8)]
    def pj(src, tt, t, first=False):
        return f'{MF16} {vr(CX+4*tt,4)}, {vr(WV+(tt*3+t)*4,4)}, {vr(src,4)}, {"0" if first else vr(CX+4*tt,4)}'
    def snd(t, hi): return f'ds_write_b128 v{XP}, {vr(UP+8*t+4*hi,4)} offset:{1024*t+256*hi}'
    def own(t): return f'ds_read_b128 {vr(RS+4*t,4)}, v{XO} offset:{1024*t}'
    EN = T2
    enc = [f'v_cndmask_b32 v{EN}, v{LA}, v{LA+1}, s[44:45]', f'v_and_b32 v{EN+2}, s46, v{EN}', f'v_sub_f32 v{EN}, v{EN}, v{EN+2}',
           f'v_cndmask_b32 v{EN}, v{EN+2}, v{EN}, s[52:53]', f'v_bfi_b32 v{EN}, s46, v{EN}, v{T2+1}']
    c0, c1, c2 = cvtU(0), cvtU(1), cvtU(2)
    E = [enc, f'ds_write_b32 v{XLW}, v{EN} offset:3072',
         c0[:4], snd(0,0), c0[4:], snd(0,1), c1[:4], snd(1,0), own(0), c1[4:], snd(1,1), c2[:4], snd(2,0), own(1), c2[4:], snd(2,1),
         f'ds_write_b32 v{FP}, v{ONE}', own(2)]
    if cfg.xv == 0:
        def swp(t): return [f'v_permlane16_swap_b32 v{UP+8*t+i}, v{UP+8*t+4+i}' for i in range(4)]
        def snd(t, hi=0): return f'ds_write_b128 v{XP}, {vr(UP+8*t+4,4)} offset:{1024*t}'
        E = [enc, f'ds_write_b32 v{XLW}, v{EN} offset:3072',
             c0, c1[:2], swp(0), c1[2:4], snd(0), c1[4:8], c2[:2], swp(1), c2[2:4], snd(1), c2[4:8], 's_nop 0', swp(2), 's_nop 0', snd(2),
             f'ds_write_b32 v{FP}, v{ONE}']
    for l in flat(E):
        if cfg.etr and not slow and l == snd(0,0): a(f"{TM(cfg)} s[{STAMP0+22}:{STAMP0+23}]")
        if cfg.etr and not slow and l.startswith(f'ds_write_b32 v{FP}'): a(f"{TM(cfg)} s[{STAMP0+24}:{STAMP0+25}]")
        a(l)
    def poll():
        a(f'ds_read_b32 v15, v{FO}')
        for t in range(3): a(f'ds_read_b128 {vr(RX+4*t,4)}, v{XO} offset:{3072+1024*t}')
        a(f'ds_read_b32 v{RX+12}, v{XLR} offset:6144')
    if cfg.xv == 0:
        mm = [pj(UP,0,0,True), pj(UP,1,0,True), pj(UP+8,0,1), pj(UP+8,1,1), pj(UP+16,0,2), pj(UP+16,1,2)]
        for l in mm[:cfg.xd]: a(l)
        poll()
        for l in mm[cfg.xd:]: a(l)
    else:
        poll()
        a('s_waitcnt lgkmcnt(7)')
        a(pj(RS,0,0,True)); a(pj(RS,1,0,True)); a(pj(RS+4,0,1)); a(pj(RS+4,1,1))
        a('s_waitcnt lgkmcnt(5)')
        a(pj(RS+8,0,2)); a(pj(RS+8,1,2))
    if cfg.etr and not slow: a(f"{TM(cfg)} s[{STAMP0+26}:{STAMP0+27}]")
    a(f'{Z}_xw:')
    a('s_waitcnt lgkmcnt(4)')
    a('v_cmp_eq_u32 vcc, 0, v15')
    a(f's_cbranch_vccnz {Z}_xr')
    if cfg.etr and not slow: a(f"{TM(cfg)} s[{STAMP0+28}:{STAMP0+29}]")
    for t in range(3):
        a(f's_waitcnt lgkmcnt({3-t})')
        a(pj(RX+4*t,0,t)); a(pj(RX+4*t,1,t))
    a('s_waitcnt lgkmcnt(0)')
    a(f'v_cndmask_b32 v{EN}, v{EN}, v{RX+12}, s[44:45]')
    a(f'v_cvt_pk_bf16_f32 v{CX}, v{CX}, v{CX+1}')
    a(f'v_cvt_pk_bf16_f32 v{CX+1}, v{CX+2}, v{CX+3}')
    a(f'v_mov_b32 v{CX+3}, v{EN}')
    a(f'v_cvt_pk_bf16_f32 v{CX+2}, v{CX+4}, v{CX+5}')
    a(f'v_cvt_pk_bf16_f32 v{CX+4}, v{CX+6}, v{CX+7}')
    a(f'v_permlane32_swap_b32 v{CX+2}, v{CX+4}')
    a(f'buffer_store_dwordx4 {vr(CX,4)}, v{REC}, {RWS}, 0 offen sc1')
    stamp(a, cfg, 10)
    a('s_cmp_ge_u32 s2, 16')
    a('s_cbranch_scc1 L_exit')
    if slow:
        a(f'v_mov_b32 v14, {CNT + 4*7}')
        a(f'v_mov_b32 v15, 0x101')
        a('s_mov_b64 exec, 1')
        a('ds_add_u32 v14, v15')
        a('s_mov_b64 exec, -1')
        a('s_setprio 0')
        a('s_branch Z_comb')
        a('Z_xr:'); poll(); a('s_branch Z_xw')
        nonce_slow(a, 'Z_getnonce', 'Z_getnonce_d', T2)
        a('Z_wait:')
        a('s_sleep 1')
        a('Z_blk:')
        a(f'ds_read_b64 {vr(T2+4,2)}, v10')
        a('s_waitcnt lgkmcnt(0)')
        a(f'v_min_u32 v{T2+4}, v{T2+4}, v{T2+5}')
        a(f'v_readfirstlane_b32 s50, v{T2+4}')
        a(f's_cmp_lt_u32 s50, {sR}')
        a('s_cbranch_scc1 Z_wait')
        for l in slow_tile(0) + slow_tile(6144) + B.adv(): a(l)
        a(f's_add_u32 {sR}, {sR}, 1')
        a(f's_setpc_b64 {RET}')
        return
    arrive(a, 7, 14, 15)
    a('s_setprio 0')
    a('s_branch L_comb')
    a('C_xr:'); poll(); a('s_branch C_xw')
    for f in OOL: f()

def mk_tag(a, v):
    a('s_and_b32 s50, s47, 0xbfff')
    a('s_lshr_b32 s51, s47, 16')
    a('s_and_b32 s51, s51, 0xbfff')
    a('s_mov_b32 s46, 0xffff0000')
    a(f'v_mov_b32 v{v}, s50')
    a(f'v_mov_b32 v{v+1}, s51')
    a(f'v_cndmask_b32 v{v}, v{v}, v{v+1}, s[52:53]')

def comb_tag(a, v):
    a('s_and_b32 s50, s47, 0xbfff')
    a('s_lshr_b32 s51, s47, 16')
    a('s_and_b32 s51, s51, 0xbfff')
    a('s_mov_b32 s48, 0xaaaaaaaa\ns_mov_b32 s49, 0xaaaaaaaa')
    a(f'v_mov_b32 v{v}, s50')
    a(f'v_mov_b32 v{v+1}, s51')
    a(f'v_cndmask_b32 v{v}, v{v}, v{v+1}, s[48:49]')

def comb_q(a):
    a('v_and_b32 v6, 15, v1')
    a('s_lshl_b32 s43, s3, 4')
    a('v_add_u32 v6, s43, v6')
    a('v_min_u32 v6, 95, v6')
    a('s_mul_i32 s44, s2, 96')
    a('v_add_u32 v6, s44, v6')
    a('v_lshlrev_b32 v6, 1, v6')
    a(f'global_load_ushort v7, v6, {SQ}')

def comb_setup(a, withq=True):
    if withq: comb_q(a)
    a('v_lshl_add_u32 v29, v16, 3, v28')
    a('v_mul_u32_u24 v29, 192, v29')
    a('v_lshl_add_u32 v29, v19, 3, v29')
    a('s_lshl_b32 s45, s3, 5')
    a(f'v_add_u32 v14, s45, v29')
    a('v_and_b32 v28, 15, v1')
    a('v_mul_u32_u24 v15, 384, v16')
    a('v_lshl_add_u32 v15, v28, 4, v15')
    a('s_mul_i32 s45, s3, 1536')
    a(f's_add_u32 s45, s45, {FIN}')
    a(f'v_add_u32 v15, s45, v15')
    a('v_and_b32 v29, 7, v1')
    a('v_lshlrev_b32 v8, 2, v29')
    a('s_mov_b32 s45, 0x75316240')
    a('v_bfe_u32 v8, s45, v8, 4')
    a('v_add_u32 v8, 48, v8')
    a('v_cmp_lt_u32 vcc, 7, v28')
    a('v_lshlrev_b32 v17, 6, v16')
    a('v_cndmask_b32 v8, v29, v8, vcc')
    a('v_lshl_add_u32 v8, v8, 3, v17')
    a(f'v_add_u32 v8, {FIN}, v8')
    a('s_lshl_b32 s45, s3, 8')
    a(f's_add_u32 s45, s45, {CTX}')
    a('v_lshlrev_b32 v9, 2, v28')
    a('v_mad_u32_u24 v9, v16, 48, v9')
    a('v_mov_b32 v29, 192')
    a('v_cmp_lt_u32 vcc, 11, v28')
    a('v_lshlrev_b32 v10, 4, v16')
    a('v_add_u32 v10, s45, v10')
    a('v_cndmask_b32 v9, v9, v29, vcc')
    a('v_add_u32 v9, s45, v9')

def gen_slow_combine(a):
    D, ACC, T = 32, 20, 28
    MA, MW = 64, 96
    a('Z_comb:')
    a('v_lshlrev_b32 v2, 4, v1')
    a('s_lshl_b32 s40, s2, 16')
    a('s_lshl_b32 s41, s3, 13')
    a('s_add_u32 s40, s40, s41')
    a('s_add_u32 s41, s40, 4096')
    a('v_lshrrev_b32 v16, 4, v1')
    a('v_bfe_u32 v28, v1, 2, 2')
    a('v_and_b32 v19, 3, v1')
    a('v_lshlrev_b32 v3, 11, v28')
    a('v_lshl_add_u32 v4, v16, 3, v3')
    a('v_lshl_add_u32 v3, v16, 9, v3')
    a('v_lshl_add_u32 v3, v19, 7, v3')
    a(f's_lshl_b32 s42, s2, 13\ns_add_u32 s42, s42, {MREC}')
    a(f's_lshl_b32 s52, s3, 8\ns_add_u32 s52, s52, s42')
    comb_setup(a)
    comb_tag(a, 12)
    for i in range(8): a(f'v_mov_b32 v{ACC+i}, 0')
    a('s_branch Z_poll')
    a('Z_again:')
    a('s_sleep 4')
    a('Z_poll:')
    for i in range(8): a(f'buffer_load_dwordx4 {vr(D+4*i,4)}, v2, {RWS}, {"s40" if i<4 else "s41"} offen offset:{1024*(i%4)} sc1')
    for i in range(8): a(f'buffer_load_dwordx4 {vr(MA+4*i,4)}, v3, {RWS}, s42 offen offset:{16*i} sc1')
    for i in range(8): a(f'buffer_load_dwordx2 {vr(MW+2*i,2)}, v4, {RWS}, s52 offen offset:{32*i} sc1')
    a('s_waitcnt vmcnt(0)')
    a(f'v_mov_b32 v{T}, 0')
    for i in range(8):
        a(f'v_xor_b32 v{T+1}, v12, v{D+4*i+3}')
        a(f'v_and_b32 v{T+1}, 0xffff, v{T+1}')
        a(f'v_or_b32 v{T}, v{T}, v{T+1}')
    for t in [MA+2*i+1 for i in range(16)] + [MW+2*i+1 for i in range(8)]:
        a(f'v_xor_b32 v{T+1}, s47, v{t}')
        a(f'v_or_b32 v{T}, v{T}, v{T+1}')
    a(f'v_cmp_ne_u32 vcc, 0, v{T}')
    a('s_nop 4')
    a('s_cbranch_vccnz Z_again')
    M = MA
    for i in range(1, 16): a(f'v_max_f32 v{M}, v{M}, v{MA+2*i}')
    a('s_nop 1')
    a(f'v_mov_b32_dpp v{M+1}, v{M} quad_perm:[1,0,3,2] row_mask:0xf bank_mask:0xf')
    a(f'v_max_f32 v{M}, v{M}, v{M+1}')
    a('s_nop 1')
    a(f'v_mov_b32_dpp v{M+1}, v{M} quad_perm:[2,3,0,1] row_mask:0xf bank_mask:0xf')
    a(f'v_max_f32 v{M}, v{M}, v{M+1}')
    def allrows(r, op):
        for sw in ('v_permlane16_swap_b32', 'v_permlane32_swap_b32'):
            a(f'v_mov_b32 v{T}, v{r}')
            a('s_nop 1')
            a(f'{sw} v{r}, v{T}')
            a('s_nop 1')
            a(f'{op} v{r}, v{r}, v{T}')
    allrows(M, 'v_max_f32')
    a('s_mov_b32 s46, 0xffff0000')
    for i in range(8):
        a(f'v_sub_f32 v{MW+2*i}, v{MW+2*i}, v{M}')
        a(f'v_exp_f32 v{MW+2*i}, v{MW+2*i}')
        a('s_nop 1')
        for j in range(4):
            a(f'v_lshlrev_b32 v{T}, 16, v{D+4*i+j}')
            a(f'v_and_b32 v{T+1}, s46, v{D+4*i+j}')
            if j < 3: a(f'v_fmac_f32 v{ACC+2*j}, v{T}, v{MW+2*i}')
            a(f'v_fmac_f32 v{ACC+2*j+1}, v{T+1}, v{MW+2*i}')
    for j in range(8): allrows(ACC+j, 'v_add_f32')
    a('v_cmp_eq_u32 vcc, 0, v16')
    a('s_nop 1')
    for j in range(4): a(f'v_cndmask_b32 v{ACC+j}, v{ACC+4+j}, v{ACC+j}, vcc')
    a('s_nop 1')
    a('s_branch K_red')

def gen_combine(a, cfg):
    D, ACC, T = 128, 20, 28
    NS = 9
    a('L_comb:')
    if cfg.trp: a('s_branch L_exit')
    a('v_lshlrev_b32 v2, 4, v1')
    a('s_lshl_b32 s40, s2, 16')
    a('s_lshl_b32 s41, s3, 13')
    a('s_add_u32 s40, s40, s41')
    a('s_add_u32 s41, s40, 4096')
    def load(i):
        a(f'buffer_load_dwordx4 {vr(D+4*i,4)}, v2, {RWS}, {"s40" if i<4 else "s41"} offen offset:{1024*(i%4)} sc1' + (' nt' if cfg.pollnt else ''))
    PM = lambda i: f's[{6+2*i}:{7+2*i}]'
    SEL = 24
    stamp(a, cfg, 11)
    if cfg.ktrace:
        for j in list(range(1, 8)) + [12]: a(f's_mov_b64 s[{STAMP0+2*j}:{STAMP0+2*j+1}], 0')
    if cfg.roll or cfg.dyn: comb_q(a)
    for i in range(8): load(i)
    a('v_lshrrev_b32 v16, 4, v1')
    a('v_bfe_u32 v28, v1, 2, 2')
    a('v_and_b32 v19, 3, v1')
    comb_setup(a, not (cfg.roll or cfg.dyn))
    comb_tag(a, 12)
    a('v_and_b32 v29, 1, v1')
    a('v_lshlrev_b32 v29, 4, v29')
    a('v_mov_b32 v17, 0x3f80')
    a('v_lshlrev_b32 v29, v29, v17')
    a('v_lshrrev_b32 v28, 1, v28')
    for r in range(4):
        a(f'v_cmp_eq_u32 vcc, {r}, v28')
        a(f'v_cndmask_b32 v{SEL+r}, 0, v29, vcc')
    if cfg.dyn:
        K = cfg.dyn
        J = lambda k: f's{6+k}'
        for i in range(4): a(f'v_mov_b32 v{ACC+i}, 0')
        a('s_mov_b32 s42, 0xff')
        a('s_mov_b32 s43, 7')
        def pick(k):
            a('s_lshl_b32 s44, -2, s43')
            a('s_and_b32 s44, s44, s42')
            a('s_cselect_b32 s44, s44, s42')
            a('s_ff1_i32_b32 s43, s44')
            a('s_lshl_b32 s44, s43, 10')
            a('s_add_u32 s44, s44, s40')
            a(f's_mov_b32 {J(k)}, s43')
            a(f'buffer_load_dwordx4 {vr(D+4*k,4)}, v2, {RWS}, s44 offen sc1')
        for i in range(8):
            a(f's_waitcnt vmcnt({7-i+min(i,K)})')
            if i == 0: stamp(a, cfg, 12)
            a(f'v_cmp_ne_u16 vcc, v12, v{D+4*i+3}')
            a(f's_cbranch_vccnz K_f{i}')
            a(f'{MF16} {vr(ACC,4)}, {vr(SEL,4)}, {vr(D+4*i,4)}, {vr(ACC,4)}')
            a(f's_bitset0_b32 s42, {i}')
            if i == 7:
                a('s_cmp_eq_u32 s42, 0')
                a('s_cbranch_scc1 K_red0')
            a(f'K_f{i}:')
            if i < K: pick(i)
        a('K_chk:')
        for k in range(K):
            a(f's_waitcnt vmcnt({K-1})')
            if cfg.ktrace and k == 0:
                a('s_waitcnt lgkmcnt(0)')
                for j in range(1, 7): a(f's_mov_b64 s[{STAMP0+2*j}:{STAMP0+2*j+1}], s[{STAMP0+2*j+2}:{STAMP0+2*j+3}]')
                a(f's_mov_b64 s[{STAMP0+14}:{STAMP0+15}], s[{STAMP0+24}:{STAMP0+25}]')
                stamp(a, cfg, 12)
            a(f'v_cmp_ne_u16 vcc, v12, v{D+4*k+3}')
            a(f's_cbranch_vccnz K_n{k}')
            a(f's_bitcmp0_b32 s42, {J(k)}')
            a(f's_cbranch_scc1 K_n{k}')
            a(f'{MF16} {vr(ACC,4)}, {vr(SEL,4)}, {vr(D+4*k,4)}, {vr(ACC,4)}')
            a(f's_bitset0_b32 s42, {J(k)}')
            a('s_cmp_eq_u32 s42, 0')
            a('s_cbranch_scc1 K_red0')
            a(f'K_n{k}:')
            pick(k)
        a('s_branch K_chk')
        a('K_red0:')
        a('s_nop 4')
    elif cfg.roll:
        for i in range(4): a(f'v_mov_b32 v{ACC+i}, 0')
        a('s_mov_b32 s42, 0xff')
        a('K_chk:')
        for i in range(8):
            a('s_waitcnt vmcnt(7)')
            if cfg.ktrace and i == 0:
                a('s_waitcnt lgkmcnt(0)')
                for j in range(1, 7): a(f's_mov_b64 s[{STAMP0+2*j}:{STAMP0+2*j+1}], s[{STAMP0+2*j+2}:{STAMP0+2*j+3}]')
                a(f's_mov_b64 s[{STAMP0+14}:{STAMP0+15}], s[{STAMP0+24}:{STAMP0+25}]')
            if i == 0: stamp(a, cfg, 12)
            a(f'v_cmp_ne_u16 vcc, v12, v{D+4*i+3}')
            a('s_cmp_lg_u64 vcc, 0')
            a('s_cselect_b64 exec, -1, 0')
            load(i)
            a('s_mov_b64 exec, -1')
            a(f's_cbranch_scc1 K_n{i}')
            a(f's_bitcmp0_b32 s42, {i}')
            a(f's_cbranch_scc1 K_n{i}')
            a(f'{MF16} {vr(ACC,4)}, {vr(SEL,4)}, {vr(D+4*i,4)}, {vr(ACC,4)}')
            a(f's_bitset0_b32 s42, {i}')
            a('s_cmp_eq_u32 s42, 0')
            a('s_cbranch_scc1 K_red0')
            a(f'K_n{i}:')
        a('s_branch K_chk')
        a('K_red0:')
        a('s_nop 4')
    else:
        a('K_chk:')
        a('s_waitcnt vmcnt(0)')
        if cfg.ktrace:
            a('s_waitcnt lgkmcnt(0)')
            for j in range(1, 7): a(f's_mov_b64 s[{STAMP0+2*j}:{STAMP0+2*j+1}], s[{STAMP0+2*j+2}:{STAMP0+2*j+3}]')
            a(f's_mov_b64 s[{STAMP0+14}:{STAMP0+15}], s[{STAMP0+24}:{STAMP0+25}]')
        stamp(a, cfg, 12)
        for i in range(8):
            a(f'v_cmp_ne_u16 {PM(i)}, v12, v{D+4*i+3}')
            a(f'{MF16} {vr(ACC,4)}, {vr(SEL,4)}, {vr(D+4*i,4)}, {"0" if i == 0 else vr(ACC,4)}')
            if i == 2: a(f's_or_b64 s[50:51], {PM(0)}, {PM(1)}')
            if i > 2: a(f's_or_b64 s[50:51], s[50:51], {PM(i-1)}')
        a(f's_or_b64 s[50:51], s[50:51], {PM(7)}')
        a('s_cbranch_scc1 K_retry')
    a('K_red:')
    stamp(a, cfg, 13)
    a(f'ds_write_b128 v15, {vr(ACC,4)}')
    Bq, C = 40, 56
    a('s_waitcnt lgkmcnt(0)')
    a('s_barrier')
    if cfg.fine: stamp(a, cfg, 15)
    a('s_cmp_ge_u32 s3, 6')
    a('s_cbranch_scc1 L_exit6')
    for k in range(4): a(f'ds_read2st64_b64 {vr(C+4*k,4)}, v8 offset0:{6*k} offset1:{6*k+3}')
    for s in range(3):
        for sec in range(2):
            a(f'ds_read_b64_tr_b16 {vr(Bq+4*s+2*sec,2)}, v14 offset:{s*6144+sec*768}')
    a('v_lshlrev_b32 v7, 16, v7')
    a('s_waitcnt lgkmcnt(8)')
    for i in range(4): a(f'v_add_f32 v{C+i}, v{C+i}, v{C+4+i}')
    a('s_waitcnt lgkmcnt(6)')
    for i in range(4): a(f'v_add_f32 v{C+8+i}, v{C+8+i}, v{C+12+i}')
    for i in (0, 2, 1, 3): a(f'v_add_f32 v{C+i}, v{C+i}, v{C+8+i}')
    a(f'v_add_f32 v{C}, v{C}, v{C+2}')
    a(f'v_add_f32 v{C+1}, v{C+1}, v{C+3}')
    a(f'v_add_f32_dpp v{C+2}, v{C+1}, v{C+1} quad_perm:[1,0,3,2] row_mask:0xf bank_mask:0xf')
    a(f'v_add_f32_dpp v{C+2}, v{C+2}, v{C+2} quad_perm:[2,3,0,1] row_mask:0xf bank_mask:0xf')
    a(f'v_mov_b32_dpp v{C+2}, v{C+2} row_newbcast:12 row_mask:0xf bank_mask:0xf')
    a(f'v_rcp_f32 v{C+2}, v{C+2}')
    a(f'v_mul_f32 v{C}, v{C}, v{C+2}')
    a(f'v_mul_f32 v{C+1}, v{C+1}, v{C+2}')
    a(f'v_cvt_pk_bf16_f32 v{C}, v{C}, v{C+1}')
    a(f'ds_write_b32 v9, v{C}')
    for s in range(3): a(f'ds_read_b128 {vr(C+4+4*s,4)}, v10 offset:{64*s}')
    for s in range(3):
        c = '0' if s == 0 else 'v[88:91]'
        a(f's_waitcnt lgkmcnt({2-s})')
        a(f'{MF16} v[88:91], {vr(C+4+4*s,4)}, {vr(Bq+4*s,4)}, {c}')
    a('v_cvt_pk_bf16_f32 v88, v88, v88')
    a('v_and_b32 v88, 0xffff0000, v88')
    a('v_add_f32 v88, v88, v7')
    a('v_cvt_pk_bf16_f32 v88, v88, v88')
    a('s_mov_b64 exec, 0xffff')
    a('s_waitcnt vmcnt(0)')
    a(f'global_store_short v6, v88, {SOUT}')
    a('s_mov_b64 exec, -1')
    stamp(a, cfg, 14)
    if cfg.diag:
        a('s_memrealtime s[98:99]')
        a('s_waitcnt lgkmcnt(0)')
        a('v_mov_b32 v20, s98\nv_mov_b32 v21, 36')
        a('s_mov_b64 exec, 1')
        a(f'global_atomic_umax v21, v20, {SDBG}')
        a('s_mov_b64 exec, -1')
    a('L_exit:')
    if cfg.diag:
        a('s_cmp_eq_u32 s3, 4')
        a('s_cbranch_scc0 L_end')
        a('s_memrealtime s[98:99]')
        a('s_getreg_b32 s50, hwreg(HW_REG_XCC_ID, 0, 4)')
        a('s_and_b32 s50, s50, 7')
        a('s_lshl_b32 s50, s50, 2')
        a('s_add_u32 s50, s50, 4')
        a('s_waitcnt lgkmcnt(0)')
        a('v_mov_b32 v20, s96\nv_mov_b32 v21, s50\nv_mov_b32 v22, s98\nv_mov_b32 v23, 40')
        a('s_mov_b64 exec, 1')
        a(f'global_store_dword v21, v20, {SDBG}')
        a('s_cmp_lt_u32 s2, 16')
        a('s_cbranch_scc1 L_end')
        a(f'global_atomic_umax v23, v22, {SDBG}')
        a('s_mov_b64 exec, -1')
    stamp_flush(a, cfg)
    a('L_end:')
    a('s_endpgm')
    a('L_exit6:')
    a('s_waitcnt vmcnt(0)')
    a('s_branch L_exit')
    if cfg.roll or cfg.dyn: return
    a('K_retry:')
    if cfg.ksleep: a(f's_sleep {cfg.ksleep}')
    for i in range(8):
        a(f's_cmp_lg_u64 {PM(i)}, 0')
        a('s_cselect_b64 exec, -1, 0')
        load(i)
    a('s_mov_b64 exec, -1')
    a('s_branch K_chk')

def build(cfg):
    a = Asm()
    a.raw(f'; @launch grid=(256,1,1) block=(512,1,1) lds={LDS_BYTES}')
    a.raw('.amdgcn_target "amdgcn-amd-amdhsa--gfx950"')
    a.raw('.text')
    a.raw(f'.globl {KNAME}'); a.raw('.p2align 8'); a.raw(f'.type {KNAME},@function'); a.raw(f'{KNAME}:')
    gen_entry(a, cfg)
    gen_producer(a, cfg)
    gen_consumer(a, cfg)
    gen_combine(a, cfg)
    a.raw('L_codeend:')
    cons_main(a, cfg, True)
    gen_slow_combine(a)
    txt = a.finish(verbose=True)
    txt = txt.replace('    ; @launch', '; @launch')
    txt += f'''.section .rodata,"a"
.p2align 6
.amdhsa_kernel {KNAME}
  .amdhsa_next_free_vgpr 256
  .amdhsa_next_free_sgpr {102 if cfg.stamps else 100}
  .amdhsa_accum_offset 256
  .amdhsa_group_segment_fixed_size 0
  .amdhsa_kernarg_size 96
  .amdhsa_user_sgpr_count 2
  .amdhsa_user_sgpr_kernarg_segment_ptr 1
  .amdhsa_system_sgpr_workgroup_id_x 1
.end_amdhsa_kernel
'''
    return txt

if __name__ == '__main__':
    cfg = Cfg()
    out = sys.argv[1]
    for o in sys.argv[2:]:
        if '=' in o:
            k, v = o.split('='); setattr(cfg, k, int(v))
        else: setattr(cfg, o, True)
    open(out, 'w').write(build(cfg))
```

```python
from asmlib import autowait
import struct
def f32(x): return '0x%08x' % struct.unpack('<I', struct.pack('<f', x))[0]
def vr(b, n=1): return f'v{b}' if n == 1 else f'v[{b}:{b+n-1}]'
MF32 = 'v_mfma_f32_32x32x16_bf16'
MF16 = 'v_mfma_f32_16x16x32_bf16'

class C:
    CA0, CA1, CT0, CT1 = 4, 5, 6, 7
    AP, U, LA, OP = 16, 40, 88, 92
    KA = [96, 160]; KT = [120, 96]; S = [144, 184]; P = [144, 184]
    WV = 200
    TB = 12288
    ADV = True

def ka(x, s): return f'ds_read_b128 {vr(C.KA[x]+4*s,4)}, v{C.CA1 if s&1 else C.CA0} offset:{x*C.TB+64*(s>>1)}'
def kt(x, ks, t): return [f'ds_read_b64_tr_b16 {vr(C.KT[x]+(ks*3+t)*4+2*sec,2)}, v{C.CT1 if sec else C.CT0} offset:{x*C.TB+64*t+3072*ks}' for sec in range(2)]
def sm(x, s): return f'{MF32} {vr(C.S[x],16)}, {vr(C.KA[x]+4*s,4)}, {vr(C.AP+4*s,4)}, {"0" if s == 0 else vr(C.S[x],16)}'
def pv(x, ks, t):
    if t == 3: return f'{MF16} {vr(C.LA,4)}, {vr(C.OP,4)}, {vr(C.P[x]+4*ks,4)}, {vr(C.LA,4)}'
    return f'{MF32} {vr(C.U+16*t,16)}, {vr(C.KT[x]+(ks*3+t)*4,4)}, {vr(C.P[x]+4*ks,4)}, {vr(C.U+16*t,16)}'
def ex(x, i): return f'v_exp_f32 v{C.S[x]+i}, v{C.S[x]+i}'
def cv(x, i): return f'v_cvt_pk_bf16_f32 v{C.P[x]+i}, v{C.S[x]+2*i}, v{C.S[x]+2*i+1}'
def adv(): return [] if not C.ADV else [f'v_add_u32 v{r}, {4*6144}, v{r}' for r in (C.CA0, C.CA1, C.CT0, C.CT1)]

def flat(l):
    o = []
    for x in l:
        if isinstance(x, (list, tuple)): o += flat(x)
        else: o.append(x)
    return o

def cons2(var=0):
    E = lambda x, a, b: [ex(x, i) for i in range(a, b)]
    V = lambda x, a, b: [cv(x, i) for i in range(a, b)]
    if var == 0:
        L = [[ka(0, s) for s in range(6)],
             sm(0,0), ka(1,0), ka(1,1), sm(0,1), ka(1,2), ka(1,3), sm(0,2), ka(1,4), ka(1,5),
             sm(0,3), kt(0,0,0), sm(0,4), kt(0,0,1), sm(0,5), kt(0,0,2),
             sm(1,0), kt(0,1,0), kt(0,1,1), sm(1,1), E(0,0,3), sm(1,2), E(0,3,6), sm(1,3), E(0,6,8), V(0,0,2),
             sm(1,4), V(0,2,4), E(0,8,10), sm(1,5), kt(0,1,2), E(0,10,12),
             pv(0,0,0), E(0,12,15), pv(0,0,1), E(0,15,16), V(0,4,8), pv(0,0,2), kt(1,0,0), E(1,0,2), pv(0,0,3), E(1,2,3),
             pv(0,1,0), kt(1,0,1), E(1,3,5), pv(0,1,1), kt(1,0,2), E(1,5,7), pv(0,1,2), E(1,7,8), V(1,0,4), pv(0,1,3), kt(1,1,0),
             pv(1,0,0), kt(1,1,1), E(1,8,10), pv(1,0,1), kt(1,1,2), E(1,10,12), pv(1,0,2), E(1,12,15), pv(1,0,3), E(1,15,16), V(1,4,8), adv(),
             pv(1,1,0), pv(1,1,1), pv(1,1,2), pv(1,1,3)]
    elif var == 1:
        L = [[ka(0, s) for s in range(6)],
             sm(0,0), ka(1,0), sm(0,1), ka(1,1), ka(1,2), sm(0,2), ka(1,3), sm(0,3), ka(1,4), ka(1,5), sm(0,4), kt(0,0,0), sm(0,5), kt(0,0,1), kt(0,0,2),
             sm(1,0), kt(0,1,0), kt(0,1,1), kt(0,1,2), E(0,0,8), V(0,0,4), sm(1,1), E(0,8,11), sm(1,2), E(0,11,14), sm(1,3), E(0,14,16), V(0,4,6), sm(1,4), V(0,6,8), kt(1,0,0), sm(1,5), kt(1,0,1), kt(1,0,2),
             pv(0,0,0), kt(1,1,0), pv(0,0,1), E(1,0,3), pv(0,0,2), E(1,3,6), pv(0,0,3), E(1,6,7),
             pv(0,1,0), E(1,7,8), V(1,0,4), pv(0,1,1), E(1,8,11), pv(0,1,2), E(1,11,14), pv(0,1,3), kt(1,1,1),
             pv(1,0,0), E(1,14,16), kt(1,1,2), pv(1,0,1), V(1,4,8), pv(1,0,2), adv(), pv(1,0,3),
             pv(1,1,0), pv(1,1,1), pv(1,1,2), pv(1,1,3)]
    return autowait(flat(L))

def cons1(extra_pre=(), extra_mid=()):
    E = lambda x, a, b: [ex(x, i) for i in range(a, b)]
    V = lambda x, a, b: [cv(x, i) for i in range(a, b)]
    L = [[ka(0, s) for s in range(6)],
         sm(0,0), kt(0,0,0), sm(0,1), kt(0,0,1), sm(0,2), kt(0,0,2), sm(0,3), kt(0,1,0), sm(0,4), kt(0,1,1), sm(0,5), kt(0,1,2), list(extra_pre),
         E(0,0,8), V(0,0,4), pv(0,0,0), E(0,8,11), pv(0,0,1), E(0,11,14), pv(0,0,2), E(0,14,16), V(0,4,6), pv(0,0,3), V(0,6,8), list(extra_mid),
         pv(0,1,0), pv(0,1,1), pv(0,1,2), pv(0,1,3)]
    return autowait(flat(L))

def ka_regs(x, s): return {f'v{C.KA[x]+4*s+i}' for i in range(4)}
PEND6 = lambda: [ka_regs(0, s) for s in range(6)]

def tail_pf(x, advl, flag):
    k = lambda s: ka(0, s)
    if x == 1:
        return [advl, flag, k(0), k(1), k(2), pv(1,1,3), pv(1,1,0), k(3), pv(1,1,1), k(4), pv(1,1,2), k(5)]
    return [advl, flag, k(0), k(1), k(2), pv(0,1,3), k(3), pv(0,1,0), k(4), pv(0,1,1), k(5), pv(0,1,2)]

def cons2p(advl, flag, top=()):
    E = lambda x, a, b: [ex(x, i) for i in range(a, b)]
    V = lambda x, a, b: [cv(x, i) for i in range(a, b)]
    L = [sm(0,0), ka(1,0), ka(1,1), list(top), sm(0,1), ka(1,2), ka(1,3), sm(0,2), ka(1,4), ka(1,5),
         sm(0,3), kt(0,0,0), sm(0,4), kt(0,0,1), sm(0,5), kt(0,0,2),
         sm(1,0), kt(0,1,0), kt(0,1,1), sm(1,1), E(0,0,3), sm(1,2), E(0,3,6), sm(1,3), E(0,6,8), V(0,0,2),
         sm(1,4), V(0,2,4), E(0,8,10), sm(1,5), kt(0,1,2), E(0,10,12),
         pv(0,0,0), E(0,12,15), pv(0,0,1), E(0,15,16), V(0,4,8), pv(0,0,2), kt(1,0,0), E(1,0,2), pv(0,0,3), E(1,2,3),
         pv(0,1,0), kt(1,0,1), E(1,3,5), pv(0,1,1), kt(1,0,2), E(1,5,7), pv(0,1,2), E(1,7,8), V(1,0,4), pv(0,1,3), kt(1,1,0),
         pv(1,0,0), kt(1,1,1), E(1,8,10), pv(1,0,1), kt(1,1,2), E(1,10,12), pv(1,0,2), E(1,12,15), pv(1,0,3), E(1,15,16), V(1,4,8),
         's_waitcnt lgkmcnt(0)', tail_pf(1, advl, flag)]
    return autowait(flat(L), pending=PEND6(), pborn=-8)

def cons1p(advl, flag, fill=()):
    E = lambda x, a, b: [ex(x, i) for i in range(a, b)]
    V = lambda x, a, b: [cv(x, i) for i in range(a, b)]
    L = [sm(0,0), kt(0,0,0), sm(0,1), kt(0,0,1), sm(0,2), kt(0,0,2), sm(0,3), kt(0,1,0), sm(0,4), kt(0,1,1), sm(0,5), kt(0,1,2), list(fill),
         E(0,0,8), V(0,0,4), pv(0,0,0), E(0,8,11), pv(0,0,1), E(0,11,14), pv(0,0,2), E(0,14,16), V(0,4,6), pv(0,0,3), V(0,6,8),
         's_waitcnt lgkmcnt(0)', tail_pf(0, advl, flag)]
    return autowait(flat(L), pending=PEND6(), pborn=-8)

def cons1x(wv, pre=False, fill=()):
    E = lambda x, a, b: [ex(x, i) for i in range(a, b)]
    V = lambda x, a, b: [cv(x, i) for i in range(a, b)]
    wv = list(wv)
    def W(n):
        o = wv[:n]; del wv[:n]; return o
    def mix(l, n):
        o = []
        for x in l: o += [x] + W(n)
        return o
    L = [[] if pre else [ka(0, s) for s in range(6)],
         sm(0,0), kt(0,0,0), sm(0,1), kt(0,0,1), sm(0,2), kt(0,0,2), sm(0,3), kt(0,1,0), sm(0,4), kt(0,1,1), sm(0,5), kt(0,1,2), list(fill),
         E(0,0,8), V(0,0,4), 's_waitcnt lgkmcnt(0)', pv(0,0,0), mix(E(0,8,11), 2), pv(0,0,1), mix(E(0,11,14), 2), pv(0,0,2), E(0,14,16), V(0,4,6), pv(0,0,3), V(0,6,8),
         pv(0,1,3), pv(0,1,0), pv(0,1,1), pv(0,1,2)]
    assert not wv
    return autowait(flat(L), final=0, pending=PEND6() if pre else None, pborn=-8)

def cons2x(wv, tb, pre=False, fill=()):
    E = lambda x, a, b: [ex(x, i) for i in range(a, b)]
    V = lambda x, a, b: [cv(x, i) for i in range(a, b)]
    wv = list(wv)
    def W(n):
        o = wv[:n]; del wv[:n]; return o
    sv = C.TB; C.TB = tb
    fill = list(fill); h = (len(fill) + 2) // 3
    L = [[] if pre else [ka(0, s) for s in range(6)],
         sm(0,0), ka(1,0), ka(1,1), sm(0,1), ka(1,2), ka(1,3), sm(0,2), ka(1,4), ka(1,5),
         sm(0,3), kt(0,0,0), fill[:h], sm(0,4), kt(0,0,1), fill[h:2*h], sm(0,5), kt(0,0,2), fill[2*h:],
         sm(1,0), kt(0,1,0), kt(0,1,1), sm(1,1), E(0,0,3), sm(1,2), E(0,3,6), sm(1,3), E(0,6,8), V(0,0,2),
         sm(1,4), V(0,2,4), E(0,8,10), sm(1,5), kt(0,1,2), E(0,10,12),
         pv(0,0,0), W(2), E(0,12,15), pv(0,0,1), W(2), E(0,15,16), V(0,4,8), pv(0,0,2), kt(1,0,0), E(1,0,2), pv(0,0,3), W(2), E(1,2,3),
         pv(0,1,0), kt(1,0,1), E(1,3,5), pv(0,1,1), kt(1,0,2), E(1,5,7), pv(0,1,2), W(2), E(1,7,8), V(1,0,4), pv(0,1,3), kt(1,1,0),
         pv(1,0,0), kt(1,1,1), E(1,8,10), pv(1,0,1), kt(1,1,2), E(1,10,12), pv(1,0,2), W(2), E(1,12,15), pv(1,0,3), W(2), E(1,15,16), V(1,4,8),
         pv(1,1,3), pv(1,1,0), pv(1,1,1), pv(1,1,2)]
    C.TB = sv
    assert not wv
    return autowait(flat(L), final=0, pending=PEND6() if pre else None, pborn=-8)

def cons1w(wv, var=0):
    E = lambda x, a, b: [ex(x, i) for i in range(a, b)]
    V = lambda x, a, b: [cv(x, i) for i in range(a, b)]
    wv = list(wv)
    def W(n):
        o = wv[:n]; del wv[:n]; return o
    def mix(l, n):
        o = []
        for x in l: o += [x] + W(n)
        return o
    head = [[ka(0, s) for s in range(6)],
            sm(0,0), kt(0,0,0), sm(0,1), kt(0,0,1), sm(0,2), kt(0,0,2), sm(0,3), kt(0,1,0), sm(0,4), kt(0,1,1), sm(0,5), kt(0,1,2)]
    if var == 0:
        if len(wv) == 12:
            L = head + [E(0,0,8), V(0,0,4), 's_waitcnt lgkmcnt(0)', pv(0,0,0), mix(E(0,8,11), 1), pv(0,0,1), mix(E(0,11,14), 1), pv(0,0,2), mix(E(0,14,16), 1), V(0,4,6), pv(0,0,3), V(0,6,8),
                        pv(0,1,0), W(2), pv(0,1,1), W(2), pv(0,1,2), pv(0,1,3)]
        else:
            L = head + [W(4), 's_waitcnt lgkmcnt(6)', mix(E(0,0,8), 1), V(0,0,4), 's_waitcnt lgkmcnt(6)', pv(0,0,0), mix(E(0,8,11), 1), pv(0,0,1), mix(E(0,11,14), 1), pv(0,0,2), mix(E(0,14,16), 1), V(0,4,6), pv(0,0,3), V(0,6,8),
                        's_waitcnt lgkmcnt(6)', pv(0,1,0), W(2), pv(0,1,1), W(2), pv(0,1,2), pv(0,1,3)]
    elif var == 1:
        L = head + [E(0,0,8), V(0,0,4), 's_waitcnt lgkmcnt(0)', pv(0,0,0), mix(E(0,8,11), 2), pv(0,0,1), mix(E(0,11,14), 2), pv(0,0,2), 's_waitcnt lgkmcnt(8)', mix(E(0,14,16), 2), V(0,4,6), pv(0,0,3), V(0,6,8),
                    's_waitcnt lgkmcnt(6)', pv(0,1,0), W(4), pv(0,1,1), W(4), pv(0,1,2), pv(0,1,3)]
    assert not wv
    return autowait(flat(L), final=0)

def cons2w(wv, tb):
    E = lambda x, a, b: [ex(x, i) for i in range(a, b)]
    V = lambda x, a, b: [cv(x, i) for i in range(a, b)]
    wv = list(wv)
    def W(n):
        o = wv[:n]; del wv[:n]; return o
    sv = C.TB; C.TB = tb
    L = [[ka(0, s) for s in range(6)],
         sm(0,0), ka(1,0), ka(1,1), sm(0,1), ka(1,2), ka(1,3), sm(0,2), ka(1,4), ka(1,5),
         sm(0,3), kt(0,0,0), sm(0,4), kt(0,0,1), sm(0,5), kt(0,0,2),
         sm(1,0), kt(0,1,0), kt(0,1,1), sm(1,1), E(0,0,3), sm(1,2), E(0,3,6), sm(1,3), E(0,6,8), V(0,0,2),
         sm(1,4), V(0,2,4), E(0,8,10), sm(1,5), kt(0,1,2), E(0,10,12),
         pv(0,0,0), E(0,12,15), pv(0,0,1), E(0,15,16), V(0,4,8), pv(0,0,2), kt(1,0,0), E(1,0,2), pv(0,0,3), E(1,2,3),
         pv(0,1,0), kt(1,0,1), E(1,3,5), pv(0,1,1), kt(1,0,2), E(1,5,7), pv(0,1,2), E(1,7,8), V(1,0,4), pv(0,1,3), kt(1,1,0),
         pv(1,0,0), kt(1,1,1), E(1,8,10), pv(1,0,1), kt(1,1,2), E(1,10,12), pv(1,0,2), W(2), E(1,12,15), pv(1,0,3), W(2), E(1,15,16), V(1,4,8),
         pv(1,1,0), W(4), pv(1,1,1), W(4), pv(1,1,2), pv(1,1,3)]
    C.TB = sv
    assert not wv
    return autowait(flat(L), final=0)

class P:
    RA0, RA1 = 5, 6
    WL = 16
    LT = 88
    X, F = 136, 184
    ID, OP, SM, SL, T = 208, 216, 220, 224, 228

def p_reads():
    return [f'ds_read_b128 {vr(P.F+4*s,4)}, v{P.RA1 if s&1 else P.RA0} offset:{64*(s>>1)}' for s in (0, 2, 4, 1, 3, 5)]

def p_head(g1=(), g2=(), hiprio=None, reads=True):
    L = []
    if hiprio is not None: L.append(f's_setprio {hiprio}')
    if reads: L += p_reads()
    L += list(g1)
    g2 = list(g2)
    for t in range(3):
        L.append(f's_waitcnt lgkmcnt({5-t})')
        L.append(f'{MF32} {vr(P.X+16*t,16)}, {vr(P.ID,4)}, {vr(P.F+8*t,4)}, {vr(P.LT+16*t,16)}')
        if g2:
            L += g2[:3] if t == 0 else g2[2+t:3+t]
    return L

def p_tail(var=0, lowprio=None):
    X, F, T, SM, SL = P.X, P.F, P.T, P.SM, P.SL
    Q0, Q1 = T, T+1
    L = []; a = L.append
    def identb(t): a(f'{MF32} {vr(X+16*t,16)}, {vr(P.ID+4,4)}, {vr(F+8*t+4,4)}, {vr(X+16*t,16)}')
    def summ(s): a(f'{MF16} {vr(SM,4)}, {vr(P.OP,4)}, {vr(F+4*s,4)}, {vr(SL,4) if s == 0 else vr(SM,4)}')
    sqi = [0]
    def sq(n):
        for _ in range(n):
            i = sqi[0]; sqi[0] += 1
            q = Q0 if i % 2 == 0 else Q1
            a(f'v_mul_f32 v{q}, v{X+i}, v{X+i}' if i < 2 else f'v_fmac_f32 v{q}, v{X+i}, v{X+i}')
    a('s_waitcnt lgkmcnt(0)')
    identb(0); identb(1); summ(0); sq(2); identb(2); sq(6)
    for s in range(1, 6):
        summ(s)
        if s == 5 and lowprio is not None: a(f's_setprio {lowprio}')
        sq(2)
    sq(48 - sqi[0])
    a(f'v_add_f32 v{Q0}, v{Q0}, v{Q1}')
    a(f'v_mul_f32 v{SM}, {f32(1/96)}, v{SM}')
    a(f'v_mov_b32 v{Q1}, v{Q0}')
    a(f'v_mul_f32 v{SM+1}, v{SM}, v{SM}')
    a(f'v_subrev_f32 v{SM+1}, {f32(1e-5)}, v{SM+1}')
    a(f'v_permlane32_swap_b32 v{Q0}, v{Q1}')
    a(f'v_add_f32 v{Q0}, v{Q0}, v{Q1}')
    a(f'v_fma_f32 v{Q0}, v{Q0}, s62, -v{SM+1}')
    a(f'v_max_f32 v{Q0}, {f32(1e-5)}, v{Q0}')
    a(f'v_rsq_f32 v{Q0}, v{Q0}')
    a('s_nop 0')
    a(f'v_mul_f32 v{Q1}, -v{SM}, v{Q0}')
    for s in range(6):
        for i in range(8): a(f'v_fma_f32 v{X+8*s+i}, v{X+8*s+i}, v{Q0}, v{Q1}')
        for i in range(4): a(f'v_cvt_pk_bf16_f32 v{F+4*s+i}, v{X+8*s+2*i}, v{X+8*s+2*i+1}')
        if var == 1:
            a(f'ds_write_b64 v{P.RA1 if s&1 else P.RA0}, {vr(F+4*s,2)} offset:{64*(s>>1)}')
            a(f'ds_write_b64 v{P.RA1 if s&1 else P.RA0}, {vr(F+4*s+2,2)} offset:{64*(s>>1)+8}')
        else:
            a(f'ds_write_b128 v{P.RA1 if s&1 else P.RA0}, {vr(F+4*s,4)} offset:{64*(s>>1)}')
    a(f'v_add_u32 v{P.RA0}, {4*6144}, v{P.RA0}')
    a(f'v_add_u32 v{P.RA1}, {4*6144}, v{P.RA1}')
    a('s_waitcnt lgkmcnt(0)')
    return L


def p_tail2(lowprio=None, one=True):
    X, F, T, SM, SL = P.X, P.F, P.T, P.SM, P.SL
    Q0, Q1 = T, T+1
    L = []; a = L.append
    def identb(t): a(f'{MF32} {vr(X+16*t,16)}, {vr(P.ID+4,4)}, {vr(F+8*t+4,4)}, {vr(X+16*t,16)}')
    def summ(s): a(f'{MF16} {vr(SM,4)}, {vr(P.OP,4)}, {vr(F+4*s,4)}, {vr(SL,4) if s == 0 else vr(SM,4)}')
    sqi = [0]
    def sq(n):
        for _ in range(n):
            i = sqi[0]; sqi[0] += 1
            q = Q0 if (one or i % 2 == 0) else Q1
            a(f'v_mul_f32 v{q}, v{X+i}, v{X+i}' if i < (1 if one else 2) else f'v_fmac_f32 v{q}, v{X+i}, v{X+i}')
    a('s_waitcnt lgkmcnt(0)')
    identb(0); identb(1); summ(0); sq(2); identb(2); sq(6)
    for s in range(1, 6):
        summ(s)
        if s == 5 and lowprio is not None: a(f's_setprio {lowprio}')
        sq(2)
    sq(48 - sqi[0])
    if not one: a(f'v_add_f32 v{Q0}, v{Q0}, v{Q1}')
    a(f'v_mov_b32 v{Q1}, v{Q0}')
    a(f'v_fma_f32 v{SM+1}, v{SM}, v{SM}, -s61')
    a(f'v_add_u32 v{T+2}, {4*6144}, v{P.RA0}')
    a(f'v_permlane32_swap_b32 v{Q0}, v{Q1}')
    a(f'v_add_f32 v{Q0}, v{Q0}, v{Q1}')
    a(f'v_fma_f32 v{Q0}, v{Q0}, s62, -v{SM+1}')
    a(f'v_max_f32 v{Q0}, s61, v{Q0}')
    a(f'v_rsq_f32 v{Q0}, v{Q0}')
    a(f'v_add_u32 v15, 1, v15')
    a(f'v_mul_f32 v{Q1}, -v{SM}, v{Q0}')
    a(f'v_mul_f32 v{Q0}, s62, v{Q0}')
    for s in range(6):
        for i in range(8): a(f'v_fma_f32 v{X+8*s+i}, v{X+8*s+i}, v{Q0}, v{Q1}')
        for i in range(4): a(f'v_cvt_pk_bf16_f32 v{F+4*s+i}, v{X+8*s+2*i}, v{X+8*s+2*i+1}')
        a(f'ds_write_b128 v{P.RA1 if s&1 else P.RA0}, {vr(F+4*s,4)} offset:{64*(s>>1)}')
    L.remove(f'v_add_u32 v{T+2}, {4*6144}, v{P.RA0}')
    a(f'v_add_u32 v{P.RA0}, {4*6144}, v{P.RA0}')
    a(f'v_add_u32 v{P.RA1}, {4*6144}, v{P.RA1}')
    a('s_waitcnt lgkmcnt(0)')
    return L

def p_tail_pk(lowprio=None, sqpk=True, nmpk=True, wr_end=False):
    X, F, T, SM, SL = P.X, P.F, P.T, P.SM, P.SL
    Q0, Q1 = T, T+1
    L = []; a = L.append
    def identb(t): a(f'{MF32} {vr(X+16*t,16)}, {vr(P.ID+4,4)}, {vr(F+8*t+4,4)}, {vr(X+16*t,16)}')
    def summ(s): a(f'{MF16} {vr(SM,4)}, {vr(P.OP,4)}, {vr(F+4*s,4)}, {vr(SL,4) if s == 0 else vr(SM,4)}')
    a('s_waitcnt lgkmcnt(0)')
    if sqpk:
        identb(0); identb(1); identb(2)
        for s in range(6): summ(s)
        if lowprio is not None: a(f's_setprio {lowprio}')
        for i in range(24):
            acc = T + 2*(i % 2)
            x = vr(X+2*i, 2)
            a(f'v_pk_mul_f32 {vr(acc,2)}, {x}, {x}' if i < 2 else f'v_pk_fma_f32 {vr(acc,2)}, {x}, {x}, {vr(acc,2)}')
        a(f'v_pk_add_f32 {vr(T,2)}, {vr(T,2)}, {vr(T+2,2)}')
    else:
        sqi = [0]
        def sq(n):
            for _ in range(n):
                i = sqi[0]; sqi[0] += 1
                q = Q0 if i % 2 == 0 else Q1
                a(f'v_mul_f32 v{q}, v{X+i}, v{X+i}' if i < 2 else f'v_fmac_f32 v{q}, v{X+i}, v{X+i}')
        identb(0); identb(1); summ(0); sq(2); identb(2); sq(6)
        for s in range(1, 6):
            summ(s)
            if s == 5 and lowprio is not None: a(f's_setprio {lowprio}')
            sq(2)
        sq(48 - sqi[0])
    a(f'v_add_f32 v{Q0}, v{Q0}, v{Q1}')
    a(f'v_mul_f32 v{SM}, {f32(1/96)}, v{SM}')
    a(f'v_mov_b32 v{Q1}, v{Q0}')
    a(f'v_mul_f32 v{SM+1}, v{SM}, v{SM}')
    a(f'v_subrev_f32 v{SM+1}, {f32(1e-5)}, v{SM+1}')
    a(f'v_permlane32_swap_b32 v{Q0}, v{Q1}')
    a(f'v_add_f32 v{Q0}, v{Q0}, v{Q1}')
    a(f'v_fma_f32 v{Q0}, v{Q0}, s62, -v{SM+1}')
    a(f'v_max_f32 v{Q0}, {f32(1e-5)}, v{Q0}')
    a(f'v_rsq_f32 v{Q0}, v{Q0}')
    a('s_nop 0')
    a(f'v_mul_f32 v{Q1}, -v{SM}, v{Q0}')
    if nmpk:
        for i in range(24):
            x = vr(X+2*i, 2)
            a(f'v_pk_fma_f32 {x}, {x}, {vr(Q0,2)}, {vr(Q0,2)} op_sel:[0,0,1] op_sel_hi:[1,0,1]')
    for s in range(6):
        if not nmpk:
            for i in range(8): a(f'v_fma_f32 v{X+8*s+i}, v{X+8*s+i}, v{Q0}, v{Q1}')
        for i in range(4): a(f'v_cvt_pk_bf16_f32 v{F+4*s+i}, v{X+8*s+2*i}, v{X+8*s+2*i+1}')
        a(f'ds_write_b128 v{P.RA1 if s&1 else P.RA0}, {vr(F+4*s,4)} offset:{64*(s>>1)}')
    a(f'v_add_u32 v{P.RA0}, {4*6144}, v{P.RA0}')
    a(f'v_add_u32 v{P.RA1}, {4*6144}, v{P.RA1}')
    a('s_waitcnt lgkmcnt(0)')
    return L
```

```python
import sys, math, struct
from asmlib import Asm, autowait
import blocks as B
from blocks import vr, f32, MF32, MF16, flat

KNAME = 'standalone__detection_seg_mask2former__vision_kernel'

HI = 0
WM = 12 * 6144
QS = 15 * 6144
WQ = 16 * 6144
LO = 110592 + 6144
WREG = LO + 27648
SCR = WREG + 18432
TOT = SCR
PF = SCR + 512
TKT = SCR + 528
CNT = SCR + 544
WST = SCR + 640
XCH = LO
XST = 6912
WO = 0
FIN = 20480
CTX = 32768
LDS_BYTES = SCR + 1024
assert LDS_BYTES <= 163840 and LO <= XCH and XCH + 4 * XST <= WREG
B.C.TB = 6144
LREC = 16 * 256 * 256
MREC = LREC
REC_BYTES = MREC + 16 * 4 * 256 * 8
BOUND = 80.0
THR = BOUND * BOUND / 96 / (1 + 2 ** -8) ** 2
STAMP_OFF = 4 << 20
FSW = sum(((((-(px >> 2)) & 3) ^ ((px >> 1) & 1)) << (2 * px)) for px in range(16))

class Cfg:
    stamps = False
    cyc = False
    repf = 0
    cvar = 0
    g0pos = 1
    fine = 0
    wvpos = 2
    h0pos = 1
    cpp = 0
    cmain = 0
    pp = 0
    deep = 1
    h1early = 0
    pwait = 1
    ksleep = 0
    r1late = 0
    pm = 2
    pv = 0
    pl = 2
    cearly = 0
    trp = 0
    trc = 0
    touch = 3
    t0pre = 0
    wkpos = 1
    dry = 0
    tokpos = -1
    wvr = 2
    ktrace = 0
    pollnt = 0
    roll = 0
    dyn = 5
    diag = 0
    early = 0
    tok2 = 1
    bist = 0
    mfirst = 1
    b2 = 0
    wvar = 0
    etr = 0
    xv = 0
    xd = 2
    fake = 0
    fsc = 0
    wsl = 0
    pk = 0
    uni = 0
    spec = 1
    tlb = 0
    spf = 0
    spn = 15
    wsum = 0
    st2 = 1
    pro = 1
    wmtok = 0
    c2 = None
    c3 = None
    c4 = None

SQ, SHI, SLO, SWL, SWQ, SWK, SWV, SWO, SWM, SOUT, SDBG, SWS = [f's[{4+2*i}:{5+2*i}]' for i in range(12)]
RHI, RLO, RWS = 's[28:31]', 's[32:35]', 's[36:39]'
SF = 's63'
STAMP0 = 64

def TM(cfg): return 's_memtime' if cfg.cyc else 's_memrealtime'

def stamp(a, cfg, i, inner=False):
    if cfg.b2 and i in (11, 12, 13, 14, 15) : return
    if cfg.bist:
        import inspect
        src = inspect.stack()[1].code_context[0]
        if 'bist' not in src and i in (4, 5, 6, 7, 8, 11, 12, 13, 14) and inspect.stack()[1].function != 'script': return
    if cfg.trp and not inner and i != 0: return
    if inner and not cfg.trp: return
    if cfg.stamps: a(f"{'s_memtime' if cfg.cyc else 's_memrealtime'} s[{STAMP0+2*i}:{STAMP0+2*i+1}]")

def stamp_flush(a, cfg, tmpv=100):
    if not cfg.stamps: return
    a('s_cmp_eq_u32 s100, 0')
    a('s_cbranch_scc1 L_nosl')
    a('s_sleep 100')
    a('L_nosl:')
    a('s_waitcnt lgkmcnt(0)')
    a('s_lshl_b32 s61, s2, 3\ns_add_u32 s61, s61, s3')
    a(f's_lshl_b32 s62, s61, 7')
    a(f's_add_u32 s62, s62, {STAMP_OFF}')
    for i in range(32): a(f'v_mov_b32 v{tmpv+i}, s{STAMP0+i}')
    a(f'v_mov_b32 v{tmpv+32}, 0')
    a('s_mov_b64 exec, 1')
    a('s_mov_b32 s56, s26\ns_mov_b32 s57, s27\ns_mov_b32 s58, 0x1000000\ns_mov_b32 s59, 0x20000')
    for i in range(8):
        a(f'buffer_store_dwordx4 {vr(tmpv+4*i,4)}, v{tmpv+32}, s[56:59], s62 offen offset:{16*i}')
    a('s_mov_b64 exec, -1')

def dma_swz(a, dst, k, tmp):
    a(f'v_add_u32 v{tmp}, {64*k if isinstance(k,int) else k}, v1')
    a(f'v_mul_u32_u24 v{tmp}, 0xaaab, v{tmp}')
    a(f'v_lshrrev_b32 v{tmp}, 18, v{tmp}')
    a(f'v_and_b32 v{tmp}, 0x1e, v{tmp}')
    a(f'v_bfe_u32 v{tmp}, {SF}, v{tmp}, 2')
    a(f'v_xor_b32 v{tmp}, v{tmp}, v1')
    a(f'v_lshlrev_b32 v{dst}, 4, v{tmp}')

def dma_part(a, ptr, ldsbase, voff, spart):
    lo = int(ptr[2:ptr.index(':')])
    a(f's_add_u32 m0, {spart}, {ldsbase}')
    a(f's_add_u32 s50, s{lo}, 4096')
    for k in range(4): a(f'global_load_lds_dwordx4 v{voff}, {ptr} offset:{1024*k}')
    a(f's_addc_u32 s51, s{lo+1}, 0')
    a(f's_add_u32 m0, {spart}, {ldsbase+4096}')
    a('s_mov_b32 exec_hi, 0')
    a(f'global_load_lds_dwordx4 v{voff}, s[50:51]')
    a('s_mov_b32 exec_hi, -1')

def dma_extra(a, ptr, ldsbase, voff, sbase):
    lo = int(ptr[2:ptr.index(':')])
    a(f's_add_u32 s50, s{lo}, 4096')
    a(f's_addc_u32 s51, s{lo+1}, 0')
    a(f's_add_u32 m0, {sbase}, {ldsbase+4096}')
    a('s_nop 0')
    a(f'global_load_lds_dwordx4 v{voff}, s[50:51]')

def dma_main(a, ptr, ldsbase, voff, sbase):
    a(f's_add_u32 m0, {sbase}, {ldsbase}')
    a('s_nop 0')
    for k in range(4): a(f'global_load_lds_dwordx4 v{voff}, {ptr} offset:{1024*k}')

def arrive(a, which, va, vd, rtn=False):
    a(f'v_mov_b32 v{va}, {CNT + 4*which}')
    a(f'v_mov_b32 v{vd}, 1')
    a('s_mov_b64 exec, 1')
    a(f'ds_add_rtn_u32 v{vd}, v{va}, v{vd}' if rtn else f'ds_add_u32 v{va}, v{vd}')
    a('s_mov_b64 exec, -1')

def await_cnt(a, which, tag, va, vd, n=4, setaddr=True):
    if setaddr: a(f'v_mov_b32 v{va}, {CNT + 4*which}')
    a(f'{tag}:')
    a(f'ds_read_b32 v{vd}, v{va}')
    a('s_waitcnt lgkmcnt(0)')
    a(f'v_readfirstlane_b32 s50, v{vd}')
    a(f's_cmp_lt_u32 s50, {n}')
    a(f's_cbranch_scc1 {tag}')

def lds_sync(a, which, tag, va, vd, n=4):
    arrive(a, which, va, vd, rtn=True)
    a('s_waitcnt lgkmcnt(0)')
    a(f'v_readfirstlane_b32 s50, v{vd}')
    a(f's_cmp_ge_u32 s50, {n-1}')
    a(f's_cbranch_scc1 {tag}_ok')
    await_cnt(a, which, tag + '_spin', va, vd, n, setaddr=False)
    a(f'{tag}_ok:')

def code_prefetch(a, tag, vt, tidoff, sp='s[44:45]', start=KNAME):
    lo = int(sp[2:sp.index(':')])
    a(f's_getpc_b64 {sp}')
    a(f'{tag}:')
    a(f's_add_u32 s{lo}, s{lo}, {start}-{tag}')
    a(f's_addc_u32 s{lo+1}, s{lo+1}, {"-1" if start == KNAME else "0"}')
    a(f'v_add_u32 v{vt}, {tidoff}, v0')
    a(f'v_lshlrev_b32 v{vt}, 7, v{vt}')
    a(f'v_min_u32 v{vt}, L_codeend-{start}-4, v{vt}')
    a(f'global_load_dword v{vt if vt == 0 else vt+1}, v{vt}, {sp}')

def nonce_slow(a, tag, back, v):
    a(f'{tag}:')
    a('s_memrealtime s[50:51]')
    a('s_waitcnt lgkmcnt(0)')
    a('s_or_b32 s47, s50, 1')
    a(f'v_mov_b32 v{v}, s47\nv_mov_b32 v{v+1}, 0\nv_mov_b32 v{v+2}, 0')
    a('s_mov_b64 exec, 1')
    a(f'global_atomic_cmpswap v{v}, v{v+2}, {vr(v,2)}, {SDBG} sc0 sc1')
    a('s_mov_b64 exec, -1')
    a('s_waitcnt vmcnt(0)')
    a(f'v_readfirstlane_b32 s50, v{v}')
    a('s_cmp_eq_u32 s50, 0')
    a('s_cselect_b32 s47, s47, s50')
    a(f's_branch {back}')

def gen_entry(a, cfg):
    a('s_cmp_ge_u32 s2, 256')
    a('s_cbranch_scc1 L_end')
    if cfg.stamps:
        for i in range(32): a(f's_mov_b32 s{STAMP0+i}, 0')
        a('s_mov_b32 s100, 1')
    stamp(a, cfg, 0)
    if cfg.diag: a('s_memrealtime s[96:97]')
    a('s_load_dwordx16 s[4:19], s[0:1], 0')
    a('s_load_dwordx8 s[20:27], s[0:1], 64')
    a('v_lshrrev_b32 v2, 6, v0')
    a('v_and_b32 v1, 63, v0')
    a('v_readfirstlane_b32 s3, v2')
    a(f's_mov_b32 {SF}, {FSW:#x}')
    a('s_mul_i32 s57, s2, 9')
    a(f's_mov_b32 s62, {f32(96.0 if cfg.st2 else 1/96)}')
    a('s_cmp_ge_u32 s3, 4')
    a('s_cbranch_scc1 L_cons')

def gen_producer(a, cfg):
    W0, W1, W2, RA0, RA1, RL0, RL1 = 2, 3, 4, 5, 6, 7, 8
    WL, LT, X, F = B.P.WL, B.P.LT, B.P.X, B.P.F
    ID, OP, SM, SL, T = B.P.ID, B.P.OP, B.P.SM, B.P.SL, B.P.T
    FLA, FLV = 14, 15
    WSA = 9
    U = 232
    sP = 's3'
    sH0, sH1, sH8, sLo0, sLo1 = 's40', 's41', 's42', 's43', 's44'
    sSlot, sLoP, RET = 's45', 's46', 's[48:49]'
    t0, t1, t2 = 's52', 's53', 's54'
    M1, O1, M2, O2 = 's55', 's56', 's58', 's59'
    for k, w in enumerate((W0, W1, W2)): dma_swz(a, w, k, U)
    a(f'v_lshlrev_b32 v{U+3}, 4, v1')
    for i in range(4): a(f'v_mov_b32 v{U+4+i}, 0')
    a(f'v_add_u32 v{U+8}, {SCR}, v{U+3}')
    a(f'ds_write_b128 v{U+8}, {vr(U+4,4)}')
    a(f's_add_u32 s58, s57, {sP}')
    a(f's_mul_i32 {sLo0}, s58, 3072')
    a(f's_mul_i32 {sLoP}, {sP}, 3072')
    a(f's_add_u32 {sLoP}, {sLoP}, {LO}')
    a('s_mov_b32 s34, 7077888\ns_mov_b32 s35, 0x20000')
    a(f's_add_u32 {sLo1}, {sLo0}, {4*3072}')
    def hi_off(dst, u):
        a(f's_mul_i32 {t0}, {u}, 43691')
        a(f's_lshr_b32 {t0}, {t0}, 19')
        a(f's_mul_i32 {t0}, {t0}, 73728')
        a(f's_mul_i32 {dst}, {u}, 6144')
        a(f's_add_u32 {dst}, {dst}, {t0}')
    a(f's_mul_i32 {sSlot}, {sP}, 6144')
    a('s_add_u32 s60, s57, 8')
    a('s_mul_i32 s61, s60, 3072')
    a(f's_cmp_lt_u32 {sP}, 2')
    a(f's_cselect_b32 s55, s61, {sLo0}')
    a(f's_cselect_b32 s56, {LO+8*3072}, {sLoP}')
    a('s_mov_b32 s30, 28311552\ns_mov_b32 s31, 0x20000')
    a(f's_min_u32 {t0}, {sP}, 2')
    a(f's_lshl_b32 s47, {sP}, 2')
    a(f's_add_u32 s47, s47, {t0}')
    a(f's_lshl_b32 s47, s47, 10')
    a(f'v_add_u32 v15, s47, v{U+3}')
    a('s_add_u32 s59, s58, 4')
    hi_off(sH0, 's58'); hi_off(sH1, 's59'); hi_off(sH8, 's60')
    a(f's_mul_i32 {t0}, {sP}, 73728')
    a(f's_add_u32 {sH8}, {sH8}, {t0}')
    a(f's_cmp_lt_u32 {sP}, 2')
    a(f's_cselect_b32 s57, {sH8}, {sH0}')
    if cfg.bist: stamp(a, cfg, 12)
    a(f's_cmp_ge_u32 {sP}, 2')
    a('s_waitcnt lgkmcnt(0)')
    if cfg.bist: stamp(a, cfg, 13)
    a('s_cbranch_scc1 P_nox')
    dma_extra(a, SWL, WREG, 15, 's47')
    a('P_nox:')
    dma_main(a, SWL, WREG, 15, 's47')
    def half(srd, soff):
        return [f'buffer_load_dwordx4 v{w}, {srd}, {soff} offen offset:{1024*k} nt lds' for k, w in enumerate((W0, W1, W2))]
    a('s_mov_b32 s32, s8\ns_mov_b32 s33, s9')
    a(f's_mov_b32 m0, s56')
    a('s_mov_b32 s28, s6')
    for l in half(RLO, 's55'): a(l)
    a('s_mov_b32 s29, s7')
    def issue_h(soff, rnd, hf, add=0):
        a(f's_add_u32 m0, {sSlot}, {rnd*4*6144+3072*hf}')
        if add + hf:
            a(f's_add_u32 {t0}, {soff}, {add+3072*hf}'); src = t0
        else:
            a('s_nop 0'); src = soff
        for l in half(RHI, src): a(l)
    for hf in range(cfg.t0pre): issue_h('s57', 0, hf)
    if cfg.spf & 1:
        a('s_add_u32 s98, s6, s57\ns_addc_u32 s99, s7, 0')
        for i in range(cfg.spn): a(f's_load_dword s96, s[98:99], {128*i}')
    if cfg.tlb:
        a(f's_load_dword s96, {SHI}, s57')
        a(f's_add_u32 s97, {sH0}, 79000')
        a(f's_min_u32 s97, s97, 28311548')
        a(f's_and_b32 s97, s97, -4')
        a(f's_load_dword s97, {SHI}, s97')
    if cfg.bist: stamp(a, cfg, 11)
    a('s_barrier')
    a(f's_sub_u32 s56, s56, {sLoP}')
    stamp(a, cfg, 1)
    a(f'v_and_b32 v{U}, 31, v1')
    a(f'v_lshrrev_b32 v{U+1}, 5, v1')
    def rdaddr(d0, d1, px, base):
        a(f'v_lshlrev_b32 v{U+2}, 1, v{px}')
        a(f'v_and_b32 v{U+2}, 0x1e, v{U+2}')
        a(f'v_bfe_u32 v{U+2}, {SF}, v{U+2}, 2')
        a(f'v_xor_b32 v{U+2}, v{U+2}, v{U+1}')
        a(f'v_xor_b32 v{U+3}, 2, v{U+2}')
        a(f'v_mul_u32_u24 v{U+4}, 192, v{px}')
        a(f'v_add_u32 v{U+4}, {base}, v{U+4}')
        a(f'v_lshl_add_u32 v{d0}, v{U+2}, 4, v{U+4}')
        a(f'v_lshl_add_u32 v{d1}, v{U+3}, 4, v{U+4}')
    rdaddr(RA0, RA1, U, sSlot)
    a(f'v_lshrrev_b32 v{U+5}, 1, v{U}')
    rdaddr(RL0, RL1, U+5, sLoP)
    a(f'v_bfe_u32 v14, v1, 2, 2')
    a(f'v_lshl_add_u32 v14, v{U+1}, 3, v14')
    a(f'v_mul_u32_u24 v14, 192, v14')
    a(f'v_bfe_u32 v{U+8}, v1, 4, 1')
    a(f'v_lshl_add_u32 v14, v{U+8}, 5, v14')
    a(f'v_and_b32 v{U+3}, 1, v1')
    a(f'v_lshl_add_u32 v14, v{U+3}, 4, v14')
    a(f'v_bfe_u32 v{U+3}, v1, 1, 1')
    a(f'v_lshl_add_u32 v14, v{U+3}, 3, v14')
    a(f'v_add_u32 v14, {WREG}, v14')
    a(f'v_bfe_u32 v{U+2}, v1, 3, 1')
    a(f'v_and_b32 v{U+3}, 3, v1')
    a(f'v_lshl_add_u32 v{U+2}, v{U+2}, 2, v{U+3}')
    a(f'v_bfe_u32 v{U+3}, v1, 2, 1')
    a(f'v_cmp_eq_u32 vcc, v{U+3}, v{U+1}')
    a(f'v_and_b32 v{U+6}, 1, v{U+2}')
    a(f'v_lshlrev_b32 v{U+6}, 4, v{U+6}')
    a(f'v_mov_b32 v{U+4}, 0x3f80')
    a(f'v_lshlrev_b32 v{U+6}, v{U+6}, v{U+4}')
    a(f'v_cndmask_b32 v{U+6}, 0, v{U+6}, vcc')
    a(f'v_lshrrev_b32 v{U+2}, 1, v{U+2}')
    a(f'v_lshl_add_u32 v{U+2}, v{U+8}, 2, v{U+2}')
    a(f'v_cmp_eq_u32 s[58:59], v{U+3}, v{U+8}')
    a(f'v_mov_b32 v{U+7}, 0x3f803f80')
    if cfg.wsum:
        a(f'v_mov_b32 v{WSA}, {WST+192}')
        a(f'v_mov_b32 v{U+4}, {WST}')
        a(f'v_cndmask_b32 v{WSA}, v{WSA}, v{U+4}, s[58:59]')
        a(f'v_lshl_add_u32 v{WSA}, v{U+1}, 4, v{WSA}')
        a(f's_min_u32 {t0}, {sP}, 2')
        a(f's_lshl_b32 {t0}, {t0}, 5')
        a(f'v_add_u32 v{WSA+1}, {t0}, v{U}')
        a(f'v_mul_u32_u24 v{WSA+2}, 192, v{WSA+1}')
        a(f'v_lshl_add_u32 v{WSA+2}, v{U+1}, 4, v{WSA+2}')
        a(f'v_add_u32 v{WSA+2}, {WREG}, v{WSA+2}')
        a(f'v_lshlrev_b32 v{WSA+1}, 1, v{WSA+1}')
        a(f'v_add_u32 v{WSA+1}, {WST}, v{WSA+1}')
    for i in range(0, 8, 2):
        a(f'v_cmp_eq_u32 vcc, {i}, v{U+2}')
        a(f'v_cmp_eq_u32 s[60:61], {i+1}, v{U+2}')
        a(f'v_cndmask_b32 v{OP+i//2}, 0, v{U+7}, s[58:59]')
        a(f'v_cndmask_b32 v{ID+i}, 0, v{U+6}, vcc')
        a(f'v_cndmask_b32 v{ID+i+1}, 0, v{U+6}, s[60:61]')
    if cfg.dry:
        a('s_mov_b64 exec, 0')
        a(f's_cmp_eq_u32 {sP}, 1')
        a('s_cbranch_scc1 P_dry1')
        a(f's_cmp_eq_u32 {sP}, 2')
        a('s_cbranch_scc1 P_dry2')
        a(f's_cmp_eq_u32 {sP}, 3')
        a('s_cbranch_scc1 P_dryd')
        a(f's_call_b64 {RET}, P_h0')
        a('P_dryd:')
        a('s_mov_b64 exec, -1')
        stamp(a, cfg, 15)
    if cfg.tokpos == 0 and cfg.t0pre < 2:
        await_cnt(a, 5, 'P_sy5', 12, 13, 4)
        for hf in range(cfg.t0pre, 2): issue_h('s57', 0, hf)
        a(f's_waitcnt vmcnt(6)')
    else:
        a(f's_waitcnt vmcnt({3*cfg.t0pre})')
    stamp(a, cfg, 10)
    arrive(a, 0, 12, 13)
    def lo_reads(r0, r1, off=0):
        return [f'ds_read_b128 {vr(X+4*s,4)}, v{r1 if s&1 else r0} offset:{off+64*(s>>1)}' for s in range(6)]
    a(f'v_add_u32 v{U}, s56, v{RL0}\nv_add_u32 v{U+1}, s56, v{RL1}')
    if cfg.tokpos < 0:
        await_cnt(a, 5, 'P_sy5', 15, 13, 4)
        for hf in range(cfg.t0pre, 2): issue_h('s57', 0, hf)
        if cfg.wmtok: arrive(a, 6, 15, 13)
    for l in lo_reads(U, U+1): a(l)
    await_cnt(a, 0, 'P_sy0', 12, 13, 4, setaddr=False)
    stamp(a, cfg, 2)
    def wl_reads(t, s):
        return [f'ds_read_b64_tr_b16 {vr(WL+(t*6+s)*4+2*sec,2)}, v14 offset:{s*3072+sec*768+t*64}' for sec in range(2)]
    def lat_mfma(t, s):
        c = '0' if s == 0 else vr(LT+16*t,16)
        return f'{MF32} {vr(LT+16*t,16)}, {vr(WL+(t*6+s)*4,4)}, {vr(X+4*s,4)}, {c}'
    def lateral(first):
        pend = []
        L = [wl_reads(0, s) for s in range(4)] if first else []
        seq = [(t, s) for t in range(3) for s in range(6)]
        for i, (t, s) in enumerate(seq):
            L.append(lat_mfma(t, s))
            if first and i + 4 < 18: L.append(wl_reads(*seq[i+4]))
            if s >= 1: L.append(pend[:4]); del pend[:4]
            if s == 5:
                pend += [f'v_mov_b32 v{SL}, v{LT}' if (t == 0 and j == 0) else f'v_add_f32 v{SL}, v{SL}, v{LT+16*t+j}' for j in range(16)]
        return flat(L), pend
    def sl_fin():
        return [f'v_mov_b32 v{SL+1}, v{SL}', 's_nop 1', f'v_permlane32_swap_b32 v{SL}, v{SL+1}', f'v_add_f32 v{SL}, v{SL}, v{SL+1}']
    L, pend = lateral(True)
    if cfg.wsum == 2:
        for i in range(4): a(f'v_mov_b32 v{U+i}, 0x3f803f80')
        M = []; k = 0
        for l in L:
            M.append(l)
            if l.startswith('v_mfma'):
                k += 1
                if 2 <= k < 8: M.append(f'ds_read_b128 {vr(F+4*(k-2),4)}, v{WSA+2} offset:{32*(k-2)}')
                if k >= 6 and k % 2 == 0 and k < 18:
                    s_ = (k - 6) // 2
                    M.append(f'{MF32} {vr(X+24,16)}, {vr(U,4)}, {vr(F+4*s_,4)}, {"0" if s_ == 0 else vr(X+24,16)}')
        L = M
    L = autowait(L, age=99)
    if cfg.tokpos > 0 and cfg.t0pre < 2:
        k = [i for i, l in enumerate(L) if l.startswith('v_mfma')][cfg.tokpos]
        for l in L[:k]: a(l)
        a('s_waitcnt lgkmcnt(0)')
        await_cnt(a, 5, 'P_sy5', 12, 13, 4)
        for hf in range(cfg.t0pre, 2): issue_h('s57', 0, hf)
        L = L[k:]
    for l in L: a(l)
    if cfg.wsum == 2:
        a(f'v_cvt_pk_bf16_f32 v{X+24}, v{X+24}, v{X+24}')
        a(f'ds_write_b16 v{WSA+1}, v{X+24}')
    if cfg.wsum == 1:
        for s_ in range(6): a(f'ds_read_b128 {vr(F+4*s_,4)}, v{WSA+2} offset:{32*s_}')
        for i in range(4): a(f'v_mov_b32 v{U+i}, 0x3f803f80')
        for l in pend[:8]: a(l)
        del pend[:8]
        for s_ in range(6):
            a(f's_waitcnt lgkmcnt({5-s_})')
            a(f'{MF32} {vr(X,16)}, {vr(U,4)}, {vr(F+4*s_,4)}, {"0" if s_ == 0 else vr(X,16)}')
            for l in pend[:2]: a(l)
            del pend[:2]
    for l in pend + sl_fin(): a(l)
    if cfg.wsum == 1:
        a(f'v_cvt_pk_bf16_f32 v{X}, v{X}, v{X}')
        a(f'ds_write_b16 v{WSA+1}, v{X}')
    if cfg.wsum: a('s_waitcnt lgkmcnt(0)')
    arrive(a, 16, 12, 13)
    stamp(a, cfg, 3)
    a(f's_lshl_b32 {t0}, {sP}, 2')
    a(f's_add_u32 {t0}, {t0}, {PF}')
    a(f'v_mov_b32 v{FLA}, {t0}')
    a(f'v_mov_b32 v{FLV}, 0')
    if cfg.st2: a(f's_mov_b32 s61, {f32(1e-5 * 9216)}')
    a(f's_cmp_lt_u32 {sP}, 2')
    a('s_cbranch_scc0 P_scriptB')
    def script(tag, tiles, lats, los):
        n = len(tiles)
        q = ['h0', 'h1']
        nxt = [2]
        done = set()
        def guard(r):
            if r >= 3 and 'g' not in done:
                done.add('g'); await_cnt(a, 4, f'P_w{tag}{r}', 12, 13, 4)
        def param(M, O):
            h = nxt[0]; r, hf = divmod(h, 2)
            guard(r)
            a(f's_add_u32 {M}, {sSlot}, {r*4*6144+3072*hf}')
            a(f's_add_u32 {O}, {tiles[r][0]}, {tiles[r][1]+3072*hf}')
            nxt[0] += 1
            return f'h{h}'
        def now_h():
            h = nxt[0]; r, hf = divmod(h, 2)
            guard(r)
            issue_h(tiles[r][0], r, hf, tiles[r][1]); nxt[0] += 1
            q.append(f'h{h}')
        def now_lo(key):
            a(f's_add_u32 m0, {sLoP}, {0 if key == "lo0" else 4*3072}')
            a('s_nop 0')
            for l in half(RLO, sLo0 if key == 'lo0' else sLo1): a(l)
            q.append(key)
        if cfg.t0pre == 2 and cfg.tok2: await_cnt(a, 5, f'P_sy5{tag}', 12, 13, 4)
        for key in los.get(-1, []): now_lo(key)
        for _ in range(cfg.early): now_h()
        for r in range(n):
            ng = min(2, 2*n - nxt[0])
            if r == 1 and cfg.r1late: ng = 1
            new = []
            if ng >= 1: new.append(param(M1, O1))
            if ng >= 2: new.append(param(M2, O2))
            last = r == n - 1
            if cfg.b2 and r >= 1: a(f"{TM(cfg)} s[{STAMP0+2*(10+r)}:{STAMP0+2*(10+r)+1}]")
            if lats[r] is not None:
                key = lats[r]
                if key in q:
                    i2 = q.index(key)
                    a(f's_waitcnt vmcnt({3*(len(q)-1-i2)})'); del q[:i2+1]
                if cfg.wsum and 'ws' not in done:
                    done.add('ws'); await_cnt(a, 16, f'P_ws{tag}', 12, 13, 4)
                off = 0 if key == 'lo0' else 4*3072
                a(f'v_add_u32 v12, {off}, v{RL0}\nv_add_u32 v13, {off}, v{RL1}')
                a(f's_call_b64 {RET}, P_lat')
            idx = max([q.index(x) for x in (f'h{2*r}', f'h{2*r+1}') if x in q] + [-1])
            if cfg.b2 and lats[r] is not None: a(f"{TM(cfg)} s[{STAMP0+2*(1 if r < 2 else 2)}:{STAMP0+2*(1 if r < 2 else 2)+1}]")
            if last and tag == 'a':
                a(f's_call_b64 {RET}, P_h0w'); break
            a(f's_waitcnt vmcnt({3*(len(q)-1-idx)})'); stamp(a, cfg, 4+r)
            del q[:idx+1]; q.extend(new)
            if last: break
            a(f's_call_b64 {RET}, P_h{ng}')
            if r == 1 and cfg.r1late: now_h()
            for key in los.get(r, []): now_lo(key)
            if tag == 'b' and r == cfg.wvr:
                if 'ws' not in done: await_cnt(a, 16, 'P_wl', 12, 13, 4)
                a(f's_sub_u32 {t0}, {sP}, 2\ns_mul_i32 {t0}, {t0}, 9216')
                a(f'v_lshlrev_b32 v12, 4, v1\nv_add_u32 v12, {t0}, v12')
                for k in range(3):
                    a(f's_add_u32 m0, {t0}, {WREG+3072*k}')
                    a(f's_add_u32 s50, s16, {3072*k}\ns_addc_u32 s51, s17, 0')
                    for j in range(3): a(f'global_load_lds_dwordx4 v12, s[50:51] offset:{1024*j}')
                    q.append('wv')
                if cfg.touch:
                    a(f's_mov_b32 s36, s26\ns_mov_b32 s37, s27\ns_mov_b32 s38, {REC_BYTES}\ns_mov_b32 s39, 0x20000')
                    a('v_and_b32 v12, 15, v1\nv_lshlrev_b32 v12, 16, v12')
                    if cfg.touch >= 2:
                        a('v_lshrrev_b32 v13, 4, v1\nv_lshl_add_u32 v12, v13, 6, v12')
                        a(f's_lshl_b32 {t0}, s2, 8')
                        a(f'buffer_load_dword v232, v12, {RWS}, {t0} offen' + (' sc1' if cfg.touch == 3 else ''))
                    else:
                        a(f'buffer_load_dword v232, v12, {RWS}, 0 offen')
                    a(f'v_mov_b32 v12, 0')
                    a(f'global_load_dword v234, v12, {SOUT}')
                    a(f'global_load_dword v233, v12, {SQ}')
                    q.append('touch')
    script('a', [None, (sH0, 0), (sH0, 73728), (sH1, 0), (sH1, 73728)], [None, 'lo0', None, 'lo1', None], {-1: ['lo0'], 1: ['lo1']})
    if cfg.b2: a(f"{TM(cfg)} s[{STAMP0+30}:{STAMP0+31}]")
    a('s_branch P_fin')
    a('P_scriptB:')
    script('b', [None, (sH0, 73728), (sH1, 0), (sH1, 73728)], [None, None, 'lo1', None], {0: ['lo1']})
    a(f's_call_b64 {RET}, P_h0')
    if cfg.b2: a(f"{TM(cfg)} s[{STAMP0+30}:{STAMP0+31}]")
    a(f'v_mov_b32 v{FLV}, 5')
    a('s_waitcnt vmcnt(0)')
    a(f'ds_write_b32 v{FLA}, v{FLV}')
    if cfg.trp: a('s_branch L_exit')
    if cfg.stamps: a('s_mov_b32 s100, 0')
    a('s_cmp_ge_u32 s2, 16')
    a('s_cbranch_scc1 L_exit')
    if cfg.stamps: a('s_mov_b32 s100, 1')
    await_cnt(a, 17, 'P_w17', 12, 13, 4)
    a(f's_sub_u32 {t0}, {sP}, 2\ns_mul_i32 {t0}, {t0}, 9216')
    a(f'v_lshlrev_b32 v12, 4, v1\nv_add_u32 v12, {t0}, v12')
    for k in range(3):
        a(f's_add_u32 m0, {t0}, {WO+3072*k}')
        a(f's_add_u32 s50, s18, {3072*k}\ns_addc_u32 s51, s19, 0')
        for j in range(3): a(f'global_load_lds_dwordx4 v12, s[50:51] offset:{1024*j}')
    a('P_fin:')
    if cfg.trp: a('s_branch L_exit')
    stamp(a, cfg, 9)
    a('s_cmp_ge_u32 s2, 16')
    a('s_cbranch_scc1 L_exit')
    a('s_setprio 0')
    a(f's_load_dword s47, {SDBG}, 0')
    a('s_waitcnt lgkmcnt(0)')
    a('s_cmp_eq_u32 s47, 0')
    a('s_cbranch_scc1 P_getnonce')
    a('P_getnonce_d:')
    a(f's_mov_b32 s36, s26\ns_mov_b32 s37, s27\ns_mov_b32 s38, {REC_BYTES}\ns_mov_b32 s39, 0x20000')
    await_cnt(a, 7, 'P_w7', 12, 13, 4)
    a('s_cmp_lt_u32 s50, 0x100')
    a('s_cbranch_scc1 L_comb')
    a('s_branch Z_comb')
    nonce_slow(a, 'P_getnonce', 'P_getnonce_d', 20)
    if cfg.dry:
        a('P_dry1:')
        a('s_call_b64 s[60:61], C_blk2')
        a('s_branch P_dryd')
        a('P_dry2:')
        a(f's_call_b64 {RET}, P_lat')
        a('s_branch P_dryd')
    a('P_lat:')
    if cfg.pp: a(f's_setprio {cfg.pl}')
    if cfg.wsum:
        wsr = [f'ds_read_b128 {vr(F+4*s_,4)}, v{WSA} offset:{32*s_}' for s_ in range(6)]
        L = lo_reads(12, 13)
        for i, (t, s_) in enumerate([(t, s_) for t in range(3) for s_ in range(6)]):
            L.append(lat_mfma(t, s_))
            if i < 6: L.append(wsr[i])
            if i >= 6 and i % 2 == 0: L.append(f'{MF16} {vr(SL,4)}, {vr(F+4*((i-6)//2),4)}, {vr(X+4*((i-6)//2),4)}, {"0" if i == 6 else vr(SL,4)}')
        for l in autowait(L, age=99): a(l)
        a(f's_setpc_b64 {RET}')
    else:
        L, pend = lateral(False)
        for l in autowait(lo_reads(12, 13) + L, age=99): a(l)
        a('s_nop 9')
        for l in pend + sl_fin(): a(l)
        a(f's_setpc_b64 {RET}')
    hp = cfg.pm if cfg.pp else None
    g1 = [f's_mov_b32 m0, {M1}', 's_nop 0'] + half(RHI, O1)
    g2 = [f's_mov_b32 m0, {M2}', 's_nop 0'] + half(RHI, O2)
    def traced(lines, first, n):
        step = max(1, len(lines) // n); k = first
        for i, l in enumerate(lines):
            if i % step == 0 and k < first + n:
                stamp(a, cfg, k, True); k += 1
            a(l)
    a('P_h2:')
    traced(B.p_head(g1, g2, hp), 2, 3)
    a('s_branch P_s1')
    a('P_h1:')
    traced(B.p_head(g1, (), hp), 2, 3)
    a('s_branch P_s1')
    a('P_h0w:')
    a('s_waitcnt vmcnt(0)')
    stamp(a, cfg, 8)
    a('P_h0:')
    for l in B.p_head((), (), hp): a(l)
    a('P_s1:')
    tail = B.p_tail(0, cfg.pv if cfg.pp else None) if not cfg.pk else B.p_tail_pk(cfg.pv if cfg.pp else None, bool(cfg.pk & 1), bool(cfg.pk & 2))
    if cfg.st2: tail = B.p_tail2(cfg.pv if cfg.pp else None, cfg.st2 == 1)
    traced(tail[:-1], 5, 9)
    if not cfg.st2: a(f'v_add_u32 v{FLV}, 1, v{FLV}')
    a('s_waitcnt lgkmcnt(0)')
    a(f'ds_write_b32 v{FLA}, v{FLV}')
    a(f's_setpc_b64 {RET}')

def gen_consumer(a, cfg):
    sH = 's40'
    t0, t1 = 's41', 's42'
    RET = 's[60:61]'
    sR = 's43'
    LIN, REC, WVA, XA = 2, 3, 8, 9
    CA0, CA1, CT0, CT1 = B.C.CA0, B.C.CA1, B.C.CT0, B.C.CT1
    PART = 12
    AP, U, LA, OP = B.C.AP, B.C.U, B.C.LA, B.C.OP
    WV = B.C.WV
    QB, WK, ME, QT, QP, TA, QF = 96, 108, 132, 156, 164, 168, 16
    T = 240
    T2 = 248
    a('L_cons:')
    if cfg.cearly: a(f's_setprio {cfg.cpp}')
    a('s_memrealtime s[58:59]')
    code_prefetch(a, 'L_pc', 0, -256)
    a(f's_sub_u32 {sH}, s3, 4')
    a(f'v_lshlrev_b32 v{LIN}, 4, v1')
    a(f's_mul_i32 s48, {sH}, 4608')
    a(f'v_add_u32 v{PART}, s48, v{LIN}')
    a(f's_min_u32 {t0}, {sH}, 2')
    a(f's_lshl_b32 s46, {sH}, 2')
    a(f's_add_u32 s46, s46, {t0}')
    a(f's_lshl_b32 s46, s46, 10')
    a(f'v_add_u32 v13, s46, v{LIN}')
    a(f's_lshl_b32 s54, {t0}, 10')
    a(f'v_add_u32 v10, s54, v{LIN}')
    a('s_lshr_b32 s50, s2, 3\ns_and_b32 s50, s50, 31\ns_mul_i32 s50, s50, 640')
    a(f'v_lshlrev_b32 v14, 7, v1')
    a(f'v_add_u32 v14, s50, v14')
    a(f'v_min_u32 v14, 18428, v14')
    N, G, RHO, KAP = T+4, T+5, T+6, T+7
    a(f'v_and_b32 v{N}, 15, v1')
    a(f'v_lshrrev_b32 v{G}, 4, v1')
    a(f'v_bfe_u32 v{RHO}, v1, 2, 2')
    a(f'v_and_b32 v{KAP}, 3, v1')
    a(f'v_mul_u32_u24 v{T+8}, 192, v{N}')
    a(f'v_lshl_add_u32 v{T+8}, v{G}, 4, v{T+8}')
    a(f'v_lshl_add_u32 v{T+9}, v{RHO}, 3, v{KAP}')
    a(f'v_mul_u32_u24 v{T+9}, 48, v{T+9}')
    a(f'v_lshl_add_u32 v{T+9}, v{G}, 4, v{T+9}')
    a(f'v_add_u32 v{T+9}, s48, v{T+9}')
    if cfg.spf & 6:
        a(f's_cmp_lt_u32 {sH}, 2')
        a(f's_cselect_b32 s96, 8, {sH}')
        a(f's_cselect_b32 s97, {sH}, 0')
        a('s_add_u32 s96, s96, s57')
        a('s_mul_i32 s98, s96, 43691')
        a('s_lshr_b32 s98, s98, 19')
        a('s_add_u32 s98, s98, s97')
        a('s_mul_i32 s98, s98, 73728')
        a('s_mul_i32 s96, s96, 6144')
        a('s_add_u32 s97, s96, s98')
    if cfg.bist: stamp(a, cfg, 12)
    a('s_waitcnt lgkmcnt(0)')
    if cfg.bist: stamp(a, cfg, 13)
    if cfg.spf & 6:
        a('s_add_u32 s98, s6, s97\ns_addc_u32 s99, s7, 0')
    a(f's_cmp_eq_u32 {sH}, 0\ns_cselect_b64 s[50:51], {SWV}, {SWQ}')
    a(f's_cmp_eq_u32 {sH}, 2\ns_cselect_b64 s[50:51], {SWK}, s[50:51]')
    a(f's_cmp_eq_u32 {sH}, 3\ns_cselect_b64 s[50:51], {SWM}, s[50:51]')
    a('s_mov_b64 exec, 31')
    a(f'global_load_dword v15, v14, s[50:51]')
    a('s_mov_b64 exec, -1')
    o2 = cfg.spn if cfg.spf & 1 else 0
    if cfg.spf & 2:
        for i in range(cfg.spn): a(f's_load_dword s96, s[98:99], {128*(o2+i)}')
        o2 += cfg.spn
    if cfg.bist: stamp(a, cfg, 11)
    a('s_barrier')
    if cfg.bist: stamp(a, cfg, 14)
    a(f's_lshl_b32 s50, s2, 2\ns_xor_b32 s50, s50, {sH}\ns_cmp_eq_u32 s50, 3')
    a('s_cbranch_scc1 C_mknonce')
    a('C_mknonce_d:')
    if cfg.fake: arrive(a, 5, 14, 15)
    def wk_loads():
        a('s_mov_b32 exec_hi, 0xffff')
        for s in range(3):
            for tt in range(2):
                a(f'global_load_dwordx4 {vr(WK+(2*s+tt)*4,4)}, v{T+9}, {SWK} offset:{1536*s+192*tt}')
        a('s_mov_b32 exec_hi, -1')
    if cfg.pro == 2:
        for s in range(3): a(f'global_load_dwordx4 {vr(QB+4*s,4)}, v{T+8}, {SQ} offset:{64*s}')
        dma_part(a, SWQ, WQ, PART, 's48')
        if cfg.wkpos == 2: arrive(a, 5, 14, 15)
        a('s_mov_b32 s57, s46')
        a(f'v_mov_b32 v{PART}, v13')
        for i in range(24): a(f'v_mov_b32 v{WK+i}, 0')
        wk_loads()
        if cfg.wkpos == 1: arrive(a, 5, 14, 15)
    elif not cfg.fake:
        M1S, M1L, M2S, M2L = (SWM, WM, SWQ, WQ) if cfg.mfirst else (SWQ, WQ, SWM, WM)
        a(f's_cmp_ge_u32 {sH}, 3')
        a('s_cbranch_scc1 C_noy')
        a(f's_add_u32 m0, s54, {QS}')
        a(f's_cmp_ge_u32 {sH}, 2')
        a(f'global_load_lds_dwordx4 v10, {SQ}')
        a('s_cbranch_scc1 C_noy')
        dma_extra(a, M1S, M1L, 13, 's46')
        a('C_noy:')
        dma_main(a, M1S, M1L, 13, 's46')
        if cfg.wkpos == 2: arrive(a, 5, 14, 15)
        a('s_mov_b32 s57, s46')
        a(f'v_mov_b32 v{PART}, v13')
        for i in range(24): a(f'v_mov_b32 v{WK+i}, 0')
    stamp(a, cfg, 1)
    a(f's_mov_b32 s36, s26\ns_mov_b32 s37, s27\ns_mov_b32 s38, {REC_BYTES}\ns_mov_b32 s39, 0x20000')
    a(f's_and_b32 s49, {sH}, 1\ns_lshl_b32 s55, s49, 1\ns_lshr_b32 s56, {sH}, 1\ns_add_u32 s55, s55, s56')
    a(f's_lshl_b32 {t0}, s2, 2\ns_add_u32 {t0}, {t0}, s55\ns_lshl_b32 {t0}, {t0}, 6')
    a(f'v_lshlrev_b32 v{REC}, 16, v{N}')
    a(f'v_lshl_add_u32 v{REC}, v{G}, 4, v{REC}')
    a(f'v_add_u32 v{REC}, {t0}, v{REC}')
    a('s_mul_i32 s52, s56, 12288')
    a(f'v_and_b32 v{T+10}, 31, v1')
    a(f'v_lshrrev_b32 v{T+11}, 5, v1')
    a(f'v_lshlrev_b32 v{T+12}, 1, v{N}')
    a(f'v_bfe_u32 v{T+12}, {SF}, v{T+12}, 2')
    a(f'v_xor_b32 v{T+12}, v{T+12}, v{T+11}')
    a(f'v_mul_u32_u24 v{T+13}, 192, v{T+10}')
    a(f'v_add_u32 v{T+13}, s52, v{T+13}')
    a(f'v_lshl_add_u32 v{CA0}, v{T+12}, 4, v{T+13}')
    a(f'v_xor_b32 v{T+12}, 2, v{T+12}')
    a(f'v_lshl_add_u32 v{CA1}, v{T+12}, 4, v{T+13}')
    a(f'v_lshl_add_u32 v{T+12}, v{T+11}, 2, v{RHO}')
    a(f'v_bfe_u32 v{T+13}, v1, 4, 1')
    a(f'v_lshrrev_b32 v{T+14}, 1, v{KAP}')
    a(f'v_lshl_add_u32 v{T+14}, v{T+13}, 1, v{T+14}')
    a(f'v_and_b32 v{T+15}, 1, v{KAP}')
    a(f'v_lshlrev_b32 v{T+15}, 3, v{T+15}')
    a(f'v_add_u32 v{T+15}, s52, v{T+15}')
    for sec, dst in ((0, CT0), (1, CT1)):
        if sec: a(f'v_add_u32 v{T+12}, 8, v{T+12}')
        a(f'v_lshlrev_b32 v{dst}, 1, v{T+12}')
        a(f'v_bfe_u32 v{dst}, {SF}, v{dst}, 2')
        a(f'v_xor_b32 v{dst}, v{dst}, v{T+14}')
        a(f'v_lshl_add_u32 v{dst}, v{dst}, 4, v{T+15}')
        a(f'v_mul_u32_u24 v10, 192, v{T+12}')
        a(f'v_add_u32 v{dst}, v{dst}, v10')
    a(f'v_lshl_add_u32 v{WVA}, v{T+11}, 2, v{RHO}')
    a(f'v_lshl_add_u32 v{WVA}, v{T+13}, 4, v{WVA}')
    a(f'v_mul_u32_u24 v{WVA}, 48, v{WVA}')
    a(f'v_lshl_add_u32 v{WVA}, v{KAP}, 3, v{WVA}')
    a(f'v_add_u32 v{WVA}, {WREG}, v{WVA}')
    a(f's_xor_b32 {t0}, s55, 1')
    a(f's_mul_i32 s53, {t0}, 4608')
    a(f's_mul_i32 s46, s55, 4608')
    a(f'v_mov_b32 v10, s46')
    a(f'v_mov_b32 v11, s53')
    a(f'v_cmp_eq_u32 vcc, 0, v{T+13}')
    a(f'v_mul_u32_u24 v{XA}, 192, v{N}')
    a(f'v_lshl_add_u32 v{XA}, v{T+11}, 4, v{XA}')
    a(f'v_cndmask_b32 v10, v11, v10, vcc')
    a(f'v_add_u32 v{XA}, v{XA}, v10')
    a(f'v_add_u32 v{XA}, {WQ}, v{XA}')
    a(f'v_lshl_add_u32 v{T+12}, v{G}, 3, v{RHO}')
    a(f'v_mul_u32_u24 v10, 48, v{T+12}')
    a(f'v_min_u32 v11, 2, v{KAP}')
    a(f'v_lshl_add_u32 v10, v11, 4, v10')
    a(f's_add_u32 {t0}, s48, {WQ}')
    a(f'v_add_u32 v10, {t0}, v10')
    a(f'v_add_u32 v13, {t0}, v{T+8}')
    a(f'v_add_u32 v{T+8}, {QS}, v{T+8}')
    a(f'v_mul_u32_u24 v11, 192, v{T+12}')
    a(f'v_lshl_add_u32 v11, v{KAP}, 4, v11')
    a(f'v_add_u32 v11, {WM}, v11')
    a(f'v_and_b32 v{T+12}, 1, v1')
    a(f'v_cmp_eq_u32 vcc, v{T+12}, v{T+13}')
    a(f'v_mov_b32 v{T+12}, 0x3f803f80')
    for i in range(52):
        a(f'v_mov_b32 v{U+i}, 0')
        if i == 4:
            for k in range(4): a(f'v_cndmask_b32 v{OP+k}, 0, v{T+12}, vcc')
    if cfg.fake:
        a(f's_add_u32 s58, s58, {cfg.fake}')
        a('C_fk:')
        a('s_memrealtime s[50:51]')
        a('s_waitcnt lgkmcnt(0)')
        a('s_sub_u32 s50, s50, s58')
        a('s_cmp_lt_i32 s50, 0')
        a('s_cbranch_scc1 C_fk')
        stamp(a, cfg, 2)
        a(f's_mul_i32 s50, {sH}, 3072')
        a(f's_add_u32 s50, s50, {8<<20}')
        a(f's_add_u32 s50, s26, s50\ns_addc_u32 s51, s27, 0')
        a(f's_add_u32 m0, s48, {WQ}')
        a('s_nop 0')
        for k in range(3): a(f'global_load_lds_dwordx4 v{LIN}, s[50:51] offset:{1024*k}' + (' sc1' if cfg.fsc else ''))
        a('s_waitcnt vmcnt(0)')
        stamp(a, cfg, 15)
        lds_sync(a, 3, 'C_sy3', 14, 15)
        a('s_cmp_eq_u32 s2, 999')
        a('s_cbranch_scc1 Z_sy3')
    else:
        def me_rd(sp, st): return [f'ds_read_b64_tr_b16 {vr(TA+(sp*6+st)*4+2*sec,2)}, v11 offset:{sp*6144+sec*768+(st>>1)*64+(st&1)*8}' for sec in range(2)]
        def q_rd(s, tt): return [f'ds_read_b64_tr_b16 {vr(QF+(tt*3+s)*4+2*sec,2)}, v10 offset:{s*1536+sec*192+tt*8}' for sec in range(2)]
        def q_mm(s, tt): return f'{MF16} {vr(QT+4*tt,4)}, {vr(QF+(tt*3+s)*4,4)}, {vr(QB+4*s,4)}, {"0" if s == 0 else vr(QT+4*tt,4)}'
        if cfg.pro == 2:
            if cfg.wkpos == 3: arrive(a, 5, 14, 15)
            if cfg.wmtok: await_cnt(a, 6, 'C_tk6', 14, 15, 4)
            if cfg.bist: stamp(a, cfg, 7)
            a(f's_cmp_ge_u32 {sH}, 2')
            a('s_cbranch_scc1 C_nox')
            dma_extra(a, SWM, WM, PART, 's57')
            a('C_nox:')
            dma_main(a, SWM, WM, PART, 's57')
            if cfg.wkpos == 0: arrive(a, 5, 14, 15)
            if cfg.bist: stamp(a, cfg, 6)
            a('s_waitcnt vmcnt(10)')
            if cfg.bist: stamp(a, cfg, 5)
            if cfg.cpp: a(f's_setprio {cfg.cpp}')
            stamp(a, cfg, 2)
            qseq = [(s, tt) for s in range(3) for tt in range(2)]
            L = [q_rd(*x) for x in qseq] + [q_mm(*x) for x in qseq]
            for l in autowait(flat(L), age=99): a(l)
            for i in range(8): a(f'v_add_f32 v{QT+i}, v{QT+i}, v{QT+i}')
            for i in range(4): a(f'v_cvt_pk_bf16_f32 v{QP+i}, v{QT+2*i}, v{QT+2*i+1}')
            a('s_waitcnt vmcnt(4)')
            for st in range(6):
                a(f'{MF16} {vr(ME+4*st,4)}, {vr(WK+4*st,4)}, {vr(QP,4)}, 0')
            if cfg.bist: stamp(a, cfg, 4)
            a('s_waitcnt vmcnt(0)')
            lds_sync(a, 1, 'C_sy1', 14, 15)
            if cfg.bist: stamp(a, cfg, 8)
            stamp(a, cfg, 15)
            seq = [(sp, st) for sp in range(3) for st in range(6)]
            L = [me_rd(*seq[i]) for i in range(7)]
            for i, (sp, st) in enumerate(seq):
                L.append(f'{MF16} {vr(ME+4*st,4)}, {vr(TA+(sp*6+st)*4,4)}, {vr(QB+4*sp,4)}, {vr(ME+4*st,4)}')
                if i + 7 < 18: L.append(me_rd(*seq[i+7]))
            for l in autowait(flat(L), age=99): a(l)
        else:
            if cfg.spf & 4:
                for i in range(min(cfg.spn, 48 - o2)): a(f's_load_dword s96, s[98:99], {128*(o2+i)}')
            if cfg.bist: stamp(a, cfg, 7)
            if cfg.wkpos == 3: arrive(a, 5, 14, 15)
            a(f's_cmp_ge_u32 {sH}, 2')
            a('s_cbranch_scc1 C_nox')
            dma_extra(a, M2S, M2L, PART, 's57')
            a('C_nox:')
            dma_main(a, M2S, M2L, PART, 's57')
            if cfg.wkpos == 1: arrive(a, 5, 14, 15)
            a('s_mov_b32 exec_hi, 0xffff')
            for s in range(3):
                for tt in range(2):
                    a(f'global_load_dwordx4 {vr(WK+(2*s+tt)*4,4)}, v{T+9}, {SWK} offset:{1536*s+192*tt}')
            a('s_mov_b32 exec_hi, -1')
            if cfg.wkpos == 0: arrive(a, 5, 14, 15)
            if cfg.bist: stamp(a, cfg, 6)
            a('s_waitcnt vmcnt(6)')
            if cfg.bist: stamp(a, cfg, 5)
            lds_sync(a, 1, 'C_sy1', 14, 15)
            if cfg.cpp: a(f's_setprio {cfg.cpp}')
            stamp(a, cfg, 2)
            def me_rd(sp, st): return [f'ds_read_b64_tr_b16 {vr(TA+(sp*6+st)*4+2*sec,2)}, v11 offset:{sp*6144+sec*768+(st>>1)*64+(st&1)*8}' for sec in range(2)]
            def q_rd(s, tt): return [f'ds_read_b64_tr_b16 {vr(QF+(tt*3+s)*4+2*sec,2)}, v10 offset:{s*1536+sec*192+tt*8}' for sec in range(2)]
            def q_mm(s, tt): return f'{MF16} {vr(QT+4*tt,4)}, {vr(QF+(tt*3+s)*4,4)}, {vr(QB+4*s,4)}, {"0" if s == 0 else vr(QT+4*tt,4)}'
            def me_mm(sp, st): return f'{MF16} {vr(ME+4*st,4)}, {vr(TA+(sp*6+st)*4,4)}, {vr(QB+4*sp,4)}, {"0" if sp == 0 else vr(ME+4*st,4)}'
            seq = [(sp, st) for sp in range(3) for st in range(6)]
            qseq = [(s, tt) for s in range(3) for tt in range(2)]
            qb = [f'ds_read_b128 {vr(QB+4*s,4)}, v{T+8} offset:{64*s}' for s in range(3)]
            L = [qb[0], q_rd(0,0), q_rd(0,1), qb[1], q_rd(1,0), q_rd(1,1), qb[2], q_rd(2,0), q_rd(2,1)]
            for i, (s_, tt) in enumerate(qseq):
                L.append(q_mm(s_, tt)); L.append(me_rd(*seq[i]))
            post = [f'v_add_f32 v{QT+i}, v{QT+i}, v{QT+i}' for i in range(8)] + [f'v_cvt_pk_bf16_f32 v{QP+i}, v{QT+2*i}, v{QT+2*i+1}' for i in range(4)]
            for i, (sp, st) in enumerate(seq):
                L.append(me_mm(sp, st))
                if i + 6 < 18: L.append(me_rd(*seq[i+6]))
                if i >= 3: L.append(post[:1]); del post[:1]
            L.append(post)
            for l in autowait(flat(L), age=99): a(l)
            if cfg.bist: stamp(a, cfg, 4)
            a('s_waitcnt vmcnt(0)')
            if cfg.bist: stamp(a, cfg, 8)
            stamp(a, cfg, 15)
            for st in range(6):
                a(f'{MF16} {vr(ME+4*st,4)}, {vr(WK+4*st,4)}, {vr(QP,4)}, {vr(ME+4*st,4)}')
        sc = 96 ** -0.5 * math.log2(math.e)
        a(f's_mov_b32 {t0}, {f32(sc)}')
        for s in range(3):
            for i in range(8): a(f'v_mul_f32 v{ME+8*s+i}, {t0}, v{ME+8*s+i}')
            for i in range(4): a(f'v_cvt_pk_bf16_f32 v{ME+8*s+i}, v{ME+8*s+2*i}, v{ME+8*s+2*i+1}')
            a(f'ds_write_b128 v13, {vr(ME+8*s,4)} offset:{64*s}')
            a(f'{MF16} {vr(QT,4)}, {vr(ME+8*s,4)}, {vr(ME+8*s,4)}, {"0" if s == 0 else vr(QT,4)}')
        a(f's_mov_b32 {t0}, {f32(THR)}')
        a(f'v_mov_b32 v14, {CNT + 4*3}')
        a(f'v_max3_f32 v{QT}, v{QT}, v{QT+1}, v{QT+2}')
        a(f'v_max_f32 v{QT}, v{QT}, v{QT+3}')
        a(f'v_cmp_nge_f32 vcc, {t0}, v{QT}')
        a('s_cmp_eq_u64 vcc, 0')
        a('s_cselect_b32 s51, 1, 0x101')
        a('v_mov_b32 v15, s51')
        a('s_waitcnt lgkmcnt(0)')
        a('s_mov_b64 exec, 1')
        a('ds_add_rtn_u32 v15, v14, v15')
        a('s_mov_b64 exec, -1')
        a('s_waitcnt lgkmcnt(0)')
        a('v_readfirstlane_b32 s50, v15')
        a('s_add_u32 s50, s50, s51')
        a('s_cmp_eq_u32 s50, 4')
        a('s_cbranch_scc1 C_sy3_ok')
        await_cnt(a, 3, 'C_sy3', 14, 15, 4, setaddr=False)
        a('s_cmp_eq_u32 s50, 4')
        a('s_cbranch_scc0 Z_sy3')
    if not cfg.fake: a('C_sy3_ok:')
    stamp(a, cfg, 3)
    cons_main(a, cfg, False)
    a('C_mknonce:')
    a('s_or_b32 s50, s58, 1')
    a('v_mov_b32 v20, s50\nv_mov_b32 v21, 0\nv_mov_b32 v22, 0')
    a('s_mov_b64 exec, 1')
    a(f'global_atomic_cmpswap v22, v[20:21], {SDBG} sc1')
    a('s_mov_b64 exec, -1')
    a('s_branch C_mknonce_d')
    nonce_slow(a, 'C_getnonce', 'C_getnonce_d', T2)

def slow_rescale(NEW):
    MX = 160; U, LA = B.C.U, B.C.LA
    L = [f'v_max_f32 v{NEW}, v{NEW}, v{MX}',
         f'v_sub_f32 v{MX+4}, v{MX}, v{NEW}',
         f'v_exp_f32 v{MX+4}, v{MX+4}',
         f'v_mov_b32 v{MX}, v{NEW}', 's_nop 1',
         f'v_mov_b32 v{MX+5}, v{MX+4}', f'v_mov_b32 v{MX+6}, v{MX+4}', 's_nop 1',
         f'v_permlane16_swap_b32 v{MX+5}, v{MX+6}', 's_nop 1']
    L += [f'v_mul_f32 v{U+i}, v{U+i}, v{MX+4}' for i in range(48)]
    L += [f'v_mul_f32 v{LA+i}, v{LA+i}, v{MX+5+(i&1)}' for i in range(4)]
    return L

def slow_tile(off):
    MX = 160; S = B.C.S[0]
    tb = B.C.TB
    B.C.TB = off
    sv = (B.C.KA, B.C.KT, B.C.S, B.C.P)
    B.C.KA = [sv[0][0]] * 2; B.C.KT = [sv[1][0]] * 2; B.C.S = [S] * 2; B.C.P = [S] * 2
    L = [B.ka(1, s) for s in range(6)] + ['s_waitcnt lgkmcnt(0)']
    L += [B.kt(1, ks, t) for ks in range(2) for t in range(3)]
    L += [B.sm(1, s) for s in range(6)] + ['s_nop 15', 's_nop 15']
    L += [f'v_max3_f32 v{MX+1}, v{S}, v{S+1}, v{S+2}']
    L += [f'v_max3_f32 v{MX+1}, v{MX+1}, v{S+3+2*i}, v{S+4+2*i}' for i in range(6)]
    L += [f'v_max_f32 v{MX+1}, v{MX+1}, v{S+15}', f'v_mov_b32 v{MX+2}, v{MX+1}', 's_nop 1',
          f'v_permlane32_swap_b32 v{MX+1}, v{MX+2}', 's_nop 1', f'v_max_f32 v{MX+1}, v{MX+1}, v{MX+2}']
    L += slow_rescale(MX+1)
    L += [f'v_sub_f32 v{S+i}, v{S+i}, v{MX}' for i in range(16)]
    L += [B.ex(1, i) for i in range(16)] + ['s_nop 1'] + [B.cv(1, i) for i in range(8)]
    L += ['s_waitcnt lgkmcnt(0)', 's_nop 1']
    L += [B.pv(1, ks, t) for ks in range(2) for t in range(4)] + ['s_nop 15', 's_nop 15']
    B.C.TB = tb
    B.C.KA, B.C.KT, B.C.S, B.C.P = sv
    return flat(L)

def cons_main(a, cfg, slow):
    sH = 's40'
    t0, t1 = 's41', 's42'
    RET = 's[60:61]'
    sR = 's43'
    LIN, REC, WVA, XA = 2, 3, 8, 9
    CA0, CA1, CT0, CT1 = B.C.CA0, B.C.CA1, B.C.CT0, B.C.CT1
    AP, U, LA, OP = B.C.AP, B.C.U, B.C.LA, B.C.OP
    WV = B.C.WV
    T2 = 248
    Z = 'Z' if slow else 'C'
    OOL = []
    MX = 160
    if slow:
        xv = cfg.xv; cfg = Cfg(); cfg.stamps = False; cfg.xv = xv
        a('Z_sy3:')
        a('ds_read_b32 v15, v14')
        a('s_waitcnt lgkmcnt(0)')
        a('v_readfirstlane_b32 s50, v15')
        a('s_and_b32 s50, s50, 0xff')
        a('s_cmp_lt_u32 s50, 4')
        a('s_cbranch_scc1 Z_sy3')
        a(f'v_mov_b32 v{MX}, {f32(-3e38)}')
    WA0, FLA, XO, XP, FO, FP, ONE, MRA, THRV = 12, 13, 9, 11, 8, 0, 251, 254, 255
    XLW, XLR = 224, 225
    for s in range(6): a(f'ds_read_b128 {vr(AP+4*s,4)}, v{XA} offset:{32*s}')
    a(f's_lshl_b32 {t0}, s56, 3\ns_add_u32 {t0}, {t0}, {PF}')
    a(f'v_mov_b32 v10, {t0}')
    a(f's_mov_b32 {sR}, 1')
    a('s_waitcnt lgkmcnt(0)')
    arrive(a, 4, 14, 15)
    a(f'v_add_u32 v{WA0}, s46, v{WVA}')
    a(f's_mul_i32 {t0}, {sH}, {XST}')
    a(f's_xor_b32 {t1}, {sH}, 2')
    a(f's_mul_i32 {t1}, {t1}, {XST}')
    a(f's_add_u32 {t0}, {t0}, {XCH}')
    a(f's_add_u32 {t1}, {t1}, {XCH+3072}')
    a(f'v_add_u32 v{XO}, {t0}, v{LIN}')
    a(f'v_lshlrev_b32 v{XLR}, 2, v1')
    a(f'v_add_u32 v{XLW}, {t1}, v{XLR}')
    a(f'v_add_u32 v{XLR}, {t0}, v{XLR}')
    a(f's_mov_b32 s52, 0xffff0000\ns_mov_b32 s53, 0xffff0000')
    if cfg.xv == 0:
        a(f'v_add_u32 v{XP}, {t1}, v{LIN}')
    else:
        a(f'v_mov_b32 v{XP}, {t0}')
        a(f'v_mov_b32 v14, {t1}')
        a(f'v_and_b32 v15, 15, v1')
        a(f'v_cndmask_b32 v{XP}, v{XP}, v14, s[52:53]')
        a(f'v_lshl_add_u32 v{XP}, v15, 4, v{XP}')
        a(f'v_lshrrev_b32 v15, 5, v1')
        a(f'v_lshl_add_u32 v{XP}, v15, 9, v{XP}')
    a(f'v_and_b32 v{FLA}, 3, v1')
    a(f's_xor_b32 {t0}, s56, 1')
    a(f'v_cmp_eq_u32 vcc, {t0}, v{FLA}')
    a(f'v_lshlrev_b32 v{FLA}, 2, v{FLA}')
    a(f'v_add_u32 v{FLA}, {PF}, v{FLA}')
    a(f'v_cndmask_b32 v{THRV}, 5, 4, vcc')
    a(f's_lshl_b32 {t0}, {sH}, 2')
    a(f's_add_u32 {t0}, {t0}, {CNT+32}')
    a(f'v_mov_b32 v{FO}, {t0}')
    a(f'v_xor_b32 v{FP}, 8, v{FO}')
    a(f'v_mov_b32 v{ONE}, 1')
    a('s_mov_b32 s44, 0\ns_mov_b32 s45, -1')
    if slow:
        a(f's_lshl_b32 {t0}, s55, 8\ns_add_u32 {t0}, {t0}, s2\ns_lshl_b32 {t0}, {t0}, 3\ns_add_u32 {t0}, {t0}, {MREC}')
        a(f'v_and_b32 v{MRA}, 15, v1')
        a(f'v_lshlrev_b32 v{MRA}, 13, v{MRA}')
        a(f'v_add_u32 v{MRA}, {t0}, v{MRA}')
    wvr = [f'ds_read_b64_tr_b16 {vr(WV+(tt*3+t)*4+2*sec,2)}, v{WA0} offset:{t*1536+sec*384+tt*32}'
           for t in range(3) for tt in range(2) for sec in range(2)]
    if not slow:
        VF, THR, INC = T2+4, 226, 227
        sAdv, sStop = 's60', 's61'
        flag = f'ds_read_b32 v{VF}, v{FLA}'
        def waitloop(tag, go, prio=None):
            a(f'{tag}:')
            if cfg.wsl: a(f's_sleep {cfg.wsl}')
            a(flag)
            a('s_waitcnt lgkmcnt(0)')
            a(f'v_cmp_lt_u32 vcc, v{VF}, v{THR}')
            a(f's_cbranch_vccnz {tag}')
            for s_ in range(6): a(B.ka(0, s_))
            a(f's_branch {go}')
        def check(wait, go):
            a('s_waitcnt lgkmcnt(6)')
            a(f'v_cmp_lt_u32 vcc, v{VF}, v{THR}')
            a(f's_cbranch_vccnz {wait}')
            a(f'{go}:')
        class Lst:
            def __init__(s_): s_.l = []
            def __call__(s_, t): s_.l += [x.strip() for x in t.split('\n') if x.strip()]
        hook = Lst(); arrive(hook, 17, 14, 15); mk_tag(hook, T2+1)
        a(f'v_bfe_u32 v{INC}, v1, 1, 1')
        a(f'v_cmp_eq_u32 vcc, s56, v{INC}')
        a(f's_add_u32 {sStop}, s56, 3')
        a(f's_mov_b32 {sR}, 0')
        a(f'v_cndmask_b32 v{INC}, 0, 1, vcc')
        a(f'v_mov_b32 v{THR}, v{INC}')
        if cfg.cpp: a(f's_setprio {cfg.cmain}')
        a('s_branch C_wait')
        a('C_loop:')
        check('C_wait', 'C_go')
        if cfg.stamps and not cfg.b2:
            pass
        if cfg.b2 and not cfg.etr:
            for j in (11, 12, 13): a(f's_mov_b64 s[{STAMP0+2*j}:{STAMP0+2*j+1}], s[{STAMP0+2*j+2}:{STAMP0+2*j+3}]')
            a(f"{TM(cfg)} s[{STAMP0+28}:{STAMP0+29}]")
        top = [f's_add_u32 {sR}, {sR}, 1', f'v_add_u32 v{THR}, v{THR}, v{INC}', f's_cmp_eq_u32 {sR}, 4', f's_cselect_b32 {sAdv}, -1, 4', f's_mul_i32 {sAdv}, {sAdv}, 6144']
        advl = [f'v_add_u32 v{r}, {sAdv}, v{r}' for r in (CA0, CA1, CT0, CT1)]
        for l in B.cons2p(advl, flag, top): a(l)
        if cfg.stamps:
            for j in (5, 6): a(f's_mov_b64 s[{STAMP0+2*j}:{STAMP0+2*j+1}], s[{STAMP0+2*j+2}:{STAMP0+2*j+3}]')
            stamp(a, cfg, 7)
        a(f's_cmp_eq_u32 {sR}, {sStop}')
        a('s_cbranch_scc1 C_done')
        a(f's_load_dword s47, {SDBG}, 0')
        a('s_branch C_loop')
        waitloop('C_wait', 'C_go')
        a('C_done:')
        a('s_cmp_eq_u32 s47, 0')
        a('s_cbranch_scc1 C_getnonce')
        a('C_getnonce_d:')
        def specloop(tag, go):
            a(f'{tag}:')
            a(flag)
            for s_ in range(6): a(B.ka(0, s_))
            a('s_waitcnt lgkmcnt(6)')
            a(f'v_cmp_lt_u32 vcc, v{VF}, v{THR}')
            a(f's_cbranch_vccz {go}')
            a(f's_branch {tag}')
        if cfg.uni:
            a(f'v_mov_b32 v{THR}, v{THRV}')
            stamp(a, cfg, 4)
            check('C_w13', 'C_g13')
            stamp(a, cfg, 8)
            a('s_setprio 3')
            for l in B.cons2x(wvr, 24576, True, hook.l): a(l)
            OOL.append(lambda: (specloop if cfg.spec else waitloop)('C_w13', 'C_g13'))
        else:
            a('s_cmp_eq_u32 s56, 0')
            a('s_cbranch_scc1 C_r3s')
            a(f'v_mov_b32 v{THR}, v{THRV}')
            stamp(a, cfg, 4)
            check('C_w13', 'C_g13')
            stamp(a, cfg, 8)
            a('s_setprio 3')
            for l in B.cons2x(wvr, 24576, True, hook.l): a(l)
            a('s_branch C_epi')
            (specloop if cfg.spec else waitloop)('C_w13', 'C_g13')
            waitloop('C_w12', 'C_g12')
            (specloop if cfg.spec else waitloop)('C_w16', 'C_g16')
            a('C_r3s:')
            check('C_w12', 'C_g12')
            adv = [f'v_add_u32 v{r}, 24576, v{r}' for r in (CA0, CA1, CT0, CT1)]
            for l in B.cons1p(adv, flag, hook.l + [f'v_mov_b32 v{THR}, v{THRV}']): a(l)
            stamp(a, cfg, 4)
            check('C_w16', 'C_g16')
            stamp(a, cfg, 8)
            a('s_setprio 3')
            for l in B.cons1x(wvr, True): a(l)
    if slow:
        if cfg.cpp: a(f's_setprio {cfg.cmain}')
        a(f's_call_b64 {RET}, {Z}_blk')
        stamp(a, cfg, 5)
        a(f's_load_dword s47, {SDBG}, 0')
        if cfg.c2 is not None: a(f's_setprio {cfg.c2}')
        a(f's_call_b64 {RET}, {Z}_blk')
        stamp(a, cfg, 6)
        arrive(a, 17, 14, 15)
        a('s_cmp_eq_u32 s47, 0')
        a(f's_cbranch_scc1 {Z}_getnonce')
        a(f'{Z}_getnonce_d:')
        mk_tag(a, T2+1)
        if cfg.c3 is not None: a(f's_setprio {cfg.c3}')
        a(f's_call_b64 {RET}, {Z}_blk')
        stamp(a, cfg, 7)
        if cfg.c4 is not None: a(f's_setprio {cfg.c4}')
        def lastwait(tag):
            a(f'{tag}:')
            a(f'ds_read_b32 v{T2+4}, v{FLA}')
            a('s_waitcnt lgkmcnt(0)')
            a(f'v_cmp_lt_u32 vcc, v{T2+4}, v{THRV}')
            a(f's_cbranch_vccnz {tag}')
            stamp(a, cfg, 8)
            a('s_setprio 3')
        a('s_cmp_eq_u32 s56, 0')
        a(f's_cbranch_scc1 {Z}_r3s')
        a(f's_call_b64 {RET}, {Z}_blk')
        a(f's_mov_b32 s51, {(13 - 18) * 6144}')
        for r in (CA0, CA1, CT0, CT1): a(f'v_add_u32 v{r}, s51, v{r}')
        stamp(a, cfg, 4)
        lastwait(f'{Z}_r4w1')
        if slow:
            for l in slow_tile(0) + slow_tile(24576) + autowait(wvr, final=0): a(l)
        else:
            for l in B.cons2x(wvr, 24576): a(l)
        a(f's_branch {Z}_epi')
        a(f'{Z}_r3s:')
        a(f'v_mov_b32 v10, {PF}')
        a(f'{Z}_r3w:')
        a(f'ds_read_b32 v{T2+4}, v10')
        a('s_waitcnt lgkmcnt(0)')
        a(f'v_readfirstlane_b32 s50, v{T2+4}')
        a('s_cmp_lt_u32 s50, 4')
        a(f's_cbranch_scc1 {Z}_r3w')
        adv = [f'v_add_u32 v{r}, 24576, v{r}' for r in (CA0, CA1, CT0, CT1)]
        for l in (slow_tile(0) + adv if slow else B.cons1(extra_mid=adv)): a(l)
        stamp(a, cfg, 4)
        lastwait(f'{Z}_r4w0')
        if slow:
            for l in slow_tile(0) + autowait(wvr, final=0): a(l)
        else:
            for l in B.cons1x(wvr): a(l)
    a(f'{Z}_epi:')
    stamp(a, cfg, 9)
    if slow:
        a(f's_lshl_b32 {t0}, {sH}, 7')
        a(f's_add_u32 {t0}, {t0}, {TOT}')
        a(f'v_and_b32 v{MX+1}, 31, v1')
        a(f'v_lshlrev_b32 v{MX+1}, 2, v{MX+1}')
        a(f'v_add_u32 v{MX+1}, {t0}, v{MX+1}')
        a(f'ds_write_b32 v{MX+1}, v{MX}')
        a('s_waitcnt lgkmcnt(0)')
        lds_sync(a, 18, 'Z_sy18', MX+2, MX+3)
        a(f'v_xor_b32 v{MX+1}, {256+64}, v{MX+1}')
        a(f'ds_read_b32 v{MX+2}, v{MX+1}')
        a('s_waitcnt lgkmcnt(0)')
        for l in slow_rescale(MX+2): a(l)
        a(f'v_mov_b32 v{MX+1}, s47')
        a('s_mov_b32 exec_lo, 0\ns_mov_b32 exec_hi, 0xffff')
        a(f'buffer_store_dwordx2 {vr(MX,2)}, v{MRA}, {RWS}, 0 offen sc1')
        a('s_mov_b64 exec, -1')
    UP, CX, RX, RS = 96, 120, 128, 144
    def cvtU(t): return [f'v_cvt_pk_bf16_f32 v{UP+8*t+i}, v{U+16*t+2*i}, v{U+16*t+2*i+1}' for i in range(8)]
    def pj(src, tt, t, first=False):
        return f'{MF16} {vr(CX+4*tt,4)}, {vr(WV+(tt*3+t)*4,4)}, {vr(src,4)}, {"0" if first else vr(CX+4*tt,4)}'
    def snd(t, hi): return f'ds_write_b128 v{XP}, {vr(UP+8*t+4*hi,4)} offset:{1024*t+256*hi}'
    def own(t): return f'ds_read_b128 {vr(RS+4*t,4)}, v{XO} offset:{1024*t}'
    EN = T2
    enc = [f'v_cndmask_b32 v{EN}, v{LA}, v{LA+1}, s[44:45]', f'v_and_b32 v{EN+2}, s46, v{EN}', f'v_sub_f32 v{EN}, v{EN}, v{EN+2}',
           f'v_cndmask_b32 v{EN}, v{EN+2}, v{EN}, s[52:53]', f'v_bfi_b32 v{EN}, s46, v{EN}, v{T2+1}']
    c0, c1, c2 = cvtU(0), cvtU(1), cvtU(2)
    E = [enc, f'ds_write_b32 v{XLW}, v{EN} offset:3072',
         c0[:4], snd(0,0), c0[4:], snd(0,1), c1[:4], snd(1,0), own(0), c1[4:], snd(1,1), c2[:4], snd(2,0), own(1), c2[4:], snd(2,1),
         f'ds_write_b32 v{FP}, v{ONE}', own(2)]
    if cfg.xv == 0:
        def swp(t): return [f'v_permlane16_swap_b32 v{UP+8*t+i}, v{UP+8*t+4+i}' for i in range(4)]
        def snd(t, hi=0): return f'ds_write_b128 v{XP}, {vr(UP+8*t+4,4)} offset:{1024*t}'
        E = [enc, f'ds_write_b32 v{XLW}, v{EN} offset:3072',
             c0, c1[:2], swp(0), c1[2:4], snd(0), c1[4:8], c2[:2], swp(1), c2[2:4], snd(1), c2[4:8], 's_nop 0', swp(2), 's_nop 0', snd(2),
             f'ds_write_b32 v{FP}, v{ONE}']
    for l in flat(E):
        if cfg.etr and not slow and l == snd(0,0): a(f"{TM(cfg)} s[{STAMP0+22}:{STAMP0+23}]")
        if cfg.etr and not slow and l.startswith(f'ds_write_b32 v{FP}'): a(f"{TM(cfg)} s[{STAMP0+24}:{STAMP0+25}]")
        a(l)
    def poll():
        a(f'ds_read_b32 v15, v{FO}')
        for t in range(3): a(f'ds_read_b128 {vr(RX+4*t,4)}, v{XO} offset:{3072+1024*t}')
        a(f'ds_read_b32 v{RX+12}, v{XLR} offset:6144')
    if cfg.xv == 0:
        mm = [pj(UP,0,0,True), pj(UP,1,0,True), pj(UP+8,0,1), pj(UP+8,1,1), pj(UP+16,0,2), pj(UP+16,1,2)]
        for l in mm[:cfg.xd]: a(l)
        poll()
        for l in mm[cfg.xd:]: a(l)
    else:
        poll()
        a('s_waitcnt lgkmcnt(7)')
        a(pj(RS,0,0,True)); a(pj(RS,1,0,True)); a(pj(RS+4,0,1)); a(pj(RS+4,1,1))
        a('s_waitcnt lgkmcnt(5)')
        a(pj(RS+8,0,2)); a(pj(RS+8,1,2))
    if cfg.etr and not slow: a(f"{TM(cfg)} s[{STAMP0+26}:{STAMP0+27}]")
    a(f'{Z}_xw:')
    a('s_waitcnt lgkmcnt(4)')
    a('v_cmp_eq_u32 vcc, 0, v15')
    a(f's_cbranch_vccnz {Z}_xr')
    if cfg.etr and not slow: a(f"{TM(cfg)} s[{STAMP0+28}:{STAMP0+29}]")
    for t in range(3):
        a(f's_waitcnt lgkmcnt({3-t})')
        a(pj(RX+4*t,0,t)); a(pj(RX+4*t,1,t))
    a('s_waitcnt lgkmcnt(0)')
    a(f'v_cndmask_b32 v{EN}, v{EN}, v{RX+12}, s[44:45]')
    a(f'v_cvt_pk_bf16_f32 v{CX}, v{CX}, v{CX+1}')
    a(f'v_cvt_pk_bf16_f32 v{CX+1}, v{CX+2}, v{CX+3}')
    a(f'v_mov_b32 v{CX+3}, v{EN}')
    a(f'v_cvt_pk_bf16_f32 v{CX+2}, v{CX+4}, v{CX+5}')
    a(f'v_cvt_pk_bf16_f32 v{CX+4}, v{CX+6}, v{CX+7}')
    a(f'v_permlane32_swap_b32 v{CX+2}, v{CX+4}')
    a(f'buffer_store_dwordx4 {vr(CX,4)}, v{REC}, {RWS}, 0 offen sc1')
    stamp(a, cfg, 10)
    a('s_cmp_ge_u32 s2, 16')
    a('s_cbranch_scc1 L_exit')
    if slow:
        a(f'v_mov_b32 v14, {CNT + 4*7}')
        a(f'v_mov_b32 v15, 0x101')
        a('s_mov_b64 exec, 1')
        a('ds_add_u32 v14, v15')
        a('s_mov_b64 exec, -1')
        a('s_setprio 0')
        a('s_branch Z_comb')
        a('Z_xr:'); poll(); a('s_branch Z_xw')
        nonce_slow(a, 'Z_getnonce', 'Z_getnonce_d', T2)
        a('Z_wait:')
        a('s_sleep 1')
        a('Z_blk:')
        a(f'ds_read_b64 {vr(T2+4,2)}, v10')
        a('s_waitcnt lgkmcnt(0)')
        a(f'v_min_u32 v{T2+4}, v{T2+4}, v{T2+5}')
        a(f'v_readfirstlane_b32 s50, v{T2+4}')
        a(f's_cmp_lt_u32 s50, {sR}')
        a('s_cbranch_scc1 Z_wait')
        for l in slow_tile(0) + slow_tile(6144) + B.adv(): a(l)
        a(f's_add_u32 {sR}, {sR}, 1')
        a(f's_setpc_b64 {RET}')
        return
    arrive(a, 7, 14, 15)
    a('s_setprio 0')
    a('s_branch L_comb')
    a('C_xr:'); poll(); a('s_branch C_xw')
    for f in OOL: f()

def tag_halves(a):
    a('s_bfe_u32 s50, s47, 0xe0001')
    a('s_and_b32 s51, s47, 0x8000')
    a('s_or_b32 s50, s50, s51')
    a('s_lshr_b32 s46, s47, 15')
    a('s_and_b32 s46, s46, 0x8000')
    a('s_bfe_u32 s51, s47, 0xe0010')
    a('s_or_b32 s51, s51, s46')

def mk_tag(a, v):
    tag_halves(a)
    a('s_mov_b32 s46, 0xffff0000')
    a(f'v_mov_b32 v{v}, s50')
    a(f'v_mov_b32 v{v+1}, s51')
    a(f'v_cndmask_b32 v{v}, v{v}, v{v+1}, s[52:53]')

def comb_tag(a, v):
    tag_halves(a)
    a('s_mov_b32 s48, 0xaaaaaaaa\ns_mov_b32 s49, 0xaaaaaaaa')
    a(f'v_mov_b32 v{v}, s50')
    a(f'v_mov_b32 v{v+1}, s51')
    a(f'v_cndmask_b32 v{v}, v{v}, v{v+1}, s[48:49]')

def comb_q(a):
    a('v_and_b32 v6, 15, v1')
    a('s_lshl_b32 s43, s3, 4')
    a('v_add_u32 v6, s43, v6')
    a('v_min_u32 v6, 95, v6')
    a('s_mul_i32 s44, s2, 96')
    a('v_add_u32 v6, s44, v6')
    a('v_lshlrev_b32 v6, 1, v6')
    a(f'global_load_ushort v7, v6, {SQ}')

def comb_setup(a, withq=True):
    if withq: comb_q(a)
    a('v_lshl_add_u32 v29, v16, 3, v28')
    a('v_mul_u32_u24 v29, 192, v29')
    a('v_lshl_add_u32 v29, v19, 3, v29')
    a('s_lshl_b32 s45, s3, 5')
    a(f'v_add_u32 v14, s45, v29')
    a('v_and_b32 v28, 15, v1')
    a('v_mul_u32_u24 v15, 384, v16')
    a('v_lshl_add_u32 v15, v28, 4, v15')
    a('s_mul_i32 s45, s3, 1536')
    a(f's_add_u32 s45, s45, {FIN}')
    a(f'v_add_u32 v15, s45, v15')
    a('v_and_b32 v29, 7, v1')
    a('v_lshlrev_b32 v8, 2, v29')
    a('s_mov_b32 s45, 0x75316240')
    a('v_bfe_u32 v8, s45, v8, 4')
    a('v_add_u32 v8, 48, v8')
    a('v_cmp_lt_u32 vcc, 7, v28')
    a('v_lshlrev_b32 v17, 6, v16')
    a('v_cndmask_b32 v8, v29, v8, vcc')
    a('v_lshl_add_u32 v8, v8, 3, v17')
    a(f'v_add_u32 v8, {FIN}, v8')
    a('s_lshl_b32 s45, s3, 8')
    a(f's_add_u32 s45, s45, {CTX}')
    a('v_lshlrev_b32 v9, 2, v28')
    a('v_mad_u32_u24 v9, v16, 48, v9')
    a('v_mov_b32 v29, 192')
    a('v_cmp_lt_u32 vcc, 11, v28')
    a('v_lshlrev_b32 v10, 4, v16')
    a('v_add_u32 v10, s45, v10')
    a('v_cndmask_b32 v9, v9, v29, vcc')
    a('v_add_u32 v9, s45, v9')

def gen_slow_combine(a):
    D, ACC, T = 32, 20, 28
    MA, MW = 64, 96
    a('Z_comb:')
    a('v_lshlrev_b32 v2, 4, v1')
    a('s_lshl_b32 s40, s2, 16')
    a('s_lshl_b32 s41, s3, 13')
    a('s_add_u32 s40, s40, s41')
    a('s_add_u32 s41, s40, 4096')
    a('v_lshrrev_b32 v16, 4, v1')
    a('v_bfe_u32 v28, v1, 2, 2')
    a('v_and_b32 v19, 3, v1')
    a('v_lshlrev_b32 v3, 11, v28')
    a('v_lshl_add_u32 v4, v16, 3, v3')
    a('v_lshl_add_u32 v3, v16, 9, v3')
    a('v_lshl_add_u32 v3, v19, 7, v3')
    a(f's_lshl_b32 s42, s2, 13\ns_add_u32 s42, s42, {MREC}')
    a(f's_lshl_b32 s52, s3, 8\ns_add_u32 s52, s52, s42')
    comb_setup(a)
    comb_tag(a, 12)
    for i in range(8): a(f'v_mov_b32 v{ACC+i}, 0')
    a('s_branch Z_poll')
    a('Z_again:')
    a('s_sleep 4')
    a('Z_poll:')
    for i in range(8): a(f'buffer_load_dwordx4 {vr(D+4*i,4)}, v2, {RWS}, {"s40" if i<4 else "s41"} offen offset:{1024*(i%4)} sc1')
    for i in range(8): a(f'buffer_load_dwordx4 {vr(MA+4*i,4)}, v3, {RWS}, s42 offen offset:{16*i} sc1')
    for i in range(8): a(f'buffer_load_dwordx2 {vr(MW+2*i,2)}, v4, {RWS}, s52 offen offset:{32*i} sc1')
    a('s_waitcnt vmcnt(0)')
    a(f'v_mov_b32 v{T}, 0')
    for i in range(8):
        a(f'v_xor_b32 v{T+1}, v12, v{D+4*i+3}')
        a(f'v_and_b32 v{T+1}, 0xffff, v{T+1}')
        a(f'v_or_b32 v{T}, v{T}, v{T+1}')
    for t in [MA+2*i+1 for i in range(16)] + [MW+2*i+1 for i in range(8)]:
        a(f'v_xor_b32 v{T+1}, s47, v{t}')
        a(f'v_or_b32 v{T}, v{T}, v{T+1}')
    a(f'v_cmp_ne_u32 vcc, 0, v{T}')
    a('s_nop 4')
    a('s_cbranch_vccnz Z_again')
    M = MA
    for i in range(1, 16): a(f'v_max_f32 v{M}, v{M}, v{MA+2*i}')
    a('s_nop 1')
    a(f'v_mov_b32_dpp v{M+1}, v{M} quad_perm:[1,0,3,2] row_mask:0xf bank_mask:0xf')
    a(f'v_max_f32 v{M}, v{M}, v{M+1}')
    a('s_nop 1')
    a(f'v_mov_b32_dpp v{M+1}, v{M} quad_perm:[2,3,0,1] row_mask:0xf bank_mask:0xf')
    a(f'v_max_f32 v{M}, v{M}, v{M+1}')
    def allrows(r, op):
        for sw in ('v_permlane16_swap_b32', 'v_permlane32_swap_b32'):
            a(f'v_mov_b32 v{T}, v{r}')
            a('s_nop 1')
            a(f'{sw} v{r}, v{T}')
            a('s_nop 1')
            a(f'{op} v{r}, v{r}, v{T}')
    allrows(M, 'v_max_f32')
    a('s_mov_b32 s46, 0xffff0000')
    for i in range(8):
        a(f'v_sub_f32 v{MW+2*i}, v{MW+2*i}, v{M}')
        a(f'v_exp_f32 v{MW+2*i}, v{MW+2*i}')
        a('s_nop 1')
        for j in range(4):
            a(f'v_lshlrev_b32 v{T}, 16, v{D+4*i+j}')
            a(f'v_and_b32 v{T+1}, s46, v{D+4*i+j}')
            if j < 3: a(f'v_fmac_f32 v{ACC+2*j}, v{T}, v{MW+2*i}')
            a(f'v_fmac_f32 v{ACC+2*j+1}, v{T+1}, v{MW+2*i}')
    for j in range(8): allrows(ACC+j, 'v_add_f32')
    a('v_cmp_eq_u32 vcc, 0, v16')
    a('s_nop 1')
    for j in range(4): a(f'v_cndmask_b32 v{ACC+j}, v{ACC+4+j}, v{ACC+j}, vcc')
    a('s_nop 1')
    a('s_branch K_red')

def gen_combine(a, cfg):
    D, ACC, T = 128, 20, 28
    NS = 9
    a('L_comb:')
    if cfg.trp: a('s_branch L_exit')
    a('v_lshlrev_b32 v2, 4, v1')
    a('s_lshl_b32 s40, s2, 16')
    a('s_lshl_b32 s41, s3, 13')
    a('s_add_u32 s40, s40, s41')
    a('s_add_u32 s41, s40, 4096')
    def load(i):
        a(f'buffer_load_dwordx4 {vr(D+4*i,4)}, v2, {RWS}, {"s40" if i<4 else "s41"} offen offset:{1024*(i%4)} sc1' + (' nt' if cfg.pollnt else ''))
    PM = lambda i: f's[{6+2*i}:{7+2*i}]'
    SEL = 24
    stamp(a, cfg, 11)
    if cfg.ktrace:
        for j in list(range(1, 8)) + [12]: a(f's_mov_b64 s[{STAMP0+2*j}:{STAMP0+2*j+1}], 0')
    if cfg.roll or cfg.dyn: comb_q(a)
    for i in range(8): load(i)
    a('v_lshrrev_b32 v16, 4, v1')
    a('v_bfe_u32 v28, v1, 2, 2')
    a('v_and_b32 v19, 3, v1')
    comb_setup(a, not (cfg.roll or cfg.dyn))
    comb_tag(a, 12)
    a('v_and_b32 v29, 1, v1')
    a('v_lshlrev_b32 v29, 4, v29')
    a('v_mov_b32 v17, 0x3f80')
    a('v_lshlrev_b32 v29, v29, v17')
    a('v_lshrrev_b32 v28, 1, v28')
    for r in range(4):
        a(f'v_cmp_eq_u32 vcc, {r}, v28')
        a(f'v_cndmask_b32 v{SEL+r}, 0, v29, vcc')
    if cfg.dyn:
        K = cfg.dyn
        J = lambda k: f's{6+k}'
        for i in range(4): a(f'v_mov_b32 v{ACC+i}, 0')
        a('s_mov_b32 s42, 0xff')
        a('s_mov_b32 s43, 7')
        def pick(k):
            a('s_lshl_b32 s44, -2, s43')
            a('s_and_b32 s44, s44, s42')
            a('s_cselect_b32 s44, s44, s42')
            a('s_ff1_i32_b32 s43, s44')
            a('s_lshl_b32 s44, s43, 10')
            a('s_add_u32 s44, s44, s40')
            a(f's_mov_b32 {J(k)}, s43')
            a(f'buffer_load_dwordx4 {vr(D+4*k,4)}, v2, {RWS}, s44 offen sc1')
        for i in range(8):
            a(f's_waitcnt vmcnt({7-i+min(i,K)})')
            if i == 0: stamp(a, cfg, 12)
            a(f'v_cmp_ne_u16 vcc, v12, v{D+4*i+3}')
            a(f's_cbranch_vccnz K_f{i}')
            a(f'{MF16} {vr(ACC,4)}, {vr(SEL,4)}, {vr(D+4*i,4)}, {vr(ACC,4)}')
            a(f's_bitset0_b32 s42, {i}')
            if i == 7:
                a('s_cmp_eq_u32 s42, 0')
                a('s_cbranch_scc1 K_red0')
            a(f'K_f{i}:')
            if i < K: pick(i)
        a('K_chk:')
        for k in range(K):
            a(f's_waitcnt vmcnt({K-1})')
            if cfg.ktrace and k == 0:
                a('s_waitcnt lgkmcnt(0)')
                for j in range(1, 7): a(f's_mov_b64 s[{STAMP0+2*j}:{STAMP0+2*j+1}], s[{STAMP0+2*j+2}:{STAMP0+2*j+3}]')
                a(f's_mov_b64 s[{STAMP0+14}:{STAMP0+15}], s[{STAMP0+24}:{STAMP0+25}]')
                stamp(a, cfg, 12)
            a(f'v_cmp_ne_u16 vcc, v12, v{D+4*k+3}')
            a(f's_cbranch_vccnz K_n{k}')
            a(f's_bitcmp0_b32 s42, {J(k)}')
            a(f's_cbranch_scc1 K_n{k}')
            a(f'{MF16} {vr(ACC,4)}, {vr(SEL,4)}, {vr(D+4*k,4)}, {vr(ACC,4)}')
            a(f's_bitset0_b32 s42, {J(k)}')
            a('s_cmp_eq_u32 s42, 0')
            a('s_cbranch_scc1 K_red0')
            a(f'K_n{k}:')
            pick(k)
        a('s_branch K_chk')
        a('K_red0:')
        a('s_nop 4')
    elif cfg.roll:
        for i in range(4): a(f'v_mov_b32 v{ACC+i}, 0')
        a('s_mov_b32 s42, 0xff')
        a('K_chk:')
        for i in range(8):
            a('s_waitcnt vmcnt(7)')
            if cfg.ktrace and i == 0:
                a('s_waitcnt lgkmcnt(0)')
                for j in range(1, 7): a(f's_mov_b64 s[{STAMP0+2*j}:{STAMP0+2*j+1}], s[{STAMP0+2*j+2}:{STAMP0+2*j+3}]')
                a(f's_mov_b64 s[{STAMP0+14}:{STAMP0+15}], s[{STAMP0+24}:{STAMP0+25}]')
            if i == 0: stamp(a, cfg, 12)
            a(f'v_cmp_ne_u16 vcc, v12, v{D+4*i+3}')
            a('s_cmp_lg_u64 vcc, 0')
            a('s_cselect_b64 exec, -1, 0')
            load(i)
            a('s_mov_b64 exec, -1')
            a(f's_cbranch_scc1 K_n{i}')
            a(f's_bitcmp0_b32 s42, {i}')
            a(f's_cbranch_scc1 K_n{i}')
            a(f'{MF16} {vr(ACC,4)}, {vr(SEL,4)}, {vr(D+4*i,4)}, {vr(ACC,4)}')
            a(f's_bitset0_b32 s42, {i}')
            a('s_cmp_eq_u32 s42, 0')
            a('s_cbranch_scc1 K_red0')
            a(f'K_n{i}:')
        a('s_branch K_chk')
        a('K_red0:')
        a('s_nop 4')
    else:
        a('K_chk:')
        a('s_waitcnt vmcnt(0)')
        if cfg.ktrace:
            a('s_waitcnt lgkmcnt(0)')
            for j in range(1, 7): a(f's_mov_b64 s[{STAMP0+2*j}:{STAMP0+2*j+1}], s[{STAMP0+2*j+2}:{STAMP0+2*j+3}]')
            a(f's_mov_b64 s[{STAMP0+14}:{STAMP0+15}], s[{STAMP0+24}:{STAMP0+25}]')
        stamp(a, cfg, 12)
        for i in range(8):
            a(f'v_cmp_ne_u16 {PM(i)}, v12, v{D+4*i+3}')
            a(f'{MF16} {vr(ACC,4)}, {vr(SEL,4)}, {vr(D+4*i,4)}, {"0" if i == 0 else vr(ACC,4)}')
            if i == 2: a(f's_or_b64 s[50:51], {PM(0)}, {PM(1)}')
            if i > 2: a(f's_or_b64 s[50:51], s[50:51], {PM(i-1)}')
        a(f's_or_b64 s[50:51], s[50:51], {PM(7)}')
        a('s_cbranch_scc1 K_retry')
    a('K_red:')
    stamp(a, cfg, 13)
    a(f'ds_write_b128 v15, {vr(ACC,4)}')
    Bq, C = 40, 56
    a('s_waitcnt lgkmcnt(0)')
    a('s_barrier')
    if cfg.fine: stamp(a, cfg, 15)
    a('s_cmp_ge_u32 s3, 6')
    a('s_cbranch_scc1 L_exit6')
    for k in range(4): a(f'ds_read2st64_b64 {vr(C+4*k,4)}, v8 offset0:{6*k} offset1:{6*k+3}')
    for s in range(3):
        for sec in range(2):
            a(f'ds_read_b64_tr_b16 {vr(Bq+4*s+2*sec,2)}, v14 offset:{s*6144+sec*768}')
    a('v_lshlrev_b32 v7, 16, v7')
    a('s_waitcnt lgkmcnt(8)')
    for i in range(4): a(f'v_add_f32 v{C+i}, v{C+i}, v{C+4+i}')
    a('s_waitcnt lgkmcnt(6)')
    for i in range(4): a(f'v_add_f32 v{C+8+i}, v{C+8+i}, v{C+12+i}')
    for i in (0, 2, 1, 3): a(f'v_add_f32 v{C+i}, v{C+i}, v{C+8+i}')
    a(f'v_add_f32 v{C}, v{C}, v{C+2}')
    a(f'v_add_f32 v{C+1}, v{C+1}, v{C+3}')
    a(f'v_add_f32_dpp v{C+2}, v{C+1}, v{C+1} quad_perm:[1,0,3,2] row_mask:0xf bank_mask:0xf')
    a(f'v_add_f32_dpp v{C+2}, v{C+2}, v{C+2} quad_perm:[2,3,0,1] row_mask:0xf bank_mask:0xf')
    a(f'v_mov_b32_dpp v{C+2}, v{C+2} row_newbcast:12 row_mask:0xf bank_mask:0xf')
    a(f'v_rcp_f32 v{C+2}, v{C+2}')
    a(f'v_mul_f32 v{C}, v{C}, v{C+2}')
    a(f'v_mul_f32 v{C+1}, v{C+1}, v{C+2}')
    a(f'v_cvt_pk_bf16_f32 v{C}, v{C}, v{C+1}')
    a(f'ds_write_b32 v9, v{C}')
    for s in range(3): a(f'ds_read_b128 {vr(C+4+4*s,4)}, v10 offset:{64*s}')
    for s in range(3):
        c = '0' if s == 0 else 'v[88:91]'
        a(f's_waitcnt lgkmcnt({2-s})')
        a(f'{MF16} v[88:91], {vr(C+4+4*s,4)}, {vr(Bq+4*s,4)}, {c}')
    a('v_cvt_pk_bf16_f32 v88, v88, v88')
    a('v_and_b32 v88, 0xffff0000, v88')
    a('v_add_f32 v88, v88, v7')
    a('v_cvt_pk_bf16_f32 v88, v88, v88')
    a('s_mov_b64 exec, 0xffff')
    a('s_waitcnt vmcnt(0)')
    a(f'global_store_short v6, v88, {SOUT}')
    a('s_mov_b64 exec, -1')
    stamp(a, cfg, 14)
    if cfg.diag:
        a('s_memrealtime s[98:99]')
        a('s_waitcnt lgkmcnt(0)')
        a('v_mov_b32 v20, s98\nv_mov_b32 v21, 36')
        a('s_mov_b64 exec, 1')
        a(f'global_atomic_umax v21, v20, {SDBG}')
        a('s_mov_b64 exec, -1')
    a('L_exit:')
    if cfg.diag:
        a('s_cmp_eq_u32 s3, 4')
        a('s_cbranch_scc0 L_end')
        a('s_memrealtime s[98:99]')
        a('s_getreg_b32 s50, hwreg(HW_REG_XCC_ID, 0, 4)')
        a('s_and_b32 s50, s50, 7')
        a('s_lshl_b32 s50, s50, 2')
        a('s_add_u32 s50, s50, 4')
        a('s_waitcnt lgkmcnt(0)')
        a('v_mov_b32 v20, s96\nv_mov_b32 v21, s50\nv_mov_b32 v22, s98\nv_mov_b32 v23, 40')
        a('s_mov_b64 exec, 1')
        a(f'global_store_dword v21, v20, {SDBG}')
        a('s_cmp_lt_u32 s2, 16')
        a('s_cbranch_scc1 L_end')
        a(f'global_atomic_umax v23, v22, {SDBG}')
        a('s_mov_b64 exec, -1')
    stamp_flush(a, cfg)
    a('L_end:')
    a('s_endpgm')
    a('L_exit6:')
    a('s_waitcnt vmcnt(0)')
    a('s_branch L_exit')
    if cfg.roll or cfg.dyn: return
    a('K_retry:')
    if cfg.ksleep: a(f's_sleep {cfg.ksleep}')
    for i in range(8):
        a(f's_cmp_lg_u64 {PM(i)}, 0')
        a('s_cselect_b64 exec, -1, 0')
        load(i)
    a('s_mov_b64 exec, -1')
    a('s_branch K_chk')

def build(cfg):
    a = Asm()
    a.raw(f'; @launch grid=(256,1,1) block=(512,1,1) lds={LDS_BYTES}')
    a.raw('.amdgcn_target "amdgcn-amd-amdhsa--gfx950"')
    a.raw('.text')
    a.raw(f'.globl {KNAME}'); a.raw('.p2align 8'); a.raw(f'.type {KNAME},@function'); a.raw(f'{KNAME}:')
    gen_entry(a, cfg)
    gen_producer(a, cfg)
    gen_consumer(a, cfg)
    gen_combine(a, cfg)
    a.raw('L_codeend:')
    cons_main(a, cfg, True)
    gen_slow_combine(a)
    txt = a.finish(verbose=True)
    txt = txt.replace('    ; @launch', '; @launch')
    txt += f'''.section .rodata,"a"
.p2align 6
.amdhsa_kernel {KNAME}
  .amdhsa_next_free_vgpr 256
  .amdhsa_next_free_sgpr {102 if cfg.stamps else 100}
  .amdhsa_accum_offset 256
  .amdhsa_group_segment_fixed_size 0
  .amdhsa_kernarg_size 96
  .amdhsa_user_sgpr_count 2
  .amdhsa_user_sgpr_kernarg_segment_ptr 1
  .amdhsa_system_sgpr_workgroup_id_x 1
.end_amdhsa_kernel
'''
    return txt

if __name__ == '__main__':
    cfg = Cfg()
    out = sys.argv[1]
    for o in sys.argv[2:]:
        if '=' in o:
            k, v = o.split('='); setattr(cfg, k, int(v))
        else: setattr(cfg, o, True)
    open(out, 'w').write(build(cfg))
```

```python
from asmlib import autowait
import struct
def f32(x): return '0x%08x' % struct.unpack('<I', struct.pack('<f', x))[0]
def vr(b, n=1): return f'v{b}' if n == 1 else f'v[{b}:{b+n-1}]'
MF32 = 'v_mfma_f32_32x32x16_bf16'
MF16 = 'v_mfma_f32_16x16x32_bf16'

class C:
    CA0, CA1, CT0, CT1 = 4, 5, 6, 7
    AP, U, LA, OP = 16, 40, 88, 92
    KA = [96, 160]; KT = [120, 96]; S = [144, 184]; P = [144, 184]
    WV = 200
    TB = 12288
    ADV = True

def ka(x, s): return f'ds_read_b128 {vr(C.KA[x]+4*s,4)}, v{C.CA1 if s&1 else C.CA0} offset:{x*C.TB+64*(s>>1)}'
def kt(x, ks, t): return [f'ds_read_b64_tr_b16 {vr(C.KT[x]+(ks*3+t)*4+2*sec,2)}, v{C.CT1 if sec else C.CT0} offset:{x*C.TB+64*t+3072*ks}' for sec in range(2)]
def sm(x, s): return f'{MF32} {vr(C.S[x],16)}, {vr(C.KA[x]+4*s,4)}, {vr(C.AP+4*s,4)}, {"0" if s == 0 else vr(C.S[x],16)}'
def pv(x, ks, t):
    if t == 3: return f'{MF16} {vr(C.LA,4)}, {vr(C.OP,4)}, {vr(C.P[x]+4*ks,4)}, {vr(C.LA,4)}'
    return f'{MF32} {vr(C.U+16*t,16)}, {vr(C.KT[x]+(ks*3+t)*4,4)}, {vr(C.P[x]+4*ks,4)}, {vr(C.U+16*t,16)}'
def ex(x, i): return f'v_exp_f32 v{C.S[x]+i}, v{C.S[x]+i}'
def cv(x, i): return f'v_cvt_pk_bf16_f32 v{C.P[x]+i}, v{C.S[x]+2*i}, v{C.S[x]+2*i+1}'
def adv(): return [] if not C.ADV else [f'v_add_u32 v{r}, {4*6144}, v{r}' for r in (C.CA0, C.CA1, C.CT0, C.CT1)]

def flat(l):
    o = []
    for x in l:
        if isinstance(x, (list, tuple)): o += flat(x)
        else: o.append(x)
    return o

def cons2(var=0):
    E = lambda x, a, b: [ex(x, i) for i in range(a, b)]
    V = lambda x, a, b: [cv(x, i) for i in range(a, b)]
    if var == 0:
        L = [[ka(0, s) for s in range(6)],
             sm(0,0), ka(1,0), ka(1,1), sm(0,1), ka(1,2), ka(1,3), sm(0,2), ka(1,4), ka(1,5),
             sm(0,3), kt(0,0,0), sm(0,4), kt(0,0,1), sm(0,5), kt(0,0,2),
             sm(1,0), kt(0,1,0), kt(0,1,1), sm(1,1), E(0,0,3), sm(1,2), E(0,3,6), sm(1,3), E(0,6,8), V(0,0,2),
             sm(1,4), V(0,2,4), E(0,8,10), sm(1,5), kt(0,1,2), E(0,10,12),
             pv(0,0,0), E(0,12,15), pv(0,0,1), E(0,15,16), V(0,4,8), pv(0,0,2), kt(1,0,0), E(1,0,2), pv(0,0,3), E(1,2,3),
             pv(0,1,0), kt(1,0,1), E(1,3,5), pv(0,1,1), kt(1,0,2), E(1,5,7), pv(0,1,2), E(1,7,8), V(1,0,4), pv(0,1,3), kt(1,1,0),
             pv(1,0,0), kt(1,1,1), E(1,8,10), pv(1,0,1), kt(1,1,2), E(1,10,12), pv(1,0,2), E(1,12,15), pv(1,0,3), E(1,15,16), V(1,4,8), adv(),
             pv(1,1,0), pv(1,1,1), pv(1,1,2), pv(1,1,3)]
    elif var == 1:
        L = [[ka(0, s) for s in range(6)],
             sm(0,0), ka(1,0), sm(0,1), ka(1,1), ka(1,2), sm(0,2), ka(1,3), sm(0,3), ka(1,4), ka(1,5), sm(0,4), kt(0,0,0), sm(0,5), kt(0,0,1), kt(0,0,2),
             sm(1,0), kt(0,1,0), kt(0,1,1), kt(0,1,2), E(0,0,8), V(0,0,4), sm(1,1), E(0,8,11), sm(1,2), E(0,11,14), sm(1,3), E(0,14,16), V(0,4,6), sm(1,4), V(0,6,8), kt(1,0,0), sm(1,5), kt(1,0,1), kt(1,0,2),
             pv(0,0,0), kt(1,1,0), pv(0,0,1), E(1,0,3), pv(0,0,2), E(1,3,6), pv(0,0,3), E(1,6,7),
             pv(0,1,0), E(1,7,8), V(1,0,4), pv(0,1,1), E(1,8,11), pv(0,1,2), E(1,11,14), pv(0,1,3), kt(1,1,1),
             pv(1,0,0), E(1,14,16), kt(1,1,2), pv(1,0,1), V(1,4,8), pv(1,0,2), adv(), pv(1,0,3),
             pv(1,1,0), pv(1,1,1), pv(1,1,2), pv(1,1,3)]
    return autowait(flat(L))

def cons1(extra_pre=(), extra_mid=()):
    E = lambda x, a, b: [ex(x, i) for i in range(a, b)]
    V = lambda x, a, b: [cv(x, i) for i in range(a, b)]
    L = [[ka(0, s) for s in range(6)],
         sm(0,0), kt(0,0,0), sm(0,1), kt(0,0,1), sm(0,2), kt(0,0,2), sm(0,3), kt(0,1,0), sm(0,4), kt(0,1,1), sm(0,5), kt(0,1,2), list(extra_pre),
         E(0,0,8), V(0,0,4), pv(0,0,0), E(0,8,11), pv(0,0,1), E(0,11,14), pv(0,0,2), E(0,14,16), V(0,4,6), pv(0,0,3), V(0,6,8), list(extra_mid),
         pv(0,1,0), pv(0,1,1), pv(0,1,2), pv(0,1,3)]
    return autowait(flat(L))

def ka_regs(x, s): return {f'v{C.KA[x]+4*s+i}' for i in range(4)}
PEND6 = lambda: [ka_regs(0, s) for s in range(6)]

def tail_pf(x, advl, flag):
    k = lambda s: ka(0, s)
    if x == 1:
        return [advl, flag, k(0), k(1), k(2), pv(1,1,3), pv(1,1,0), k(3), pv(1,1,1), k(4), pv(1,1,2), k(5)]
    return [advl, flag, k(0), k(1), k(2), pv(0,1,3), k(3), pv(0,1,0), k(4), pv(0,1,1), k(5), pv(0,1,2)]

def cons2p(advl, flag, top=()):
    E = lambda x, a, b: [ex(x, i) for i in range(a, b)]
    V = lambda x, a, b: [cv(x, i) for i in range(a, b)]
    L = [sm(0,0), ka(1,0), ka(1,1), list(top), sm(0,1), ka(1,2), ka(1,3), sm(0,2), ka(1,4), ka(1,5),
         sm(0,3), kt(0,0,0), sm(0,4), kt(0,0,1), sm(0,5), kt(0,0,2),
         sm(1,0), kt(0,1,0), kt(0,1,1), sm(1,1), E(0,0,3), sm(1,2), E(0,3,6), sm(1,3), E(0,6,8), V(0,0,2),
         sm(1,4), V(0,2,4), E(0,8,10), sm(1,5), kt(0,1,2), E(0,10,12),
         pv(0,0,0), E(0,12,15), pv(0,0,1), E(0,15,16), V(0,4,8), pv(0,0,2), kt(1,0,0), E(1,0,2), pv(0,0,3), E(1,2,3),
         pv(0,1,0), kt(1,0,1), E(1,3,5), pv(0,1,1), kt(1,0,2), E(1,5,7), pv(0,1,2), E(1,7,8), V(1,0,4), pv(0,1,3), kt(1,1,0),
         pv(1,0,0), kt(1,1,1), E(1,8,10), pv(1,0,1), kt(1,1,2), E(1,10,12), pv(1,0,2), E(1,12,15), pv(1,0,3), E(1,15,16), V(1,4,8),
         's_waitcnt lgkmcnt(0)', tail_pf(1, advl, flag)]
    return autowait(flat(L), pending=PEND6(), pborn=-8)

def cons1p(advl, flag, fill=()):
    E = lambda x, a, b: [ex(x, i) for i in range(a, b)]
    V = lambda x, a, b: [cv(x, i) for i in range(a, b)]
    L = [sm(0,0), kt(0,0,0), sm(0,1), kt(0,0,1), sm(0,2), kt(0,0,2), sm(0,3), kt(0,1,0), sm(0,4), kt(0,1,1), sm(0,5), kt(0,1,2), list(fill),
         E(0,0,8), V(0,0,4), pv(0,0,0), E(0,8,11), pv(0,0,1), E(0,11,14), pv(0,0,2), E(0,14,16), V(0,4,6), pv(0,0,3), V(0,6,8),
         's_waitcnt lgkmcnt(0)', tail_pf(0, advl, flag)]
    return autowait(flat(L), pending=PEND6(), pborn=-8)

def cons1x(wv, pre=False, fill=()):
    E = lambda x, a, b: [ex(x, i) for i in range(a, b)]
    V = lambda x, a, b: [cv(x, i) for i in range(a, b)]
    wv = list(wv)
    def W(n):
        o = wv[:n]; del wv[:n]; return o
    def mix(l, n):
        o = []
        for x in l: o += [x] + W(n)
        return o
    L = [[] if pre else [ka(0, s) for s in range(6)],
         sm(0,0), kt(0,0,0), sm(0,1), kt(0,0,1), sm(0,2), kt(0,0,2), sm(0,3), kt(0,1,0), sm(0,4), kt(0,1,1), sm(0,5), kt(0,1,2), list(fill),
         E(0,0,8), V(0,0,4), 's_waitcnt lgkmcnt(0)', pv(0,0,0), mix(E(0,8,11), 2), pv(0,0,1), mix(E(0,11,14), 2), pv(0,0,2), E(0,14,16), V(0,4,6), pv(0,0,3), V(0,6,8),
         pv(0,1,3), pv(0,1,0), pv(0,1,1), pv(0,1,2)]
    assert not wv
    return autowait(flat(L), final=0, pending=PEND6() if pre else None, pborn=-8)

def cons2x(wv, tb, pre=False, fill=()):
    E = lambda x, a, b: [ex(x, i) for i in range(a, b)]
    V = lambda x, a, b: [cv(x, i) for i in range(a, b)]
    wv = list(wv)
    def W(n):
        o = wv[:n]; del wv[:n]; return o
    sv = C.TB; C.TB = tb
    fill = list(fill); h = (len(fill) + 2) // 3
    L = [[] if pre else [ka(0, s) for s in range(6)],
         sm(0,0), ka(1,0), ka(1,1), sm(0,1), ka(1,2), ka(1,3), sm(0,2), ka(1,4), ka(1,5),
         sm(0,3), kt(0,0,0), fill[:h], sm(0,4), kt(0,0,1), fill[h:2*h], sm(0,5), kt(0,0,2), fill[2*h:],
         sm(1,0), kt(0,1,0), kt(0,1,1), sm(1,1), E(0,0,3), sm(1,2), E(0,3,6), sm(1,3), E(0,6,8), V(0,0,2),
         sm(1,4), V(0,2,4), E(0,8,10), sm(1,5), kt(0,1,2), E(0,10,12),
         pv(0,0,0), W(2), E(0,12,15), pv(0,0,1), W(2), E(0,15,16), V(0,4,8), pv(0,0,2), kt(1,0,0), E(1,0,2), pv(0,0,3), W(2), E(1,2,3),
         pv(0,1,0), kt(1,0,1), E(1,3,5), pv(0,1,1), kt(1,0,2), E(1,5,7), pv(0,1,2), W(2), E(1,7,8), V(1,0,4), pv(0,1,3), kt(1,1,0),
         pv(1,0,0), kt(1,1,1), E(1,8,10), pv(1,0,1), kt(1,1,2), E(1,10,12), pv(1,0,2), W(2), E(1,12,15), pv(1,0,3), W(2), E(1,15,16), V(1,4,8),
         pv(1,1,3), pv(1,1,0), pv(1,1,1), pv(1,1,2)]
    C.TB = sv
    assert not wv
    return autowait(flat(L), final=0, pending=PEND6() if pre else None, pborn=-8)

def cons1y(wv, pre=False, fill=()):
    E = lambda x, a, b: [ex(x, i) for i in range(a, b)]
    V = lambda x, a, b: [cv(x, i) for i in range(a, b)]
    wv = list(wv)
    def W(n):
        o = wv[:n]; del wv[:n]; return o
    def mix(l, n):
        o = []
        for x in l: o += [x] + W(n)
        return o
    L = [[] if pre else [ka(0, s) for s in range(6)],
         sm(0,0), kt(0,0,0), sm(0,1), kt(0,0,1), sm(0,2), kt(0,0,2), sm(0,3), kt(0,1,0), sm(0,4), kt(0,1,1), sm(0,5), kt(0,1,2), list(fill),
         's_waitcnt lgkmcnt(4)', mix(E(0,0,8), 1), V(0,0,4), 's_waitcnt lgkmcnt(4)', pv(0,0,0), mix(E(0,8,11), 2), pv(0,0,1), 's_waitcnt lgkmcnt(4)', mix(E(0,11,14), 2), pv(0,0,2), mix(E(0,14,16), 2), V(0,4,6), pv(0,0,3), V(0,6,8),
         pv(0,1,3), pv(0,1,0), pv(0,1,1), pv(0,1,2)]
    assert not wv
    return autowait(flat(L), final=0, pending=PEND6() if pre else None, pborn=-8)

def cons2y(wv, tb, pre=False, fill=()):
    E = lambda x, a, b: [ex(x, i) for i in range(a, b)]
    V = lambda x, a, b: [cv(x, i) for i in range(a, b)]
    wv = list(wv)
    def W(n):
        o = wv[:n]; del wv[:n]; return o
    sv = C.TB; C.TB = tb
    fill = list(fill); h = (len(fill) + 2) // 3
    L = [[] if pre else [ka(0, s) for s in range(6)],
         sm(0,0), ka(1,0), ka(1,1), sm(0,1), ka(1,2), ka(1,3), sm(0,2), ka(1,4), ka(1,5),
         sm(0,3), kt(0,0,0), fill[:h], sm(0,4), kt(0,0,1), fill[h:2*h], sm(0,5), kt(0,0,2), fill[2*h:],
         sm(1,0), kt(0,1,0), kt(0,1,1), sm(1,1), E(0,0,3), sm(1,2), E(0,3,6), W(2), sm(1,3), E(0,6,8), V(0,0,2), W(2),
         sm(1,4), V(0,2,4), E(0,8,10), W(2), sm(1,5), kt(0,1,2), E(0,10,12),
         pv(0,0,0), W(2), E(0,12,15), pv(0,0,1), W(2), E(0,15,16), V(0,4,8), pv(0,0,2), kt(1,0,0), E(1,0,2), pv(0,0,3), W(2), E(1,2,3),
         pv(0,1,0), kt(1,0,1), W(2), E(1,3,5), pv(0,1,1), kt(1,0,2), E(1,5,7), pv(0,1,2), W(2), E(1,7,8), V(1,0,4), pv(0,1,3), kt(1,1,0),
         pv(1,0,0), kt(1,1,1), W(2), E(1,8,10), pv(1,0,1), kt(1,1,2), W(2), E(1,10,12), pv(1,0,2), W(2), E(1,12,15), pv(1,0,3), W(2), E(1,15,16), V(1,4,8),
         pv(1,1,3), pv(1,1,0), pv(1,1,1), pv(1,1,2)]
    C.TB = sv
    assert not wv
    return autowait(flat(L), final=0, pending=PEND6() if pre else None, pborn=-8)

def cons1w(wv, var=0):
    E = lambda x, a, b: [ex(x, i) for i in range(a, b)]
    V = lambda x, a, b: [cv(x, i) for i in range(a, b)]
    wv = list(wv)
    def W(n):
        o = wv[:n]; del wv[:n]; return o
    def mix(l, n):
        o = []
        for x in l: o += [x] + W(n)
        return o
    head = [[ka(0, s) for s in range(6)],
            sm(0,0), kt(0,0,0), sm(0,1), kt(0,0,1), sm(0,2), kt(0,0,2), sm(0,3), kt(0,1,0), sm(0,4), kt(0,1,1), sm(0,5), kt(0,1,2)]
    if var == 0:
        if len(wv) == 12:
            L = head + [E(0,0,8), V(0,0,4), 's_waitcnt lgkmcnt(0)', pv(0,0,0), mix(E(0,8,11), 1), pv(0,0,1), mix(E(0,11,14), 1), pv(0,0,2), mix(E(0,14,16), 1), V(0,4,6), pv(0,0,3), V(0,6,8),
                        pv(0,1,0), W(2), pv(0,1,1), W(2), pv(0,1,2), pv(0,1,3)]
        else:
            L = head + [W(4), 's_waitcnt lgkmcnt(6)', mix(E(0,0,8), 1), V(0,0,4), 's_waitcnt lgkmcnt(6)', pv(0,0,0), mix(E(0,8,11), 1), pv(0,0,1), mix(E(0,11,14), 1), pv(0,0,2), mix(E(0,14,16), 1), V(0,4,6), pv(0,0,3), V(0,6,8),
                        's_waitcnt lgkmcnt(6)', pv(0,1,0), W(2), pv(0,1,1), W(2), pv(0,1,2), pv(0,1,3)]
    elif var == 1:
        L = head + [E(0,0,8), V(0,0,4), 's_waitcnt lgkmcnt(0)', pv(0,0,0), mix(E(0,8,11), 2), pv(0,0,1), mix(E(0,11,14), 2), pv(0,0,2), 's_waitcnt lgkmcnt(8)', mix(E(0,14,16), 2), V(0,4,6), pv(0,0,3), V(0,6,8),
                    's_waitcnt lgkmcnt(6)', pv(0,1,0), W(4), pv(0,1,1), W(4), pv(0,1,2), pv(0,1,3)]
    assert not wv
    return autowait(flat(L), final=0)

def cons2w(wv, tb):
    E = lambda x, a, b: [ex(x, i) for i in range(a, b)]
    V = lambda x, a, b: [cv(x, i) for i in range(a, b)]
    wv = list(wv)
    def W(n):
        o = wv[:n]; del wv[:n]; return o
    sv = C.TB; C.TB = tb
    L = [[ka(0, s) for s in range(6)],
         sm(0,0), ka(1,0), ka(1,1), sm(0,1), ka(1,2), ka(1,3), sm(0,2), ka(1,4), ka(1,5),
         sm(0,3), kt(0,0,0), sm(0,4), kt(0,0,1), sm(0,5), kt(0,0,2),
         sm(1,0), kt(0,1,0), kt(0,1,1), sm(1,1), E(0,0,3), sm(1,2), E(0,3,6), sm(1,3), E(0,6,8), V(0,0,2),
         sm(1,4), V(0,2,4), E(0,8,10), sm(1,5), kt(0,1,2), E(0,10,12),
         pv(0,0,0), E(0,12,15), pv(0,0,1), E(0,15,16), V(0,4,8), pv(0,0,2), kt(1,0,0), E(1,0,2), pv(0,0,3), E(1,2,3),
         pv(0,1,0), kt(1,0,1), E(1,3,5), pv(0,1,1), kt(1,0,2), E(1,5,7), pv(0,1,2), E(1,7,8), V(1,0,4), pv(0,1,3), kt(1,1,0),
         pv(1,0,0), kt(1,1,1), E(1,8,10), pv(1,0,1), kt(1,1,2), E(1,10,12), pv(1,0,2), W(2), E(1,12,15), pv(1,0,3), W(2), E(1,15,16), V(1,4,8),
         pv(1,1,0), W(4), pv(1,1,1), W(4), pv(1,1,2), pv(1,1,3)]
    C.TB = sv
    assert not wv
    return autowait(flat(L), final=0)

class P:
    RA0, RA1 = 5, 6
    WL = 16
    LT = 88
    X, F = 136, 184
    ID, OP, SM, SL, T = 208, 216, 220, 224, 228

def p_reads():
    return [f'ds_read_b128 {vr(P.F+4*s,4)}, v{P.RA1 if s&1 else P.RA0} offset:{64*(s>>1)}' for s in (0, 2, 4, 1, 3, 5)]

def p_head(g1=(), g2=(), hiprio=None, reads=True):
    L = []
    if hiprio is not None: L.append(f's_setprio {hiprio}')
    if reads: L += p_reads()
    L += list(g1)
    g2 = list(g2)
    for t in range(3):
        L.append(f's_waitcnt lgkmcnt({5-t})')
        L.append(f'{MF32} {vr(P.X+16*t,16)}, {vr(P.ID,4)}, {vr(P.F+8*t,4)}, {vr(P.LT+16*t,16)}')
        if g2:
            L += g2[:3] if t == 0 else g2[2+t:3+t]
    return L

def p_tail(var=0, lowprio=None):
    X, F, T, SM, SL = P.X, P.F, P.T, P.SM, P.SL
    Q0, Q1 = T, T+1
    L = []; a = L.append
    def identb(t): a(f'{MF32} {vr(X+16*t,16)}, {vr(P.ID+4,4)}, {vr(F+8*t+4,4)}, {vr(X+16*t,16)}')
    def summ(s): a(f'{MF16} {vr(SM,4)}, {vr(P.OP,4)}, {vr(F+4*s,4)}, {vr(SL,4) if s == 0 else vr(SM,4)}')
    sqi = [0]
    def sq(n):
        for _ in range(n):
            i = sqi[0]; sqi[0] += 1
            q = Q0 if i % 2 == 0 else Q1
            a(f'v_mul_f32 v{q}, v{X+i}, v{X+i}' if i < 2 else f'v_fmac_f32 v{q}, v{X+i}, v{X+i}')
    a('s_waitcnt lgkmcnt(0)')
    identb(0); identb(1); summ(0); sq(2); identb(2); sq(6)
    for s in range(1, 6):
        summ(s)
        if s == 5 and lowprio is not None: a(f's_setprio {lowprio}')
        sq(2)
    sq(48 - sqi[0])
    a(f'v_add_f32 v{Q0}, v{Q0}, v{Q1}')
    a(f'v_mul_f32 v{SM}, {f32(1/96)}, v{SM}')
    a(f'v_mov_b32 v{Q1}, v{Q0}')
    a(f'v_mul_f32 v{SM+1}, v{SM}, v{SM}')
    a(f'v_subrev_f32 v{SM+1}, {f32(1e-5)}, v{SM+1}')
    a(f'v_permlane32_swap_b32 v{Q0}, v{Q1}')
    a(f'v_add_f32 v{Q0}, v{Q0}, v{Q1}')
    a(f'v_fma_f32 v{Q0}, v{Q0}, s62, -v{SM+1}')
    a(f'v_max_f32 v{Q0}, {f32(1e-5)}, v{Q0}')
    a(f'v_rsq_f32 v{Q0}, v{Q0}')
    a('s_nop 0')
    a(f'v_mul_f32 v{Q1}, -v{SM}, v{Q0}')
    for s in range(6):
        for i in range(8): a(f'v_fma_f32 v{X+8*s+i}, v{X+8*s+i}, v{Q0}, v{Q1}')
        for i in range(4): a(f'v_cvt_pk_bf16_f32 v{F+4*s+i}, v{X+8*s+2*i}, v{X+8*s+2*i+1}')
        if var == 1:
            a(f'ds_write_b64 v{P.RA1 if s&1 else P.RA0}, {vr(F+4*s,2)} offset:{64*(s>>1)}')
            a(f'ds_write_b64 v{P.RA1 if s&1 else P.RA0}, {vr(F+4*s+2,2)} offset:{64*(s>>1)+8}')
        else:
            a(f'ds_write_b128 v{P.RA1 if s&1 else P.RA0}, {vr(F+4*s,4)} offset:{64*(s>>1)}')
    a(f'v_add_u32 v{P.RA0}, {4*6144}, v{P.RA0}')
    a(f'v_add_u32 v{P.RA1}, {4*6144}, v{P.RA1}')
    a('s_waitcnt lgkmcnt(0)')
    return L


def p_tail2(lowprio=None, one=True):
    X, F, T, SM, SL = P.X, P.F, P.T, P.SM, P.SL
    Q0, Q1 = T, T+1
    L = []; a = L.append
    def identb(t): a(f'{MF32} {vr(X+16*t,16)}, {vr(P.ID+4,4)}, {vr(F+8*t+4,4)}, {vr(X+16*t,16)}')
    def summ(s): a(f'{MF16} {vr(SM,4)}, {vr(P.OP,4)}, {vr(F+4*s,4)}, {vr(SL,4) if s == 0 else vr(SM,4)}')
    sqi = [0]
    def sq(n):
        for _ in range(n):
            i = sqi[0]; sqi[0] += 1
            q = Q0 if (one or i % 2 == 0) else Q1
            a(f'v_mul_f32 v{q}, v{X+i}, v{X+i}' if i < (1 if one else 2) else f'v_fmac_f32 v{q}, v{X+i}, v{X+i}')
    a('s_waitcnt lgkmcnt(0)')
    identb(0); identb(1); summ(0); sq(2); identb(2); sq(6)
    for s in range(1, 6):
        summ(s)
        if s == 5 and lowprio is not None: a(f's_setprio {lowprio}')
        sq(2)
    sq(48 - sqi[0])
    if not one: a(f'v_add_f32 v{Q0}, v{Q0}, v{Q1}')
    a(f'v_mov_b32 v{Q1}, v{Q0}')
    a(f'v_fma_f32 v{SM+1}, v{SM}, v{SM}, -s61')
    a(f'v_add_u32 v{T+2}, {4*6144}, v{P.RA0}')
    a(f'v_permlane32_swap_b32 v{Q0}, v{Q1}')
    a(f'v_add_f32 v{Q0}, v{Q0}, v{Q1}')
    a(f'v_fma_f32 v{Q0}, v{Q0}, s62, -v{SM+1}')
    a(f'v_max_f32 v{Q0}, s61, v{Q0}')
    a(f'v_rsq_f32 v{Q0}, v{Q0}')
    a(f'v_add_u32 v15, 1, v15')
    a(f'v_mul_f32 v{Q1}, -v{SM}, v{Q0}')
    a(f'v_mul_f32 v{Q0}, s62, v{Q0}')
    for s in range(6):
        for i in range(8): a(f'v_fma_f32 v{X+8*s+i}, v{X+8*s+i}, v{Q0}, v{Q1}')
        for i in range(4): a(f'v_cvt_pk_bf16_f32 v{F+4*s+i}, v{X+8*s+2*i}, v{X+8*s+2*i+1}')
        a(f'ds_write_b128 v{P.RA1 if s&1 else P.RA0}, {vr(F+4*s,4)} offset:{64*(s>>1)}')
    L.remove(f'v_add_u32 v{T+2}, {4*6144}, v{P.RA0}')
    a(f'v_add_u32 v{P.RA0}, {4*6144}, v{P.RA0}')
    a(f'v_add_u32 v{P.RA1}, {4*6144}, v{P.RA1}')
    a('s_waitcnt lgkmcnt(0)')
    return L

def p_tail_pk(lowprio=None, sqpk=True, nmpk=True, wr_end=False):
    X, F, T, SM, SL = P.X, P.F, P.T, P.SM, P.SL
    Q0, Q1 = T, T+1
    L = []; a = L.append
    def identb(t): a(f'{MF32} {vr(X+16*t,16)}, {vr(P.ID+4,4)}, {vr(F+8*t+4,4)}, {vr(X+16*t,16)}')
    def summ(s): a(f'{MF16} {vr(SM,4)}, {vr(P.OP,4)}, {vr(F+4*s,4)}, {vr(SL,4) if s == 0 else vr(SM,4)}')
    a('s_waitcnt lgkmcnt(0)')
    if sqpk:
        identb(0); identb(1); identb(2)
        for s in range(6): summ(s)
        if lowprio is not None: a(f's_setprio {lowprio}')
        for i in range(24):
            acc = T + 2*(i % 2)
            x = vr(X+2*i, 2)
            a(f'v_pk_mul_f32 {vr(acc,2)}, {x}, {x}' if i < 2 else f'v_pk_fma_f32 {vr(acc,2)}, {x}, {x}, {vr(acc,2)}')
        a(f'v_pk_add_f32 {vr(T,2)}, {vr(T,2)}, {vr(T+2,2)}')
    else:
        sqi = [0]
        def sq(n):
            for _ in range(n):
                i = sqi[0]; sqi[0] += 1
                q = Q0 if i % 2 == 0 else Q1
                a(f'v_mul_f32 v{q}, v{X+i}, v{X+i}' if i < 2 else f'v_fmac_f32 v{q}, v{X+i}, v{X+i}')
        identb(0); identb(1); summ(0); sq(2); identb(2); sq(6)
        for s in range(1, 6):
            summ(s)
            if s == 5 and lowprio is not None: a(f's_setprio {lowprio}')
            sq(2)
        sq(48 - sqi[0])
    a(f'v_add_f32 v{Q0}, v{Q0}, v{Q1}')
    a(f'v_mul_f32 v{SM}, {f32(1/96)}, v{SM}')
    a(f'v_mov_b32 v{Q1}, v{Q0}')
    a(f'v_mul_f32 v{SM+1}, v{SM}, v{SM}')
    a(f'v_subrev_f32 v{SM+1}, {f32(1e-5)}, v{SM+1}')
    a(f'v_permlane32_swap_b32 v{Q0}, v{Q1}')
    a(f'v_add_f32 v{Q0}, v{Q0}, v{Q1}')
    a(f'v_fma_f32 v{Q0}, v{Q0}, s62, -v{SM+1}')
    a(f'v_max_f32 v{Q0}, {f32(1e-5)}, v{Q0}')
    a(f'v_rsq_f32 v{Q0}, v{Q0}')
    a('s_nop 0')
    a(f'v_mul_f32 v{Q1}, -v{SM}, v{Q0}')
    if nmpk:
        for i in range(24):
            x = vr(X+2*i, 2)
            a(f'v_pk_fma_f32 {x}, {x}, {vr(Q0,2)}, {vr(Q0,2)} op_sel:[0,0,1] op_sel_hi:[1,0,1]')
    for s in range(6):
        if not nmpk:
            for i in range(8): a(f'v_fma_f32 v{X+8*s+i}, v{X+8*s+i}, v{Q0}, v{Q1}')
        for i in range(4): a(f'v_cvt_pk_bf16_f32 v{F+4*s+i}, v{X+8*s+2*i}, v{X+8*s+2*i+1}')
        a(f'ds_write_b128 v{P.RA1 if s&1 else P.RA0}, {vr(F+4*s,4)} offset:{64*(s>>1)}')
    a(f'v_add_u32 v{P.RA0}, {4*6144}, v{P.RA0}')
    a(f'v_add_u32 v{P.RA1}, {4*6144}, v{P.RA1}')
    a('s_waitcnt lgkmcnt(0)')
    return L
```

```python
import sys, math, struct
from asmlib import Asm, autowait
import blocks as B
from blocks import vr, f32, MF32, MF16, flat

KNAME = 'standalone__detection_seg_mask2former__vision_kernel'

HI = 0
WM = 12 * 6144
QS = 15 * 6144
WQ = 16 * 6144
LO = 110592 + 6144
WREG = LO + 27648
SCR = WREG + 18432
TOT = SCR
PF = SCR + 512
TKT = SCR + 528
CNT = SCR + 544
WST = SCR + 640
XCH = LO
XST = 6912
WO = 0
FIN = 20480
CTX = 32768
LDS_BYTES = SCR + 1024
assert LDS_BYTES <= 163840 and LO <= XCH and XCH + 4 * XST <= WREG
B.C.TB = 6144
LREC = 17 * 256 * 256 + 16 * 4096
MREC = LREC
REC_BYTES = MREC + 16 * 4 * 256 * 8
BOUND = 80.0
THR = BOUND * BOUND / 96 / (1 + 2 ** -8) ** 2
STAMP_OFF = 4 << 20
FSW = sum(((((-(px >> 2)) & 3) ^ ((px >> 1) & 1)) << (2 * px)) for px in range(16))

class Cfg:
    stamps = False
    cyc = False
    repf = 0
    cvar = 0
    g0pos = 1
    fine = 0
    wvpos = 2
    h0pos = 1
    cpp = 0
    cmain = 0
    pp = 0
    deep = 1
    h1early = 0
    pwait = 1
    ksleep = 0
    r1late = 0
    pm = 2
    pv = 0
    pl = 2
    cearly = 0
    trp = 0
    trc = 0
    touch = 3
    t0pre = 0
    wkpos = 2
    dry = 0
    tokpos = -1
    wvr = 2
    ktrace = 0
    pollnt = 0
    roll = 0
    dyn = 5
    diag = 0
    early = 0
    tok2 = 1
    bist = 0
    mfirst = 1
    b2 = 0
    wvar = 0
    etr = 0
    xv = 0
    xd = 2
    fake = 0
    fsc = 0
    wsl = 0
    pk = 0
    uni = 0
    spec = 1
    tlb = 0
    spf = 0
    spn = 15
    wsum = 0
    st2 = 1
    pro = 1
    wmtok = 0
    ctop = 0
    skew = 0
    zl = 0
    tok3 = 0
    prog = 1
    latep = 0
    dup = 0
    c2 = None
    c3 = None
    c4 = None

SQ, SHI, SLO, SWL, SWQ, SWK, SWV, SWO, SWM, SOUT, SDBG, SWS = [f's[{4+2*i}:{5+2*i}]' for i in range(12)]
RHI, RLO, RWS = 's[28:31]', 's[32:35]', 's[36:39]'
SF = 's63'
STAMP0 = 64

def TM(cfg): return 's_memtime' if cfg.cyc else 's_memrealtime'

def stamp(a, cfg, i, inner=False):
    if cfg.b2 and i in (11, 12, 13, 14, 15) : return
    if cfg.bist:
        import inspect
        src = inspect.stack()[1].code_context[0]
        if 'bist' not in src and i in (4, 5, 6, 7, 8, 11, 12, 13, 14) and inspect.stack()[1].function != 'script': return
    if cfg.trp and not inner and i != 0: return
    if inner and not cfg.trp: return
    if cfg.stamps: a(f"{'s_memtime' if cfg.cyc else 's_memrealtime'} s[{STAMP0+2*i}:{STAMP0+2*i+1}]")

def stamp_flush(a, cfg, tmpv=100):
    if not cfg.stamps: return
    a('s_cmp_eq_u32 s100, 0')
    a('s_cbranch_scc1 L_nosl')
    a('s_sleep 100')
    a('L_nosl:')
    a('s_waitcnt lgkmcnt(0)')
    a('s_lshl_b32 s61, s2, 3\ns_add_u32 s61, s61, s3')
    a(f's_lshl_b32 s62, s61, 7')
    a(f's_add_u32 s62, s62, {STAMP_OFF}')
    for i in range(32): a(f'v_mov_b32 v{tmpv+i}, s{STAMP0+i}')
    a(f'v_mov_b32 v{tmpv+32}, 0')
    a('s_mov_b64 exec, 1')
    a('s_mov_b32 s56, s26\ns_mov_b32 s57, s27\ns_mov_b32 s58, 0x1000000\ns_mov_b32 s59, 0x20000')
    for i in range(8):
        a(f'buffer_store_dwordx4 {vr(tmpv+4*i,4)}, v{tmpv+32}, s[56:59], s62 offen offset:{16*i}')
    a('s_mov_b64 exec, -1')

def dma_swz(a, dst, k, tmp):
    a(f'v_add_u32 v{tmp}, {64*k if isinstance(k,int) else k}, v1')
    a(f'v_mul_u32_u24 v{tmp}, 0xaaab, v{tmp}')
    a(f'v_lshrrev_b32 v{tmp}, 18, v{tmp}')
    a(f'v_and_b32 v{tmp}, 0x1e, v{tmp}')
    a(f'v_bfe_u32 v{tmp}, {SF}, v{tmp}, 2')
    a(f'v_xor_b32 v{tmp}, v{tmp}, v1')
    a(f'v_lshlrev_b32 v{dst}, 4, v{tmp}')

def dma_part(a, ptr, ldsbase, voff, spart):
    lo = int(ptr[2:ptr.index(':')])
    a(f's_add_u32 m0, {spart}, {ldsbase}')
    a(f's_add_u32 s50, s{lo}, 4096')
    for k in range(4): a(f'global_load_lds_dwordx4 v{voff}, {ptr} offset:{1024*k}')
    a(f's_addc_u32 s51, s{lo+1}, 0')
    a(f's_add_u32 m0, {spart}, {ldsbase+4096}')
    a('s_mov_b32 exec_hi, 0')
    a(f'global_load_lds_dwordx4 v{voff}, s[50:51]')
    a('s_mov_b32 exec_hi, -1')

def dma_extra(a, ptr, ldsbase, voff, sbase):
    lo = int(ptr[2:ptr.index(':')])
    a(f's_add_u32 s50, s{lo}, 4096')
    a(f's_addc_u32 s51, s{lo+1}, 0')
    a(f's_add_u32 m0, {sbase}, {ldsbase+4096}')
    a('s_nop 0')
    a(f'global_load_lds_dwordx4 v{voff}, s[50:51]')

def dma_main(a, ptr, ldsbase, voff, sbase):
    a(f's_add_u32 m0, {sbase}, {ldsbase}')
    a('s_nop 0')
    for k in range(4): a(f'global_load_lds_dwordx4 v{voff}, {ptr} offset:{1024*k}')

def arrive(a, which, va, vd, rtn=False):
    a(f'v_mov_b32 v{va}, {CNT + 4*which}')
    a(f'v_mov_b32 v{vd}, 1')
    a('s_mov_b64 exec, 1')
    a(f'ds_add_rtn_u32 v{vd}, v{va}, v{vd}' if rtn else f'ds_add_u32 v{va}, v{vd}')
    a('s_mov_b64 exec, -1')

def await_cnt(a, which, tag, va, vd, n=4, setaddr=True):
    if setaddr: a(f'v_mov_b32 v{va}, {CNT + 4*which}')
    a(f'{tag}:')
    a(f'ds_read_b32 v{vd}, v{va}')
    a('s_waitcnt lgkmcnt(0)')
    a(f'v_readfirstlane_b32 s50, v{vd}')
    a(f's_cmp_lt_u32 s50, {n}')
    a(f's_cbranch_scc1 {tag}')

def lds_sync(a, which, tag, va, vd, n=4):
    arrive(a, which, va, vd, rtn=True)
    a('s_waitcnt lgkmcnt(0)')
    a(f'v_readfirstlane_b32 s50, v{vd}')
    a(f's_cmp_ge_u32 s50, {n-1}')
    a(f's_cbranch_scc1 {tag}_ok')
    await_cnt(a, which, tag + '_spin', va, vd, n, setaddr=False)
    a(f'{tag}_ok:')

def code_prefetch(a, tag, vt, tidoff, sp='s[44:45]', start=KNAME):
    lo = int(sp[2:sp.index(':')])
    a(f's_getpc_b64 {sp}')
    a(f'{tag}:')
    a(f's_add_u32 s{lo}, s{lo}, {start}-{tag}')
    a(f's_addc_u32 s{lo+1}, s{lo+1}, {"-1" if start == KNAME else "0"}')
    a(f'v_add_u32 v{vt}, {tidoff}, v0')
    a(f'v_lshlrev_b32 v{vt}, 7, v{vt}')
    a(f'v_min_u32 v{vt}, L_codeend-{start}-4, v{vt}')
    a(f'global_load_dword v{201 if vt == 0 else vt+1}, v{vt}, {sp}')

def nonce_slow(a, tag, back, v):
    a(f'{tag}:')
    a('s_memrealtime s[50:51]')
    a('s_waitcnt lgkmcnt(0)')
    a('s_or_b32 s47, s50, 1')
    a(f'v_mov_b32 v{v}, s47\nv_mov_b32 v{v+1}, 0\nv_mov_b32 v{v+2}, 0')
    a('s_mov_b64 exec, 1')
    a(f'global_atomic_cmpswap v{v}, v{v+2}, {vr(v,2)}, {SDBG} sc0 sc1')
    a('s_mov_b64 exec, -1')
    a('s_waitcnt vmcnt(0)')
    a(f'v_readfirstlane_b32 s50, v{v}')
    a('s_cmp_eq_u32 s50, 0')
    a('s_cselect_b32 s47, s47, s50')
    a(f's_branch {back}')

def gen_entry(a, cfg):
    a('s_cmp_ge_u32 s2, 256')
    a('s_cbranch_scc1 L_end')
    if cfg.stamps:
        for i in range(32): a(f's_mov_b32 s{STAMP0+i}, 0')
        a('s_mov_b32 s100, 1')
    stamp(a, cfg, 0)
    if cfg.diag: a('s_memrealtime s[96:97]')
    a('s_load_dwordx16 s[4:19], s[0:1], 0')
    a('s_load_dwordx8 s[20:27], s[0:1], 64')
    a('v_lshrrev_b32 v2, 6, v0')
    a('v_and_b32 v1, 63, v0')
    a('v_readfirstlane_b32 s3, v2')
    a(f's_mov_b32 {SF}, {FSW:#x}')
    a('s_mul_i32 s57, s2, 9')
    a(f's_mov_b32 s62, {f32(96.0 if cfg.st2 else 1/96)}')
    a('s_cmp_ge_u32 s3, 4')
    a('s_cbranch_scc1 L_cons')

def gen_producer(a, cfg):
    W0, W1, W2, RA0, RA1, RL0, RL1 = 2, 3, 4, 5, 6, 7, 8
    WL, LT, X, F = B.P.WL, B.P.LT, B.P.X, B.P.F
    ID, OP, SM, SL, T = B.P.ID, B.P.OP, B.P.SM, B.P.SL, B.P.T
    FLA, FLV = 14, 15
    WSA = 9
    U = 232
    sP = 's3'
    sH0, sH1, sH8, sLo0, sLo1 = 's40', 's41', 's42', 's43', 's44'
    sSlot, sLoP, RET = 's45', 's46', 's[48:49]'
    t0, t1, t2 = 's52', 's53', 's54'
    M1, O1, M2, O2 = 's55', 's56', 's58', 's59'
    for k, w in enumerate((W0, W1, W2)): dma_swz(a, w, k, U)
    a(f'v_lshlrev_b32 v{U+3}, 4, v1')
    for i in range(4): a(f'v_mov_b32 v{U+4+i}, 0')
    a(f'v_add_u32 v{U+8}, {SCR}, v{U+3}')
    a(f'ds_write_b128 v{U+8}, {vr(U+4,4)}')
    a(f's_add_u32 s58, s57, {sP}')
    a(f's_mul_i32 {sLo0}, s58, 3072')
    a(f's_mul_i32 {sLoP}, {sP}, 3072')
    a(f's_add_u32 {sLoP}, {sLoP}, {LO}')
    a('s_mov_b32 s34, 7077888\ns_mov_b32 s35, 0x20000')
    a(f's_add_u32 {sLo1}, {sLo0}, {4*3072}')
    def hi_off(dst, u):
        a(f's_mul_i32 {t0}, {u}, 43691')
        a(f's_lshr_b32 {t0}, {t0}, 19')
        a(f's_mul_i32 {t0}, {t0}, 73728')
        a(f's_mul_i32 {dst}, {u}, 6144')
        a(f's_add_u32 {dst}, {dst}, {t0}')
    a(f's_mul_i32 {sSlot}, {sP}, 6144')
    a('s_add_u32 s60, s57, 8')
    a('s_mul_i32 s61, s60, 3072')
    a(f's_cmp_lt_u32 {sP}, 2')
    a(f's_cselect_b32 s55, s61, {sLo0}')
    a(f's_cselect_b32 s56, {LO+8*3072}, {sLoP}')
    a('s_mov_b32 s30, 28311552\ns_mov_b32 s31, 0x20000')
    a(f's_min_u32 {t0}, {sP}, 2')
    a(f's_lshl_b32 s47, {sP}, 2')
    a(f's_add_u32 s47, s47, {t0}')
    a(f's_lshl_b32 s47, s47, 10')
    a(f'v_add_u32 v15, s47, v{U+3}')
    a('s_add_u32 s59, s58, 4')
    hi_off(sH0, 's58'); hi_off(sH1, 's59'); hi_off(sH8, 's60')
    a(f's_mul_i32 {t0}, {sP}, 73728')
    a(f's_add_u32 {sH8}, {sH8}, {t0}')
    a(f's_cmp_lt_u32 {sP}, 2')
    a(f's_cselect_b32 s57, {sH8}, {sH0}')
    if cfg.bist: stamp(a, cfg, 12)
    a(f's_cmp_ge_u32 {sP}, 2')
    a('s_waitcnt lgkmcnt(0)')
    if cfg.bist: stamp(a, cfg, 13)
    a('s_cbranch_scc1 P_nox')
    dma_extra(a, SWL, WREG, 15, 's47')
    a('P_nox:')
    dma_main(a, SWL, WREG, 15, 's47')
    def half(srd, soff):
        return [f'buffer_load_dwordx4 v{w}, {srd}, {soff} offen offset:{1024*k} nt lds' for k, w in enumerate((W0, W1, W2))]
    a('s_mov_b32 s32, s8\ns_mov_b32 s33, s9')
    a(f's_mov_b32 m0, s56')
    a('s_mov_b32 s28, s6')
    for l in half(RLO, 's55'): a(l)
    a('s_mov_b32 s29, s7')
    def issue_h(soff, rnd, hf, add=0):
        a(f's_add_u32 m0, {sSlot}, {rnd*4*6144+3072*hf}')
        if add + hf:
            a(f's_add_u32 {t0}, {soff}, {add+3072*hf}'); src = t0
        else:
            a('s_nop 0'); src = soff
        for l in half(RHI, src): a(l)
    for hf in range(cfg.t0pre): issue_h('s57', 0, hf)
    if cfg.spf & 1:
        a('s_add_u32 s98, s6, s57\ns_addc_u32 s99, s7, 0')
        for i in range(cfg.spn): a(f's_load_dword s96, s[98:99], {128*i}')
    if cfg.tlb:
        a(f's_load_dword s96, {SHI}, s57')
        a(f's_add_u32 s97, {sH0}, 79000')
        a(f's_min_u32 s97, s97, 28311548')
        a(f's_and_b32 s97, s97, -4')
        a(f's_load_dword s97, {SHI}, s97')
    if cfg.bist: stamp(a, cfg, 11)
    a('s_barrier')
    a(f's_sub_u32 s56, s56, {sLoP}')
    stamp(a, cfg, 1)
    a(f'v_and_b32 v{U}, 31, v1')
    a(f'v_lshrrev_b32 v{U+1}, 5, v1')
    def rdaddr(d0, d1, px, base):
        a(f'v_lshlrev_b32 v{U+2}, 1, v{px}')
        a(f'v_and_b32 v{U+2}, 0x1e, v{U+2}')
        a(f'v_bfe_u32 v{U+2}, {SF}, v{U+2}, 2')
        a(f'v_xor_b32 v{U+2}, v{U+2}, v{U+1}')
        a(f'v_xor_b32 v{U+3}, 2, v{U+2}')
        a(f'v_mul_u32_u24 v{U+4}, 192, v{px}')
        a(f'v_add_u32 v{U+4}, {base}, v{U+4}')
        a(f'v_lshl_add_u32 v{d0}, v{U+2}, 4, v{U+4}')
        a(f'v_lshl_add_u32 v{d1}, v{U+3}, 4, v{U+4}')
    rdaddr(RA0, RA1, U, sSlot)
    a(f'v_lshrrev_b32 v{U+5}, 1, v{U}')
    rdaddr(RL0, RL1, U+5, sLoP)
    a(f'v_bfe_u32 v14, v1, 2, 2')
    a(f'v_lshl_add_u32 v14, v{U+1}, 3, v14')
    a(f'v_mul_u32_u24 v14, 192, v14')
    a(f'v_bfe_u32 v{U+8}, v1, 4, 1')
    a(f'v_lshl_add_u32 v14, v{U+8}, 5, v14')
    a(f'v_and_b32 v{U+3}, 1, v1')
    a(f'v_lshl_add_u32 v14, v{U+3}, 4, v14')
    a(f'v_bfe_u32 v{U+3}, v1, 1, 1')
    a(f'v_lshl_add_u32 v14, v{U+3}, 3, v14')
    a(f'v_add_u32 v14, {WREG}, v14')
    a(f'v_bfe_u32 v{U+2}, v1, 3, 1')
    a(f'v_and_b32 v{U+3}, 3, v1')
    a(f'v_lshl_add_u32 v{U+2}, v{U+2}, 2, v{U+3}')
    a(f'v_bfe_u32 v{U+3}, v1, 2, 1')
    a(f'v_cmp_eq_u32 vcc, v{U+3}, v{U+1}')
    a(f'v_and_b32 v{U+6}, 1, v{U+2}')
    a(f'v_lshlrev_b32 v{U+6}, 4, v{U+6}')
    a(f'v_mov_b32 v{U+4}, 0x3f80')
    a(f'v_lshlrev_b32 v{U+6}, v{U+6}, v{U+4}')
    a(f'v_cndmask_b32 v{U+6}, 0, v{U+6}, vcc')
    a(f'v_lshrrev_b32 v{U+2}, 1, v{U+2}')
    a(f'v_lshl_add_u32 v{U+2}, v{U+8}, 2, v{U+2}')
    a(f'v_cmp_eq_u32 s[58:59], v{U+3}, v{U+8}')
    a(f'v_mov_b32 v{U+7}, 0x3f803f80')
    if cfg.wsum:
        a(f'v_mov_b32 v{WSA}, {WST+192}')
        a(f'v_mov_b32 v{U+4}, {WST}')
        a(f'v_cndmask_b32 v{WSA}, v{WSA}, v{U+4}, s[58:59]')
        a(f'v_lshl_add_u32 v{WSA}, v{U+1}, 4, v{WSA}')
        a(f's_min_u32 {t0}, {sP}, 2')
        a(f's_lshl_b32 {t0}, {t0}, 5')
        a(f'v_add_u32 v{WSA+1}, {t0}, v{U}')
        a(f'v_mul_u32_u24 v{WSA+2}, 192, v{WSA+1}')
        a(f'v_lshl_add_u32 v{WSA+2}, v{U+1}, 4, v{WSA+2}')
        a(f'v_add_u32 v{WSA+2}, {WREG}, v{WSA+2}')
        a(f'v_lshlrev_b32 v{WSA+1}, 1, v{WSA+1}')
        a(f'v_add_u32 v{WSA+1}, {WST}, v{WSA+1}')
    for i in range(0, 8, 2):
        a(f'v_cmp_eq_u32 vcc, {i}, v{U+2}')
        a(f'v_cmp_eq_u32 s[60:61], {i+1}, v{U+2}')
        a(f'v_cndmask_b32 v{OP+i//2}, 0, v{U+7}, s[58:59]')
        a(f'v_cndmask_b32 v{ID+i}, 0, v{U+6}, vcc')
        a(f'v_cndmask_b32 v{ID+i+1}, 0, v{U+6}, s[60:61]')
    if cfg.dry:
        a('s_mov_b64 exec, 0')
        a(f's_cmp_eq_u32 {sP}, 1')
        a('s_cbranch_scc1 P_dry1')
        a(f's_cmp_eq_u32 {sP}, 2')
        a('s_cbranch_scc1 P_dry2')
        a(f's_cmp_eq_u32 {sP}, 3')
        a('s_cbranch_scc1 P_dryd')
        a(f's_call_b64 {RET}, P_h0')
        a('P_dryd:')
        a('s_mov_b64 exec, -1')
        stamp(a, cfg, 15)
    if cfg.tokpos == 0 and cfg.t0pre < 2:
        await_cnt(a, 5, 'P_sy5', 12, 13, 4)
        for hf in range(cfg.t0pre, 2): issue_h('s57', 0, hf)
        a(f's_waitcnt vmcnt(6)')
    else:
        a(f's_waitcnt vmcnt({3*cfg.t0pre})')
    stamp(a, cfg, 10)
    arrive(a, 0, 12, 13)
    def lo_reads(r0, r1, off=0):
        return [f'ds_read_b128 {vr(X+4*s,4)}, v{r1 if s&1 else r0} offset:{off+64*(s>>1)}' for s in range(6)]
    a(f'v_add_u32 v{U}, s56, v{RL0}\nv_add_u32 v{U+1}, s56, v{RL1}')
    if cfg.tokpos < 0:
        await_cnt(a, 5, 'P_sy5', 15, 13, 4)
        for hf in range(cfg.t0pre, 1 if cfg.tok3 == 2 else 2): issue_h('s57', 0, hf)
        if cfg.wmtok: arrive(a, 6, 15, 13)
    for l in lo_reads(U, U+1): a(l)
    await_cnt(a, 0, 'P_sy0', 12, 13, 4, setaddr=False)
    stamp(a, cfg, 2)
    def wl_reads(t, s):
        return [f'ds_read_b64_tr_b16 {vr(WL+(t*6+s)*4+2*sec,2)}, v14 offset:{s*3072+sec*768+t*64}' for sec in range(2)]
    def lat_mfma(t, s):
        c = '0' if s == 0 else vr(LT+16*t,16)
        return f'{MF32} {vr(LT+16*t,16)}, {vr(WL+(t*6+s)*4,4)}, {vr(X+4*s,4)}, {c}'
    def lateral(first):
        pend = []
        L = [wl_reads(0, s) for s in range(4)] if first else []
        seq = [(t, s) for t in range(3) for s in range(6)]
        for i, (t, s) in enumerate(seq):
            L.append(lat_mfma(t, s))
            if first and i + 4 < 18: L.append(wl_reads(*seq[i+4]))
            if s >= 1: L.append(pend[:4]); del pend[:4]
            if s == 5:
                pend += [f'v_mov_b32 v{SL}, v{LT}' if (t == 0 and j == 0) else f'v_add_f32 v{SL}, v{SL}, v{LT+16*t+j}' for j in range(16)]
        return flat(L), pend
    def sl_fin():
        return [f'v_mov_b32 v{SL+1}, v{SL}', 's_nop 1', f'v_permlane32_swap_b32 v{SL}, v{SL+1}', f'v_add_f32 v{SL}, v{SL}, v{SL+1}']
    L, pend = lateral(True)
    if cfg.wsum == 2:
        for i in range(4): a(f'v_mov_b32 v{U+i}, 0x3f803f80')
        M = []; k = 0
        for l in L:
            M.append(l)
            if l.startswith('v_mfma'):
                k += 1
                if 2 <= k < 8: M.append(f'ds_read_b128 {vr(F+4*(k-2),4)}, v{WSA+2} offset:{32*(k-2)}')
                if k >= 6 and k % 2 == 0 and k < 18:
                    s_ = (k - 6) // 2
                    M.append(f'{MF32} {vr(X+24,16)}, {vr(U,4)}, {vr(F+4*s_,4)}, {"0" if s_ == 0 else vr(X+24,16)}')
        L = M
    L = autowait(L, age=99)
    if cfg.tokpos > 0 and cfg.t0pre < 2:
        k = [i for i, l in enumerate(L) if l.startswith('v_mfma')][cfg.tokpos]
        for l in L[:k]: a(l)
        a('s_waitcnt lgkmcnt(0)')
        await_cnt(a, 5, 'P_sy5', 12, 13, 4)
        for hf in range(cfg.t0pre, 2): issue_h('s57', 0, hf)
        L = L[k:]
    for l in L: a(l)
    if cfg.wsum == 2:
        a(f'v_cvt_pk_bf16_f32 v{X+24}, v{X+24}, v{X+24}')
        a(f'ds_write_b16 v{WSA+1}, v{X+24}')
    if cfg.wsum == 1:
        for s_ in range(6): a(f'ds_read_b128 {vr(F+4*s_,4)}, v{WSA+2} offset:{32*s_}')
        for i in range(4): a(f'v_mov_b32 v{U+i}, 0x3f803f80')
        for l in pend[:8]: a(l)
        del pend[:8]
        for s_ in range(6):
            a(f's_waitcnt lgkmcnt({5-s_})')
            a(f'{MF32} {vr(X,16)}, {vr(U,4)}, {vr(F+4*s_,4)}, {"0" if s_ == 0 else vr(X,16)}')
            for l in pend[:2]: a(l)
            del pend[:2]
    for l in pend + sl_fin(): a(l)
    if cfg.wsum == 1:
        a(f'v_cvt_pk_bf16_f32 v{X}, v{X}, v{X}')
        a(f'ds_write_b16 v{WSA+1}, v{X}')
    if cfg.wsum: a('s_waitcnt lgkmcnt(0)')
    arrive(a, 16, 12, 13)
    stamp(a, cfg, 3)
    a(f's_lshl_b32 {t0}, {sP}, 2')
    a(f's_add_u32 {t0}, {t0}, {PF}')
    a(f'v_mov_b32 v{FLA}, {t0}')
    a(f'v_mov_b32 v{FLV}, 0')
    if cfg.st2: a(f's_mov_b32 s61, {f32(1e-5 * 9216)}')
    if cfg.tok3: await_cnt(a, 6, 'P_sy6', 12, 13, 4)
    if cfg.tok3 == 2: issue_h('s57', 0, 1)
    a(f's_cmp_lt_u32 {sP}, 2')
    a('s_cbranch_scc0 P_scriptB')
    def script(tag, tiles, lats, los):
        n = len(tiles)
        q = ['h0', 'h1']
        nxt = [2]
        done = set()
        def guard(r):
            if r >= 3 and 'g' not in done:
                done.add('g'); await_cnt(a, 4, f'P_w{tag}{r}', 12, 13, 4)
        def param(M, O):
            h = nxt[0]; r, hf = divmod(h, 2)
            guard(r)
            a(f's_add_u32 {M}, {sSlot}, {r*4*6144+3072*hf}')
            a(f's_add_u32 {O}, {tiles[r][0]}, {tiles[r][1]+3072*hf}')
            nxt[0] += 1
            return f'h{h}'
        def now_h():
            h = nxt[0]; r, hf = divmod(h, 2)
            guard(r)
            issue_h(tiles[r][0], r, hf, tiles[r][1]); nxt[0] += 1
            q.append(f'h{h}')
        def now_lo(key):
            a(f's_add_u32 m0, {sLoP}, {0 if key == "lo0" else 4*3072}')
            a('s_nop 0')
            for l in half(RLO, sLo0 if key == 'lo0' else sLo1): a(l)
            q.append(key)
        if cfg.t0pre == 2 and cfg.tok2: await_cnt(a, 5, f'P_sy5{tag}', 12, 13, 4)
        for key in los.get(-1, []): now_lo(key)
        for _ in range(cfg.early): now_h()
        for r in range(n):
            ng = min(2, 2*n - nxt[0])
            if r == 1 and cfg.r1late: ng = 1
            new = []
            if ng >= 1: new.append(param(M1, O1))
            if ng >= 2: new.append(param(M2, O2))
            last = r == n - 1
            if cfg.b2 and r >= 1: a(f"{TM(cfg)} s[{STAMP0+2*(10+r)}:{STAMP0+2*(10+r)+1}]")
            if lats[r] is not None:
                key = lats[r]
                if key in q:
                    i2 = q.index(key)
                    a(f's_waitcnt vmcnt({3*(len(q)-1-i2)})'); del q[:i2+1]
                if cfg.wsum and 'ws' not in done:
                    done.add('ws'); await_cnt(a, 16, f'P_ws{tag}', 12, 13, 4)
                off = 0 if key == 'lo0' else 4*3072
                a(f'v_add_u32 v12, {off}, v{RL0}\nv_add_u32 v13, {off}, v{RL1}')
                a(f's_call_b64 {RET}, P_lat')
            idx = max([q.index(x) for x in (f'h{2*r}', f'h{2*r+1}') if x in q] + [-1])
            if cfg.b2 and lats[r] is not None: a(f"{TM(cfg)} s[{STAMP0+2*(1 if r < 2 else 2)}:{STAMP0+2*(1 if r < 2 else 2)+1}]")
            if last and tag == 'a':
                a(f's_call_b64 {RET}, P_h0w'); break
            a(f's_waitcnt vmcnt({3*(len(q)-1-idx)})'); stamp(a, cfg, 4+r)
            del q[:idx+1]; q.extend(new)
            if last: break
            a(f's_call_b64 {RET}, P_h{ng}')
            if r == 1 and cfg.r1late: now_h()
            for key in los.get(r, []): now_lo(key)
            if tag == 'b' and r == cfg.wvr:
                if 'ws' not in done: await_cnt(a, 16, 'P_wl', 12, 13, 4)
                a(f's_sub_u32 {t0}, {sP}, 2\ns_mul_i32 {t0}, {t0}, 9216')
                a(f'v_lshlrev_b32 v12, 4, v1\nv_add_u32 v12, {t0}, v12')
                for k in range(3):
                    a(f's_add_u32 m0, {t0}, {WREG+3072*k}')
                    a(f's_add_u32 s50, s16, {3072*k}\ns_addc_u32 s51, s17, 0')
                    for j in range(3): a(f'global_load_lds_dwordx4 v12, s[50:51] offset:{1024*j}')
                    q.append('wv')
                if cfg.touch:
                    a(f's_mov_b32 s36, s26\ns_mov_b32 s37, s27\ns_mov_b32 s38, {REC_BYTES}\ns_mov_b32 s39, 0x20000')
                    a(f'v_and_b32 v12, 15, v1\nv_mul_u32_u24 v12, {65536 + cfg.skew}, v12')
                    if cfg.touch >= 2:
                        a('v_lshrrev_b32 v13, 4, v1\nv_lshl_add_u32 v12, v13, 6, v12')
                        a(f's_lshl_b32 {t0}, s2, 8')
                        a(f'buffer_load_dword v232, v12, {RWS}, {t0} offen' + (' sc1' if cfg.touch == 3 else ''))
                    else:
                        a(f'buffer_load_dword v232, v12, {RWS}, 0 offen')
                    a(f'v_mov_b32 v12, 0')
                    a(f'global_load_dword v234, v12, {SOUT}')
                    a(f'global_load_dword v233, v12, {SQ}')
                    q.append('touch')
    script('a', [None, (sH0, 0), (sH0, 73728), (sH1, 0), (sH1, 73728)], [None, 'lo0', None, 'lo1', None], {-1: ['lo0'], 1: ['lo1']})
    if cfg.b2: a(f"{TM(cfg)} s[{STAMP0+30}:{STAMP0+31}]")
    a('s_branch P_fin')
    a('P_scriptB:')
    script('b', [None, (sH0, 73728), (sH1, 0), (sH1, 73728)], [None, None, 'lo1', None], {0: ['lo1']})
    a(f's_call_b64 {RET}, P_h0')
    if cfg.b2: a(f"{TM(cfg)} s[{STAMP0+30}:{STAMP0+31}]")
    a(f'v_mov_b32 v{FLV}, 5')
    a('s_waitcnt vmcnt(0)')
    a(f'ds_write_b32 v{FLA}, v{FLV}')
    if cfg.trp: a('s_branch L_exit')
    if cfg.stamps: a('s_mov_b32 s100, 0')
    a('s_cmp_ge_u32 s2, 16')
    a('s_cbranch_scc1 L_exit')
    if cfg.stamps: a('s_mov_b32 s100, 1')
    if cfg.prog:
        a(f'v_mov_b32 v12, {CNT+48}')
        a('P_w17:')
        a('ds_read_b128 v[232:235], v12')
        a('s_waitcnt lgkmcnt(0)')
        a('v_min_u32 v232, v232, v233')
        a('v_min3_u32 v232, v232, v234, v235')
        a('v_cmp_gt_u32 vcc, 24576, v232')
        a('s_cbranch_vccnz P_w17')
    else:
        await_cnt(a, 17, 'P_w17', 12, 13, 4)
    a(f's_sub_u32 {t0}, {sP}, 2\ns_mul_i32 {t0}, {t0}, 9216')
    a(f'v_lshlrev_b32 v12, 4, v1\nv_add_u32 v12, {t0}, v12')
    for k in range(3):
        a(f's_add_u32 m0, {t0}, {WO+3072*k}')
        a(f's_add_u32 s50, s18, {3072*k}\ns_addc_u32 s51, s19, 0')
        for j in range(3): a(f'global_load_lds_dwordx4 v12, s[50:51] offset:{1024*j}')
    a('P_fin:')
    if cfg.trp: a('s_branch L_exit')
    stamp(a, cfg, 9)
    a('s_cmp_ge_u32 s2, 16')
    a('s_cbranch_scc1 L_exit')
    a('s_setprio 0')
    a(f's_load_dword s47, {SDBG}, 0')
    a('s_waitcnt lgkmcnt(0)')
    a('s_cmp_eq_u32 s47, 0')
    a('s_cbranch_scc1 P_getnonce')
    a('P_getnonce_d:')
    a(f's_mov_b32 s36, s26\ns_mov_b32 s37, s27\ns_mov_b32 s38, {REC_BYTES}\ns_mov_b32 s39, 0x20000')
    if cfg.pwait == 1: await_cnt(a, 7, 'P_w7', 12, 13, 4)
    elif cfg.pwait == 0: await_cnt(a, 3, 'P_w7', 12, 13, 4)
    else:
        a(f'v_mov_b32 v12, {CNT+48}')
        a('P_w7p:')
        a('ds_read_b128 v[232:235], v12')
        a('s_waitcnt lgkmcnt(0)')
        a('v_min_u32 v232, v232, v233')
        a('v_min3_u32 v232, v232, v234, v235')
        a(f'v_cmp_gt_u32 vcc, {24576*(cfg.pwait-1)}, v232')
        a('s_cbranch_vccnz P_w7p')
        await_cnt(a, 3, 'P_w7', 12, 13, 4)
    a('s_cmp_lt_u32 s50, 0x100')
    a('s_cbranch_scc1 L_comb')
    a('s_branch Z_comb')
    nonce_slow(a, 'P_getnonce', 'P_getnonce_d', 20)
    if cfg.dry:
        a('P_dry1:')
        a('s_call_b64 s[60:61], C_blk2')
        a('s_branch P_dryd')
        a('P_dry2:')
        a(f's_call_b64 {RET}, P_lat')
        a('s_branch P_dryd')
    a('P_lat:')
    if cfg.pp: a(f's_setprio {cfg.pl}')
    if cfg.wsum:
        wsr = [f'ds_read_b128 {vr(F+4*s_,4)}, v{WSA} offset:{32*s_}' for s_ in range(6)]
        L = lo_reads(12, 13)
        for i, (t, s_) in enumerate([(t, s_) for t in range(3) for s_ in range(6)]):
            L.append(lat_mfma(t, s_))
            if i < 6: L.append(wsr[i])
            if i >= 6 and i % 2 == 0: L.append(f'{MF16} {vr(SL,4)}, {vr(F+4*((i-6)//2),4)}, {vr(X+4*((i-6)//2),4)}, {"0" if i == 6 else vr(SL,4)}')
        for l in autowait(L, age=99): a(l)
        a(f's_setpc_b64 {RET}')
    else:
        L, pend = lateral(False)
        for l in autowait(lo_reads(12, 13) + L, age=99): a(l)
        a('s_nop 9')
        for l in pend + sl_fin(): a(l)
        a(f's_setpc_b64 {RET}')
    hp = cfg.pm if cfg.pp else None
    g1 = [f's_mov_b32 m0, {M1}', 's_nop 0'] + half(RHI, O1)
    g2 = [f's_mov_b32 m0, {M2}', 's_nop 0'] + half(RHI, O2)
    def traced(lines, first, n):
        step = max(1, len(lines) // n); k = first
        for i, l in enumerate(lines):
            if i % step == 0 and k < first + n:
                stamp(a, cfg, k, True); k += 1
            a(l)
    a('P_h2:')
    traced(B.p_head(g1, g2, hp), 2, 3)
    a('s_branch P_s1')
    a('P_h1:')
    traced(B.p_head(g1, (), hp), 2, 3)
    a('s_branch P_s1')
    a('P_h0w:')
    a('s_waitcnt vmcnt(0)')
    stamp(a, cfg, 8)
    a('P_h0:')
    for l in B.p_head((), (), hp): a(l)
    a('P_s1:')
    tail = B.p_tail(0, cfg.pv if cfg.pp else None) if not cfg.pk else B.p_tail_pk(cfg.pv if cfg.pp else None, bool(cfg.pk & 1), bool(cfg.pk & 2))
    if cfg.st2: tail = B.p_tail2(cfg.pv if cfg.pp else None, cfg.st2 == 1)
    traced(tail[:-1], 5, 9)
    if not cfg.st2: a(f'v_add_u32 v{FLV}, 1, v{FLV}')
    a('s_waitcnt lgkmcnt(0)')
    a(f'ds_write_b32 v{FLA}, v{FLV}')
    a(f's_setpc_b64 {RET}')

def gen_consumer(a, cfg):
    sH = 's40'
    t0, t1 = 's41', 's42'
    RET = 's[60:61]'
    sR = 's43'
    LIN, REC, WVA, XA = 2, 3, 8, 9
    CA0, CA1, CT0, CT1 = B.C.CA0, B.C.CA1, B.C.CT0, B.C.CT1
    PART = 12
    AP, U, LA, OP = B.C.AP, B.C.U, B.C.LA, B.C.OP
    WV = B.C.WV
    QB, WK, ME, QT, QP, TA, QF = 96, 108, 132, 156, 164, 168, 16
    T = 240
    T2 = 248
    a('L_cons:')
    if cfg.cearly: a(f's_setprio {cfg.cpp}')
    a('s_memrealtime s[58:59]')
    code_prefetch(a, 'L_pc', 0, -256)
    a(f's_sub_u32 {sH}, s3, 4')
    a(f'v_lshlrev_b32 v{LIN}, 4, v1')
    a(f's_mul_i32 s48, {sH}, 4608')
    a(f'v_add_u32 v{PART}, s48, v{LIN}')
    a(f's_min_u32 {t0}, {sH}, 2')
    a(f's_lshl_b32 s46, {sH}, 2')
    a(f's_add_u32 s46, s46, {t0}')
    a(f's_lshl_b32 s46, s46, 10')
    a(f'v_add_u32 v13, s46, v{LIN}')
    a(f's_lshl_b32 s54, {t0}, 10')
    a(f'v_add_u32 v10, s54, v{LIN}')
    a('s_lshr_b32 s50, s2, 3\ns_and_b32 s50, s50, 31\ns_mul_i32 s50, s50, 640')
    a(f'v_lshlrev_b32 v14, 7, v1')
    a(f'v_add_u32 v14, s50, v14')
    a(f'v_min_u32 v14, 18428, v14')
    N, G, RHO, KAP = T+4, T+5, T+6, T+7
    a(f'v_and_b32 v{N}, 15, v1')
    a(f'v_lshrrev_b32 v{G}, 4, v1')
    a(f'v_bfe_u32 v{RHO}, v1, 2, 2')
    a(f'v_and_b32 v{KAP}, 3, v1')
    a(f'v_mul_u32_u24 v{T+8}, 192, v{N}')
    a(f'v_lshl_add_u32 v{T+8}, v{G}, 4, v{T+8}')
    a(f'v_lshl_add_u32 v{T+9}, v{RHO}, 3, v{KAP}')
    a(f'v_mul_u32_u24 v{T+9}, 48, v{T+9}')
    a(f'v_lshl_add_u32 v{T+9}, v{G}, 4, v{T+9}')
    a(f'v_add_u32 v{T+9}, s48, v{T+9}')
    if cfg.spf & 6:
        a(f's_cmp_lt_u32 {sH}, 2')
        a(f's_cselect_b32 s96, 8, {sH}')
        a(f's_cselect_b32 s97, {sH}, 0')
        a('s_add_u32 s96, s96, s57')
        a('s_mul_i32 s98, s96, 43691')
        a('s_lshr_b32 s98, s98, 19')
        a('s_add_u32 s98, s98, s97')
        a('s_mul_i32 s98, s98, 73728')
        a('s_mul_i32 s96, s96, 6144')
        a('s_add_u32 s97, s96, s98')
    if cfg.bist: stamp(a, cfg, 12)
    a('s_waitcnt lgkmcnt(0)')
    if cfg.bist: stamp(a, cfg, 13)
    if cfg.spf & 6:
        a('s_add_u32 s98, s6, s97\ns_addc_u32 s99, s7, 0')
    a(f's_cmp_eq_u32 {sH}, 0\ns_cselect_b64 s[50:51], {SWV}, {SWQ}')
    a(f's_cmp_eq_u32 {sH}, 2\ns_cselect_b64 s[50:51], {SWK}, s[50:51]')
    a(f's_cmp_eq_u32 {sH}, 3\ns_cselect_b64 s[50:51], {SWM}, s[50:51]')
    a('s_mov_b64 exec, 31')
    a(f'global_load_dword v200, v14, s[50:51]')
    a('s_mov_b64 exec, -1')
    o2 = cfg.spn if cfg.spf & 1 else 0
    if cfg.spf & 2:
        for i in range(cfg.spn): a(f's_load_dword s96, s[98:99], {128*(o2+i)}')
        o2 += cfg.spn
    if cfg.bist: stamp(a, cfg, 11)
    a('s_barrier')
    if cfg.bist: stamp(a, cfg, 14)
    a(f's_lshl_b32 s50, s2, 2\ns_xor_b32 s50, s50, {sH}\ns_cmp_eq_u32 s50, 3')
    a('s_cbranch_scc1 C_mknonce')
    a('C_mknonce_d:')
    if cfg.fake: arrive(a, 5, 14, 15)
    def wk_loads():
        a('s_mov_b32 exec_hi, 0xffff')
        for s in range(3):
            for tt in range(2):
                a(f'global_load_dwordx4 {vr(WK+(2*s+tt)*4,4)}, v{T+9}, {SWK} offset:{1536*s+192*tt}')
        a('s_mov_b32 exec_hi, -1')
    if cfg.pro == 2:
        for s in range(3): a(f'global_load_dwordx4 {vr(QB+4*s,4)}, v{T+8}, {SQ} offset:{64*s}')
        dma_part(a, SWQ, WQ, PART, 's48')
        if cfg.wkpos == 2: arrive(a, 5, 14, 15)
        a('s_mov_b32 s57, s46')
        a(f'v_mov_b32 v{PART}, v13')
        for i in range(24): a(f'v_mov_b32 v{WK+i}, 0')
        wk_loads()
        if cfg.wkpos == 1: arrive(a, 5, 14, 15)
    elif not cfg.fake:
        M1S, M1L, M2S, M2L = (SWM, WM, SWQ, WQ) if cfg.mfirst else (SWQ, WQ, SWM, WM)
        a(f's_cmp_ge_u32 {sH}, 3')
        a('s_cbranch_scc1 C_noy')
        a(f's_add_u32 m0, s54, {QS}')
        a(f's_cmp_ge_u32 {sH}, 2')
        a(f'global_load_lds_dwordx4 v10, {SQ}')
        a('s_cbranch_scc1 C_noy')
        dma_extra(a, M1S, M1L, 13, 's46')
        a('C_noy:')
        dma_main(a, M1S, M1L, 13, 's46')
        if cfg.wkpos == 2: arrive(a, 5, 14, 15)
        a('s_mov_b32 s57, s46')
        a(f'v_mov_b32 v{PART}, v13')
        for i in range(24): a(f'v_mov_b32 v{WK+i}, 0')
    stamp(a, cfg, 1)
    a(f's_mov_b32 s36, s26\ns_mov_b32 s37, s27\ns_mov_b32 s38, {REC_BYTES}\ns_mov_b32 s39, 0x20000')
    a(f's_and_b32 s49, {sH}, 1\ns_lshl_b32 s55, s49, 1\ns_lshr_b32 s56, {sH}, 1\ns_add_u32 s55, s55, s56')
    a(f's_lshl_b32 {t0}, s2, 2\ns_add_u32 {t0}, {t0}, s55\ns_lshl_b32 {t0}, {t0}, 6')
    a(f'v_mul_u32_u24 v{REC}, {65536 + cfg.skew}, v{N}')
    a(f'v_lshl_add_u32 v{REC}, v{G}, 4, v{REC}')
    a(f'v_add_u32 v{REC}, {t0}, v{REC}')
    a('s_mul_i32 s52, s56, 12288')
    a(f'v_and_b32 v{T+10}, 31, v1')
    a(f'v_lshrrev_b32 v{T+11}, 5, v1')
    a(f'v_lshlrev_b32 v{T+12}, 1, v{N}')
    a(f'v_bfe_u32 v{T+12}, {SF}, v{T+12}, 2')
    a(f'v_xor_b32 v{T+12}, v{T+12}, v{T+11}')
    a(f'v_mul_u32_u24 v{T+13}, 192, v{T+10}')
    a(f'v_add_u32 v{T+13}, s52, v{T+13}')
    a(f'v_lshl_add_u32 v{CA0}, v{T+12}, 4, v{T+13}')
    a(f'v_xor_b32 v{T+12}, 2, v{T+12}')
    a(f'v_lshl_add_u32 v{CA1}, v{T+12}, 4, v{T+13}')
    a(f'v_lshl_add_u32 v{T+12}, v{T+11}, 2, v{RHO}')
    a(f'v_bfe_u32 v{T+13}, v1, 4, 1')
    a(f'v_lshrrev_b32 v{T+14}, 1, v{KAP}')
    a(f'v_lshl_add_u32 v{T+14}, v{T+13}, 1, v{T+14}')
    a(f'v_and_b32 v{T+15}, 1, v{KAP}')
    a(f'v_lshlrev_b32 v{T+15}, 3, v{T+15}')
    a(f'v_add_u32 v{T+15}, s52, v{T+15}')
    for sec, dst in ((0, CT0), (1, CT1)):
        if sec: a(f'v_add_u32 v{T+12}, 8, v{T+12}')
        a(f'v_lshlrev_b32 v{dst}, 1, v{T+12}')
        a(f'v_bfe_u32 v{dst}, {SF}, v{dst}, 2')
        a(f'v_xor_b32 v{dst}, v{dst}, v{T+14}')
        a(f'v_lshl_add_u32 v{dst}, v{dst}, 4, v{T+15}')
        a(f'v_mul_u32_u24 v10, 192, v{T+12}')
        a(f'v_add_u32 v{dst}, v{dst}, v10')
    a(f'v_lshl_add_u32 v{WVA}, v{T+11}, 2, v{RHO}')
    a(f'v_lshl_add_u32 v{WVA}, v{T+13}, 4, v{WVA}')
    a(f'v_mul_u32_u24 v{WVA}, 48, v{WVA}')
    a(f'v_lshl_add_u32 v{WVA}, v{KAP}, 3, v{WVA}')
    a(f'v_add_u32 v{WVA}, {WREG}, v{WVA}')
    a(f's_xor_b32 {t0}, s55, 1')
    a(f's_mul_i32 s53, {t0}, 4608')
    a(f's_mul_i32 s46, s55, 4608')
    a(f'v_mov_b32 v10, s46')
    a(f'v_mov_b32 v11, s53')
    a(f'v_cmp_eq_u32 vcc, 0, v{T+13}')
    a(f'v_mul_u32_u24 v{XA}, 192, v{N}')
    a(f'v_lshl_add_u32 v{XA}, v{T+11}, 4, v{XA}')
    a(f'v_cndmask_b32 v10, v11, v10, vcc')
    a(f'v_add_u32 v{XA}, v{XA}, v10')
    a(f'v_add_u32 v{XA}, {WQ}, v{XA}')
    a(f'v_lshl_add_u32 v{T+12}, v{G}, 3, v{RHO}')
    a(f'v_mul_u32_u24 v10, 48, v{T+12}')
    a(f'v_min_u32 v11, 2, v{KAP}')
    a(f'v_lshl_add_u32 v10, v11, 4, v10')
    a(f's_add_u32 {t0}, s48, {WQ}')
    a(f'v_add_u32 v10, {t0}, v10')
    a(f'v_add_u32 v13, {t0}, v{T+8}')
    a(f'v_add_u32 v{T+8}, {QS}, v{T+8}')
    a(f'v_mul_u32_u24 v11, 192, v{T+12}')
    a(f'v_lshl_add_u32 v11, v{KAP}, 4, v11')
    a(f'v_add_u32 v11, {WM}, v11')
    a(f'v_and_b32 v{T+12}, 1, v1')
    a(f'v_cmp_eq_u32 vcc, v{T+12}, v{T+13}')
    a(f'v_mov_b32 v{T+12}, 0x3f803f80')
    for i in range(52 - cfg.zl):
        a(f'v_mov_b32 v{U+i}, 0')
        if i == 1:
            for k in range(4): a(f'v_cndmask_b32 v{OP+k}, 0, v{T+12}, vcc')
    if cfg.fake:
        a(f's_add_u32 s58, s58, {cfg.fake}')
        a('C_fk:')
        a('s_memrealtime s[50:51]')
        a('s_waitcnt lgkmcnt(0)')
        a('s_sub_u32 s50, s50, s58')
        a('s_cmp_lt_i32 s50, 0')
        a('s_cbranch_scc1 C_fk')
        stamp(a, cfg, 2)
        a(f's_mul_i32 s50, {sH}, 3072')
        a(f's_add_u32 s50, s50, {8<<20}')
        a(f's_add_u32 s50, s26, s50\ns_addc_u32 s51, s27, 0')
        a(f's_add_u32 m0, s48, {WQ}')
        a('s_nop 0')
        for k in range(3): a(f'global_load_lds_dwordx4 v{LIN}, s[50:51] offset:{1024*k}' + (' sc1' if cfg.fsc else ''))
        a('s_waitcnt vmcnt(0)')
        stamp(a, cfg, 15)
        lds_sync(a, 3, 'C_sy3', 14, 15)
        a('s_cmp_eq_u32 s2, 999')
        a('s_cbranch_scc1 Z_sy3')
    else:
        def me_rd(sp, st): return [f'ds_read_b64_tr_b16 {vr(TA+(sp*6+st)*4+2*sec,2)}, v11 offset:{sp*6144+sec*768+(st>>1)*64+(st&1)*8}' for sec in range(2)]
        def q_rd(s, tt): return [f'ds_read_b64_tr_b16 {vr(QF+(tt*3+s)*4+2*sec,2)}, v10 offset:{s*1536+sec*192+tt*8}' for sec in range(2)]
        def q_mm(s, tt): return f'{MF16} {vr(QT+4*tt,4)}, {vr(QF+(tt*3+s)*4,4)}, {vr(QB+4*s,4)}, {"0" if s == 0 else vr(QT+4*tt,4)}'
        if cfg.pro == 2:
            if cfg.wkpos == 3: arrive(a, 5, 14, 15)
            if cfg.wmtok: await_cnt(a, 6, 'C_tk6', 14, 15, 4)
            if cfg.bist: stamp(a, cfg, 7)
            a(f's_cmp_ge_u32 {sH}, 2')
            a('s_cbranch_scc1 C_nox')
            dma_extra(a, SWM, WM, PART, 's57')
            a('C_nox:')
            dma_main(a, SWM, WM, PART, 's57')
            if cfg.wkpos == 0: arrive(a, 5, 14, 15)
            epi_setup(a, cfg)
            if cfg.bist: stamp(a, cfg, 6)
            a('s_waitcnt vmcnt(10)')
            if cfg.bist: stamp(a, cfg, 5)
            if cfg.cpp: a(f's_setprio {cfg.cpp}')
            stamp(a, cfg, 2)
            qseq = [(s, tt) for s in range(3) for tt in range(2)]
            L = [q_rd(*x) for x in qseq] + [q_mm(*x) for x in qseq]
            for l in autowait(flat(L), age=99): a(l)
            for i in range(8): a(f'v_add_f32 v{QT+i}, v{QT+i}, v{QT+i}')
            for i in range(4): a(f'v_cvt_pk_bf16_f32 v{QP+i}, v{QT+2*i}, v{QT+2*i+1}')
            a('s_waitcnt vmcnt(4)')
            for st in range(6):
                a(f'{MF16} {vr(ME+4*st,4)}, {vr(WK+4*st,4)}, {vr(QP,4)}, 0')
            if cfg.bist: stamp(a, cfg, 4)
            a('s_waitcnt vmcnt(0)')
            lds_sync(a, 1, 'C_sy1', 14, 15)
            if cfg.bist: stamp(a, cfg, 8)
            stamp(a, cfg, 15)
            seq = [(sp, st) for sp in range(3) for st in range(6)]
            L = [me_rd(*seq[i]) for i in range(7)]
            for i, (sp, st) in enumerate(seq):
                L.append(f'{MF16} {vr(ME+4*st,4)}, {vr(TA+(sp*6+st)*4,4)}, {vr(QB+4*sp,4)}, {vr(ME+4*st,4)}')
                if i + 7 < 18: L.append(me_rd(*seq[i+7]))
            for l in autowait(flat(L), age=99): a(l)
        else:
            if cfg.spf & 4:
                for i in range(min(cfg.spn, 48 - o2)): a(f's_load_dword s96, s[98:99], {128*(o2+i)}')
            if cfg.bist: stamp(a, cfg, 7)
            if cfg.wkpos == 3: arrive(a, 5, 14, 15)
            a(f's_cmp_ge_u32 {sH}, 2')
            a('s_cbranch_scc1 C_nox')
            dma_extra(a, M2S, M2L, PART, 's57')
            a('C_nox:')
            dma_main(a, M2S, M2L, PART, 's57')
            if cfg.wkpos == 1: arrive(a, 5, 14, 15)
            a('s_mov_b32 exec_hi, 0xffff')
            for s in range(3):
                for tt in range(2):
                    a(f'global_load_dwordx4 {vr(WK+(2*s+tt)*4,4)}, v{T+9}, {SWK} offset:{1536*s+192*tt}')
            a('s_mov_b32 exec_hi, -1')
            if cfg.wkpos == 0: arrive(a, 5, 14, 15)
            if cfg.tok3: arrive(a, 6, 14, 15)
            epi_setup(a, cfg)
            if cfg.bist: stamp(a, cfg, 6)
            a('s_waitcnt vmcnt(6)')
            if cfg.bist: stamp(a, cfg, 5)
            lds_sync(a, 1, 'C_sy1', 14, 15)
            if cfg.cpp: a(f's_setprio {cfg.cpp}')
            stamp(a, cfg, 2)
            def me_rd(sp, st): return [f'ds_read_b64_tr_b16 {vr(TA+(sp*6+st)*4+2*sec,2)}, v11 offset:{sp*6144+sec*768+(st>>1)*64+(st&1)*8}' for sec in range(2)]
            def q_rd(s, tt): return [f'ds_read_b64_tr_b16 {vr(QF+(tt*3+s)*4+2*sec,2)}, v10 offset:{s*1536+sec*192+tt*8}' for sec in range(2)]
            def q_mm(s, tt): return f'{MF16} {vr(QT+4*tt,4)}, {vr(QF+(tt*3+s)*4,4)}, {vr(QB+4*s,4)}, {"0" if s == 0 else vr(QT+4*tt,4)}'
            def me_mm(sp, st): return f'{MF16} {vr(ME+4*st,4)}, {vr(TA+(sp*6+st)*4,4)}, {vr(QB+4*sp,4)}, {"0" if sp == 0 else vr(ME+4*st,4)}'
            seq = [(sp, st) for sp in range(3) for st in range(6)]
            qseq = [(s, tt) for s in range(3) for tt in range(2)]
            qb = [f'ds_read_b128 {vr(QB+4*s,4)}, v{T+8} offset:{64*s}' for s in range(3)]
            L = [qb[0], q_rd(0,0), q_rd(0,1), qb[1], q_rd(1,0), q_rd(1,1), qb[2], q_rd(2,0), q_rd(2,1)]
            for i, (s_, tt) in enumerate(qseq):
                L.append(q_mm(s_, tt)); L.append(me_rd(*seq[i]))
            post = [f'v_add_f32 v{QT+i}, v{QT+i}, v{QT+i}' for i in range(8)] + [f'v_cvt_pk_bf16_f32 v{QP+i}, v{QT+2*i}, v{QT+2*i+1}' for i in range(4)]
            for i, (sp, st) in enumerate(seq):
                L.append(me_mm(sp, st))
                if i + 6 < 18: L.append(me_rd(*seq[i+6]))
                if i >= 3: L.append(post[:1]); del post[:1]
            L.append(post)
            for l in autowait(flat(L), age=99): a(l)
            if cfg.bist: stamp(a, cfg, 4)
            a('s_waitcnt vmcnt(0)')
            if cfg.bist: stamp(a, cfg, 8)
            stamp(a, cfg, 15)
            for st in range(6):
                a(f'{MF16} {vr(ME+4*st,4)}, {vr(WK+4*st,4)}, {vr(QP,4)}, {vr(ME+4*st,4)}')
        sc = 96 ** -0.5 * math.log2(math.e)
        a(f's_mov_b32 {t0}, {f32(sc)}')
        for s in range(3):
            for i in range(8): a(f'v_mul_f32 v{ME+8*s+i}, {t0}, v{ME+8*s+i}')
            for i in range(4): a(f'v_cvt_pk_bf16_f32 v{ME+8*s+i}, v{ME+8*s+2*i}, v{ME+8*s+2*i+1}')
            a(f'ds_write_b128 v13, {vr(ME+8*s,4)} offset:{64*s}')
            a(f'{MF16} {vr(QT,4)}, {vr(ME+8*s,4)}, {vr(ME+8*s,4)}, {"0" if s == 0 else vr(QT,4)}')
        a(f's_mov_b32 {t0}, {f32(THR)}')
        a(f'v_mov_b32 v14, {CNT + 4*3}')
        a(f'v_max3_f32 v{QT}, v{QT}, v{QT+1}, v{QT+2}')
        a(f'v_max_f32 v{QT}, v{QT}, v{QT+3}')
        a(f'v_cmp_nge_f32 vcc, {t0}, v{QT}')
        a('s_cmp_eq_u64 vcc, 0')
        a('s_cselect_b32 s51, 1, 0x101')
        a('v_mov_b32 v15, s51')
        a('s_waitcnt lgkmcnt(0)')
        a('s_mov_b64 exec, 1')
        a('ds_add_rtn_u32 v15, v14, v15')
        a('s_mov_b64 exec, -1')
        a('s_waitcnt lgkmcnt(0)')
        a('v_readfirstlane_b32 s50, v15')
        a('s_add_u32 s50, s50, s51')
        a('s_cmp_eq_u32 s50, 4')
        a('s_cbranch_scc1 C_sy3_ok')
        await_cnt(a, 3, 'C_sy3', 14, 15, 4, setaddr=False)
        a('s_cmp_eq_u32 s50, 4')
        a('s_cbranch_scc0 Z_sy3')
    if not cfg.fake: a('C_sy3_ok:')
    stamp(a, cfg, 3)
    cons_main(a, cfg, False)
    a('C_mknonce:')
    a('s_or_b32 s50, s58, 1')
    a('v_mov_b32 v20, s50\nv_mov_b32 v21, 0\nv_mov_b32 v22, 0')
    a('s_mov_b64 exec, 1')
    a(f'global_atomic_cmpswap v22, v[20:21], {SDBG} sc1')
    a('s_mov_b64 exec, -1')
    a('s_branch C_mknonce_d')
    nonce_slow(a, 'C_getnonce', 'C_getnonce_d', T2)

def slow_rescale(NEW):
    MX = 160; U, LA = B.C.U, B.C.LA
    L = [f'v_max_f32 v{NEW}, v{NEW}, v{MX}',
         f'v_sub_f32 v{MX+4}, v{MX}, v{NEW}',
         f'v_exp_f32 v{MX+4}, v{MX+4}',
         f'v_mov_b32 v{MX}, v{NEW}', 's_nop 1',
         f'v_mov_b32 v{MX+5}, v{MX+4}', f'v_mov_b32 v{MX+6}, v{MX+4}', 's_nop 1',
         f'v_permlane16_swap_b32 v{MX+5}, v{MX+6}', 's_nop 1']
    L += [f'v_mul_f32 v{U+i}, v{U+i}, v{MX+4}' for i in range(48)]
    L += [f'v_mul_f32 v{LA+i}, v{LA+i}, v{MX+5+(i&1)}' for i in range(4)]
    return L

def slow_tile(off):
    MX = 160; S = B.C.S[0]
    tb = B.C.TB
    B.C.TB = off
    sv = (B.C.KA, B.C.KT, B.C.S, B.C.P)
    B.C.KA = [sv[0][0]] * 2; B.C.KT = [sv[1][0]] * 2; B.C.S = [S] * 2; B.C.P = [S] * 2
    L = [B.ka(1, s) for s in range(6)] + ['s_waitcnt lgkmcnt(0)']
    L += [B.kt(1, ks, t) for ks in range(2) for t in range(3)]
    L += [B.sm(1, s) for s in range(6)] + ['s_nop 15', 's_nop 15']
    L += [f'v_max3_f32 v{MX+1}, v{S}, v{S+1}, v{S+2}']
    L += [f'v_max3_f32 v{MX+1}, v{MX+1}, v{S+3+2*i}, v{S+4+2*i}' for i in range(6)]
    L += [f'v_max_f32 v{MX+1}, v{MX+1}, v{S+15}', f'v_mov_b32 v{MX+2}, v{MX+1}', 's_nop 1',
          f'v_permlane32_swap_b32 v{MX+1}, v{MX+2}', 's_nop 1', f'v_max_f32 v{MX+1}, v{MX+1}, v{MX+2}']
    L += slow_rescale(MX+1)
    L += [f'v_sub_f32 v{S+i}, v{S+i}, v{MX}' for i in range(16)]
    L += [B.ex(1, i) for i in range(16)] + ['s_nop 1'] + [B.cv(1, i) for i in range(8)]
    L += ['s_waitcnt lgkmcnt(0)', 's_nop 1']
    L += [B.pv(1, ks, t) for ks in range(2) for t in range(4)] + ['s_nop 15', 's_nop 15']
    B.C.TB = tb
    B.C.KA, B.C.KT, B.C.S, B.C.P = sv
    return flat(L)

EPI_REGS = (8, 240, 241, 242, 243, 0, 251, 254, 255, 244, 245)
def epi_setup(a, cfg):
    for i in range(52 - cfg.zl, 52): a(f'v_mov_b32 v{B.C.U+i}, 0')
    sH = 's40'
    t0, t1 = 's41', 's42'
    LIN, WVA = 2, 8
    WA0, FLA, XO, XP, FO, FP, ONE, MRA, THRV, XLW, XLR = EPI_REGS
    THR, INC = 246, 247
    a(f'v_add_u32 v{WA0}, s46, v{WVA}')
    a(f's_mul_i32 {t0}, {sH}, {XST}')
    a(f's_xor_b32 {t1}, {sH}, 2')
    a(f's_mul_i32 {t1}, {t1}, {XST}')
    a(f's_add_u32 {t0}, {t0}, {XCH}')
    a(f's_add_u32 {t1}, {t1}, {XCH+3072}')
    a(f'v_add_u32 v{XO}, {t0}, v{LIN}')
    a(f'v_lshlrev_b32 v{XLR}, 2, v1')
    a(f'v_add_u32 v{XLW}, {t1}, v{XLR}')
    a(f'v_add_u32 v{XLR}, {t0}, v{XLR}')
    a(f's_mov_b32 s52, 0xffff0000\ns_mov_b32 s53, 0xffff0000')
    if cfg.xv == 2:
        a(f's_sub_u32 {t1}, {t1}, 3072')
        a(f'v_add_u32 v{XP}, {t1}, v{LIN}')
        a('s_mul_i32 s54, s56, -9216')
        a('s_add_u32 s54, s54, 4608')
    elif cfg.xv == 0:
        a(f'v_add_u32 v{XP}, {t1}, v{LIN}')
    else:
        a(f'v_mov_b32 v{XP}, {t0}')
        a(f'v_mov_b32 v14, {t1}')
        a(f'v_and_b32 v15, 15, v1')
        a(f'v_cndmask_b32 v{XP}, v{XP}, v14, s[52:53]')
        a(f'v_lshl_add_u32 v{XP}, v15, 4, v{XP}')
        a(f'v_lshrrev_b32 v15, 5, v1')
        a(f'v_lshl_add_u32 v{XP}, v15, 9, v{XP}')
    a(f'v_and_b32 v{FLA}, 3, v1')
    a(f's_xor_b32 {t0}, s56, 1')
    a(f'v_cmp_eq_u32 vcc, {t0}, v{FLA}')
    a(f'v_lshlrev_b32 v{FLA}, 2, v{FLA}')
    a(f'v_add_u32 v{FLA}, {PF}, v{FLA}')
    a(f'v_cndmask_b32 v{THRV}, 5, 4, vcc')
    a(f's_lshl_b32 {t0}, {sH}, 2')
    a(f's_add_u32 {t0}, {t0}, {CNT+32}')
    a(f'v_mov_b32 v{FO}, {t0}')
    a(f'v_xor_b32 v{FP}, 8, v{FO}')
    a(f'v_mov_b32 v{ONE}, 1')
    a('s_mov_b32 s44, 0\ns_mov_b32 s45, -1')
    a(f'v_bfe_u32 v{INC}, v1, 1, 1')
    a(f'v_cmp_eq_u32 vcc, s56, v{INC}')
    if cfg.uni == 2:
        a('s_mov_b32 s61, 4')
        a('s_mul_i32 s59, s56, -6144')
        a('s_add_u32 s59, s59, 24576')
    else:
        a('s_add_u32 s61, s56, 3')
        a('s_mov_b32 s59, -6144')
    a('s_mov_b32 s43, 0')
    a(f'v_cndmask_b32 v{INC}, 0, 1, vcc')
    a(f'v_mov_b32 v{THR}, v{INC}')

def cons_main(a, cfg, slow):
    sH = 's40'
    t0, t1 = 's41', 's42'
    RET = 's[60:61]'
    sR = 's43'
    LIN, REC, WVA, XA = 2, 3, 8, 9
    CA0, CA1, CT0, CT1 = B.C.CA0, B.C.CA1, B.C.CT0, B.C.CT1
    AP, U, LA, OP = B.C.AP, B.C.U, B.C.LA, B.C.OP
    WV = B.C.WV
    T2 = 248
    Z = 'Z' if slow else 'C'
    prog = cfg.prog
    OOL = []
    MX = 160
    if slow:
        xv = cfg.xv; cfg = Cfg(); cfg.stamps = False; cfg.xv = xv
        a('Z_sy3:')
        a('ds_read_b32 v15, v14')
        a('s_waitcnt lgkmcnt(0)')
        a('v_readfirstlane_b32 s50, v15')
        a('s_and_b32 s50, s50, 0xff')
        a('s_cmp_lt_u32 s50, 4')
        a('s_cbranch_scc1 Z_sy3')
        a(f'v_mov_b32 v{MX}, {f32(-3e38)}')
    WA0, FLA, XO, XP, FO, FP, ONE, MRA, THRV, XLW, XLR = EPI_REGS
    for s in range(6): a(f'ds_read_b128 {vr(AP+4*s,4)}, v{XA} offset:{32*s}')
    if slow:
        a(f's_lshl_b32 {t0}, s56, 3\ns_add_u32 {t0}, {t0}, {PF}')
        a(f'v_mov_b32 v10, {t0}')
        a(f's_mov_b32 {sR}, 1')
        a('s_waitcnt lgkmcnt(0)')
        arrive(a, 4, 14, 15)
    if slow:
        a(f's_lshl_b32 {t0}, s55, 8\ns_add_u32 {t0}, {t0}, s2\ns_lshl_b32 {t0}, {t0}, 3\ns_add_u32 {t0}, {t0}, {MREC}')
        a(f'v_and_b32 v{MRA}, 15, v1')
        a(f'v_lshlrev_b32 v{MRA}, 13, v{MRA}')
        a(f'v_add_u32 v{MRA}, {t0}, v{MRA}')
    wvr = [f'ds_read_b64_tr_b16 {vr(WV+(tt*3+t)*4+2*sec,2)}, v{WA0} offset:{t*1536+sec*384+tt*32}'
           for t in range(3) for tt in range(2) for sec in range(2)]
    WA1, REC2 = 232, 233
    def wreg(hh, tt, t): return 200 + ((hh*2+tt)*2+t)*4 if t < 2 else 16 + (hh*2+tt)*4
    xtra = []
    if cfg.xv == 2:
        wvr = [f'ds_read_b64_tr_b16 {vr(wreg(hh,tt,t)+2*sec,2)}, v{(WA0, WA1)[hh]} offset:{t*1536+sec*384+tt*32}'
               for t in range(3) for hh in range(2) for tt in range(2) for sec in range(2)]
        xtra = [f'v_add_u32 v{WA1}, s54, v{WA0}', f'v_xor_b32 v{REC2}, 64, v{REC}']
        if slow:
            for l in xtra: a(l)
    if not slow:
        VF, THR, INC = T2+4, 246, 247
        sAdv, sStop = 's60', 's61'
        flag = f'ds_read_b32 v{VF}, v{FLA}'
        def waitloop(tag, go, prio=None):
            a(f'{tag}:')
            if cfg.wsl: a(f's_sleep {cfg.wsl}')
            a(flag)
            a('s_waitcnt lgkmcnt(0)')
            a(f'v_cmp_lt_u32 vcc, v{VF}, v{THR}')
            a(f's_cbranch_vccnz {tag}')
            for s_ in range(6): a(B.ka(0, s_))
            a(f's_branch {go}')
        def check(wait, go):
            a('s_waitcnt lgkmcnt(6)')
            a(f'v_cmp_lt_u32 vcc, v{VF}, v{THR}')
            a(f's_cbranch_vccnz {wait}')
            a(f'{go}:')
        class Lst:
            def __init__(s_): s_.l = []
            def __call__(s_, t): s_.l += [x.strip() for x in t.split('\n') if x.strip()]
        hook = Lst()
        if not cfg.prog: arrive(hook, 17, 14, 15)
        hook.l += xtra
        mk_tag(hook, T2+1)
        a(flag)
        for s_ in range(6): a(B.ka(0, s_))
        a(f'v_mov_b32 v14, {CNT + 4*4}')
        a('s_waitcnt lgkmcnt(7)')
        a('s_mov_b64 exec, 1')
        a(f'ds_add_u32 v14, v{ONE}')
        a('s_mov_b64 exec, -1')
        if cfg.cpp or cfg.cmain: a(f's_setprio {cfg.cmain}')
        a('C_loop:')
        check('C_wait', 'C_go')
        if cfg.stamps and not cfg.b2:
            pass
        if cfg.b2 and not cfg.etr:
            for j in (11, 12, 13): a(f's_mov_b64 s[{STAMP0+2*j}:{STAMP0+2*j+1}], s[{STAMP0+2*j+2}:{STAMP0+2*j+3}]')
            a(f"{TM(cfg)} s[{STAMP0+28}:{STAMP0+29}]")
        top = ([f's_setprio {cfg.ctop}'] if cfg.ctop else []) + [f's_add_u32 {sR}, {sR}, 1', f'v_add_u32 v{THR}, v{THR}, v{INC}', f's_cmp_eq_u32 {sR}, 4', f's_cselect_b32 {sAdv}, s59, 24576'] + ([f'ds_write_b32 v{FO}, v{CA0} offset:16'] if cfg.prog else [])
        advl = [f'v_add_u32 v{r}, {sAdv}, v{r}' for r in (CA0, CA1, CT0, CT1)]
        for l in B.cons2p(advl, flag, top): a(l)
        if cfg.stamps:
            for j in (5, 6): a(f's_mov_b64 s[{STAMP0+2*j}:{STAMP0+2*j+1}], s[{STAMP0+2*j+2}:{STAMP0+2*j+3}]')
            stamp(a, cfg, 7)
        a(f's_cmp_eq_u32 {sR}, {sStop}')
        a('s_cbranch_scc1 C_done')
        a(f's_load_dword s47, {SDBG}, 0')
        a('s_branch C_loop')
        waitloop('C_wait', 'C_go')
        a('C_done:')
        a('s_cmp_eq_u32 s47, 0')
        a('s_cbranch_scc1 C_getnonce')
        a('C_getnonce_d:')
        def specloop(tag, go):
            a(f'{tag}:')
            a(flag)
            for s_ in range(6): a(B.ka(0, s_))
            a('s_waitcnt lgkmcnt(6)')
            a(f'v_cmp_lt_u32 vcc, v{VF}, v{THR}')
            a(f's_cbranch_vccz {go}')
            a(f's_branch {tag}')
        if cfg.uni:
            a(f'v_mov_b32 v{THR}, v{THRV}')
            stamp(a, cfg, 4)
            check('C_w13', 'C_g13')
            stamp(a, cfg, 8)
            a('s_setprio 3')
            for l in (B.cons1x(wvr, True, hook.l) if cfg.uni == 2 else (B.cons2y if cfg.xv == 2 else B.cons2x)(wvr, 24576, True, hook.l)): a(l)
            OOL.append(lambda: (specloop if cfg.spec else waitloop)('C_w13', 'C_g13'))
        else:
            a('s_cmp_eq_u32 s56, 0')
            a('s_cbranch_scc1 C_r3s')
            a(f'v_mov_b32 v{THR}, v{THRV}')
            stamp(a, cfg, 4)
            check('C_w13', 'C_g13')
            stamp(a, cfg, 8)
            a('s_setprio 3')
            for l in (B.cons2y if cfg.xv == 2 else B.cons2x)(wvr, 24576, True, hook.l): a(l)
            a('s_branch C_epi')
            (specloop if cfg.spec else waitloop)('C_w13', 'C_g13')
            waitloop('C_w12', 'C_g12')
            (specloop if cfg.spec else waitloop)('C_w16', 'C_g16')
            a('C_r3s:')
            check('C_w12', 'C_g12')
            adv = [f'v_add_u32 v{r}, 24576, v{r}' for r in (CA0, CA1, CT0, CT1)]
            for l in B.cons1p(adv, flag, hook.l + [f'v_mov_b32 v{THR}, v{THRV}']): a(l)
            stamp(a, cfg, 4)
            check('C_w16', 'C_g16')
            stamp(a, cfg, 8)
            a('s_setprio 3')
            for l in (B.cons1y if cfg.xv == 2 else B.cons1x)(wvr, True): a(l)
    if slow:
        if cfg.cpp: a(f's_setprio {cfg.cmain}')
        a(f's_call_b64 {RET}, {Z}_blk')
        stamp(a, cfg, 5)
        a(f's_load_dword s47, {SDBG}, 0')
        if cfg.c2 is not None: a(f's_setprio {cfg.c2}')
        a(f's_call_b64 {RET}, {Z}_blk')
        stamp(a, cfg, 6)
        if prog: a(f'ds_write_b32 v{FO}, v{CA0} offset:16')
        else: arrive(a, 17, 14, 15)
        a('s_cmp_eq_u32 s47, 0')
        a(f's_cbranch_scc1 {Z}_getnonce')
        a(f'{Z}_getnonce_d:')
        mk_tag(a, T2+1)
        if cfg.c3 is not None: a(f's_setprio {cfg.c3}')
        a(f's_call_b64 {RET}, {Z}_blk')
        stamp(a, cfg, 7)
        if cfg.c4 is not None: a(f's_setprio {cfg.c4}')
        def lastwait(tag):
            a(f'{tag}:')
            a(f'ds_read_b32 v{T2+4}, v{FLA}')
            a('s_waitcnt lgkmcnt(0)')
            a(f'v_cmp_lt_u32 vcc, v{T2+4}, v{THRV}')
            a(f's_cbranch_vccnz {tag}')
            stamp(a, cfg, 8)
            a('s_setprio 3')
        a('s_cmp_eq_u32 s56, 0')
        a(f's_cbranch_scc1 {Z}_r3s')
        a(f's_call_b64 {RET}, {Z}_blk')
        a(f's_mov_b32 s51, {(13 - 18) * 6144}')
        for r in (CA0, CA1, CT0, CT1): a(f'v_add_u32 v{r}, s51, v{r}')
        stamp(a, cfg, 4)
        lastwait(f'{Z}_r4w1')
        if slow:
            for l in slow_tile(0) + slow_tile(24576) + autowait(wvr, final=0): a(l)
        else:
            for l in B.cons2x(wvr, 24576): a(l)
        a(f's_branch {Z}_epi')
        a(f'{Z}_r3s:')
        a(f'v_mov_b32 v10, {PF}')
        a(f'{Z}_r3w:')
        a(f'ds_read_b32 v{T2+4}, v10')
        a('s_waitcnt lgkmcnt(0)')
        a(f'v_readfirstlane_b32 s50, v{T2+4}')
        a('s_cmp_lt_u32 s50, 4')
        a(f's_cbranch_scc1 {Z}_r3w')
        adv = [f'v_add_u32 v{r}, 24576, v{r}' for r in (CA0, CA1, CT0, CT1)]
        for l in (slow_tile(0) + adv if slow else B.cons1(extra_mid=adv)): a(l)
        stamp(a, cfg, 4)
        lastwait(f'{Z}_r4w0')
        if slow:
            for l in slow_tile(0) + autowait(wvr, final=0): a(l)
        else:
            for l in B.cons1x(wvr): a(l)
    a(f'{Z}_epi:')
    stamp(a, cfg, 9)
    if slow:
        a(f's_lshl_b32 {t0}, {sH}, 7')
        a(f's_add_u32 {t0}, {t0}, {TOT}')
        a(f'v_and_b32 v{MX+1}, 31, v1')
        a(f'v_lshlrev_b32 v{MX+1}, 2, v{MX+1}')
        a(f'v_add_u32 v{MX+1}, {t0}, v{MX+1}')
        a(f'ds_write_b32 v{MX+1}, v{MX}')
        a('s_waitcnt lgkmcnt(0)')
        lds_sync(a, 18, 'Z_sy18', MX+2, MX+3)
        a(f'v_xor_b32 v{MX+1}, {256+64}, v{MX+1}')
        a(f'ds_read_b32 v{MX+2}, v{MX+1}')
        a('s_waitcnt lgkmcnt(0)')
        for l in slow_rescale(MX+2): a(l)
        a(f'v_mov_b32 v{MX+1}, s47')
        a('s_mov_b32 exec_lo, 0\ns_mov_b32 exec_hi, 0xffff')
        a(f'buffer_store_dwordx2 {vr(MX,2)}, v{MRA}, {RWS}, 0 offen sc1')
        a('s_mov_b64 exec, -1')
    UP, CX, RX, RS = 96, 120, 128, 144
    def cvtU(t): return [f'v_cvt_pk_bf16_f32 v{UP+8*t+i}, v{U+16*t+2*i}, v{U+16*t+2*i+1}' for i in range(8)]
    def pj(src, tt, t, first=False):
        return f'{MF16} {vr(CX+4*tt,4)}, {vr(WV+(tt*3+t)*4,4)}, {vr(src,4)}, {"0" if first else vr(CX+4*tt,4)}'
    def snd(t, hi): return f'ds_write_b128 v{XP}, {vr(UP+8*t+4*hi,4)} offset:{1024*t+256*hi}'
    def own(t): return f'ds_read_b128 {vr(RS+4*t,4)}, v{XO} offset:{1024*t}'
    EN = T2
    enc = [f'v_cndmask_b32 v{EN}, v{LA}, v{LA+1}, s[44:45]', f'v_and_b32 v{EN+2}, s46, v{EN}', f'v_sub_f32 v{EN}, v{EN}, v{EN+2}',
           f'v_cndmask_b32 v{EN}, v{EN+2}, v{EN}, s[52:53]', f'v_bfi_b32 v{EN}, s46, v{EN}, v{T2+1}']
    c0, c1, c2 = cvtU(0), cvtU(1), cvtU(2)
    def poll():
        a(f'ds_read_b32 v15, v{FO}')
        if cfg.xv == 2:
            for hh in range(2):
                for tt in range(2): a(f'ds_read_b128 {vr(RS+8*hh+4*tt,4)}, v{XO} offset:{2048*(1-hh)+1024*tt}')
            return
        for t in range(3): a(f'ds_read_b128 {vr(RX+4*t,4)}, v{XO} offset:{3072+1024*t}')
        a(f'ds_read_b32 v{RX+12}, v{XLR} offset:6144')
    if cfg.xv == 2:
        def swp(t): return [f'v_permlane16_swap_b32 v{UP+8*t+i}, v{UP+8*t+4+i}' for i in range(4)]
        def pk(hh, tt, t): return f'{MF16} {vr(CX+8*hh+4*tt,4)}, {vr(wreg(hh,tt,t),4)}, {vr(UP+8*t+4*hh,4)}, {"0" if t == 0 else vr(CX+8*hh+4*tt,4)}'
        ENS = (T2, 234)
        def enc2(hh):
            e = ENS[hh]
            return [f'v_and_b32 v{T2+2}, s46, v{LA+hh}', f'v_sub_f32 v{e}, v{LA+hh}, v{T2+2}', f'v_cndmask_b32 v{e}, v{T2+2}, v{e}, s[52:53]', f'v_bfi_b32 v{e}, s46, v{e}, v{T2+1}']
        if not cfg.latep: poll()
        E = [enc2(0), c0, c1[:2], swp(0), c1[2:4],
             pk(0,0,0), c1[4:6], pk(0,1,0), c1[6:8], pk(1,0,0), c2[:2], pk(1,1,0), swp(1), c2[2:4],
             pk(0,0,1), c2[4:6], pk(0,1,1), c2[6:8], pk(1,0,1), swp(2), pk(1,1,1),
             pk(0,0,2), enc2(1)[:2], pk(0,1,2), enc2(1)[2:], pk(1,0,2), 's_cmp_eq_u32 s56, 0', pk(1,1,2)]
        for l in flat(E):
            if cfg.latep and l == pk(0,0,2): poll()
            a(l)
        a(f's_cbranch_scc1 {Z}_snd')
        a(f'{Z}_xw:')
        a('s_waitcnt lgkmcnt(0)')
        a('v_cmp_eq_u32 vcc, 0, v15')
        a(f's_cbranch_vccnz {Z}_xr')
        for hh in range(2):
            c = CX + 8*hh; r = RS + 8*hh
            for i in range(4): a(f'v_add_f32 v{c+i}, v{c+i}, v{r+i}')
            a(f'v_cvt_pk_bf16_f32 v{c}, v{c}, v{c+1}')
            a(f'v_cvt_pk_bf16_f32 v{c+1}, v{c+2}, v{c+3}')
            for i in range(4, 8): a(f'v_add_f32 v{c+i}, v{c+i}, v{r+i}')
            a(f'v_cvt_pk_bf16_f32 v{c+2}, v{c+4}, v{c+5}')
            a(f'v_cvt_pk_bf16_f32 v{c+4}, v{c+6}, v{c+7}')
            a(f'v_cndmask_b32 v{c+3}, v{ENS[hh]}, v{r+4}, s[44:45]')
            a(f'v_permlane32_swap_b32 v{c+2}, v{c+4}')
            a(f'buffer_store_dwordx4 {vr(c,4)}, v{(REC, REC2)[hh]}, {RWS}, 0 offen sc1')
        a(f'{Z}_pub:')
        def snd_all():
            a(f'{Z}_snd:')
            a('s_nop 2')
            for hh in range(2):
                a(f'ds_write_b128 v{XP}, {vr(CX+8*hh,4)} offset:{2048*hh}')
                a(f'v_cndmask_b32 v{CX+8*hh+4}, v{CX+8*hh+4}, v{ENS[hh]}, s[44:45]')
                a(f'ds_write_b128 v{XP}, {vr(CX+8*hh+4,4)} offset:{2048*hh+1024}')
            a(f'ds_write_b32 v{FP}, v{ONE}')
            a(f's_branch {Z}_pub')
        OOL.append(snd_all)
    else:
        E = [enc, f'ds_write_b32 v{XLW}, v{EN} offset:3072',
             c0[:4], snd(0,0), c0[4:], snd(0,1), c1[:4], snd(1,0), own(0), c1[4:], snd(1,1), c2[:4], snd(2,0), own(1), c2[4:], snd(2,1),
             f'ds_write_b32 v{FP}, v{ONE}', own(2)]
        if cfg.xv == 0:
            def swp(t): return [f'v_permlane16_swap_b32 v{UP+8*t+i}, v{UP+8*t+4+i}' for i in range(4)]
            def snd(t, hi=0): return f'ds_write_b128 v{XP}, {vr(UP+8*t+4,4)} offset:{1024*t}'
            E = [enc, f'ds_write_b32 v{XLW}, v{EN} offset:3072',
                 c0, c1[:2], swp(0), c1[2:4], snd(0), c1[4:8], c2[:2], swp(1), c2[2:4], snd(1), c2[4:8], 's_nop 0', swp(2), 's_nop 0', snd(2),
                 f'ds_write_b32 v{FP}, v{ONE}']
        for l in flat(E):
            if cfg.etr and not slow and l == snd(0,0): a(f"{TM(cfg)} s[{STAMP0+22}:{STAMP0+23}]")
            if cfg.etr and not slow and l.startswith(f'ds_write_b32 v{FP}'): a(f"{TM(cfg)} s[{STAMP0+24}:{STAMP0+25}]")
            a(l)
        if cfg.xv == 0:
            mm = [pj(UP,0,0,True), pj(UP,1,0,True), pj(UP+8,0,1), pj(UP+8,1,1), pj(UP+16,0,2), pj(UP+16,1,2)]
            for l in mm[:cfg.xd]: a(l)
            poll()
            for l in mm[cfg.xd:]: a(l)
        else:
            poll()
            a('s_waitcnt lgkmcnt(7)')
            a(pj(RS,0,0,True)); a(pj(RS,1,0,True)); a(pj(RS+4,0,1)); a(pj(RS+4,1,1))
            a('s_waitcnt lgkmcnt(5)')
            a(pj(RS+8,0,2)); a(pj(RS+8,1,2))
        if cfg.etr and not slow: a(f"{TM(cfg)} s[{STAMP0+26}:{STAMP0+27}]")
        a(f'{Z}_xw:')
        a('s_waitcnt lgkmcnt(4)')
        a('v_cmp_eq_u32 vcc, 0, v15')
        a(f's_cbranch_vccnz {Z}_xr')
        if cfg.etr and not slow: a(f"{TM(cfg)} s[{STAMP0+28}:{STAMP0+29}]")
        for t in range(3):
            a(f's_waitcnt lgkmcnt({3-t})')
            a(pj(RX+4*t,0,t)); a(pj(RX+4*t,1,t))
        a('s_waitcnt lgkmcnt(0)')
        a(f'v_cndmask_b32 v{EN}, v{EN}, v{RX+12}, s[44:45]')
        a(f'v_cvt_pk_bf16_f32 v{CX}, v{CX}, v{CX+1}')
        a(f'v_cvt_pk_bf16_f32 v{CX+1}, v{CX+2}, v{CX+3}')
        a(f'v_mov_b32 v{CX+3}, v{EN}')
        a(f'v_cvt_pk_bf16_f32 v{CX+2}, v{CX+4}, v{CX+5}')
        a(f'v_cvt_pk_bf16_f32 v{CX+4}, v{CX+6}, v{CX+7}')
        a(f'v_permlane32_swap_b32 v{CX+2}, v{CX+4}')
        a(f'buffer_store_dwordx4 {vr(CX,4)}, v{REC}, {RWS}, 0 offen sc1')
    stamp(a, cfg, 10)
    a('s_cmp_ge_u32 s2, 16')
    a('s_cbranch_scc1 L_exit')
    if slow:
        a(f'v_mov_b32 v14, {CNT + 4*7}')
        a(f'v_mov_b32 v15, 0x101')
        a('s_mov_b64 exec, 1')
        a('ds_add_u32 v14, v15')
        a('s_mov_b64 exec, -1')
        a('s_setprio 0')
        a('s_branch Z_comb')
        a('Z_xr:'); poll(); a('s_branch Z_xw')
        for f in OOL: f()
        nonce_slow(a, 'Z_getnonce', 'Z_getnonce_d', T2)
        a('Z_wait:')
        a('Z_blk:')
        a(f'ds_read_b64 {vr(T2+4,2)}, v10')
        a('s_waitcnt lgkmcnt(0)')
        a(f'v_min_u32 v{T2+4}, v{T2+4}, v{T2+5}')
        a(f'v_readfirstlane_b32 s50, v{T2+4}')
        a(f's_cmp_lt_u32 s50, {sR}')
        a('s_cbranch_scc1 Z_wait')
        for l in slow_tile(0) + slow_tile(6144) + B.adv(): a(l)
        a(f's_add_u32 {sR}, {sR}, 1')
        a(f's_setpc_b64 {RET}')
        return
    arrive(a, 7, 14, 15)
    a('s_setprio 0')
    a('s_branch L_comb')
    a('C_xr:'); poll(); a('s_branch C_xw')
    for f in OOL: f()

def tag_halves(a):
    a('s_bfe_u32 s50, s47, 0xe0001')
    a('s_and_b32 s51, s47, 0x8000')
    a('s_or_b32 s50, s50, s51')
    a('s_lshr_b32 s46, s47, 15')
    a('s_and_b32 s46, s46, 0x8000')
    a('s_bfe_u32 s51, s47, 0xe0010')
    a('s_or_b32 s51, s51, s46')

def mk_tag(a, v):
    tag_halves(a)
    a('s_mov_b32 s46, 0xffff0000')
    a(f'v_mov_b32 v{v}, s50')
    a(f'v_mov_b32 v{v+1}, s51')
    a(f'v_cndmask_b32 v{v}, v{v}, v{v+1}, s[52:53]')

def comb_tag(a, v):
    tag_halves(a)
    a('s_mov_b32 s48, 0xaaaaaaaa\ns_mov_b32 s49, 0xaaaaaaaa')
    a(f'v_mov_b32 v{v}, s50')
    a(f'v_mov_b32 v{v+1}, s51')
    a(f'v_cndmask_b32 v{v}, v{v}, v{v+1}, s[48:49]')

def comb_q(a):
    a('v_and_b32 v6, 15, v1')
    a('s_lshl_b32 s43, s3, 4')
    a('v_add_u32 v6, s43, v6')
    a('v_min_u32 v6, 95, v6')
    a('s_mul_i32 s44, s2, 96')
    a('v_add_u32 v6, s44, v6')
    a('v_lshlrev_b32 v6, 1, v6')
    a(f'global_load_ushort v7, v6, {SQ}')

def comb_setup(a, withq=True):
    if withq: comb_q(a)
    a('v_lshl_add_u32 v29, v16, 3, v28')
    a('v_mul_u32_u24 v29, 192, v29')
    a('v_lshl_add_u32 v29, v19, 3, v29')
    a('s_lshl_b32 s45, s3, 5')
    a(f'v_add_u32 v14, s45, v29')
    a('v_and_b32 v28, 15, v1')
    a('v_mul_u32_u24 v15, 384, v16')
    a('v_lshl_add_u32 v15, v28, 4, v15')
    a('s_mul_i32 s45, s3, 1536')
    a(f's_add_u32 s45, s45, {FIN}')
    a(f'v_add_u32 v15, s45, v15')
    a('v_and_b32 v29, 7, v1')
    a('v_lshlrev_b32 v8, 2, v29')
    a('s_mov_b32 s45, 0x75316240')
    a('v_bfe_u32 v8, s45, v8, 4')
    a('v_add_u32 v8, 48, v8')
    a('v_cmp_lt_u32 vcc, 7, v28')
    a('v_lshlrev_b32 v17, 6, v16')
    a('v_cndmask_b32 v8, v29, v8, vcc')
    a('v_lshl_add_u32 v8, v8, 3, v17')
    a(f'v_add_u32 v8, {FIN}, v8')
    a('s_lshl_b32 s45, s3, 8')
    a(f's_add_u32 s45, s45, {CTX}')
    a('v_lshlrev_b32 v9, 2, v28')
    a('v_mad_u32_u24 v9, v16, 48, v9')
    a('v_mov_b32 v29, 192')
    a('v_cmp_lt_u32 vcc, 11, v28')
    a('v_lshlrev_b32 v10, 4, v16')
    a('v_add_u32 v10, s45, v10')
    a('v_cndmask_b32 v9, v9, v29, vcc')
    a('v_add_u32 v9, s45, v9')

def gen_slow_combine(a, cfg):
    D, ACC, T = 32, 20, 28
    MA, MW = 64, 96
    a('Z_comb:')
    a('v_lshlrev_b32 v2, 4, v1')
    a(f's_mul_i32 s40, s2, {65536 + cfg.skew}')
    a('s_lshl_b32 s41, s3, 13')
    a('s_add_u32 s40, s40, s41')
    a('s_add_u32 s41, s40, 4096')
    a('v_lshrrev_b32 v16, 4, v1')
    a('v_bfe_u32 v28, v1, 2, 2')
    a('v_and_b32 v19, 3, v1')
    a('v_lshlrev_b32 v3, 11, v28')
    a('v_lshl_add_u32 v4, v16, 3, v3')
    a('v_lshl_add_u32 v3, v16, 9, v3')
    a('v_lshl_add_u32 v3, v19, 7, v3')
    a(f's_lshl_b32 s42, s2, 13\ns_add_u32 s42, s42, {MREC}')
    a(f's_lshl_b32 s52, s3, 8\ns_add_u32 s52, s52, s42')
    comb_setup(a)
    comb_tag(a, 12)
    for i in range(8): a(f'v_mov_b32 v{ACC+i}, 0')
    a('Z_again:')
    a('Z_poll:')
    for i in range(8): a(f'buffer_load_dwordx4 {vr(D+4*i,4)}, v2, {RWS}, {"s40" if i<4 else "s41"} offen offset:{1024*(i%4)} sc1')
    for i in range(8): a(f'buffer_load_dwordx4 {vr(MA+4*i,4)}, v3, {RWS}, s42 offen offset:{16*i} sc1')
    for i in range(8): a(f'buffer_load_dwordx2 {vr(MW+2*i,2)}, v4, {RWS}, s52 offen offset:{32*i} sc1')
    a('s_waitcnt vmcnt(0)')
    a(f'v_mov_b32 v{T}, 0')
    for i in range(8):
        a(f'v_xor_b32 v{T+1}, v12, v{D+4*i+3}')
        a(f'v_and_b32 v{T+1}, 0xffff, v{T+1}')
        a(f'v_or_b32 v{T}, v{T}, v{T+1}')
    for t in [MA+2*i+1 for i in range(16)] + [MW+2*i+1 for i in range(8)]:
        a(f'v_xor_b32 v{T+1}, s47, v{t}')
        a(f'v_or_b32 v{T}, v{T}, v{T+1}')
    a(f'v_cmp_ne_u32 vcc, 0, v{T}')
    a('s_nop 4')
    a('s_cbranch_vccnz Z_again')
    M = MA
    for i in range(1, 16): a(f'v_max_f32 v{M}, v{M}, v{MA+2*i}')
    a('s_nop 1')
    a(f'v_mov_b32_dpp v{M+1}, v{M} quad_perm:[1,0,3,2] row_mask:0xf bank_mask:0xf')
    a(f'v_max_f32 v{M}, v{M}, v{M+1}')
    a('s_nop 1')
    a(f'v_mov_b32_dpp v{M+1}, v{M} quad_perm:[2,3,0,1] row_mask:0xf bank_mask:0xf')
    a(f'v_max_f32 v{M}, v{M}, v{M+1}')
    def allrows(r, op):
        for sw in ('v_permlane16_swap_b32', 'v_permlane32_swap_b32'):
            a(f'v_mov_b32 v{T}, v{r}')
            a('s_nop 1')
            a(f'{sw} v{r}, v{T}')
            a('s_nop 1')
            a(f'{op} v{r}, v{r}, v{T}')
    allrows(M, 'v_max_f32')
    a('s_mov_b32 s46, 0xffff0000')
    for i in range(8):
        a(f'v_sub_f32 v{MW+2*i}, v{MW+2*i}, v{M}')
        a(f'v_exp_f32 v{MW+2*i}, v{MW+2*i}')
        a('s_nop 1')
        for j in range(4):
            a(f'v_lshlrev_b32 v{T}, 16, v{D+4*i+j}')
            a(f'v_and_b32 v{T+1}, s46, v{D+4*i+j}')
            if j < 3: a(f'v_fmac_f32 v{ACC+2*j}, v{T}, v{MW+2*i}')
            a(f'v_fmac_f32 v{ACC+2*j+1}, v{T+1}, v{MW+2*i}')
    for j in range(8): allrows(ACC+j, 'v_add_f32')
    a('v_cmp_eq_u32 vcc, 0, v16')
    a('s_nop 1')
    for j in range(4): a(f'v_cndmask_b32 v{ACC+j}, v{ACC+4+j}, v{ACC+j}, vcc')
    a('s_nop 1')
    a('s_branch K_red')

def gen_combine(a, cfg):
    D, ACC, T = 128, 20, 28
    NS = 9
    a('L_comb:')
    if cfg.trp: a('s_branch L_exit')
    a('v_lshlrev_b32 v2, 4, v1')
    a(f's_mul_i32 s40, s2, {65536 + cfg.skew}')
    a('s_lshl_b32 s41, s3, 13')
    a('s_add_u32 s40, s40, s41')
    a('s_add_u32 s41, s40, 4096')
    def load(i):
        a(f'buffer_load_dwordx4 {vr(D+4*i,4)}, v2, {RWS}, {"s40" if i<4 else "s41"} offen offset:{1024*(i%4)} sc1' + (' nt' if cfg.pollnt else ''))
    PM = lambda i: f's[{6+2*i}:{7+2*i}]'
    SEL = 24
    stamp(a, cfg, 11)
    if cfg.ktrace:
        for j in list(range(1, 8)) + [12]: a(f's_mov_b64 s[{STAMP0+2*j}:{STAMP0+2*j+1}], 0')
    if cfg.roll or cfg.dyn: comb_q(a)
    for i in range(8): load(i)
    a('v_lshrrev_b32 v16, 4, v1')
    a('v_bfe_u32 v28, v1, 2, 2')
    a('v_and_b32 v19, 3, v1')
    comb_setup(a, not (cfg.roll or cfg.dyn))
    comb_tag(a, 12)
    a('v_and_b32 v29, 1, v1')
    a('v_lshlrev_b32 v29, 4, v29')
    a('v_mov_b32 v17, 0x3f80')
    a('v_lshlrev_b32 v29, v29, v17')
    a('v_lshrrev_b32 v28, 1, v28')
    for r in range(4):
        a(f'v_cmp_eq_u32 vcc, {r}, v28')
        a(f'v_cndmask_b32 v{SEL+r}, 0, v29, vcc')
    if cfg.dyn:
        K = cfg.dyn
        J = lambda k: f's{6+k}'
        for i in range(4): a(f'v_mov_b32 v{ACC+i}, 0')
        a('s_mov_b32 s42, 0xff')
        a('s_mov_b32 s43, 7')
        def pick(k):
            a('s_lshl_b32 s44, -2, s43')
            a('s_and_b32 s44, s44, s42')
            a('s_cselect_b32 s44, s44, s42')
            a('s_ff1_i32_b32 s43, s44')
            a('s_lshl_b32 s44, s43, 10')
            a('s_add_u32 s44, s44, s40')
            a(f's_mov_b32 {J(k)}, s43')
            lim = cfg.dup and k >= cfg.dup
            if lim:
                a('s_bcnt1_i32_b32 s45, s42')
                a(f's_cmp_gt_u32 s45, {k // cfg.dup}')
                a('s_cselect_b64 exec, -1, 0')
                a(f's_cselect_b32 {J(k)}, s43, 8')
            a(f'buffer_load_dwordx4 {vr(D+4*k,4)}, v2, {RWS}, s44 offen sc1')
            if lim: a('s_mov_b64 exec, -1')
        for i in range(8):
            a(f's_waitcnt vmcnt({7-i+min(i,K)})')
            if i == 0: stamp(a, cfg, 12)
            a(f'v_cmp_ne_u16 vcc, v12, v{D+4*i+3}')
            a(f's_cbranch_vccnz K_f{i}')
            a(f'{MF16} {vr(ACC,4)}, {vr(SEL,4)}, {vr(D+4*i,4)}, {vr(ACC,4)}')
            a(f's_bitset0_b32 s42, {i}')
            if i == 7:
                a('s_cmp_eq_u32 s42, 0')
                a('s_cbranch_scc1 K_red0')
            a(f'K_f{i}:')
            if i < K: pick(i)
        a('K_chk:')
        for k in range(K):
            a(f's_waitcnt vmcnt({K-1})')
            if cfg.ktrace and k == 0:
                a('s_waitcnt lgkmcnt(0)')
                for j in range(1, 7): a(f's_mov_b64 s[{STAMP0+2*j}:{STAMP0+2*j+1}], s[{STAMP0+2*j+2}:{STAMP0+2*j+3}]')
                a(f's_mov_b64 s[{STAMP0+14}:{STAMP0+15}], s[{STAMP0+24}:{STAMP0+25}]')
                stamp(a, cfg, 12)
            a(f'v_cmp_ne_u16 vcc, v12, v{D+4*k+3}')
            a(f's_cbranch_vccnz K_n{k}')
            a(f's_bitcmp0_b32 s42, {J(k)}')
            a(f's_cbranch_scc1 K_n{k}')
            a(f'{MF16} {vr(ACC,4)}, {vr(SEL,4)}, {vr(D+4*k,4)}, {vr(ACC,4)}')
            a(f's_bitset0_b32 s42, {J(k)}')
            a('s_cmp_eq_u32 s42, 0')
            a('s_cbranch_scc1 K_red0')
            a(f'K_n{k}:')
            pick(k)
        a('s_branch K_chk')
        a('K_red0:')
    elif cfg.roll:
        for i in range(4): a(f'v_mov_b32 v{ACC+i}, 0')
        a('s_mov_b32 s42, 0xff')
        a('K_chk:')
        for i in range(8):
            a('s_waitcnt vmcnt(7)')
            if cfg.ktrace and i == 0:
                a('s_waitcnt lgkmcnt(0)')
                for j in range(1, 7): a(f's_mov_b64 s[{STAMP0+2*j}:{STAMP0+2*j+1}], s[{STAMP0+2*j+2}:{STAMP0+2*j+3}]')
                a(f's_mov_b64 s[{STAMP0+14}:{STAMP0+15}], s[{STAMP0+24}:{STAMP0+25}]')
            if i == 0: stamp(a, cfg, 12)
            a(f'v_cmp_ne_u16 vcc, v12, v{D+4*i+3}')
            a('s_cmp_lg_u64 vcc, 0')
            a('s_cselect_b64 exec, -1, 0')
            load(i)
            a('s_mov_b64 exec, -1')
            a(f's_cbranch_scc1 K_n{i}')
            a(f's_bitcmp0_b32 s42, {i}')
            a(f's_cbranch_scc1 K_n{i}')
            a(f'{MF16} {vr(ACC,4)}, {vr(SEL,4)}, {vr(D+4*i,4)}, {vr(ACC,4)}')
            a(f's_bitset0_b32 s42, {i}')
            a('s_cmp_eq_u32 s42, 0')
            a('s_cbranch_scc1 K_red0')
            a(f'K_n{i}:')
        a('s_branch K_chk')
        a('K_red0:')
        a('s_nop 4')
    else:
        a('K_chk:')
        a('s_waitcnt vmcnt(0)')
        if cfg.ktrace:
            a('s_waitcnt lgkmcnt(0)')
            for j in range(1, 7): a(f's_mov_b64 s[{STAMP0+2*j}:{STAMP0+2*j+1}], s[{STAMP0+2*j+2}:{STAMP0+2*j+3}]')
            a(f's_mov_b64 s[{STAMP0+14}:{STAMP0+15}], s[{STAMP0+24}:{STAMP0+25}]')
        stamp(a, cfg, 12)
        for i in range(8):
            a(f'v_cmp_ne_u16 {PM(i)}, v12, v{D+4*i+3}')
            a(f'{MF16} {vr(ACC,4)}, {vr(SEL,4)}, {vr(D+4*i,4)}, {"0" if i == 0 else vr(ACC,4)}')
            if i == 2: a(f's_or_b64 s[50:51], {PM(0)}, {PM(1)}')
            if i > 2: a(f's_or_b64 s[50:51], s[50:51], {PM(i-1)}')
        a(f's_or_b64 s[50:51], s[50:51], {PM(7)}')
        a('s_cbranch_scc1 K_retry')
    a('K_red:')
    stamp(a, cfg, 13)
    a('s_cmp_ge_u32 s3, 6')
    a('s_cbranch_scc1 K_67')
    a('s_nop 2')
    a(f'ds_write_b128 v15, {vr(ACC,4)}')
    Bq, C = 40, 56
    a('s_waitcnt lgkmcnt(0)')
    a('s_barrier')
    if cfg.fine: stamp(a, cfg, 15)
    for k in range(4): a(f'ds_read2st64_b64 {vr(C+4*k,4)}, v8 offset0:{6*k} offset1:{6*k+3}')
    for s in range(3):
        for sec in range(2):
            a(f'ds_read_b64_tr_b16 {vr(Bq+4*s+2*sec,2)}, v14 offset:{s*6144+sec*768}')
    a('v_lshlrev_b32 v7, 16, v7')
    a('s_waitcnt lgkmcnt(8)')
    for i in range(4): a(f'v_add_f32 v{C+i}, v{C+i}, v{C+4+i}')
    a('s_waitcnt lgkmcnt(6)')
    for i in range(4): a(f'v_add_f32 v{C+8+i}, v{C+8+i}, v{C+12+i}')
    for i in (0, 2, 1, 3): a(f'v_add_f32 v{C+i}, v{C+i}, v{C+8+i}')
    a(f'v_add_f32 v{C}, v{C}, v{C+2}')
    a(f'v_add_f32 v{C+1}, v{C+1}, v{C+3}')
    a(f'v_add_f32_dpp v{C+2}, v{C+1}, v{C+1} quad_perm:[1,0,3,2] row_mask:0xf bank_mask:0xf')
    a(f'v_add_f32_dpp v{C+2}, v{C+2}, v{C+2} quad_perm:[2,3,0,1] row_mask:0xf bank_mask:0xf')
    a(f'v_mov_b32_dpp v{C+2}, v{C+2} row_newbcast:12 row_mask:0xf bank_mask:0xf')
    a(f'v_rcp_f32 v{C+2}, v{C+2}')
    a(f'v_mul_f32 v{C}, v{C}, v{C+2}')
    a(f'v_mul_f32 v{C+1}, v{C+1}, v{C+2}')
    a(f'v_cvt_pk_bf16_f32 v{C}, v{C}, v{C+1}')
    a(f'ds_write_b32 v9, v{C}')
    for s in range(3): a(f'ds_read_b128 {vr(C+4+4*s,4)}, v10 offset:{64*s}')
    for s in range(3):
        c = '0' if s == 0 else 'v[88:91]'
        a(f's_waitcnt lgkmcnt({2-s})')
        a(f'{MF16} v[88:91], {vr(C+4+4*s,4)}, {vr(Bq+4*s,4)}, {c}')
    a('v_cvt_pk_bf16_f32 v88, v88, v88')
    a('v_and_b32 v88, 0xffff0000, v88')
    a('v_add_f32 v88, v88, v7')
    a('v_cvt_pk_bf16_f32 v88, v88, v88')
    a('s_mov_b64 exec, 0xffff')
    a('s_waitcnt vmcnt(0)')
    a(f'global_store_short v6, v88, {SOUT}')
    a('s_mov_b64 exec, -1')
    stamp(a, cfg, 14)
    if cfg.diag:
        a('s_memrealtime s[98:99]')
        a('s_waitcnt lgkmcnt(0)')
        a('v_mov_b32 v20, s98\nv_mov_b32 v21, 36')
        a('s_mov_b64 exec, 1')
        a(f'global_atomic_umax v21, v20, {SDBG}')
        a('s_mov_b64 exec, -1')
    a('L_exit:')
    if cfg.diag:
        a('s_cmp_eq_u32 s3, 4')
        a('s_cbranch_scc0 L_end')
        a('s_memrealtime s[98:99]')
        a('s_getreg_b32 s50, hwreg(HW_REG_XCC_ID, 0, 4)')
        a('s_and_b32 s50, s50, 7')
        a('s_lshl_b32 s50, s50, 2')
        a('s_add_u32 s50, s50, 4')
        a('s_waitcnt lgkmcnt(0)')
        a('v_mov_b32 v20, s96\nv_mov_b32 v21, s50\nv_mov_b32 v22, s98\nv_mov_b32 v23, 40')
        a('s_mov_b64 exec, 1')
        a(f'global_store_dword v21, v20, {SDBG}')
        a('s_cmp_lt_u32 s2, 16')
        a('s_cbranch_scc1 L_end')
        a(f'global_atomic_umax v23, v22, {SDBG}')
        a('s_mov_b64 exec, -1')
    stamp_flush(a, cfg)
    a('L_end:')
    a('s_endpgm')
    a('K_67:')
    a('s_nop 2')
    a(f'ds_write_b128 v15, {vr(ACC,4)}')
    a('s_waitcnt lgkmcnt(0)')
    a('s_barrier')
    a('s_waitcnt vmcnt(0)')
    a('s_branch L_exit')
    if cfg.roll or cfg.dyn: return
    a('K_retry:')
    if cfg.ksleep: a(f's_sleep {cfg.ksleep}')
    for i in range(8):
        a(f's_cmp_lg_u64 {PM(i)}, 0')
        a('s_cselect_b64 exec, -1, 0')
        load(i)
    a('s_mov_b64 exec, -1')
    a('s_branch K_chk')

HEADER = """
Fused FPN-fuse + LayerNorm + masked cross-attention, one workgroup (8 waves) per CU, 576 keys each.
  A'[h*16+q] = (2*bf16(q w_q[h]) w_k[h]^T + q w_m) * 96^-0.5 * log2(e)      (scores in log2 units)
  waves 0-3: stream f_hi / f_lo into LDS, lateral GEMM, LayerNorm, write kv (bf16) back in place
  waves 4-7: S = kv A'^T, p = exp2(S - shift), U += p^T kv, l += sum p, ctx = U w_v, publish to d_ws
  workgroups 0-15: gather the 256 partials of one query, normalise, project with w_o, add q
Softmax shift: |S| <= sqrt(96) * |A' row| because kv is LayerNorm output.  Every workgroup evaluates that
bound at run time (Gram matrix of A').  If it is <= 80 the shift 0 cannot overflow or lose terms
(C_* / K_* code); otherwise the Z_* code runs with the true (online) row maximum.
"""

def build(cfg):
    a = Asm()
    a.raw(f'; @launch grid=(256,1,1) block=(512,1,1) lds={LDS_BYTES}')
    for l in HEADER.strip().split('\n'): a.raw('; ' + l)
    a.raw('.amdgcn_target "amdgcn-amd-amdhsa--gfx950"')
    a.raw('.text')
    a.raw(f'.globl {KNAME}'); a.raw('.p2align 8'); a.raw(f'.type {KNAME},@function'); a.raw(f'{KNAME}:')
    gen_entry(a, cfg)
    gen_producer(a, cfg)
    gen_consumer(a, cfg)
    gen_combine(a, cfg)
    a.raw('L_codeend:')
    cons_main(a, cfg, True)
    gen_slow_combine(a, cfg)
    txt = a.finish(verbose=True)
    txt = txt.replace('    ; ', '; ')
    txt += f'''.section .rodata,"a"
.p2align 6
.amdhsa_kernel {KNAME}
  .amdhsa_next_free_vgpr 256
  .amdhsa_next_free_sgpr {102 if cfg.stamps else 100}
  .amdhsa_accum_offset 256
  .amdhsa_group_segment_fixed_size 0
  .amdhsa_kernarg_size 96
  .amdhsa_user_sgpr_count 2
  .amdhsa_user_sgpr_kernarg_segment_ptr 1
  .amdhsa_system_sgpr_workgroup_id_x 1
.end_amdhsa_kernel
'''
    return txt

if __name__ == '__main__':
    cfg = Cfg()
    out = sys.argv[1]
    for o in sys.argv[2:]:
        if '=' in o:
            k, v = o.split('='); setattr(cfg, k, int(v))
        else: setattr(cfg, o, True)
    open(out, 'w').write(build(cfg))
```

```python
from asmlib import autowait
import struct
def f32(x): return '0x%08x' % struct.unpack('<I', struct.pack('<f', x))[0]
def vr(b, n=1): return f'v{b}' if n == 1 else f'v[{b}:{b+n-1}]'
MF32 = 'v_mfma_f32_32x32x16_bf16'
MF16 = 'v_mfma_f32_16x16x32_bf16'

class C:
    CA0, CA1, CT0, CT1 = 4, 5, 6, 7
    AP, U, LA, OP = 16, 40, 88, 92
    KA = [96, 160]; KT = [120, 96]; S = [144, 184]; P = [144, 184]
    WV = 200
    TB = 12288
    ADV = True

def ka(x, s): return f'ds_read_b128 {vr(C.KA[x]+4*s,4)}, v{C.CA1 if s&1 else C.CA0} offset:{x*C.TB+64*(s>>1)}'
def kt(x, ks, t): return [f'ds_read_b64_tr_b16 {vr(C.KT[x]+(ks*3+t)*4+2*sec,2)}, v{C.CT1 if sec else C.CT0} offset:{x*C.TB+64*t+3072*ks}' for sec in range(2)]
def sm(x, s): return f'{MF32} {vr(C.S[x],16)}, {vr(C.KA[x]+4*s,4)}, {vr(C.AP+4*s,4)}, {"0" if s == 0 else vr(C.S[x],16)}'
def pv(x, ks, t):
    if t == 3: return f'{MF16} {vr(C.LA,4)}, {vr(C.OP,4)}, {vr(C.P[x]+4*ks,4)}, {vr(C.LA,4)}'
    return f'{MF32} {vr(C.U+16*t,16)}, {vr(C.KT[x]+(ks*3+t)*4,4)}, {vr(C.P[x]+4*ks,4)}, {vr(C.U+16*t,16)}'
def ex(x, i): return f'v_exp_f32 v{C.S[x]+i}, v{C.S[x]+i}'
def cv(x, i): return f'v_cvt_pk_bf16_f32 v{C.P[x]+i}, v{C.S[x]+2*i}, v{C.S[x]+2*i+1}'
def adv(): return [] if not C.ADV else [f'v_add_u32 v{r}, {4*6144}, v{r}' for r in (C.CA0, C.CA1, C.CT0, C.CT1)]

def flat(l):
    o = []
    for x in l:
        if isinstance(x, (list, tuple)): o += flat(x)
        else: o.append(x)
    return o

def cons2(var=0):
    E = lambda x, a, b: [ex(x, i) for i in range(a, b)]
    V = lambda x, a, b: [cv(x, i) for i in range(a, b)]
    if var == 0:
        L = [[ka(0, s) for s in range(6)],
             sm(0,0), ka(1,0), ka(1,1), sm(0,1), ka(1,2), ka(1,3), sm(0,2), ka(1,4), ka(1,5),
             sm(0,3), kt(0,0,0), sm(0,4), kt(0,0,1), sm(0,5), kt(0,0,2),
             sm(1,0), kt(0,1,0), kt(0,1,1), sm(1,1), E(0,0,3), sm(1,2), E(0,3,6), sm(1,3), E(0,6,8), V(0,0,2),
             sm(1,4), V(0,2,4), E(0,8,10), sm(1,5), kt(0,1,2), E(0,10,12),
             pv(0,0,0), E(0,12,15), pv(0,0,1), E(0,15,16), V(0,4,8), pv(0,0,2), kt(1,0,0), E(1,0,2), pv(0,0,3), E(1,2,3),
             pv(0,1,0), kt(1,0,1), E(1,3,5), pv(0,1,1), kt(1,0,2), E(1,5,7), pv(0,1,2), E(1,7,8), V(1,0,4), pv(0,1,3), kt(1,1,0),
             pv(1,0,0), kt(1,1,1), E(1,8,10), pv(1,0,1), kt(1,1,2), E(1,10,12), pv(1,0,2), E(1,12,15), pv(1,0,3), E(1,15,16), V(1,4,8), adv(),
             pv(1,1,0), pv(1,1,1), pv(1,1,2), pv(1,1,3)]
    elif var == 1:
        L = [[ka(0, s) for s in range(6)],
             sm(0,0), ka(1,0), sm(0,1), ka(1,1), ka(1,2), sm(0,2), ka(1,3), sm(0,3), ka(1,4), ka(1,5), sm(0,4), kt(0,0,0), sm(0,5), kt(0,0,1), kt(0,0,2),
             sm(1,0), kt(0,1,0), kt(0,1,1), kt(0,1,2), E(0,0,8), V(0,0,4), sm(1,1), E(0,8,11), sm(1,2), E(0,11,14), sm(1,3), E(0,14,16), V(0,4,6), sm(1,4), V(0,6,8), kt(1,0,0), sm(1,5), kt(1,0,1), kt(1,0,2),
             pv(0,0,0), kt(1,1,0), pv(0,0,1), E(1,0,3), pv(0,0,2), E(1,3,6), pv(0,0,3), E(1,6,7),
             pv(0,1,0), E(1,7,8), V(1,0,4), pv(0,1,1), E(1,8,11), pv(0,1,2), E(1,11,14), pv(0,1,3), kt(1,1,1),
             pv(1,0,0), E(1,14,16), kt(1,1,2), pv(1,0,1), V(1,4,8), pv(1,0,2), adv(), pv(1,0,3),
             pv(1,1,0), pv(1,1,1), pv(1,1,2), pv(1,1,3)]
    return autowait(flat(L))

def cons1(extra_pre=(), extra_mid=()):
    E = lambda x, a, b: [ex(x, i) for i in range(a, b)]
    V = lambda x, a, b: [cv(x, i) for i in range(a, b)]
    L = [[ka(0, s) for s in range(6)],
         sm(0,0), kt(0,0,0), sm(0,1), kt(0,0,1), sm(0,2), kt(0,0,2), sm(0,3), kt(0,1,0), sm(0,4), kt(0,1,1), sm(0,5), kt(0,1,2), list(extra_pre),
         E(0,0,8), V(0,0,4), pv(0,0,0), E(0,8,11), pv(0,0,1), E(0,11,14), pv(0,0,2), E(0,14,16), V(0,4,6), pv(0,0,3), V(0,6,8), list(extra_mid),
         pv(0,1,0), pv(0,1,1), pv(0,1,2), pv(0,1,3)]
    return autowait(flat(L))

def ka_regs(x, s): return {f'v{C.KA[x]+4*s+i}' for i in range(4)}
PEND6 = lambda: [ka_regs(0, s) for s in range(6)]

def tail_pf(x, advl, flag):
    k = lambda s: ka(0, s)
    if x == 1:
        return [advl, flag, k(0), k(1), k(2), pv(1,1,3), pv(1,1,0), k(3), pv(1,1,1), k(4), pv(1,1,2), k(5)]
    return [advl, flag, k(0), k(1), k(2), pv(0,1,3), k(3), pv(0,1,0), k(4), pv(0,1,1), k(5), pv(0,1,2)]

def cons2p(advl, flag, top=()):
    E = lambda x, a, b: [ex(x, i) for i in range(a, b)]
    V = lambda x, a, b: [cv(x, i) for i in range(a, b)]
    L = [sm(0,0), ka(1,0), ka(1,1), list(top), sm(0,1), ka(1,2), ka(1,3), sm(0,2), ka(1,4), ka(1,5),
         sm(0,3), kt(0,0,0), sm(0,4), kt(0,0,1), sm(0,5), kt(0,0,2),
         sm(1,0), kt(0,1,0), kt(0,1,1), sm(1,1), E(0,0,3), sm(1,2), E(0,3,6), sm(1,3), E(0,6,8), V(0,0,2),
         sm(1,4), V(0,2,4), E(0,8,10), sm(1,5), kt(0,1,2), E(0,10,12),
         pv(0,0,0), E(0,12,15), pv(0,0,1), E(0,15,16), V(0,4,8), pv(0,0,2), kt(1,0,0), E(1,0,2), pv(0,0,3), E(1,2,3),
         pv(0,1,0), kt(1,0,1), E(1,3,5), pv(0,1,1), kt(1,0,2), E(1,5,7), pv(0,1,2), E(1,7,8), V(1,0,4), pv(0,1,3), kt(1,1,0),
         pv(1,0,0), kt(1,1,1), E(1,8,10), pv(1,0,1), kt(1,1,2), E(1,10,12), pv(1,0,2), E(1,12,15), pv(1,0,3), E(1,15,16), V(1,4,8),
         's_waitcnt lgkmcnt(0)', tail_pf(1, advl, flag)]
    return autowait(flat(L), pending=PEND6(), pborn=-8)

def cons1p(advl, flag, fill=()):
    E = lambda x, a, b: [ex(x, i) for i in range(a, b)]
    V = lambda x, a, b: [cv(x, i) for i in range(a, b)]
    L = [sm(0,0), kt(0,0,0), sm(0,1), kt(0,0,1), sm(0,2), kt(0,0,2), sm(0,3), kt(0,1,0), sm(0,4), kt(0,1,1), sm(0,5), kt(0,1,2), list(fill),
         E(0,0,8), V(0,0,4), pv(0,0,0), E(0,8,11), pv(0,0,1), E(0,11,14), pv(0,0,2), E(0,14,16), V(0,4,6), pv(0,0,3), V(0,6,8),
         's_waitcnt lgkmcnt(0)', tail_pf(0, advl, flag)]
    return autowait(flat(L), pending=PEND6(), pborn=-8)

def cons1x(wv, pre=False, fill=()):
    E = lambda x, a, b: [ex(x, i) for i in range(a, b)]
    V = lambda x, a, b: [cv(x, i) for i in range(a, b)]
    wv = list(wv)
    def W(n):
        o = wv[:n]; del wv[:n]; return o
    def mix(l, n):
        o = []
        for x in l: o += [x] + W(n)
        return o
    L = [[] if pre else [ka(0, s) for s in range(6)],
         sm(0,0), kt(0,0,0), sm(0,1), kt(0,0,1), sm(0,2), kt(0,0,2), sm(0,3), kt(0,1,0), sm(0,4), kt(0,1,1), sm(0,5), kt(0,1,2), list(fill),
         E(0,0,8), V(0,0,4), 's_waitcnt lgkmcnt(0)', pv(0,0,0), mix(E(0,8,11), 2), pv(0,0,1), mix(E(0,11,14), 2), pv(0,0,2), E(0,14,16), V(0,4,6), pv(0,0,3), V(0,6,8),
         pv(0,1,3), pv(0,1,0), pv(0,1,1), pv(0,1,2)]
    assert not wv
    return autowait(flat(L), final=0, pending=PEND6() if pre else None, pborn=-8)

def cons2x(wv, tb, pre=False, fill=()):
    E = lambda x, a, b: [ex(x, i) for i in range(a, b)]
    V = lambda x, a, b: [cv(x, i) for i in range(a, b)]
    wv = list(wv)
    def W(n):
        o = wv[:n]; del wv[:n]; return o
    sv = C.TB; C.TB = tb
    fill = list(fill); h = (len(fill) + 2) // 3
    L = [[] if pre else [ka(0, s) for s in range(6)],
         sm(0,0), ka(1,0), ka(1,1), sm(0,1), ka(1,2), ka(1,3), sm(0,2), ka(1,4), ka(1,5),
         sm(0,3), kt(0,0,0), fill[:h], sm(0,4), kt(0,0,1), fill[h:2*h], sm(0,5), kt(0,0,2), fill[2*h:],
         sm(1,0), kt(0,1,0), kt(0,1,1), sm(1,1), E(0,0,3), sm(1,2), E(0,3,6), sm(1,3), E(0,6,8), V(0,0,2),
         sm(1,4), V(0,2,4), E(0,8,10), sm(1,5), kt(0,1,2), E(0,10,12),
         pv(0,0,0), W(2), E(0,12,15), pv(0,0,1), W(2), E(0,15,16), V(0,4,8), pv(0,0,2), kt(1,0,0), E(1,0,2), pv(0,0,3), W(2), E(1,2,3),
         pv(0,1,0), kt(1,0,1), E(1,3,5), pv(0,1,1), kt(1,0,2), E(1,5,7), pv(0,1,2), W(2), E(1,7,8), V(1,0,4), pv(0,1,3), kt(1,1,0),
         pv(1,0,0), kt(1,1,1), E(1,8,10), pv(1,0,1), kt(1,1,2), E(1,10,12), pv(1,0,2), W(2), E(1,12,15), pv(1,0,3), W(2), E(1,15,16), V(1,4,8),
         pv(1,1,3), pv(1,1,0), pv(1,1,1), pv(1,1,2)]
    C.TB = sv
    assert not wv
    return autowait(flat(L), final=0, pending=PEND6() if pre else None, pborn=-8)

def cons1y(wv, pre=False, fill=()):
    E = lambda x, a, b: [ex(x, i) for i in range(a, b)]
    V = lambda x, a, b: [cv(x, i) for i in range(a, b)]
    wv = list(wv)
    def W(n):
        o = wv[:n]; del wv[:n]; return o
    def mix(l, n):
        o = []
        for x in l: o += [x] + W(n)
        return o
    L = [[] if pre else [ka(0, s) for s in range(6)],
         sm(0,0), kt(0,0,0), sm(0,1), kt(0,0,1), sm(0,2), kt(0,0,2), sm(0,3), kt(0,1,0), sm(0,4), kt(0,1,1), sm(0,5), kt(0,1,2), list(fill),
         's_waitcnt lgkmcnt(4)', mix(E(0,0,8), 1), V(0,0,4), 's_waitcnt lgkmcnt(4)', pv(0,0,0), mix(E(0,8,11), 2), pv(0,0,1), 's_waitcnt lgkmcnt(4)', mix(E(0,11,14), 2), pv(0,0,2), mix(E(0,14,16), 2), V(0,4,6), pv(0,0,3), V(0,6,8),
         pv(0,1,3), pv(0,1,0), pv(0,1,1), pv(0,1,2)]
    assert not wv
    return autowait(flat(L), final=0, pending=PEND6() if pre else None, pborn=-8)

def cons2y(wv, tb, pre=False, fill=()):
    E = lambda x, a, b: [ex(x, i) for i in range(a, b)]
    V = lambda x, a, b: [cv(x, i) for i in range(a, b)]
    wv = list(wv)
    def W(n):
        o = wv[:n]; del wv[:n]; return o
    sv = C.TB; C.TB = tb
    fill = list(fill); h = (len(fill) + 2) // 3
    L = [[] if pre else [ka(0, s) for s in range(6)],
         sm(0,0), ka(1,0), ka(1,1), sm(0,1), ka(1,2), ka(1,3), sm(0,2), ka(1,4), ka(1,5),
         sm(0,3), kt(0,0,0), fill[:h], sm(0,4), kt(0,0,1), fill[h:2*h], sm(0,5), kt(0,0,2), fill[2*h:],
         sm(1,0), kt(0,1,0), kt(0,1,1), sm(1,1), E(0,0,3), sm(1,2), E(0,3,6), W(2), sm(1,3), E(0,6,8), V(0,0,2), W(2),
         sm(1,4), V(0,2,4), E(0,8,10), W(2), sm(1,5), kt(0,1,2), E(0,10,12),
         pv(0,0,0), W(2), E(0,12,15), pv(0,0,1), W(2), E(0,15,16), V(0,4,8), pv(0,0,2), kt(1,0,0), E(1,0,2), pv(0,0,3), W(2), E(1,2,3),
         pv(0,1,0), kt(1,0,1), W(2), E(1,3,5), pv(0,1,1), kt(1,0,2), E(1,5,7), pv(0,1,2), W(2), E(1,7,8), V(1,0,4), pv(0,1,3), kt(1,1,0),
         pv(1,0,0), kt(1,1,1), W(2), E(1,8,10), pv(1,0,1), kt(1,1,2), W(2), E(1,10,12), pv(1,0,2), W(2), E(1,12,15), pv(1,0,3), W(2), E(1,15,16), V(1,4,8),
         pv(1,1,3), pv(1,1,0), pv(1,1,1), pv(1,1,2)]
    C.TB = sv
    assert not wv
    return autowait(flat(L), final=0, pending=PEND6() if pre else None, pborn=-8)

def cons1w(wv, var=0):
    E = lambda x, a, b: [ex(x, i) for i in range(a, b)]
    V = lambda x, a, b: [cv(x, i) for i in range(a, b)]
    wv = list(wv)
    def W(n):
        o = wv[:n]; del wv[:n]; return o
    def mix(l, n):
        o = []
        for x in l: o += [x] + W(n)
        return o
    head = [[ka(0, s) for s in range(6)],
            sm(0,0), kt(0,0,0), sm(0,1), kt(0,0,1), sm(0,2), kt(0,0,2), sm(0,3), kt(0,1,0), sm(0,4), kt(0,1,1), sm(0,5), kt(0,1,2)]
    if var == 0:
        if len(wv) == 12:
            L = head + [E(0,0,8), V(0,0,4), 's_waitcnt lgkmcnt(0)', pv(0,0,0), mix(E(0,8,11), 1), pv(0,0,1), mix(E(0,11,14), 1), pv(0,0,2), mix(E(0,14,16), 1), V(0,4,6), pv(0,0,3), V(0,6,8),
                        pv(0,1,0), W(2), pv(0,1,1), W(2), pv(0,1,2), pv(0,1,3)]
        else:
            L = head + [W(4), 's_waitcnt lgkmcnt(6)', mix(E(0,0,8), 1), V(0,0,4), 's_waitcnt lgkmcnt(6)', pv(0,0,0), mix(E(0,8,11), 1), pv(0,0,1), mix(E(0,11,14), 1), pv(0,0,2), mix(E(0,14,16), 1), V(0,4,6), pv(0,0,3), V(0,6,8),
                        's_waitcnt lgkmcnt(6)', pv(0,1,0), W(2), pv(0,1,1), W(2), pv(0,1,2), pv(0,1,3)]
    elif var == 1:
        L = head + [E(0,0,8), V(0,0,4), 's_waitcnt lgkmcnt(0)', pv(0,0,0), mix(E(0,8,11), 2), pv(0,0,1), mix(E(0,11,14), 2), pv(0,0,2), 's_waitcnt lgkmcnt(8)', mix(E(0,14,16), 2), V(0,4,6), pv(0,0,3), V(0,6,8),
                    's_waitcnt lgkmcnt(6)', pv(0,1,0), W(4), pv(0,1,1), W(4), pv(0,1,2), pv(0,1,3)]
    assert not wv
    return autowait(flat(L), final=0)

def cons2w(wv, tb):
    E = lambda x, a, b: [ex(x, i) for i in range(a, b)]
    V = lambda x, a, b: [cv(x, i) for i in range(a, b)]
    wv = list(wv)
    def W(n):
        o = wv[:n]; del wv[:n]; return o
    sv = C.TB; C.TB = tb
    L = [[ka(0, s) for s in range(6)],
         sm(0,0), ka(1,0), ka(1,1), sm(0,1), ka(1,2), ka(1,3), sm(0,2), ka(1,4), ka(1,5),
         sm(0,3), kt(0,0,0), sm(0,4), kt(0,0,1), sm(0,5), kt(0,0,2),
         sm(1,0), kt(0,1,0), kt(0,1,1), sm(1,1), E(0,0,3), sm(1,2), E(0,3,6), sm(1,3), E(0,6,8), V(0,0,2),
         sm(1,4), V(0,2,4), E(0,8,10), sm(1,5), kt(0,1,2), E(0,10,12),
         pv(0,0,0), E(0,12,15), pv(0,0,1), E(0,15,16), V(0,4,8), pv(0,0,2), kt(1,0,0), E(1,0,2), pv(0,0,3), E(1,2,3),
         pv(0,1,0), kt(1,0,1), E(1,3,5), pv(0,1,1), kt(1,0,2), E(1,5,7), pv(0,1,2), E(1,7,8), V(1,0,4), pv(0,1,3), kt(1,1,0),
         pv(1,0,0), kt(1,1,1), E(1,8,10), pv(1,0,1), kt(1,1,2), E(1,10,12), pv(1,0,2), W(2), E(1,12,15), pv(1,0,3), W(2), E(1,15,16), V(1,4,8),
         pv(1,1,0), W(4), pv(1,1,1), W(4), pv(1,1,2), pv(1,1,3)]
    C.TB = sv
    assert not wv
    return autowait(flat(L), final=0)

class P:
    RA0, RA1 = 5, 6
    WL = 16
    LT = 88
    X, F = 136, 184
    ID, OP, SM, SL, T = 208, 216, 220, 224, 228

def p_reads():
    return [f'ds_read_b128 {vr(P.F+4*s,4)}, v{P.RA1 if s&1 else P.RA0} offset:{64*(s>>1)}' for s in (0, 2, 4, 1, 3, 5)]

def p_head(g1=(), g2=(), hiprio=None, reads=True):
    L = []
    if hiprio is not None: L.append(f's_setprio {hiprio}')
    if reads: L += p_reads()
    L += list(g1)
    g2 = list(g2)
    for t in range(3):
        L.append(f's_waitcnt lgkmcnt({5-t})')
        L.append(f'{MF32} {vr(P.X+16*t,16)}, {vr(P.ID,4)}, {vr(P.F+8*t,4)}, {vr(P.LT+16*t,16)}')
        if g2:
            L += g2[:3] if t == 0 else g2[2+t:3+t]
    return L

def p_tail(var=0, lowprio=None):
    X, F, T, SM, SL = P.X, P.F, P.T, P.SM, P.SL
    Q0, Q1 = T, T+1
    L = []; a = L.append
    def identb(t): a(f'{MF32} {vr(X+16*t,16)}, {vr(P.ID+4,4)}, {vr(F+8*t+4,4)}, {vr(X+16*t,16)}')
    def summ(s): a(f'{MF16} {vr(SM,4)}, {vr(P.OP,4)}, {vr(F+4*s,4)}, {vr(SL,4) if s == 0 else vr(SM,4)}')
    sqi = [0]
    def sq(n):
        for _ in range(n):
            i = sqi[0]; sqi[0] += 1
            q = Q0 if i % 2 == 0 else Q1
            a(f'v_mul_f32 v{q}, v{X+i}, v{X+i}' if i < 2 else f'v_fmac_f32 v{q}, v{X+i}, v{X+i}')
    a('s_waitcnt lgkmcnt(0)')
    identb(0); identb(1); summ(0); sq(2); identb(2); sq(6)
    for s in range(1, 6):
        summ(s)
        if s == 5 and lowprio is not None: a(f's_setprio {lowprio}')
        sq(2)
    sq(48 - sqi[0])
    a(f'v_add_f32 v{Q0}, v{Q0}, v{Q1}')
    a(f'v_mul_f32 v{SM}, {f32(1/96)}, v{SM}')
    a(f'v_mov_b32 v{Q1}, v{Q0}')
    a(f'v_mul_f32 v{SM+1}, v{SM}, v{SM}')
    a(f'v_subrev_f32 v{SM+1}, {f32(1e-5)}, v{SM+1}')
    a(f'v_permlane32_swap_b32 v{Q0}, v{Q1}')
    a(f'v_add_f32 v{Q0}, v{Q0}, v{Q1}')
    a(f'v_fma_f32 v{Q0}, v{Q0}, s62, -v{SM+1}')
    a(f'v_max_f32 v{Q0}, {f32(1e-5)}, v{Q0}')
    a(f'v_rsq_f32 v{Q0}, v{Q0}')
    a('s_nop 0')
    a(f'v_mul_f32 v{Q1}, -v{SM}, v{Q0}')
    for s in range(6):
        for i in range(8): a(f'v_fma_f32 v{X+8*s+i}, v{X+8*s+i}, v{Q0}, v{Q1}')
        for i in range(4): a(f'v_cvt_pk_bf16_f32 v{F+4*s+i}, v{X+8*s+2*i}, v{X+8*s+2*i+1}')
        if var == 1:
            a(f'ds_write_b64 v{P.RA1 if s&1 else P.RA0}, {vr(F+4*s,2)} offset:{64*(s>>1)}')
            a(f'ds_write_b64 v{P.RA1 if s&1 else P.RA0}, {vr(F+4*s+2,2)} offset:{64*(s>>1)+8}')
        else:
            a(f'ds_write_b128 v{P.RA1 if s&1 else P.RA0}, {vr(F+4*s,4)} offset:{64*(s>>1)}')
    a(f'v_add_u32 v{P.RA0}, {4*6144}, v{P.RA0}')
    a(f'v_add_u32 v{P.RA1}, {4*6144}, v{P.RA1}')
    a('s_waitcnt lgkmcnt(0)')
    return L


def p_tail2(lowprio=None, one=True):
    X, F, T, SM, SL = P.X, P.F, P.T, P.SM, P.SL
    Q0, Q1 = T, T+1
    L = []; a = L.append
    def identb(t): a(f'{MF32} {vr(X+16*t,16)}, {vr(P.ID+4,4)}, {vr(F+8*t+4,4)}, {vr(X+16*t,16)}')
    def summ(s): a(f'{MF16} {vr(SM,4)}, {vr(P.OP,4)}, {vr(F+4*s,4)}, {vr(SL,4) if s == 0 else vr(SM,4)}')
    sqi = [0]
    def sq(n):
        for _ in range(n):
            i = sqi[0]; sqi[0] += 1
            q = Q0 if (one or i % 2 == 0) else Q1
            a(f'v_mul_f32 v{q}, v{X+i}, v{X+i}' if i < (1 if one else 2) else f'v_fmac_f32 v{q}, v{X+i}, v{X+i}')
    a('s_waitcnt lgkmcnt(0)')
    identb(0); identb(1); summ(0); sq(2); identb(2); sq(6)
    for s in range(1, 6):
        summ(s)
        if s == 5 and lowprio is not None: a(f's_setprio {lowprio}')
        sq(2)
    sq(48 - sqi[0])
    if not one: a(f'v_add_f32 v{Q0}, v{Q0}, v{Q1}')
    a(f'v_mov_b32 v{Q1}, v{Q0}')
    a(f'v_fma_f32 v{SM+1}, v{SM}, v{SM}, -s61')
    a(f'v_add_u32 v{T+2}, {4*6144}, v{P.RA0}')
    a(f'v_permlane32_swap_b32 v{Q0}, v{Q1}')
    a(f'v_add_f32 v{Q0}, v{Q0}, v{Q1}')
    a(f'v_fma_f32 v{Q0}, v{Q0}, s62, -v{SM+1}')
    a(f'v_max_f32 v{Q0}, s61, v{Q0}')
    a(f'v_rsq_f32 v{Q0}, v{Q0}')
    a(f'v_add_u32 v15, 1, v15')
    a(f'v_mul_f32 v{Q1}, -v{SM}, v{Q0}')
    a(f'v_mul_f32 v{Q0}, s62, v{Q0}')
    for s in range(6):
        for i in range(8): a(f'v_fma_f32 v{X+8*s+i}, v{X+8*s+i}, v{Q0}, v{Q1}')
        for i in range(4): a(f'v_cvt_pk_bf16_f32 v{F+4*s+i}, v{X+8*s+2*i}, v{X+8*s+2*i+1}')
        a(f'ds_write_b128 v{P.RA1 if s&1 else P.RA0}, {vr(F+4*s,4)} offset:{64*(s>>1)}')
    L.remove(f'v_add_u32 v{T+2}, {4*6144}, v{P.RA0}')
    a(f'v_add_u32 v{P.RA0}, {4*6144}, v{P.RA0}')
    a(f'v_add_u32 v{P.RA1}, {4*6144}, v{P.RA1}')
    a('s_waitcnt lgkmcnt(0)')
    return L

def p_tail_pk(lowprio=None, sqpk=True, nmpk=True, wr_end=False):
    X, F, T, SM, SL = P.X, P.F, P.T, P.SM, P.SL
    Q0, Q1 = T, T+1
    L = []; a = L.append
    def identb(t): a(f'{MF32} {vr(X+16*t,16)}, {vr(P.ID+4,4)}, {vr(F+8*t+4,4)}, {vr(X+16*t,16)}')
    def summ(s): a(f'{MF16} {vr(SM,4)}, {vr(P.OP,4)}, {vr(F+4*s,4)}, {vr(SL,4) if s == 0 else vr(SM,4)}')
    a('s_waitcnt lgkmcnt(0)')
    if sqpk:
        identb(0); identb(1); identb(2)
        for s in range(6): summ(s)
        if lowprio is not None: a(f's_setprio {lowprio}')
        for i in range(24):
            acc = T + 2*(i % 2)
            x = vr(X+2*i, 2)
            a(f'v_pk_mul_f32 {vr(acc,2)}, {x}, {x}' if i < 2 else f'v_pk_fma_f32 {vr(acc,2)}, {x}, {x}, {vr(acc,2)}')
        a(f'v_pk_add_f32 {vr(T,2)}, {vr(T,2)}, {vr(T+2,2)}')
    else:
        sqi = [0]
        def sq(n):
            for _ in range(n):
                i = sqi[0]; sqi[0] += 1
                q = Q0 if i % 2 == 0 else Q1
                a(f'v_mul_f32 v{q}, v{X+i}, v{X+i}' if i < 2 else f'v_fmac_f32 v{q}, v{X+i}, v{X+i}')
        identb(0); identb(1); summ(0); sq(2); identb(2); sq(6)
        for s in range(1, 6):
            summ(s)
            if s == 5 and lowprio is not None: a(f's_setprio {lowprio}')
            sq(2)
        sq(48 - sqi[0])
    a(f'v_add_f32 v{Q0}, v{Q0}, v{Q1}')
    a(f'v_mul_f32 v{SM}, {f32(1/96)}, v{SM}')
    a(f'v_mov_b32 v{Q1}, v{Q0}')
    a(f'v_mul_f32 v{SM+1}, v{SM}, v{SM}')
    a(f'v_subrev_f32 v{SM+1}, {f32(1e-5)}, v{SM+1}')
    a(f'v_permlane32_swap_b32 v{Q0}, v{Q1}')
    a(f'v_add_f32 v{Q0}, v{Q0}, v{Q1}')
    a(f'v_fma_f32 v{Q0}, v{Q0}, s62, -v{SM+1}')
    a(f'v_max_f32 v{Q0}, {f32(1e-5)}, v{Q0}')
    a(f'v_rsq_f32 v{Q0}, v{Q0}')
    a('s_nop 0')
    a(f'v_mul_f32 v{Q1}, -v{SM}, v{Q0}')
    if nmpk:
        for i in range(24):
            x = vr(X+2*i, 2)
            a(f'v_pk_fma_f32 {x}, {x}, {vr(Q0,2)}, {vr(Q0,2)} op_sel:[0,0,1] op_sel_hi:[1,0,1]')
    for s in range(6):
        if not nmpk:
            for i in range(8): a(f'v_fma_f32 v{X+8*s+i}, v{X+8*s+i}, v{Q0}, v{Q1}')
        for i in range(4): a(f'v_cvt_pk_bf16_f32 v{F+4*s+i}, v{X+8*s+2*i}, v{X+8*s+2*i+1}')
        a(f'ds_write_b128 v{P.RA1 if s&1 else P.RA0}, {vr(F+4*s,4)} offset:{64*(s>>1)}')
    a(f'v_add_u32 v{P.RA0}, {4*6144}, v{P.RA0}')
    a(f'v_add_u32 v{P.RA1}, {4*6144}, v{P.RA1}')
    a('s_waitcnt lgkmcnt(0)')
    return L


KD = 228
ORD = (3, 4, 5, 0, 1, 2)
def smq(x, s, first): return f'{MF32} {vr(C.S[x],16)}, {vr(C.KA[x]+4*s,4)}, {vr(C.AP+4*s,4)}, {"0" if first else vr(C.S[x],16)}'
def ktd(t): return [f'ds_read_b64_tr_b16 {vr(KD+4*t+2*sec,2)}, v{C.CT1 if sec else C.CT0} offset:{C.TB+64*t+3072}' for sec in range(2)]
def pvd(t):
    if t == 3: return pv(1, 1, 3)
    return f'{MF32} {vr(C.U+16*t,16)}, {vr(KD+4*t,4)}, {vr(C.P[1]+4,4)}, {vr(C.U+16*t,16)}'
PENDQ = lambda: [ka_regs(0, s) for s in ORD]
E_ = lambda x, a, b: [ex(x, i) for i in range(a, b)]
V_ = lambda x, a, b: [cv(x, i) for i in range(a, b)]

def head2q(top):
    E, V = E_, V_
    s0 = [smq(0, s, i == 0) for i, s in enumerate(ORD)]
    return [s0[0], ka(1,0), ka(1,1), list(top), E(1,8,10),
            s0[1], ka(1,2), ka(1,3), E(1,10,12),
            s0[2], ka(1,4), ka(1,5), E(1,12,14),
            s0[3], kt(0,0,0), E(1,14,16),
            s0[4], kt(0,0,1), V(1,4,8),
            s0[5], kt(0,0,2), 's_waitcnt lgkmcnt(6)',
            pvd(0), kt(0,1,0), pvd(1), kt(0,1,1), E(0,0,2), pvd(2), E(0,2,5), pvd(3), kt(0,1,2), E(0,5,6),
            sm(1,0), E(0,6,8), V(0,0,2), sm(1,1), V(0,2,4), E(0,8,10), sm(1,2), E(0,10,13), sm(1,3), E(0,13,16), sm(1,4), V(0,4,8), sm(1,5), kt(1,0,0),
            pv(0,0,0), kt(1,0,1), pv(0,0,1), kt(1,0,2), E(1,0,2), pv(0,0,2), E(1,2,5), pv(0,0,3), ktd(0), E(1,5,6),
            pv(0,1,0), ktd(1), E(1,6,8), pv(0,1,1), ktd(2), V(1,0,4)]

def cons2q(advl, flag, top=()):
    k = lambda s: ka(0, s)
    L = head2q(top) + [pv(0,1,2), 's_waitcnt lgkmcnt(6)', advl, flag, k(3), k(4), pv(0,1,3), k(5),
                       pv(1,0,0), k(0), pv(1,0,1), k(1), pv(1,0,2), k(2), pv(1,0,3)]
    return autowait(flat(L), pending=PENDQ(), pborn=-8)

def cons2qx(wv, tb, fill=()):
    E, V = E_, V_
    wv = list(wv)
    def W(n):
        o = wv[:n]; del wv[:n]; return o
    sv = C.TB; C.TB = tb
    L = head2q(fill) + [pv(0,1,2), 's_waitcnt lgkmcnt(6)', W(2), E(1,8,10), pv(0,1,3), W(2), E(1,10,11),
                        pv(1,0,0), W(2), E(1,11,13), pv(1,0,1), W(2), E(1,13,15), pv(1,0,2), W(2), E(1,15,16), V(1,4,6), pv(1,0,3), W(2), V(1,6,8),
                        pvd(3), pvd(0), pvd(1), pvd(2)]
    C.TB = sv
    assert not wv
    return autowait(flat(L), final=0, pending=PENDQ(), pborn=-8)

def cons1q(advl, flag, fill=()):
    E, V = E_, V_
    s0 = [smq(0, s, i == 0) for i, s in enumerate(ORD)]
    L = [s0[0], kt(0,0,0), E(1,8,10), s0[1], kt(0,0,1), E(1,10,12), s0[2], kt(0,0,2), E(1,12,14), s0[3], kt(0,1,0), E(1,14,16),
         s0[4], kt(0,1,1), V(1,4,8), s0[5], kt(0,1,2),
         pvd(0), list(fill), pvd(1), E(0,0,2), pvd(2), E(0,2,5), pvd(3), E(0,5,8), V(0,0,4),
         pv(0,0,0), E(0,8,11), pv(0,0,1), E(0,11,14), pv(0,0,2), E(0,14,16), V(0,4,6), pv(0,0,3), V(0,6,8),
         's_waitcnt lgkmcnt(0)', tail_pf(0, advl, flag)]
    return autowait(flat(L), pending=PENDQ(), pborn=-8)
```

```python
import sys, math, struct
from asmlib import Asm, autowait
import blocks as B
from blocks import vr, f32, MF32, MF16, flat

KNAME = 'standalone__detection_seg_mask2former__vision_kernel'

HI = 0
WM = 12 * 6144
QS = 15 * 6144
WQ = 16 * 6144
LO = 110592 + 6144
WREG = LO + 27648
SCR = WREG + 18432
TOT = SCR
PF = SCR + 512
TKT = SCR + 528
CNT = SCR + 544
WST = SCR + 640
XCH = LO
XST = 6912
WO = 0
FIN = 20480
CTX = 32768
LDS_BYTES = SCR + 1024
assert LDS_BYTES <= 163840 and LO <= XCH and XCH + 4 * XST <= WREG
B.C.TB = 6144
LREC = 17 * 256 * 256 + 16 * 4096
MREC = LREC
REC_BYTES = MREC + 16 * 4 * 256 * 8
BOUND = 80.0
THR = BOUND * BOUND / 96 / (1 + 2 ** -8) ** 2
STAMP_OFF = 4 << 20
FSW = sum(((((-(px >> 2)) & 3) ^ ((px >> 1) & 1)) << (2 * px)) for px in range(16))

class Cfg:
    stamps = False
    cyc = False
    repf = 0
    cvar = 0
    g0pos = 1
    fine = 0
    wvpos = 2
    h0pos = 1
    cpp = 0
    cmain = 0
    pp = 0
    deep = 1
    h1early = 0
    pwait = 1
    ksleep = 0
    r1late = 0
    pm = 2
    pv = 0
    pl = 2
    cearly = 0
    trp = 0
    trc = 0
    touch = 3
    t0pre = 0
    wkpos = 2
    dry = 0
    tokpos = -1
    wvr = 2
    ktrace = 0
    pollnt = 0
    roll = 0
    dyn = 5
    diag = 0
    early = 0
    tok2 = 1
    bist = 0
    mfirst = 1
    b2 = 0
    wvar = 0
    etr = 0
    xv = 0
    xd = 2
    fake = 0
    fsc = 0
    wsl = 0
    pk = 0
    uni = 0
    spec = 1
    tlb = 0
    spf = 0
    spn = 15
    wsum = 0
    st2 = 1
    pro = 1
    wmtok = 0
    ctop = 0
    skew = 0
    zl = 0
    tok3 = 0
    prog = 1
    latep = 0
    dup = 0
    swp = 0
    c2 = None
    c3 = None
    c4 = None

SQ, SHI, SLO, SWL, SWQ, SWK, SWV, SWO, SWM, SOUT, SDBG, SWS = [f's[{4+2*i}:{5+2*i}]' for i in range(12)]
RHI, RLO, RWS = 's[28:31]', 's[32:35]', 's[36:39]'
SF = 's63'
STAMP0 = 64

def TM(cfg): return 's_memtime' if cfg.cyc else 's_memrealtime'

def stamp(a, cfg, i, inner=False):
    if cfg.b2 and i in (11, 12, 13, 14, 15) : return
    if cfg.bist:
        import inspect
        src = inspect.stack()[1].code_context[0]
        if 'bist' not in src and i in (4, 5, 6, 7, 8, 11, 12, 13, 14) and inspect.stack()[1].function != 'script': return
    if cfg.trp and not inner and i != 0: return
    if inner and not cfg.trp: return
    if cfg.stamps: a(f"{'s_memtime' if cfg.cyc else 's_memrealtime'} s[{STAMP0+2*i}:{STAMP0+2*i+1}]")

def stamp_flush(a, cfg, tmpv=100):
    if not cfg.stamps: return
    a('s_cmp_eq_u32 s100, 0')
    a('s_cbranch_scc1 L_nosl')
    a('s_sleep 100')
    a('L_nosl:')
    a('s_waitcnt lgkmcnt(0)')
    a('s_lshl_b32 s61, s2, 3\ns_add_u32 s61, s61, s3')
    a(f's_lshl_b32 s62, s61, 7')
    a(f's_add_u32 s62, s62, {STAMP_OFF}')
    for i in range(32): a(f'v_mov_b32 v{tmpv+i}, s{STAMP0+i}')
    a(f'v_mov_b32 v{tmpv+32}, 0')
    a('s_mov_b64 exec, 1')
    a('s_mov_b32 s56, s26\ns_mov_b32 s57, s27\ns_mov_b32 s58, 0x1000000\ns_mov_b32 s59, 0x20000')
    for i in range(8):
        a(f'buffer_store_dwordx4 {vr(tmpv+4*i,4)}, v{tmpv+32}, s[56:59], s62 offen offset:{16*i}')
    a('s_mov_b64 exec, -1')

def dma_swz(a, dst, k, tmp):
    a(f'v_add_u32 v{tmp}, {64*k if isinstance(k,int) else k}, v1')
    a(f'v_mul_u32_u24 v{tmp}, 0xaaab, v{tmp}')
    a(f'v_lshrrev_b32 v{tmp}, 18, v{tmp}')
    a(f'v_and_b32 v{tmp}, 0x1e, v{tmp}')
    a(f'v_bfe_u32 v{tmp}, {SF}, v{tmp}, 2')
    a(f'v_xor_b32 v{tmp}, v{tmp}, v1')
    a(f'v_lshlrev_b32 v{dst}, 4, v{tmp}')

def dma_part(a, ptr, ldsbase, voff, spart):
    lo = int(ptr[2:ptr.index(':')])
    a(f's_add_u32 m0, {spart}, {ldsbase}')
    a(f's_add_u32 s50, s{lo}, 4096')
    for k in range(4): a(f'global_load_lds_dwordx4 v{voff}, {ptr} offset:{1024*k}')
    a(f's_addc_u32 s51, s{lo+1}, 0')
    a(f's_add_u32 m0, {spart}, {ldsbase+4096}')
    a('s_mov_b32 exec_hi, 0')
    a(f'global_load_lds_dwordx4 v{voff}, s[50:51]')
    a('s_mov_b32 exec_hi, -1')

def dma_extra(a, ptr, ldsbase, voff, sbase):
    lo = int(ptr[2:ptr.index(':')])
    a(f's_add_u32 s50, s{lo}, 4096')
    a(f's_addc_u32 s51, s{lo+1}, 0')
    a(f's_add_u32 m0, {sbase}, {ldsbase+4096}')
    a('s_nop 0')
    a(f'global_load_lds_dwordx4 v{voff}, s[50:51]')

def dma_main(a, ptr, ldsbase, voff, sbase):
    a(f's_add_u32 m0, {sbase}, {ldsbase}')
    a('s_nop 0')
    for k in range(4): a(f'global_load_lds_dwordx4 v{voff}, {ptr} offset:{1024*k}')

def arrive(a, which, va, vd, rtn=False):
    a(f'v_mov_b32 v{va}, {CNT + 4*which}')
    a(f'v_mov_b32 v{vd}, 1')
    a('s_mov_b64 exec, 1')
    a(f'ds_add_rtn_u32 v{vd}, v{va}, v{vd}' if rtn else f'ds_add_u32 v{va}, v{vd}')
    a('s_mov_b64 exec, -1')

def await_cnt(a, which, tag, va, vd, n=4, setaddr=True):
    if setaddr: a(f'v_mov_b32 v{va}, {CNT + 4*which}')
    a(f'{tag}:')
    a(f'ds_read_b32 v{vd}, v{va}')
    a('s_waitcnt lgkmcnt(0)')
    a(f'v_readfirstlane_b32 s50, v{vd}')
    a(f's_cmp_lt_u32 s50, {n}')
    a(f's_cbranch_scc1 {tag}')

def lds_sync(a, which, tag, va, vd, n=4):
    arrive(a, which, va, vd, rtn=True)
    a('s_waitcnt lgkmcnt(0)')
    a(f'v_readfirstlane_b32 s50, v{vd}')
    a(f's_cmp_ge_u32 s50, {n-1}')
    a(f's_cbranch_scc1 {tag}_ok')
    await_cnt(a, which, tag + '_spin', va, vd, n, setaddr=False)
    a(f'{tag}_ok:')

def code_prefetch(a, tag, vt, tidoff, sp='s[44:45]', start=KNAME):
    lo = int(sp[2:sp.index(':')])
    a(f's_getpc_b64 {sp}')
    a(f'{tag}:')
    a(f's_add_u32 s{lo}, s{lo}, {start}-{tag}')
    a(f's_addc_u32 s{lo+1}, s{lo+1}, {"-1" if start == KNAME else "0"}')
    a(f'v_add_u32 v{vt}, {tidoff}, v0')
    a(f'v_lshlrev_b32 v{vt}, 7, v{vt}')
    a(f'v_min_u32 v{vt}, L_codeend-{start}-4, v{vt}')
    a(f'global_load_dword v{201 if vt == 0 else vt+1}, v{vt}, {sp}')

def nonce_slow(a, tag, back, v):
    a(f'{tag}:')
    a('s_memrealtime s[50:51]')
    a('s_waitcnt lgkmcnt(0)')
    a('s_or_b32 s47, s50, 1')
    a(f'v_mov_b32 v{v}, s47\nv_mov_b32 v{v+1}, 0\nv_mov_b32 v{v+2}, 0')
    a('s_mov_b64 exec, 1')
    a(f'global_atomic_cmpswap v{v}, v{v+2}, {vr(v,2)}, {SDBG} sc0 sc1')
    a('s_mov_b64 exec, -1')
    a('s_waitcnt vmcnt(0)')
    a(f'v_readfirstlane_b32 s50, v{v}')
    a('s_cmp_eq_u32 s50, 0')
    a('s_cselect_b32 s47, s47, s50')
    a(f's_branch {back}')

def gen_entry(a, cfg):
    a('s_cmp_ge_u32 s2, 256')
    a('s_cbranch_scc1 L_end')
    if cfg.stamps:
        for i in range(32): a(f's_mov_b32 s{STAMP0+i}, 0')
        a('s_mov_b32 s100, 1')
    stamp(a, cfg, 0)
    if cfg.diag: a('s_memrealtime s[96:97]')
    a('s_load_dwordx16 s[4:19], s[0:1], 0')
    a('s_load_dwordx8 s[20:27], s[0:1], 64')
    a('v_lshrrev_b32 v2, 6, v0')
    a('v_and_b32 v1, 63, v0')
    a('v_readfirstlane_b32 s3, v2')
    a(f's_mov_b32 {SF}, {FSW:#x}')
    a('s_mul_i32 s57, s2, 9')
    a(f's_mov_b32 s62, {f32(96.0 if cfg.st2 else 1/96)}')
    a('s_cmp_ge_u32 s3, 4')
    a('s_cbranch_scc1 L_cons')

def gen_producer(a, cfg):
    W0, W1, W2, RA0, RA1, RL0, RL1 = 2, 3, 4, 5, 6, 7, 8
    WL, LT, X, F = B.P.WL, B.P.LT, B.P.X, B.P.F
    ID, OP, SM, SL, T = B.P.ID, B.P.OP, B.P.SM, B.P.SL, B.P.T
    FLA, FLV = 14, 15
    WSA = 9
    U = 232
    sP = 's3'
    sH0, sH1, sH8, sLo0, sLo1 = 's40', 's41', 's42', 's43', 's44'
    sSlot, sLoP, RET = 's45', 's46', 's[48:49]'
    t0, t1, t2 = 's52', 's53', 's54'
    M1, O1, M2, O2 = 's55', 's56', 's58', 's59'
    for k, w in enumerate((W0, W1, W2)): dma_swz(a, w, k, U)
    a(f'v_lshlrev_b32 v{U+3}, 4, v1')
    for i in range(4): a(f'v_mov_b32 v{U+4+i}, 0')
    a(f'v_add_u32 v{U+8}, {SCR}, v{U+3}')
    a(f'ds_write_b128 v{U+8}, {vr(U+4,4)}')
    a(f's_add_u32 s58, s57, {sP}')
    a(f's_mul_i32 {sLo0}, s58, 3072')
    a(f's_mul_i32 {sLoP}, {sP}, 3072')
    a(f's_add_u32 {sLoP}, {sLoP}, {LO}')
    a('s_mov_b32 s34, 7077888\ns_mov_b32 s35, 0x20000')
    a(f's_add_u32 {sLo1}, {sLo0}, {4*3072}')
    def hi_off(dst, u):
        a(f's_mul_i32 {t0}, {u}, 43691')
        a(f's_lshr_b32 {t0}, {t0}, 19')
        a(f's_mul_i32 {t0}, {t0}, 73728')
        a(f's_mul_i32 {dst}, {u}, 6144')
        a(f's_add_u32 {dst}, {dst}, {t0}')
    a(f's_mul_i32 {sSlot}, {sP}, 6144')
    a('s_add_u32 s60, s57, 8')
    a('s_mul_i32 s61, s60, 3072')
    a(f's_cmp_lt_u32 {sP}, 2')
    a(f's_cselect_b32 s55, s61, {sLo0}')
    a(f's_cselect_b32 s56, {LO+8*3072}, {sLoP}')
    a('s_mov_b32 s30, 28311552\ns_mov_b32 s31, 0x20000')
    a(f's_min_u32 {t0}, {sP}, 2')
    a(f's_lshl_b32 s47, {sP}, 2')
    a(f's_add_u32 s47, s47, {t0}')
    a(f's_lshl_b32 s47, s47, 10')
    a(f'v_add_u32 v15, s47, v{U+3}')
    a('s_add_u32 s59, s58, 4')
    hi_off(sH0, 's58'); hi_off(sH1, 's59'); hi_off(sH8, 's60')
    a(f's_mul_i32 {t0}, {sP}, 73728')
    a(f's_add_u32 {sH8}, {sH8}, {t0}')
    a(f's_cmp_lt_u32 {sP}, 2')
    a(f's_cselect_b32 s57, {sH8}, {sH0}')
    if cfg.bist: stamp(a, cfg, 12)
    a(f's_cmp_ge_u32 {sP}, 2')
    a('s_waitcnt lgkmcnt(0)')
    if cfg.bist: stamp(a, cfg, 13)
    a('s_cbranch_scc1 P_nox')
    dma_extra(a, SWL, WREG, 15, 's47')
    a('P_nox:')
    dma_main(a, SWL, WREG, 15, 's47')
    def half(srd, soff):
        return [f'buffer_load_dwordx4 v{w}, {srd}, {soff} offen offset:{1024*k} nt lds' for k, w in enumerate((W0, W1, W2))]
    a('s_mov_b32 s32, s8\ns_mov_b32 s33, s9')
    a(f's_mov_b32 m0, s56')
    a('s_mov_b32 s28, s6')
    for l in half(RLO, 's55'): a(l)
    a('s_mov_b32 s29, s7')
    def issue_h(soff, rnd, hf, add=0):
        a(f's_add_u32 m0, {sSlot}, {rnd*4*6144+3072*hf}')
        if add + hf:
            a(f's_add_u32 {t0}, {soff}, {add+3072*hf}'); src = t0
        else:
            a('s_nop 0'); src = soff
        for l in half(RHI, src): a(l)
    for hf in range(cfg.t0pre): issue_h('s57', 0, hf)
    if cfg.spf & 1:
        a('s_add_u32 s98, s6, s57\ns_addc_u32 s99, s7, 0')
        for i in range(cfg.spn): a(f's_load_dword s96, s[98:99], {128*i}')
    if cfg.tlb:
        a(f's_load_dword s96, {SHI}, s57')
        a(f's_add_u32 s97, {sH0}, 79000')
        a(f's_min_u32 s97, s97, 28311548')
        a(f's_and_b32 s97, s97, -4')
        a(f's_load_dword s97, {SHI}, s97')
    if cfg.bist: stamp(a, cfg, 11)
    a('s_barrier')
    a(f's_sub_u32 s56, s56, {sLoP}')
    stamp(a, cfg, 1)
    a(f'v_and_b32 v{U}, 31, v1')
    a(f'v_lshrrev_b32 v{U+1}, 5, v1')
    def rdaddr(d0, d1, px, base):
        a(f'v_lshlrev_b32 v{U+2}, 1, v{px}')
        a(f'v_and_b32 v{U+2}, 0x1e, v{U+2}')
        a(f'v_bfe_u32 v{U+2}, {SF}, v{U+2}, 2')
        a(f'v_xor_b32 v{U+2}, v{U+2}, v{U+1}')
        a(f'v_xor_b32 v{U+3}, 2, v{U+2}')
        a(f'v_mul_u32_u24 v{U+4}, 192, v{px}')
        a(f'v_add_u32 v{U+4}, {base}, v{U+4}')
        a(f'v_lshl_add_u32 v{d0}, v{U+2}, 4, v{U+4}')
        a(f'v_lshl_add_u32 v{d1}, v{U+3}, 4, v{U+4}')
    rdaddr(RA0, RA1, U, sSlot)
    a(f'v_lshrrev_b32 v{U+5}, 1, v{U}')
    rdaddr(RL0, RL1, U+5, sLoP)
    a(f'v_bfe_u32 v14, v1, 2, 2')
    a(f'v_lshl_add_u32 v14, v{U+1}, 3, v14')
    a(f'v_mul_u32_u24 v14, 192, v14')
    a(f'v_bfe_u32 v{U+8}, v1, 4, 1')
    a(f'v_lshl_add_u32 v14, v{U+8}, 5, v14')
    a(f'v_and_b32 v{U+3}, 1, v1')
    a(f'v_lshl_add_u32 v14, v{U+3}, 4, v14')
    a(f'v_bfe_u32 v{U+3}, v1, 1, 1')
    a(f'v_lshl_add_u32 v14, v{U+3}, 3, v14')
    a(f'v_add_u32 v14, {WREG}, v14')
    a(f'v_bfe_u32 v{U+2}, v1, 3, 1')
    a(f'v_and_b32 v{U+3}, 3, v1')
    a(f'v_lshl_add_u32 v{U+2}, v{U+2}, 2, v{U+3}')
    a(f'v_bfe_u32 v{U+3}, v1, 2, 1')
    a(f'v_cmp_eq_u32 vcc, v{U+3}, v{U+1}')
    a(f'v_and_b32 v{U+6}, 1, v{U+2}')
    a(f'v_lshlrev_b32 v{U+6}, 4, v{U+6}')
    a(f'v_mov_b32 v{U+4}, 0x3f80')
    a(f'v_lshlrev_b32 v{U+6}, v{U+6}, v{U+4}')
    a(f'v_cndmask_b32 v{U+6}, 0, v{U+6}, vcc')
    a(f'v_lshrrev_b32 v{U+2}, 1, v{U+2}')
    a(f'v_lshl_add_u32 v{U+2}, v{U+8}, 2, v{U+2}')
    a(f'v_cmp_eq_u32 s[58:59], v{U+3}, v{U+8}')
    a(f'v_mov_b32 v{U+7}, 0x3f803f80')
    if cfg.wsum:
        a(f'v_mov_b32 v{WSA}, {WST+192}')
        a(f'v_mov_b32 v{U+4}, {WST}')
        a(f'v_cndmask_b32 v{WSA}, v{WSA}, v{U+4}, s[58:59]')
        a(f'v_lshl_add_u32 v{WSA}, v{U+1}, 4, v{WSA}')
        a(f's_min_u32 {t0}, {sP}, 2')
        a(f's_lshl_b32 {t0}, {t0}, 5')
        a(f'v_add_u32 v{WSA+1}, {t0}, v{U}')
        a(f'v_mul_u32_u24 v{WSA+2}, 192, v{WSA+1}')
        a(f'v_lshl_add_u32 v{WSA+2}, v{U+1}, 4, v{WSA+2}')
        a(f'v_add_u32 v{WSA+2}, {WREG}, v{WSA+2}')
        a(f'v_lshlrev_b32 v{WSA+1}, 1, v{WSA+1}')
        a(f'v_add_u32 v{WSA+1}, {WST}, v{WSA+1}')
    for i in range(0, 8, 2):
        a(f'v_cmp_eq_u32 vcc, {i}, v{U+2}')
        a(f'v_cmp_eq_u32 s[60:61], {i+1}, v{U+2}')
        a(f'v_cndmask_b32 v{OP+i//2}, 0, v{U+7}, s[58:59]')
        a(f'v_cndmask_b32 v{ID+i}, 0, v{U+6}, vcc')
        a(f'v_cndmask_b32 v{ID+i+1}, 0, v{U+6}, s[60:61]')
    if cfg.dry:
        a('s_mov_b64 exec, 0')
        a(f's_cmp_eq_u32 {sP}, 1')
        a('s_cbranch_scc1 P_dry1')
        a(f's_cmp_eq_u32 {sP}, 2')
        a('s_cbranch_scc1 P_dry2')
        a(f's_cmp_eq_u32 {sP}, 3')
        a('s_cbranch_scc1 P_dryd')
        a(f's_call_b64 {RET}, P_h0')
        a('P_dryd:')
        a('s_mov_b64 exec, -1')
        stamp(a, cfg, 15)
    if cfg.tokpos == 0 and cfg.t0pre < 2:
        await_cnt(a, 5, 'P_sy5', 12, 13, 4)
        for hf in range(cfg.t0pre, 2): issue_h('s57', 0, hf)
        a(f's_waitcnt vmcnt(6)')
    else:
        a(f's_waitcnt vmcnt({3*cfg.t0pre})')
    stamp(a, cfg, 10)
    arrive(a, 0, 12, 13)
    def lo_reads(r0, r1, off=0):
        return [f'ds_read_b128 {vr(X+4*s,4)}, v{r1 if s&1 else r0} offset:{off+64*(s>>1)}' for s in range(6)]
    a(f'v_add_u32 v{U}, s56, v{RL0}\nv_add_u32 v{U+1}, s56, v{RL1}')
    if cfg.tokpos < 0:
        await_cnt(a, 5, 'P_sy5', 15, 13, 4)
        for hf in range(cfg.t0pre, 1 if cfg.tok3 == 2 else 2): issue_h('s57', 0, hf)
        if cfg.wmtok: arrive(a, 6, 15, 13)
    for l in lo_reads(U, U+1): a(l)
    await_cnt(a, 0, 'P_sy0', 12, 13, 4, setaddr=False)
    stamp(a, cfg, 2)
    def wl_reads(t, s):
        return [f'ds_read_b64_tr_b16 {vr(WL+(t*6+s)*4+2*sec,2)}, v14 offset:{s*3072+sec*768+t*64}' for sec in range(2)]
    def lat_mfma(t, s):
        c = '0' if s == 0 else vr(LT+16*t,16)
        return f'{MF32} {vr(LT+16*t,16)}, {vr(WL+(t*6+s)*4,4)}, {vr(X+4*s,4)}, {c}'
    def lateral(first):
        pend = []
        L = [wl_reads(0, s) for s in range(4)] if first else []
        seq = [(t, s) for t in range(3) for s in range(6)]
        for i, (t, s) in enumerate(seq):
            L.append(lat_mfma(t, s))
            if first and i + 4 < 18: L.append(wl_reads(*seq[i+4]))
            if s >= 1: L.append(pend[:4]); del pend[:4]
            if s == 5:
                pend += [f'v_mov_b32 v{SL}, v{LT}' if (t == 0 and j == 0) else f'v_add_f32 v{SL}, v{SL}, v{LT+16*t+j}' for j in range(16)]
        return flat(L), pend
    def sl_fin():
        return [f'v_mov_b32 v{SL+1}, v{SL}', 's_nop 1', f'v_permlane32_swap_b32 v{SL}, v{SL+1}', f'v_add_f32 v{SL}, v{SL}, v{SL+1}']
    L, pend = lateral(True)
    if cfg.wsum == 2:
        for i in range(4): a(f'v_mov_b32 v{U+i}, 0x3f803f80')
        M = []; k = 0
        for l in L:
            M.append(l)
            if l.startswith('v_mfma'):
                k += 1
                if 2 <= k < 8: M.append(f'ds_read_b128 {vr(F+4*(k-2),4)}, v{WSA+2} offset:{32*(k-2)}')
                if k >= 6 and k % 2 == 0 and k < 18:
                    s_ = (k - 6) // 2
                    M.append(f'{MF32} {vr(X+24,16)}, {vr(U,4)}, {vr(F+4*s_,4)}, {"0" if s_ == 0 else vr(X+24,16)}')
        L = M
    L = autowait(L, age=99)
    if cfg.tokpos > 0 and cfg.t0pre < 2:
        k = [i for i, l in enumerate(L) if l.startswith('v_mfma')][cfg.tokpos]
        for l in L[:k]: a(l)
        a('s_waitcnt lgkmcnt(0)')
        await_cnt(a, 5, 'P_sy5', 12, 13, 4)
        for hf in range(cfg.t0pre, 2): issue_h('s57', 0, hf)
        L = L[k:]
    for l in L: a(l)
    if cfg.wsum == 2:
        a(f'v_cvt_pk_bf16_f32 v{X+24}, v{X+24}, v{X+24}')
        a(f'ds_write_b16 v{WSA+1}, v{X+24}')
    if cfg.wsum == 1:
        for s_ in range(6): a(f'ds_read_b128 {vr(F+4*s_,4)}, v{WSA+2} offset:{32*s_}')
        for i in range(4): a(f'v_mov_b32 v{U+i}, 0x3f803f80')
        for l in pend[:8]: a(l)
        del pend[:8]
        for s_ in range(6):
            a(f's_waitcnt lgkmcnt({5-s_})')
            a(f'{MF32} {vr(X,16)}, {vr(U,4)}, {vr(F+4*s_,4)}, {"0" if s_ == 0 else vr(X,16)}')
            for l in pend[:2]: a(l)
            del pend[:2]
    for l in pend + sl_fin(): a(l)
    if cfg.wsum == 1:
        a(f'v_cvt_pk_bf16_f32 v{X}, v{X}, v{X}')
        a(f'ds_write_b16 v{WSA+1}, v{X}')
    if cfg.wsum: a('s_waitcnt lgkmcnt(0)')
    arrive(a, 16, 12, 13)
    stamp(a, cfg, 3)
    a(f's_lshl_b32 {t0}, {sP}, 2')
    a(f's_add_u32 {t0}, {t0}, {PF}')
    a(f'v_mov_b32 v{FLA}, {t0}')
    a(f'v_mov_b32 v{FLV}, 0')
    if cfg.st2: a(f's_mov_b32 s61, {f32(1e-5 * 9216)}')
    if cfg.tok3: await_cnt(a, 6, 'P_sy6', 12, 13, 4)
    if cfg.tok3 == 2: issue_h('s57', 0, 1)
    a(f's_cmp_lt_u32 {sP}, 2')
    a('s_cbranch_scc0 P_scriptB')
    def script(tag, tiles, lats, los):
        n = len(tiles)
        q = ['h0', 'h1']
        nxt = [2]
        done = set()
        def guard(r):
            if r >= 3 and 'g' not in done:
                done.add('g'); await_cnt(a, 4, f'P_w{tag}{r}', 12, 13, 4)
        def param(M, O):
            h = nxt[0]; r, hf = divmod(h, 2)
            guard(r)
            a(f's_add_u32 {M}, {sSlot}, {r*4*6144+3072*hf}')
            a(f's_add_u32 {O}, {tiles[r][0]}, {tiles[r][1]+3072*hf}')
            nxt[0] += 1
            return f'h{h}'
        def now_h():
            h = nxt[0]; r, hf = divmod(h, 2)
            guard(r)
            issue_h(tiles[r][0], r, hf, tiles[r][1]); nxt[0] += 1
            q.append(f'h{h}')
        def now_lo(key):
            a(f's_add_u32 m0, {sLoP}, {0 if key == "lo0" else 4*3072}')
            a('s_nop 0')
            for l in half(RLO, sLo0 if key == 'lo0' else sLo1): a(l)
            q.append(key)
        if cfg.t0pre == 2 and cfg.tok2: await_cnt(a, 5, f'P_sy5{tag}', 12, 13, 4)
        for key in los.get(-1, []): now_lo(key)
        for _ in range(cfg.early): now_h()
        for r in range(n):
            ng = min(2, 2*n - nxt[0])
            if r == 1 and cfg.r1late: ng = 1
            new = []
            if ng >= 1: new.append(param(M1, O1))
            if ng >= 2: new.append(param(M2, O2))
            last = r == n - 1
            if cfg.b2 and r >= 1: a(f"{TM(cfg)} s[{STAMP0+2*(10+r)}:{STAMP0+2*(10+r)+1}]")
            if lats[r] is not None:
                key = lats[r]
                if key in q:
                    i2 = q.index(key)
                    a(f's_waitcnt vmcnt({3*(len(q)-1-i2)})'); del q[:i2+1]
                if cfg.wsum and 'ws' not in done:
                    done.add('ws'); await_cnt(a, 16, f'P_ws{tag}', 12, 13, 4)
                off = 0 if key == 'lo0' else 4*3072
                a(f'v_add_u32 v12, {off}, v{RL0}\nv_add_u32 v13, {off}, v{RL1}')
                a(f's_call_b64 {RET}, P_lat')
            idx = max([q.index(x) for x in (f'h{2*r}', f'h{2*r+1}') if x in q] + [-1])
            if cfg.b2 and lats[r] is not None: a(f"{TM(cfg)} s[{STAMP0+2*(1 if r < 2 else 2)}:{STAMP0+2*(1 if r < 2 else 2)+1}]")
            if last and tag == 'a':
                a(f's_call_b64 {RET}, P_h0w'); break
            a(f's_waitcnt vmcnt({3*(len(q)-1-idx)})'); stamp(a, cfg, 4+r)
            del q[:idx+1]; q.extend(new)
            if last: break
            a(f's_call_b64 {RET}, P_h{ng}')
            if r == 1 and cfg.r1late: now_h()
            for key in los.get(r, []): now_lo(key)
            if tag == 'b' and r == cfg.wvr:
                if 'ws' not in done: await_cnt(a, 16, 'P_wl', 12, 13, 4)
                a(f's_sub_u32 {t0}, {sP}, 2\ns_mul_i32 {t0}, {t0}, 9216')
                a(f'v_lshlrev_b32 v12, 4, v1\nv_add_u32 v12, {t0}, v12')
                for k in range(3):
                    a(f's_add_u32 m0, {t0}, {WREG+3072*k}')
                    a(f's_add_u32 s50, s16, {3072*k}\ns_addc_u32 s51, s17, 0')
                    for j in range(3): a(f'global_load_lds_dwordx4 v12, s[50:51] offset:{1024*j}')
                    q.append('wv')
                if cfg.touch:
                    a(f's_mov_b32 s36, s26\ns_mov_b32 s37, s27\ns_mov_b32 s38, {REC_BYTES}\ns_mov_b32 s39, 0x20000')
                    a(f'v_and_b32 v12, 15, v1\nv_mul_u32_u24 v12, {65536 + cfg.skew}, v12')
                    if cfg.touch >= 2:
                        a('v_lshrrev_b32 v13, 4, v1\nv_lshl_add_u32 v12, v13, 6, v12')
                        a(f's_lshl_b32 {t0}, s2, 8')
                        a(f'buffer_load_dword v232, v12, {RWS}, {t0} offen' + (' sc1' if cfg.touch == 3 else ''))
                    else:
                        a(f'buffer_load_dword v232, v12, {RWS}, 0 offen')
                    a(f'v_mov_b32 v12, 0')
                    a(f'global_load_dword v234, v12, {SOUT}')
                    a(f'global_load_dword v233, v12, {SQ}')
                    q.append('touch')
    script('a', [None, (sH0, 0), (sH0, 73728), (sH1, 0), (sH1, 73728)], [None, 'lo0', None, 'lo1', None], {-1: ['lo0'], 1: ['lo1']})
    if cfg.b2: a(f"{TM(cfg)} s[{STAMP0+30}:{STAMP0+31}]")
    a('s_branch P_fin')
    a('P_scriptB:')
    script('b', [None, (sH0, 73728), (sH1, 0), (sH1, 73728)], [None, None, 'lo1', None], {0: ['lo1']})
    a(f's_call_b64 {RET}, P_h0')
    if cfg.b2: a(f"{TM(cfg)} s[{STAMP0+30}:{STAMP0+31}]")
    a(f'v_mov_b32 v{FLV}, 5')
    a('s_waitcnt vmcnt(0)')
    a(f'ds_write_b32 v{FLA}, v{FLV}')
    if cfg.trp: a('s_branch L_exit')
    if cfg.stamps: a('s_mov_b32 s100, 0')
    a('s_cmp_ge_u32 s2, 16')
    a('s_cbranch_scc1 L_exit')
    if cfg.stamps: a('s_mov_b32 s100, 1')
    if cfg.prog:
        a(f'v_mov_b32 v12, {CNT+48}')
        a('P_w17:')
        a('ds_read_b128 v[232:235], v12')
        a('s_waitcnt lgkmcnt(0)')
        a('v_min_u32 v232, v232, v233')
        a('v_min3_u32 v232, v232, v234, v235')
        a('v_cmp_gt_u32 vcc, 24576, v232')
        a('s_cbranch_vccnz P_w17')
    else:
        await_cnt(a, 17, 'P_w17', 12, 13, 4)
    a(f's_sub_u32 {t0}, {sP}, 2\ns_mul_i32 {t0}, {t0}, 9216')
    a(f'v_lshlrev_b32 v12, 4, v1\nv_add_u32 v12, {t0}, v12')
    for k in range(3):
        a(f's_add_u32 m0, {t0}, {WO+3072*k}')
        a(f's_add_u32 s50, s18, {3072*k}\ns_addc_u32 s51, s19, 0')
        for j in range(3): a(f'global_load_lds_dwordx4 v12, s[50:51] offset:{1024*j}')
    a('P_fin:')
    if cfg.trp: a('s_branch L_exit')
    stamp(a, cfg, 9)
    a('s_cmp_ge_u32 s2, 16')
    a('s_cbranch_scc1 L_exit')
    a('s_setprio 0')
    a(f's_load_dword s47, {SDBG}, 0')
    a('s_waitcnt lgkmcnt(0)')
    a('s_cmp_eq_u32 s47, 0')
    a('s_cbranch_scc1 P_getnonce')
    a('P_getnonce_d:')
    a(f's_mov_b32 s36, s26\ns_mov_b32 s37, s27\ns_mov_b32 s38, {REC_BYTES}\ns_mov_b32 s39, 0x20000')
    if cfg.pwait == 1: await_cnt(a, 7, 'P_w7', 12, 13, 4)
    elif cfg.pwait == 0: await_cnt(a, 3, 'P_w7', 12, 13, 4)
    else:
        a(f'v_mov_b32 v12, {CNT+48}')
        a('P_w7p:')
        a('ds_read_b128 v[232:235], v12')
        a('s_waitcnt lgkmcnt(0)')
        a('v_min_u32 v232, v232, v233')
        a('v_min3_u32 v232, v232, v234, v235')
        a(f'v_cmp_gt_u32 vcc, {24576*(cfg.pwait-1)}, v232')
        a('s_cbranch_vccnz P_w7p')
        await_cnt(a, 3, 'P_w7', 12, 13, 4)
    a('s_cmp_lt_u32 s50, 0x100')
    a('s_cbranch_scc1 L_comb')
    a('s_branch Z_comb')
    nonce_slow(a, 'P_getnonce', 'P_getnonce_d', 20)
    if cfg.dry:
        a('P_dry1:')
        a('s_call_b64 s[60:61], C_blk2')
        a('s_branch P_dryd')
        a('P_dry2:')
        a(f's_call_b64 {RET}, P_lat')
        a('s_branch P_dryd')
    a('P_lat:')
    if cfg.pp: a(f's_setprio {cfg.pl}')
    if cfg.wsum:
        wsr = [f'ds_read_b128 {vr(F+4*s_,4)}, v{WSA} offset:{32*s_}' for s_ in range(6)]
        L = lo_reads(12, 13)
        for i, (t, s_) in enumerate([(t, s_) for t in range(3) for s_ in range(6)]):
            L.append(lat_mfma(t, s_))
            if i < 6: L.append(wsr[i])
            if i >= 6 and i % 2 == 0: L.append(f'{MF16} {vr(SL,4)}, {vr(F+4*((i-6)//2),4)}, {vr(X+4*((i-6)//2),4)}, {"0" if i == 6 else vr(SL,4)}')
        for l in autowait(L, age=99): a(l)
        a(f's_setpc_b64 {RET}')
    else:
        L, pend = lateral(False)
        for l in autowait(lo_reads(12, 13) + L, age=99): a(l)
        a('s_nop 9')
        for l in pend + sl_fin(): a(l)
        a(f's_setpc_b64 {RET}')
    hp = cfg.pm if cfg.pp else None
    g1 = [f's_mov_b32 m0, {M1}', 's_nop 0'] + half(RHI, O1)
    g2 = [f's_mov_b32 m0, {M2}', 's_nop 0'] + half(RHI, O2)
    def traced(lines, first, n):
        step = max(1, len(lines) // n); k = first
        for i, l in enumerate(lines):
            if i % step == 0 and k < first + n:
                stamp(a, cfg, k, True); k += 1
            a(l)
    a('P_h2:')
    traced(B.p_head(g1, g2, hp), 2, 3)
    a('s_branch P_s1')
    a('P_h1:')
    traced(B.p_head(g1, (), hp), 2, 3)
    a('s_branch P_s1')
    a('P_h0w:')
    a('s_waitcnt vmcnt(0)')
    stamp(a, cfg, 8)
    a('P_h0:')
    for l in B.p_head((), (), hp): a(l)
    a('P_s1:')
    tail = B.p_tail(0, cfg.pv if cfg.pp else None) if not cfg.pk else B.p_tail_pk(cfg.pv if cfg.pp else None, bool(cfg.pk & 1), bool(cfg.pk & 2))
    if cfg.st2: tail = B.p_tail2(cfg.pv if cfg.pp else None, cfg.st2 == 1)
    traced(tail[:-1], 5, 9)
    if not cfg.st2: a(f'v_add_u32 v{FLV}, 1, v{FLV}')
    a('s_waitcnt lgkmcnt(0)')
    a(f'ds_write_b32 v{FLA}, v{FLV}')
    a(f's_setpc_b64 {RET}')

def gen_consumer(a, cfg):
    sH = 's40'
    t0, t1 = 's41', 's42'
    RET = 's[60:61]'
    sR = 's43'
    LIN, REC, WVA, XA = 2, 3, 8, 9
    CA0, CA1, CT0, CT1 = B.C.CA0, B.C.CA1, B.C.CT0, B.C.CT1
    PART = 12
    AP, U, LA, OP = B.C.AP, B.C.U, B.C.LA, B.C.OP
    WV = B.C.WV
    QB, WK, ME, QT, QP, TA, QF = 96, 108, 132, 156, 164, 168, 16
    T = 240
    T2 = 248
    a('L_cons:')
    if cfg.cearly: a(f's_setprio {cfg.cpp}')
    a('s_memrealtime s[58:59]')
    code_prefetch(a, 'L_pc', 0, -256)
    a(f's_sub_u32 {sH}, s3, 4')
    a(f'v_lshlrev_b32 v{LIN}, 4, v1')
    a(f's_mul_i32 s48, {sH}, 4608')
    a(f'v_add_u32 v{PART}, s48, v{LIN}')
    a(f's_min_u32 {t0}, {sH}, 2')
    a(f's_lshl_b32 s46, {sH}, 2')
    a(f's_add_u32 s46, s46, {t0}')
    a(f's_lshl_b32 s46, s46, 10')
    a(f'v_add_u32 v13, s46, v{LIN}')
    a(f's_lshl_b32 s54, {t0}, 10')
    a(f'v_add_u32 v10, s54, v{LIN}')
    a('s_lshr_b32 s50, s2, 3\ns_and_b32 s50, s50, 31\ns_mul_i32 s50, s50, 640')
    a(f'v_lshlrev_b32 v14, 7, v1')
    a(f'v_add_u32 v14, s50, v14')
    a(f'v_min_u32 v14, 18428, v14')
    N, G, RHO, KAP = T+4, T+5, T+6, T+7
    a(f'v_and_b32 v{N}, 15, v1')
    a(f'v_lshrrev_b32 v{G}, 4, v1')
    a(f'v_bfe_u32 v{RHO}, v1, 2, 2')
    a(f'v_and_b32 v{KAP}, 3, v1')
    a(f'v_mul_u32_u24 v{T+8}, 192, v{N}')
    a(f'v_lshl_add_u32 v{T+8}, v{G}, 4, v{T+8}')
    a(f'v_lshl_add_u32 v{T+9}, v{RHO}, 3, v{KAP}')
    a(f'v_mul_u32_u24 v{T+9}, 48, v{T+9}')
    a(f'v_lshl_add_u32 v{T+9}, v{G}, 4, v{T+9}')
    a(f'v_add_u32 v{T+9}, s48, v{T+9}')
    if cfg.spf & 6:
        a(f's_cmp_lt_u32 {sH}, 2')
        a(f's_cselect_b32 s96, 8, {sH}')
        a(f's_cselect_b32 s97, {sH}, 0')
        a('s_add_u32 s96, s96, s57')
        a('s_mul_i32 s98, s96, 43691')
        a('s_lshr_b32 s98, s98, 19')
        a('s_add_u32 s98, s98, s97')
        a('s_mul_i32 s98, s98, 73728')
        a('s_mul_i32 s96, s96, 6144')
        a('s_add_u32 s97, s96, s98')
    if cfg.bist: stamp(a, cfg, 12)
    a('s_waitcnt lgkmcnt(0)')
    if cfg.bist: stamp(a, cfg, 13)
    if cfg.spf & 6:
        a('s_add_u32 s98, s6, s97\ns_addc_u32 s99, s7, 0')
    a(f's_cmp_eq_u32 {sH}, 0\ns_cselect_b64 s[50:51], {SWV}, {SWQ}')
    a(f's_cmp_eq_u32 {sH}, 2\ns_cselect_b64 s[50:51], {SWK}, s[50:51]')
    a(f's_cmp_eq_u32 {sH}, 3\ns_cselect_b64 s[50:51], {SWM}, s[50:51]')
    a('s_mov_b64 exec, 31')
    a(f'global_load_dword v200, v14, s[50:51]')
    a('s_mov_b64 exec, -1')
    o2 = cfg.spn if cfg.spf & 1 else 0
    if cfg.spf & 2:
        for i in range(cfg.spn): a(f's_load_dword s96, s[98:99], {128*(o2+i)}')
        o2 += cfg.spn
    if cfg.bist: stamp(a, cfg, 11)
    a('s_barrier')
    if cfg.bist: stamp(a, cfg, 14)
    a(f's_lshl_b32 s50, s2, 2\ns_xor_b32 s50, s50, {sH}\ns_cmp_eq_u32 s50, 3')
    a('s_cbranch_scc1 C_mknonce')
    a('C_mknonce_d:')
    if cfg.fake: arrive(a, 5, 14, 15)
    def wk_loads():
        a('s_mov_b32 exec_hi, 0xffff')
        for s in range(3):
            for tt in range(2):
                a(f'global_load_dwordx4 {vr(WK+(2*s+tt)*4,4)}, v{T+9}, {SWK} offset:{1536*s+192*tt}')
        a('s_mov_b32 exec_hi, -1')
    if cfg.pro == 2:
        for s in range(3): a(f'global_load_dwordx4 {vr(QB+4*s,4)}, v{T+8}, {SQ} offset:{64*s}')
        dma_part(a, SWQ, WQ, PART, 's48')
        if cfg.wkpos == 2: arrive(a, 5, 14, 15)
        a('s_mov_b32 s57, s46')
        a(f'v_mov_b32 v{PART}, v13')
        for i in range(24): a(f'v_mov_b32 v{WK+i}, 0')
        wk_loads()
        if cfg.wkpos == 1: arrive(a, 5, 14, 15)
    elif not cfg.fake:
        M1S, M1L, M2S, M2L = (SWM, WM, SWQ, WQ) if cfg.mfirst else (SWQ, WQ, SWM, WM)
        a(f's_cmp_ge_u32 {sH}, 3')
        a('s_cbranch_scc1 C_noy')
        a(f's_add_u32 m0, s54, {QS}')
        a(f's_cmp_ge_u32 {sH}, 2')
        a(f'global_load_lds_dwordx4 v10, {SQ}')
        a('s_cbranch_scc1 C_noy')
        dma_extra(a, M1S, M1L, 13, 's46')
        a('C_noy:')
        dma_main(a, M1S, M1L, 13, 's46')
        if cfg.wkpos == 2: arrive(a, 5, 14, 15)
        a('s_mov_b32 s57, s46')
        a(f'v_mov_b32 v{PART}, v13')
        for i in range(24): a(f'v_mov_b32 v{WK+i}, 0')
    stamp(a, cfg, 1)
    a(f's_mov_b32 s36, s26\ns_mov_b32 s37, s27\ns_mov_b32 s38, {REC_BYTES}\ns_mov_b32 s39, 0x20000')
    a(f's_and_b32 s49, {sH}, 1\ns_lshl_b32 s55, s49, 1\ns_lshr_b32 s56, {sH}, 1\ns_add_u32 s55, s55, s56')
    a(f's_lshl_b32 {t0}, s2, 2\ns_add_u32 {t0}, {t0}, s55\ns_lshl_b32 {t0}, {t0}, 6')
    a(f'v_mul_u32_u24 v{REC}, {65536 + cfg.skew}, v{N}')
    a(f'v_lshl_add_u32 v{REC}, v{G}, 4, v{REC}')
    a(f'v_add_u32 v{REC}, {t0}, v{REC}')
    a('s_mul_i32 s52, s56, 12288')
    a(f'v_and_b32 v{T+10}, 31, v1')
    a(f'v_lshrrev_b32 v{T+11}, 5, v1')
    a(f'v_lshlrev_b32 v{T+12}, 1, v{N}')
    a(f'v_bfe_u32 v{T+12}, {SF}, v{T+12}, 2')
    a(f'v_xor_b32 v{T+12}, v{T+12}, v{T+11}')
    a(f'v_mul_u32_u24 v{T+13}, 192, v{T+10}')
    a(f'v_add_u32 v{T+13}, s52, v{T+13}')
    a(f'v_lshl_add_u32 v{CA0}, v{T+12}, 4, v{T+13}')
    a(f'v_xor_b32 v{T+12}, 2, v{T+12}')
    a(f'v_lshl_add_u32 v{CA1}, v{T+12}, 4, v{T+13}')
    a(f'v_lshl_add_u32 v{T+12}, v{T+11}, 2, v{RHO}')
    a(f'v_bfe_u32 v{T+13}, v1, 4, 1')
    a(f'v_lshrrev_b32 v{T+14}, 1, v{KAP}')
    a(f'v_lshl_add_u32 v{T+14}, v{T+13}, 1, v{T+14}')
    a(f'v_and_b32 v{T+15}, 1, v{KAP}')
    a(f'v_lshlrev_b32 v{T+15}, 3, v{T+15}')
    a(f'v_add_u32 v{T+15}, s52, v{T+15}')
    for sec, dst in ((0, CT0), (1, CT1)):
        if sec: a(f'v_add_u32 v{T+12}, 8, v{T+12}')
        a(f'v_lshlrev_b32 v{dst}, 1, v{T+12}')
        a(f'v_bfe_u32 v{dst}, {SF}, v{dst}, 2')
        a(f'v_xor_b32 v{dst}, v{dst}, v{T+14}')
        a(f'v_lshl_add_u32 v{dst}, v{dst}, 4, v{T+15}')
        a(f'v_mul_u32_u24 v10, 192, v{T+12}')
        a(f'v_add_u32 v{dst}, v{dst}, v10')
    a(f'v_lshl_add_u32 v{WVA}, v{T+11}, 2, v{RHO}')
    a(f'v_lshl_add_u32 v{WVA}, v{T+13}, 4, v{WVA}')
    a(f'v_mul_u32_u24 v{WVA}, 48, v{WVA}')
    a(f'v_lshl_add_u32 v{WVA}, v{KAP}, 3, v{WVA}')
    a(f'v_add_u32 v{WVA}, {WREG}, v{WVA}')
    a(f's_xor_b32 {t0}, s55, 1')
    a(f's_mul_i32 s53, {t0}, 4608')
    a(f's_mul_i32 s46, s55, 4608')
    a(f'v_mov_b32 v10, s46')
    a(f'v_mov_b32 v11, s53')
    a(f'v_cmp_eq_u32 vcc, 0, v{T+13}')
    a(f'v_mul_u32_u24 v{XA}, 192, v{N}')
    a(f'v_lshl_add_u32 v{XA}, v{T+11}, 4, v{XA}')
    a(f'v_cndmask_b32 v10, v11, v10, vcc')
    a(f'v_add_u32 v{XA}, v{XA}, v10')
    a(f'v_add_u32 v{XA}, {WQ}, v{XA}')
    a(f'v_lshl_add_u32 v{T+12}, v{G}, 3, v{RHO}')
    a(f'v_mul_u32_u24 v10, 48, v{T+12}')
    a(f'v_min_u32 v11, 2, v{KAP}')
    a(f'v_lshl_add_u32 v10, v11, 4, v10')
    a(f's_add_u32 {t0}, s48, {WQ}')
    a(f'v_add_u32 v10, {t0}, v10')
    a(f'v_add_u32 v13, {t0}, v{T+8}')
    a(f'v_add_u32 v{T+8}, {QS}, v{T+8}')
    a(f'v_mul_u32_u24 v11, 192, v{T+12}')
    a(f'v_lshl_add_u32 v11, v{KAP}, 4, v11')
    a(f'v_add_u32 v11, {WM}, v11')
    a(f'v_and_b32 v{T+12}, 1, v1')
    a(f'v_cmp_eq_u32 vcc, v{T+12}, v{T+13}')
    a(f'v_mov_b32 v{T+12}, 0x3f803f80')
    for i in range(52 - cfg.zl):
        a(f'v_mov_b32 v{U+i}, 0')
        if i == 1:
            for k in range(4): a(f'v_cndmask_b32 v{OP+k}, 0, v{T+12}, vcc')
    if cfg.fake:
        a(f's_add_u32 s58, s58, {cfg.fake}')
        a('C_fk:')
        a('s_memrealtime s[50:51]')
        a('s_waitcnt lgkmcnt(0)')
        a('s_sub_u32 s50, s50, s58')
        a('s_cmp_lt_i32 s50, 0')
        a('s_cbranch_scc1 C_fk')
        stamp(a, cfg, 2)
        a(f's_mul_i32 s50, {sH}, 3072')
        a(f's_add_u32 s50, s50, {8<<20}')
        a(f's_add_u32 s50, s26, s50\ns_addc_u32 s51, s27, 0')
        a(f's_add_u32 m0, s48, {WQ}')
        a('s_nop 0')
        for k in range(3): a(f'global_load_lds_dwordx4 v{LIN}, s[50:51] offset:{1024*k}' + (' sc1' if cfg.fsc else ''))
        a('s_waitcnt vmcnt(0)')
        stamp(a, cfg, 15)
        lds_sync(a, 3, 'C_sy3', 14, 15)
        a('s_cmp_eq_u32 s2, 999')
        a('s_cbranch_scc1 Z_sy3')
    else:
        def me_rd(sp, st): return [f'ds_read_b64_tr_b16 {vr(TA+(sp*6+st)*4+2*sec,2)}, v11 offset:{sp*6144+sec*768+(st>>1)*64+(st&1)*8}' for sec in range(2)]
        def q_rd(s, tt): return [f'ds_read_b64_tr_b16 {vr(QF+(tt*3+s)*4+2*sec,2)}, v10 offset:{s*1536+sec*192+tt*8}' for sec in range(2)]
        def q_mm(s, tt): return f'{MF16} {vr(QT+4*tt,4)}, {vr(QF+(tt*3+s)*4,4)}, {vr(QB+4*s,4)}, {"0" if s == 0 else vr(QT+4*tt,4)}'
        if cfg.pro == 2:
            if cfg.wkpos == 3: arrive(a, 5, 14, 15)
            if cfg.wmtok: await_cnt(a, 6, 'C_tk6', 14, 15, 4)
            if cfg.bist: stamp(a, cfg, 7)
            a(f's_cmp_ge_u32 {sH}, 2')
            a('s_cbranch_scc1 C_nox')
            dma_extra(a, SWM, WM, PART, 's57')
            a('C_nox:')
            dma_main(a, SWM, WM, PART, 's57')
            if cfg.wkpos == 0: arrive(a, 5, 14, 15)
            epi_setup(a, cfg)
            if cfg.bist: stamp(a, cfg, 6)
            a('s_waitcnt vmcnt(10)')
            if cfg.bist: stamp(a, cfg, 5)
            if cfg.cpp: a(f's_setprio {cfg.cpp}')
            stamp(a, cfg, 2)
            qseq = [(s, tt) for s in range(3) for tt in range(2)]
            L = [q_rd(*x) for x in qseq] + [q_mm(*x) for x in qseq]
            for l in autowait(flat(L), age=99): a(l)
            for i in range(8): a(f'v_add_f32 v{QT+i}, v{QT+i}, v{QT+i}')
            for i in range(4): a(f'v_cvt_pk_bf16_f32 v{QP+i}, v{QT+2*i}, v{QT+2*i+1}')
            a('s_waitcnt vmcnt(4)')
            for st in range(6):
                a(f'{MF16} {vr(ME+4*st,4)}, {vr(WK+4*st,4)}, {vr(QP,4)}, 0')
            if cfg.bist: stamp(a, cfg, 4)
            a('s_waitcnt vmcnt(0)')
            lds_sync(a, 1, 'C_sy1', 14, 15)
            if cfg.bist: stamp(a, cfg, 8)
            stamp(a, cfg, 15)
            seq = [(sp, st) for sp in range(3) for st in range(6)]
            L = [me_rd(*seq[i]) for i in range(7)]
            for i, (sp, st) in enumerate(seq):
                L.append(f'{MF16} {vr(ME+4*st,4)}, {vr(TA+(sp*6+st)*4,4)}, {vr(QB+4*sp,4)}, {vr(ME+4*st,4)}')
                if i + 7 < 18: L.append(me_rd(*seq[i+7]))
            for l in autowait(flat(L), age=99): a(l)
        else:
            if cfg.spf & 4:
                for i in range(min(cfg.spn, 48 - o2)): a(f's_load_dword s96, s[98:99], {128*(o2+i)}')
            if cfg.bist: stamp(a, cfg, 7)
            if cfg.wkpos == 3: arrive(a, 5, 14, 15)
            a(f's_cmp_ge_u32 {sH}, 2')
            a('s_cbranch_scc1 C_nox')
            dma_extra(a, M2S, M2L, PART, 's57')
            a('C_nox:')
            dma_main(a, M2S, M2L, PART, 's57')
            if cfg.wkpos == 1: arrive(a, 5, 14, 15)
            a('s_mov_b32 exec_hi, 0xffff')
            for s in range(3):
                for tt in range(2):
                    a(f'global_load_dwordx4 {vr(WK+(2*s+tt)*4,4)}, v{T+9}, {SWK} offset:{1536*s+192*tt}')
            a('s_mov_b32 exec_hi, -1')
            if cfg.wkpos == 0: arrive(a, 5, 14, 15)
            if cfg.tok3: arrive(a, 6, 14, 15)
            epi_setup(a, cfg)
            if cfg.bist: stamp(a, cfg, 6)
            a('s_waitcnt vmcnt(6)')
            if cfg.bist: stamp(a, cfg, 5)
            lds_sync(a, 1, 'C_sy1', 14, 15)
            if cfg.cpp: a(f's_setprio {cfg.cpp}')
            stamp(a, cfg, 2)
            def me_rd(sp, st): return [f'ds_read_b64_tr_b16 {vr(TA+(sp*6+st)*4+2*sec,2)}, v11 offset:{sp*6144+sec*768+(st>>1)*64+(st&1)*8}' for sec in range(2)]
            def q_rd(s, tt): return [f'ds_read_b64_tr_b16 {vr(QF+(tt*3+s)*4+2*sec,2)}, v10 offset:{s*1536+sec*192+tt*8}' for sec in range(2)]
            def q_mm(s, tt): return f'{MF16} {vr(QT+4*tt,4)}, {vr(QF+(tt*3+s)*4,4)}, {vr(QB+4*s,4)}, {"0" if s == 0 else vr(QT+4*tt,4)}'
            def me_mm(sp, st): return f'{MF16} {vr(ME+4*st,4)}, {vr(TA+(sp*6+st)*4,4)}, {vr(QB+4*sp,4)}, {"0" if sp == 0 else vr(ME+4*st,4)}'
            seq = [(sp, st) for sp in range(3) for st in range(6)]
            qseq = [(s, tt) for s in range(3) for tt in range(2)]
            qb = [f'ds_read_b128 {vr(QB+4*s,4)}, v{T+8} offset:{64*s}' for s in range(3)]
            L = [qb[0], q_rd(0,0), q_rd(0,1), qb[1], q_rd(1,0), q_rd(1,1), qb[2], q_rd(2,0), q_rd(2,1)]
            for i, (s_, tt) in enumerate(qseq):
                L.append(q_mm(s_, tt)); L.append(me_rd(*seq[i]))
            post = [f'v_add_f32 v{QT+i}, v{QT+i}, v{QT+i}' for i in range(8)] + [f'v_cvt_pk_bf16_f32 v{QP+i}, v{QT+2*i}, v{QT+2*i+1}' for i in range(4)]
            for i, (sp, st) in enumerate(seq):
                L.append(me_mm(sp, st))
                if i + 6 < 18: L.append(me_rd(*seq[i+6]))
                if i >= 3: L.append(post[:1]); del post[:1]
            L.append(post)
            for l in autowait(flat(L), age=99): a(l)
            if cfg.bist: stamp(a, cfg, 4)
            a('s_waitcnt vmcnt(0)')
            if cfg.bist: stamp(a, cfg, 8)
            stamp(a, cfg, 15)
            for st in range(6):
                a(f'{MF16} {vr(ME+4*st,4)}, {vr(WK+4*st,4)}, {vr(QP,4)}, {vr(ME+4*st,4)}')
        sc = 96 ** -0.5 * math.log2(math.e)
        a(f's_mov_b32 {t0}, {f32(sc)}')
        for s in range(3):
            for i in range(8): a(f'v_mul_f32 v{ME+8*s+i}, {t0}, v{ME+8*s+i}')
            for i in range(4): a(f'v_cvt_pk_bf16_f32 v{ME+8*s+i}, v{ME+8*s+2*i}, v{ME+8*s+2*i+1}')
            a(f'ds_write_b128 v13, {vr(ME+8*s,4)} offset:{64*s}')
            a(f'{MF16} {vr(QT,4)}, {vr(ME+8*s,4)}, {vr(ME+8*s,4)}, {"0" if s == 0 else vr(QT,4)}')
        a(f's_mov_b32 {t0}, {f32(THR)}')
        a(f'v_mov_b32 v14, {CNT + 4*3}')
        a(f'v_max3_f32 v{QT}, v{QT}, v{QT+1}, v{QT+2}')
        a(f'v_max_f32 v{QT}, v{QT}, v{QT+3}')
        a(f'v_cmp_nge_f32 vcc, {t0}, v{QT}')
        a('s_cmp_eq_u64 vcc, 0')
        a('s_cselect_b32 s51, 1, 0x101')
        a('v_mov_b32 v15, s51')
        a('s_waitcnt lgkmcnt(0)')
        a('s_mov_b64 exec, 1')
        a('ds_add_rtn_u32 v15, v14, v15')
        a('s_mov_b64 exec, -1')
        a('s_waitcnt lgkmcnt(0)')
        a('v_readfirstlane_b32 s50, v15')
        a('s_add_u32 s50, s50, s51')
        a('s_cmp_eq_u32 s50, 4')
        a('s_cbranch_scc1 C_sy3_ok')
        await_cnt(a, 3, 'C_sy3', 14, 15, 4, setaddr=False)
        a('s_cmp_eq_u32 s50, 4')
        a('s_cbranch_scc0 Z_sy3')
    if not cfg.fake: a('C_sy3_ok:')
    stamp(a, cfg, 3)
    cons_main(a, cfg, False)
    a('C_mknonce:')
    a('s_or_b32 s50, s58, 1')
    a('v_mov_b32 v20, s50\nv_mov_b32 v21, 0\nv_mov_b32 v22, 0')
    a('s_mov_b64 exec, 1')
    a(f'global_atomic_cmpswap v22, v[20:21], {SDBG} sc1')
    a('s_mov_b64 exec, -1')
    a('s_branch C_mknonce_d')
    nonce_slow(a, 'C_getnonce', 'C_getnonce_d', T2)

def slow_rescale(NEW):
    MX = 160; U, LA = B.C.U, B.C.LA
    L = [f'v_max_f32 v{NEW}, v{NEW}, v{MX}',
         f'v_sub_f32 v{MX+4}, v{MX}, v{NEW}',
         f'v_exp_f32 v{MX+4}, v{MX+4}',
         f'v_mov_b32 v{MX}, v{NEW}', 's_nop 1',
         f'v_mov_b32 v{MX+5}, v{MX+4}', f'v_mov_b32 v{MX+6}, v{MX+4}', 's_nop 1',
         f'v_permlane16_swap_b32 v{MX+5}, v{MX+6}', 's_nop 1']
    L += [f'v_mul_f32 v{U+i}, v{U+i}, v{MX+4}' for i in range(48)]
    L += [f'v_mul_f32 v{LA+i}, v{LA+i}, v{MX+5+(i&1)}' for i in range(4)]
    return L

def slow_tile(off):
    MX = 160; S = B.C.S[0]
    tb = B.C.TB
    B.C.TB = off
    sv = (B.C.KA, B.C.KT, B.C.S, B.C.P)
    B.C.KA = [sv[0][0]] * 2; B.C.KT = [sv[1][0]] * 2; B.C.S = [S] * 2; B.C.P = [S] * 2
    L = [B.ka(1, s) for s in range(6)] + ['s_waitcnt lgkmcnt(0)']
    L += [B.kt(1, ks, t) for ks in range(2) for t in range(3)]
    L += [B.sm(1, s) for s in range(6)] + ['s_nop 15', 's_nop 15']
    L += [f'v_max3_f32 v{MX+1}, v{S}, v{S+1}, v{S+2}']
    L += [f'v_max3_f32 v{MX+1}, v{MX+1}, v{S+3+2*i}, v{S+4+2*i}' for i in range(6)]
    L += [f'v_max_f32 v{MX+1}, v{MX+1}, v{S+15}', f'v_mov_b32 v{MX+2}, v{MX+1}', 's_nop 1',
          f'v_permlane32_swap_b32 v{MX+1}, v{MX+2}', 's_nop 1', f'v_max_f32 v{MX+1}, v{MX+1}, v{MX+2}']
    L += slow_rescale(MX+1)
    L += [f'v_sub_f32 v{S+i}, v{S+i}, v{MX}' for i in range(16)]
    L += [B.ex(1, i) for i in range(16)] + ['s_nop 1'] + [B.cv(1, i) for i in range(8)]
    L += ['s_waitcnt lgkmcnt(0)', 's_nop 1']
    L += [B.pv(1, ks, t) for ks in range(2) for t in range(4)] + ['s_nop 15', 's_nop 15']
    B.C.TB = tb
    B.C.KA, B.C.KT, B.C.S, B.C.P = sv
    return flat(L)

EPI_REGS = (8, 240, 241, 242, 243, 0, 251, 254, 255, 244, 245)
def epi_setup(a, cfg):
    for i in range(52 - cfg.zl, 52): a(f'v_mov_b32 v{B.C.U+i}, 0')
    sH = 's40'
    t0, t1 = 's41', 's42'
    LIN, WVA = 2, 8
    WA0, FLA, XO, XP, FO, FP, ONE, MRA, THRV, XLW, XLR = EPI_REGS
    THR, INC = 246, 247
    a(f'v_add_u32 v{WA0}, s46, v{WVA}')
    a(f's_mul_i32 {t0}, {sH}, {XST}')
    a(f's_xor_b32 {t1}, {sH}, 2')
    a(f's_mul_i32 {t1}, {t1}, {XST}')
    a(f's_add_u32 {t0}, {t0}, {XCH}')
    a(f's_add_u32 {t1}, {t1}, {XCH+3072}')
    a(f'v_add_u32 v{XO}, {t0}, v{LIN}')
    a(f'v_lshlrev_b32 v{XLR}, 2, v1')
    a(f'v_add_u32 v{XLW}, {t1}, v{XLR}')
    a(f'v_add_u32 v{XLR}, {t0}, v{XLR}')
    a(f's_mov_b32 s52, 0xffff0000\ns_mov_b32 s53, 0xffff0000')
    if cfg.xv == 2:
        a(f's_sub_u32 {t1}, {t1}, 3072')
        a(f'v_add_u32 v{XP}, {t1}, v{LIN}')
        a('s_mul_i32 s54, s56, -9216')
        a('s_add_u32 s54, s54, 4608')
    elif cfg.xv == 0:
        a(f'v_add_u32 v{XP}, {t1}, v{LIN}')
    else:
        a(f'v_mov_b32 v{XP}, {t0}')
        a(f'v_mov_b32 v14, {t1}')
        a(f'v_and_b32 v15, 15, v1')
        a(f'v_cndmask_b32 v{XP}, v{XP}, v14, s[52:53]')
        a(f'v_lshl_add_u32 v{XP}, v15, 4, v{XP}')
        a(f'v_lshrrev_b32 v15, 5, v1')
        a(f'v_lshl_add_u32 v{XP}, v15, 9, v{XP}')
    a(f'v_and_b32 v{FLA}, 3, v1')
    a(f's_xor_b32 {t0}, s56, 1')
    a(f'v_cmp_eq_u32 vcc, {t0}, v{FLA}')
    a(f'v_lshlrev_b32 v{FLA}, 2, v{FLA}')
    a(f'v_add_u32 v{FLA}, {PF}, v{FLA}')
    a(f'v_cndmask_b32 v{THRV}, 5, 4, vcc')
    a(f's_lshl_b32 {t0}, {sH}, 2')
    a(f's_add_u32 {t0}, {t0}, {CNT+32}')
    a(f'v_mov_b32 v{FO}, {t0}')
    a(f'v_xor_b32 v{FP}, 8, v{FO}')
    a(f'v_mov_b32 v{ONE}, 1')
    a('s_mov_b32 s44, 0\ns_mov_b32 s45, -1')
    a(f'v_bfe_u32 v{INC}, v1, 1, 1')
    a(f'v_cmp_eq_u32 vcc, s56, v{INC}')
    if cfg.uni == 2:
        a('s_mov_b32 s61, 4')
        a('s_mul_i32 s59, s56, -6144')
        a('s_add_u32 s59, s59, 24576')
    else:
        a('s_add_u32 s61, s56, 3')
        a('s_mov_b32 s59, -6144')
    a('s_mov_b32 s43, 0')
    a(f'v_cndmask_b32 v{INC}, 0, 1, vcc')
    a(f'v_mov_b32 v{THR}, v{INC}')

def cons_main(a, cfg, slow):
    sH = 's40'
    t0, t1 = 's41', 's42'
    RET = 's[60:61]'
    sR = 's43'
    LIN, REC, WVA, XA = 2, 3, 8, 9
    CA0, CA1, CT0, CT1 = B.C.CA0, B.C.CA1, B.C.CT0, B.C.CT1
    AP, U, LA, OP = B.C.AP, B.C.U, B.C.LA, B.C.OP
    WV = B.C.WV
    T2 = 248
    Z = 'Z' if slow else 'C'
    prog = cfg.prog
    OOL = []
    MX = 160
    if slow:
        xv = cfg.xv; cfg = Cfg(); cfg.stamps = False; cfg.xv = xv
        a('Z_sy3:')
        a('ds_read_b32 v15, v14')
        a('s_waitcnt lgkmcnt(0)')
        a('v_readfirstlane_b32 s50, v15')
        a('s_and_b32 s50, s50, 0xff')
        a('s_cmp_lt_u32 s50, 4')
        a('s_cbranch_scc1 Z_sy3')
        a(f'v_mov_b32 v{MX}, {f32(-3e38)}')
    WA0, FLA, XO, XP, FO, FP, ONE, MRA, THRV, XLW, XLR = EPI_REGS
    for s in range(6): a(f'ds_read_b128 {vr(AP+4*s,4)}, v{XA} offset:{32*s}')
    if slow:
        a(f's_lshl_b32 {t0}, s56, 3\ns_add_u32 {t0}, {t0}, {PF}')
        a(f'v_mov_b32 v10, {t0}')
        a(f's_mov_b32 {sR}, 1')
        a('s_waitcnt lgkmcnt(0)')
        arrive(a, 4, 14, 15)
    if slow:
        a(f's_lshl_b32 {t0}, s55, 8\ns_add_u32 {t0}, {t0}, s2\ns_lshl_b32 {t0}, {t0}, 3\ns_add_u32 {t0}, {t0}, {MREC}')
        a(f'v_and_b32 v{MRA}, 15, v1')
        a(f'v_lshlrev_b32 v{MRA}, 13, v{MRA}')
        a(f'v_add_u32 v{MRA}, {t0}, v{MRA}')
    wvr = [f'ds_read_b64_tr_b16 {vr(WV+(tt*3+t)*4+2*sec,2)}, v{WA0} offset:{t*1536+sec*384+tt*32}'
           for t in range(3) for tt in range(2) for sec in range(2)]
    WA1, REC2 = 232, 233
    def wreg(hh, tt, t): return 200 + ((hh*2+tt)*2+t)*4 if t < 2 else 16 + (hh*2+tt)*4
    xtra = []
    if cfg.xv == 2:
        wvr = [f'ds_read_b64_tr_b16 {vr(wreg(hh,tt,t)+2*sec,2)}, v{(WA0, WA1)[hh]} offset:{t*1536+sec*384+tt*32}'
               for t in range(3) for hh in range(2) for tt in range(2) for sec in range(2)]
        xtra = [f'v_add_u32 v{WA1}, s54, v{WA0}', f'v_xor_b32 v{REC2}, 64, v{REC}']
        if slow:
            for l in xtra: a(l)
    if not slow:
        VF, THR, INC = T2+4, 246, 247
        sAdv, sStop = 's60', 's61'
        flag = f'ds_read_b32 v{VF}, v{FLA}'
        def kord(tag): return B.ORD if (cfg.swp and tag != 'C_w16') else range(6)
        def waitloop(tag, go, prio=None):
            a(f'{tag}:')
            if cfg.wsl: a(f's_sleep {cfg.wsl}')
            a(flag)
            a('s_waitcnt lgkmcnt(0)')
            a(f'v_cmp_lt_u32 vcc, v{VF}, v{THR}')
            a(f's_cbranch_vccnz {tag}')
            for s_ in kord(tag): a(B.ka(0, s_))
            a(f's_branch {go}')
        def check(wait, go):
            a('s_waitcnt lgkmcnt(6)')
            a(f'v_cmp_lt_u32 vcc, v{VF}, v{THR}')
            a(f's_cbranch_vccnz {wait}')
            a(f'{go}:')
        class Lst:
            def __init__(s_): s_.l = []
            def __call__(s_, t): s_.l += [x.strip() for x in t.split('\n') if x.strip()]
        hook = Lst()
        if not cfg.prog: arrive(hook, 17, 14, 15)
        hook.l += xtra
        mk_tag(hook, T2+1)
        a(flag)
        for s_ in kord('C'): a(B.ka(0, s_))
        if cfg.swp:
            for i in range(12): a(f'v_mov_b32 v{B.KD+i}, 0')
            for i in range(8, 16): a(f'v_mov_b32 v{B.C.S[1]+i}, {f32(-1e30)}')
        a(f'v_mov_b32 v14, {CNT + 4*4}')
        a('s_waitcnt lgkmcnt(7)')
        a('s_mov_b64 exec, 1')
        a(f'ds_add_u32 v14, v{ONE}')
        a('s_mov_b64 exec, -1')
        if cfg.cpp or cfg.cmain: a(f's_setprio {cfg.cmain}')
        a('C_loop:')
        check('C_wait', 'C_go')
        if cfg.stamps and not cfg.b2:
            pass
        if cfg.b2 and not cfg.etr:
            for j in (11, 12, 13): a(f's_mov_b64 s[{STAMP0+2*j}:{STAMP0+2*j+1}], s[{STAMP0+2*j+2}:{STAMP0+2*j+3}]')
            a(f"{TM(cfg)} s[{STAMP0+28}:{STAMP0+29}]")
        top = ([f's_setprio {cfg.ctop}'] if cfg.ctop else []) + [f's_add_u32 {sR}, {sR}, 1', f'v_add_u32 v{THR}, v{THR}, v{INC}', f's_cmp_eq_u32 {sR}, 4', f's_cselect_b32 {sAdv}, s59, 24576'] + ([f'ds_write_b32 v{FO}, v{CA0} offset:16'] if cfg.prog else [])
        advl = [f'v_add_u32 v{r}, {sAdv}, v{r}' for r in (CA0, CA1, CT0, CT1)]
        for l in (B.cons2q if cfg.swp else B.cons2p)(advl, flag, top): a(l)
        if cfg.stamps:
            for j in (5, 6): a(f's_mov_b64 s[{STAMP0+2*j}:{STAMP0+2*j+1}], s[{STAMP0+2*j+2}:{STAMP0+2*j+3}]')
            stamp(a, cfg, 7)
        a(f's_cmp_eq_u32 {sR}, {sStop}')
        a('s_cbranch_scc1 C_done')
        a(f's_load_dword s47, {SDBG}, 0')
        a('s_branch C_loop')
        waitloop('C_wait', 'C_go')
        a('C_done:')
        a('s_cmp_eq_u32 s47, 0')
        a('s_cbranch_scc1 C_getnonce')
        a('C_getnonce_d:')
        def specloop(tag, go):
            a(f'{tag}:')
            a(flag)
            for s_ in kord(tag): a(B.ka(0, s_))
            a('s_waitcnt lgkmcnt(6)')
            a(f'v_cmp_lt_u32 vcc, v{VF}, v{THR}')
            a(f's_cbranch_vccz {go}')
            a(f's_branch {tag}')
        if cfg.uni:
            a(f'v_mov_b32 v{THR}, v{THRV}')
            stamp(a, cfg, 4)
            check('C_w13', 'C_g13')
            stamp(a, cfg, 8)
            a('s_setprio 3')
            for l in (B.cons1x(wvr, True, hook.l) if cfg.uni == 2 else (B.cons2y if cfg.xv == 2 else B.cons2x)(wvr, 24576, True, hook.l)): a(l)
            OOL.append(lambda: (specloop if cfg.spec else waitloop)('C_w13', 'C_g13'))
        else:
            a('s_cmp_eq_u32 s56, 0')
            a('s_cbranch_scc1 C_r3s')
            a(f'v_mov_b32 v{THR}, v{THRV}')
            stamp(a, cfg, 4)
            check('C_w13', 'C_g13')
            stamp(a, cfg, 8)
            a('s_setprio 3')
            for l in (B.cons2qx(wvr, 24576, hook.l) if cfg.swp else B.cons2x(wvr, 24576, True, hook.l)): a(l)
            a('s_branch C_epi')
            (specloop if cfg.spec else waitloop)('C_w13', 'C_g13')
            waitloop('C_w12', 'C_g12')
            (specloop if cfg.spec else waitloop)('C_w16', 'C_g16')
            a('C_r3s:')
            check('C_w12', 'C_g12')
            adv = [f'v_add_u32 v{r}, 24576, v{r}' for r in (CA0, CA1, CT0, CT1)]
            for l in (B.cons1q if cfg.swp else B.cons1p)(adv, flag, hook.l + [f'v_mov_b32 v{THR}, v{THRV}']): a(l)
            stamp(a, cfg, 4)
            check('C_w16', 'C_g16')
            stamp(a, cfg, 8)
            a('s_setprio 3')
            for l in (B.cons1y if cfg.xv == 2 else B.cons1x)(wvr, True): a(l)
    if slow:
        if cfg.cpp: a(f's_setprio {cfg.cmain}')
        a(f's_call_b64 {RET}, {Z}_blk')
        stamp(a, cfg, 5)
        a(f's_load_dword s47, {SDBG}, 0')
        if cfg.c2 is not None: a(f's_setprio {cfg.c2}')
        a(f's_call_b64 {RET}, {Z}_blk')
        stamp(a, cfg, 6)
        if prog: a(f'ds_write_b32 v{FO}, v{CA0} offset:16')
        else: arrive(a, 17, 14, 15)
        a('s_cmp_eq_u32 s47, 0')
        a(f's_cbranch_scc1 {Z}_getnonce')
        a(f'{Z}_getnonce_d:')
        mk_tag(a, T2+1)
        if cfg.c3 is not None: a(f's_setprio {cfg.c3}')
        a(f's_call_b64 {RET}, {Z}_blk')
        stamp(a, cfg, 7)
        if cfg.c4 is not None: a(f's_setprio {cfg.c4}')
        def lastwait(tag):
            a(f'{tag}:')
            a(f'ds_read_b32 v{T2+4}, v{FLA}')
            a('s_waitcnt lgkmcnt(0)')
            a(f'v_cmp_lt_u32 vcc, v{T2+4}, v{THRV}')
            a(f's_cbranch_vccnz {tag}')
            stamp(a, cfg, 8)
            a('s_setprio 3')
        a('s_cmp_eq_u32 s56, 0')
        a(f's_cbranch_scc1 {Z}_r3s')
        a(f's_call_b64 {RET}, {Z}_blk')
        a(f's_mov_b32 s51, {(13 - 18) * 6144}')
        for r in (CA0, CA1, CT0, CT1): a(f'v_add_u32 v{r}, s51, v{r}')
        stamp(a, cfg, 4)
        lastwait(f'{Z}_r4w1')
        if slow:
            for l in slow_tile(0) + slow_tile(24576) + autowait(wvr, final=0): a(l)
        else:
            for l in B.cons2x(wvr, 24576): a(l)
        a(f's_branch {Z}_epi')
        a(f'{Z}_r3s:')
        a(f'v_mov_b32 v10, {PF}')
        a(f'{Z}_r3w:')
        a(f'ds_read_b32 v{T2+4}, v10')
        a('s_waitcnt lgkmcnt(0)')
        a(f'v_readfirstlane_b32 s50, v{T2+4}')
        a('s_cmp_lt_u32 s50, 4')
        a(f's_cbranch_scc1 {Z}_r3w')
        adv = [f'v_add_u32 v{r}, 24576, v{r}' for r in (CA0, CA1, CT0, CT1)]
        for l in (slow_tile(0) + adv if slow else B.cons1(extra_mid=adv)): a(l)
        stamp(a, cfg, 4)
        lastwait(f'{Z}_r4w0')
        if slow:
            for l in slow_tile(0) + autowait(wvr, final=0): a(l)
        else:
            for l in B.cons1x(wvr): a(l)
    a(f'{Z}_epi:')
    stamp(a, cfg, 9)
    if slow:
        a(f's_lshl_b32 {t0}, {sH}, 7')
        a(f's_add_u32 {t0}, {t0}, {TOT}')
        a(f'v_and_b32 v{MX+1}, 31, v1')
        a(f'v_lshlrev_b32 v{MX+1}, 2, v{MX+1}')
        a(f'v_add_u32 v{MX+1}, {t0}, v{MX+1}')
        a(f'ds_write_b32 v{MX+1}, v{MX}')
        a('s_waitcnt lgkmcnt(0)')
        lds_sync(a, 18, 'Z_sy18', MX+2, MX+3)
        a(f'v_xor_b32 v{MX+1}, {256+64}, v{MX+1}')
        a(f'ds_read_b32 v{MX+2}, v{MX+1}')
        a('s_waitcnt lgkmcnt(0)')
        for l in slow_rescale(MX+2): a(l)
        a(f'v_mov_b32 v{MX+1}, s47')
        a('s_mov_b32 exec_lo, 0\ns_mov_b32 exec_hi, 0xffff')
        a(f'buffer_store_dwordx2 {vr(MX,2)}, v{MRA}, {RWS}, 0 offen sc1')
        a('s_mov_b64 exec, -1')
    UP, CX, RX, RS = 96, 120, 128, 144
    def cvtU(t): return [f'v_cvt_pk_bf16_f32 v{UP+8*t+i}, v{U+16*t+2*i}, v{U+16*t+2*i+1}' for i in range(8)]
    def pj(src, tt, t, first=False):
        return f'{MF16} {vr(CX+4*tt,4)}, {vr(WV+(tt*3+t)*4,4)}, {vr(src,4)}, {"0" if first else vr(CX+4*tt,4)}'
    def snd(t, hi): return f'ds_write_b128 v{XP}, {vr(UP+8*t+4*hi,4)} offset:{1024*t+256*hi}'
    def own(t): return f'ds_read_b128 {vr(RS+4*t,4)}, v{XO} offset:{1024*t}'
    EN = T2
    enc = [f'v_cndmask_b32 v{EN}, v{LA}, v{LA+1}, s[44:45]', f'v_and_b32 v{EN+2}, s46, v{EN}', f'v_sub_f32 v{EN}, v{EN}, v{EN+2}',
           f'v_cndmask_b32 v{EN}, v{EN+2}, v{EN}, s[52:53]', f'v_bfi_b32 v{EN}, s46, v{EN}, v{T2+1}']
    c0, c1, c2 = cvtU(0), cvtU(1), cvtU(2)
    def poll():
        a(f'ds_read_b32 v15, v{FO}')
        if cfg.xv == 2:
            for hh in range(2):
                for tt in range(2): a(f'ds_read_b128 {vr(RS+8*hh+4*tt,4)}, v{XO} offset:{2048*(1-hh)+1024*tt}')
            return
        for t in range(3): a(f'ds_read_b128 {vr(RX+4*t,4)}, v{XO} offset:{3072+1024*t}')
        a(f'ds_read_b32 v{RX+12}, v{XLR} offset:6144')
    if cfg.xv == 2:
        def swp(t): return [f'v_permlane16_swap_b32 v{UP+8*t+i}, v{UP+8*t+4+i}' for i in range(4)]
        def pk(hh, tt, t): return f'{MF16} {vr(CX+8*hh+4*tt,4)}, {vr(wreg(hh,tt,t),4)}, {vr(UP+8*t+4*hh,4)}, {"0" if t == 0 else vr(CX+8*hh+4*tt,4)}'
        ENS = (T2, 234)
        def enc2(hh):
            e = ENS[hh]
            return [f'v_and_b32 v{T2+2}, s46, v{LA+hh}', f'v_sub_f32 v{e}, v{LA+hh}, v{T2+2}', f'v_cndmask_b32 v{e}, v{T2+2}, v{e}, s[52:53]', f'v_bfi_b32 v{e}, s46, v{e}, v{T2+1}']
        if not cfg.latep: poll()
        E = [enc2(0), c0, c1[:2], swp(0), c1[2:4],
             pk(0,0,0), c1[4:6], pk(0,1,0), c1[6:8], pk(1,0,0), c2[:2], pk(1,1,0), swp(1), c2[2:4],
             pk(0,0,1), c2[4:6], pk(0,1,1), c2[6:8], pk(1,0,1), swp(2), pk(1,1,1),
             pk(0,0,2), enc2(1)[:2], pk(0,1,2), enc2(1)[2:], pk(1,0,2), 's_cmp_eq_u32 s56, 0', pk(1,1,2)]
        for l in flat(E):
            if cfg.latep and l == pk(0,0,2): poll()
            a(l)
        a(f's_cbranch_scc1 {Z}_snd')
        a(f'{Z}_xw:')
        a('s_waitcnt lgkmcnt(0)')
        a('v_cmp_eq_u32 vcc, 0, v15')
        a(f's_cbranch_vccnz {Z}_xr')
        for hh in range(2):
            c = CX + 8*hh; r = RS + 8*hh
            for i in range(4): a(f'v_add_f32 v{c+i}, v{c+i}, v{r+i}')
            a(f'v_cvt_pk_bf16_f32 v{c}, v{c}, v{c+1}')
            a(f'v_cvt_pk_bf16_f32 v{c+1}, v{c+2}, v{c+3}')
            for i in range(4, 8): a(f'v_add_f32 v{c+i}, v{c+i}, v{r+i}')
            a(f'v_cvt_pk_bf16_f32 v{c+2}, v{c+4}, v{c+5}')
            a(f'v_cvt_pk_bf16_f32 v{c+4}, v{c+6}, v{c+7}')
            a(f'v_cndmask_b32 v{c+3}, v{ENS[hh]}, v{r+4}, s[44:45]')
            a(f'v_permlane32_swap_b32 v{c+2}, v{c+4}')
            a(f'buffer_store_dwordx4 {vr(c,4)}, v{(REC, REC2)[hh]}, {RWS}, 0 offen sc1')
        a(f'{Z}_pub:')
        def snd_all():
            a(f'{Z}_snd:')
            a('s_nop 2')
            for hh in range(2):
                a(f'ds_write_b128 v{XP}, {vr(CX+8*hh,4)} offset:{2048*hh}')
                a(f'v_cndmask_b32 v{CX+8*hh+4}, v{CX+8*hh+4}, v{ENS[hh]}, s[44:45]')
                a(f'ds_write_b128 v{XP}, {vr(CX+8*hh+4,4)} offset:{2048*hh+1024}')
            a(f'ds_write_b32 v{FP}, v{ONE}')
            a(f's_branch {Z}_pub')
        OOL.append(snd_all)
    else:
        E = [enc, f'ds_write_b32 v{XLW}, v{EN} offset:3072',
             c0[:4], snd(0,0), c0[4:], snd(0,1), c1[:4], snd(1,0), own(0), c1[4:], snd(1,1), c2[:4], snd(2,0), own(1), c2[4:], snd(2,1),
             f'ds_write_b32 v{FP}, v{ONE}', own(2)]
        if cfg.xv == 0:
            def swp(t): return [f'v_permlane16_swap_b32 v{UP+8*t+i}, v{UP+8*t+4+i}' for i in range(4)]
            def snd(t, hi=0): return f'ds_write_b128 v{XP}, {vr(UP+8*t+4,4)} offset:{1024*t}'
            E = [enc, f'ds_write_b32 v{XLW}, v{EN} offset:3072',
                 c0, c1[:2], swp(0), c1[2:4], snd(0), c1[4:8], c2[:2], swp(1), c2[2:4], snd(1), c2[4:8], 's_nop 0', swp(2), 's_nop 0', snd(2),
                 f'ds_write_b32 v{FP}, v{ONE}']
        for l in flat(E):
            if cfg.etr and not slow and l == snd(0,0): a(f"{TM(cfg)} s[{STAMP0+22}:{STAMP0+23}]")
            if cfg.etr and not slow and l.startswith(f'ds_write_b32 v{FP}'): a(f"{TM(cfg)} s[{STAMP0+24}:{STAMP0+25}]")
            a(l)
        if cfg.xv == 0:
            mm = [pj(UP,0,0,True), pj(UP,1,0,True), pj(UP+8,0,1), pj(UP+8,1,1), pj(UP+16,0,2), pj(UP+16,1,2)]
            for l in mm[:cfg.xd]: a(l)
            poll()
            for l in mm[cfg.xd:]: a(l)
        else:
            poll()
            a('s_waitcnt lgkmcnt(7)')
            a(pj(RS,0,0,True)); a(pj(RS,1,0,True)); a(pj(RS+4,0,1)); a(pj(RS+4,1,1))
            a('s_waitcnt lgkmcnt(5)')
            a(pj(RS+8,0,2)); a(pj(RS+8,1,2))
        if cfg.etr and not slow: a(f"{TM(cfg)} s[{STAMP0+26}:{STAMP0+27}]")
        a(f'{Z}_xw:')
        a('s_waitcnt lgkmcnt(4)')
        a('v_cmp_eq_u32 vcc, 0, v15')
        a(f's_cbranch_vccnz {Z}_xr')
        if cfg.etr and not slow: a(f"{TM(cfg)} s[{STAMP0+28}:{STAMP0+29}]")
        for t in range(3):
            a(f's_waitcnt lgkmcnt({3-t})')
            a(pj(RX+4*t,0,t)); a(pj(RX+4*t,1,t))
        a('s_waitcnt lgkmcnt(0)')
        a(f'v_cndmask_b32 v{EN}, v{EN}, v{RX+12}, s[44:45]')
        a(f'v_cvt_pk_bf16_f32 v{CX}, v{CX}, v{CX+1}')
        a(f'v_cvt_pk_bf16_f32 v{CX+1}, v{CX+2}, v{CX+3}')
        a(f'v_mov_b32 v{CX+3}, v{EN}')
        a(f'v_cvt_pk_bf16_f32 v{CX+2}, v{CX+4}, v{CX+5}')
        a(f'v_cvt_pk_bf16_f32 v{CX+4}, v{CX+6}, v{CX+7}')
        a(f'v_permlane32_swap_b32 v{CX+2}, v{CX+4}')
        a(f'buffer_store_dwordx4 {vr(CX,4)}, v{REC}, {RWS}, 0 offen sc1')
    stamp(a, cfg, 10)
    a('s_cmp_ge_u32 s2, 16')
    a('s_cbranch_scc1 L_exit')
    if slow:
        a(f'v_mov_b32 v14, {CNT + 4*7}')
        a(f'v_mov_b32 v15, 0x101')
        a('s_mov_b64 exec, 1')
        a('ds_add_u32 v14, v15')
        a('s_mov_b64 exec, -1')
        a('s_setprio 0')
        a('s_branch Z_comb')
        a('Z_xr:'); poll(); a('s_branch Z_xw')
        for f in OOL: f()
        nonce_slow(a, 'Z_getnonce', 'Z_getnonce_d', T2)
        a('Z_wait:')
        a('Z_blk:')
        a(f'ds_read_b64 {vr(T2+4,2)}, v10')
        a('s_waitcnt lgkmcnt(0)')
        a(f'v_min_u32 v{T2+4}, v{T2+4}, v{T2+5}')
        a(f'v_readfirstlane_b32 s50, v{T2+4}')
        a(f's_cmp_lt_u32 s50, {sR}')
        a('s_cbranch_scc1 Z_wait')
        for l in slow_tile(0) + slow_tile(6144) + B.adv(): a(l)
        a(f's_add_u32 {sR}, {sR}, 1')
        a(f's_setpc_b64 {RET}')
        return
    arrive(a, 7, 14, 15)
    a('s_setprio 0')
    a('s_branch L_comb')
    a('C_xr:'); poll(); a('s_branch C_xw')
    for f in OOL: f()

def tag_halves(a):
    a('s_bfe_u32 s50, s47, 0xe0001')
    a('s_and_b32 s51, s47, 0x8000')
    a('s_or_b32 s50, s50, s51')
    a('s_lshr_b32 s46, s47, 15')
    a('s_and_b32 s46, s46, 0x8000')
    a('s_bfe_u32 s51, s47, 0xe0010')
    a('s_or_b32 s51, s51, s46')

def mk_tag(a, v):
    tag_halves(a)
    a('s_mov_b32 s46, 0xffff0000')
    a(f'v_mov_b32 v{v}, s50')
    a(f'v_mov_b32 v{v+1}, s51')
    a(f'v_cndmask_b32 v{v}, v{v}, v{v+1}, s[52:53]')

def comb_tag(a, v):
    tag_halves(a)
    a('s_mov_b32 s48, 0xaaaaaaaa\ns_mov_b32 s49, 0xaaaaaaaa')
    a(f'v_mov_b32 v{v}, s50')
    a(f'v_mov_b32 v{v+1}, s51')
    a(f'v_cndmask_b32 v{v}, v{v}, v{v+1}, s[48:49]')

def comb_q(a):
    a('v_and_b32 v6, 15, v1')
    a('s_lshl_b32 s43, s3, 4')
    a('v_add_u32 v6, s43, v6')
    a('v_min_u32 v6, 95, v6')
    a('s_mul_i32 s44, s2, 96')
    a('v_add_u32 v6, s44, v6')
    a('v_lshlrev_b32 v6, 1, v6')
    a(f'global_load_ushort v7, v6, {SQ}')

def comb_setup(a, withq=True):
    if withq: comb_q(a)
    a('v_lshl_add_u32 v29, v16, 3, v28')
    a('v_mul_u32_u24 v29, 192, v29')
    a('v_lshl_add_u32 v29, v19, 3, v29')
    a('s_lshl_b32 s45, s3, 5')
    a(f'v_add_u32 v14, s45, v29')
    a('v_and_b32 v28, 15, v1')
    a('v_mul_u32_u24 v15, 384, v16')
    a('v_lshl_add_u32 v15, v28, 4, v15')
    a('s_mul_i32 s45, s3, 1536')
    a(f's_add_u32 s45, s45, {FIN}')
    a(f'v_add_u32 v15, s45, v15')
    a('v_and_b32 v29, 7, v1')
    a('v_lshlrev_b32 v8, 2, v29')
    a('s_mov_b32 s45, 0x75316240')
    a('v_bfe_u32 v8, s45, v8, 4')
    a('v_add_u32 v8, 48, v8')
    a('v_cmp_lt_u32 vcc, 7, v28')
    a('v_lshlrev_b32 v17, 6, v16')
    a('v_cndmask_b32 v8, v29, v8, vcc')
    a('v_lshl_add_u32 v8, v8, 3, v17')
    a(f'v_add_u32 v8, {FIN}, v8')
    a('s_lshl_b32 s45, s3, 8')
    a(f's_add_u32 s45, s45, {CTX}')
    a('v_lshlrev_b32 v9, 2, v28')
    a('v_mad_u32_u24 v9, v16, 48, v9')
    a('v_mov_b32 v29, 192')
    a('v_cmp_lt_u32 vcc, 11, v28')
    a('v_lshlrev_b32 v10, 4, v16')
    a('v_add_u32 v10, s45, v10')
    a('v_cndmask_b32 v9, v9, v29, vcc')
    a('v_add_u32 v9, s45, v9')

def gen_slow_combine(a, cfg):
    D, ACC, T = 32, 20, 28
    MA, MW = 64, 96
    a('Z_comb:')
    a('v_lshlrev_b32 v2, 4, v1')
    a(f's_mul_i32 s40, s2, {65536 + cfg.skew}')
    a('s_lshl_b32 s41, s3, 13')
    a('s_add_u32 s40, s40, s41')
    a('s_add_u32 s41, s40, 4096')
    a('v_lshrrev_b32 v16, 4, v1')
    a('v_bfe_u32 v28, v1, 2, 2')
    a('v_and_b32 v19, 3, v1')
    a('v_lshlrev_b32 v3, 11, v28')
    a('v_lshl_add_u32 v4, v16, 3, v3')
    a('v_lshl_add_u32 v3, v16, 9, v3')
    a('v_lshl_add_u32 v3, v19, 7, v3')
    a(f's_lshl_b32 s42, s2, 13\ns_add_u32 s42, s42, {MREC}')
    a(f's_lshl_b32 s52, s3, 8\ns_add_u32 s52, s52, s42')
    comb_setup(a)
    comb_tag(a, 12)
    for i in range(8): a(f'v_mov_b32 v{ACC+i}, 0')
    a('Z_again:')
    a('Z_poll:')
    for i in range(8): a(f'buffer_load_dwordx4 {vr(D+4*i,4)}, v2, {RWS}, {"s40" if i<4 else "s41"} offen offset:{1024*(i%4)} sc1')
    for i in range(8): a(f'buffer_load_dwordx4 {vr(MA+4*i,4)}, v3, {RWS}, s42 offen offset:{16*i} sc1')
    for i in range(8): a(f'buffer_load_dwordx2 {vr(MW+2*i,2)}, v4, {RWS}, s52 offen offset:{32*i} sc1')
    a('s_waitcnt vmcnt(0)')
    a(f'v_mov_b32 v{T}, 0')
    for i in range(8):
        a(f'v_xor_b32 v{T+1}, v12, v{D+4*i+3}')
        a(f'v_and_b32 v{T+1}, 0xffff, v{T+1}')
        a(f'v_or_b32 v{T}, v{T}, v{T+1}')
    for t in [MA+2*i+1 for i in range(16)] + [MW+2*i+1 for i in range(8)]:
        a(f'v_xor_b32 v{T+1}, s47, v{t}')
        a(f'v_or_b32 v{T}, v{T}, v{T+1}')
    a(f'v_cmp_ne_u32 vcc, 0, v{T}')
    a('s_nop 4')
    a('s_cbranch_vccnz Z_again')
    M = MA
    for i in range(1, 16): a(f'v_max_f32 v{M}, v{M}, v{MA+2*i}')
    a('s_nop 1')
    a(f'v_mov_b32_dpp v{M+1}, v{M} quad_perm:[1,0,3,2] row_mask:0xf bank_mask:0xf')
    a(f'v_max_f32 v{M}, v{M}, v{M+1}')
    a('s_nop 1')
    a(f'v_mov_b32_dpp v{M+1}, v{M} quad_perm:[2,3,0,1] row_mask:0xf bank_mask:0xf')
    a(f'v_max_f32 v{M}, v{M}, v{M+1}')
    def allrows(r, op):
        for sw in ('v_permlane16_swap_b32', 'v_permlane32_swap_b32'):
            a(f'v_mov_b32 v{T}, v{r}')
            a('s_nop 1')
            a(f'{sw} v{r}, v{T}')
            a('s_nop 1')
            a(f'{op} v{r}, v{r}, v{T}')
    allrows(M, 'v_max_f32')
    a('s_mov_b32 s46, 0xffff0000')
    for i in range(8):
        a(f'v_sub_f32 v{MW+2*i}, v{MW+2*i}, v{M}')
        a(f'v_exp_f32 v{MW+2*i}, v{MW+2*i}')
        a('s_nop 1')
        for j in range(4):
            a(f'v_lshlrev_b32 v{T}, 16, v{D+4*i+j}')
            a(f'v_and_b32 v{T+1}, s46, v{D+4*i+j}')
            if j < 3: a(f'v_fmac_f32 v{ACC+2*j}, v{T}, v{MW+2*i}')
            a(f'v_fmac_f32 v{ACC+2*j+1}, v{T+1}, v{MW+2*i}')
    for j in range(8): allrows(ACC+j, 'v_add_f32')
    a('v_cmp_eq_u32 vcc, 0, v16')
    a('s_nop 1')
    for j in range(4): a(f'v_cndmask_b32 v{ACC+j}, v{ACC+4+j}, v{ACC+j}, vcc')
    a('s_nop 1')
    a('s_branch K_red')

def gen_combine(a, cfg):
    D, ACC, T = 128, 20, 28
    NS = 9
    a('L_comb:')
    if cfg.trp: a('s_branch L_exit')
    a('v_lshlrev_b32 v2, 4, v1')
    a(f's_mul_i32 s40, s2, {65536 + cfg.skew}')
    a('s_lshl_b32 s41, s3, 13')
    a('s_add_u32 s40, s40, s41')
    a('s_add_u32 s41, s40, 4096')
    def load(i):
        a(f'buffer_load_dwordx4 {vr(D+4*i,4)}, v2, {RWS}, {"s40" if i<4 else "s41"} offen offset:{1024*(i%4)} sc1' + (' nt' if cfg.pollnt else ''))
    PM = lambda i: f's[{6+2*i}:{7+2*i}]'
    SEL = 24
    stamp(a, cfg, 11)
    if cfg.ktrace:
        for j in list(range(1, 8)) + [12]: a(f's_mov_b64 s[{STAMP0+2*j}:{STAMP0+2*j+1}], 0')
    if cfg.roll or cfg.dyn: comb_q(a)
    for i in range(8): load(i)
    a('v_lshrrev_b32 v16, 4, v1')
    a('v_bfe_u32 v28, v1, 2, 2')
    a('v_and_b32 v19, 3, v1')
    comb_setup(a, not (cfg.roll or cfg.dyn))
    comb_tag(a, 12)
    a('v_and_b32 v29, 1, v1')
    a('v_lshlrev_b32 v29, 4, v29')
    a('v_mov_b32 v17, 0x3f80')
    a('v_lshlrev_b32 v29, v29, v17')
    a('v_lshrrev_b32 v28, 1, v28')
    for r in range(4):
        a(f'v_cmp_eq_u32 vcc, {r}, v28')
        a(f'v_cndmask_b32 v{SEL+r}, 0, v29, vcc')
    if cfg.dyn:
        K = cfg.dyn
        J = lambda k: f's{6+k}'
        for i in range(4): a(f'v_mov_b32 v{ACC+i}, 0')
        a('s_mov_b32 s42, 0xff')
        a('s_mov_b32 s43, 7')
        def pick(k):
            a('s_lshl_b32 s44, -2, s43')
            a('s_and_b32 s44, s44, s42')
            a('s_cselect_b32 s44, s44, s42')
            a('s_ff1_i32_b32 s43, s44')
            a('s_lshl_b32 s44, s43, 10')
            a('s_add_u32 s44, s44, s40')
            a(f's_mov_b32 {J(k)}, s43')
            lim = cfg.dup and k >= cfg.dup
            if lim:
                a('s_bcnt1_i32_b32 s45, s42')
                a(f's_cmp_gt_u32 s45, {k // cfg.dup}')
                a('s_cselect_b64 exec, -1, 0')
                a(f's_cselect_b32 {J(k)}, s43, 8')
            a(f'buffer_load_dwordx4 {vr(D+4*k,4)}, v2, {RWS}, s44 offen sc1')
            if lim: a('s_mov_b64 exec, -1')
        for i in range(8):
            a(f's_waitcnt vmcnt({7-i+min(i,K)})')
            if i == 0: stamp(a, cfg, 12)
            a(f'v_cmp_ne_u16 vcc, v12, v{D+4*i+3}')
            a(f's_cbranch_vccnz K_f{i}')
            a(f'{MF16} {vr(ACC,4)}, {vr(SEL,4)}, {vr(D+4*i,4)}, {vr(ACC,4)}')
            a(f's_bitset0_b32 s42, {i}')
            if i == 7:
                a('s_cmp_eq_u32 s42, 0')
                a('s_cbranch_scc1 K_red0')
            a(f'K_f{i}:')
            if i < K: pick(i)
        a('K_chk:')
        for k in range(K):
            a(f's_waitcnt vmcnt({K-1})')
            if cfg.ktrace and k == 0:
                a('s_waitcnt lgkmcnt(0)')
                for j in range(1, 7): a(f's_mov_b64 s[{STAMP0+2*j}:{STAMP0+2*j+1}], s[{STAMP0+2*j+2}:{STAMP0+2*j+3}]')
                a(f's_mov_b64 s[{STAMP0+14}:{STAMP0+15}], s[{STAMP0+24}:{STAMP0+25}]')
                stamp(a, cfg, 12)
            a(f'v_cmp_ne_u16 vcc, v12, v{D+4*k+3}')
            a(f's_cbranch_vccnz K_n{k}')
            a(f's_bitcmp0_b32 s42, {J(k)}')
            a(f's_cbranch_scc1 K_n{k}')
            a(f'{MF16} {vr(ACC,4)}, {vr(SEL,4)}, {vr(D+4*k,4)}, {vr(ACC,4)}')
            a(f's_bitset0_b32 s42, {J(k)}')
            a('s_cmp_eq_u32 s42, 0')
            a('s_cbranch_scc1 K_red0')
            a(f'K_n{k}:')
            pick(k)
        a('s_branch K_chk')
        a('K_red0:')
    elif cfg.roll:
        for i in range(4): a(f'v_mov_b32 v{ACC+i}, 0')
        a('s_mov_b32 s42, 0xff')
        a('K_chk:')
        for i in range(8):
            a('s_waitcnt vmcnt(7)')
            if cfg.ktrace and i == 0:
                a('s_waitcnt lgkmcnt(0)')
                for j in range(1, 7): a(f's_mov_b64 s[{STAMP0+2*j}:{STAMP0+2*j+1}], s[{STAMP0+2*j+2}:{STAMP0+2*j+3}]')
                a(f's_mov_b64 s[{STAMP0+14}:{STAMP0+15}], s[{STAMP0+24}:{STAMP0+25}]')
            if i == 0: stamp(a, cfg, 12)
            a(f'v_cmp_ne_u16 vcc, v12, v{D+4*i+3}')
            a('s_cmp_lg_u64 vcc, 0')
            a('s_cselect_b64 exec, -1, 0')
            load(i)
            a('s_mov_b64 exec, -1')
            a(f's_cbranch_scc1 K_n{i}')
            a(f's_bitcmp0_b32 s42, {i}')
            a(f's_cbranch_scc1 K_n{i}')
            a(f'{MF16} {vr(ACC,4)}, {vr(SEL,4)}, {vr(D+4*i,4)}, {vr(ACC,4)}')
            a(f's_bitset0_b32 s42, {i}')
            a('s_cmp_eq_u32 s42, 0')
            a('s_cbranch_scc1 K_red0')
            a(f'K_n{i}:')
        a('s_branch K_chk')
        a('K_red0:')
        a('s_nop 4')
    else:
        a('K_chk:')
        a('s_waitcnt vmcnt(0)')
        if cfg.ktrace:
            a('s_waitcnt lgkmcnt(0)')
            for j in range(1, 7): a(f's_mov_b64 s[{STAMP0+2*j}:{STAMP0+2*j+1}], s[{STAMP0+2*j+2}:{STAMP0+2*j+3}]')
            a(f's_mov_b64 s[{STAMP0+14}:{STAMP0+15}], s[{STAMP0+24}:{STAMP0+25}]')
        stamp(a, cfg, 12)
        for i in range(8):
            a(f'v_cmp_ne_u16 {PM(i)}, v12, v{D+4*i+3}')
            a(f'{MF16} {vr(ACC,4)}, {vr(SEL,4)}, {vr(D+4*i,4)}, {"0" if i == 0 else vr(ACC,4)}')
            if i == 2: a(f's_or_b64 s[50:51], {PM(0)}, {PM(1)}')
            if i > 2: a(f's_or_b64 s[50:51], s[50:51], {PM(i-1)}')
        a(f's_or_b64 s[50:51], s[50:51], {PM(7)}')
        a('s_cbranch_scc1 K_retry')
    a('K_red:')
    stamp(a, cfg, 13)
    a('s_cmp_ge_u32 s3, 6')
    a('s_cbranch_scc1 K_67')
    a('s_nop 2')
    a(f'ds_write_b128 v15, {vr(ACC,4)}')
    Bq, C = 40, 56
    a('s_waitcnt lgkmcnt(0)')
    a('s_barrier')
    if cfg.fine: stamp(a, cfg, 15)
    for k in range(4): a(f'ds_read2st64_b64 {vr(C+4*k,4)}, v8 offset0:{6*k} offset1:{6*k+3}')
    for s in range(3):
        for sec in range(2):
            a(f'ds_read_b64_tr_b16 {vr(Bq+4*s+2*sec,2)}, v14 offset:{s*6144+sec*768}')
    a('v_lshlrev_b32 v7, 16, v7')
    a('s_waitcnt lgkmcnt(8)')
    for i in range(4): a(f'v_add_f32 v{C+i}, v{C+i}, v{C+4+i}')
    a('s_waitcnt lgkmcnt(6)')
    for i in range(4): a(f'v_add_f32 v{C+8+i}, v{C+8+i}, v{C+12+i}')
    for i in (0, 2, 1, 3): a(f'v_add_f32 v{C+i}, v{C+i}, v{C+8+i}')
    a(f'v_add_f32 v{C}, v{C}, v{C+2}')
    a(f'v_add_f32 v{C+1}, v{C+1}, v{C+3}')
    a(f'v_add_f32_dpp v{C+2}, v{C+1}, v{C+1} quad_perm:[1,0,3,2] row_mask:0xf bank_mask:0xf')
    a(f'v_add_f32_dpp v{C+2}, v{C+2}, v{C+2} quad_perm:[2,3,0,1] row_mask:0xf bank_mask:0xf')
    a(f'v_mov_b32_dpp v{C+2}, v{C+2} row_newbcast:12 row_mask:0xf bank_mask:0xf')
    a(f'v_rcp_f32 v{C+2}, v{C+2}')
    a(f'v_mul_f32 v{C}, v{C}, v{C+2}')
    a(f'v_mul_f32 v{C+1}, v{C+1}, v{C+2}')
    a(f'v_cvt_pk_bf16_f32 v{C}, v{C}, v{C+1}')
    a(f'ds_write_b32 v9, v{C}')
    for s in range(3): a(f'ds_read_b128 {vr(C+4+4*s,4)}, v10 offset:{64*s}')
    for s in range(3):
        c = '0' if s == 0 else 'v[88:91]'
        a(f's_waitcnt lgkmcnt({2-s})')
        a(f'{MF16} v[88:91], {vr(C+4+4*s,4)}, {vr(Bq+4*s,4)}, {c}')
    a('v_cvt_pk_bf16_f32 v88, v88, v88')
    a('v_and_b32 v88, 0xffff0000, v88')
    a('v_add_f32 v88, v88, v7')
    a('v_cvt_pk_bf16_f32 v88, v88, v88')
    a('s_mov_b64 exec, 0xffff')
    a('s_waitcnt vmcnt(0)')
    a(f'global_store_short v6, v88, {SOUT}')
    a('s_mov_b64 exec, -1')
    stamp(a, cfg, 14)
    if cfg.diag:
        a('s_memrealtime s[98:99]')
        a('s_waitcnt lgkmcnt(0)')
        a('v_mov_b32 v20, s98\nv_mov_b32 v21, 36')
        a('s_mov_b64 exec, 1')
        a(f'global_atomic_umax v21, v20, {SDBG}')
        a('s_mov_b64 exec, -1')
    a('L_exit:')
    if cfg.diag:
        a('s_cmp_eq_u32 s3, 4')
        a('s_cbranch_scc0 L_end')
        a('s_memrealtime s[98:99]')
        a('s_getreg_b32 s50, hwreg(HW_REG_XCC_ID, 0, 4)')
        a('s_and_b32 s50, s50, 7')
        a('s_lshl_b32 s50, s50, 2')
        a('s_add_u32 s50, s50, 4')
        a('s_waitcnt lgkmcnt(0)')
        a('v_mov_b32 v20, s96\nv_mov_b32 v21, s50\nv_mov_b32 v22, s98\nv_mov_b32 v23, 40')
        a('s_mov_b64 exec, 1')
        a(f'global_store_dword v21, v20, {SDBG}')
        a('s_cmp_lt_u32 s2, 16')
        a('s_cbranch_scc1 L_end')
        a(f'global_atomic_umax v23, v22, {SDBG}')
        a('s_mov_b64 exec, -1')
    stamp_flush(a, cfg)
    a('L_end:')
    a('s_endpgm')
    a('K_67:')
    a('s_nop 2')
    a(f'ds_write_b128 v15, {vr(ACC,4)}')
    a('s_waitcnt lgkmcnt(0)')
    a('s_barrier')
    a('s_waitcnt vmcnt(0)')
    a('s_branch L_exit')
    if cfg.roll or cfg.dyn: return
    a('K_retry:')
    if cfg.ksleep: a(f's_sleep {cfg.ksleep}')
    for i in range(8):
        a(f's_cmp_lg_u64 {PM(i)}, 0')
        a('s_cselect_b64 exec, -1, 0')
        load(i)
    a('s_mov_b64 exec, -1')
    a('s_branch K_chk')

HEADER = """
Fused FPN-fuse + LayerNorm + masked cross-attention, one workgroup (8 waves) per CU, 576 keys each.
  A'[h*16+q] = (2*bf16(q w_q[h]) w_k[h]^T + q w_m) * 96^-0.5 * log2(e)      (scores in log2 units)
  waves 0-3: stream f_hi / f_lo into LDS, lateral GEMM, LayerNorm, write kv (bf16) back in place
  waves 4-7: S = kv A'^T, p = exp2(S - shift), U += p^T kv, l += sum p, ctx = U w_v, publish to d_ws
  workgroups 0-15: gather the 256 partials of one query, normalise, project with w_o, add q
Softmax shift: |S| <= sqrt(96) * |A' row| because kv is LayerNorm output.  Every workgroup evaluates that
bound at run time (Gram matrix of A').  If it is <= 80 the shift 0 cannot overflow or lose terms
(C_* / K_* code); otherwise the Z_* code runs with the true (online) row maximum.
"""

def build(cfg):
    a = Asm()
    a.raw(f'; @launch grid=(256,1,1) block=(512,1,1) lds={LDS_BYTES}')
    for l in HEADER.strip().split('\n'): a.raw('; ' + l)
    a.raw('.amdgcn_target "amdgcn-amd-amdhsa--gfx950"')
    a.raw('.text')
    a.raw(f'.globl {KNAME}'); a.raw('.p2align 8'); a.raw(f'.type {KNAME},@function'); a.raw(f'{KNAME}:')
    gen_entry(a, cfg)
    gen_producer(a, cfg)
    gen_consumer(a, cfg)
    gen_combine(a, cfg)
    a.raw('L_codeend:')
    cons_main(a, cfg, True)
    gen_slow_combine(a, cfg)
    txt = a.finish(verbose=True)
    txt = txt.replace('    ; ', '; ')
    txt += f'''.section .rodata,"a"
.p2align 6
.amdhsa_kernel {KNAME}
  .amdhsa_next_free_vgpr 256
  .amdhsa_next_free_sgpr {102 if cfg.stamps else 100}
  .amdhsa_accum_offset 256
  .amdhsa_group_segment_fixed_size 0
  .amdhsa_kernarg_size 96
  .amdhsa_user_sgpr_count 2
  .amdhsa_user_sgpr_kernarg_segment_ptr 1
  .amdhsa_system_sgpr_workgroup_id_x 1
.end_amdhsa_kernel
'''
    return txt

if __name__ == '__main__':
    cfg = Cfg()
    out = sys.argv[1]
    for o in sys.argv[2:]:
        if '=' in o:
            k, v = o.split('='); setattr(cfg, k, int(v))
        else: setattr(cfg, o, True)
    open(out, 'w').write(build(cfg))
```

```python
import sys, math, struct
from asmlib import Asm, autowait
import blocks as B
from blocks import vr, f32, MF32, MF16, flat

KNAME = 'standalone__detection_seg_mask2former__vision_kernel'

HI = 0
WM = 12 * 6144
QS = 15 * 6144
WQ = 16 * 6144
LO = 110592 + 6144
WREG = LO + 27648
SCR = WREG + 18432
TOT = SCR
PF = SCR + 512
TKT = SCR + 528
CNT = SCR + 544
WST = SCR + 640
XCH = LO
XST = 6912
WO = 0
FIN = 20480
CTX = 32768
LDS_BYTES = SCR + 1024
assert LDS_BYTES <= 163840 and LO <= XCH and XCH + 4 * XST <= WREG
B.C.TB = 6144
LREC = 17 * 256 * 256 + 16 * 4096
MREC = LREC
REC_BYTES = MREC + 16 * 4 * 256 * 8
BOUND = 80.0
THR = BOUND * BOUND / 96 / (1 + 2 ** -8) ** 2
STAMP_OFF = 4 << 20
FSW = sum(((((-(px >> 2)) & 3) ^ ((px >> 1) & 1)) << (2 * px)) for px in range(16))

class Cfg:
    stamps = False
    cyc = False
    repf = 0
    cvar = 0
    g0pos = 1
    fine = 0
    wvpos = 2
    h0pos = 1
    cpp = 0
    cmain = 0
    pp = 0
    deep = 1
    h1early = 0
    pwait = 1
    ksleep = 0
    r1late = 0
    pm = 2
    pv = 0
    pl = 2
    cearly = 0
    trp = 0
    trc = 0
    touch = 3
    t0pre = 0
    wkpos = 2
    dry = 0
    tokpos = -1
    wvr = 2
    ktrace = 0
    pollnt = 0
    roll = 0
    dyn = 5
    diag = 0
    early = 0
    tok2 = 1
    bist = 0
    mfirst = 1
    b2 = 0
    wvar = 0
    etr = 0
    xv = 0
    xd = 2
    fake = 0
    fsc = 0
    wsl = 0
    pk = 0
    uni = 0
    spec = 1
    tlb = 0
    spf = 0
    spn = 15
    wsum = 0
    st2 = 1
    pro = 1
    wmtok = 0
    ctop = 0
    skew = 0
    zl = 0
    tok3 = 0
    prog = 1
    tord = 0
    lopos = -1
    pair = 1
    deep2 = 0
    fl = 0
    mix = 0
    tk6 = 0
    c2 = None
    c3 = None
    c4 = None

SQ, SHI, SLO, SWL, SWQ, SWK, SWV, SWO, SWM, SOUT, SDBG, SWS = [f's[{4+2*i}:{5+2*i}]' for i in range(12)]
RHI, RLO, RWS = 's[28:31]', 's[32:35]', 's[36:39]'
SF = 's63'
STAMP0 = 64

def TM(cfg): return 's_memtime' if cfg.cyc else 's_memrealtime'

def stamp(a, cfg, i, inner=False):
    if cfg.b2 and i in (11, 12, 13, 14, 15) : return
    if cfg.bist:
        import inspect
        src = inspect.stack()[1].code_context[0]
        if 'bist' not in src and i in (4, 5, 6, 7, 8, 11, 12, 13, 14) and inspect.stack()[1].function != 'script': return
    if cfg.trp and not inner and i != 0: return
    if inner and not cfg.trp: return
    if cfg.stamps: a(f"{'s_memtime' if cfg.cyc else 's_memrealtime'} s[{STAMP0+2*i}:{STAMP0+2*i+1}]")

def stamp_flush(a, cfg, tmpv=100):
    if not cfg.stamps: return
    a('s_cmp_eq_u32 s100, 0')
    a('s_cbranch_scc1 L_nosl')
    a('s_sleep 100')
    a('L_nosl:')
    a('s_waitcnt lgkmcnt(0)')
    a('s_lshl_b32 s61, s2, 3\ns_add_u32 s61, s61, s3')
    a(f's_lshl_b32 s62, s61, 7')
    a(f's_add_u32 s62, s62, {STAMP_OFF}')
    for i in range(32): a(f'v_mov_b32 v{tmpv+i}, s{STAMP0+i}')
    a(f'v_mov_b32 v{tmpv+32}, 0')
    a('s_mov_b64 exec, 1')
    a('s_mov_b32 s56, s26\ns_mov_b32 s57, s27\ns_mov_b32 s58, 0x1000000\ns_mov_b32 s59, 0x20000')
    for i in range(8):
        a(f'buffer_store_dwordx4 {vr(tmpv+4*i,4)}, v{tmpv+32}, s[56:59], s62 offen offset:{16*i}')
    a('s_mov_b64 exec, -1')

def dma_swz(a, dst, k, tmp, dst2):
    a(f'v_add_u32 v{tmp}, {64*k if isinstance(k,int) else k}, v1')
    a(f'v_mul_u32_u24 v{tmp}, 0xaaab, v{tmp}')
    a(f'v_lshrrev_b32 v{tmp}, 18, v{tmp}')
    a(f'v_and_b32 v{dst2}, 0x1e, v{tmp}')
    a(f'v_bfe_u32 v{tmp}, {SF}, v{dst2}, 2')
    a(f'v_xor_b32 v{tmp}, v{tmp}, v1')
    a(f'v_lshlrev_b32 v{dst}, 4, v{tmp}')

def dma_part(a, ptr, ldsbase, voff, spart):
    lo = int(ptr[2:ptr.index(':')])
    a(f's_add_u32 m0, {spart}, {ldsbase}')
    a(f's_add_u32 s50, s{lo}, 4096')
    for k in range(4): a(f'global_load_lds_dwordx4 v{voff}, {ptr} offset:{1024*k}')
    a(f's_addc_u32 s51, s{lo+1}, 0')
    a(f's_add_u32 m0, {spart}, {ldsbase+4096}')
    a('s_mov_b32 exec_hi, 0')
    a(f'global_load_lds_dwordx4 v{voff}, s[50:51]')
    a('s_mov_b32 exec_hi, -1')

def dma_extra(a, ptr, ldsbase, voff, sbase):
    lo = int(ptr[2:ptr.index(':')])
    a(f's_add_u32 s50, s{lo}, 4096')
    a(f's_addc_u32 s51, s{lo+1}, 0')
    a(f's_add_u32 m0, {sbase}, {ldsbase+4096}')
    a('s_nop 0')
    a(f'global_load_lds_dwordx4 v{voff}, s[50:51]')

def dma_main(a, ptr, ldsbase, voff, sbase):
    a(f's_add_u32 m0, {sbase}, {ldsbase}')
    a('s_nop 0')
    for k in range(4): a(f'global_load_lds_dwordx4 v{voff}, {ptr} offset:{1024*k}')

def arrive(a, which, va, vd, rtn=False):
    a(f'v_mov_b32 v{va}, {CNT + 4*which}')
    a(f'v_mov_b32 v{vd}, 1')
    a('s_mov_b64 exec, 1')
    a(f'ds_add_rtn_u32 v{vd}, v{va}, v{vd}' if rtn else f'ds_add_u32 v{va}, v{vd}')
    a('s_mov_b64 exec, -1')

def await_cnt(a, which, tag, va, vd, n=4, setaddr=True):
    if setaddr: a(f'v_mov_b32 v{va}, {CNT + 4*which}')
    a(f'{tag}:')
    a(f'ds_read_b32 v{vd}, v{va}')
    a('s_waitcnt lgkmcnt(0)')
    a(f'v_readfirstlane_b32 s50, v{vd}')
    a(f's_cmp_lt_u32 s50, {n}')
    a(f's_cbranch_scc1 {tag}')

def lds_sync(a, which, tag, va, vd, n=4):
    arrive(a, which, va, vd, rtn=True)
    a('s_waitcnt lgkmcnt(0)')
    a(f'v_readfirstlane_b32 s50, v{vd}')
    a(f's_cmp_ge_u32 s50, {n-1}')
    a(f's_cbranch_scc1 {tag}_ok')
    await_cnt(a, which, tag + '_spin', va, vd, n, setaddr=False)
    a(f'{tag}_ok:')

def code_prefetch(a, tag, vt, tidoff, sp='s[44:45]', start=KNAME):
    lo = int(sp[2:sp.index(':')])
    a(f's_getpc_b64 {sp}')
    a(f'{tag}:')
    a(f's_add_u32 s{lo}, s{lo}, {start}-{tag}')
    a(f's_addc_u32 s{lo+1}, s{lo+1}, {"-1" if start == KNAME else "0"}')
    a(f'v_add_u32 v{vt}, {tidoff}, v0')
    a(f'v_lshlrev_b32 v{vt}, 7, v{vt}')
    a(f'v_min_u32 v{vt}, L_codeend-{start}-4, v{vt}')
    a(f'global_load_dword v{201 if vt == 0 else vt+1}, v{vt}, {sp}')

def nonce_slow(a, tag, back, v):
    a(f'{tag}:')
    a('s_memrealtime s[50:51]')
    a('s_waitcnt lgkmcnt(0)')
    a('s_or_b32 s47, s50, 1')
    a(f'v_mov_b32 v{v}, s47\nv_mov_b32 v{v+1}, 0\nv_mov_b32 v{v+2}, 0')
    a('s_mov_b64 exec, 1')
    a(f'global_atomic_cmpswap v{v}, v{v+2}, {vr(v,2)}, {SDBG} sc0 sc1')
    a('s_mov_b64 exec, -1')
    a('s_waitcnt vmcnt(0)')
    a(f'v_readfirstlane_b32 s50, v{v}')
    a('s_cmp_eq_u32 s50, 0')
    a('s_cselect_b32 s47, s47, s50')
    a(f's_branch {back}')

def gen_entry(a, cfg):
    a('s_cmp_ge_u32 s2, 256')
    a('s_cbranch_scc1 L_end')
    if cfg.stamps:
        for i in range(32): a(f's_mov_b32 s{STAMP0+i}, 0')
        a('s_mov_b32 s100, 1')
    stamp(a, cfg, 0)
    if cfg.diag: a('s_memrealtime s[96:97]')
    a('s_load_dwordx16 s[4:19], s[0:1], 0')
    a('s_load_dwordx8 s[20:27], s[0:1], 64')
    a('v_lshrrev_b32 v2, 6, v0')
    a('v_and_b32 v1, 63, v0')
    a('v_readfirstlane_b32 s3, v2')
    a(f's_mov_b32 {SF}, {FSW:#x}')
    a(f's_mov_b32 s62, {f32(96.0 if cfg.st2 else 1/96)}')
    a('s_cmp_ge_u32 s3, 4')
    a('s_cbranch_scc1 L_cons')

def gen_producer(a, cfg):
    W0, W1, W2, RA0, RA1, RL0, RL1 = 2, 3, 4, 5, 6, 7, 8
    S0, S1, S2 = 9, 10, 11
    WL, LT, X, F = B.P.WL, B.P.LT, B.P.X, B.P.F
    ID, OP, SM, SL, T = B.P.ID, B.P.OP, B.P.SM, B.P.SL, B.P.T
    FLA, FLV = 14, 15
    U = 232
    F0 = U + 12
    sP = 's3'
    sH0, sHS, sH8, sLo0, sSh = 's40', 's41', 's42', 's43', 's44'
    sSlot, sLoP, RET = 's45', 's46', 's[48:49]'
    t0, t1, t2 = 's52', 's53', 's54'
    M1, O1, M2, O2 = 's55', 's56', 's58', 's59'
    for k, (w, sw) in enumerate(((W0, S0), (W1, S1), (W2, S2))): dma_swz(a, w, k, U, sw)
    a(f'v_lshlrev_b32 v{U+3}, 4, v1')
    for i in range(4): a(f'v_mov_b32 v{U+4+i}, 0')
    a(f'v_add_u32 v{U+8}, {SCR}, v{U+3}')
    a(f'ds_write_b128 v{U+8}, {vr(U+4,4)}')
    a(f's_lshl_b32 s58, s2, 2')
    a(f's_add_u32 s58, s58, {sP}')
    a(f's_mul_i32 {sLo0}, s58, 6144')
    a(f's_mul_i32 {sSlot}, {sP}, 6144')
    a(f's_add_u32 {sLoP}, {sSlot}, {LO}')
    a('s_mov_b32 s34, 7077888\ns_mov_b32 s35, 0x20000')
    a('s_add_u32 s60, s2, 2048')
    a('s_mul_i32 s61, s60, 3072')
    a(f's_cmp_lt_u32 {sP}, 2')
    a(f's_cselect_b32 s55, s61, {sLo0}')
    a(f's_cselect_b32 s56, {LO+8*3072}, {sLoP}')
    a('s_mov_b32 s30, 28311552\ns_mov_b32 s31, 0x20000')
    a(f's_min_u32 {t0}, {sP}, 2')
    a(f's_lshl_b32 s47, {sP}, 2')
    a(f's_add_u32 s47, s47, {t0}')
    a(f's_lshl_b32 s47, s47, 10')
    a(f'v_add_u32 v15, s47, v{U+3}')
    a(f's_mul_i32 {t0}, s58, 43691')
    a(f's_lshr_b32 {t0}, {t0}, 18')
    a(f's_mul_i32 {t0}, {t0}, 73728')
    a(f's_mul_i32 {sH0}, s58, 12288')
    a(f's_add_u32 {sH0}, {sH0}, {t0}')
    a(f's_mul_i32 {t0}, s60, 43691')
    a(f's_lshr_b32 {t0}, {t0}, 19')
    a(f's_add_u32 {t0}, {t0}, {sP}')
    a(f's_mul_i32 {t0}, {t0}, 73728')
    a(f's_mul_i32 {sH8}, s60, 6144')
    a(f's_add_u32 {sH8}, {sH8}, {t0}')
    a(f's_cmp_lt_u32 {sP}, 2')
    a(f's_cselect_b32 s57, {sH8}, {sH0}')
    a(f's_cselect_b32 {sSh}, 1, 0')
    a(f's_cselect_b32 {t0}, 0, 96')
    a(f's_lshr_b32 {sHS}, 6144, {sSh}')
    if cfg.bist: stamp(a, cfg, 12)
    a(f's_cmp_lt_u32 {sP}, 2')
    a('s_waitcnt lgkmcnt(0)')
    if cfg.bist: stamp(a, cfg, 13)
    def half(srd, soff, regs=(W0, W1, W2)):
        return [f'buffer_load_dwordx4 v{w}, {srd}, {soff} offen offset:{1024*k} nt lds' for k, w in enumerate(regs)]
    a('s_mov_b32 s32, s8\ns_mov_b32 s33, s9')
    a('s_cbranch_scc1 P_sm')
    a(f's_add_u32 m0, s56, 3072')
    a(f's_add_u32 {t1}, s55, 3072')
    for l in half(RLO, t1): a(l)
    a('s_branch P_nox')
    a('P_sm:')
    dma_extra(a, SWL, WREG, 15, 's47')
    a('P_nox:')
    dma_main(a, SWL, WREG, 15, 's47')
    a(f's_mov_b32 m0, s56')
    a('s_mov_b32 s28, s6')
    for l in half(RLO, 's55'): a(l)
    a('s_mov_b32 s29, s7')
    SR = (S0, S1, S2)
    def issue_h(soff, rnd, hf, add=0):
        a(f's_add_u32 m0, {sSlot}, {rnd*4*6144+3072*hf}')
        if add + hf:
            a(f's_add_u32 {t0}, {soff}, {add+6144*hf}'); src = t0
        else:
            a('s_nop 0'); src = soff
        for l in half(RHI, src, SR): a(l)
    def issue_first(hf):
        a(f's_add_u32 m0, {sSlot}, {3072*hf}')
        if hf:
            a(f's_add_u32 {t0}, s57, {sHS}'); src = t0
        else:
            a('s_nop 0'); src = 's57'
        for l in half(RHI, src, (F0, F0+1, F0+2)): a(l)
    def issue_first2():
        if not cfg.pair:
            for hf in range(2): issue_first(hf)
            return
        a(f's_cmp_lt_u32 {sP}, 2')
        a('s_cbranch_scc1 P_f1')
        if cfg.pair & 1:
            for hf in range(2):
                issue_h(sH0, 0, hf, 0); issue_h(sH0, 1, hf, 192)
        else:
            for hf in range(2): issue_h(sH0, 0, hf, 0)
            for hf in range(2): issue_h(sH0, 1, hf, 192)
        a('s_branch P_f2')
        a('P_f1:')
        for hf in range(2): issue_first(hf)
        a('P_f2:')
    if cfg.tlb:
        a(f's_load_dword s96, {SHI}, s57')
        a(f's_add_u32 s97, {sH0}, 79000')
        a(f's_min_u32 s97, s97, 28311548')
        a(f's_and_b32 s97, s97, -4')
        a(f's_load_dword s97, {SHI}, s97')
    if cfg.bist: stamp(a, cfg, 11)
    a('s_barrier')
    for k, (w, sw) in enumerate(((W0, S0), (W1, S1), (W2, S2))):
        a(f'v_mad_u32_u24 v{F0+k}, v{sw}, {t0}, v{w}')
        a(f'v_mul_u32_u24 v{sw}, 96, v{sw}')
        a(f'v_add_u32 v{sw}, v{sw}, v{w}')
    stamp(a, cfg, 1)
    a(f'v_and_b32 v{U}, 31, v1')
    a(f'v_lshrrev_b32 v{U+1}, 5, v1')
    def rdaddr(d0, d1, px, base):
        a(f'v_lshlrev_b32 v{U+2}, 1, v{px}')
        a(f'v_and_b32 v{U+2}, 0x1e, v{U+2}')
        a(f'v_bfe_u32 v{U+2}, {SF}, v{U+2}, 2')
        a(f'v_xor_b32 v{U+2}, v{U+2}, v{U+1}')
        a(f'v_xor_b32 v{U+3}, 2, v{U+2}')
        a(f'v_mul_u32_u24 v{U+4}, 192, v{px}')
        a(f'v_add_u32 v{U+4}, {base}, v{U+4}')
        a(f'v_lshl_add_u32 v{d0}, v{U+2}, 4, v{U+4}')
        a(f'v_lshl_add_u32 v{d1}, v{U+3}, 4, v{U+4}')
    rdaddr(RA0, RA1, U, sSlot)
    a(f'v_lshrrev_b32 v{U+5}, {sSh}, v{U}')
    rdaddr(RL0, RL1, U+5, 's56')
    a(f'v_bfe_u32 v14, v1, 2, 2')
    a(f'v_lshl_add_u32 v14, v{U+1}, 3, v14')
    a(f'v_mul_u32_u24 v14, 192, v14')
    a(f'v_bfe_u32 v{U+8}, v1, 4, 1')
    a(f'v_lshl_add_u32 v14, v{U+8}, 5, v14')
    a(f'v_and_b32 v{U+3}, 1, v1')
    a(f'v_lshl_add_u32 v14, v{U+3}, 4, v14')
    a(f'v_bfe_u32 v{U+3}, v1, 1, 1')
    a(f'v_lshl_add_u32 v14, v{U+3}, 3, v14')
    a(f'v_add_u32 v14, {WREG}, v14')
    a(f'v_bfe_u32 v{U+2}, v1, 3, 1')
    a(f'v_and_b32 v{U+3}, 3, v1')
    a(f'v_lshl_add_u32 v{U+2}, v{U+2}, 2, v{U+3}')
    a(f'v_bfe_u32 v{U+3}, v1, 2, 1')
    a(f'v_cmp_eq_u32 vcc, v{U+3}, v{U+1}')
    a(f'v_and_b32 v{U+6}, 1, v{U+2}')
    a(f'v_lshlrev_b32 v{U+6}, 4, v{U+6}')
    a(f'v_mov_b32 v{U+4}, 0x3f80')
    a(f'v_lshlrev_b32 v{U+6}, v{U+6}, v{U+4}')
    a(f'v_cndmask_b32 v{U+6}, 0, v{U+6}, vcc')
    a(f'v_lshrrev_b32 v{U+2}, 1, v{U+2}')
    a(f'v_lshl_add_u32 v{U+2}, v{U+8}, 2, v{U+2}')
    a(f'v_cmp_eq_u32 s[58:59], v{U+3}, v{U+8}')
    a(f'v_mov_b32 v{U+7}, 0x3f803f80')
    if cfg.wsum:
        a(f'v_mov_b32 v{WSA}, {WST+192}')
        a(f'v_mov_b32 v{U+4}, {WST}')
        a(f'v_cndmask_b32 v{WSA}, v{WSA}, v{U+4}, s[58:59]')
        a(f'v_lshl_add_u32 v{WSA}, v{U+1}, 4, v{WSA}')
        a(f's_min_u32 {t0}, {sP}, 2')
        a(f's_lshl_b32 {t0}, {t0}, 5')
        a(f'v_add_u32 v{WSA+1}, {t0}, v{U}')
        a(f'v_mul_u32_u24 v{WSA+2}, 192, v{WSA+1}')
        a(f'v_lshl_add_u32 v{WSA+2}, v{U+1}, 4, v{WSA+2}')
        a(f'v_add_u32 v{WSA+2}, {WREG}, v{WSA+2}')
        a(f'v_lshlrev_b32 v{WSA+1}, 1, v{WSA+1}')
        a(f'v_add_u32 v{WSA+1}, {WST}, v{WSA+1}')
    for i in range(0, 8, 2):
        a(f'v_cmp_eq_u32 vcc, {i}, v{U+2}')
        a(f'v_cmp_eq_u32 s[60:61], {i+1}, v{U+2}')
        a(f'v_cndmask_b32 v{OP+i//2}, 0, v{U+7}, s[58:59]')
        a(f'v_cndmask_b32 v{ID+i}, 0, v{U+6}, vcc')
        a(f'v_cndmask_b32 v{ID+i+1}, 0, v{U+6}, s[60:61]')
    if cfg.dry:
        a('s_mov_b64 exec, 0')
        a(f's_cmp_eq_u32 {sP}, 1')
        a('s_cbranch_scc1 P_dry1')
        a(f's_cmp_eq_u32 {sP}, 2')
        a('s_cbranch_scc1 P_dry2')
        a(f's_cmp_eq_u32 {sP}, 3')
        a('s_cbranch_scc1 P_dryd')
        a(f's_call_b64 {RET}, P_h0')
        a('P_dryd:')
        a('s_mov_b64 exec, -1')
        stamp(a, cfg, 15)
    if cfg.tokpos == 0 and cfg.t0pre < 2:
        await_cnt(a, 5, 'P_sy5', 12, 13, 4)
        for hf in range(cfg.t0pre, 2): issue_h('s57', 0, hf)
        a(f's_waitcnt vmcnt(6)')
    else:
        a(f's_waitcnt vmcnt({3*cfg.t0pre})')
    stamp(a, cfg, 10)
    arrive(a, 0, 12, 13)
    def lo_reads(r0, r1, off=0):
        return [f'ds_read_b128 {vr(X+4*s,4)}, v{r1 if s&1 else r0} offset:{off+64*(s>>1)}' for s in range(6)]
    if cfg.mix:
        a(f's_lshr_b32 {t0}, {sP}, 1')
        a(f's_lshl_b32 {t0}, {t0}, 2')
        a(f's_add_u32 {t0}, {t0}, {CNT + 4*5}')
        a(f'v_mov_b32 v15, {t0}')
        await_cnt(a, 5, 'P_sy5', 15, 13, 4, setaddr=False)
    else:
        await_cnt(a, 5, 'P_sy5', 15, 13, 4)
    issue_first2()
    for l in lo_reads(RL0, RL1): a(l)
    await_cnt(a, 0, 'P_sy0', 12, 13, 4, setaddr=False)
    stamp(a, cfg, 2)
    def wl_reads(t, s):
        return [f'ds_read_b64_tr_b16 {vr(WL+(t*6+s)*4+2*sec,2)}, v14 offset:{s*3072+sec*768+t*64}' for sec in range(2)]
    def lat_mfma(t, s):
        c = '0' if s == 0 else vr(LT+16*t,16)
        return f'{MF32} {vr(LT+16*t,16)}, {vr(WL+(t*6+s)*4,4)}, {vr(X+4*s,4)}, {c}'
    def lateral(first):
        pend = []
        L = [wl_reads(0, s) for s in range(4)] if first else []
        seq = [(t, s) for t in range(3) for s in range(6)]
        for i, (t, s) in enumerate(seq):
            L.append(lat_mfma(t, s))
            if first and i + 4 < 18: L.append(wl_reads(*seq[i+4]))
            if s >= 1: L.append(pend[:4]); del pend[:4]
            if s == 5:
                pend += [f'v_mov_b32 v{SL}, v{LT}' if (t == 0 and j == 0) else f'v_add_f32 v{SL}, v{SL}, v{LT+16*t+j}' for j in range(16)]
        return flat(L), pend
    def sl_fin():
        return [f'v_mov_b32 v{SL+1}, v{SL}', 's_nop 1', f'v_permlane32_swap_b32 v{SL}, v{SL+1}', f'v_add_f32 v{SL}, v{SL}, v{SL+1}']
    L, pend = lateral(True)
    if cfg.wsum == 2:
        for i in range(4): a(f'v_mov_b32 v{U+i}, 0x3f803f80')
        M = []; k = 0
        for l in L:
            M.append(l)
            if l.startswith('v_mfma'):
                k += 1
                if 2 <= k < 8: M.append(f'ds_read_b128 {vr(F+4*(k-2),4)}, v{WSA+2} offset:{32*(k-2)}')
                if k >= 6 and k % 2 == 0 and k < 18:
                    s_ = (k - 6) // 2
                    M.append(f'{MF32} {vr(X+24,16)}, {vr(U,4)}, {vr(F+4*s_,4)}, {"0" if s_ == 0 else vr(X+24,16)}')
        L = M
    L = autowait(L, age=99)
    if cfg.tokpos > 0 and cfg.t0pre < 2:
        k = [i for i, l in enumerate(L) if l.startswith('v_mfma')][cfg.tokpos]
        for l in L[:k]: a(l)
        a('s_waitcnt lgkmcnt(0)')
        await_cnt(a, 5, 'P_sy5', 12, 13, 4)
        for hf in range(cfg.t0pre, 2): issue_h('s57', 0, hf)
        L = L[k:]
    for l in L: a(l)
    if cfg.wsum == 2:
        a(f'v_cvt_pk_bf16_f32 v{X+24}, v{X+24}, v{X+24}')
        a(f'ds_write_b16 v{WSA+1}, v{X+24}')
    if cfg.wsum == 1:
        for s_ in range(6): a(f'ds_read_b128 {vr(F+4*s_,4)}, v{WSA+2} offset:{32*s_}')
        for i in range(4): a(f'v_mov_b32 v{U+i}, 0x3f803f80')
        for l in pend[:8]: a(l)
        del pend[:8]
        for s_ in range(6):
            a(f's_waitcnt lgkmcnt({5-s_})')
            a(f'{MF32} {vr(X,16)}, {vr(U,4)}, {vr(F+4*s_,4)}, {"0" if s_ == 0 else vr(X,16)}')
            for l in pend[:2]: a(l)
            del pend[:2]
    for l in pend + sl_fin(): a(l)
    if cfg.wsum == 1:
        a(f'v_cvt_pk_bf16_f32 v{X}, v{X}, v{X}')
        a(f'ds_write_b16 v{WSA+1}, v{X}')
    if cfg.wsum: a('s_waitcnt lgkmcnt(0)')
    arrive(a, 16, 12, 13)
    stamp(a, cfg, 3)
    a(f's_lshl_b32 {t0}, {sP}, 2')
    a(f's_add_u32 {t0}, {t0}, {PF}')
    a(f'v_mov_b32 v{FLA}, {t0}')
    a(f'v_mov_b32 v{FLV}, 0')
    if cfg.st2: a(f's_mov_b32 s61, {f32(1e-5 * 9216)}')
    if cfg.tok3: await_cnt(a, 6, 'P_sy6', 12, 13, 4)
    a(f's_cmp_lt_u32 {sP}, 2')
    a('s_cbranch_scc0 P_scriptB')
    def script(tag, tiles, lats, los):
        n = len(tiles)
        q = ['h0', 'h1']
        nxt = [2]
        done = set()
        def guard(r):
            if r >= 3 and not done:
                done.add(r); await_cnt(a, 4, f'P_w{tag}{r}', 12, 13, 4)
        def param(M, O):
            h = nxt[0]; r, hf = divmod(h, 2)
            guard(r)
            a(f's_add_u32 {M}, {sSlot}, {r*4*6144+3072*hf}')
            a(f's_add_u32 {O}, {tiles[r][0]}, {tiles[r][1]+6144*hf}')
            nxt[0] += 1
            return f'h{h}'
        def now_h():
            h = nxt[0]; r, hf = divmod(h, 2)
            guard(r)
            issue_h(tiles[r][0], r, hf, tiles[r][1]); nxt[0] += 1
            q.append(f'h{h}')
        def now_lo(key):
            for hf in range(2):
                a(f's_add_u32 m0, {sLoP}, {3072*hf}')
                a(f's_add_u32 {t0}, {sLo0}, {3072*hf}')
                for l in half(RLO, t0): a(l)
                q.append(key if hf else 'lox')
        if cfg.t0pre == 2 and cfg.tok2: await_cnt(a, 5, f'P_sy5{tag}', 12, 13, 4)
        if cfg.pair and tag == 'b':
            q[:] = ['h0', 'h2', 'h1', 'h3'] if cfg.pair & 1 else ['h0', 'h1', 'h2', 'h3']; nxt[0] = 4
        for key in los.get(-1, []): now_lo(key)
        for _ in range(cfg.early): now_h()
        for r in range(n):
            ng = min(2, 2*n - nxt[0])
            if r == 1 and cfg.r1late: ng = 1
            new = []
            if cfg.pair:
                ng = 4 if (nxt[0] == 2*r + 2 and nxt[0] < 2*n) else 0
                if ng:
                    h = nxt[0]; guard(h // 2 + 1)
                    param(M1, O1); param(M2, O2); nxt[0] += 2
                    new = [f'h{h}', f'h{h+2}', f'h{h+1}', f'h{h+3}'] if cfg.pair in (1, 4) else [f'h{h+i}' for i in range(4)]
            elif cfg.deep2 and r == cfg.deep2 - 1:
                ng = 4; h = nxt[0]
                param(M1, O1); nxt[0] += 1; param(M2, O2); nxt[0] += 1
                new = [f'h{h}', f'h{h+1}', f'h{h+2}', f'h{h+3}']
            else:
                if ng >= 1: new.append(param(M1, O1))
                if ng >= 2: new.append(param(M2, O2))
            last = r == n - 1
            if cfg.b2 and r >= 1: a(f"{TM(cfg)} s[{STAMP0+2*(10+r)}:{STAMP0+2*(10+r)+1}]")
            if lats[r] is not None:
                key = lats[r]
                if key in q:
                    i2 = q.index(key)
                    a(f's_waitcnt vmcnt({3*(len(q)-1-i2)})'); del q[:i2+1]
                off = LO - r * 24576
                a(f'v_add_u32 v12, {off}, v{RA0}\nv_add_u32 v13, {off}, v{RA1}')
                a(f's_call_b64 {RET}, P_lat')
            idx = max([q.index(x) for x in (f'h{2*r}', f'h{2*r+1}') if x in q] + [-1])
            if cfg.b2 and lats[r] is not None: a(f"{TM(cfg)} s[{STAMP0+2*(1 if r < 2 else 2)}:{STAMP0+2*(1 if r < 2 else 2)+1}]")
            if last and tag == 'a':
                a(f's_call_b64 {RET}, P_h0w'); break
            a(f's_waitcnt vmcnt({3*(len(q)-1-idx)})'); stamp(a, cfg, 4+r)
            del q[:idx+1]; q.extend(new)
            if last: break
            a(f's_call_b64 {RET}, P_h{ng}')
            if r == 1 and cfg.r1late: now_h()
            for key in los.get(r, []): now_lo(key)
            if tag == 'b' and r == cfg.wvr:
                await_cnt(a, 16, 'P_wl', 12, 13, 4)
                a(f's_sub_u32 {t0}, {sP}, 2\ns_mul_i32 {t0}, {t0}, 9216')
                a(f'v_lshlrev_b32 v12, 4, v1\nv_add_u32 v12, {t0}, v12')
                for k in range(3):
                    a(f's_add_u32 m0, {t0}, {WREG+3072*k}')
                    a(f's_add_u32 s50, s16, {3072*k}\ns_addc_u32 s51, s17, 0')
                    for j in range(3): a(f'global_load_lds_dwordx4 v12, s[50:51] offset:{1024*j}')
                    q.append('wv')
                if cfg.touch:
                    a(f's_mov_b32 s36, s26\ns_mov_b32 s37, s27\ns_mov_b32 s38, {REC_BYTES}\ns_mov_b32 s39, 0x20000')
                    if cfg.fl:
                        a('v_and_b32 v12, 7, v1\nv_lshlrev_b32 v12, 17, v12')
                        a('v_lshrrev_b32 v13, 3, v1\nv_lshl_add_u32 v12, v13, 6, v12')
                        a(f's_lshl_b32 {t0}, s2, 9')
                    else:
                        a('v_and_b32 v12, 15, v1\nv_lshlrev_b32 v12, 16, v12')
                        a('v_lshrrev_b32 v13, 4, v1\nv_lshl_add_u32 v12, v13, 6, v12')
                        a(f's_lshl_b32 {t0}, s2, 8')
                    a(f'buffer_load_dword v232, v12, {RWS}, {t0} offen' + (' sc1' if cfg.touch == 3 else ''))
                    a(f'v_mov_b32 v12, 0')
                    a(f'global_load_dword v234, v12, {SOUT}')
                    a(f'global_load_dword v233, v12, {SQ}')
                    q.append('touch')
    TL = [(sH0, 0), (sH0, 192), (sH0, 73728), (sH0, 73728+192)]
    if cfg.tord: TL = [TL[0], TL[2], TL[1], TL[3]]
    script('a', [None] + TL, [None, 'lo0', None, None, None], {cfg.lopos: ['lo0']})
    if cfg.b2: a(f"{TM(cfg)} s[{STAMP0+30}:{STAMP0+31}]")
    a('s_branch P_fin')
    a('P_scriptB:')
    script('b', [None] + TL[1:], [None, None, None, None], {})
    a(f's_call_b64 {RET}, P_h0')
    if cfg.b2: a(f"{TM(cfg)} s[{STAMP0+30}:{STAMP0+31}]")
    a(f'v_mov_b32 v{FLV}, 5')
    a('s_waitcnt vmcnt(0)')
    a(f'ds_write_b32 v{FLA}, v{FLV}')
    if cfg.trp: a('s_branch L_exit')
    if cfg.stamps: a('s_mov_b32 s100, 0')
    a('s_cmp_ge_u32 s2, 16')
    a('s_cbranch_scc1 L_exit')
    if cfg.stamps: a('s_mov_b32 s100, 1')
    if cfg.prog:
        a(f'v_mov_b32 v12, {CNT+48}')
        a('P_w17:')
        a('ds_read_b128 v[232:235], v12')
        a('s_waitcnt lgkmcnt(0)')
        a('v_min_u32 v232, v232, v233')
        a('v_min3_u32 v232, v232, v234, v235')
        a('v_cmp_gt_u32 vcc, 24576, v232')
        a('s_cbranch_vccnz P_w17')
    else:
        await_cnt(a, 17, 'P_w17', 12, 13, 4)
    a(f's_sub_u32 {t0}, {sP}, 2\ns_mul_i32 {t0}, {t0}, 9216')
    a(f'v_lshlrev_b32 v12, 4, v1\nv_add_u32 v12, {t0}, v12')
    for k in range(3):
        a(f's_add_u32 m0, {t0}, {WO+3072*k}')
        a(f's_add_u32 s50, s18, {3072*k}\ns_addc_u32 s51, s19, 0')
        for j in range(3): a(f'global_load_lds_dwordx4 v12, s[50:51] offset:{1024*j}')
    a('P_fin:')
    if cfg.trp: a('s_branch L_exit')
    stamp(a, cfg, 9)
    a('s_cmp_ge_u32 s2, 16')
    a('s_cbranch_scc1 L_exit')
    a('s_setprio 0')
    a(f's_load_dword s47, {SDBG}, 0')
    a('s_waitcnt lgkmcnt(0)')
    a('s_cmp_eq_u32 s47, 0')
    a('s_cbranch_scc1 P_getnonce')
    a('P_getnonce_d:')
    a(f's_mov_b32 s36, s26\ns_mov_b32 s37, s27\ns_mov_b32 s38, {REC_BYTES}\ns_mov_b32 s39, 0x20000')
    await_cnt(a, 7, 'P_w7', 12, 13, 4)
    a('s_cmp_lt_u32 s50, 0x100')
    a('s_cbranch_scc1 L_comb')
    a('s_branch Z_comb')
    nonce_slow(a, 'P_getnonce', 'P_getnonce_d', 20)
    if cfg.dry:
        a('P_dry1:')
        a('s_call_b64 s[60:61], C_blk2')
        a('s_branch P_dryd')
        a('P_dry2:')
        a(f's_call_b64 {RET}, P_lat')
        a('s_branch P_dryd')
    a('P_lat:')
    if cfg.pp: a(f's_setprio {cfg.pl}')
    if cfg.wsum:
        wsr = [f'ds_read_b128 {vr(F+4*s_,4)}, v{WSA} offset:{32*s_}' for s_ in range(6)]
        L = lo_reads(12, 13)
        for i, (t, s_) in enumerate([(t, s_) for t in range(3) for s_ in range(6)]):
            L.append(lat_mfma(t, s_))
            if i < 6: L.append(wsr[i])
            if i >= 6 and i % 2 == 0: L.append(f'{MF16} {vr(SL,4)}, {vr(F+4*((i-6)//2),4)}, {vr(X+4*((i-6)//2),4)}, {"0" if i == 6 else vr(SL,4)}')
        for l in autowait(L, age=99): a(l)
        a(f's_setpc_b64 {RET}')
    else:
        L, pend = lateral(False)
        for l in autowait(lo_reads(12, 13) + L, age=99): a(l)
        a('s_nop 9')
        for l in pend + sl_fin(): a(l)
        a(f's_setpc_b64 {RET}')
    hp = cfg.pm if cfg.pp else None
    g1 = [f's_mov_b32 m0, {M1}', 's_nop 0'] + half(RHI, O1, SR)
    g2 = [f's_mov_b32 m0, {M2}', 's_nop 0'] + half(RHI, O2, SR)
    def traced(lines, first, n):
        step = max(1, len(lines) // n); k = first
        for i, l in enumerate(lines):
            if i % step == 0 and k < first + n:
                stamp(a, cfg, k, True); k += 1
            a(l)
    if not cfg.pair:
        a('P_h2:')
        traced(B.p_head(g1, g2, hp), 2, 3)
        a('s_branch P_s1')
    if cfg.pair:
        a('P_h4:')
        def grp(M, O): return [f's_mov_b32 m0, {M}', f's_add_u32 {t1}, {O}, 192'] + half(RHI, O, SR) + [f's_add_u32 m0, {M}, 24576', 's_nop 0'] + half(RHI, t1, SR)
        G1, G2 = grp(M1, O1), grp(M2, O2)
        if cfg.pair not in (1, 4):
            G1 = [f's_mov_b32 m0, {M1}', f's_add_u32 {t1}, {O1}, 192'] + half(RHI, O1, SR) + [f's_mov_b32 m0, {M2}', f's_add_u32 {t2}, {O2}, 192'] + half(RHI, O2, SR)
            G2 = [f's_add_u32 m0, {M1}, 24576', 's_nop 0'] + half(RHI, t1, SR) + [f's_add_u32 m0, {M2}, 24576', 's_nop 0'] + half(RHI, t2, SR)
        H = B.p_head(G1, (), hp)
        k1 = [i for i, l in enumerate(H) if l.startswith('v_mfma')]
        H = H[:k1[0]+1] + G2[:5] + H[k1[0]+1:k1[1]+1] + G2[5:] + H[k1[1]+1:]
        for l in H: a(l)
        a('s_branch P_s1')
    elif cfg.deep2:
        a('P_h4:')
        def grp(M, O): return [f's_mov_b32 m0, {M}', f's_add_u32 {t1}, {O}, 6144'] + half(RHI, O, SR) + [f's_add_u32 m0, {M}, 3072', 's_nop 0'] + half(RHI, t1, SR)
        H = B.p_head(grp(M1, O1), (), hp)
        G2 = grp(M2, O2)
        k1 = [i for i, l in enumerate(H) if l.startswith('v_mfma')]
        H = H[:k1[0]+1] + G2[:5] + H[k1[0]+1:k1[1]+1] + G2[5:] + H[k1[1]+1:]
        for l in H: a(l)
        a('s_branch P_s1')
    else:
        a('P_h1:')
        traced(B.p_head(g1, (), hp), 2, 3)
        a('s_branch P_s1')
    a('P_h0w:')
    a('s_waitcnt vmcnt(0)')
    stamp(a, cfg, 8)
    a('P_h0:')
    for l in B.p_head((), (), hp): a(l)
    a('P_s1:')
    tail = B.p_tail(0, cfg.pv if cfg.pp else None) if not cfg.pk else B.p_tail_pk(cfg.pv if cfg.pp else None, bool(cfg.pk & 1), bool(cfg.pk & 2))
    if cfg.st2: tail = B.p_tail2(cfg.pv if cfg.pp else None, cfg.st2 == 1)
    traced(tail[:-1], 5, 9)
    if not cfg.st2: a(f'v_add_u32 v{FLV}, 1, v{FLV}')
    a('s_waitcnt lgkmcnt(0)')
    a(f'ds_write_b32 v{FLA}, v{FLV}')
    a(f's_setpc_b64 {RET}')

def gen_consumer(a, cfg):
    sH = 's40'
    t0, t1 = 's41', 's42'
    RET = 's[60:61]'
    sR = 's43'
    LIN, REC, WVA, XA = 2, 3, 8, 9
    CA0, CA1, CT0, CT1 = B.C.CA0, B.C.CA1, B.C.CT0, B.C.CT1
    PART = 12
    AP, U, LA, OP = B.C.AP, B.C.U, B.C.LA, B.C.OP
    WV = B.C.WV
    QB, WK, ME, QT, QP, TA, QF = 96, 108, 132, 156, 164, 168, 16
    T = 240
    T2 = 248
    a('L_cons:')
    if cfg.cearly: a(f's_setprio {cfg.cpp}')
    a('s_memrealtime s[58:59]')
    code_prefetch(a, 'L_pc', 0, -256)
    a(f's_sub_u32 {sH}, s3, 4')
    a(f'v_lshlrev_b32 v{LIN}, 4, v1')
    a(f's_mul_i32 s48, {sH}, 4608')
    a(f'v_add_u32 v{PART}, s48, v{LIN}')
    a(f's_min_u32 {t0}, {sH}, 2')
    a(f's_lshl_b32 s46, {sH}, 2')
    a(f's_add_u32 s46, s46, {t0}')
    a(f's_lshl_b32 s46, s46, 10')
    a(f'v_add_u32 v13, s46, v{LIN}')
    a(f's_lshl_b32 s54, {t0}, 10')
    a(f'v_add_u32 v10, s54, v{LIN}')
    a('s_lshr_b32 s50, s2, 3\ns_and_b32 s50, s50, 31\ns_mul_i32 s50, s50, 640')
    a(f'v_lshlrev_b32 v14, 7, v1')
    a(f'v_add_u32 v14, s50, v14')
    a(f'v_min_u32 v14, 18428, v14')
    N, G, RHO, KAP = T+4, T+5, T+6, T+7
    a(f'v_and_b32 v{N}, 15, v1')
    a(f'v_lshrrev_b32 v{G}, 4, v1')
    a(f'v_bfe_u32 v{RHO}, v1, 2, 2')
    a(f'v_and_b32 v{KAP}, 3, v1')
    a(f'v_mul_u32_u24 v{T+8}, 192, v{N}')
    a(f'v_lshl_add_u32 v{T+8}, v{G}, 4, v{T+8}')
    a(f'v_lshl_add_u32 v{T+9}, v{RHO}, 3, v{KAP}')
    a(f'v_mul_u32_u24 v{T+9}, 48, v{T+9}')
    a(f'v_lshl_add_u32 v{T+9}, v{G}, 4, v{T+9}')
    a(f'v_add_u32 v{T+9}, s48, v{T+9}')
    if cfg.spf & 6:
        a(f's_cmp_lt_u32 {sH}, 2')
        a(f's_cselect_b32 s96, 8, {sH}')
        a(f's_cselect_b32 s97, {sH}, 0')
        a('s_add_u32 s96, s96, s57')
        a('s_mul_i32 s98, s96, 43691')
        a('s_lshr_b32 s98, s98, 19')
        a('s_add_u32 s98, s98, s97')
        a('s_mul_i32 s98, s98, 73728')
        a('s_mul_i32 s96, s96, 6144')
        a('s_add_u32 s97, s96, s98')
    if cfg.bist: stamp(a, cfg, 12)
    a('s_waitcnt lgkmcnt(0)')
    if cfg.bist: stamp(a, cfg, 13)
    if cfg.spf & 6:
        a('s_add_u32 s98, s6, s97\ns_addc_u32 s99, s7, 0')
    a(f's_cmp_eq_u32 {sH}, 0\ns_cselect_b64 s[50:51], {SWV}, {SWQ}')
    a(f's_cmp_eq_u32 {sH}, 2\ns_cselect_b64 s[50:51], {SWK}, s[50:51]')
    a(f's_cmp_eq_u32 {sH}, 3\ns_cselect_b64 s[50:51], {SWM}, s[50:51]')
    a('s_mov_b64 exec, 31')
    a(f'global_load_dword v200, v14, s[50:51]')
    a('s_mov_b64 exec, -1')
    o2 = cfg.spn if cfg.spf & 1 else 0
    if cfg.spf & 2:
        for i in range(cfg.spn): a(f's_load_dword s96, s[98:99], {128*(o2+i)}')
        o2 += cfg.spn
    if cfg.bist: stamp(a, cfg, 11)
    a('s_barrier')
    if cfg.bist: stamp(a, cfg, 14)
    a(f's_lshl_b32 s50, s2, 2\ns_xor_b32 s50, s50, {sH}\ns_cmp_eq_u32 s50, 3')
    a('s_cbranch_scc1 C_mknonce')
    a('C_mknonce_d:')
    if cfg.fake: arrive(a, 5, 14, 15)
    def wk_loads():
        a('s_mov_b32 exec_hi, 0xffff')
        for s in range(3):
            for tt in range(2):
                a(f'global_load_dwordx4 {vr(WK+(2*s+tt)*4,4)}, v{T+9}, {SWK} offset:{1536*s+192*tt}')
        a('s_mov_b32 exec_hi, -1')
    if cfg.pro == 2:
        for s in range(3): a(f'global_load_dwordx4 {vr(QB+4*s,4)}, v{T+8}, {SQ} offset:{64*s}')
        dma_part(a, SWQ, WQ, PART, 's48')
        if cfg.wkpos == 2: arrive(a, 5, 14, 15)
        a('s_mov_b32 s57, s46')
        a(f'v_mov_b32 v{PART}, v13')
        for i in range(24): a(f'v_mov_b32 v{WK+i}, 0')
        wk_loads()
        if cfg.wkpos == 1: arrive(a, 5, 14, 15)
    elif not cfg.fake:
        M1S, M1L, M2S, M2L = (SWM, WM, SWQ, WQ) if cfg.mfirst else (SWQ, WQ, SWM, WM)
        a(f's_cmp_ge_u32 {sH}, 3')
        a('s_cbranch_scc1 C_noy')
        a(f's_add_u32 m0, s54, {QS}')
        a(f's_cmp_ge_u32 {sH}, 2')
        a(f'global_load_lds_dwordx4 v10, {SQ}')
        a('s_cbranch_scc1 C_noy')
        dma_extra(a, M1S, M1L, 13, 's46')
        a('C_noy:')
        dma_main(a, M1S, M1L, 13, 's46')
        if cfg.wkpos == 2: arrive(a, 5, 14, 15)
        a('s_mov_b32 s57, s46')
        a(f'v_mov_b32 v{PART}, v13')
        for i in range(24): a(f'v_mov_b32 v{WK+i}, 0')
    stamp(a, cfg, 1)
    a(f's_mov_b32 s36, s26\ns_mov_b32 s37, s27\ns_mov_b32 s38, {REC_BYTES}\ns_mov_b32 s39, 0x20000')
    a(f's_and_b32 s49, {sH}, 1\ns_lshl_b32 s55, s49, 1\ns_lshr_b32 s56, {sH}, 1\ns_add_u32 s55, s55, s56')
    a(f's_lshl_b32 {t0}, s2, 2\ns_add_u32 {t0}, {t0}, s55\ns_lshl_b32 {t0}, {t0}, 6')
    a(f'v_mul_u32_u24 v{REC}, {65536 + cfg.skew}, v{N}')
    a(f'v_lshl_add_u32 v{REC}, v{G}, 4, v{REC}')
    a(f'v_add_u32 v{REC}, {t0}, v{REC}')
    a('s_mul_i32 s52, s56, 12288')
    a(f'v_and_b32 v{T+10}, 31, v1')
    a(f'v_lshrrev_b32 v{T+11}, 5, v1')
    a(f'v_lshlrev_b32 v{T+12}, 1, v{N}')
    a(f'v_bfe_u32 v{T+12}, {SF}, v{T+12}, 2')
    a(f'v_xor_b32 v{T+12}, v{T+12}, v{T+11}')
    a(f'v_mul_u32_u24 v{T+13}, 192, v{T+10}')
    a(f'v_add_u32 v{T+13}, s52, v{T+13}')
    a(f'v_lshl_add_u32 v{CA0}, v{T+12}, 4, v{T+13}')
    a(f'v_xor_b32 v{T+12}, 2, v{T+12}')
    a(f'v_lshl_add_u32 v{CA1}, v{T+12}, 4, v{T+13}')
    a(f'v_lshl_add_u32 v{T+12}, v{T+11}, 2, v{RHO}')
    a(f'v_bfe_u32 v{T+13}, v1, 4, 1')
    a(f'v_lshrrev_b32 v{T+14}, 1, v{KAP}')
    a(f'v_lshl_add_u32 v{T+14}, v{T+13}, 1, v{T+14}')
    a(f'v_and_b32 v{T+15}, 1, v{KAP}')
    a(f'v_lshlrev_b32 v{T+15}, 3, v{T+15}')
    a(f'v_add_u32 v{T+15}, s52, v{T+15}')
    for sec, dst in ((0, CT0), (1, CT1)):
        if sec: a(f'v_add_u32 v{T+12}, 8, v{T+12}')
        a(f'v_lshlrev_b32 v{dst}, 1, v{T+12}')
        a(f'v_bfe_u32 v{dst}, {SF}, v{dst}, 2')
        a(f'v_xor_b32 v{dst}, v{dst}, v{T+14}')
        a(f'v_lshl_add_u32 v{dst}, v{dst}, 4, v{T+15}')
        a(f'v_mul_u32_u24 v10, 192, v{T+12}')
        a(f'v_add_u32 v{dst}, v{dst}, v10')
    a(f'v_lshl_add_u32 v{WVA}, v{T+11}, 2, v{RHO}')
    a(f'v_lshl_add_u32 v{WVA}, v{T+13}, 4, v{WVA}')
    a(f'v_mul_u32_u24 v{WVA}, 48, v{WVA}')
    a(f'v_lshl_add_u32 v{WVA}, v{KAP}, 3, v{WVA}')
    a(f'v_add_u32 v{WVA}, {WREG}, v{WVA}')
    a(f's_xor_b32 {t0}, s55, 1')
    a(f's_mul_i32 s53, {t0}, 4608')
    a(f's_mul_i32 s46, s55, 4608')
    a(f'v_mov_b32 v10, s46')
    a(f'v_mov_b32 v11, s53')
    a(f'v_cmp_eq_u32 vcc, 0, v{T+13}')
    a(f'v_mul_u32_u24 v{XA}, 192, v{N}')
    a(f'v_lshl_add_u32 v{XA}, v{T+11}, 4, v{XA}')
    a(f'v_cndmask_b32 v10, v11, v10, vcc')
    a(f'v_add_u32 v{XA}, v{XA}, v10')
    a(f'v_add_u32 v{XA}, {WQ}, v{XA}')
    a(f'v_lshl_add_u32 v{T+12}, v{G}, 3, v{RHO}')
    a(f'v_mul_u32_u24 v10, 48, v{T+12}')
    a(f'v_min_u32 v11, 2, v{KAP}')
    a(f'v_lshl_add_u32 v10, v11, 4, v10')
    a(f's_add_u32 {t0}, s48, {WQ}')
    a(f'v_add_u32 v10, {t0}, v10')
    a(f'v_add_u32 v13, {t0}, v{T+8}')
    a(f'v_add_u32 v{T+8}, {QS}, v{T+8}')
    a(f'v_mul_u32_u24 v11, 192, v{T+12}')
    a(f'v_lshl_add_u32 v11, v{KAP}, 4, v11')
    a(f'v_add_u32 v11, {WM}, v11')
    a(f'v_and_b32 v{T+12}, 1, v1')
    a(f'v_cmp_eq_u32 vcc, v{T+12}, v{T+13}')
    a(f'v_mov_b32 v{T+12}, 0x3f803f80')
    for i in range(52 - cfg.zl):
        a(f'v_mov_b32 v{U+i}, 0')
        if i == 1:
            for k in range(4): a(f'v_cndmask_b32 v{OP+k}, 0, v{T+12}, vcc')
    if cfg.fake:
        a(f's_add_u32 s58, s58, {cfg.fake}')
        a('C_fk:')
        a('s_memrealtime s[50:51]')
        a('s_waitcnt lgkmcnt(0)')
        a('s_sub_u32 s50, s50, s58')
        a('s_cmp_lt_i32 s50, 0')
        a('s_cbranch_scc1 C_fk')
        stamp(a, cfg, 2)
        a(f's_mul_i32 s50, {sH}, 3072')
        a(f's_add_u32 s50, s50, {8<<20}')
        a(f's_add_u32 s50, s26, s50\ns_addc_u32 s51, s27, 0')
        a(f's_add_u32 m0, s48, {WQ}')
        a('s_nop 0')
        for k in range(3): a(f'global_load_lds_dwordx4 v{LIN}, s[50:51] offset:{1024*k}' + (' sc1' if cfg.fsc else ''))
        a('s_waitcnt vmcnt(0)')
        stamp(a, cfg, 15)
        lds_sync(a, 3, 'C_sy3', 14, 15)
        a('s_cmp_eq_u32 s2, 999')
        a('s_cbranch_scc1 Z_sy3')
    else:
        def me_rd(sp, st): return [f'ds_read_b64_tr_b16 {vr(TA+(sp*6+st)*4+2*sec,2)}, v11 offset:{sp*6144+sec*768+(st>>1)*64+(st&1)*8}' for sec in range(2)]
        def q_rd(s, tt): return [f'ds_read_b64_tr_b16 {vr(QF+(tt*3+s)*4+2*sec,2)}, v10 offset:{s*1536+sec*192+tt*8}' for sec in range(2)]
        def q_mm(s, tt): return f'{MF16} {vr(QT+4*tt,4)}, {vr(QF+(tt*3+s)*4,4)}, {vr(QB+4*s,4)}, {"0" if s == 0 else vr(QT+4*tt,4)}'
        if cfg.pro == 2:
            if cfg.wkpos == 3: arrive(a, 5, 14, 15)
            if cfg.wmtok: await_cnt(a, 6, 'C_tk6', 14, 15, 4)
            if cfg.bist: stamp(a, cfg, 7)
            a(f's_cmp_ge_u32 {sH}, 2')
            a('s_cbranch_scc1 C_nox')
            dma_extra(a, SWM, WM, PART, 's57')
            a('C_nox:')
            dma_main(a, SWM, WM, PART, 's57')
            if cfg.wkpos == 0: arrive(a, 5, 14, 15)
            epi_setup(a, cfg)
            if cfg.bist: stamp(a, cfg, 6)
            a('s_waitcnt vmcnt(10)')
            if cfg.bist: stamp(a, cfg, 5)
            if cfg.cpp: a(f's_setprio {cfg.cpp}')
            stamp(a, cfg, 2)
            qseq = [(s, tt) for s in range(3) for tt in range(2)]
            L = [q_rd(*x) for x in qseq] + [q_mm(*x) for x in qseq]
            for l in autowait(flat(L), age=99): a(l)
            for i in range(8): a(f'v_add_f32 v{QT+i}, v{QT+i}, v{QT+i}')
            for i in range(4): a(f'v_cvt_pk_bf16_f32 v{QP+i}, v{QT+2*i}, v{QT+2*i+1}')
            a('s_waitcnt vmcnt(4)')
            for st in range(6):
                a(f'{MF16} {vr(ME+4*st,4)}, {vr(WK+4*st,4)}, {vr(QP,4)}, 0')
            if cfg.bist: stamp(a, cfg, 4)
            a('s_waitcnt vmcnt(0)')
            lds_sync(a, 1, 'C_sy1', 14, 15)
            if cfg.bist: stamp(a, cfg, 8)
            stamp(a, cfg, 15)
            seq = [(sp, st) for sp in range(3) for st in range(6)]
            L = [me_rd(*seq[i]) for i in range(7)]
            for i, (sp, st) in enumerate(seq):
                L.append(f'{MF16} {vr(ME+4*st,4)}, {vr(TA+(sp*6+st)*4,4)}, {vr(QB+4*sp,4)}, {vr(ME+4*st,4)}')
                if i + 7 < 18: L.append(me_rd(*seq[i+7]))
            for l in autowait(flat(L), age=99): a(l)
        else:
            if cfg.spf & 4:
                for i in range(min(cfg.spn, 48 - o2)): a(f's_load_dword s96, s[98:99], {128*(o2+i)}')
            if cfg.bist: stamp(a, cfg, 7)
            if cfg.wkpos == 3: arrive(a, 5, 14, 15)
            a(f's_cmp_ge_u32 {sH}, 2')
            a('s_cbranch_scc1 C_nox')
            dma_extra(a, M2S, M2L, PART, 's57')
            a('C_nox:')
            dma_main(a, M2S, M2L, PART, 's57')
            if cfg.wkpos == 1: arrive(a, 5, 14, 15)
            if cfg.tk6 == 1: arrive(a, 6, 14, 15)
            a('s_mov_b32 exec_hi, 0xffff')
            for s in range(3):
                for tt in range(2):
                    a(f'global_load_dwordx4 {vr(WK+(2*s+tt)*4,4)}, v{T+9}, {SWK} offset:{1536*s+192*tt}')
            a('s_mov_b32 exec_hi, -1')
            if cfg.wkpos == 0: arrive(a, 5, 14, 15)
            if (cfg.tok3 or cfg.mix) and cfg.tk6 == 0: arrive(a, 6, 14, 15)
            epi_setup(a, cfg)
            if cfg.bist: stamp(a, cfg, 6)
            a('s_waitcnt vmcnt(6)')
            if cfg.bist: stamp(a, cfg, 5)
            lds_sync(a, 1, 'C_sy1', 14, 15)
            if cfg.cpp: a(f's_setprio {cfg.cpp}')
            stamp(a, cfg, 2)
            def me_rd(sp, st): return [f'ds_read_b64_tr_b16 {vr(TA+(sp*6+st)*4+2*sec,2)}, v11 offset:{sp*6144+sec*768+(st>>1)*64+(st&1)*8}' for sec in range(2)]
            def q_rd(s, tt): return [f'ds_read_b64_tr_b16 {vr(QF+(tt*3+s)*4+2*sec,2)}, v10 offset:{s*1536+sec*192+tt*8}' for sec in range(2)]
            def q_mm(s, tt): return f'{MF16} {vr(QT+4*tt,4)}, {vr(QF+(tt*3+s)*4,4)}, {vr(QB+4*s,4)}, {"0" if s == 0 else vr(QT+4*tt,4)}'
            def me_mm(sp, st): return f'{MF16} {vr(ME+4*st,4)}, {vr(TA+(sp*6+st)*4,4)}, {vr(QB+4*sp,4)}, {"0" if sp == 0 else vr(ME+4*st,4)}'
            seq = [(sp, st) for sp in range(3) for st in range(6)]
            qseq = [(s, tt) for s in range(3) for tt in range(2)]
            qb = [f'ds_read_b128 {vr(QB+4*s,4)}, v{T+8} offset:{64*s}' for s in range(3)]
            L = [qb[0], q_rd(0,0), q_rd(0,1), qb[1], q_rd(1,0), q_rd(1,1), qb[2], q_rd(2,0), q_rd(2,1)]
            for i, (s_, tt) in enumerate(qseq):
                L.append(q_mm(s_, tt)); L.append(me_rd(*seq[i]))
            post = [f'v_add_f32 v{QT+i}, v{QT+i}, v{QT+i}' for i in range(8)] + [f'v_cvt_pk_bf16_f32 v{QP+i}, v{QT+2*i}, v{QT+2*i+1}' for i in range(4)]
            for i, (sp, st) in enumerate(seq):
                L.append(me_mm(sp, st))
                if i + 6 < 18: L.append(me_rd(*seq[i+6]))
                if i >= 3: L.append(post[:1]); del post[:1]
            L.append(post)
            for l in autowait(flat(L), age=99): a(l)
            if cfg.bist: stamp(a, cfg, 4)
            a('s_waitcnt vmcnt(0)')
            if cfg.bist: stamp(a, cfg, 8)
            stamp(a, cfg, 15)
            for st in range(6):
                a(f'{MF16} {vr(ME+4*st,4)}, {vr(WK+4*st,4)}, {vr(QP,4)}, {vr(ME+4*st,4)}')
        sc = 96 ** -0.5 * math.log2(math.e)
        a(f's_mov_b32 {t0}, {f32(sc)}')
        for s in range(3):
            for i in range(8): a(f'v_mul_f32 v{ME+8*s+i}, {t0}, v{ME+8*s+i}')
            for i in range(4): a(f'v_cvt_pk_bf16_f32 v{ME+8*s+i}, v{ME+8*s+2*i}, v{ME+8*s+2*i+1}')
            a(f'ds_write_b128 v13, {vr(ME+8*s,4)} offset:{64*s}')
            a(f'{MF16} {vr(QT,4)}, {vr(ME+8*s,4)}, {vr(ME+8*s,4)}, {"0" if s == 0 else vr(QT,4)}')
        a(f's_mov_b32 {t0}, {f32(THR)}')
        a(f'v_mov_b32 v14, {CNT + 4*3}')
        a(f'v_max3_f32 v{QT}, v{QT}, v{QT+1}, v{QT+2}')
        a(f'v_max_f32 v{QT}, v{QT}, v{QT+3}')
        a(f'v_cmp_nge_f32 vcc, {t0}, v{QT}')
        a('s_cmp_eq_u64 vcc, 0')
        a('s_cselect_b32 s51, 1, 0x101')
        a('v_mov_b32 v15, s51')
        a('s_waitcnt lgkmcnt(0)')
        a('s_mov_b64 exec, 1')
        a('ds_add_rtn_u32 v15, v14, v15')
        a('s_mov_b64 exec, -1')
        a('s_waitcnt lgkmcnt(0)')
        a('v_readfirstlane_b32 s50, v15')
        a('s_add_u32 s50, s50, s51')
        a('s_cmp_eq_u32 s50, 4')
        a('s_cbranch_scc1 C_sy3_ok')
        await_cnt(a, 3, 'C_sy3', 14, 15, 4, setaddr=False)
        a('s_cmp_eq_u32 s50, 4')
        a('s_cbranch_scc0 Z_sy3')
    if not cfg.fake: a('C_sy3_ok:')
    stamp(a, cfg, 3)
    cons_main(a, cfg, False)
    a('C_mknonce:')
    a('s_or_b32 s50, s58, 1')
    a('v_mov_b32 v20, s50\nv_mov_b32 v21, 0\nv_mov_b32 v22, 0')
    a('s_mov_b64 exec, 1')
    a(f'global_atomic_cmpswap v22, v[20:21], {SDBG} sc1')
    a('s_mov_b64 exec, -1')
    a('s_branch C_mknonce_d')
    nonce_slow(a, 'C_getnonce', 'C_getnonce_d', T2)

def slow_rescale(NEW):
    MX = 160; U, LA = B.C.U, B.C.LA
    L = [f'v_max_f32 v{NEW}, v{NEW}, v{MX}',
         f'v_sub_f32 v{MX+4}, v{MX}, v{NEW}',
         f'v_exp_f32 v{MX+4}, v{MX+4}',
         f'v_mov_b32 v{MX}, v{NEW}', 's_nop 1',
         f'v_mov_b32 v{MX+5}, v{MX+4}', f'v_mov_b32 v{MX+6}, v{MX+4}', 's_nop 1',
         f'v_permlane16_swap_b32 v{MX+5}, v{MX+6}', 's_nop 1']
    L += [f'v_mul_f32 v{U+i}, v{U+i}, v{MX+4}' for i in range(48)]
    L += [f'v_mul_f32 v{LA+i}, v{LA+i}, v{MX+5+(i&1)}' for i in range(4)]
    return L

def slow_tile(off):
    MX = 160; S = B.C.S[0]
    tb = B.C.TB
    B.C.TB = off
    sv = (B.C.KA, B.C.KT, B.C.S, B.C.P)
    B.C.KA = [sv[0][0]] * 2; B.C.KT = [sv[1][0]] * 2; B.C.S = [S] * 2; B.C.P = [S] * 2
    L = [B.ka(1, s) for s in range(6)] + ['s_waitcnt lgkmcnt(0)']
    L += [B.kt(1, ks, t) for ks in range(2) for t in range(3)]
    L += [B.sm(1, s) for s in range(6)] + ['s_nop 15', 's_nop 15']
    L += [f'v_max3_f32 v{MX+1}, v{S}, v{S+1}, v{S+2}']
    L += [f'v_max3_f32 v{MX+1}, v{MX+1}, v{S+3+2*i}, v{S+4+2*i}' for i in range(6)]
    L += [f'v_max_f32 v{MX+1}, v{MX+1}, v{S+15}', f'v_mov_b32 v{MX+2}, v{MX+1}', 's_nop 1',
          f'v_permlane32_swap_b32 v{MX+1}, v{MX+2}', 's_nop 1', f'v_max_f32 v{MX+1}, v{MX+1}, v{MX+2}']
    L += slow_rescale(MX+1)
    L += [f'v_sub_f32 v{S+i}, v{S+i}, v{MX}' for i in range(16)]
    L += [B.ex(1, i) for i in range(16)] + ['s_nop 1'] + [B.cv(1, i) for i in range(8)]
    L += ['s_waitcnt lgkmcnt(0)', 's_nop 1']
    L += [B.pv(1, ks, t) for ks in range(2) for t in range(4)] + ['s_nop 15', 's_nop 15']
    B.C.TB = tb
    B.C.KA, B.C.KT, B.C.S, B.C.P = sv
    return flat(L)

EPI_REGS = (8, 240, 241, 242, 243, 0, 251, 254, 255, 244, 245)
def epi_setup(a, cfg):
    for i in range(52 - cfg.zl, 52): a(f'v_mov_b32 v{B.C.U+i}, 0')
    sH = 's40'
    t0, t1 = 's41', 's42'
    LIN, WVA = 2, 8
    WA0, FLA, XO, XP, FO, FP, ONE, MRA, THRV, XLW, XLR = EPI_REGS
    THR, INC = 246, 247
    a(f'v_add_u32 v{WA0}, s46, v{WVA}')
    a(f's_mul_i32 {t0}, {sH}, {XST}')
    a(f's_xor_b32 {t1}, {sH}, 2')
    a(f's_mul_i32 {t1}, {t1}, {XST}')
    a(f's_add_u32 {t0}, {t0}, {XCH}')
    a(f's_add_u32 {t1}, {t1}, {XCH+3072}')
    a(f'v_add_u32 v{XO}, {t0}, v{LIN}')
    a(f'v_lshlrev_b32 v{XLR}, 2, v1')
    a(f'v_add_u32 v{XLW}, {t1}, v{XLR}')
    a(f'v_add_u32 v{XLR}, {t0}, v{XLR}')
    a(f's_mov_b32 s52, 0xffff0000\ns_mov_b32 s53, 0xffff0000')
    if cfg.xv == 0:
        a(f'v_add_u32 v{XP}, {t1}, v{LIN}')
    else:
        a(f'v_mov_b32 v{XP}, {t0}')
        a(f'v_mov_b32 v14, {t1}')
        a(f'v_and_b32 v15, 15, v1')
        a(f'v_cndmask_b32 v{XP}, v{XP}, v14, s[52:53]')
        a(f'v_lshl_add_u32 v{XP}, v15, 4, v{XP}')
        a(f'v_lshrrev_b32 v15, 5, v1')
        a(f'v_lshl_add_u32 v{XP}, v15, 9, v{XP}')
    a(f'v_and_b32 v{FLA}, 3, v1')
    a(f's_xor_b32 {t0}, s56, 1')
    a(f'v_cmp_eq_u32 vcc, {t0}, v{FLA}')
    a(f'v_lshlrev_b32 v{FLA}, 2, v{FLA}')
    a(f'v_add_u32 v{FLA}, {PF}, v{FLA}')
    a(f'v_cndmask_b32 v{THRV}, 5, 4, vcc')
    a(f's_lshl_b32 {t0}, {sH}, 2')
    a(f's_add_u32 {t0}, {t0}, {CNT+32}')
    a(f'v_mov_b32 v{FO}, {t0}')
    a(f'v_xor_b32 v{FP}, 8, v{FO}')
    a(f'v_mov_b32 v{ONE}, 1')
    a('s_mov_b32 s44, 0\ns_mov_b32 s45, -1')
    a(f'v_bfe_u32 v{INC}, v1, 1, 1')
    a(f'v_cmp_eq_u32 vcc, s56, v{INC}')
    if cfg.uni == 2:
        a('s_mov_b32 s61, 4')
        a('s_mul_i32 s59, s56, -6144')
        a('s_add_u32 s59, s59, 24576')
    else:
        a('s_add_u32 s61, s56, 3')
        a('s_mov_b32 s59, -6144')
    a('s_mov_b32 s43, 0')
    a(f'v_cndmask_b32 v{INC}, 0, 1, vcc')
    a(f'v_mov_b32 v{THR}, v{INC}')

def cons_main(a, cfg, slow):
    sH = 's40'
    t0, t1 = 's41', 's42'
    RET = 's[60:61]'
    sR = 's43'
    LIN, REC, WVA, XA = 2, 3, 8, 9
    CA0, CA1, CT0, CT1 = B.C.CA0, B.C.CA1, B.C.CT0, B.C.CT1
    AP, U, LA, OP = B.C.AP, B.C.U, B.C.LA, B.C.OP
    WV = B.C.WV
    T2 = 248
    Z = 'Z' if slow else 'C'
    prog = cfg.prog
    OOL = []
    MX = 160
    if slow:
        xv = cfg.xv; cfg = Cfg(); cfg.stamps = False; cfg.xv = xv
        a('Z_sy3:')
        a('ds_read_b32 v15, v14')
        a('s_waitcnt lgkmcnt(0)')
        a('v_readfirstlane_b32 s50, v15')
        a('s_and_b32 s50, s50, 0xff')
        a('s_cmp_lt_u32 s50, 4')
        a('s_cbranch_scc1 Z_sy3')
        a(f'v_mov_b32 v{MX}, {f32(-3e38)}')
    WA0, FLA, XO, XP, FO, FP, ONE, MRA, THRV, XLW, XLR = EPI_REGS
    for s in range(6): a(f'ds_read_b128 {vr(AP+4*s,4)}, v{XA} offset:{32*s}')
    if slow:
        a(f's_lshl_b32 {t0}, s56, 3\ns_add_u32 {t0}, {t0}, {PF}')
        a(f'v_mov_b32 v10, {t0}')
        a(f's_mov_b32 {sR}, 1')
        a('s_waitcnt lgkmcnt(0)')
        arrive(a, 4, 14, 15)
    if slow:
        a(f's_lshl_b32 {t0}, s55, 8\ns_add_u32 {t0}, {t0}, s2\ns_lshl_b32 {t0}, {t0}, 3\ns_add_u32 {t0}, {t0}, {MREC}')
        a(f'v_and_b32 v{MRA}, 15, v1')
        a(f'v_lshlrev_b32 v{MRA}, 13, v{MRA}')
        a(f'v_add_u32 v{MRA}, {t0}, v{MRA}')
    wvr = [f'ds_read_b64_tr_b16 {vr(WV+(tt*3+t)*4+2*sec,2)}, v{WA0} offset:{t*1536+sec*384+tt*32}'
           for t in range(3) for tt in range(2) for sec in range(2)]
    if not slow:
        VF, THR, INC = T2+4, 246, 247
        sAdv, sStop = 's60', 's61'
        flag = f'ds_read_b32 v{VF}, v{FLA}'
        def waitloop(tag, go, prio=None):
            a(f'{tag}:')
            if cfg.wsl: a(f's_sleep {cfg.wsl}')
            a(flag)
            a('s_waitcnt lgkmcnt(0)')
            a(f'v_cmp_lt_u32 vcc, v{VF}, v{THR}')
            a(f's_cbranch_vccnz {tag}')
            for s_ in range(6): a(B.ka(0, s_))
            a(f's_branch {go}')
        def check(wait, go):
            a('s_waitcnt lgkmcnt(6)')
            a(f'v_cmp_lt_u32 vcc, v{VF}, v{THR}')
            a(f's_cbranch_vccnz {wait}')
            a(f'{go}:')
        class Lst:
            def __init__(s_): s_.l = []
            def __call__(s_, t): s_.l += [x.strip() for x in t.split('\n') if x.strip()]
        hook = Lst()
        if not cfg.prog: arrive(hook, 17, 14, 15)
        mk_tag(hook, T2+1)
        a(flag)
        for s_ in range(6): a(B.ka(0, s_))
        a(f'v_mov_b32 v14, {CNT + 4*4}')
        a('s_waitcnt lgkmcnt(7)')
        a('s_mov_b64 exec, 1')
        a(f'ds_add_u32 v14, v{ONE}')
        a('s_mov_b64 exec, -1')
        if cfg.cpp or cfg.cmain: a(f's_setprio {cfg.cmain}')
        a('C_loop:')
        check('C_wait', 'C_go')
        if cfg.stamps and not cfg.b2:
            pass
        if cfg.b2 and not cfg.etr:
            for j in (11, 12, 13): a(f's_mov_b64 s[{STAMP0+2*j}:{STAMP0+2*j+1}], s[{STAMP0+2*j+2}:{STAMP0+2*j+3}]')
            a(f"{TM(cfg)} s[{STAMP0+28}:{STAMP0+29}]")
        top = ([f's_setprio {cfg.ctop}'] if cfg.ctop else []) + [f's_add_u32 {sR}, {sR}, 1', f'v_add_u32 v{THR}, v{THR}, v{INC}', f's_cmp_eq_u32 {sR}, 4', f's_cselect_b32 {sAdv}, s59, 24576'] + ([f'ds_write_b32 v{FO}, v{CA0} offset:16'] if cfg.prog else [])
        advl = [f'v_add_u32 v{r}, {sAdv}, v{r}' for r in (CA0, CA1, CT0, CT1)]
        for l in B.cons2p(advl, flag, top): a(l)
        if cfg.stamps:
            for j in (5, 6): a(f's_mov_b64 s[{STAMP0+2*j}:{STAMP0+2*j+1}], s[{STAMP0+2*j+2}:{STAMP0+2*j+3}]')
            stamp(a, cfg, 7)
        a(f's_cmp_eq_u32 {sR}, {sStop}')
        a('s_cbranch_scc1 C_done')
        a(f's_load_dword s47, {SDBG}, 0')
        a('s_branch C_loop')
        waitloop('C_wait', 'C_go')
        a('C_done:')
        a('s_cmp_eq_u32 s47, 0')
        a('s_cbranch_scc1 C_getnonce')
        a('C_getnonce_d:')
        def specloop(tag, go):
            a(f'{tag}:')
            a(flag)
            for s_ in range(6): a(B.ka(0, s_))
            a('s_waitcnt lgkmcnt(6)')
            a(f'v_cmp_lt_u32 vcc, v{VF}, v{THR}')
            a(f's_cbranch_vccz {go}')
            a(f's_branch {tag}')
        if cfg.uni:
            a(f'v_mov_b32 v{THR}, v{THRV}')
            stamp(a, cfg, 4)
            check('C_w13', 'C_g13')
            stamp(a, cfg, 8)
            a('s_setprio 3')
            for l in (B.cons1x(wvr, True, hook.l) if cfg.uni == 2 else B.cons2x(wvr, 24576, True, hook.l)): a(l)
            OOL.append(lambda: (specloop if cfg.spec else waitloop)('C_w13', 'C_g13'))
        else:
            a('s_cmp_eq_u32 s56, 0')
            a('s_cbranch_scc1 C_r3s')
            a(f'v_mov_b32 v{THR}, v{THRV}')
            stamp(a, cfg, 4)
            check('C_w13', 'C_g13')
            stamp(a, cfg, 8)
            a('s_setprio 3')
            for l in B.cons2x(wvr, 24576, True, hook.l): a(l)
            a('s_branch C_epi')
            (specloop if cfg.spec else waitloop)('C_w13', 'C_g13')
            waitloop('C_w12', 'C_g12')
            (specloop if cfg.spec else waitloop)('C_w16', 'C_g16')
            a('C_r3s:')
            check('C_w12', 'C_g12')
            adv = [f'v_add_u32 v{r}, 24576, v{r}' for r in (CA0, CA1, CT0, CT1)]
            for l in B.cons1p(adv, flag, hook.l + [f'v_mov_b32 v{THR}, v{THRV}']): a(l)
            stamp(a, cfg, 4)
            check('C_w16', 'C_g16')
            stamp(a, cfg, 8)
            a('s_setprio 3')
            for l in B.cons1x(wvr, True): a(l)
    if slow:
        if cfg.cpp: a(f's_setprio {cfg.cmain}')
        a(f's_call_b64 {RET}, {Z}_blk')
        stamp(a, cfg, 5)
        a(f's_load_dword s47, {SDBG}, 0')
        if cfg.c2 is not None: a(f's_setprio {cfg.c2}')
        a(f's_call_b64 {RET}, {Z}_blk')
        stamp(a, cfg, 6)
        if prog: a(f'ds_write_b32 v{FO}, v{CA0} offset:16')
        else: arrive(a, 17, 14, 15)
        a('s_cmp_eq_u32 s47, 0')
        a(f's_cbranch_scc1 {Z}_getnonce')
        a(f'{Z}_getnonce_d:')
        mk_tag(a, T2+1)
        if cfg.c3 is not None: a(f's_setprio {cfg.c3}')
        a(f's_call_b64 {RET}, {Z}_blk')
        stamp(a, cfg, 7)
        if cfg.c4 is not None: a(f's_setprio {cfg.c4}')
        def lastwait(tag):
            a(f'{tag}:')
            a(f'ds_read_b32 v{T2+4}, v{FLA}')
            a('s_waitcnt lgkmcnt(0)')
            a(f'v_cmp_lt_u32 vcc, v{T2+4}, v{THRV}')
            a(f's_cbranch_vccnz {tag}')
            stamp(a, cfg, 8)
            a('s_setprio 3')
        a('s_cmp_eq_u32 s56, 0')
        a(f's_cbranch_scc1 {Z}_r3s')
        a(f's_call_b64 {RET}, {Z}_blk')
        a(f's_mov_b32 s51, {(13 - 18) * 6144}')
        for r in (CA0, CA1, CT0, CT1): a(f'v_add_u32 v{r}, s51, v{r}')
        stamp(a, cfg, 4)
        lastwait(f'{Z}_r4w1')
        if slow:
            for l in slow_tile(0) + slow_tile(24576) + autowait(wvr, final=0): a(l)
        else:
            for l in B.cons2x(wvr, 24576): a(l)
        a(f's_branch {Z}_epi')
        a(f'{Z}_r3s:')
        a(f'v_mov_b32 v10, {PF}')
        a(f'{Z}_r3w:')
        a(f'ds_read_b32 v{T2+4}, v10')
        a('s_waitcnt lgkmcnt(0)')
        a(f'v_readfirstlane_b32 s50, v{T2+4}')
        a('s_cmp_lt_u32 s50, 4')
        a(f's_cbranch_scc1 {Z}_r3w')
        adv = [f'v_add_u32 v{r}, 24576, v{r}' for r in (CA0, CA1, CT0, CT1)]
        for l in (slow_tile(0) + adv if slow else B.cons1(extra_mid=adv)): a(l)
        stamp(a, cfg, 4)
        lastwait(f'{Z}_r4w0')
        if slow:
            for l in slow_tile(0) + autowait(wvr, final=0): a(l)
        else:
            for l in B.cons1x(wvr): a(l)
    a(f'{Z}_epi:')
    stamp(a, cfg, 9)
    if slow:
        a(f's_lshl_b32 {t0}, {sH}, 7')
        a(f's_add_u32 {t0}, {t0}, {TOT}')
        a(f'v_and_b32 v{MX+1}, 31, v1')
        a(f'v_lshlrev_b32 v{MX+1}, 2, v{MX+1}')
        a(f'v_add_u32 v{MX+1}, {t0}, v{MX+1}')
        a(f'ds_write_b32 v{MX+1}, v{MX}')
        a('s_waitcnt lgkmcnt(0)')
        lds_sync(a, 18, 'Z_sy18', MX+2, MX+3)
        a(f'v_xor_b32 v{MX+1}, {256+64}, v{MX+1}')
        a(f'ds_read_b32 v{MX+2}, v{MX+1}')
        a('s_waitcnt lgkmcnt(0)')
        for l in slow_rescale(MX+2): a(l)
        a(f'v_mov_b32 v{MX+1}, s47')
        a('s_mov_b32 exec_lo, 0\ns_mov_b32 exec_hi, 0xffff')
        a(f'buffer_store_dwordx2 {vr(MX,2)}, v{MRA}, {RWS}, 0 offen sc1')
        a('s_mov_b64 exec, -1')
    UP, CX, RX, RS = 96, 120, 128, 144
    def cvtU(t): return [f'v_cvt_pk_bf16_f32 v{UP+8*t+i}, v{U+16*t+2*i}, v{U+16*t+2*i+1}' for i in range(8)]
    def pj(src, tt, t, first=False):
        return f'{MF16} {vr(CX+4*tt,4)}, {vr(WV+(tt*3+t)*4,4)}, {vr(src,4)}, {"0" if first else vr(CX+4*tt,4)}'
    def snd(t, hi): return f'ds_write_b128 v{XP}, {vr(UP+8*t+4*hi,4)} offset:{1024*t+256*hi}'
    def own(t): return f'ds_read_b128 {vr(RS+4*t,4)}, v{XO} offset:{1024*t}'
    EN = T2
    enc = [f'v_cndmask_b32 v{EN}, v{LA}, v{LA+1}, s[44:45]', f'v_and_b32 v{EN+2}, s46, v{EN}', f'v_sub_f32 v{EN}, v{EN}, v{EN+2}',
           f'v_cndmask_b32 v{EN}, v{EN+2}, v{EN}, s[52:53]', f'v_bfi_b32 v{EN}, s46, v{EN}, v{T2+1}']
    c0, c1, c2 = cvtU(0), cvtU(1), cvtU(2)
    E = [enc, f'ds_write_b32 v{XLW}, v{EN} offset:3072',
         c0[:4], snd(0,0), c0[4:], snd(0,1), c1[:4], snd(1,0), own(0), c1[4:], snd(1,1), c2[:4], snd(2,0), own(1), c2[4:], snd(2,1),
         f'ds_write_b32 v{FP}, v{ONE}', own(2)]
    if cfg.xv == 0:
        def swp(t): return [f'v_permlane16_swap_b32 v{UP+8*t+i}, v{UP+8*t+4+i}' for i in range(4)]
        def snd(t, hi=0): return f'ds_write_b128 v{XP}, {vr(UP+8*t+4,4)} offset:{1024*t}'
        E = [enc, f'ds_write_b32 v{XLW}, v{EN} offset:3072',
             c0, c1[:2], swp(0), c1[2:4], snd(0), c1[4:8], c2[:2], swp(1), c2[2:4], snd(1), c2[4:8], 's_nop 0', swp(2), 's_nop 0', snd(2),
             f'ds_write_b32 v{FP}, v{ONE}']
    for l in flat(E):
        if cfg.etr and not slow and l == snd(0,0): a(f"{TM(cfg)} s[{STAMP0+22}:{STAMP0+23}]")
        if cfg.etr and not slow and l.startswith(f'ds_write_b32 v{FP}'): a(f"{TM(cfg)} s[{STAMP0+24}:{STAMP0+25}]")
        a(l)
    def poll():
        a(f'ds_read_b32 v15, v{FO}')
        for t in range(3): a(f'ds_read_b128 {vr(RX+4*t,4)}, v{XO} offset:{3072+1024*t}')
        a(f'ds_read_b32 v{RX+12}, v{XLR} offset:6144')
    if cfg.xv == 0:
        mm = [pj(UP,0,0,True), pj(UP,1,0,True), pj(UP+8,0,1), pj(UP+8,1,1), pj(UP+16,0,2), pj(UP+16,1,2)]
        for l in mm[:cfg.xd]: a(l)
        poll()
        for l in mm[cfg.xd:]: a(l)
    else:
        poll()
        a('s_waitcnt lgkmcnt(7)')
        a(pj(RS,0,0,True)); a(pj(RS,1,0,True)); a(pj(RS+4,0,1)); a(pj(RS+4,1,1))
        a('s_waitcnt lgkmcnt(5)')
        a(pj(RS+8,0,2)); a(pj(RS+8,1,2))
    if cfg.etr and not slow: a(f"{TM(cfg)} s[{STAMP0+26}:{STAMP0+27}]")
    a(f'{Z}_xw:')
    a('s_waitcnt lgkmcnt(4)')
    a('v_cmp_eq_u32 vcc, 0, v15')
    a(f's_cbranch_vccnz {Z}_xr')
    if cfg.etr and not slow: a(f"{TM(cfg)} s[{STAMP0+28}:{STAMP0+29}]")
    for t in range(3):
        a(f's_waitcnt lgkmcnt({3-t})')
        a(pj(RX+4*t,0,t)); a(pj(RX+4*t,1,t))
    a('s_waitcnt lgkmcnt(0)')
    a(f'v_cndmask_b32 v{EN}, v{EN}, v{RX+12}, s[44:45]')
    a(f'v_cvt_pk_bf16_f32 v{CX}, v{CX}, v{CX+1}')
    a(f'v_cvt_pk_bf16_f32 v{CX+1}, v{CX+2}, v{CX+3}')
    a(f'v_mov_b32 v{CX+3}, v{EN}')
    a(f'v_cvt_pk_bf16_f32 v{CX+2}, v{CX+4}, v{CX+5}')
    a(f'v_cvt_pk_bf16_f32 v{CX+4}, v{CX+6}, v{CX+7}')
    a(f'v_permlane32_swap_b32 v{CX+2}, v{CX+4}')
    a(f'buffer_store_dwordx4 {vr(CX,4)}, v{REC}, {RWS}, 0 offen sc1')
    stamp(a, cfg, 10)
    a('s_cmp_ge_u32 s2, 16')
    a('s_cbranch_scc1 L_exit')
    if slow:
        a(f'v_mov_b32 v14, {CNT + 4*7}')
        a(f'v_mov_b32 v15, 0x101')
        a('s_mov_b64 exec, 1')
        a('ds_add_u32 v14, v15')
        a('s_mov_b64 exec, -1')
        a('s_setprio 0')
        a('s_branch Z_comb')
        a('Z_xr:'); poll(); a('s_branch Z_xw')
        nonce_slow(a, 'Z_getnonce', 'Z_getnonce_d', T2)
        a('Z_wait:')
        a('s_sleep 1')
        a('Z_blk:')
        a(f'ds_read_b64 {vr(T2+4,2)}, v10')
        a('s_waitcnt lgkmcnt(0)')
        a(f'v_min_u32 v{T2+4}, v{T2+4}, v{T2+5}')
        a(f'v_readfirstlane_b32 s50, v{T2+4}')
        a(f's_cmp_lt_u32 s50, {sR}')
        a('s_cbranch_scc1 Z_wait')
        for l in slow_tile(0) + slow_tile(6144) + B.adv(): a(l)
        a(f's_add_u32 {sR}, {sR}, 1')
        a(f's_setpc_b64 {RET}')
        return
    arrive(a, 7, 14, 15)
    a('s_setprio 0')
    a('s_branch L_comb')
    a('C_xr:'); poll(); a('s_branch C_xw')
    for f in OOL: f()

def tag_halves(a):
    a('s_bfe_u32 s50, s47, 0xe0001')
    a('s_and_b32 s51, s47, 0x8000')
    a('s_or_b32 s50, s50, s51')
    a('s_lshr_b32 s46, s47, 15')
    a('s_and_b32 s46, s46, 0x8000')
    a('s_bfe_u32 s51, s47, 0xe0010')
    a('s_or_b32 s51, s51, s46')

def mk_tag(a, v):
    tag_halves(a)
    a('s_mov_b32 s46, 0xffff0000')
    a(f'v_mov_b32 v{v}, s50')
    a(f'v_mov_b32 v{v+1}, s51')
    a(f'v_cndmask_b32 v{v}, v{v}, v{v+1}, s[52:53]')

def comb_tag(a, v):
    tag_halves(a)
    a('s_mov_b32 s48, 0xaaaaaaaa\ns_mov_b32 s49, 0xaaaaaaaa')
    a(f'v_mov_b32 v{v}, s50')
    a(f'v_mov_b32 v{v+1}, s51')
    a(f'v_cndmask_b32 v{v}, v{v}, v{v+1}, s[48:49]')

def comb_q(a):
    a('v_and_b32 v6, 15, v1')
    a('s_lshl_b32 s43, s3, 4')
    a('v_add_u32 v6, s43, v6')
    a('v_min_u32 v6, 95, v6')
    a('s_mul_i32 s44, s2, 96')
    a('v_add_u32 v6, s44, v6')
    a('v_lshlrev_b32 v6, 1, v6')
    a(f'global_load_ushort v7, v6, {SQ}')

def comb_setup(a, withq=True):
    if withq: comb_q(a)
    a('v_lshl_add_u32 v29, v16, 3, v28')
    a('v_mul_u32_u24 v29, 192, v29')
    a('v_lshl_add_u32 v29, v19, 3, v29')
    a('s_lshl_b32 s45, s3, 5')
    a(f'v_add_u32 v14, s45, v29')
    a('v_and_b32 v28, 15, v1')
    a('v_mul_u32_u24 v15, 384, v16')
    a('v_lshl_add_u32 v15, v28, 4, v15')
    a('s_mul_i32 s45, s3, 1536')
    a(f's_add_u32 s45, s45, {FIN}')
    a(f'v_add_u32 v15, s45, v15')
    a('v_and_b32 v29, 7, v1')
    a('v_lshlrev_b32 v8, 2, v29')
    a('s_mov_b32 s45, 0x75316240')
    a('v_bfe_u32 v8, s45, v8, 4')
    a('v_add_u32 v8, 48, v8')
    a('v_cmp_lt_u32 vcc, 7, v28')
    a('v_lshlrev_b32 v17, 6, v16')
    a('v_cndmask_b32 v8, v29, v8, vcc')
    a('v_lshl_add_u32 v8, v8, 3, v17')
    a(f'v_add_u32 v8, {FIN}, v8')
    a('s_lshl_b32 s45, s3, 8')
    a(f's_add_u32 s45, s45, {CTX}')
    a('v_lshlrev_b32 v9, 2, v28')
    a('v_mad_u32_u24 v9, v16, 48, v9')
    a('v_mov_b32 v29, 192')
    a('v_cmp_lt_u32 vcc, 11, v28')
    a('v_lshlrev_b32 v10, 4, v16')
    a('v_add_u32 v10, s45, v10')
    a('v_cndmask_b32 v9, v9, v29, vcc')
    a('v_add_u32 v9, s45, v9')

def gen_slow_combine(a, cfg):
    D, ACC, T = 32, 20, 28
    MA, MW = 64, 96
    a('Z_comb:')
    a('v_lshlrev_b32 v2, 4, v1')
    a(f's_mul_i32 s40, s2, {65536 + cfg.skew}')
    a('s_lshl_b32 s41, s3, 13')
    a('s_add_u32 s40, s40, s41')
    a('s_add_u32 s41, s40, 4096')
    a('v_lshrrev_b32 v16, 4, v1')
    a('v_bfe_u32 v28, v1, 2, 2')
    a('v_and_b32 v19, 3, v1')
    a('v_lshlrev_b32 v3, 11, v28')
    a('v_lshl_add_u32 v4, v16, 3, v3')
    a('v_lshl_add_u32 v3, v16, 9, v3')
    a('v_lshl_add_u32 v3, v19, 7, v3')
    a(f's_lshl_b32 s42, s2, 13\ns_add_u32 s42, s42, {MREC}')
    a(f's_lshl_b32 s52, s3, 8\ns_add_u32 s52, s52, s42')
    comb_setup(a)
    comb_tag(a, 12)
    for i in range(8): a(f'v_mov_b32 v{ACC+i}, 0')
    a('s_branch Z_poll')
    a('Z_again:')
    a('s_sleep 4')
    a('Z_poll:')
    for i in range(8): a(f'buffer_load_dwordx4 {vr(D+4*i,4)}, v2, {RWS}, {"s40" if i<4 else "s41"} offen offset:{1024*(i%4)} sc1')
    for i in range(8): a(f'buffer_load_dwordx4 {vr(MA+4*i,4)}, v3, {RWS}, s42 offen offset:{16*i} sc1')
    for i in range(8): a(f'buffer_load_dwordx2 {vr(MW+2*i,2)}, v4, {RWS}, s52 offen offset:{32*i} sc1')
    a('s_waitcnt vmcnt(0)')
    a(f'v_mov_b32 v{T}, 0')
    for i in range(8):
        a(f'v_xor_b32 v{T+1}, v12, v{D+4*i+3}')
        a(f'v_and_b32 v{T+1}, 0xffff, v{T+1}')
        a(f'v_or_b32 v{T}, v{T}, v{T+1}')
    for t in [MA+2*i+1 for i in range(16)] + [MW+2*i+1 for i in range(8)]:
        a(f'v_xor_b32 v{T+1}, s47, v{t}')
        a(f'v_or_b32 v{T}, v{T}, v{T+1}')
    a(f'v_cmp_ne_u32 vcc, 0, v{T}')
    a('s_nop 4')
    a('s_cbranch_vccnz Z_again')
    M = MA
    for i in range(1, 16): a(f'v_max_f32 v{M}, v{M}, v{MA+2*i}')
    a('s_nop 1')
    a(f'v_mov_b32_dpp v{M+1}, v{M} quad_perm:[1,0,3,2] row_mask:0xf bank_mask:0xf')
    a(f'v_max_f32 v{M}, v{M}, v{M+1}')
    a('s_nop 1')
    a(f'v_mov_b32_dpp v{M+1}, v{M} quad_perm:[2,3,0,1] row_mask:0xf bank_mask:0xf')
    a(f'v_max_f32 v{M}, v{M}, v{M+1}')
    def allrows(r, op):
        for sw in ('v_permlane16_swap_b32', 'v_permlane32_swap_b32'):
            a(f'v_mov_b32 v{T}, v{r}')
            a('s_nop 1')
            a(f'{sw} v{r}, v{T}')
            a('s_nop 1')
            a(f'{op} v{r}, v{r}, v{T}')
    allrows(M, 'v_max_f32')
    a('s_mov_b32 s46, 0xffff0000')
    for i in range(8):
        a(f'v_sub_f32 v{MW+2*i}, v{MW+2*i}, v{M}')
        a(f'v_exp_f32 v{MW+2*i}, v{MW+2*i}')
        a('s_nop 1')
        for j in range(4):
            a(f'v_lshlrev_b32 v{T}, 16, v{D+4*i+j}')
            a(f'v_and_b32 v{T+1}, s46, v{D+4*i+j}')
            if j < 3: a(f'v_fmac_f32 v{ACC+2*j}, v{T}, v{MW+2*i}')
            a(f'v_fmac_f32 v{ACC+2*j+1}, v{T+1}, v{MW+2*i}')
    for j in range(8): allrows(ACC+j, 'v_add_f32')
    a('v_cmp_eq_u32 vcc, 0, v16')
    a('s_nop 1')
    for j in range(4): a(f'v_cndmask_b32 v{ACC+j}, v{ACC+4+j}, v{ACC+j}, vcc')
    a('s_nop 1')
    a('s_branch K_red')

def gen_combine(a, cfg):
    D, ACC, T = 128, 20, 28
    NS = 9
    a('L_comb:')
    if cfg.trp: a('s_branch L_exit')
    a('v_lshlrev_b32 v2, 4, v1')
    a(f's_mul_i32 s40, s2, {65536 + cfg.skew}')
    a('s_lshl_b32 s41, s3, 13')
    a('s_add_u32 s40, s40, s41')
    a('s_add_u32 s41, s40, 4096')
    def load(i):
        a(f'buffer_load_dwordx4 {vr(D+4*i,4)}, v2, {RWS}, {"s40" if i<4 else "s41"} offen offset:{1024*(i%4)} sc1' + (' nt' if cfg.pollnt else ''))
    PM = lambda i: f's[{6+2*i}:{7+2*i}]'
    SEL = 24
    stamp(a, cfg, 11)
    if cfg.ktrace:
        for j in list(range(1, 8)) + [12]: a(f's_mov_b64 s[{STAMP0+2*j}:{STAMP0+2*j+1}], 0')
    if cfg.roll or cfg.dyn: comb_q(a)
    for i in range(8): load(i)
    a('v_lshrrev_b32 v16, 4, v1')
    a('v_bfe_u32 v28, v1, 2, 2')
    a('v_and_b32 v19, 3, v1')
    comb_setup(a, not (cfg.roll or cfg.dyn))
    comb_tag(a, 12)
    a('v_and_b32 v29, 1, v1')
    a('v_lshlrev_b32 v29, 4, v29')
    a('v_mov_b32 v17, 0x3f80')
    a('v_lshlrev_b32 v29, v29, v17')
    a('v_lshrrev_b32 v28, 1, v28')
    for r in range(4):
        a(f'v_cmp_eq_u32 vcc, {r}, v28')
        a(f'v_cndmask_b32 v{SEL+r}, 0, v29, vcc')
    if cfg.dyn:
        K = cfg.dyn
        J = lambda k: f's{6+k}'
        for i in range(4): a(f'v_mov_b32 v{ACC+i}, 0')
        a('s_mov_b32 s42, 0xff')
        a('s_mov_b32 s43, 7')
        def pick(k):
            a('s_lshl_b32 s44, -2, s43')
            a('s_and_b32 s44, s44, s42')
            a('s_cselect_b32 s44, s44, s42')
            a('s_ff1_i32_b32 s43, s44')
            a('s_lshl_b32 s44, s43, 10')
            a('s_add_u32 s44, s44, s40')
            a(f's_mov_b32 {J(k)}, s43')
            a(f'buffer_load_dwordx4 {vr(D+4*k,4)}, v2, {RWS}, s44 offen sc1')
        for i in range(8):
            a(f's_waitcnt vmcnt({7-i+min(i,K)})')
            if i == 0: stamp(a, cfg, 12)
            a(f'v_cmp_ne_u16 vcc, v12, v{D+4*i+3}')
            a(f's_cbranch_vccnz K_f{i}')
            a(f'{MF16} {vr(ACC,4)}, {vr(SEL,4)}, {vr(D+4*i,4)}, {vr(ACC,4)}')
            a(f's_bitset0_b32 s42, {i}')
            if i == 7:
                a('s_cmp_eq_u32 s42, 0')
                a('s_cbranch_scc1 K_red0')
            a(f'K_f{i}:')
            if i < K: pick(i)
        a('K_chk:')
        for k in range(K):
            a(f's_waitcnt vmcnt({K-1})')
            if cfg.ktrace and k == 0:
                a('s_waitcnt lgkmcnt(0)')
                for j in range(1, 7): a(f's_mov_b64 s[{STAMP0+2*j}:{STAMP0+2*j+1}], s[{STAMP0+2*j+2}:{STAMP0+2*j+3}]')
                a(f's_mov_b64 s[{STAMP0+14}:{STAMP0+15}], s[{STAMP0+24}:{STAMP0+25}]')
                stamp(a, cfg, 12)
            a(f'v_cmp_ne_u16 vcc, v12, v{D+4*k+3}')
            a(f's_cbranch_vccnz K_n{k}')
            a(f's_bitcmp0_b32 s42, {J(k)}')
            a(f's_cbranch_scc1 K_n{k}')
            a(f'{MF16} {vr(ACC,4)}, {vr(SEL,4)}, {vr(D+4*k,4)}, {vr(ACC,4)}')
            a(f's_bitset0_b32 s42, {J(k)}')
            a('s_cmp_eq_u32 s42, 0')
            a('s_cbranch_scc1 K_red0')
            a(f'K_n{k}:')
            pick(k)
        a('s_branch K_chk')
        a('K_red0:')
        a('s_nop 4')
    elif cfg.roll:
        for i in range(4): a(f'v_mov_b32 v{ACC+i}, 0')
        a('s_mov_b32 s42, 0xff')
        a('K_chk:')
        for i in range(8):
            a('s_waitcnt vmcnt(7)')
            if cfg.ktrace and i == 0:
                a('s_waitcnt lgkmcnt(0)')
                for j in range(1, 7): a(f's_mov_b64 s[{STAMP0+2*j}:{STAMP0+2*j+1}], s[{STAMP0+2*j+2}:{STAMP0+2*j+3}]')
                a(f's_mov_b64 s[{STAMP0+14}:{STAMP0+15}], s[{STAMP0+24}:{STAMP0+25}]')
            if i == 0: stamp(a, cfg, 12)
            a(f'v_cmp_ne_u16 vcc, v12, v{D+4*i+3}')
            a('s_cmp_lg_u64 vcc, 0')
            a('s_cselect_b64 exec, -1, 0')
            load(i)
            a('s_mov_b64 exec, -1')
            a(f's_cbranch_scc1 K_n{i}')
            a(f's_bitcmp0_b32 s42, {i}')
            a(f's_cbranch_scc1 K_n{i}')
            a(f'{MF16} {vr(ACC,4)}, {vr(SEL,4)}, {vr(D+4*i,4)}, {vr(ACC,4)}')
            a(f's_bitset0_b32 s42, {i}')
            a('s_cmp_eq_u32 s42, 0')
            a('s_cbranch_scc1 K_red0')
            a(f'K_n{i}:')
        a('s_branch K_chk')
        a('K_red0:')
        a('s_nop 4')
    else:
        a('K_chk:')
        a('s_waitcnt vmcnt(0)')
        if cfg.ktrace:
            a('s_waitcnt lgkmcnt(0)')
            for j in range(1, 7): a(f's_mov_b64 s[{STAMP0+2*j}:{STAMP0+2*j+1}], s[{STAMP0+2*j+2}:{STAMP0+2*j+3}]')
            a(f's_mov_b64 s[{STAMP0+14}:{STAMP0+15}], s[{STAMP0+24}:{STAMP0+25}]')
        stamp(a, cfg, 12)
        for i in range(8):
            a(f'v_cmp_ne_u16 {PM(i)}, v12, v{D+4*i+3}')
            a(f'{MF16} {vr(ACC,4)}, {vr(SEL,4)}, {vr(D+4*i,4)}, {"0" if i == 0 else vr(ACC,4)}')
            if i == 2: a(f's_or_b64 s[50:51], {PM(0)}, {PM(1)}')
            if i > 2: a(f's_or_b64 s[50:51], s[50:51], {PM(i-1)}')
        a(f's_or_b64 s[50:51], s[50:51], {PM(7)}')
        a('s_cbranch_scc1 K_retry')
    a('K_red:')
    stamp(a, cfg, 13)
    a(f'ds_write_b128 v15, {vr(ACC,4)}')
    Bq, C = 40, 56
    a('s_waitcnt lgkmcnt(0)')
    a('s_barrier')
    if cfg.fine: stamp(a, cfg, 15)
    a('s_cmp_ge_u32 s3, 6')
    a('s_cbranch_scc1 L_exit6')
    for k in range(4): a(f'ds_read2st64_b64 {vr(C+4*k,4)}, v8 offset0:{6*k} offset1:{6*k+3}')
    for s in range(3):
        for sec in range(2):
            a(f'ds_read_b64_tr_b16 {vr(Bq+4*s+2*sec,2)}, v14 offset:{s*6144+sec*768}')
    a('v_lshlrev_b32 v7, 16, v7')
    a('s_waitcnt lgkmcnt(8)')
    for i in range(4): a(f'v_add_f32 v{C+i}, v{C+i}, v{C+4+i}')
    a('s_waitcnt lgkmcnt(6)')
    for i in range(4): a(f'v_add_f32 v{C+8+i}, v{C+8+i}, v{C+12+i}')
    for i in (0, 2, 1, 3): a(f'v_add_f32 v{C+i}, v{C+i}, v{C+8+i}')
    a(f'v_add_f32 v{C}, v{C}, v{C+2}')
    a(f'v_add_f32 v{C+1}, v{C+1}, v{C+3}')
    a(f'v_add_f32_dpp v{C+2}, v{C+1}, v{C+1} quad_perm:[1,0,3,2] row_mask:0xf bank_mask:0xf')
    a(f'v_add_f32_dpp v{C+2}, v{C+2}, v{C+2} quad_perm:[2,3,0,1] row_mask:0xf bank_mask:0xf')
    a(f'v_mov_b32_dpp v{C+2}, v{C+2} row_newbcast:12 row_mask:0xf bank_mask:0xf')
    a(f'v_rcp_f32 v{C+2}, v{C+2}')
    a(f'v_mul_f32 v{C}, v{C}, v{C+2}')
    a(f'v_mul_f32 v{C+1}, v{C+1}, v{C+2}')
    a(f'v_cvt_pk_bf16_f32 v{C}, v{C}, v{C+1}')
    a(f'ds_write_b32 v9, v{C}')
    for s in range(3): a(f'ds_read_b128 {vr(C+4+4*s,4)}, v10 offset:{64*s}')
    for s in range(3):
        c = '0' if s == 0 else 'v[88:91]'
        a(f's_waitcnt lgkmcnt({2-s})')
        a(f'{MF16} v[88:91], {vr(C+4+4*s,4)}, {vr(Bq+4*s,4)}, {c}')
    a('v_cvt_pk_bf16_f32 v88, v88, v88')
    a('v_and_b32 v88, 0xffff0000, v88')
    a('v_add_f32 v88, v88, v7')
    a('v_cvt_pk_bf16_f32 v88, v88, v88')
    a('s_mov_b64 exec, 0xffff')
    a('s_waitcnt vmcnt(0)')
    a(f'global_store_short v6, v88, {SOUT}')
    a('s_mov_b64 exec, -1')
    stamp(a, cfg, 14)
    if cfg.diag:
        a('s_memrealtime s[98:99]')
        a('s_waitcnt lgkmcnt(0)')
        a('v_mov_b32 v20, s98\nv_mov_b32 v21, 36')
        a('s_mov_b64 exec, 1')
        a(f'global_atomic_umax v21, v20, {SDBG}')
        a('s_mov_b64 exec, -1')
    a('L_exit:')
    if cfg.diag:
        a('s_cmp_eq_u32 s3, 4')
        a('s_cbranch_scc0 L_end')
        a('s_memrealtime s[98:99]')
        a('s_getreg_b32 s50, hwreg(HW_REG_XCC_ID, 0, 4)')
        a('s_and_b32 s50, s50, 7')
        a('s_lshl_b32 s50, s50, 2')
        a('s_add_u32 s50, s50, 4')
        a('s_waitcnt lgkmcnt(0)')
        a('v_mov_b32 v20, s96\nv_mov_b32 v21, s50\nv_mov_b32 v22, s98\nv_mov_b32 v23, 40')
        a('s_mov_b64 exec, 1')
        a(f'global_store_dword v21, v20, {SDBG}')
        a('s_cmp_lt_u32 s2, 16')
        a('s_cbranch_scc1 L_end')
        a(f'global_atomic_umax v23, v22, {SDBG}')
        a('s_mov_b64 exec, -1')
    stamp_flush(a, cfg)
    a('L_end:')
    a('s_endpgm')
    a('L_exit6:')
    a('s_waitcnt vmcnt(0)')
    a('s_branch L_exit')
    if cfg.roll or cfg.dyn: return
    a('K_retry:')
    if cfg.ksleep: a(f's_sleep {cfg.ksleep}')
    for i in range(8):
        a(f's_cmp_lg_u64 {PM(i)}, 0')
        a('s_cselect_b64 exec, -1, 0')
        load(i)
    a('s_mov_b64 exec, -1')
    a('s_branch K_chk')

def build(cfg):
    a = Asm()
    a.raw(f'; @launch grid=(256,1,1) block=(512,1,1) lds={LDS_BYTES}')
    a.raw('.amdgcn_target "amdgcn-amd-amdhsa--gfx950"')
    a.raw('.text')
    a.raw(f'.globl {KNAME}'); a.raw('.p2align 8'); a.raw(f'.type {KNAME},@function'); a.raw(f'{KNAME}:')
    gen_entry(a, cfg)
    gen_producer(a, cfg)
    gen_consumer(a, cfg)
    gen_combine(a, cfg)
    a.raw('L_codeend:')
    cons_main(a, cfg, True)
    gen_slow_combine(a, cfg)
    txt = a.finish(verbose=True)
    txt = txt.replace('    ; @launch', '; @launch')
    txt += f'''.section .rodata,"a"
.p2align 6
.amdhsa_kernel {KNAME}
  .amdhsa_next_free_vgpr 256
  .amdhsa_next_free_sgpr {102 if cfg.stamps else 100}
  .amdhsa_accum_offset 256
  .amdhsa_group_segment_fixed_size 0
  .amdhsa_kernarg_size 96
  .amdhsa_user_sgpr_count 2
  .amdhsa_user_sgpr_kernarg_segment_ptr 1
  .amdhsa_system_sgpr_workgroup_id_x 1
.end_amdhsa_kernel
'''
    return txt

if __name__ == '__main__':
    cfg = Cfg()
    out = sys.argv[1]
    for o in sys.argv[2:]:
        if '=' in o:
            k, v = o.split('='); setattr(cfg, k, int(v))
        else: setattr(cfg, o, True)
    open(out, 'w').write(build(cfg))
```

```python
import sys, math, struct
from asmlib import Asm, autowait
import blocks as B
from blocks import vr, f32, MF32, MF16, flat

KNAME = 'standalone__detection_seg_mask2former__vision_kernel'

HI = 0
WM = 12 * 6144
QS = 15 * 6144
WQ = 16 * 6144
LO = 110592 + 6144
WREG = LO + 27648
SCR = WREG + 18432
TOT = SCR
PF = SCR + 512
TKT = SCR + 528
CNT = SCR + 544
WST = SCR + 640
XCH = LO
XST = 6912
WO = 0
FIN = 20480
CTX = 32768
LDS_BYTES = SCR + 1024
assert LDS_BYTES <= 163840 and LO <= XCH and XCH + 4 * XST <= WREG
B.C.TB = 6144
LREC = 17 * 256 * 256 + 16 * 4096
MREC = LREC
REC_BYTES = MREC + 16 * 4 * 256 * 8
BOUND = 80.0
THR = BOUND * BOUND / 96 / (1 + 2 ** -8) ** 2
STAMP_OFF = 4 << 20
FSW = sum(((((-(px >> 2)) & 3) ^ ((px >> 1) & 1)) << (2 * px)) for px in range(16))

class Cfg:
    stamps = False
    cyc = False
    repf = 0
    cvar = 0
    g0pos = 1
    fine = 0
    wvpos = 2
    h0pos = 1
    cpp = 0
    cmain = 0
    pp = 0
    deep = 1
    h1early = 0
    pwait = 1
    ksleep = 0
    r1late = 0
    pm = 2
    pv = 0
    pl = 2
    cearly = 0
    trp = 0
    trc = 0
    touch = 3
    t0pre = 0
    wkpos = 2
    dry = 0
    tokpos = -1
    wvr = 2
    ktrace = 0
    pollnt = 0
    roll = 0
    dyn = 5
    diag = 0
    early = 0
    tok2 = 1
    bist = 0
    mfirst = 1
    b2 = 0
    wvar = 0
    etr = 0
    xv = 0
    xd = 2
    fake = 0
    fsc = 0
    wsl = 0
    pk = 0
    uni = 1
    spec = 1
    tlb = 0
    spf = 0
    spn = 15
    wsum = 0
    st2 = 1
    pro = 1
    wmtok = 0
    ctop = 0
    skew = 0
    zl = 0
    tok3 = 1
    prog = 1
    tord = 0
    lopos = -1
    pair = 1
    deep2 = 0
    fl = 0
    mix = 1
    tk6 = 1
    late4 = 0
    c2 = None
    c3 = None
    c4 = None

SQ, SHI, SLO, SWL, SWQ, SWK, SWV, SWO, SWM, SOUT, SDBG, SWS = [f's[{4+2*i}:{5+2*i}]' for i in range(12)]
RHI, RLO, RWS = 's[28:31]', 's[32:35]', 's[36:39]'
SF = 's63'
STAMP0 = 64

def TM(cfg): return 's_memtime' if cfg.cyc else 's_memrealtime'

def stamp(a, cfg, i, inner=False):
    if cfg.b2 and i in (11, 12, 13, 14, 15) : return
    if cfg.bist:
        import inspect
        src = inspect.stack()[1].code_context[0]
        if 'bist' not in src and i in (4, 5, 6, 7, 8, 11, 12, 13, 14) and inspect.stack()[1].function != 'script': return
    if cfg.trp and not inner and i != 0: return
    if inner and not cfg.trp: return
    if cfg.stamps: a(f"{'s_memtime' if cfg.cyc else 's_memrealtime'} s[{STAMP0+2*i}:{STAMP0+2*i+1}]")

def stamp_flush(a, cfg, tmpv=100):
    if not cfg.stamps: return
    a('s_cmp_eq_u32 s100, 0')
    a('s_cbranch_scc1 L_nosl')
    a('s_sleep 100')
    a('L_nosl:')
    a('s_waitcnt lgkmcnt(0)')
    a('s_lshl_b32 s61, s2, 3\ns_add_u32 s61, s61, s3')
    a(f's_lshl_b32 s62, s61, 7')
    a(f's_add_u32 s62, s62, {STAMP_OFF}')
    for i in range(32): a(f'v_mov_b32 v{tmpv+i}, s{STAMP0+i}')
    a(f'v_mov_b32 v{tmpv+32}, 0')
    a('s_mov_b64 exec, 1')
    a('s_mov_b32 s56, s26\ns_mov_b32 s57, s27\ns_mov_b32 s58, 0x1000000\ns_mov_b32 s59, 0x20000')
    for i in range(8):
        a(f'buffer_store_dwordx4 {vr(tmpv+4*i,4)}, v{tmpv+32}, s[56:59], s62 offen offset:{16*i}')
    a('s_mov_b64 exec, -1')

def dma_swz(a, dst, k, tmp, dst2):
    a(f'v_add_u32 v{tmp}, {64*k if isinstance(k,int) else k}, v1')
    a(f'v_mul_u32_u24 v{tmp}, 0xaaab, v{tmp}')
    a(f'v_lshrrev_b32 v{tmp}, 18, v{tmp}')
    a(f'v_and_b32 v{dst2}, 0x1e, v{tmp}')
    a(f'v_bfe_u32 v{tmp}, {SF}, v{dst2}, 2')
    a(f'v_xor_b32 v{tmp}, v{tmp}, v1')
    a(f'v_lshlrev_b32 v{dst}, 4, v{tmp}')

def dma_part(a, ptr, ldsbase, voff, spart):
    lo = int(ptr[2:ptr.index(':')])
    a(f's_add_u32 m0, {spart}, {ldsbase}')
    a(f's_add_u32 s50, s{lo}, 4096')
    for k in range(4): a(f'global_load_lds_dwordx4 v{voff}, {ptr} offset:{1024*k}')
    a(f's_addc_u32 s51, s{lo+1}, 0')
    a(f's_add_u32 m0, {spart}, {ldsbase+4096}')
    a('s_mov_b32 exec_hi, 0')
    a(f'global_load_lds_dwordx4 v{voff}, s[50:51]')
    a('s_mov_b32 exec_hi, -1')

def dma_extra(a, ptr, ldsbase, voff, sbase):
    lo = int(ptr[2:ptr.index(':')])
    a(f's_add_u32 s50, s{lo}, 4096')
    a(f's_addc_u32 s51, s{lo+1}, 0')
    a(f's_add_u32 m0, {sbase}, {ldsbase+4096}')
    a('s_nop 0')
    a(f'global_load_lds_dwordx4 v{voff}, s[50:51]')

def dma_main(a, ptr, ldsbase, voff, sbase):
    a(f's_add_u32 m0, {sbase}, {ldsbase}')
    a('s_nop 0')
    for k in range(4): a(f'global_load_lds_dwordx4 v{voff}, {ptr} offset:{1024*k}')

def arrive(a, which, va, vd, rtn=False):
    a(f'v_mov_b32 v{va}, {CNT + 4*which}')
    a(f'v_mov_b32 v{vd}, 1')
    a('s_mov_b64 exec, 1')
    a(f'ds_add_rtn_u32 v{vd}, v{va}, v{vd}' if rtn else f'ds_add_u32 v{va}, v{vd}')
    a('s_mov_b64 exec, -1')

def await_cnt(a, which, tag, va, vd, n=4, setaddr=True):
    if setaddr: a(f'v_mov_b32 v{va}, {CNT + 4*which}')
    a(f'{tag}:')
    a(f'ds_read_b32 v{vd}, v{va}')
    a('s_waitcnt lgkmcnt(0)')
    a(f'v_readfirstlane_b32 s50, v{vd}')
    a(f's_cmp_lt_u32 s50, {n}')
    a(f's_cbranch_scc1 {tag}')

def lds_sync(a, which, tag, va, vd, n=4):
    arrive(a, which, va, vd, rtn=True)
    a('s_waitcnt lgkmcnt(0)')
    a(f'v_readfirstlane_b32 s50, v{vd}')
    a(f's_cmp_ge_u32 s50, {n-1}')
    a(f's_cbranch_scc1 {tag}_ok')
    await_cnt(a, which, tag + '_spin', va, vd, n, setaddr=False)
    a(f'{tag}_ok:')

def code_prefetch(a, tag, vt, tidoff, sp='s[44:45]', start=KNAME):
    lo = int(sp[2:sp.index(':')])
    a(f's_getpc_b64 {sp}')
    a(f'{tag}:')
    a(f's_add_u32 s{lo}, s{lo}, {start}-{tag}')
    a(f's_addc_u32 s{lo+1}, s{lo+1}, {"-1" if start == KNAME else "0"}')
    a(f'v_add_u32 v{vt}, {tidoff}, v0')
    a(f'v_lshlrev_b32 v{vt}, 7, v{vt}')
    a(f'v_min_u32 v{vt}, L_codeend-{start}-4, v{vt}')
    a(f'global_load_dword v{201 if vt == 0 else vt+1}, v{vt}, {sp}')

def nonce_slow(a, tag, back, v):
    a(f'{tag}:')
    a('s_memrealtime s[50:51]')
    a('s_waitcnt lgkmcnt(0)')
    a('s_or_b32 s47, s50, 1')
    a(f'v_mov_b32 v{v}, s47\nv_mov_b32 v{v+1}, 0\nv_mov_b32 v{v+2}, 0')
    a('s_mov_b64 exec, 1')
    a(f'global_atomic_cmpswap v{v}, v{v+2}, {vr(v,2)}, {SDBG} sc0 sc1')
    a('s_mov_b64 exec, -1')
    a('s_waitcnt vmcnt(0)')
    a(f'v_readfirstlane_b32 s50, v{v}')
    a('s_cmp_eq_u32 s50, 0')
    a('s_cselect_b32 s47, s47, s50')
    a(f's_branch {back}')

def gen_entry(a, cfg):
    a('s_cmp_ge_u32 s2, 256')
    a('s_cbranch_scc1 L_end')
    if cfg.stamps:
        for i in range(32): a(f's_mov_b32 s{STAMP0+i}, 0')
        a('s_mov_b32 s100, 1')
    stamp(a, cfg, 0)
    if cfg.diag: a('s_memrealtime s[96:97]')
    a('s_load_dwordx16 s[4:19], s[0:1], 0')
    a('s_load_dwordx8 s[20:27], s[0:1], 64')
    a('v_lshrrev_b32 v2, 6, v0')
    a('v_and_b32 v1, 63, v0')
    a('v_readfirstlane_b32 s3, v2')
    a(f's_mov_b32 {SF}, {FSW:#x}')
    a(f's_mov_b32 s62, {f32(96.0 if cfg.st2 else 1/96)}')
    a('s_cmp_ge_u32 s3, 4')
    a('s_cbranch_scc1 L_cons')

def gen_producer(a, cfg):
    W0, W1, W2, RA0, RA1, RL0, RL1 = 2, 3, 4, 5, 6, 7, 8
    S0, S1, S2 = 9, 10, 11
    WL, LT, X, F = B.P.WL, B.P.LT, B.P.X, B.P.F
    ID, OP, SM, SL, T = B.P.ID, B.P.OP, B.P.SM, B.P.SL, B.P.T
    FLA, FLV = 14, 15
    U = 232
    F0 = U + 12
    sP = 's3'
    sH0, sHS, sH8, sLo0, sSh = 's40', 's41', 's42', 's43', 's44'
    sSlot, sLoP, RET = 's45', 's46', 's[48:49]'
    t0, t1, t2 = 's52', 's53', 's54'
    M1, O1, M2, O2 = 's55', 's56', 's58', 's59'
    for k, (w, sw) in enumerate(((W0, S0), (W1, S1), (W2, S2))): dma_swz(a, w, k, U, sw)
    a(f'v_lshlrev_b32 v{U+3}, 4, v1')
    for i in range(4): a(f'v_mov_b32 v{U+4+i}, 0')
    a(f'v_add_u32 v{U+8}, {SCR}, v{U+3}')
    a(f'ds_write_b128 v{U+8}, {vr(U+4,4)}')
    a(f's_lshl_b32 s58, s2, 2')
    a(f's_add_u32 s58, s58, {sP}')
    a(f's_mul_i32 {sLo0}, s58, 6144')
    a(f's_mul_i32 {sSlot}, {sP}, 6144')
    a(f's_add_u32 {sLoP}, {sSlot}, {LO}')
    a('s_mov_b32 s34, 7077888\ns_mov_b32 s35, 0x20000')
    a('s_add_u32 s60, s2, 2048')
    a('s_mul_i32 s61, s60, 3072')
    a(f's_cmp_lt_u32 {sP}, 2')
    a(f's_cselect_b32 s55, s61, {sLo0}')
    a(f's_cselect_b32 s56, {LO+8*3072}, {sLoP}')
    a('s_mov_b32 s30, 28311552\ns_mov_b32 s31, 0x20000')
    a(f's_min_u32 {t0}, {sP}, 2')
    a(f's_lshl_b32 s47, {sP}, 2')
    a(f's_add_u32 s47, s47, {t0}')
    a(f's_lshl_b32 s47, s47, 10')
    a(f'v_add_u32 v15, s47, v{U+3}')
    a(f's_mul_i32 {t0}, s58, 43691')
    a(f's_lshr_b32 {t0}, {t0}, 18')
    a(f's_mul_i32 {t0}, {t0}, 73728')
    a(f's_mul_i32 {sH0}, s58, 12288')
    a(f's_add_u32 {sH0}, {sH0}, {t0}')
    a(f's_mul_i32 {t0}, s60, 43691')
    a(f's_lshr_b32 {t0}, {t0}, 19')
    a(f's_add_u32 {t0}, {t0}, {sP}')
    a(f's_mul_i32 {t0}, {t0}, 73728')
    a(f's_mul_i32 {sH8}, s60, 6144')
    a(f's_add_u32 {sH8}, {sH8}, {t0}')
    a(f's_cmp_lt_u32 {sP}, 2')
    a(f's_cselect_b32 s57, {sH8}, {sH0}')
    a(f's_cselect_b32 {sSh}, 1, 0')
    a(f's_cselect_b32 {t0}, 0, 96')
    a(f's_lshr_b32 {sHS}, 6144, {sSh}')
    if cfg.bist: stamp(a, cfg, 12)
    a(f's_cmp_lt_u32 {sP}, 2')
    a('s_waitcnt lgkmcnt(0)')
    if cfg.bist: stamp(a, cfg, 13)
    def half(srd, soff, regs=(W0, W1, W2)):
        return [f'buffer_load_dwordx4 v{w}, {srd}, {soff} offen offset:{1024*k} nt lds' for k, w in enumerate(regs)]
    a('s_mov_b32 s32, s8\ns_mov_b32 s33, s9')
    a('s_cbranch_scc1 P_sm')
    a(f's_add_u32 m0, s56, 3072')
    a(f's_add_u32 {t1}, s55, 3072')
    for l in half(RLO, t1): a(l)
    a('s_branch P_nox')
    a('P_sm:')
    dma_extra(a, SWL, WREG, 15, 's47')
    a('P_nox:')
    dma_main(a, SWL, WREG, 15, 's47')
    a(f's_mov_b32 m0, s56')
    a('s_mov_b32 s28, s6')
    for l in half(RLO, 's55'): a(l)
    a('s_mov_b32 s29, s7')
    SR = (S0, S1, S2)
    def issue_h(soff, rnd, hf, add=0):
        a(f's_add_u32 m0, {sSlot}, {rnd*4*6144+3072*hf}')
        if add + hf:
            a(f's_add_u32 {t0}, {soff}, {add+6144*hf}'); src = t0
        else:
            a('s_nop 0'); src = soff
        for l in half(RHI, src, SR): a(l)
    def issue_first(hf):
        a(f's_add_u32 m0, {sSlot}, {3072*hf}')
        if hf:
            a(f's_add_u32 {t0}, s57, {sHS}'); src = t0
        else:
            a('s_nop 0'); src = 's57'
        for l in half(RHI, src, (F0, F0+1, F0+2)): a(l)
    def issue_first2():
        if not cfg.pair:
            for hf in range(2): issue_first(hf)
            return
        a(f's_cmp_lt_u32 {sP}, 2')
        a('s_cbranch_scc1 P_f1')
        if cfg.pair & 1:
            for hf in range(2):
                issue_h(sH0, 0, hf, 0); issue_h(sH0, 1, hf, 192)
        else:
            for hf in range(2): issue_h(sH0, 0, hf, 0)
            for hf in range(2): issue_h(sH0, 1, hf, 192)
        a('s_branch P_f2')
        a('P_f1:')
        for hf in range(2): issue_first(hf)
        a('P_f2:')
    if cfg.tlb:
        a(f's_load_dword s96, {SHI}, s57')
        a(f's_add_u32 s97, {sH0}, 79000')
        a(f's_min_u32 s97, s97, 28311548')
        a(f's_and_b32 s97, s97, -4')
        a(f's_load_dword s97, {SHI}, s97')
    if cfg.bist: stamp(a, cfg, 11)
    a('s_barrier')
    for k, (w, sw) in enumerate(((W0, S0), (W1, S1), (W2, S2))):
        a(f'v_mad_u32_u24 v{F0+k}, v{sw}, {t0}, v{w}')
        a(f'v_mul_u32_u24 v{sw}, 96, v{sw}')
        a(f'v_add_u32 v{sw}, v{sw}, v{w}')
    stamp(a, cfg, 1)
    a(f'v_and_b32 v{U}, 31, v1')
    a(f'v_lshrrev_b32 v{U+1}, 5, v1')
    def rdaddr(d0, d1, px, base):
        a(f'v_lshlrev_b32 v{U+2}, 1, v{px}')
        a(f'v_and_b32 v{U+2}, 0x1e, v{U+2}')
        a(f'v_bfe_u32 v{U+2}, {SF}, v{U+2}, 2')
        a(f'v_xor_b32 v{U+2}, v{U+2}, v{U+1}')
        a(f'v_xor_b32 v{U+3}, 2, v{U+2}')
        a(f'v_mul_u32_u24 v{U+4}, 192, v{px}')
        a(f'v_add_u32 v{U+4}, {base}, v{U+4}')
        a(f'v_lshl_add_u32 v{d0}, v{U+2}, 4, v{U+4}')
        a(f'v_lshl_add_u32 v{d1}, v{U+3}, 4, v{U+4}')
    rdaddr(RA0, RA1, U, sSlot)
    a(f'v_lshrrev_b32 v{U+5}, {sSh}, v{U}')
    rdaddr(RL0, RL1, U+5, 's56')
    a(f'v_bfe_u32 v14, v1, 2, 2')
    a(f'v_lshl_add_u32 v14, v{U+1}, 3, v14')
    a(f'v_mul_u32_u24 v14, 192, v14')
    a(f'v_bfe_u32 v{U+8}, v1, 4, 1')
    a(f'v_lshl_add_u32 v14, v{U+8}, 5, v14')
    a(f'v_and_b32 v{U+3}, 1, v1')
    a(f'v_lshl_add_u32 v14, v{U+3}, 4, v14')
    a(f'v_bfe_u32 v{U+3}, v1, 1, 1')
    a(f'v_lshl_add_u32 v14, v{U+3}, 3, v14')
    a(f'v_add_u32 v14, {WREG}, v14')
    a(f'v_bfe_u32 v{U+2}, v1, 3, 1')
    a(f'v_and_b32 v{U+3}, 3, v1')
    a(f'v_lshl_add_u32 v{U+2}, v{U+2}, 2, v{U+3}')
    a(f'v_bfe_u32 v{U+3}, v1, 2, 1')
    a(f'v_cmp_eq_u32 vcc, v{U+3}, v{U+1}')
    a(f'v_and_b32 v{U+6}, 1, v{U+2}')
    a(f'v_lshlrev_b32 v{U+6}, 4, v{U+6}')
    a(f'v_mov_b32 v{U+4}, 0x3f80')
    a(f'v_lshlrev_b32 v{U+6}, v{U+6}, v{U+4}')
    a(f'v_cndmask_b32 v{U+6}, 0, v{U+6}, vcc')
    a(f'v_lshrrev_b32 v{U+2}, 1, v{U+2}')
    a(f'v_lshl_add_u32 v{U+2}, v{U+8}, 2, v{U+2}')
    a(f'v_cmp_eq_u32 s[58:59], v{U+3}, v{U+8}')
    a(f'v_mov_b32 v{U+7}, 0x3f803f80')
    if cfg.wsum:
        a(f'v_mov_b32 v{WSA}, {WST+192}')
        a(f'v_mov_b32 v{U+4}, {WST}')
        a(f'v_cndmask_b32 v{WSA}, v{WSA}, v{U+4}, s[58:59]')
        a(f'v_lshl_add_u32 v{WSA}, v{U+1}, 4, v{WSA}')
        a(f's_min_u32 {t0}, {sP}, 2')
        a(f's_lshl_b32 {t0}, {t0}, 5')
        a(f'v_add_u32 v{WSA+1}, {t0}, v{U}')
        a(f'v_mul_u32_u24 v{WSA+2}, 192, v{WSA+1}')
        a(f'v_lshl_add_u32 v{WSA+2}, v{U+1}, 4, v{WSA+2}')
        a(f'v_add_u32 v{WSA+2}, {WREG}, v{WSA+2}')
        a(f'v_lshlrev_b32 v{WSA+1}, 1, v{WSA+1}')
        a(f'v_add_u32 v{WSA+1}, {WST}, v{WSA+1}')
    for i in range(0, 8, 2):
        a(f'v_cmp_eq_u32 vcc, {i}, v{U+2}')
        a(f'v_cmp_eq_u32 s[60:61], {i+1}, v{U+2}')
        a(f'v_cndmask_b32 v{OP+i//2}, 0, v{U+7}, s[58:59]')
        a(f'v_cndmask_b32 v{ID+i}, 0, v{U+6}, vcc')
        a(f'v_cndmask_b32 v{ID+i+1}, 0, v{U+6}, s[60:61]')
    if cfg.dry:
        a('s_mov_b64 exec, 0')
        a(f's_cmp_eq_u32 {sP}, 1')
        a('s_cbranch_scc1 P_dry1')
        a(f's_cmp_eq_u32 {sP}, 2')
        a('s_cbranch_scc1 P_dry2')
        a(f's_cmp_eq_u32 {sP}, 3')
        a('s_cbranch_scc1 P_dryd')
        a(f's_call_b64 {RET}, P_h0')
        a('P_dryd:')
        a('s_mov_b64 exec, -1')
        stamp(a, cfg, 15)
    if cfg.tokpos == 0 and cfg.t0pre < 2:
        await_cnt(a, 5, 'P_sy5', 12, 13, 4)
        for hf in range(cfg.t0pre, 2): issue_h('s57', 0, hf)
        a(f's_waitcnt vmcnt(6)')
    else:
        a(f's_waitcnt vmcnt({3*cfg.t0pre})')
    stamp(a, cfg, 10)
    arrive(a, 0, 12, 13)
    def lo_reads(r0, r1, off=0):
        return [f'ds_read_b128 {vr(X+4*s,4)}, v{r1 if s&1 else r0} offset:{off+64*(s>>1)}' for s in range(6)]
    if cfg.mix:
        a(f's_lshr_b32 {t0}, {sP}, 1')
        a(f's_lshl_b32 {t0}, {t0}, 2')
        a(f's_add_u32 {t0}, {t0}, {CNT + 4*5}')
        a(f'v_mov_b32 v15, {t0}')
        await_cnt(a, 5, 'P_sy5', 15, 13, 4, setaddr=False)
    else:
        await_cnt(a, 5, 'P_sy5', 15, 13, 4)
    issue_first2()
    for l in lo_reads(RL0, RL1): a(l)
    await_cnt(a, 0, 'P_sy0', 12, 13, 4, setaddr=False)
    stamp(a, cfg, 2)
    def wl_reads(t, s):
        return [f'ds_read_b64_tr_b16 {vr(WL+(t*6+s)*4+2*sec,2)}, v14 offset:{s*3072+sec*768+t*64}' for sec in range(2)]
    def lat_mfma(t, s):
        c = '0' if s == 0 else vr(LT+16*t,16)
        return f'{MF32} {vr(LT+16*t,16)}, {vr(WL+(t*6+s)*4,4)}, {vr(X+4*s,4)}, {c}'
    def lateral(first):
        pend = []
        L = [wl_reads(0, s) for s in range(4)] if first else []
        seq = [(t, s) for t in range(3) for s in range(6)]
        for i, (t, s) in enumerate(seq):
            L.append(lat_mfma(t, s))
            if first and i + 4 < 18: L.append(wl_reads(*seq[i+4]))
            if s >= 1: L.append(pend[:4]); del pend[:4]
            if s == 5:
                pend += [f'v_mov_b32 v{SL}, v{LT}' if (t == 0 and j == 0) else f'v_add_f32 v{SL}, v{SL}, v{LT+16*t+j}' for j in range(16)]
        return flat(L), pend
    def sl_fin():
        return [f'v_mov_b32 v{SL+1}, v{SL}', 's_nop 1', f'v_permlane32_swap_b32 v{SL}, v{SL+1}', f'v_add_f32 v{SL}, v{SL}, v{SL+1}']
    L, pend = lateral(True)
    if cfg.wsum == 2:
        for i in range(4): a(f'v_mov_b32 v{U+i}, 0x3f803f80')
        M = []; k = 0
        for l in L:
            M.append(l)
            if l.startswith('v_mfma'):
                k += 1
                if 2 <= k < 8: M.append(f'ds_read_b128 {vr(F+4*(k-2),4)}, v{WSA+2} offset:{32*(k-2)}')
                if k >= 6 and k % 2 == 0 and k < 18:
                    s_ = (k - 6) // 2
                    M.append(f'{MF32} {vr(X+24,16)}, {vr(U,4)}, {vr(F+4*s_,4)}, {"0" if s_ == 0 else vr(X+24,16)}')
        L = M
    L = autowait(L, age=99)
    if cfg.tokpos > 0 and cfg.t0pre < 2:
        k = [i for i, l in enumerate(L) if l.startswith('v_mfma')][cfg.tokpos]
        for l in L[:k]: a(l)
        a('s_waitcnt lgkmcnt(0)')
        await_cnt(a, 5, 'P_sy5', 12, 13, 4)
        for hf in range(cfg.t0pre, 2): issue_h('s57', 0, hf)
        L = L[k:]
    for l in L: a(l)
    if cfg.wsum == 2:
        a(f'v_cvt_pk_bf16_f32 v{X+24}, v{X+24}, v{X+24}')
        a(f'ds_write_b16 v{WSA+1}, v{X+24}')
    if cfg.wsum == 1:
        for s_ in range(6): a(f'ds_read_b128 {vr(F+4*s_,4)}, v{WSA+2} offset:{32*s_}')
        for i in range(4): a(f'v_mov_b32 v{U+i}, 0x3f803f80')
        for l in pend[:8]: a(l)
        del pend[:8]
        for s_ in range(6):
            a(f's_waitcnt lgkmcnt({5-s_})')
            a(f'{MF32} {vr(X,16)}, {vr(U,4)}, {vr(F+4*s_,4)}, {"0" if s_ == 0 else vr(X,16)}')
            for l in pend[:2]: a(l)
            del pend[:2]
    for l in pend + sl_fin(): a(l)
    if cfg.wsum == 1:
        a(f'v_cvt_pk_bf16_f32 v{X}, v{X}, v{X}')
        a(f'ds_write_b16 v{WSA+1}, v{X}')
    if cfg.wsum: a('s_waitcnt lgkmcnt(0)')
    arrive(a, 16, 12, 13)
    stamp(a, cfg, 3)
    a(f's_lshl_b32 {t0}, {sP}, 2')
    a(f's_add_u32 {t0}, {t0}, {PF}')
    a(f'v_mov_b32 v{FLA}, {t0}')
    a(f'v_mov_b32 v{FLV}, 0')
    if cfg.st2: a(f's_mov_b32 s61, {f32(1e-5 * 9216)}')
    if cfg.tok3: await_cnt(a, 6, 'P_sy6', 12, 13, 4)
    a(f's_cmp_lt_u32 {sP}, 2')
    a('s_cbranch_scc0 P_scriptB')
    def script(tag, tiles, lats, los):
        n = len(tiles)
        q = ['h0', 'h1']
        nxt = [2]
        done = set()
        def guard(r):
            if r >= 3 and not done:
                done.add(r); await_cnt(a, 4, f'P_w{tag}{r}', 12, 13, 4)
        def param(M, O):
            h = nxt[0]; r, hf = divmod(h, 2)
            guard(r)
            a(f's_add_u32 {M}, {sSlot}, {r*4*6144+3072*hf}')
            a(f's_add_u32 {O}, {tiles[r][0]}, {tiles[r][1]+6144*hf}')
            nxt[0] += 1
            return f'h{h}'
        def now_h():
            h = nxt[0]; r, hf = divmod(h, 2)
            guard(r)
            issue_h(tiles[r][0], r, hf, tiles[r][1]); nxt[0] += 1
            q.append(f'h{h}')
        def now_lo(key):
            for hf in range(2):
                a(f's_add_u32 m0, {sLoP}, {3072*hf}')
                a(f's_add_u32 {t0}, {sLo0}, {3072*hf}')
                for l in half(RLO, t0): a(l)
                q.append(key if hf else 'lox')
        if cfg.t0pre == 2 and cfg.tok2: await_cnt(a, 5, f'P_sy5{tag}', 12, 13, 4)
        if cfg.pair and tag == 'b':
            q[:] = ['h0', 'h2', 'h1', 'h3'] if cfg.pair & 1 else ['h0', 'h1', 'h2', 'h3']; nxt[0] = 4
        if cfg.late4 != 2:
            for key in los.get(-1, []): now_lo(key)
        for _ in range(cfg.early): now_h()
        for r in range(n):
            ng = min(2, 2*n - nxt[0])
            if r == 1 and cfg.r1late: ng = 1
            new = []
            if cfg.pair:
                ng = 4 if (nxt[0] == 2*r + 2 and nxt[0] < 2*n) else 0
                late = cfg.late4 and tag == 'a' and r == 0
                if late: ng = 0
                if ng:
                    h = nxt[0]; guard(h // 2 + 1)
                    param(M1, O1); param(M2, O2); nxt[0] += 2
                    new = [f'h{h}', f'h{h+2}', f'h{h+1}', f'h{h+3}'] if cfg.pair in (1, 4) else [f'h{h+i}' for i in range(4)]
            elif cfg.deep2 and r == cfg.deep2 - 1:
                ng = 4; h = nxt[0]
                param(M1, O1); nxt[0] += 1; param(M2, O2); nxt[0] += 1
                new = [f'h{h}', f'h{h+1}', f'h{h+2}', f'h{h+3}']
            else:
                if ng >= 1: new.append(param(M1, O1))
                if ng >= 2: new.append(param(M2, O2))
            last = r == n - 1
            if cfg.b2 and r >= 1: a(f"{TM(cfg)} s[{STAMP0+2*(10+r)}:{STAMP0+2*(10+r)+1}]")
            if lats[r] is not None:
                key = lats[r]
                if key in q:
                    i2 = q.index(key)
                    a(f's_waitcnt vmcnt({3*(len(q)-1-i2)})'); del q[:i2+1]
                off = LO - r * 24576
                a(f'v_add_u32 v12, {off}, v{RA0}\nv_add_u32 v13, {off}, v{RA1}')
                a(f's_call_b64 {RET}, P_lat')
            idx = max([q.index(x) for x in (f'h{2*r}', f'h{2*r+1}') if x in q] + [-1])
            if cfg.b2 and lats[r] is not None: a(f"{TM(cfg)} s[{STAMP0+2*(1 if r < 2 else 2)}:{STAMP0+2*(1 if r < 2 else 2)+1}]")
            if last and tag == 'a':
                a(f's_call_b64 {RET}, P_h0w'); break
            a(f's_waitcnt vmcnt({3*(len(q)-1-idx)})'); stamp(a, cfg, 4+r)
            del q[:idx+1]; q.extend(new)
            if last: break
            a(f's_call_b64 {RET}, P_h{ng}')
            if cfg.pair and late:
                if cfg.late4 == 2:
                    for key in los.get(-1, []): now_lo(key)
                for hf in range(2):
                    issue_h(tiles[1][0], 1, hf, tiles[1][1]); issue_h(tiles[2][0], 2, hf, tiles[2][1])
                q.extend(['h2', 'h4', 'h3', 'h5']); nxt[0] = 6
            if r == 1 and cfg.r1late: now_h()
            for key in los.get(r, []): now_lo(key)
            if tag == 'b' and r == cfg.wvr:
                await_cnt(a, 16, 'P_wl', 12, 13, 4)
                a(f's_sub_u32 {t0}, {sP}, 2\ns_mul_i32 {t0}, {t0}, 9216')
                a(f'v_lshlrev_b32 v12, 4, v1\nv_add_u32 v12, {t0}, v12')
                for k in range(3):
                    a(f's_add_u32 m0, {t0}, {WREG+3072*k}')
                    a(f's_add_u32 s50, s16, {3072*k}\ns_addc_u32 s51, s17, 0')
                    for j in range(3): a(f'global_load_lds_dwordx4 v12, s[50:51] offset:{1024*j}')
                    q.append('wv')
                if cfg.touch:
                    a(f's_mov_b32 s36, s26\ns_mov_b32 s37, s27\ns_mov_b32 s38, {REC_BYTES}\ns_mov_b32 s39, 0x20000')
                    if cfg.fl:
                        a('v_and_b32 v12, 7, v1\nv_lshlrev_b32 v12, 17, v12')
                        a('v_lshrrev_b32 v13, 3, v1\nv_lshl_add_u32 v12, v13, 6, v12')
                        a(f's_lshl_b32 {t0}, s2, 9')
                    else:
                        a('v_and_b32 v12, 15, v1\nv_lshlrev_b32 v12, 16, v12')
                        a('v_lshrrev_b32 v13, 4, v1\nv_lshl_add_u32 v12, v13, 6, v12')
                        a(f's_lshl_b32 {t0}, s2, 8')
                    a(f'buffer_load_dword v232, v12, {RWS}, {t0} offen' + (' sc1' if cfg.touch == 3 else ''))
                    a(f'v_mov_b32 v12, 0')
                    a(f'global_load_dword v234, v12, {SOUT}')
                    a(f'global_load_dword v233, v12, {SQ}')
                    q.append('touch')
    TL = [(sH0, 0), (sH0, 192), (sH0, 73728), (sH0, 73728+192)]
    if cfg.tord: TL = [TL[0], TL[2], TL[1], TL[3]]
    script('a', [None] + TL, [None, 'lo0', None, None, None], {cfg.lopos: ['lo0']})
    if cfg.b2: a(f"{TM(cfg)} s[{STAMP0+30}:{STAMP0+31}]")
    a('s_branch P_fin')
    a('P_scriptB:')
    script('b', [None] + TL[1:], [None, None, None, None], {})
    a(f's_call_b64 {RET}, P_h0')
    if cfg.b2: a(f"{TM(cfg)} s[{STAMP0+30}:{STAMP0+31}]")
    a(f'v_mov_b32 v{FLV}, 5')
    a('s_waitcnt vmcnt(0)')
    a(f'ds_write_b32 v{FLA}, v{FLV}')
    if cfg.trp: a('s_branch L_exit')
    if cfg.stamps: a('s_mov_b32 s100, 0')
    a('s_cmp_ge_u32 s2, 16')
    a('s_cbranch_scc1 L_exit')
    if cfg.stamps: a('s_mov_b32 s100, 1')
    if cfg.prog:
        a(f'v_mov_b32 v12, {CNT+48}')
        a('P_w17:')
        a('ds_read_b128 v[232:235], v12')
        a('s_waitcnt lgkmcnt(0)')
        a('v_min_u32 v232, v232, v233')
        a('v_min3_u32 v232, v232, v234, v235')
        a('v_cmp_gt_u32 vcc, 24576, v232')
        a('s_cbranch_vccnz P_w17')
    else:
        await_cnt(a, 17, 'P_w17', 12, 13, 4)
    a(f's_sub_u32 {t0}, {sP}, 2\ns_mul_i32 {t0}, {t0}, 9216')
    a(f'v_lshlrev_b32 v12, 4, v1\nv_add_u32 v12, {t0}, v12')
    for k in range(3):
        a(f's_add_u32 m0, {t0}, {WO+3072*k}')
        a(f's_add_u32 s50, s18, {3072*k}\ns_addc_u32 s51, s19, 0')
        for j in range(3): a(f'global_load_lds_dwordx4 v12, s[50:51] offset:{1024*j}')
    a('P_fin:')
    if cfg.trp: a('s_branch L_exit')
    stamp(a, cfg, 9)
    a('s_cmp_ge_u32 s2, 16')
    a('s_cbranch_scc1 L_exit')
    a('s_setprio 0')
    a(f's_load_dword s47, {SDBG}, 0')
    a('s_waitcnt lgkmcnt(0)')
    a('s_cmp_eq_u32 s47, 0')
    a('s_cbranch_scc1 P_getnonce')
    a('P_getnonce_d:')
    a(f's_mov_b32 s36, s26\ns_mov_b32 s37, s27\ns_mov_b32 s38, {REC_BYTES}\ns_mov_b32 s39, 0x20000')
    await_cnt(a, 7, 'P_w7', 12, 13, 4)
    a('s_cmp_lt_u32 s50, 0x100')
    a('s_cbranch_scc1 L_comb')
    a('s_branch Z_comb')
    nonce_slow(a, 'P_getnonce', 'P_getnonce_d', 20)
    if cfg.dry:
        a('P_dry1:')
        a('s_call_b64 s[60:61], C_blk2')
        a('s_branch P_dryd')
        a('P_dry2:')
        a(f's_call_b64 {RET}, P_lat')
        a('s_branch P_dryd')
    a('P_lat:')
    if cfg.pp: a(f's_setprio {cfg.pl}')
    if cfg.wsum:
        wsr = [f'ds_read_b128 {vr(F+4*s_,4)}, v{WSA} offset:{32*s_}' for s_ in range(6)]
        L = lo_reads(12, 13)
        for i, (t, s_) in enumerate([(t, s_) for t in range(3) for s_ in range(6)]):
            L.append(lat_mfma(t, s_))
            if i < 6: L.append(wsr[i])
            if i >= 6 and i % 2 == 0: L.append(f'{MF16} {vr(SL,4)}, {vr(F+4*((i-6)//2),4)}, {vr(X+4*((i-6)//2),4)}, {"0" if i == 6 else vr(SL,4)}')
        for l in autowait(L, age=99): a(l)
        a(f's_setpc_b64 {RET}')
    else:
        L, pend = lateral(False)
        for l in autowait(lo_reads(12, 13) + L, age=99): a(l)
        a('s_nop 9')
        for l in pend + sl_fin(): a(l)
        a(f's_setpc_b64 {RET}')
    hp = cfg.pm if cfg.pp else None
    g1 = [f's_mov_b32 m0, {M1}', 's_nop 0'] + half(RHI, O1, SR)
    g2 = [f's_mov_b32 m0, {M2}', 's_nop 0'] + half(RHI, O2, SR)
    def traced(lines, first, n):
        step = max(1, len(lines) // n); k = first
        for i, l in enumerate(lines):
            if i % step == 0 and k < first + n:
                stamp(a, cfg, k, True); k += 1
            a(l)
    if not cfg.pair:
        a('P_h2:')
        traced(B.p_head(g1, g2, hp), 2, 3)
        a('s_branch P_s1')
    if cfg.pair:
        a('P_h4:')
        def grp(M, O): return [f's_mov_b32 m0, {M}', f's_add_u32 {t1}, {O}, 192'] + half(RHI, O, SR) + [f's_add_u32 m0, {M}, 24576', 's_nop 0'] + half(RHI, t1, SR)
        G1, G2 = grp(M1, O1), grp(M2, O2)
        if cfg.pair not in (1, 4):
            G1 = [f's_mov_b32 m0, {M1}', f's_add_u32 {t1}, {O1}, 192'] + half(RHI, O1, SR) + [f's_mov_b32 m0, {M2}', f's_add_u32 {t2}, {O2}, 192'] + half(RHI, O2, SR)
            G2 = [f's_add_u32 m0, {M1}, 24576', 's_nop 0'] + half(RHI, t1, SR) + [f's_add_u32 m0, {M2}, 24576', 's_nop 0'] + half(RHI, t2, SR)
        H = B.p_head(G1, (), hp)
        k1 = [i for i, l in enumerate(H) if l.startswith('v_mfma')]
        H = H[:k1[0]+1] + G2[:5] + H[k1[0]+1:k1[1]+1] + G2[5:] + H[k1[1]+1:]
        for l in H: a(l)
        a('s_branch P_s1')
    elif cfg.deep2:
        a('P_h4:')
        def grp(M, O): return [f's_mov_b32 m0, {M}', f's_add_u32 {t1}, {O}, 6144'] + half(RHI, O, SR) + [f's_add_u32 m0, {M}, 3072', 's_nop 0'] + half(RHI, t1, SR)
        H = B.p_head(grp(M1, O1), (), hp)
        G2 = grp(M2, O2)
        k1 = [i for i, l in enumerate(H) if l.startswith('v_mfma')]
        H = H[:k1[0]+1] + G2[:5] + H[k1[0]+1:k1[1]+1] + G2[5:] + H[k1[1]+1:]
        for l in H: a(l)
        a('s_branch P_s1')
    else:
        a('P_h1:')
        traced(B.p_head(g1, (), hp), 2, 3)
        a('s_branch P_s1')
    a('P_h0w:')
    a('s_waitcnt vmcnt(0)')
    stamp(a, cfg, 8)
    a('P_h0:')
    for l in B.p_head((), (), hp): a(l)
    a('P_s1:')
    tail = B.p_tail(0, cfg.pv if cfg.pp else None) if not cfg.pk else B.p_tail_pk(cfg.pv if cfg.pp else None, bool(cfg.pk & 1), bool(cfg.pk & 2))
    if cfg.st2: tail = B.p_tail2(cfg.pv if cfg.pp else None, cfg.st2 == 1)
    traced(tail[:-1], 5, 9)
    if not cfg.st2: a(f'v_add_u32 v{FLV}, 1, v{FLV}')
    a('s_waitcnt lgkmcnt(0)')
    a(f'ds_write_b32 v{FLA}, v{FLV}')
    a(f's_setpc_b64 {RET}')

def gen_consumer(a, cfg):
    sH = 's40'
    t0, t1 = 's41', 's42'
    RET = 's[60:61]'
    sR = 's43'
    LIN, REC, WVA, XA = 2, 3, 8, 9
    CA0, CA1, CT0, CT1 = B.C.CA0, B.C.CA1, B.C.CT0, B.C.CT1
    PART = 12
    AP, U, LA, OP = B.C.AP, B.C.U, B.C.LA, B.C.OP
    WV = B.C.WV
    QB, WK, ME, QT, QP, TA, QF = 96, 108, 132, 156, 164, 168, 16
    T = 240
    T2 = 248
    a('L_cons:')
    if cfg.cearly: a(f's_setprio {cfg.cpp}')
    a('s_memrealtime s[58:59]')
    code_prefetch(a, 'L_pc', 0, -256)
    a(f's_sub_u32 {sH}, s3, 4')
    a(f'v_lshlrev_b32 v{LIN}, 4, v1')
    a(f's_mul_i32 s48, {sH}, 4608')
    a(f'v_add_u32 v{PART}, s48, v{LIN}')
    a(f's_min_u32 {t0}, {sH}, 2')
    a(f's_lshl_b32 s46, {sH}, 2')
    a(f's_add_u32 s46, s46, {t0}')
    a(f's_lshl_b32 s46, s46, 10')
    a(f'v_add_u32 v13, s46, v{LIN}')
    a(f's_lshl_b32 s54, {t0}, 10')
    a(f'v_add_u32 v10, s54, v{LIN}')
    a('s_lshr_b32 s50, s2, 3\ns_and_b32 s50, s50, 31\ns_mul_i32 s50, s50, 640')
    a(f'v_lshlrev_b32 v14, 7, v1')
    a(f'v_add_u32 v14, s50, v14')
    a(f'v_min_u32 v14, 18428, v14')
    N, G, RHO, KAP = T+4, T+5, T+6, T+7
    a(f'v_and_b32 v{N}, 15, v1')
    a(f'v_lshrrev_b32 v{G}, 4, v1')
    a(f'v_bfe_u32 v{RHO}, v1, 2, 2')
    a(f'v_and_b32 v{KAP}, 3, v1')
    a(f'v_mul_u32_u24 v{T+8}, 192, v{N}')
    a(f'v_lshl_add_u32 v{T+8}, v{G}, 4, v{T+8}')
    a(f'v_lshl_add_u32 v{T+9}, v{RHO}, 3, v{KAP}')
    a(f'v_mul_u32_u24 v{T+9}, 48, v{T+9}')
    a(f'v_lshl_add_u32 v{T+9}, v{G}, 4, v{T+9}')
    a(f'v_add_u32 v{T+9}, s48, v{T+9}')
    if cfg.spf & 6:
        a(f's_cmp_lt_u32 {sH}, 2')
        a(f's_cselect_b32 s96, 8, {sH}')
        a(f's_cselect_b32 s97, {sH}, 0')
        a('s_add_u32 s96, s96, s57')
        a('s_mul_i32 s98, s96, 43691')
        a('s_lshr_b32 s98, s98, 19')
        a('s_add_u32 s98, s98, s97')
        a('s_mul_i32 s98, s98, 73728')
        a('s_mul_i32 s96, s96, 6144')
        a('s_add_u32 s97, s96, s98')
    if cfg.bist: stamp(a, cfg, 12)
    a('s_waitcnt lgkmcnt(0)')
    if cfg.bist: stamp(a, cfg, 13)
    if cfg.spf & 6:
        a('s_add_u32 s98, s6, s97\ns_addc_u32 s99, s7, 0')
    a(f's_cmp_eq_u32 {sH}, 0\ns_cselect_b64 s[50:51], {SWV}, {SWQ}')
    a(f's_cmp_eq_u32 {sH}, 2\ns_cselect_b64 s[50:51], {SWK}, s[50:51]')
    a(f's_cmp_eq_u32 {sH}, 3\ns_cselect_b64 s[50:51], {SWM}, s[50:51]')
    a('s_mov_b64 exec, 31')
    a(f'global_load_dword v200, v14, s[50:51]')
    a('s_mov_b64 exec, -1')
    o2 = cfg.spn if cfg.spf & 1 else 0
    if cfg.spf & 2:
        for i in range(cfg.spn): a(f's_load_dword s96, s[98:99], {128*(o2+i)}')
        o2 += cfg.spn
    if cfg.bist: stamp(a, cfg, 11)
    a('s_barrier')
    if cfg.bist: stamp(a, cfg, 14)
    a(f's_lshl_b32 s50, s2, 2\ns_xor_b32 s50, s50, {sH}\ns_cmp_eq_u32 s50, 3')
    a('s_cbranch_scc1 C_mknonce')
    a('C_mknonce_d:')
    if cfg.fake: arrive(a, 5, 14, 15)
    def wk_loads():
        a('s_mov_b32 exec_hi, 0xffff')
        for s in range(3):
            for tt in range(2):
                a(f'global_load_dwordx4 {vr(WK+(2*s+tt)*4,4)}, v{T+9}, {SWK} offset:{1536*s+192*tt}')
        a('s_mov_b32 exec_hi, -1')
    if cfg.pro == 2:
        for s in range(3): a(f'global_load_dwordx4 {vr(QB+4*s,4)}, v{T+8}, {SQ} offset:{64*s}')
        dma_part(a, SWQ, WQ, PART, 's48')
        if cfg.wkpos == 2: arrive(a, 5, 14, 15)
        a('s_mov_b32 s57, s46')
        a(f'v_mov_b32 v{PART}, v13')
        for i in range(24): a(f'v_mov_b32 v{WK+i}, 0')
        wk_loads()
        if cfg.wkpos == 1: arrive(a, 5, 14, 15)
    elif not cfg.fake:
        M1S, M1L, M2S, M2L = (SWM, WM, SWQ, WQ) if cfg.mfirst else (SWQ, WQ, SWM, WM)
        a(f's_cmp_ge_u32 {sH}, 3')
        a('s_cbranch_scc1 C_noy')
        a(f's_add_u32 m0, s54, {QS}')
        a(f's_cmp_ge_u32 {sH}, 2')
        a(f'global_load_lds_dwordx4 v10, {SQ}')
        a('s_cbranch_scc1 C_noy')
        dma_extra(a, M1S, M1L, 13, 's46')
        a('C_noy:')
        dma_main(a, M1S, M1L, 13, 's46')
        if cfg.wkpos == 2: arrive(a, 5, 14, 15)
        a('s_mov_b32 s57, s46')
        a(f'v_mov_b32 v{PART}, v13')
        for i in range(24): a(f'v_mov_b32 v{WK+i}, 0')
    stamp(a, cfg, 1)
    a(f's_mov_b32 s36, s26\ns_mov_b32 s37, s27\ns_mov_b32 s38, {REC_BYTES}\ns_mov_b32 s39, 0x20000')
    a(f's_and_b32 s49, {sH}, 1\ns_lshl_b32 s55, s49, 1\ns_lshr_b32 s56, {sH}, 1\ns_add_u32 s55, s55, s56')
    a(f's_lshl_b32 {t0}, s2, 2\ns_add_u32 {t0}, {t0}, s55\ns_lshl_b32 {t0}, {t0}, 6')
    a(f'v_mul_u32_u24 v{REC}, {65536 + cfg.skew}, v{N}')
    a(f'v_lshl_add_u32 v{REC}, v{G}, 4, v{REC}')
    a(f'v_add_u32 v{REC}, {t0}, v{REC}')
    a('s_mul_i32 s52, s56, 12288')
    a(f'v_and_b32 v{T+10}, 31, v1')
    a(f'v_lshrrev_b32 v{T+11}, 5, v1')
    a(f'v_lshlrev_b32 v{T+12}, 1, v{N}')
    a(f'v_bfe_u32 v{T+12}, {SF}, v{T+12}, 2')
    a(f'v_xor_b32 v{T+12}, v{T+12}, v{T+11}')
    a(f'v_mul_u32_u24 v{T+13}, 192, v{T+10}')
    a(f'v_add_u32 v{T+13}, s52, v{T+13}')
    a(f'v_lshl_add_u32 v{CA0}, v{T+12}, 4, v{T+13}')
    a(f'v_xor_b32 v{T+12}, 2, v{T+12}')
    a(f'v_lshl_add_u32 v{CA1}, v{T+12}, 4, v{T+13}')
    a(f'v_lshl_add_u32 v{T+12}, v{T+11}, 2, v{RHO}')
    a(f'v_bfe_u32 v{T+13}, v1, 4, 1')
    a(f'v_lshrrev_b32 v{T+14}, 1, v{KAP}')
    a(f'v_lshl_add_u32 v{T+14}, v{T+13}, 1, v{T+14}')
    a(f'v_and_b32 v{T+15}, 1, v{KAP}')
    a(f'v_lshlrev_b32 v{T+15}, 3, v{T+15}')
    a(f'v_add_u32 v{T+15}, s52, v{T+15}')
    for sec, dst in ((0, CT0), (1, CT1)):
        if sec: a(f'v_add_u32 v{T+12}, 8, v{T+12}')
        a(f'v_lshlrev_b32 v{dst}, 1, v{T+12}')
        a(f'v_bfe_u32 v{dst}, {SF}, v{dst}, 2')
        a(f'v_xor_b32 v{dst}, v{dst}, v{T+14}')
        a(f'v_lshl_add_u32 v{dst}, v{dst}, 4, v{T+15}')
        a(f'v_mul_u32_u24 v10, 192, v{T+12}')
        a(f'v_add_u32 v{dst}, v{dst}, v10')
    a(f'v_lshl_add_u32 v{WVA}, v{T+11}, 2, v{RHO}')
    a(f'v_lshl_add_u32 v{WVA}, v{T+13}, 4, v{WVA}')
    a(f'v_mul_u32_u24 v{WVA}, 48, v{WVA}')
    a(f'v_lshl_add_u32 v{WVA}, v{KAP}, 3, v{WVA}')
    a(f'v_add_u32 v{WVA}, {WREG}, v{WVA}')
    a(f's_xor_b32 {t0}, s55, 1')
    a(f's_mul_i32 s53, {t0}, 4608')
    a(f's_mul_i32 s46, s55, 4608')
    a(f'v_mov_b32 v10, s46')
    a(f'v_mov_b32 v11, s53')
    a(f'v_cmp_eq_u32 vcc, 0, v{T+13}')
    a(f'v_mul_u32_u24 v{XA}, 192, v{N}')
    a(f'v_lshl_add_u32 v{XA}, v{T+11}, 4, v{XA}')
    a(f'v_cndmask_b32 v10, v11, v10, vcc')
    a(f'v_add_u32 v{XA}, v{XA}, v10')
    a(f'v_add_u32 v{XA}, {WQ}, v{XA}')
    a(f'v_lshl_add_u32 v{T+12}, v{G}, 3, v{RHO}')
    a(f'v_mul_u32_u24 v10, 48, v{T+12}')
    a(f'v_min_u32 v11, 2, v{KAP}')
    a(f'v_lshl_add_u32 v10, v11, 4, v10')
    a(f's_add_u32 {t0}, s48, {WQ}')
    a(f'v_add_u32 v10, {t0}, v10')
    a(f'v_add_u32 v13, {t0}, v{T+8}')
    a(f'v_add_u32 v{T+8}, {QS}, v{T+8}')
    a(f'v_mul_u32_u24 v11, 192, v{T+12}')
    a(f'v_lshl_add_u32 v11, v{KAP}, 4, v11')
    a(f'v_add_u32 v11, {WM}, v11')
    a(f'v_and_b32 v{T+12}, 1, v1')
    a(f'v_cmp_eq_u32 vcc, v{T+12}, v{T+13}')
    a(f'v_mov_b32 v{T+12}, 0x3f803f80')
    for i in range(52 - cfg.zl):
        a(f'v_mov_b32 v{U+i}, 0')
        if i == 1:
            for k in range(4): a(f'v_cndmask_b32 v{OP+k}, 0, v{T+12}, vcc')
    if cfg.fake:
        a(f's_add_u32 s58, s58, {cfg.fake}')
        a('C_fk:')
        a('s_memrealtime s[50:51]')
        a('s_waitcnt lgkmcnt(0)')
        a('s_sub_u32 s50, s50, s58')
        a('s_cmp_lt_i32 s50, 0')
        a('s_cbranch_scc1 C_fk')
        stamp(a, cfg, 2)
        a(f's_mul_i32 s50, {sH}, 3072')
        a(f's_add_u32 s50, s50, {8<<20}')
        a(f's_add_u32 s50, s26, s50\ns_addc_u32 s51, s27, 0')
        a(f's_add_u32 m0, s48, {WQ}')
        a('s_nop 0')
        for k in range(3): a(f'global_load_lds_dwordx4 v{LIN}, s[50:51] offset:{1024*k}' + (' sc1' if cfg.fsc else ''))
        a('s_waitcnt vmcnt(0)')
        stamp(a, cfg, 15)
        lds_sync(a, 3, 'C_sy3', 14, 15)
        a('s_cmp_eq_u32 s2, 999')
        a('s_cbranch_scc1 Z_sy3')
    else:
        def me_rd(sp, st): return [f'ds_read_b64_tr_b16 {vr(TA+(sp*6+st)*4+2*sec,2)}, v11 offset:{sp*6144+sec*768+(st>>1)*64+(st&1)*8}' for sec in range(2)]
        def q_rd(s, tt): return [f'ds_read_b64_tr_b16 {vr(QF+(tt*3+s)*4+2*sec,2)}, v10 offset:{s*1536+sec*192+tt*8}' for sec in range(2)]
        def q_mm(s, tt): return f'{MF16} {vr(QT+4*tt,4)}, {vr(QF+(tt*3+s)*4,4)}, {vr(QB+4*s,4)}, {"0" if s == 0 else vr(QT+4*tt,4)}'
        if cfg.pro == 2:
            if cfg.wkpos == 3: arrive(a, 5, 14, 15)
            if cfg.wmtok: await_cnt(a, 6, 'C_tk6', 14, 15, 4)
            if cfg.bist: stamp(a, cfg, 7)
            a(f's_cmp_ge_u32 {sH}, 2')
            a('s_cbranch_scc1 C_nox')
            dma_extra(a, SWM, WM, PART, 's57')
            a('C_nox:')
            dma_main(a, SWM, WM, PART, 's57')
            if cfg.wkpos == 0: arrive(a, 5, 14, 15)
            epi_setup(a, cfg)
            if cfg.bist: stamp(a, cfg, 6)
            a('s_waitcnt vmcnt(10)')
            if cfg.bist: stamp(a, cfg, 5)
            if cfg.cpp: a(f's_setprio {cfg.cpp}')
            stamp(a, cfg, 2)
            qseq = [(s, tt) for s in range(3) for tt in range(2)]
            L = [q_rd(*x) for x in qseq] + [q_mm(*x) for x in qseq]
            for l in autowait(flat(L), age=99): a(l)
            for i in range(8): a(f'v_add_f32 v{QT+i}, v{QT+i}, v{QT+i}')
            for i in range(4): a(f'v_cvt_pk_bf16_f32 v{QP+i}, v{QT+2*i}, v{QT+2*i+1}')
            a('s_waitcnt vmcnt(4)')
            for st in range(6):
                a(f'{MF16} {vr(ME+4*st,4)}, {vr(WK+4*st,4)}, {vr(QP,4)}, 0')
            if cfg.bist: stamp(a, cfg, 4)
            a('s_waitcnt vmcnt(0)')
            lds_sync(a, 1, 'C_sy1', 14, 15)
            if cfg.bist: stamp(a, cfg, 8)
            stamp(a, cfg, 15)
            seq = [(sp, st) for sp in range(3) for st in range(6)]
            L = [me_rd(*seq[i]) for i in range(7)]
            for i, (sp, st) in enumerate(seq):
                L.append(f'{MF16} {vr(ME+4*st,4)}, {vr(TA+(sp*6+st)*4,4)}, {vr(QB+4*sp,4)}, {vr(ME+4*st,4)}')
                if i + 7 < 18: L.append(me_rd(*seq[i+7]))
            for l in autowait(flat(L), age=99): a(l)
        else:
            if cfg.spf & 4:
                for i in range(min(cfg.spn, 48 - o2)): a(f's_load_dword s96, s[98:99], {128*(o2+i)}')
            if cfg.bist: stamp(a, cfg, 7)
            if cfg.wkpos == 3: arrive(a, 5, 14, 15)
            a(f's_cmp_ge_u32 {sH}, 2')
            a('s_cbranch_scc1 C_nox')
            dma_extra(a, M2S, M2L, PART, 's57')
            a('C_nox:')
            dma_main(a, M2S, M2L, PART, 's57')
            if cfg.wkpos == 1: arrive(a, 5, 14, 15)
            if cfg.tk6 == 1: arrive(a, 6, 14, 15)
            a('s_mov_b32 exec_hi, 0xffff')
            for s in range(3):
                for tt in range(2):
                    a(f'global_load_dwordx4 {vr(WK+(2*s+tt)*4,4)}, v{T+9}, {SWK} offset:{1536*s+192*tt}')
            a('s_mov_b32 exec_hi, -1')
            if cfg.wkpos == 0: arrive(a, 5, 14, 15)
            if (cfg.tok3 or cfg.mix) and cfg.tk6 == 0: arrive(a, 6, 14, 15)
            epi_setup(a, cfg)
            if cfg.bist: stamp(a, cfg, 6)
            a('s_waitcnt vmcnt(6)')
            if cfg.bist: stamp(a, cfg, 5)
            lds_sync(a, 1, 'C_sy1', 14, 15)
            if cfg.cpp: a(f's_setprio {cfg.cpp}')
            stamp(a, cfg, 2)
            def me_rd(sp, st): return [f'ds_read_b64_tr_b16 {vr(TA+(sp*6+st)*4+2*sec,2)}, v11 offset:{sp*6144+sec*768+(st>>1)*64+(st&1)*8}' for sec in range(2)]
            def q_rd(s, tt): return [f'ds_read_b64_tr_b16 {vr(QF+(tt*3+s)*4+2*sec,2)}, v10 offset:{s*1536+sec*192+tt*8}' for sec in range(2)]
            def q_mm(s, tt): return f'{MF16} {vr(QT+4*tt,4)}, {vr(QF+(tt*3+s)*4,4)}, {vr(QB+4*s,4)}, {"0" if s == 0 else vr(QT+4*tt,4)}'
            def me_mm(sp, st): return f'{MF16} {vr(ME+4*st,4)}, {vr(TA+(sp*6+st)*4,4)}, {vr(QB+4*sp,4)}, {"0" if sp == 0 else vr(ME+4*st,4)}'
            seq = [(sp, st) for sp in range(3) for st in range(6)]
            qseq = [(s, tt) for s in range(3) for tt in range(2)]
            qb = [f'ds_read_b128 {vr(QB+4*s,4)}, v{T+8} offset:{64*s}' for s in range(3)]
            L = [qb[0], q_rd(0,0), q_rd(0,1), qb[1], q_rd(1,0), q_rd(1,1), qb[2], q_rd(2,0), q_rd(2,1)]
            for i, (s_, tt) in enumerate(qseq):
                L.append(q_mm(s_, tt)); L.append(me_rd(*seq[i]))
            post = [f'v_add_f32 v{QT+i}, v{QT+i}, v{QT+i}' for i in range(8)] + [f'v_cvt_pk_bf16_f32 v{QP+i}, v{QT+2*i}, v{QT+2*i+1}' for i in range(4)]
            for i, (sp, st) in enumerate(seq):
                L.append(me_mm(sp, st))
                if i + 6 < 18: L.append(me_rd(*seq[i+6]))
                if i >= 3: L.append(post[:1]); del post[:1]
            L.append(post)
            for l in autowait(flat(L), age=99): a(l)
            if cfg.bist: stamp(a, cfg, 4)
            a('s_waitcnt vmcnt(0)')
            if cfg.bist: stamp(a, cfg, 8)
            stamp(a, cfg, 15)
            for st in range(6):
                a(f'{MF16} {vr(ME+4*st,4)}, {vr(WK+4*st,4)}, {vr(QP,4)}, {vr(ME+4*st,4)}')
        sc = 96 ** -0.5 * math.log2(math.e)
        a(f's_mov_b32 {t0}, {f32(sc)}')
        for s in range(3):
            for i in range(8): a(f'v_mul_f32 v{ME+8*s+i}, {t0}, v{ME+8*s+i}')
            for i in range(4): a(f'v_cvt_pk_bf16_f32 v{ME+8*s+i}, v{ME+8*s+2*i}, v{ME+8*s+2*i+1}')
            a(f'ds_write_b128 v13, {vr(ME+8*s,4)} offset:{64*s}')
            a(f'{MF16} {vr(QT,4)}, {vr(ME+8*s,4)}, {vr(ME+8*s,4)}, {"0" if s == 0 else vr(QT,4)}')
        a(f's_mov_b32 {t0}, {f32(THR)}')
        a(f'v_mov_b32 v14, {CNT + 4*3}')
        a(f'v_max3_f32 v{QT}, v{QT}, v{QT+1}, v{QT+2}')
        a(f'v_max_f32 v{QT}, v{QT}, v{QT+3}')
        a(f'v_cmp_nge_f32 vcc, {t0}, v{QT}')
        a('s_cmp_eq_u64 vcc, 0')
        a('s_cselect_b32 s51, 1, 0x101')
        a('v_mov_b32 v15, s51')
        a('s_waitcnt lgkmcnt(0)')
        a('s_mov_b64 exec, 1')
        a('ds_add_rtn_u32 v15, v14, v15')
        a('s_mov_b64 exec, -1')
        a('s_waitcnt lgkmcnt(0)')
        a('v_readfirstlane_b32 s50, v15')
        a('s_add_u32 s50, s50, s51')
        a('s_cmp_eq_u32 s50, 4')
        a('s_cbranch_scc1 C_sy3_ok')
        await_cnt(a, 3, 'C_sy3', 14, 15, 4, setaddr=False)
        a('s_cmp_eq_u32 s50, 4')
        a('s_cbranch_scc0 Z_sy3')
    if not cfg.fake: a('C_sy3_ok:')
    stamp(a, cfg, 3)
    cons_main(a, cfg, False)
    a('C_mknonce:')
    a('s_or_b32 s50, s58, 1')
    a('v_mov_b32 v20, s50\nv_mov_b32 v21, 0\nv_mov_b32 v22, 0')
    a('s_mov_b64 exec, 1')
    a(f'global_atomic_cmpswap v22, v[20:21], {SDBG} sc1')
    a('s_mov_b64 exec, -1')
    a('s_branch C_mknonce_d')
    nonce_slow(a, 'C_getnonce', 'C_getnonce_d', T2)

def slow_rescale(NEW):
    MX = 160; U, LA = B.C.U, B.C.LA
    L = [f'v_max_f32 v{NEW}, v{NEW}, v{MX}',
         f'v_sub_f32 v{MX+4}, v{MX}, v{NEW}',
         f'v_exp_f32 v{MX+4}, v{MX+4}',
         f'v_mov_b32 v{MX}, v{NEW}', 's_nop 1',
         f'v_mov_b32 v{MX+5}, v{MX+4}', f'v_mov_b32 v{MX+6}, v{MX+4}', 's_nop 1',
         f'v_permlane16_swap_b32 v{MX+5}, v{MX+6}', 's_nop 1']
    L += [f'v_mul_f32 v{U+i}, v{U+i}, v{MX+4}' for i in range(48)]
    L += [f'v_mul_f32 v{LA+i}, v{LA+i}, v{MX+5+(i&1)}' for i in range(4)]
    return L

def slow_tile(off):
    MX = 160; S = B.C.S[0]
    tb = B.C.TB
    B.C.TB = off
    sv = (B.C.KA, B.C.KT, B.C.S, B.C.P)
    B.C.KA = [sv[0][0]] * 2; B.C.KT = [sv[1][0]] * 2; B.C.S = [S] * 2; B.C.P = [S] * 2
    L = [B.ka(1, s) for s in range(6)] + ['s_waitcnt lgkmcnt(0)']
    L += [B.kt(1, ks, t) for ks in range(2) for t in range(3)]
    L += [B.sm(1, s) for s in range(6)] + ['s_nop 15', 's_nop 15']
    L += [f'v_max3_f32 v{MX+1}, v{S}, v{S+1}, v{S+2}']
    L += [f'v_max3_f32 v{MX+1}, v{MX+1}, v{S+3+2*i}, v{S+4+2*i}' for i in range(6)]
    L += [f'v_max_f32 v{MX+1}, v{MX+1}, v{S+15}', f'v_mov_b32 v{MX+2}, v{MX+1}', 's_nop 1',
          f'v_permlane32_swap_b32 v{MX+1}, v{MX+2}', 's_nop 1', f'v_max_f32 v{MX+1}, v{MX+1}, v{MX+2}']
    L += slow_rescale(MX+1)
    L += [f'v_sub_f32 v{S+i}, v{S+i}, v{MX}' for i in range(16)]
    L += [B.ex(1, i) for i in range(16)] + ['s_nop 1'] + [B.cv(1, i) for i in range(8)]
    L += ['s_waitcnt lgkmcnt(0)', 's_nop 1']
    L += [B.pv(1, ks, t) for ks in range(2) for t in range(4)] + ['s_nop 15', 's_nop 15']
    B.C.TB = tb
    B.C.KA, B.C.KT, B.C.S, B.C.P = sv
    return flat(L)

EPI_REGS = (8, 240, 241, 242, 243, 0, 251, 254, 255, 244, 245)
def epi_setup(a, cfg):
    for i in range(52 - cfg.zl, 52): a(f'v_mov_b32 v{B.C.U+i}, 0')
    sH = 's40'
    t0, t1 = 's41', 's42'
    LIN, WVA = 2, 8
    WA0, FLA, XO, XP, FO, FP, ONE, MRA, THRV, XLW, XLR = EPI_REGS
    THR, INC = 246, 247
    a(f'v_add_u32 v{WA0}, s46, v{WVA}')
    a(f's_mul_i32 {t0}, {sH}, {XST}')
    a(f's_xor_b32 {t1}, {sH}, 2')
    a(f's_mul_i32 {t1}, {t1}, {XST}')
    a(f's_add_u32 {t0}, {t0}, {XCH}')
    a(f's_add_u32 {t1}, {t1}, {XCH+3072}')
    a(f'v_add_u32 v{XO}, {t0}, v{LIN}')
    a(f'v_lshlrev_b32 v{XLR}, 2, v1')
    a(f'v_add_u32 v{XLW}, {t1}, v{XLR}')
    a(f'v_add_u32 v{XLR}, {t0}, v{XLR}')
    a(f's_mov_b32 s52, 0xffff0000\ns_mov_b32 s53, 0xffff0000')
    if cfg.xv == 0:
        a(f'v_add_u32 v{XP}, {t1}, v{LIN}')
    else:
        a(f'v_mov_b32 v{XP}, {t0}')
        a(f'v_mov_b32 v14, {t1}')
        a(f'v_and_b32 v15, 15, v1')
        a(f'v_cndmask_b32 v{XP}, v{XP}, v14, s[52:53]')
        a(f'v_lshl_add_u32 v{XP}, v15, 4, v{XP}')
        a(f'v_lshrrev_b32 v15, 5, v1')
        a(f'v_lshl_add_u32 v{XP}, v15, 9, v{XP}')
    a(f'v_and_b32 v{FLA}, 3, v1')
    a(f's_xor_b32 {t0}, s56, 1')
    a(f'v_cmp_eq_u32 vcc, {t0}, v{FLA}')
    a(f'v_lshlrev_b32 v{FLA}, 2, v{FLA}')
    a(f'v_add_u32 v{FLA}, {PF}, v{FLA}')
    a(f'v_cndmask_b32 v{THRV}, 5, 4, vcc')
    a(f's_lshl_b32 {t0}, {sH}, 2')
    a(f's_add_u32 {t0}, {t0}, {CNT+32}')
    a(f'v_mov_b32 v{FO}, {t0}')
    a(f'v_xor_b32 v{FP}, 8, v{FO}')
    a(f'v_mov_b32 v{ONE}, 1')
    a('s_mov_b32 s44, 0\ns_mov_b32 s45, -1')
    a(f'v_bfe_u32 v{INC}, v1, 1, 1')
    a(f'v_cmp_eq_u32 vcc, s56, v{INC}')
    if cfg.uni == 2:
        a('s_mov_b32 s61, 4')
        a('s_mul_i32 s59, s56, -6144')
        a('s_add_u32 s59, s59, 24576')
    else:
        a('s_add_u32 s61, s56, 3')
        a('s_mov_b32 s59, -6144')
    a('s_mov_b32 s43, 0')
    a(f'v_cndmask_b32 v{INC}, 0, 1, vcc')
    a(f'v_mov_b32 v{THR}, v{INC}')

def cons_main(a, cfg, slow):
    sH = 's40'
    t0, t1 = 's41', 's42'
    RET = 's[60:61]'
    sR = 's43'
    LIN, REC, WVA, XA = 2, 3, 8, 9
    CA0, CA1, CT0, CT1 = B.C.CA0, B.C.CA1, B.C.CT0, B.C.CT1
    AP, U, LA, OP = B.C.AP, B.C.U, B.C.LA, B.C.OP
    WV = B.C.WV
    T2 = 248
    Z = 'Z' if slow else 'C'
    prog = cfg.prog
    OOL = []
    MX = 160
    if slow:
        xv = cfg.xv; cfg = Cfg(); cfg.stamps = False; cfg.xv = xv
        a('Z_sy3:')
        a('ds_read_b32 v15, v14')
        a('s_waitcnt lgkmcnt(0)')
        a('v_readfirstlane_b32 s50, v15')
        a('s_and_b32 s50, s50, 0xff')
        a('s_cmp_lt_u32 s50, 4')
        a('s_cbranch_scc1 Z_sy3')
        a(f'v_mov_b32 v{MX}, {f32(-3e38)}')
    WA0, FLA, XO, XP, FO, FP, ONE, MRA, THRV, XLW, XLR = EPI_REGS
    for s in range(6): a(f'ds_read_b128 {vr(AP+4*s,4)}, v{XA} offset:{32*s}')
    if slow:
        a(f's_lshl_b32 {t0}, s56, 3\ns_add_u32 {t0}, {t0}, {PF}')
        a(f'v_mov_b32 v10, {t0}')
        a(f's_mov_b32 {sR}, 1')
        a('s_waitcnt lgkmcnt(0)')
        arrive(a, 4, 14, 15)
    if slow:
        a(f's_lshl_b32 {t0}, s55, 8\ns_add_u32 {t0}, {t0}, s2\ns_lshl_b32 {t0}, {t0}, 3\ns_add_u32 {t0}, {t0}, {MREC}')
        a(f'v_and_b32 v{MRA}, 15, v1')
        a(f'v_lshlrev_b32 v{MRA}, 13, v{MRA}')
        a(f'v_add_u32 v{MRA}, {t0}, v{MRA}')
    wvr = [f'ds_read_b64_tr_b16 {vr(WV+(tt*3+t)*4+2*sec,2)}, v{WA0} offset:{t*1536+sec*384+tt*32}'
           for t in range(3) for tt in range(2) for sec in range(2)]
    if not slow:
        VF, THR, INC = T2+4, 246, 247
        sAdv, sStop = 's60', 's61'
        flag = f'ds_read_b32 v{VF}, v{FLA}'
        def waitloop(tag, go, prio=None):
            a(f'{tag}:')
            if cfg.wsl: a(f's_sleep {cfg.wsl}')
            a(flag)
            a('s_waitcnt lgkmcnt(0)')
            a(f'v_cmp_lt_u32 vcc, v{VF}, v{THR}')
            a(f's_cbranch_vccnz {tag}')
            for s_ in range(6): a(B.ka(0, s_))
            a(f's_branch {go}')
        def check(wait, go):
            a('s_waitcnt lgkmcnt(6)')
            a(f'v_cmp_lt_u32 vcc, v{VF}, v{THR}')
            a(f's_cbranch_vccnz {wait}')
            a(f'{go}:')
        class Lst:
            def __init__(s_): s_.l = []
            def __call__(s_, t): s_.l += [x.strip() for x in t.split('\n') if x.strip()]
        hook = Lst()
        if not cfg.prog: arrive(hook, 17, 14, 15)
        mk_tag(hook, T2+1)
        a(flag)
        for s_ in range(6): a(B.ka(0, s_))
        a(f'v_mov_b32 v14, {CNT + 4*4}')
        a('s_waitcnt lgkmcnt(7)')
        a('s_mov_b64 exec, 1')
        a(f'ds_add_u32 v14, v{ONE}')
        a('s_mov_b64 exec, -1')
        if cfg.cpp or cfg.cmain: a(f's_setprio {cfg.cmain}')
        a('C_loop:')
        check('C_wait', 'C_go')
        if cfg.stamps and not cfg.b2:
            pass
        if cfg.b2 and not cfg.etr:
            for j in (11, 12, 13): a(f's_mov_b64 s[{STAMP0+2*j}:{STAMP0+2*j+1}], s[{STAMP0+2*j+2}:{STAMP0+2*j+3}]')
            a(f"{TM(cfg)} s[{STAMP0+28}:{STAMP0+29}]")
        top = ([f's_setprio {cfg.ctop}'] if cfg.ctop else []) + [f's_add_u32 {sR}, {sR}, 1', f'v_add_u32 v{THR}, v{THR}, v{INC}', f's_cmp_eq_u32 {sR}, 4', f's_cselect_b32 {sAdv}, s59, 24576'] + ([f'ds_write_b32 v{FO}, v{CA0} offset:16'] if cfg.prog else [])
        advl = [f'v_add_u32 v{r}, {sAdv}, v{r}' for r in (CA0, CA1, CT0, CT1)]
        for l in B.cons2p(advl, flag, top): a(l)
        if cfg.stamps:
            for j in (5, 6): a(f's_mov_b64 s[{STAMP0+2*j}:{STAMP0+2*j+1}], s[{STAMP0+2*j+2}:{STAMP0+2*j+3}]')
            stamp(a, cfg, 7)
        a(f's_cmp_eq_u32 {sR}, {sStop}')
        a('s_cbranch_scc1 C_done')
        a(f's_load_dword s47, {SDBG}, 0')
        a('s_branch C_loop')
        waitloop('C_wait', 'C_go')
        a('C_done:')
        a('s_cmp_eq_u32 s47, 0')
        a('s_cbranch_scc1 C_getnonce')
        a('C_getnonce_d:')
        def specloop(tag, go):
            a(f'{tag}:')
            a(flag)
            for s_ in range(6): a(B.ka(0, s_))
            a('s_waitcnt lgkmcnt(6)')
            a(f'v_cmp_lt_u32 vcc, v{VF}, v{THR}')
            a(f's_cbranch_vccz {go}')
            a(f's_branch {tag}')
        if cfg.uni:
            a(f'v_mov_b32 v{THR}, v{THRV}')
            stamp(a, cfg, 4)
            check('C_w13', 'C_g13')
            stamp(a, cfg, 8)
            a('s_setprio 3')
            for l in (B.cons1x(wvr, True, hook.l) if cfg.uni == 2 else B.cons2x(wvr, 24576, True, hook.l)): a(l)
            OOL.append(lambda: (specloop if cfg.spec else waitloop)('C_w13', 'C_g13'))
        else:
            a('s_cmp_eq_u32 s56, 0')
            a('s_cbranch_scc1 C_r3s')
            a(f'v_mov_b32 v{THR}, v{THRV}')
            stamp(a, cfg, 4)
            check('C_w13', 'C_g13')
            stamp(a, cfg, 8)
            a('s_setprio 3')
            for l in B.cons2x(wvr, 24576, True, hook.l): a(l)
            a('s_branch C_epi')
            (specloop if cfg.spec else waitloop)('C_w13', 'C_g13')
            waitloop('C_w12', 'C_g12')
            (specloop if cfg.spec else waitloop)('C_w16', 'C_g16')
            a('C_r3s:')
            check('C_w12', 'C_g12')
            adv = [f'v_add_u32 v{r}, 24576, v{r}' for r in (CA0, CA1, CT0, CT1)]
            for l in B.cons1p(adv, flag, hook.l + [f'v_mov_b32 v{THR}, v{THRV}']): a(l)
            stamp(a, cfg, 4)
            check('C_w16', 'C_g16')
            stamp(a, cfg, 8)
            a('s_setprio 3')
            for l in B.cons1x(wvr, True): a(l)
    if slow:
        if cfg.cpp: a(f's_setprio {cfg.cmain}')
        a(f's_call_b64 {RET}, {Z}_blk')
        stamp(a, cfg, 5)
        a(f's_load_dword s47, {SDBG}, 0')
        if cfg.c2 is not None: a(f's_setprio {cfg.c2}')
        a(f's_call_b64 {RET}, {Z}_blk')
        stamp(a, cfg, 6)
        if prog: a(f'ds_write_b32 v{FO}, v{CA0} offset:16')
        else: arrive(a, 17, 14, 15)
        a('s_cmp_eq_u32 s47, 0')
        a(f's_cbranch_scc1 {Z}_getnonce')
        a(f'{Z}_getnonce_d:')
        mk_tag(a, T2+1)
        if cfg.c3 is not None: a(f's_setprio {cfg.c3}')
        a(f's_call_b64 {RET}, {Z}_blk')
        stamp(a, cfg, 7)
        if cfg.c4 is not None: a(f's_setprio {cfg.c4}')
        def lastwait(tag):
            a(f'{tag}:')
            a(f'ds_read_b32 v{T2+4}, v{FLA}')
            a('s_waitcnt lgkmcnt(0)')
            a(f'v_cmp_lt_u32 vcc, v{T2+4}, v{THRV}')
            a(f's_cbranch_vccnz {tag}')
            stamp(a, cfg, 8)
            a('s_setprio 3')
        a('s_cmp_eq_u32 s56, 0')
        a(f's_cbranch_scc1 {Z}_r3s')
        a(f's_call_b64 {RET}, {Z}_blk')
        a(f's_mov_b32 s51, {(13 - 18) * 6144}')
        for r in (CA0, CA1, CT0, CT1): a(f'v_add_u32 v{r}, s51, v{r}')
        stamp(a, cfg, 4)
        lastwait(f'{Z}_r4w1')
        if slow:
            for l in slow_tile(0) + slow_tile(24576) + autowait(wvr, final=0): a(l)
        else:
            for l in B.cons2x(wvr, 24576): a(l)
        a(f's_branch {Z}_epi')
        a(f'{Z}_r3s:')
        a(f'v_mov_b32 v10, {PF}')
        a(f'{Z}_r3w:')
        a(f'ds_read_b32 v{T2+4}, v10')
        a('s_waitcnt lgkmcnt(0)')
        a(f'v_readfirstlane_b32 s50, v{T2+4}')
        a('s_cmp_lt_u32 s50, 4')
        a(f's_cbranch_scc1 {Z}_r3w')
        adv = [f'v_add_u32 v{r}, 24576, v{r}' for r in (CA0, CA1, CT0, CT1)]
        for l in (slow_tile(0) + adv if slow else B.cons1(extra_mid=adv)): a(l)
        stamp(a, cfg, 4)
        lastwait(f'{Z}_r4w0')
        if slow:
            for l in slow_tile(0) + autowait(wvr, final=0): a(l)
        else:
            for l in B.cons1x(wvr): a(l)
    a(f'{Z}_epi:')
    stamp(a, cfg, 9)
    if slow:
        a(f's_lshl_b32 {t0}, {sH}, 7')
        a(f's_add_u32 {t0}, {t0}, {TOT}')
        a(f'v_and_b32 v{MX+1}, 31, v1')
        a(f'v_lshlrev_b32 v{MX+1}, 2, v{MX+1}')
        a(f'v_add_u32 v{MX+1}, {t0}, v{MX+1}')
        a(f'ds_write_b32 v{MX+1}, v{MX}')
        a('s_waitcnt lgkmcnt(0)')
        lds_sync(a, 18, 'Z_sy18', MX+2, MX+3)
        a(f'v_xor_b32 v{MX+1}, {256+64}, v{MX+1}')
        a(f'ds_read_b32 v{MX+2}, v{MX+1}')
        a('s_waitcnt lgkmcnt(0)')
        for l in slow_rescale(MX+2): a(l)
        a(f'v_mov_b32 v{MX+1}, s47')
        a('s_mov_b32 exec_lo, 0\ns_mov_b32 exec_hi, 0xffff')
        a(f'buffer_store_dwordx2 {vr(MX,2)}, v{MRA}, {RWS}, 0 offen sc1')
        a('s_mov_b64 exec, -1')
    UP, CX, RX, RS = 96, 120, 128, 144
    def cvtU(t): return [f'v_cvt_pk_bf16_f32 v{UP+8*t+i}, v{U+16*t+2*i}, v{U+16*t+2*i+1}' for i in range(8)]
    def pj(src, tt, t, first=False):
        return f'{MF16} {vr(CX+4*tt,4)}, {vr(WV+(tt*3+t)*4,4)}, {vr(src,4)}, {"0" if first else vr(CX+4*tt,4)}'
    def snd(t, hi): return f'ds_write_b128 v{XP}, {vr(UP+8*t+4*hi,4)} offset:{1024*t+256*hi}'
    def own(t): return f'ds_read_b128 {vr(RS+4*t,4)}, v{XO} offset:{1024*t}'
    EN = T2
    enc = [f'v_cndmask_b32 v{EN}, v{LA}, v{LA+1}, s[44:45]', f'v_and_b32 v{EN+2}, s46, v{EN}', f'v_sub_f32 v{EN}, v{EN}, v{EN+2}',
           f'v_cndmask_b32 v{EN}, v{EN+2}, v{EN}, s[52:53]', f'v_bfi_b32 v{EN}, s46, v{EN}, v{T2+1}']
    c0, c1, c2 = cvtU(0), cvtU(1), cvtU(2)
    E = [enc, f'ds_write_b32 v{XLW}, v{EN} offset:3072',
         c0[:4], snd(0,0), c0[4:], snd(0,1), c1[:4], snd(1,0), own(0), c1[4:], snd(1,1), c2[:4], snd(2,0), own(1), c2[4:], snd(2,1),
         f'ds_write_b32 v{FP}, v{ONE}', own(2)]
    if cfg.xv == 0:
        def swp(t): return [f'v_permlane16_swap_b32 v{UP+8*t+i}, v{UP+8*t+4+i}' for i in range(4)]
        def snd(t, hi=0): return f'ds_write_b128 v{XP}, {vr(UP+8*t+4,4)} offset:{1024*t}'
        E = [enc, f'ds_write_b32 v{XLW}, v{EN} offset:3072',
             c0, c1[:2], swp(0), c1[2:4], snd(0), c1[4:8], c2[:2], swp(1), c2[2:4], snd(1), c2[4:8], 's_nop 0', swp(2), 's_nop 0', snd(2),
             f'ds_write_b32 v{FP}, v{ONE}']
    for l in flat(E):
        if cfg.etr and not slow and l == snd(0,0): a(f"{TM(cfg)} s[{STAMP0+22}:{STAMP0+23}]")
        if cfg.etr and not slow and l.startswith(f'ds_write_b32 v{FP}'): a(f"{TM(cfg)} s[{STAMP0+24}:{STAMP0+25}]")
        a(l)
    def poll():
        a(f'ds_read_b32 v15, v{FO}')
        for t in range(3): a(f'ds_read_b128 {vr(RX+4*t,4)}, v{XO} offset:{3072+1024*t}')
        a(f'ds_read_b32 v{RX+12}, v{XLR} offset:6144')
    if cfg.xv == 0:
        mm = [pj(UP,0,0,True), pj(UP,1,0,True), pj(UP+8,0,1), pj(UP+8,1,1), pj(UP+16,0,2), pj(UP+16,1,2)]
        for l in mm[:cfg.xd]: a(l)
        poll()
        for l in mm[cfg.xd:]: a(l)
    else:
        poll()
        a('s_waitcnt lgkmcnt(7)')
        a(pj(RS,0,0,True)); a(pj(RS,1,0,True)); a(pj(RS+4,0,1)); a(pj(RS+4,1,1))
        a('s_waitcnt lgkmcnt(5)')
        a(pj(RS+8,0,2)); a(pj(RS+8,1,2))
    if cfg.etr and not slow: a(f"{TM(cfg)} s[{STAMP0+26}:{STAMP0+27}]")
    a(f'{Z}_xw:')
    a('s_waitcnt lgkmcnt(4)')
    a('v_cmp_eq_u32 vcc, 0, v15')
    a(f's_cbranch_vccnz {Z}_xr')
    if cfg.etr and not slow: a(f"{TM(cfg)} s[{STAMP0+28}:{STAMP0+29}]")
    for t in range(3):
        a(f's_waitcnt lgkmcnt({3-t})')
        a(pj(RX+4*t,0,t)); a(pj(RX+4*t,1,t))
    a('s_waitcnt lgkmcnt(0)')
    a(f'v_cndmask_b32 v{EN}, v{EN}, v{RX+12}, s[44:45]')
    a(f'v_cvt_pk_bf16_f32 v{CX}, v{CX}, v{CX+1}')
    a(f'v_cvt_pk_bf16_f32 v{CX+1}, v{CX+2}, v{CX+3}')
    a(f'v_mov_b32 v{CX+3}, v{EN}')
    a(f'v_cvt_pk_bf16_f32 v{CX+2}, v{CX+4}, v{CX+5}')
    a(f'v_cvt_pk_bf16_f32 v{CX+4}, v{CX+6}, v{CX+7}')
    a(f'v_permlane32_swap_b32 v{CX+2}, v{CX+4}')
    a(f'buffer_store_dwordx4 {vr(CX,4)}, v{REC}, {RWS}, 0 offen sc1')
    stamp(a, cfg, 10)
    a('s_cmp_ge_u32 s2, 16')
    a('s_cbranch_scc1 L_exit')
    if slow:
        a(f'v_mov_b32 v14, {CNT + 4*7}')
        a(f'v_mov_b32 v15, 0x101')
        a('s_mov_b64 exec, 1')
        a('ds_add_u32 v14, v15')
        a('s_mov_b64 exec, -1')
        a('s_setprio 0')
        a('s_branch Z_comb')
        a('Z_xr:'); poll(); a('s_branch Z_xw')
        nonce_slow(a, 'Z_getnonce', 'Z_getnonce_d', T2)
        a('Z_wait:')
        a('Z_blk:')
        a(f'ds_read_b64 {vr(T2+4,2)}, v10')
        a('s_waitcnt lgkmcnt(0)')
        a(f'v_min_u32 v{T2+4}, v{T2+4}, v{T2+5}')
        a(f'v_readfirstlane_b32 s50, v{T2+4}')
        a(f's_cmp_lt_u32 s50, {sR}')
        a('s_cbranch_scc1 Z_wait')
        for l in slow_tile(0) + slow_tile(6144) + B.adv(): a(l)
        a(f's_add_u32 {sR}, {sR}, 1')
        a(f's_setpc_b64 {RET}')
        return
    arrive(a, 7, 14, 15)
    a('s_setprio 0')
    a('s_branch L_comb')
    a('C_xr:'); poll(); a('s_branch C_xw')
    for f in OOL: f()

def tag_halves(a):
    a('s_bfe_u32 s50, s47, 0xe0001')
    a('s_and_b32 s51, s47, 0x8000')
    a('s_or_b32 s50, s50, s51')
    a('s_lshr_b32 s46, s47, 15')
    a('s_and_b32 s46, s46, 0x8000')
    a('s_bfe_u32 s51, s47, 0xe0010')
    a('s_or_b32 s51, s51, s46')

def mk_tag(a, v):
    tag_halves(a)
    a('s_mov_b32 s46, 0xffff0000')
    a(f'v_mov_b32 v{v}, s50')
    a(f'v_mov_b32 v{v+1}, s51')
    a(f'v_cndmask_b32 v{v}, v{v}, v{v+1}, s[52:53]')

def comb_tag(a, v):
    tag_halves(a)
    a('s_mov_b32 s48, 0xaaaaaaaa\ns_mov_b32 s49, 0xaaaaaaaa')
    a(f'v_mov_b32 v{v}, s50')
    a(f'v_mov_b32 v{v+1}, s51')
    a(f'v_cndmask_b32 v{v}, v{v}, v{v+1}, s[48:49]')

def comb_q(a):
    a('v_and_b32 v6, 15, v1')
    a('s_lshl_b32 s43, s3, 4')
    a('v_add_u32 v6, s43, v6')
    a('v_min_u32 v6, 95, v6')
    a('s_mul_i32 s44, s2, 96')
    a('v_add_u32 v6, s44, v6')
    a('v_lshlrev_b32 v6, 1, v6')
    a(f'global_load_ushort v7, v6, {SQ}')

def comb_setup(a, withq=True):
    if withq: comb_q(a)
    a('v_lshl_add_u32 v29, v16, 3, v28')
    a('v_mul_u32_u24 v29, 192, v29')
    a('v_lshl_add_u32 v29, v19, 3, v29')
    a('s_lshl_b32 s45, s3, 5')
    a(f'v_add_u32 v14, s45, v29')
    a('v_and_b32 v28, 15, v1')
    a('v_mul_u32_u24 v15, 384, v16')
    a('v_lshl_add_u32 v15, v28, 4, v15')
    a('s_mul_i32 s45, s3, 1536')
    a(f's_add_u32 s45, s45, {FIN}')
    a(f'v_add_u32 v15, s45, v15')
    a('v_and_b32 v29, 7, v1')
    a('v_lshlrev_b32 v8, 2, v29')
    a('s_mov_b32 s45, 0x75316240')
    a('v_bfe_u32 v8, s45, v8, 4')
    a('v_add_u32 v8, 48, v8')
    a('v_cmp_lt_u32 vcc, 7, v28')
    a('v_lshlrev_b32 v17, 6, v16')
    a('v_cndmask_b32 v8, v29, v8, vcc')
    a('v_lshl_add_u32 v8, v8, 3, v17')
    a(f'v_add_u32 v8, {FIN}, v8')
    a('s_lshl_b32 s45, s3, 8')
    a(f's_add_u32 s45, s45, {CTX}')
    a('v_lshlrev_b32 v9, 2, v28')
    a('v_mad_u32_u24 v9, v16, 48, v9')
    a('v_mov_b32 v29, 192')
    a('v_cmp_lt_u32 vcc, 11, v28')
    a('v_lshlrev_b32 v10, 4, v16')
    a('v_add_u32 v10, s45, v10')
    a('v_cndmask_b32 v9, v9, v29, vcc')
    a('v_add_u32 v9, s45, v9')

def gen_slow_combine(a, cfg):
    D, ACC, T = 32, 20, 28
    MA, MW = 64, 96
    a('Z_comb:')
    a('v_lshlrev_b32 v2, 4, v1')
    a(f's_mul_i32 s40, s2, {65536 + cfg.skew}')
    a('s_lshl_b32 s41, s3, 13')
    a('s_add_u32 s40, s40, s41')
    a('s_add_u32 s41, s40, 4096')
    a('v_lshrrev_b32 v16, 4, v1')
    a('v_bfe_u32 v28, v1, 2, 2')
    a('v_and_b32 v19, 3, v1')
    a('v_lshlrev_b32 v3, 11, v28')
    a('v_lshl_add_u32 v4, v16, 3, v3')
    a('v_lshl_add_u32 v3, v16, 9, v3')
    a('v_lshl_add_u32 v3, v19, 7, v3')
    a(f's_lshl_b32 s42, s2, 13\ns_add_u32 s42, s42, {MREC}')
    a(f's_lshl_b32 s52, s3, 8\ns_add_u32 s52, s52, s42')
    comb_setup(a)
    comb_tag(a, 12)
    for i in range(8): a(f'v_mov_b32 v{ACC+i}, 0')
    a('Z_again:')
    a('Z_poll:')
    for i in range(8): a(f'buffer_load_dwordx4 {vr(D+4*i,4)}, v2, {RWS}, {"s40" if i<4 else "s41"} offen offset:{1024*(i%4)} sc1')
    for i in range(8): a(f'buffer_load_dwordx4 {vr(MA+4*i,4)}, v3, {RWS}, s42 offen offset:{16*i} sc1')
    for i in range(8): a(f'buffer_load_dwordx2 {vr(MW+2*i,2)}, v4, {RWS}, s52 offen offset:{32*i} sc1')
    a('s_waitcnt vmcnt(0)')
    a(f'v_mov_b32 v{T}, 0')
    for i in range(8):
        a(f'v_xor_b32 v{T+1}, v12, v{D+4*i+3}')
        a(f'v_and_b32 v{T+1}, 0xffff, v{T+1}')
        a(f'v_or_b32 v{T}, v{T}, v{T+1}')
    for t in [MA+2*i+1 for i in range(16)] + [MW+2*i+1 for i in range(8)]:
        a(f'v_xor_b32 v{T+1}, s47, v{t}')
        a(f'v_or_b32 v{T}, v{T}, v{T+1}')
    a(f'v_cmp_ne_u32 vcc, 0, v{T}')
    a('s_nop 4')
    a('s_cbranch_vccnz Z_again')
    M = MA
    for i in range(1, 16): a(f'v_max_f32 v{M}, v{M}, v{MA+2*i}')
    a('s_nop 1')
    a(f'v_mov_b32_dpp v{M+1}, v{M} quad_perm:[1,0,3,2] row_mask:0xf bank_mask:0xf')
    a(f'v_max_f32 v{M}, v{M}, v{M+1}')
    a('s_nop 1')
    a(f'v_mov_b32_dpp v{M+1}, v{M} quad_perm:[2,3,0,1] row_mask:0xf bank_mask:0xf')
    a(f'v_max_f32 v{M}, v{M}, v{M+1}')
    def allrows(r, op):
        for sw in ('v_permlane16_swap_b32', 'v_permlane32_swap_b32'):
            a(f'v_mov_b32 v{T}, v{r}')
            a('s_nop 1')
            a(f'{sw} v{r}, v{T}')
            a('s_nop 1')
            a(f'{op} v{r}, v{r}, v{T}')
    allrows(M, 'v_max_f32')
    a('s_mov_b32 s46, 0xffff0000')
    for i in range(8):
        a(f'v_sub_f32 v{MW+2*i}, v{MW+2*i}, v{M}')
        a(f'v_exp_f32 v{MW+2*i}, v{MW+2*i}')
        a('s_nop 1')
        for j in range(4):
            a(f'v_lshlrev_b32 v{T}, 16, v{D+4*i+j}')
            a(f'v_and_b32 v{T+1}, s46, v{D+4*i+j}')
            if j < 3: a(f'v_fmac_f32 v{ACC+2*j}, v{T}, v{MW+2*i}')
            a(f'v_fmac_f32 v{ACC+2*j+1}, v{T+1}, v{MW+2*i}')
    for j in range(8): allrows(ACC+j, 'v_add_f32')
    a('v_cmp_eq_u32 vcc, 0, v16')
    a('s_nop 1')
    for j in range(4): a(f'v_cndmask_b32 v{ACC+j}, v{ACC+4+j}, v{ACC+j}, vcc')
    a('s_nop 1')
    a('s_branch K_red')

def gen_combine(a, cfg):
    D, ACC, T = 128, 20, 28
    NS = 9
    a('L_comb:')
    if cfg.trp: a('s_branch L_exit')
    a('v_lshlrev_b32 v2, 4, v1')
    a(f's_mul_i32 s40, s2, {65536 + cfg.skew}')
    a('s_lshl_b32 s41, s3, 13')
    a('s_add_u32 s40, s40, s41')
    a('s_add_u32 s41, s40, 4096')
    def load(i):
        a(f'buffer_load_dwordx4 {vr(D+4*i,4)}, v2, {RWS}, {"s40" if i<4 else "s41"} offen offset:{1024*(i%4)} sc1' + (' nt' if cfg.pollnt else ''))
    PM = lambda i: f's[{6+2*i}:{7+2*i}]'
    SEL = 24
    stamp(a, cfg, 11)
    if cfg.ktrace:
        for j in list(range(1, 8)) + [12]: a(f's_mov_b64 s[{STAMP0+2*j}:{STAMP0+2*j+1}], 0')
    if cfg.roll or cfg.dyn: comb_q(a)
    for i in range(8): load(i)
    a('v_lshrrev_b32 v16, 4, v1')
    a('v_bfe_u32 v28, v1, 2, 2')
    a('v_and_b32 v19, 3, v1')
    comb_setup(a, not (cfg.roll or cfg.dyn))
    comb_tag(a, 12)
    a('v_and_b32 v29, 1, v1')
    a('v_lshlrev_b32 v29, 4, v29')
    a('v_mov_b32 v17, 0x3f80')
    a('v_lshlrev_b32 v29, v29, v17')
    a('v_lshrrev_b32 v28, 1, v28')
    for r in range(4):
        a(f'v_cmp_eq_u32 vcc, {r}, v28')
        a(f'v_cndmask_b32 v{SEL+r}, 0, v29, vcc')
    if cfg.dyn:
        K = cfg.dyn
        J = lambda k: f's{6+k}'
        for i in range(4): a(f'v_mov_b32 v{ACC+i}, 0')
        a('s_mov_b32 s42, 0xff')
        a('s_mov_b32 s43, 7')
        def pick(k):
            a('s_lshl_b32 s44, -2, s43')
            a('s_and_b32 s44, s44, s42')
            a('s_cselect_b32 s44, s44, s42')
            a('s_ff1_i32_b32 s43, s44')
            a('s_lshl_b32 s44, s43, 10')
            a('s_add_u32 s44, s44, s40')
            a(f's_mov_b32 {J(k)}, s43')
            a(f'buffer_load_dwordx4 {vr(D+4*k,4)}, v2, {RWS}, s44 offen sc1')
        for i in range(8):
            a(f's_waitcnt vmcnt({7-i+min(i,K)})')
            if i == 0: stamp(a, cfg, 12)
            a(f'v_cmp_ne_u16 vcc, v12, v{D+4*i+3}')
            a(f's_cbranch_vccnz K_f{i}')
            a(f'{MF16} {vr(ACC,4)}, {vr(SEL,4)}, {vr(D+4*i,4)}, {vr(ACC,4)}')
            a(f's_bitset0_b32 s42, {i}')
            if i == 7:
                a('s_cmp_eq_u32 s42, 0')
                a('s_cbranch_scc1 K_red0')
            a(f'K_f{i}:')
            if i < K: pick(i)
        a('K_chk:')
        for k in range(K):
            a(f's_waitcnt vmcnt({K-1})')
            if cfg.ktrace and k == 0:
                a('s_waitcnt lgkmcnt(0)')
                for j in range(1, 7): a(f's_mov_b64 s[{STAMP0+2*j}:{STAMP0+2*j+1}], s[{STAMP0+2*j+2}:{STAMP0+2*j+3}]')
                a(f's_mov_b64 s[{STAMP0+14}:{STAMP0+15}], s[{STAMP0+24}:{STAMP0+25}]')
                stamp(a, cfg, 12)
            a(f'v_cmp_ne_u16 vcc, v12, v{D+4*k+3}')
            a(f's_cbranch_vccnz K_n{k}')
            a(f's_bitcmp0_b32 s42, {J(k)}')
            a(f's_cbranch_scc1 K_n{k}')
            a(f'{MF16} {vr(ACC,4)}, {vr(SEL,4)}, {vr(D+4*k,4)}, {vr(ACC,4)}')
            a(f's_bitset0_b32 s42, {J(k)}')
            a('s_cmp_eq_u32 s42, 0')
            a('s_cbranch_scc1 K_red0')
            a(f'K_n{k}:')
            pick(k)
        a('s_branch K_chk')
        a('K_red0:')
    elif cfg.roll:
        for i in range(4): a(f'v_mov_b32 v{ACC+i}, 0')
        a('s_mov_b32 s42, 0xff')
        a('K_chk:')
        for i in range(8):
            a('s_waitcnt vmcnt(7)')
            if cfg.ktrace and i == 0:
                a('s_waitcnt lgkmcnt(0)')
                for j in range(1, 7): a(f's_mov_b64 s[{STAMP0+2*j}:{STAMP0+2*j+1}], s[{STAMP0+2*j+2}:{STAMP0+2*j+3}]')
                a(f's_mov_b64 s[{STAMP0+14}:{STAMP0+15}], s[{STAMP0+24}:{STAMP0+25}]')
            if i == 0: stamp(a, cfg, 12)
            a(f'v_cmp_ne_u16 vcc, v12, v{D+4*i+3}')
            a('s_cmp_lg_u64 vcc, 0')
            a('s_cselect_b64 exec, -1, 0')
            load(i)
            a('s_mov_b64 exec, -1')
            a(f's_cbranch_scc1 K_n{i}')
            a(f's_bitcmp0_b32 s42, {i}')
            a(f's_cbranch_scc1 K_n{i}')
            a(f'{MF16} {vr(ACC,4)}, {vr(SEL,4)}, {vr(D+4*i,4)}, {vr(ACC,4)}')
            a(f's_bitset0_b32 s42, {i}')
            a('s_cmp_eq_u32 s42, 0')
            a('s_cbranch_scc1 K_red0')
            a(f'K_n{i}:')
        a('s_branch K_chk')
        a('K_red0:')
        a('s_nop 4')
    else:
        a('K_chk:')
        a('s_waitcnt vmcnt(0)')
        if cfg.ktrace:
            a('s_waitcnt lgkmcnt(0)')
            for j in range(1, 7): a(f's_mov_b64 s[{STAMP0+2*j}:{STAMP0+2*j+1}], s[{STAMP0+2*j+2}:{STAMP0+2*j+3}]')
            a(f's_mov_b64 s[{STAMP0+14}:{STAMP0+15}], s[{STAMP0+24}:{STAMP0+25}]')
        stamp(a, cfg, 12)
        for i in range(8):
            a(f'v_cmp_ne_u16 {PM(i)}, v12, v{D+4*i+3}')
            a(f'{MF16} {vr(ACC,4)}, {vr(SEL,4)}, {vr(D+4*i,4)}, {"0" if i == 0 else vr(ACC,4)}')
            if i == 2: a(f's_or_b64 s[50:51], {PM(0)}, {PM(1)}')
            if i > 2: a(f's_or_b64 s[50:51], s[50:51], {PM(i-1)}')
        a(f's_or_b64 s[50:51], s[50:51], {PM(7)}')
        a('s_cbranch_scc1 K_retry')
    a('K_red:')
    stamp(a, cfg, 13)
    a('s_cmp_ge_u32 s3, 6')
    a('s_cbranch_scc1 K_67')
    a('s_nop 2')
    a(f'ds_write_b128 v15, {vr(ACC,4)}')
    Bq, C = 40, 56
    a('s_waitcnt lgkmcnt(0)')
    a('s_barrier')
    if cfg.fine: stamp(a, cfg, 15)
    for k in range(4): a(f'ds_read2st64_b64 {vr(C+4*k,4)}, v8 offset0:{6*k} offset1:{6*k+3}')
    for s in range(3):
        for sec in range(2):
            a(f'ds_read_b64_tr_b16 {vr(Bq+4*s+2*sec,2)}, v14 offset:{s*6144+sec*768}')
    a('v_lshlrev_b32 v7, 16, v7')
    a('s_waitcnt lgkmcnt(8)')
    for i in range(4): a(f'v_add_f32 v{C+i}, v{C+i}, v{C+4+i}')
    a('s_waitcnt lgkmcnt(6)')
    for i in range(4): a(f'v_add_f32 v{C+8+i}, v{C+8+i}, v{C+12+i}')
    for i in (0, 2, 1, 3): a(f'v_add_f32 v{C+i}, v{C+i}, v{C+8+i}')
    a(f'v_add_f32 v{C}, v{C}, v{C+2}')
    a(f'v_add_f32 v{C+1}, v{C+1}, v{C+3}')
    a(f'v_add_f32_dpp v{C+2}, v{C+1}, v{C+1} quad_perm:[1,0,3,2] row_mask:0xf bank_mask:0xf')
    a(f'v_add_f32_dpp v{C+2}, v{C+2}, v{C+2} quad_perm:[2,3,0,1] row_mask:0xf bank_mask:0xf')
    a(f'v_mov_b32_dpp v{C+2}, v{C+2} row_newbcast:12 row_mask:0xf bank_mask:0xf')
    a(f'v_rcp_f32 v{C+2}, v{C+2}')
    a(f'v_mul_f32 v{C}, v{C}, v{C+2}')
    a(f'v_mul_f32 v{C+1}, v{C+1}, v{C+2}')
    a(f'v_cvt_pk_bf16_f32 v{C}, v{C}, v{C+1}')
    a(f'ds_write_b32 v9, v{C}')
    for s in range(3): a(f'ds_read_b128 {vr(C+4+4*s,4)}, v10 offset:{64*s}')
    for s in range(3):
        c = '0' if s == 0 else 'v[88:91]'
        a(f's_waitcnt lgkmcnt({2-s})')
        a(f'{MF16} v[88:91], {vr(C+4+4*s,4)}, {vr(Bq+4*s,4)}, {c}')
    a('v_cvt_pk_bf16_f32 v88, v88, v88')
    a('v_and_b32 v88, 0xffff0000, v88')
    a('v_add_f32 v88, v88, v7')
    a('v_cvt_pk_bf16_f32 v88, v88, v88')
    a('s_mov_b64 exec, 0xffff')
    a('s_waitcnt vmcnt(0)')
    a(f'global_store_short v6, v88, {SOUT}')
    a('s_mov_b64 exec, -1')
    stamp(a, cfg, 14)
    if cfg.diag:
        a('s_memrealtime s[98:99]')
        a('s_waitcnt lgkmcnt(0)')
        a('v_mov_b32 v20, s98\nv_mov_b32 v21, 36')
        a('s_mov_b64 exec, 1')
        a(f'global_atomic_umax v21, v20, {SDBG}')
        a('s_mov_b64 exec, -1')
    a('L_exit:')
    if cfg.diag:
        a('s_cmp_eq_u32 s3, 4')
        a('s_cbranch_scc0 L_end')
        a('s_memrealtime s[98:99]')
        a('s_getreg_b32 s50, hwreg(HW_REG_XCC_ID, 0, 4)')
        a('s_and_b32 s50, s50, 7')
        a('s_lshl_b32 s50, s50, 2')
        a('s_add_u32 s50, s50, 4')
        a('s_waitcnt lgkmcnt(0)')
        a('v_mov_b32 v20, s96\nv_mov_b32 v21, s50\nv_mov_b32 v22, s98\nv_mov_b32 v23, 40')
        a('s_mov_b64 exec, 1')
        a(f'global_store_dword v21, v20, {SDBG}')
        a('s_cmp_lt_u32 s2, 16')
        a('s_cbranch_scc1 L_end')
        a(f'global_atomic_umax v23, v22, {SDBG}')
        a('s_mov_b64 exec, -1')
    stamp_flush(a, cfg)
    a('L_end:')
    a('s_endpgm')
    a('K_67:')
    a('s_nop 2')
    a(f'ds_write_b128 v15, {vr(ACC,4)}')
    a('s_waitcnt lgkmcnt(0)')
    a('s_barrier')
    a('s_waitcnt vmcnt(0)')
    a('s_branch L_exit')
    if cfg.roll or cfg.dyn: return
    a('K_retry:')
    if cfg.ksleep: a(f's_sleep {cfg.ksleep}')
    for i in range(8):
        a(f's_cmp_lg_u64 {PM(i)}, 0')
        a('s_cselect_b64 exec, -1, 0')
        load(i)
    a('s_mov_b64 exec, -1')
    a('s_branch K_chk')

HEADER = """
Fused FPN-fuse + LayerNorm + masked cross-attention, one workgroup (8 waves) per CU, 576 keys each.
  A'[h*16+q] = (2*bf16(q w_q[h]) w_k[h]^T + q w_m) * 96^-0.5 * log2(e)      (scores in log2 units)
  waves 0-3: stream f_hi / f_lo into LDS, lateral GEMM, LayerNorm, write kv (bf16) back in place
  waves 4-7: S = kv A'^T, p = exp2(S - shift), U += p^T kv, l += sum p, ctx = U w_v, publish to d_ws
  workgroups 0-15: gather the 256 partials of one query, normalise, project with w_o, add q
Softmax shift: |S| <= sqrt(96) * |A' row| because kv is LayerNorm output.  Every workgroup evaluates that
bound at run time (Gram matrix of A').  If it is <= 80 the shift 0 cannot overflow or lose terms
(C_* / K_* code); otherwise the Z_* code runs with the true (online) row maximum.
"""

def build(cfg):
    a = Asm()
    a.raw(f'; @launch grid=(256,1,1) block=(512,1,1) lds={LDS_BYTES}')
    for l in HEADER.strip().split('\n'): a.raw('; ' + l)
    a.raw('.amdgcn_target "amdgcn-amd-amdhsa--gfx950"')
    a.raw('.text')
    a.raw(f'.globl {KNAME}'); a.raw('.p2align 8'); a.raw(f'.type {KNAME},@function'); a.raw(f'{KNAME}:')
    gen_entry(a, cfg)
    gen_producer(a, cfg)
    gen_consumer(a, cfg)
    gen_combine(a, cfg)
    a.raw('L_codeend:')
    cons_main(a, cfg, True)
    gen_slow_combine(a, cfg)
    txt = a.finish(verbose=True)
    txt = txt.replace('    ; ', '; ')
    txt += f'''.section .rodata,"a"
.p2align 6
.amdhsa_kernel {KNAME}
  .amdhsa_next_free_vgpr 256
  .amdhsa_next_free_sgpr {102 if cfg.stamps else 100}
  .amdhsa_accum_offset 256
  .amdhsa_group_segment_fixed_size 0
  .amdhsa_kernarg_size 96
  .amdhsa_user_sgpr_count 2
  .amdhsa_user_sgpr_kernarg_segment_ptr 1
  .amdhsa_system_sgpr_workgroup_id_x 1
.end_amdhsa_kernel
'''
    return txt

if __name__ == '__main__':
    cfg = Cfg()
    out = sys.argv[1]
    for o in sys.argv[2:]:
        if '=' in o:
            k, v = o.split('='); setattr(cfg, k, int(v))
        else: setattr(cfg, o, True)
    open(out, 'w').write(build(cfg))
```

```python
import sys, math, struct
from asmlib import Asm, autowait
import blocks as B
from blocks import vr, f32, MF32, MF16, flat

KNAME = 'standalone__detection_seg_mask2former__vision_kernel'

HI = 0
WM = 12 * 6144
QS = 15 * 6144
WQ = 16 * 6144
LO = 110592 + 6144
WREG = LO + 27648
SCR = WREG + 18432
TOT = SCR
PF = SCR + 512
TKT = SCR + 528
CNT = SCR + 544
WST = SCR + 640
XCH = LO
XST = 6912
WO = 0
FIN = 20480
CTX = 32768
LDS_BYTES = SCR + 1024
assert LDS_BYTES <= 163840 and LO <= XCH and XCH + 4 * XST <= WREG
B.C.TB = 6144
LREC = 17 * 256 * 256 + 16 * 4096
MREC = LREC
REC_BYTES = MREC + 16 * 4 * 256 * 8
BOUND = 80.0
THR = BOUND * BOUND / 96 / (1 + 2 ** -8) ** 2
STAMP_OFF = 4 << 20
FSW = sum(((((-(px >> 2)) & 3) ^ ((px >> 1) & 1)) << (2 * px)) for px in range(16))

class Cfg:
    stamps = False
    cyc = False
    repf = 0
    cvar = 0
    g0pos = 1
    fine = 0
    wvpos = 2
    h0pos = 1
    cpp = 0
    cmain = 0
    pp = 0
    deep = 1
    h1early = 0
    pwait = 1
    ksleep = 0
    r1late = 0
    pm = 2
    pv = 0
    pl = 2
    cearly = 0
    trp = 0
    trc = 0
    touch = 3
    t0pre = 0
    wkpos = 2
    dry = 0
    tokpos = -1
    wvr = 2
    ktrace = 0
    pollnt = 0
    roll = 0
    dyn = 5
    diag = 0
    early = 0
    tok2 = 1
    bist = 0
    mfirst = 1
    b2 = 0
    wvar = 0
    etr = 0
    xv = 0
    xd = 2
    fake = 0
    fsc = 0
    wsl = 0
    pk = 0
    uni = 1
    spec = 1
    tlb = 0
    spf = 0
    spn = 15
    wsum = 0
    st2 = 1
    pro = 1
    wmtok = 0
    ctop = 0
    skew = 0
    zl = 0
    tok3 = 1
    prog = 1
    tord = 0
    lopos = -1
    pair = 1
    deep2 = 0
    fl = 0
    mix = 1
    tk6 = 1
    late4 = 1
    c2 = None
    c3 = None
    c4 = None

SQ, SHI, SLO, SWL, SWQ, SWK, SWV, SWO, SWM, SOUT, SDBG, SWS = [f's[{4+2*i}:{5+2*i}]' for i in range(12)]
RHI, RLO, RWS = 's[28:31]', 's[32:35]', 's[36:39]'
SF = 's63'
STAMP0 = 64

def TM(cfg): return 's_memtime' if cfg.cyc else 's_memrealtime'

def stamp(a, cfg, i, inner=False):
    if cfg.b2 and i in (11, 12, 13, 14, 15) : return
    if cfg.bist:
        import inspect
        src = inspect.stack()[1].code_context[0]
        if 'bist' not in src and i in (4, 5, 6, 7, 8, 11, 12, 13, 14) and inspect.stack()[1].function != 'script': return
    if cfg.trp and not inner and i != 0: return
    if inner and not cfg.trp: return
    if cfg.stamps: a(f"{'s_memtime' if cfg.cyc else 's_memrealtime'} s[{STAMP0+2*i}:{STAMP0+2*i+1}]")

def stamp_flush(a, cfg, tmpv=100):
    if not cfg.stamps: return
    a('s_cmp_eq_u32 s100, 0')
    a('s_cbranch_scc1 L_nosl')
    a('s_sleep 100')
    a('L_nosl:')
    a('s_waitcnt lgkmcnt(0)')
    a('s_lshl_b32 s61, s2, 3\ns_add_u32 s61, s61, s3')
    a(f's_lshl_b32 s62, s61, 7')
    a(f's_add_u32 s62, s62, {STAMP_OFF}')
    for i in range(32): a(f'v_mov_b32 v{tmpv+i}, s{STAMP0+i}')
    a(f'v_mov_b32 v{tmpv+32}, 0')
    a('s_mov_b64 exec, 1')
    a('s_mov_b32 s56, s26\ns_mov_b32 s57, s27\ns_mov_b32 s58, 0x1000000\ns_mov_b32 s59, 0x20000')
    for i in range(8):
        a(f'buffer_store_dwordx4 {vr(tmpv+4*i,4)}, v{tmpv+32}, s[56:59], s62 offen offset:{16*i}')
    a('s_mov_b64 exec, -1')

def dma_swz(a, dst, k, tmp, dst2):
    a(f'v_add_u32 v{tmp}, {64*k if isinstance(k,int) else k}, v1')
    a(f'v_mul_u32_u24 v{tmp}, 0xaaab, v{tmp}')
    a(f'v_lshrrev_b32 v{tmp}, 18, v{tmp}')
    a(f'v_and_b32 v{dst2}, 0x1e, v{tmp}')
    a(f'v_bfe_u32 v{tmp}, {SF}, v{dst2}, 2')
    a(f'v_xor_b32 v{tmp}, v{tmp}, v1')
    a(f'v_lshlrev_b32 v{dst}, 4, v{tmp}')

def dma_part(a, ptr, ldsbase, voff, spart):
    lo = int(ptr[2:ptr.index(':')])
    a(f's_add_u32 m0, {spart}, {ldsbase}')
    a(f's_add_u32 s50, s{lo}, 4096')
    for k in range(4): a(f'global_load_lds_dwordx4 v{voff}, {ptr} offset:{1024*k}')
    a(f's_addc_u32 s51, s{lo+1}, 0')
    a(f's_add_u32 m0, {spart}, {ldsbase+4096}')
    a('s_mov_b32 exec_hi, 0')
    a(f'global_load_lds_dwordx4 v{voff}, s[50:51]')
    a('s_mov_b32 exec_hi, -1')

def dma_extra(a, ptr, ldsbase, voff, sbase):
    lo = int(ptr[2:ptr.index(':')])
    a(f's_add_u32 s50, s{lo}, 4096')
    a(f's_addc_u32 s51, s{lo+1}, 0')
    a(f's_add_u32 m0, {sbase}, {ldsbase+4096}')
    a('s_nop 0')
    a(f'global_load_lds_dwordx4 v{voff}, s[50:51]')

def dma_main(a, ptr, ldsbase, voff, sbase):
    a(f's_add_u32 m0, {sbase}, {ldsbase}')
    a('s_nop 0')
    for k in range(4): a(f'global_load_lds_dwordx4 v{voff}, {ptr} offset:{1024*k}')

def arrive(a, which, va, vd, rtn=False):
    a(f'v_mov_b32 v{va}, {CNT + 4*which}')
    a(f'v_mov_b32 v{vd}, 1')
    a('s_mov_b64 exec, 1')
    a(f'ds_add_rtn_u32 v{vd}, v{va}, v{vd}' if rtn else f'ds_add_u32 v{va}, v{vd}')
    a('s_mov_b64 exec, -1')

def await_cnt(a, which, tag, va, vd, n=4, setaddr=True):
    if setaddr: a(f'v_mov_b32 v{va}, {CNT + 4*which}')
    a(f'{tag}:')
    a(f'ds_read_b32 v{vd}, v{va}')
    a('s_waitcnt lgkmcnt(0)')
    a(f'v_readfirstlane_b32 s50, v{vd}')
    a(f's_cmp_lt_u32 s50, {n}')
    a(f's_cbranch_scc1 {tag}')

def lds_sync(a, which, tag, va, vd, n=4):
    arrive(a, which, va, vd, rtn=True)
    a('s_waitcnt lgkmcnt(0)')
    a(f'v_readfirstlane_b32 s50, v{vd}')
    a(f's_cmp_ge_u32 s50, {n-1}')
    a(f's_cbranch_scc1 {tag}_ok')
    await_cnt(a, which, tag + '_spin', va, vd, n, setaddr=False)
    a(f'{tag}_ok:')

def code_prefetch(a, tag, vt, tidoff, sp='s[44:45]', start=KNAME):
    lo = int(sp[2:sp.index(':')])
    a(f's_getpc_b64 {sp}')
    a(f'{tag}:')
    a(f's_add_u32 s{lo}, s{lo}, {start}-{tag}')
    a(f's_addc_u32 s{lo+1}, s{lo+1}, {"-1" if start == KNAME else "0"}')
    a(f'v_add_u32 v{vt}, {tidoff}, v0')
    a(f'v_lshlrev_b32 v{vt}, 7, v{vt}')
    a(f'v_min_u32 v{vt}, L_codeend-{start}-4, v{vt}')
    a(f'global_load_dword v{201 if vt == 0 else vt+1}, v{vt}, {sp}')

def nonce_slow(a, tag, back, v):
    a(f'{tag}:')
    a('s_memrealtime s[50:51]')
    a('s_waitcnt lgkmcnt(0)')
    a('s_or_b32 s47, s50, 1')
    a(f'v_mov_b32 v{v}, s47\nv_mov_b32 v{v+1}, 0\nv_mov_b32 v{v+2}, 0')
    a('s_mov_b64 exec, 1')
    a(f'global_atomic_cmpswap v{v}, v{v+2}, {vr(v,2)}, {SDBG} sc0 sc1')
    a('s_mov_b64 exec, -1')
    a('s_waitcnt vmcnt(0)')
    a(f'v_readfirstlane_b32 s50, v{v}')
    a('s_cmp_eq_u32 s50, 0')
    a('s_cselect_b32 s47, s47, s50')
    a(f's_branch {back}')

def gen_entry(a, cfg):
    a('s_cmp_ge_u32 s2, 256')
    a('s_cbranch_scc1 L_end')
    if cfg.stamps:
        for i in range(32): a(f's_mov_b32 s{STAMP0+i}, 0')
        a('s_mov_b32 s100, 1')
    stamp(a, cfg, 0)
    if cfg.diag: a('s_memrealtime s[96:97]')
    a('s_load_dwordx16 s[4:19], s[0:1], 0')
    a('s_load_dwordx8 s[20:27], s[0:1], 64')
    a('v_lshrrev_b32 v2, 6, v0')
    a('v_and_b32 v1, 63, v0')
    a('v_readfirstlane_b32 s3, v2')
    a(f's_mov_b32 {SF}, {FSW:#x}')
    a(f's_mov_b32 s62, {f32(96.0 if cfg.st2 else 1/96)}')
    a('s_cmp_ge_u32 s3, 4')
    a('s_cbranch_scc1 L_cons')

def gen_producer(a, cfg):
    W0, W1, W2, RA0, RA1, RL0, RL1 = 2, 3, 4, 5, 6, 7, 8
    S0, S1, S2 = 9, 10, 11
    WL, LT, X, F = B.P.WL, B.P.LT, B.P.X, B.P.F
    ID, OP, SM, SL, T = B.P.ID, B.P.OP, B.P.SM, B.P.SL, B.P.T
    FLA, FLV = 14, 15
    U = 232
    F0 = U + 12
    sP = 's3'
    sH0, sHS, sH8, sLo0, sSh = 's40', 's41', 's42', 's43', 's44'
    sSlot, sLoP, RET = 's45', 's46', 's[48:49]'
    t0, t1, t2 = 's52', 's53', 's54'
    M1, O1, M2, O2 = 's55', 's56', 's58', 's59'
    for k, (w, sw) in enumerate(((W0, S0), (W1, S1), (W2, S2))): dma_swz(a, w, k, U, sw)
    a(f'v_lshlrev_b32 v{U+3}, 4, v1')
    for i in range(4): a(f'v_mov_b32 v{U+4+i}, 0')
    a(f'v_add_u32 v{U+8}, {SCR}, v{U+3}')
    a(f'ds_write_b128 v{U+8}, {vr(U+4,4)}')
    a(f's_lshl_b32 s58, s2, 2')
    a(f's_add_u32 s58, s58, {sP}')
    a(f's_mul_i32 {sLo0}, s58, 6144')
    a(f's_mul_i32 {sSlot}, {sP}, 6144')
    a(f's_add_u32 {sLoP}, {sSlot}, {LO}')
    a('s_mov_b32 s34, 7077888\ns_mov_b32 s35, 0x20000')
    a('s_add_u32 s60, s2, 2048')
    a('s_mul_i32 s61, s60, 3072')
    a(f's_cmp_lt_u32 {sP}, 2')
    a(f's_cselect_b32 s55, s61, {sLo0}')
    a(f's_cselect_b32 s56, {LO+8*3072}, {sLoP}')
    a('s_mov_b32 s30, 28311552\ns_mov_b32 s31, 0x20000')
    a(f's_min_u32 {t0}, {sP}, 2')
    a(f's_lshl_b32 s47, {sP}, 2')
    a(f's_add_u32 s47, s47, {t0}')
    a(f's_lshl_b32 s47, s47, 10')
    a(f'v_add_u32 v15, s47, v{U+3}')
    a(f's_mul_i32 {t0}, s58, 43691')
    a(f's_lshr_b32 {t0}, {t0}, 18')
    a(f's_mul_i32 {t0}, {t0}, 73728')
    a(f's_mul_i32 {sH0}, s58, 12288')
    a(f's_add_u32 {sH0}, {sH0}, {t0}')
    a(f's_mul_i32 {t0}, s60, 43691')
    a(f's_lshr_b32 {t0}, {t0}, 19')
    a(f's_add_u32 {t0}, {t0}, {sP}')
    a(f's_mul_i32 {t0}, {t0}, 73728')
    a(f's_mul_i32 {sH8}, s60, 6144')
    a(f's_add_u32 {sH8}, {sH8}, {t0}')
    a(f's_cmp_lt_u32 {sP}, 2')
    a(f's_cselect_b32 s57, {sH8}, {sH0}')
    a(f's_cselect_b32 {sSh}, 1, 0')
    a(f's_cselect_b32 {t0}, 0, 96')
    a(f's_lshr_b32 {sHS}, 6144, {sSh}')
    if cfg.bist: stamp(a, cfg, 12)
    a(f's_cmp_lt_u32 {sP}, 2')
    a('s_waitcnt lgkmcnt(0)')
    if cfg.bist: stamp(a, cfg, 13)
    def half(srd, soff, regs=(W0, W1, W2)):
        return [f'buffer_load_dwordx4 v{w}, {srd}, {soff} offen offset:{1024*k} nt lds' for k, w in enumerate(regs)]
    a('s_mov_b32 s32, s8\ns_mov_b32 s33, s9')
    a('s_cbranch_scc1 P_sm')
    a(f's_add_u32 m0, s56, 3072')
    a(f's_add_u32 {t1}, s55, 3072')
    for l in half(RLO, t1): a(l)
    a('s_branch P_nox')
    a('P_sm:')
    dma_extra(a, SWL, WREG, 15, 's47')
    a('P_nox:')
    dma_main(a, SWL, WREG, 15, 's47')
    a(f's_mov_b32 m0, s56')
    a('s_mov_b32 s28, s6')
    for l in half(RLO, 's55'): a(l)
    a('s_mov_b32 s29, s7')
    SR = (S0, S1, S2)
    def issue_h(soff, rnd, hf, add=0):
        a(f's_add_u32 m0, {sSlot}, {rnd*4*6144+3072*hf}')
        if add + hf:
            a(f's_add_u32 {t0}, {soff}, {add+6144*hf}'); src = t0
        else:
            a('s_nop 0'); src = soff
        for l in half(RHI, src, SR): a(l)
    def issue_first(hf):
        a(f's_add_u32 m0, {sSlot}, {3072*hf}')
        if hf:
            a(f's_add_u32 {t0}, s57, {sHS}'); src = t0
        else:
            a('s_nop 0'); src = 's57'
        for l in half(RHI, src, (F0, F0+1, F0+2)): a(l)
    def issue_first2():
        if not cfg.pair or cfg.mix == 3:
            for hf in range(2): issue_first(hf)
            return
        a(f's_cmp_lt_u32 {sP}, 2')
        a('s_cbranch_scc1 P_f1')
        if cfg.pair & 1:
            for hf in range(2):
                issue_h(sH0, 0, hf, 0); issue_h(sH0, 1, hf, 192)
        else:
            for hf in range(2): issue_h(sH0, 0, hf, 0)
            for hf in range(2): issue_h(sH0, 1, hf, 192)
        a('s_branch P_f2')
        a('P_f1:')
        for hf in range(2): issue_first(hf)
        a('P_f2:')
    if cfg.tlb:
        a(f's_load_dword s96, {SHI}, s57')
        a(f's_add_u32 s97, {sH0}, 79000')
        a(f's_min_u32 s97, s97, 28311548')
        a(f's_and_b32 s97, s97, -4')
        a(f's_load_dword s97, {SHI}, s97')
    if cfg.bist: stamp(a, cfg, 11)
    a('s_barrier')
    for k, (w, sw) in enumerate(((W0, S0), (W1, S1), (W2, S2))):
        a(f'v_mad_u32_u24 v{F0+k}, v{sw}, {t0}, v{w}')
        a(f'v_mul_u32_u24 v{sw}, 96, v{sw}')
        a(f'v_add_u32 v{sw}, v{sw}, v{w}')
    stamp(a, cfg, 1)
    a(f'v_and_b32 v{U}, 31, v1')
    a(f'v_lshrrev_b32 v{U+1}, 5, v1')
    def rdaddr(d0, d1, px, base):
        a(f'v_lshlrev_b32 v{U+2}, 1, v{px}')
        a(f'v_and_b32 v{U+2}, 0x1e, v{U+2}')
        a(f'v_bfe_u32 v{U+2}, {SF}, v{U+2}, 2')
        a(f'v_xor_b32 v{U+2}, v{U+2}, v{U+1}')
        a(f'v_xor_b32 v{U+3}, 2, v{U+2}')
        a(f'v_mul_u32_u24 v{U+4}, 192, v{px}')
        a(f'v_add_u32 v{U+4}, {base}, v{U+4}')
        a(f'v_lshl_add_u32 v{d0}, v{U+2}, 4, v{U+4}')
        a(f'v_lshl_add_u32 v{d1}, v{U+3}, 4, v{U+4}')
    rdaddr(RA0, RA1, U, sSlot)
    a(f'v_lshrrev_b32 v{U+5}, {sSh}, v{U}')
    rdaddr(RL0, RL1, U+5, 's56')
    a(f'v_bfe_u32 v14, v1, 2, 2')
    a(f'v_lshl_add_u32 v14, v{U+1}, 3, v14')
    a(f'v_mul_u32_u24 v14, 192, v14')
    a(f'v_bfe_u32 v{U+8}, v1, 4, 1')
    a(f'v_lshl_add_u32 v14, v{U+8}, 5, v14')
    a(f'v_and_b32 v{U+3}, 1, v1')
    a(f'v_lshl_add_u32 v14, v{U+3}, 4, v14')
    a(f'v_bfe_u32 v{U+3}, v1, 1, 1')
    a(f'v_lshl_add_u32 v14, v{U+3}, 3, v14')
    a(f'v_add_u32 v14, {WREG}, v14')
    a(f'v_bfe_u32 v{U+2}, v1, 3, 1')
    a(f'v_and_b32 v{U+3}, 3, v1')
    a(f'v_lshl_add_u32 v{U+2}, v{U+2}, 2, v{U+3}')
    a(f'v_bfe_u32 v{U+3}, v1, 2, 1')
    a(f'v_cmp_eq_u32 vcc, v{U+3}, v{U+1}')
    a(f'v_and_b32 v{U+6}, 1, v{U+2}')
    a(f'v_lshlrev_b32 v{U+6}, 4, v{U+6}')
    a(f'v_mov_b32 v{U+4}, 0x3f80')
    a(f'v_lshlrev_b32 v{U+6}, v{U+6}, v{U+4}')
    a(f'v_cndmask_b32 v{U+6}, 0, v{U+6}, vcc')
    a(f'v_lshrrev_b32 v{U+2}, 1, v{U+2}')
    a(f'v_lshl_add_u32 v{U+2}, v{U+8}, 2, v{U+2}')
    a(f'v_cmp_eq_u32 s[58:59], v{U+3}, v{U+8}')
    a(f'v_mov_b32 v{U+7}, 0x3f803f80')
    if cfg.wsum:
        a(f'v_mov_b32 v{WSA}, {WST+192}')
        a(f'v_mov_b32 v{U+4}, {WST}')
        a(f'v_cndmask_b32 v{WSA}, v{WSA}, v{U+4}, s[58:59]')
        a(f'v_lshl_add_u32 v{WSA}, v{U+1}, 4, v{WSA}')
        a(f's_min_u32 {t0}, {sP}, 2')
        a(f's_lshl_b32 {t0}, {t0}, 5')
        a(f'v_add_u32 v{WSA+1}, {t0}, v{U}')
        a(f'v_mul_u32_u24 v{WSA+2}, 192, v{WSA+1}')
        a(f'v_lshl_add_u32 v{WSA+2}, v{U+1}, 4, v{WSA+2}')
        a(f'v_add_u32 v{WSA+2}, {WREG}, v{WSA+2}')
        a(f'v_lshlrev_b32 v{WSA+1}, 1, v{WSA+1}')
        a(f'v_add_u32 v{WSA+1}, {WST}, v{WSA+1}')
    for i in range(0, 8, 2):
        a(f'v_cmp_eq_u32 vcc, {i}, v{U+2}')
        a(f'v_cmp_eq_u32 s[60:61], {i+1}, v{U+2}')
        a(f'v_cndmask_b32 v{OP+i//2}, 0, v{U+7}, s[58:59]')
        a(f'v_cndmask_b32 v{ID+i}, 0, v{U+6}, vcc')
        a(f'v_cndmask_b32 v{ID+i+1}, 0, v{U+6}, s[60:61]')
    if cfg.dry:
        a('s_mov_b64 exec, 0')
        a(f's_cmp_eq_u32 {sP}, 1')
        a('s_cbranch_scc1 P_dry1')
        a(f's_cmp_eq_u32 {sP}, 2')
        a('s_cbranch_scc1 P_dry2')
        a(f's_cmp_eq_u32 {sP}, 3')
        a('s_cbranch_scc1 P_dryd')
        a(f's_call_b64 {RET}, P_h0')
        a('P_dryd:')
        a('s_mov_b64 exec, -1')
        stamp(a, cfg, 15)
    if cfg.tokpos == 0 and cfg.t0pre < 2:
        await_cnt(a, 5, 'P_sy5', 12, 13, 4)
        for hf in range(cfg.t0pre, 2): issue_h('s57', 0, hf)
        a(f's_waitcnt vmcnt(6)')
    else:
        a(f's_waitcnt vmcnt({3*cfg.t0pre})')
    stamp(a, cfg, 10)
    arrive(a, 0, 12, 13)
    def lo_reads(r0, r1, off=0):
        return [f'ds_read_b128 {vr(X+4*s,4)}, v{r1 if s&1 else r0} offset:{off+64*(s>>1)}' for s in range(6)]
    if cfg.mix == 1:
        a(f's_lshr_b32 {t0}, {sP}, 1')
        a(f's_lshl_b32 {t0}, {t0}, 2')
        a(f's_add_u32 {t0}, {t0}, {CNT + 4*5}')
        a(f'v_mov_b32 v15, {t0}')
        await_cnt(a, 5, 'P_sy5', 15, 13, 4, setaddr=False)
    else:
        await_cnt(a, 5, 'P_sy5', 15, 13, 4)
    issue_first2()
    for l in lo_reads(RL0, RL1): a(l)
    await_cnt(a, 0, 'P_sy0', 12, 13, 4, setaddr=False)
    stamp(a, cfg, 2)
    def wl_reads(t, s):
        return [f'ds_read_b64_tr_b16 {vr(WL+(t*6+s)*4+2*sec,2)}, v14 offset:{s*3072+sec*768+t*64}' for sec in range(2)]
    def lat_mfma(t, s):
        c = '0' if s == 0 else vr(LT+16*t,16)
        return f'{MF32} {vr(LT+16*t,16)}, {vr(WL+(t*6+s)*4,4)}, {vr(X+4*s,4)}, {c}'
    def lateral(first):
        pend = []
        L = [wl_reads(0, s) for s in range(4)] if first else []
        seq = [(t, s) for t in range(3) for s in range(6)]
        for i, (t, s) in enumerate(seq):
            L.append(lat_mfma(t, s))
            if first and i + 4 < 18: L.append(wl_reads(*seq[i+4]))
            if s >= 1: L.append(pend[:4]); del pend[:4]
            if s == 5:
                pend += [f'v_mov_b32 v{SL}, v{LT}' if (t == 0 and j == 0) else f'v_add_f32 v{SL}, v{SL}, v{LT+16*t+j}' for j in range(16)]
        return flat(L), pend
    def sl_fin():
        return [f'v_mov_b32 v{SL+1}, v{SL}', 's_nop 1', f'v_permlane32_swap_b32 v{SL}, v{SL+1}', f'v_add_f32 v{SL}, v{SL}, v{SL+1}']
    L, pend = lateral(True)
    if cfg.wsum == 2:
        for i in range(4): a(f'v_mov_b32 v{U+i}, 0x3f803f80')
        M = []; k = 0
        for l in L:
            M.append(l)
            if l.startswith('v_mfma'):
                k += 1
                if 2 <= k < 8: M.append(f'ds_read_b128 {vr(F+4*(k-2),4)}, v{WSA+2} offset:{32*(k-2)}')
                if k >= 6 and k % 2 == 0 and k < 18:
                    s_ = (k - 6) // 2
                    M.append(f'{MF32} {vr(X+24,16)}, {vr(U,4)}, {vr(F+4*s_,4)}, {"0" if s_ == 0 else vr(X+24,16)}')
        L = M
    L = autowait(L, age=99)
    if cfg.tokpos > 0 and cfg.t0pre < 2:
        k = [i for i, l in enumerate(L) if l.startswith('v_mfma')][cfg.tokpos]
        for l in L[:k]: a(l)
        a('s_waitcnt lgkmcnt(0)')
        await_cnt(a, 5, 'P_sy5', 12, 13, 4)
        for hf in range(cfg.t0pre, 2): issue_h('s57', 0, hf)
        L = L[k:]
    for l in L: a(l)
    if cfg.wsum == 2:
        a(f'v_cvt_pk_bf16_f32 v{X+24}, v{X+24}, v{X+24}')
        a(f'ds_write_b16 v{WSA+1}, v{X+24}')
    if cfg.wsum == 1:
        for s_ in range(6): a(f'ds_read_b128 {vr(F+4*s_,4)}, v{WSA+2} offset:{32*s_}')
        for i in range(4): a(f'v_mov_b32 v{U+i}, 0x3f803f80')
        for l in pend[:8]: a(l)
        del pend[:8]
        for s_ in range(6):
            a(f's_waitcnt lgkmcnt({5-s_})')
            a(f'{MF32} {vr(X,16)}, {vr(U,4)}, {vr(F+4*s_,4)}, {"0" if s_ == 0 else vr(X,16)}')
            for l in pend[:2]: a(l)
            del pend[:2]
    for l in pend + sl_fin(): a(l)
    if cfg.wsum == 1:
        a(f'v_cvt_pk_bf16_f32 v{X}, v{X}, v{X}')
        a(f'ds_write_b16 v{WSA+1}, v{X}')
    if cfg.wsum: a('s_waitcnt lgkmcnt(0)')
    arrive(a, 16, 12, 13)
    stamp(a, cfg, 3)
    a(f's_lshl_b32 {t0}, {sP}, 2')
    a(f's_add_u32 {t0}, {t0}, {PF}')
    a(f'v_mov_b32 v{FLA}, {t0}')
    a(f'v_mov_b32 v{FLV}, 0')
    if cfg.st2: a(f's_mov_b32 s61, {f32(1e-5 * 9216)}')
    if cfg.tok3: await_cnt(a, 6, 'P_sy6', 12, 13, 4)
    a(f's_cmp_lt_u32 {sP}, 2')
    a('s_cbranch_scc0 P_scriptB')
    def script(tag, tiles, lats, los):
        n = len(tiles)
        q = ['h0', 'h1']
        nxt = [2]
        done = set()
        def guard(r):
            if r >= 3 and not done:
                done.add(r); await_cnt(a, 4, f'P_w{tag}{r}', 12, 13, 4)
        def param(M, O):
            h = nxt[0]; r, hf = divmod(h, 2)
            guard(r)
            a(f's_add_u32 {M}, {sSlot}, {r*4*6144+3072*hf}')
            a(f's_add_u32 {O}, {tiles[r][0]}, {tiles[r][1]+6144*hf}')
            nxt[0] += 1
            return f'h{h}'
        def now_h():
            h = nxt[0]; r, hf = divmod(h, 2)
            guard(r)
            issue_h(tiles[r][0], r, hf, tiles[r][1]); nxt[0] += 1
            q.append(f'h{h}')
        def now_lo(key):
            for hf in range(2):
                a(f's_add_u32 m0, {sLoP}, {3072*hf}')
                a(f's_add_u32 {t0}, {sLo0}, {3072*hf}')
                for l in half(RLO, t0): a(l)
                q.append(key if hf else 'lox')
        if cfg.t0pre == 2 and cfg.tok2: await_cnt(a, 5, f'P_sy5{tag}', 12, 13, 4)
        if cfg.pair and tag == 'b':
            q[:] = ['h0', 'h2', 'h1', 'h3'] if (cfg.pair & 1 and cfg.mix != 3) else ['h0', 'h1', 'h2', 'h3']; nxt[0] = 4
            if cfg.mix == 3:
                for hf in range(2): issue_h(sH0, 1, hf, 192)
        if cfg.late4 != 2:
            for key in los.get(-1, []): now_lo(key)
        for _ in range(cfg.early): now_h()
        for r in range(n):
            ng = min(2, 2*n - nxt[0])
            if r == 1 and cfg.r1late: ng = 1
            new = []
            if cfg.pair:
                ng = 4 if (nxt[0] == 2*r + 2 and nxt[0] < 2*n) else 0
                late = cfg.late4 and tag == 'a' and r == 0
                if late: ng = 0
                if ng:
                    h = nxt[0]; guard(h // 2 + 1)
                    param(M1, O1); param(M2, O2); nxt[0] += 2
                    new = [f'h{h}', f'h{h+2}', f'h{h+1}', f'h{h+3}'] if cfg.pair in (1, 4) else [f'h{h+i}' for i in range(4)]
            elif cfg.deep2 and r == cfg.deep2 - 1:
                ng = 4; h = nxt[0]
                param(M1, O1); nxt[0] += 1; param(M2, O2); nxt[0] += 1
                new = [f'h{h}', f'h{h+1}', f'h{h+2}', f'h{h+3}']
            else:
                if ng >= 1: new.append(param(M1, O1))
                if ng >= 2: new.append(param(M2, O2))
            last = r == n - 1
            if cfg.b2 and r >= 1: a(f"{TM(cfg)} s[{STAMP0+2*(10+r)}:{STAMP0+2*(10+r)+1}]")
            if lats[r] is not None:
                key = lats[r]
                if key in q:
                    i2 = q.index(key)
                    a(f's_waitcnt vmcnt({3*(len(q)-1-i2)})'); del q[:i2+1]
                off = LO - r * 24576
                a(f'v_add_u32 v12, {off}, v{RA0}\nv_add_u32 v13, {off}, v{RA1}')
                a(f's_call_b64 {RET}, P_lat')
            idx = max([q.index(x) for x in (f'h{2*r}', f'h{2*r+1}') if x in q] + [-1])
            if cfg.b2 and lats[r] is not None: a(f"{TM(cfg)} s[{STAMP0+2*(1 if r < 2 else 2)}:{STAMP0+2*(1 if r < 2 else 2)+1}]")
            if last and tag == 'a':
                a(f's_call_b64 {RET}, P_h0w'); break
            a(f's_waitcnt vmcnt({3*(len(q)-1-idx)})'); stamp(a, cfg, 4+r)
            del q[:idx+1]; q.extend(new)
            if last: break
            a(f's_call_b64 {RET}, P_h{ng}')
            if cfg.pair and late:
                if cfg.late4 == 2:
                    for key in los.get(-1, []): now_lo(key)
                for hf in range(2):
                    issue_h(tiles[1][0], 1, hf, tiles[1][1]); issue_h(tiles[2][0], 2, hf, tiles[2][1])
                q.extend(['h2', 'h4', 'h3', 'h5']); nxt[0] = 6
            if r == 1 and cfg.r1late: now_h()
            for key in los.get(r, []): now_lo(key)
            if tag == 'b' and r == cfg.wvr:
                await_cnt(a, 16, 'P_wl', 12, 13, 4)
                a(f's_sub_u32 {t0}, {sP}, 2\ns_mul_i32 {t0}, {t0}, 9216')
                a(f'v_lshlrev_b32 v12, 4, v1\nv_add_u32 v12, {t0}, v12')
                for k in range(3):
                    a(f's_add_u32 m0, {t0}, {WREG+3072*k}')
                    a(f's_add_u32 s50, s16, {3072*k}\ns_addc_u32 s51, s17, 0')
                    for j in range(3): a(f'global_load_lds_dwordx4 v12, s[50:51] offset:{1024*j}')
                    q.append('wv')
                if cfg.touch:
                    a(f's_mov_b32 s36, s26\ns_mov_b32 s37, s27\ns_mov_b32 s38, {REC_BYTES}\ns_mov_b32 s39, 0x20000')
                    if cfg.fl:
                        a('v_and_b32 v12, 7, v1\nv_lshlrev_b32 v12, 17, v12')
                        a('v_lshrrev_b32 v13, 3, v1\nv_lshl_add_u32 v12, v13, 6, v12')
                        a(f's_lshl_b32 {t0}, s2, 9')
                    else:
                        a('v_and_b32 v12, 15, v1\nv_lshlrev_b32 v12, 16, v12')
                        a('v_lshrrev_b32 v13, 4, v1\nv_lshl_add_u32 v12, v13, 6, v12')
                        a(f's_lshl_b32 {t0}, s2, 8')
                    a(f'buffer_load_dword v232, v12, {RWS}, {t0} offen' + (' sc1' if cfg.touch == 3 else ''))
                    a(f'v_mov_b32 v12, 0')
                    a(f'global_load_dword v234, v12, {SOUT}')
                    a(f'global_load_dword v233, v12, {SQ}')
                    q.append('touch')
    TL = [(sH0, 0), (sH0, 192), (sH0, 73728), (sH0, 73728+192)]
    if cfg.tord: TL = [TL[0], TL[2], TL[1], TL[3]]
    script('a', [None] + TL, [None, 'lo0', None, None, None], {cfg.lopos: ['lo0']})
    if cfg.b2: a(f"{TM(cfg)} s[{STAMP0+30}:{STAMP0+31}]")
    a('s_branch P_fin')
    a('P_scriptB:')
    script('b', [None] + TL[1:], [None, None, None, None], {})
    a(f's_call_b64 {RET}, P_h0')
    if cfg.b2: a(f"{TM(cfg)} s[{STAMP0+30}:{STAMP0+31}]")
    a(f'v_mov_b32 v{FLV}, 5')
    a('s_waitcnt vmcnt(0)')
    a(f'ds_write_b32 v{FLA}, v{FLV}')
    if cfg.trp: a('s_branch L_exit')
    if cfg.stamps: a('s_mov_b32 s100, 0')
    a('s_cmp_ge_u32 s2, 16')
    a('s_cbranch_scc1 L_exit')
    if cfg.stamps: a('s_mov_b32 s100, 1')
    if cfg.prog:
        a(f'v_mov_b32 v12, {CNT+48}')
        a('P_w17:')
        a('ds_read_b128 v[232:235], v12')
        a('s_waitcnt lgkmcnt(0)')
        a('v_min_u32 v232, v232, v233')
        a('v_min3_u32 v232, v232, v234, v235')
        a('v_cmp_gt_u32 vcc, 24576, v232')
        a('s_cbranch_vccnz P_w17')
    else:
        await_cnt(a, 17, 'P_w17', 12, 13, 4)
    a(f's_sub_u32 {t0}, {sP}, 2\ns_mul_i32 {t0}, {t0}, 9216')
    a(f'v_lshlrev_b32 v12, 4, v1\nv_add_u32 v12, {t0}, v12')
    for k in range(3):
        a(f's_add_u32 m0, {t0}, {WO+3072*k}')
        a(f's_add_u32 s50, s18, {3072*k}\ns_addc_u32 s51, s19, 0')
        for j in range(3): a(f'global_load_lds_dwordx4 v12, s[50:51] offset:{1024*j}')
    a('P_fin:')
    if cfg.trp: a('s_branch L_exit')
    stamp(a, cfg, 9)
    a('s_cmp_ge_u32 s2, 16')
    a('s_cbranch_scc1 L_exit')
    a('s_setprio 0')
    a(f's_load_dword s47, {SDBG}, 0')
    a('s_waitcnt lgkmcnt(0)')
    a('s_cmp_eq_u32 s47, 0')
    a('s_cbranch_scc1 P_getnonce')
    a('P_getnonce_d:')
    a(f's_mov_b32 s36, s26\ns_mov_b32 s37, s27\ns_mov_b32 s38, {REC_BYTES}\ns_mov_b32 s39, 0x20000')
    await_cnt(a, 7, 'P_w7', 12, 13, 4)
    a('s_cmp_lt_u32 s50, 0x100')
    a('s_cbranch_scc1 L_comb')
    a('s_branch Z_comb')
    nonce_slow(a, 'P_getnonce', 'P_getnonce_d', 20)
    if cfg.dry:
        a('P_dry1:')
        a('s_call_b64 s[60:61], C_blk2')
        a('s_branch P_dryd')
        a('P_dry2:')
        a(f's_call_b64 {RET}, P_lat')
        a('s_branch P_dryd')
    a('P_lat:')
    if cfg.pp: a(f's_setprio {cfg.pl}')
    if cfg.wsum:
        wsr = [f'ds_read_b128 {vr(F+4*s_,4)}, v{WSA} offset:{32*s_}' for s_ in range(6)]
        L = lo_reads(12, 13)
        for i, (t, s_) in enumerate([(t, s_) for t in range(3) for s_ in range(6)]):
            L.append(lat_mfma(t, s_))
            if i < 6: L.append(wsr[i])
            if i >= 6 and i % 2 == 0: L.append(f'{MF16} {vr(SL,4)}, {vr(F+4*((i-6)//2),4)}, {vr(X+4*((i-6)//2),4)}, {"0" if i == 6 else vr(SL,4)}')
        for l in autowait(L, age=99): a(l)
        a(f's_setpc_b64 {RET}')
    else:
        L, pend = lateral(False)
        for l in autowait(lo_reads(12, 13) + L, age=99): a(l)
        a('s_nop 9')
        for l in pend + sl_fin(): a(l)
        a(f's_setpc_b64 {RET}')
    hp = cfg.pm if cfg.pp else None
    g1 = [f's_mov_b32 m0, {M1}', 's_nop 0'] + half(RHI, O1, SR)
    g2 = [f's_mov_b32 m0, {M2}', 's_nop 0'] + half(RHI, O2, SR)
    def traced(lines, first, n):
        step = max(1, len(lines) // n); k = first
        for i, l in enumerate(lines):
            if i % step == 0 and k < first + n:
                stamp(a, cfg, k, True); k += 1
            a(l)
    if not cfg.pair:
        a('P_h2:')
        traced(B.p_head(g1, g2, hp), 2, 3)
        a('s_branch P_s1')
    if cfg.pair:
        a('P_h4:')
        def grp(M, O): return [f's_mov_b32 m0, {M}', f's_add_u32 {t1}, {O}, 192'] + half(RHI, O, SR) + [f's_add_u32 m0, {M}, 24576', 's_nop 0'] + half(RHI, t1, SR)
        G1, G2 = grp(M1, O1), grp(M2, O2)
        if cfg.pair not in (1, 4):
            G1 = [f's_mov_b32 m0, {M1}', f's_add_u32 {t1}, {O1}, 192'] + half(RHI, O1, SR) + [f's_mov_b32 m0, {M2}', f's_add_u32 {t2}, {O2}, 192'] + half(RHI, O2, SR)
            G2 = [f's_add_u32 m0, {M1}, 24576', 's_nop 0'] + half(RHI, t1, SR) + [f's_add_u32 m0, {M2}, 24576', 's_nop 0'] + half(RHI, t2, SR)
        H = B.p_head(G1, (), hp)
        k1 = [i for i, l in enumerate(H) if l.startswith('v_mfma')]
        H = H[:k1[0]+1] + G2[:5] + H[k1[0]+1:k1[1]+1] + G2[5:] + H[k1[1]+1:]
        for l in H: a(l)
        a('s_branch P_s1')
    elif cfg.deep2:
        a('P_h4:')
        def grp(M, O): return [f's_mov_b32 m0, {M}', f's_add_u32 {t1}, {O}, 6144'] + half(RHI, O, SR) + [f's_add_u32 m0, {M}, 3072', 's_nop 0'] + half(RHI, t1, SR)
        H = B.p_head(grp(M1, O1), (), hp)
        G2 = grp(M2, O2)
        k1 = [i for i, l in enumerate(H) if l.startswith('v_mfma')]
        H = H[:k1[0]+1] + G2[:5] + H[k1[0]+1:k1[1]+1] + G2[5:] + H[k1[1]+1:]
        for l in H: a(l)
        a('s_branch P_s1')
    else:
        a('P_h1:')
        traced(B.p_head(g1, (), hp), 2, 3)
        a('s_branch P_s1')
    a('P_h0w:')
    a('s_waitcnt vmcnt(0)')
    stamp(a, cfg, 8)
    a('P_h0:')
    for l in B.p_head((), (), hp): a(l)
    a('P_s1:')
    tail = B.p_tail(0, cfg.pv if cfg.pp else None) if not cfg.pk else B.p_tail_pk(cfg.pv if cfg.pp else None, bool(cfg.pk & 1), bool(cfg.pk & 2))
    if cfg.st2: tail = B.p_tail2(cfg.pv if cfg.pp else None, cfg.st2 == 1)
    traced(tail[:-1], 5, 9)
    if not cfg.st2: a(f'v_add_u32 v{FLV}, 1, v{FLV}')
    a('s_waitcnt lgkmcnt(0)')
    a(f'ds_write_b32 v{FLA}, v{FLV}')
    a(f's_setpc_b64 {RET}')

def gen_consumer(a, cfg):
    sH = 's40'
    t0, t1 = 's41', 's42'
    RET = 's[60:61]'
    sR = 's43'
    LIN, REC, WVA, XA = 2, 3, 8, 9
    CA0, CA1, CT0, CT1 = B.C.CA0, B.C.CA1, B.C.CT0, B.C.CT1
    PART = 12
    AP, U, LA, OP = B.C.AP, B.C.U, B.C.LA, B.C.OP
    WV = B.C.WV
    QB, WK, ME, QT, QP, TA, QF = 96, 108, 132, 156, 164, 168, 16
    T = 240
    T2 = 248
    a('L_cons:')
    if cfg.cearly: a(f's_setprio {cfg.cpp}')
    a('s_memrealtime s[58:59]')
    code_prefetch(a, 'L_pc', 0, -256)
    a(f's_sub_u32 {sH}, s3, 4')
    a(f'v_lshlrev_b32 v{LIN}, 4, v1')
    a(f's_mul_i32 s48, {sH}, 4608')
    a(f'v_add_u32 v{PART}, s48, v{LIN}')
    a(f's_min_u32 {t0}, {sH}, 2')
    a(f's_lshl_b32 s46, {sH}, 2')
    a(f's_add_u32 s46, s46, {t0}')
    a(f's_lshl_b32 s46, s46, 10')
    a(f'v_add_u32 v13, s46, v{LIN}')
    a(f's_lshl_b32 s54, {t0}, 10')
    a(f'v_add_u32 v10, s54, v{LIN}')
    a('s_lshr_b32 s50, s2, 3\ns_and_b32 s50, s50, 31\ns_mul_i32 s50, s50, 640')
    a(f'v_lshlrev_b32 v14, 7, v1')
    a(f'v_add_u32 v14, s50, v14')
    a(f'v_min_u32 v14, 18428, v14')
    N, G, RHO, KAP = T+4, T+5, T+6, T+7
    a(f'v_and_b32 v{N}, 15, v1')
    a(f'v_lshrrev_b32 v{G}, 4, v1')
    a(f'v_bfe_u32 v{RHO}, v1, 2, 2')
    a(f'v_and_b32 v{KAP}, 3, v1')
    a(f'v_mul_u32_u24 v{T+8}, 192, v{N}')
    a(f'v_lshl_add_u32 v{T+8}, v{G}, 4, v{T+8}')
    a(f'v_lshl_add_u32 v{T+9}, v{RHO}, 3, v{KAP}')
    a(f'v_mul_u32_u24 v{T+9}, 48, v{T+9}')
    a(f'v_lshl_add_u32 v{T+9}, v{G}, 4, v{T+9}')
    a(f'v_add_u32 v{T+9}, s48, v{T+9}')
    if cfg.spf & 6:
        a(f's_cmp_lt_u32 {sH}, 2')
        a(f's_cselect_b32 s96, 8, {sH}')
        a(f's_cselect_b32 s97, {sH}, 0')
        a('s_add_u32 s96, s96, s57')
        a('s_mul_i32 s98, s96, 43691')
        a('s_lshr_b32 s98, s98, 19')
        a('s_add_u32 s98, s98, s97')
        a('s_mul_i32 s98, s98, 73728')
        a('s_mul_i32 s96, s96, 6144')
        a('s_add_u32 s97, s96, s98')
    if cfg.bist: stamp(a, cfg, 12)
    a('s_waitcnt lgkmcnt(0)')
    if cfg.bist: stamp(a, cfg, 13)
    if cfg.spf & 6:
        a('s_add_u32 s98, s6, s97\ns_addc_u32 s99, s7, 0')
    a(f's_cmp_eq_u32 {sH}, 0\ns_cselect_b64 s[50:51], {SWV}, {SWQ}')
    a(f's_cmp_eq_u32 {sH}, 2\ns_cselect_b64 s[50:51], {SWK}, s[50:51]')
    a(f's_cmp_eq_u32 {sH}, 3\ns_cselect_b64 s[50:51], {SWM}, s[50:51]')
    a('s_mov_b64 exec, 31')
    a(f'global_load_dword v200, v14, s[50:51]')
    a('s_mov_b64 exec, -1')
    o2 = cfg.spn if cfg.spf & 1 else 0
    if cfg.spf & 2:
        for i in range(cfg.spn): a(f's_load_dword s96, s[98:99], {128*(o2+i)}')
        o2 += cfg.spn
    if cfg.bist: stamp(a, cfg, 11)
    a('s_barrier')
    if cfg.bist: stamp(a, cfg, 14)
    a(f's_lshl_b32 s50, s2, 2\ns_xor_b32 s50, s50, {sH}\ns_cmp_eq_u32 s50, 3')
    a('s_cbranch_scc1 C_mknonce')
    a('C_mknonce_d:')
    if cfg.fake: arrive(a, 5, 14, 15)
    def wk_loads():
        a('s_mov_b32 exec_hi, 0xffff')
        for s in range(3):
            for tt in range(2):
                a(f'global_load_dwordx4 {vr(WK+(2*s+tt)*4,4)}, v{T+9}, {SWK} offset:{1536*s+192*tt}')
        a('s_mov_b32 exec_hi, -1')
    if cfg.pro == 2:
        for s in range(3): a(f'global_load_dwordx4 {vr(QB+4*s,4)}, v{T+8}, {SQ} offset:{64*s}')
        dma_part(a, SWQ, WQ, PART, 's48')
        if cfg.wkpos == 2: arrive(a, 5, 14, 15)
        a('s_mov_b32 s57, s46')
        a(f'v_mov_b32 v{PART}, v13')
        for i in range(24): a(f'v_mov_b32 v{WK+i}, 0')
        wk_loads()
        if cfg.wkpos == 1: arrive(a, 5, 14, 15)
    elif not cfg.fake:
        M1S, M1L, M2S, M2L = (SWM, WM, SWQ, WQ) if cfg.mfirst else (SWQ, WQ, SWM, WM)
        a(f's_cmp_ge_u32 {sH}, 3')
        a('s_cbranch_scc1 C_noy')
        a(f's_add_u32 m0, s54, {QS}')
        a(f's_cmp_ge_u32 {sH}, 2')
        a(f'global_load_lds_dwordx4 v10, {SQ}')
        a('s_cbranch_scc1 C_noy')
        dma_extra(a, M1S, M1L, 13, 's46')
        a('C_noy:')
        dma_main(a, M1S, M1L, 13, 's46')
        if cfg.wkpos == 2: arrive(a, 5, 14, 15)
        a('s_mov_b32 s57, s46')
        a(f'v_mov_b32 v{PART}, v13')
        for i in range(24): a(f'v_mov_b32 v{WK+i}, 0')
    stamp(a, cfg, 1)
    a(f's_mov_b32 s36, s26\ns_mov_b32 s37, s27\ns_mov_b32 s38, {REC_BYTES}\ns_mov_b32 s39, 0x20000')
    a(f's_and_b32 s49, {sH}, 1\ns_lshl_b32 s55, s49, 1\ns_lshr_b32 s56, {sH}, 1\ns_add_u32 s55, s55, s56')
    a(f's_lshl_b32 {t0}, s2, 2\ns_add_u32 {t0}, {t0}, s55\ns_lshl_b32 {t0}, {t0}, 6')
    a(f'v_mul_u32_u24 v{REC}, {65536 + cfg.skew}, v{N}')
    a(f'v_lshl_add_u32 v{REC}, v{G}, 4, v{REC}')
    a(f'v_add_u32 v{REC}, {t0}, v{REC}')
    a('s_mul_i32 s52, s56, 12288')
    a(f'v_and_b32 v{T+10}, 31, v1')
    a(f'v_lshrrev_b32 v{T+11}, 5, v1')
    a(f'v_lshlrev_b32 v{T+12}, 1, v{N}')
    a(f'v_bfe_u32 v{T+12}, {SF}, v{T+12}, 2')
    a(f'v_xor_b32 v{T+12}, v{T+12}, v{T+11}')
    a(f'v_mul_u32_u24 v{T+13}, 192, v{T+10}')
    a(f'v_add_u32 v{T+13}, s52, v{T+13}')
    a(f'v_lshl_add_u32 v{CA0}, v{T+12}, 4, v{T+13}')
    a(f'v_xor_b32 v{T+12}, 2, v{T+12}')
    a(f'v_lshl_add_u32 v{CA1}, v{T+12}, 4, v{T+13}')
    a(f'v_lshl_add_u32 v{T+12}, v{T+11}, 2, v{RHO}')
    a(f'v_bfe_u32 v{T+13}, v1, 4, 1')
    a(f'v_lshrrev_b32 v{T+14}, 1, v{KAP}')
    a(f'v_lshl_add_u32 v{T+14}, v{T+13}, 1, v{T+14}')
    a(f'v_and_b32 v{T+15}, 1, v{KAP}')
    a(f'v_lshlrev_b32 v{T+15}, 3, v{T+15}')
    a(f'v_add_u32 v{T+15}, s52, v{T+15}')
    for sec, dst in ((0, CT0), (1, CT1)):
        if sec: a(f'v_add_u32 v{T+12}, 8, v{T+12}')
        a(f'v_lshlrev_b32 v{dst}, 1, v{T+12}')
        a(f'v_bfe_u32 v{dst}, {SF}, v{dst}, 2')
        a(f'v_xor_b32 v{dst}, v{dst}, v{T+14}')
        a(f'v_lshl_add_u32 v{dst}, v{dst}, 4, v{T+15}')
        a(f'v_mul_u32_u24 v10, 192, v{T+12}')
        a(f'v_add_u32 v{dst}, v{dst}, v10')
    a(f'v_lshl_add_u32 v{WVA}, v{T+11}, 2, v{RHO}')
    a(f'v_lshl_add_u32 v{WVA}, v{T+13}, 4, v{WVA}')
    a(f'v_mul_u32_u24 v{WVA}, 48, v{WVA}')
    a(f'v_lshl_add_u32 v{WVA}, v{KAP}, 3, v{WVA}')
    a(f'v_add_u32 v{WVA}, {WREG}, v{WVA}')
    a(f's_xor_b32 {t0}, s55, 1')
    a(f's_mul_i32 s53, {t0}, 4608')
    a(f's_mul_i32 s46, s55, 4608')
    a(f'v_mov_b32 v10, s46')
    a(f'v_mov_b32 v11, s53')
    a(f'v_cmp_eq_u32 vcc, 0, v{T+13}')
    a(f'v_mul_u32_u24 v{XA}, 192, v{N}')
    a(f'v_lshl_add_u32 v{XA}, v{T+11}, 4, v{XA}')
    a(f'v_cndmask_b32 v10, v11, v10, vcc')
    a(f'v_add_u32 v{XA}, v{XA}, v10')
    a(f'v_add_u32 v{XA}, {WQ}, v{XA}')
    a(f'v_lshl_add_u32 v{T+12}, v{G}, 3, v{RHO}')
    a(f'v_mul_u32_u24 v10, 48, v{T+12}')
    a(f'v_min_u32 v11, 2, v{KAP}')
    a(f'v_lshl_add_u32 v10, v11, 4, v10')
    a(f's_add_u32 {t0}, s48, {WQ}')
    a(f'v_add_u32 v10, {t0}, v10')
    a(f'v_add_u32 v13, {t0}, v{T+8}')
    a(f'v_add_u32 v{T+8}, {QS}, v{T+8}')
    a(f'v_mul_u32_u24 v11, 192, v{T+12}')
    a(f'v_lshl_add_u32 v11, v{KAP}, 4, v11')
    a(f'v_add_u32 v11, {WM}, v11')
    a(f'v_and_b32 v{T+12}, 1, v1')
    a(f'v_cmp_eq_u32 vcc, v{T+12}, v{T+13}')
    a(f'v_mov_b32 v{T+12}, 0x3f803f80')
    for i in range(52 - cfg.zl):
        a(f'v_mov_b32 v{U+i}, 0')
        if i == 1:
            for k in range(4): a(f'v_cndmask_b32 v{OP+k}, 0, v{T+12}, vcc')
    if cfg.fake:
        a(f's_add_u32 s58, s58, {cfg.fake}')
        a('C_fk:')
        a('s_memrealtime s[50:51]')
        a('s_waitcnt lgkmcnt(0)')
        a('s_sub_u32 s50, s50, s58')
        a('s_cmp_lt_i32 s50, 0')
        a('s_cbranch_scc1 C_fk')
        stamp(a, cfg, 2)
        a(f's_mul_i32 s50, {sH}, 3072')
        a(f's_add_u32 s50, s50, {8<<20}')
        a(f's_add_u32 s50, s26, s50\ns_addc_u32 s51, s27, 0')
        a(f's_add_u32 m0, s48, {WQ}')
        a('s_nop 0')
        for k in range(3): a(f'global_load_lds_dwordx4 v{LIN}, s[50:51] offset:{1024*k}' + (' sc1' if cfg.fsc else ''))
        a('s_waitcnt vmcnt(0)')
        stamp(a, cfg, 15)
        lds_sync(a, 3, 'C_sy3', 14, 15)
        a('s_cmp_eq_u32 s2, 999')
        a('s_cbranch_scc1 Z_sy3')
    else:
        def me_rd(sp, st): return [f'ds_read_b64_tr_b16 {vr(TA+(sp*6+st)*4+2*sec,2)}, v11 offset:{sp*6144+sec*768+(st>>1)*64+(st&1)*8}' for sec in range(2)]
        def q_rd(s, tt): return [f'ds_read_b64_tr_b16 {vr(QF+(tt*3+s)*4+2*sec,2)}, v10 offset:{s*1536+sec*192+tt*8}' for sec in range(2)]
        def q_mm(s, tt): return f'{MF16} {vr(QT+4*tt,4)}, {vr(QF+(tt*3+s)*4,4)}, {vr(QB+4*s,4)}, {"0" if s == 0 else vr(QT+4*tt,4)}'
        if cfg.pro == 2:
            if cfg.wkpos == 3: arrive(a, 5, 14, 15)
            if cfg.wmtok: await_cnt(a, 6, 'C_tk6', 14, 15, 4)
            if cfg.bist: stamp(a, cfg, 7)
            a(f's_cmp_ge_u32 {sH}, 2')
            a('s_cbranch_scc1 C_nox')
            dma_extra(a, SWM, WM, PART, 's57')
            a('C_nox:')
            dma_main(a, SWM, WM, PART, 's57')
            if cfg.wkpos == 0: arrive(a, 5, 14, 15)
            epi_setup(a, cfg)
            if cfg.bist: stamp(a, cfg, 6)
            a('s_waitcnt vmcnt(10)')
            if cfg.bist: stamp(a, cfg, 5)
            if cfg.cpp: a(f's_setprio {cfg.cpp}')
            stamp(a, cfg, 2)
            qseq = [(s, tt) for s in range(3) for tt in range(2)]
            L = [q_rd(*x) for x in qseq] + [q_mm(*x) for x in qseq]
            for l in autowait(flat(L), age=99): a(l)
            for i in range(8): a(f'v_add_f32 v{QT+i}, v{QT+i}, v{QT+i}')
            for i in range(4): a(f'v_cvt_pk_bf16_f32 v{QP+i}, v{QT+2*i}, v{QT+2*i+1}')
            a('s_waitcnt vmcnt(4)')
            for st in range(6):
                a(f'{MF16} {vr(ME+4*st,4)}, {vr(WK+4*st,4)}, {vr(QP,4)}, 0')
            if cfg.bist: stamp(a, cfg, 4)
            a('s_waitcnt vmcnt(0)')
            lds_sync(a, 1, 'C_sy1', 14, 15)
            if cfg.bist: stamp(a, cfg, 8)
            stamp(a, cfg, 15)
            seq = [(sp, st) for sp in range(3) for st in range(6)]
            L = [me_rd(*seq[i]) for i in range(7)]
            for i, (sp, st) in enumerate(seq):
                L.append(f'{MF16} {vr(ME+4*st,4)}, {vr(TA+(sp*6+st)*4,4)}, {vr(QB+4*sp,4)}, {vr(ME+4*st,4)}')
                if i + 7 < 18: L.append(me_rd(*seq[i+7]))
            for l in autowait(flat(L), age=99): a(l)
        else:
            if cfg.spf & 4:
                for i in range(min(cfg.spn, 48 - o2)): a(f's_load_dword s96, s[98:99], {128*(o2+i)}')
            if cfg.bist: stamp(a, cfg, 7)
            if cfg.wkpos == 3: arrive(a, 5, 14, 15)
            a(f's_cmp_ge_u32 {sH}, 2')
            a('s_cbranch_scc1 C_nox')
            dma_extra(a, M2S, M2L, PART, 's57')
            a('C_nox:')
            dma_main(a, M2S, M2L, PART, 's57')
            if cfg.wkpos == 1: arrive(a, 5, 14, 15)
            if cfg.tk6 == 1: arrive(a, 6, 14, 15)
            a('s_mov_b32 exec_hi, 0xffff')
            for s in range(3):
                for tt in range(2):
                    a(f'global_load_dwordx4 {vr(WK+(2*s+tt)*4,4)}, v{T+9}, {SWK} offset:{1536*s+192*tt}')
            a('s_mov_b32 exec_hi, -1')
            if cfg.wkpos == 0: arrive(a, 5, 14, 15)
            if (cfg.tok3 or cfg.mix) and cfg.tk6 == 0: arrive(a, 6, 14, 15)
            epi_setup(a, cfg)
            if cfg.bist: stamp(a, cfg, 6)
            a('s_waitcnt vmcnt(6)')
            if cfg.bist: stamp(a, cfg, 5)
            lds_sync(a, 1, 'C_sy1', 14, 15)
            if cfg.cpp: a(f's_setprio {cfg.cpp}')
            stamp(a, cfg, 2)
            def me_rd(sp, st): return [f'ds_read_b64_tr_b16 {vr(TA+(sp*6+st)*4+2*sec,2)}, v11 offset:{sp*6144+sec*768+(st>>1)*64+(st&1)*8}' for sec in range(2)]
            def q_rd(s, tt): return [f'ds_read_b64_tr_b16 {vr(QF+(tt*3+s)*4+2*sec,2)}, v10 offset:{s*1536+sec*192+tt*8}' for sec in range(2)]
            def q_mm(s, tt): return f'{MF16} {vr(QT+4*tt,4)}, {vr(QF+(tt*3+s)*4,4)}, {vr(QB+4*s,4)}, {"0" if s == 0 else vr(QT+4*tt,4)}'
            def me_mm(sp, st): return f'{MF16} {vr(ME+4*st,4)}, {vr(TA+(sp*6+st)*4,4)}, {vr(QB+4*sp,4)}, {"0" if sp == 0 else vr(ME+4*st,4)}'
            seq = [(sp, st) for sp in range(3) for st in range(6)]
            qseq = [(s, tt) for s in range(3) for tt in range(2)]
            qb = [f'ds_read_b128 {vr(QB+4*s,4)}, v{T+8} offset:{64*s}' for s in range(3)]
            L = [qb[0], q_rd(0,0), q_rd(0,1), qb[1], q_rd(1,0), q_rd(1,1), qb[2], q_rd(2,0), q_rd(2,1)]
            for i, (s_, tt) in enumerate(qseq):
                L.append(q_mm(s_, tt)); L.append(me_rd(*seq[i]))
            post = [f'v_add_f32 v{QT+i}, v{QT+i}, v{QT+i}' for i in range(8)] + [f'v_cvt_pk_bf16_f32 v{QP+i}, v{QT+2*i}, v{QT+2*i+1}' for i in range(4)]
            for i, (sp, st) in enumerate(seq):
                L.append(me_mm(sp, st))
                if i + 6 < 18: L.append(me_rd(*seq[i+6]))
                if i >= 3: L.append(post[:1]); del post[:1]
            L.append(post)
            for l in autowait(flat(L), age=99): a(l)
            if cfg.bist: stamp(a, cfg, 4)
            a('s_waitcnt vmcnt(0)')
            if cfg.bist: stamp(a, cfg, 8)
            stamp(a, cfg, 15)
            for st in range(6):
                a(f'{MF16} {vr(ME+4*st,4)}, {vr(WK+4*st,4)}, {vr(QP,4)}, {vr(ME+4*st,4)}')
        sc = 96 ** -0.5 * math.log2(math.e)
        a(f's_mov_b32 {t0}, {f32(sc)}')
        for s in range(3):
            for i in range(8): a(f'v_mul_f32 v{ME+8*s+i}, {t0}, v{ME+8*s+i}')
            for i in range(4): a(f'v_cvt_pk_bf16_f32 v{ME+8*s+i}, v{ME+8*s+2*i}, v{ME+8*s+2*i+1}')
            a(f'ds_write_b128 v13, {vr(ME+8*s,4)} offset:{64*s}')
            a(f'{MF16} {vr(QT,4)}, {vr(ME+8*s,4)}, {vr(ME+8*s,4)}, {"0" if s == 0 else vr(QT,4)}')
        a(f's_mov_b32 {t0}, {f32(THR)}')
        a(f'v_mov_b32 v14, {CNT + 4*3}')
        a(f'v_max3_f32 v{QT}, v{QT}, v{QT+1}, v{QT+2}')
        a(f'v_max_f32 v{QT}, v{QT}, v{QT+3}')
        a(f'v_cmp_nge_f32 vcc, {t0}, v{QT}')
        a('s_cmp_eq_u64 vcc, 0')
        a('s_cselect_b32 s51, 1, 0x101')
        a('v_mov_b32 v15, s51')
        a('s_waitcnt lgkmcnt(0)')
        a('s_mov_b64 exec, 1')
        a('ds_add_rtn_u32 v15, v14, v15')
        a('s_mov_b64 exec, -1')
        a('s_waitcnt lgkmcnt(0)')
        a('v_readfirstlane_b32 s50, v15')
        a('s_add_u32 s50, s50, s51')
        a('s_cmp_eq_u32 s50, 4')
        a('s_cbranch_scc1 C_sy3_ok')
        await_cnt(a, 3, 'C_sy3', 14, 15, 4, setaddr=False)
        a('s_cmp_eq_u32 s50, 4')
        a('s_cbranch_scc0 Z_sy3')
    if not cfg.fake: a('C_sy3_ok:')
    stamp(a, cfg, 3)
    cons_main(a, cfg, False)
    a('C_mknonce:')
    a('s_or_b32 s50, s58, 1')
    a('v_mov_b32 v20, s50\nv_mov_b32 v21, 0\nv_mov_b32 v22, 0')
    a('s_mov_b64 exec, 1')
    a(f'global_atomic_cmpswap v22, v[20:21], {SDBG} sc1')
    a('s_mov_b64 exec, -1')
    a('s_branch C_mknonce_d')
    nonce_slow(a, 'C_getnonce', 'C_getnonce_d', T2)

def slow_rescale(NEW):
    MX = 160; U, LA = B.C.U, B.C.LA
    L = [f'v_max_f32 v{NEW}, v{NEW}, v{MX}',
         f'v_sub_f32 v{MX+4}, v{MX}, v{NEW}',
         f'v_exp_f32 v{MX+4}, v{MX+4}',
         f'v_mov_b32 v{MX}, v{NEW}', 's_nop 1',
         f'v_mov_b32 v{MX+5}, v{MX+4}', f'v_mov_b32 v{MX+6}, v{MX+4}', 's_nop 1',
         f'v_permlane16_swap_b32 v{MX+5}, v{MX+6}', 's_nop 1']
    L += [f'v_mul_f32 v{U+i}, v{U+i}, v{MX+4}' for i in range(48)]
    L += [f'v_mul_f32 v{LA+i}, v{LA+i}, v{MX+5+(i&1)}' for i in range(4)]
    return L

def slow_tile(off):
    MX = 160; S = B.C.S[0]
    tb = B.C.TB
    B.C.TB = off
    sv = (B.C.KA, B.C.KT, B.C.S, B.C.P)
    B.C.KA = [sv[0][0]] * 2; B.C.KT = [sv[1][0]] * 2; B.C.S = [S] * 2; B.C.P = [S] * 2
    L = [B.ka(1, s) for s in range(6)] + ['s_waitcnt lgkmcnt(0)']
    L += [B.kt(1, ks, t) for ks in range(2) for t in range(3)]
    L += [B.sm(1, s) for s in range(6)] + ['s_nop 15', 's_nop 15']
    L += [f'v_max3_f32 v{MX+1}, v{S}, v{S+1}, v{S+2}']
    L += [f'v_max3_f32 v{MX+1}, v{MX+1}, v{S+3+2*i}, v{S+4+2*i}' for i in range(6)]
    L += [f'v_max_f32 v{MX+1}, v{MX+1}, v{S+15}', f'v_mov_b32 v{MX+2}, v{MX+1}', 's_nop 1',
          f'v_permlane32_swap_b32 v{MX+1}, v{MX+2}', 's_nop 1', f'v_max_f32 v{MX+1}, v{MX+1}, v{MX+2}']
    L += slow_rescale(MX+1)
    L += [f'v_sub_f32 v{S+i}, v{S+i}, v{MX}' for i in range(16)]
    L += [B.ex(1, i) for i in range(16)] + ['s_nop 1'] + [B.cv(1, i) for i in range(8)]
    L += ['s_waitcnt lgkmcnt(0)', 's_nop 1']
    L += [B.pv(1, ks, t) for ks in range(2) for t in range(4)] + ['s_nop 15', 's_nop 15']
    B.C.TB = tb
    B.C.KA, B.C.KT, B.C.S, B.C.P = sv
    return flat(L)

EPI_REGS = (8, 240, 241, 242, 243, 0, 251, 254, 255, 244, 245)
def epi_setup(a, cfg):
    for i in range(52 - cfg.zl, 52): a(f'v_mov_b32 v{B.C.U+i}, 0')
    sH = 's40'
    t0, t1 = 's41', 's42'
    LIN, WVA = 2, 8
    WA0, FLA, XO, XP, FO, FP, ONE, MRA, THRV, XLW, XLR = EPI_REGS
    THR, INC = 246, 247
    a(f'v_add_u32 v{WA0}, s46, v{WVA}')
    a(f's_mul_i32 {t0}, {sH}, {XST}')
    a(f's_xor_b32 {t1}, {sH}, 2')
    a(f's_mul_i32 {t1}, {t1}, {XST}')
    a(f's_add_u32 {t0}, {t0}, {XCH}')
    a(f's_add_u32 {t1}, {t1}, {XCH+3072}')
    a(f'v_add_u32 v{XO}, {t0}, v{LIN}')
    a(f'v_lshlrev_b32 v{XLR}, 2, v1')
    a(f'v_add_u32 v{XLW}, {t1}, v{XLR}')
    a(f'v_add_u32 v{XLR}, {t0}, v{XLR}')
    a(f's_mov_b32 s52, 0xffff0000\ns_mov_b32 s53, 0xffff0000')
    if cfg.xv == 0:
        a(f'v_add_u32 v{XP}, {t1}, v{LIN}')
    else:
        a(f'v_mov_b32 v{XP}, {t0}')
        a(f'v_mov_b32 v14, {t1}')
        a(f'v_and_b32 v15, 15, v1')
        a(f'v_cndmask_b32 v{XP}, v{XP}, v14, s[52:53]')
        a(f'v_lshl_add_u32 v{XP}, v15, 4, v{XP}')
        a(f'v_lshrrev_b32 v15, 5, v1')
        a(f'v_lshl_add_u32 v{XP}, v15, 9, v{XP}')
    a(f'v_and_b32 v{FLA}, 3, v1')
    a(f's_xor_b32 {t0}, s56, 1')
    a(f'v_cmp_eq_u32 vcc, {t0}, v{FLA}')
    a(f'v_lshlrev_b32 v{FLA}, 2, v{FLA}')
    a(f'v_add_u32 v{FLA}, {PF}, v{FLA}')
    a(f'v_cndmask_b32 v{THRV}, 5, 4, vcc')
    a(f's_lshl_b32 {t0}, {sH}, 2')
    a(f's_add_u32 {t0}, {t0}, {CNT+32}')
    a(f'v_mov_b32 v{FO}, {t0}')
    a(f'v_xor_b32 v{FP}, 8, v{FO}')
    a(f'v_mov_b32 v{ONE}, 1')
    a('s_mov_b32 s44, 0\ns_mov_b32 s45, -1')
    a(f'v_bfe_u32 v{INC}, v1, 1, 1')
    a(f'v_cmp_eq_u32 vcc, s56, v{INC}')
    if cfg.uni == 2:
        a('s_mov_b32 s61, 4')
        a('s_mul_i32 s59, s56, -6144')
        a('s_add_u32 s59, s59, 24576')
    else:
        a('s_add_u32 s61, s56, 3')
        a('s_mov_b32 s59, -6144')
    a('s_mov_b32 s43, 0')
    a(f'v_cndmask_b32 v{INC}, 0, 1, vcc')
    a(f'v_mov_b32 v{THR}, v{INC}')

def cons_main(a, cfg, slow):
    sH = 's40'
    t0, t1 = 's41', 's42'
    RET = 's[60:61]'
    sR = 's43'
    LIN, REC, WVA, XA = 2, 3, 8, 9
    CA0, CA1, CT0, CT1 = B.C.CA0, B.C.CA1, B.C.CT0, B.C.CT1
    AP, U, LA, OP = B.C.AP, B.C.U, B.C.LA, B.C.OP
    WV = B.C.WV
    T2 = 248
    Z = 'Z' if slow else 'C'
    prog = cfg.prog
    OOL = []
    MX = 160
    if slow:
        xv = cfg.xv; cfg = Cfg(); cfg.stamps = False; cfg.xv = xv
        a('Z_sy3:')
        a('ds_read_b32 v15, v14')
        a('s_waitcnt lgkmcnt(0)')
        a('v_readfirstlane_b32 s50, v15')
        a('s_and_b32 s50, s50, 0xff')
        a('s_cmp_lt_u32 s50, 4')
        a('s_cbranch_scc1 Z_sy3')
        a(f'v_mov_b32 v{MX}, {f32(-3e38)}')
    WA0, FLA, XO, XP, FO, FP, ONE, MRA, THRV, XLW, XLR = EPI_REGS
    for s in range(6): a(f'ds_read_b128 {vr(AP+4*s,4)}, v{XA} offset:{32*s}')
    if slow:
        a(f's_lshl_b32 {t0}, s56, 3\ns_add_u32 {t0}, {t0}, {PF}')
        a(f'v_mov_b32 v10, {t0}')
        a(f's_mov_b32 {sR}, 1')
        a('s_waitcnt lgkmcnt(0)')
        arrive(a, 4, 14, 15)
    if slow:
        a(f's_lshl_b32 {t0}, s55, 8\ns_add_u32 {t0}, {t0}, s2\ns_lshl_b32 {t0}, {t0}, 3\ns_add_u32 {t0}, {t0}, {MREC}')
        a(f'v_and_b32 v{MRA}, 15, v1')
        a(f'v_lshlrev_b32 v{MRA}, 13, v{MRA}')
        a(f'v_add_u32 v{MRA}, {t0}, v{MRA}')
    wvr = [f'ds_read_b64_tr_b16 {vr(WV+(tt*3+t)*4+2*sec,2)}, v{WA0} offset:{t*1536+sec*384+tt*32}'
           for t in range(3) for tt in range(2) for sec in range(2)]
    if not slow:
        VF, THR, INC = T2+4, 246, 247
        sAdv, sStop = 's60', 's61'
        flag = f'ds_read_b32 v{VF}, v{FLA}'
        def waitloop(tag, go, prio=None):
            a(f'{tag}:')
            if cfg.wsl: a(f's_sleep {cfg.wsl}')
            a(flag)
            a('s_waitcnt lgkmcnt(0)')
            a(f'v_cmp_lt_u32 vcc, v{VF}, v{THR}')
            a(f's_cbranch_vccnz {tag}')
            for s_ in range(6): a(B.ka(0, s_))
            a(f's_branch {go}')
        def check(wait, go):
            a('s_waitcnt lgkmcnt(6)')
            a(f'v_cmp_lt_u32 vcc, v{VF}, v{THR}')
            a(f's_cbranch_vccnz {wait}')
            a(f'{go}:')
        class Lst:
            def __init__(s_): s_.l = []
            def __call__(s_, t): s_.l += [x.strip() for x in t.split('\n') if x.strip()]
        hook = Lst()
        if not cfg.prog: arrive(hook, 17, 14, 15)
        mk_tag(hook, T2+1)
        a(flag)
        for s_ in range(6): a(B.ka(0, s_))
        a(f'v_mov_b32 v14, {CNT + 4*4}')
        a('s_waitcnt lgkmcnt(7)')
        a('s_mov_b64 exec, 1')
        a(f'ds_add_u32 v14, v{ONE}')
        a('s_mov_b64 exec, -1')
        if cfg.cpp or cfg.cmain: a(f's_setprio {cfg.cmain}')
        a('C_loop:')
        check('C_wait', 'C_go')
        if cfg.stamps and not cfg.b2:
            pass
        if cfg.b2 and not cfg.etr:
            for j in (11, 12, 13): a(f's_mov_b64 s[{STAMP0+2*j}:{STAMP0+2*j+1}], s[{STAMP0+2*j+2}:{STAMP0+2*j+3}]')
            a(f"{TM(cfg)} s[{STAMP0+28}:{STAMP0+29}]")
        top = ([f's_setprio {cfg.ctop}'] if cfg.ctop else []) + [f's_add_u32 {sR}, {sR}, 1', f'v_add_u32 v{THR}, v{THR}, v{INC}', f's_cmp_eq_u32 {sR}, 4', f's_cselect_b32 {sAdv}, s59, 24576'] + ([f'ds_write_b32 v{FO}, v{CA0} offset:16'] if cfg.prog else [])
        advl = [f'v_add_u32 v{r}, {sAdv}, v{r}' for r in (CA0, CA1, CT0, CT1)]
        for l in B.cons2p(advl, flag, top): a(l)
        if cfg.stamps:
            for j in (5, 6): a(f's_mov_b64 s[{STAMP0+2*j}:{STAMP0+2*j+1}], s[{STAMP0+2*j+2}:{STAMP0+2*j+3}]')
            stamp(a, cfg, 7)
        a(f's_cmp_eq_u32 {sR}, {sStop}')
        a('s_cbranch_scc1 C_done')
        a(f's_load_dword s47, {SDBG}, 0')
        a('s_branch C_loop')
        waitloop('C_wait', 'C_go')
        a('C_done:')
        a('s_cmp_eq_u32 s47, 0')
        a('s_cbranch_scc1 C_getnonce')
        a('C_getnonce_d:')
        def specloop(tag, go):
            a(f'{tag}:')
            a(flag)
            for s_ in range(6): a(B.ka(0, s_))
            a('s_waitcnt lgkmcnt(6)')
            a(f'v_cmp_lt_u32 vcc, v{VF}, v{THR}')
            a(f's_cbranch_vccz {go}')
            a(f's_branch {tag}')
        if cfg.uni:
            a(f'v_mov_b32 v{THR}, v{THRV}')
            stamp(a, cfg, 4)
            check('C_w13', 'C_g13')
            stamp(a, cfg, 8)
            a('s_setprio 3')
            for l in (B.cons1x(wvr, True, hook.l) if cfg.uni == 2 else B.cons2x(wvr, 24576, True, hook.l)): a(l)
            OOL.append(lambda: (specloop if cfg.spec else waitloop)('C_w13', 'C_g13'))
        else:
            a('s_cmp_eq_u32 s56, 0')
            a('s_cbranch_scc1 C_r3s')
            a(f'v_mov_b32 v{THR}, v{THRV}')
            stamp(a, cfg, 4)
            check('C_w13', 'C_g13')
            stamp(a, cfg, 8)
            a('s_setprio 3')
            for l in B.cons2x(wvr, 24576, True, hook.l): a(l)
            a('s_branch C_epi')
            (specloop if cfg.spec else waitloop)('C_w13', 'C_g13')
            waitloop('C_w12', 'C_g12')
            (specloop if cfg.spec else waitloop)('C_w16', 'C_g16')
            a('C_r3s:')
            check('C_w12', 'C_g12')
            adv = [f'v_add_u32 v{r}, 24576, v{r}' for r in (CA0, CA1, CT0, CT1)]
            for l in B.cons1p(adv, flag, hook.l + [f'v_mov_b32 v{THR}, v{THRV}']): a(l)
            stamp(a, cfg, 4)
            check('C_w16', 'C_g16')
            stamp(a, cfg, 8)
            a('s_setprio 3')
            for l in B.cons1x(wvr, True): a(l)
    if slow:
        if cfg.cpp: a(f's_setprio {cfg.cmain}')
        a(f's_call_b64 {RET}, {Z}_blk')
        stamp(a, cfg, 5)
        a(f's_load_dword s47, {SDBG}, 0')
        if cfg.c2 is not None: a(f's_setprio {cfg.c2}')
        a(f's_call_b64 {RET}, {Z}_blk')
        stamp(a, cfg, 6)
        if prog: a(f'ds_write_b32 v{FO}, v{CA0} offset:16')
        else: arrive(a, 17, 14, 15)
        a('s_cmp_eq_u32 s47, 0')
        a(f's_cbranch_scc1 {Z}_getnonce')
        a(f'{Z}_getnonce_d:')
        mk_tag(a, T2+1)
        if cfg.c3 is not None: a(f's_setprio {cfg.c3}')
        a(f's_call_b64 {RET}, {Z}_blk')
        stamp(a, cfg, 7)
        if cfg.c4 is not None: a(f's_setprio {cfg.c4}')
        def lastwait(tag):
            a(f'{tag}:')
            a(f'ds_read_b32 v{T2+4}, v{FLA}')
            a('s_waitcnt lgkmcnt(0)')
            a(f'v_cmp_lt_u32 vcc, v{T2+4}, v{THRV}')
            a(f's_cbranch_vccnz {tag}')
            stamp(a, cfg, 8)
            a('s_setprio 3')
        a('s_cmp_eq_u32 s56, 0')
        a(f's_cbranch_scc1 {Z}_r3s')
        a(f's_call_b64 {RET}, {Z}_blk')
        a(f's_mov_b32 s51, {(13 - 18) * 6144}')
        for r in (CA0, CA1, CT0, CT1): a(f'v_add_u32 v{r}, s51, v{r}')
        stamp(a, cfg, 4)
        lastwait(f'{Z}_r4w1')
        if slow:
            for l in slow_tile(0) + slow_tile(24576) + autowait(wvr, final=0): a(l)
        else:
            for l in B.cons2x(wvr, 24576): a(l)
        a(f's_branch {Z}_epi')
        a(f'{Z}_r3s:')
        a(f'v_mov_b32 v10, {PF}')
        a(f'{Z}_r3w:')
        a(f'ds_read_b32 v{T2+4}, v10')
        a('s_waitcnt lgkmcnt(0)')
        a(f'v_readfirstlane_b32 s50, v{T2+4}')
        a('s_cmp_lt_u32 s50, 4')
        a(f's_cbranch_scc1 {Z}_r3w')
        adv = [f'v_add_u32 v{r}, 24576, v{r}' for r in (CA0, CA1, CT0, CT1)]
        for l in (slow_tile(0) + adv if slow else B.cons1(extra_mid=adv)): a(l)
        stamp(a, cfg, 4)
        lastwait(f'{Z}_r4w0')
        if slow:
            for l in slow_tile(0) + autowait(wvr, final=0): a(l)
        else:
            for l in B.cons1x(wvr): a(l)
    a(f'{Z}_epi:')
    stamp(a, cfg, 9)
    if slow:
        a(f's_lshl_b32 {t0}, {sH}, 7')
        a(f's_add_u32 {t0}, {t0}, {TOT}')
        a(f'v_and_b32 v{MX+1}, 31, v1')
        a(f'v_lshlrev_b32 v{MX+1}, 2, v{MX+1}')
        a(f'v_add_u32 v{MX+1}, {t0}, v{MX+1}')
        a(f'ds_write_b32 v{MX+1}, v{MX}')
        a('s_waitcnt lgkmcnt(0)')
        lds_sync(a, 18, 'Z_sy18', MX+2, MX+3)
        a(f'v_xor_b32 v{MX+1}, {256+64}, v{MX+1}')
        a(f'ds_read_b32 v{MX+2}, v{MX+1}')
        a('s_waitcnt lgkmcnt(0)')
        for l in slow_rescale(MX+2): a(l)
        a(f'v_mov_b32 v{MX+1}, s47')
        a('s_mov_b32 exec_lo, 0\ns_mov_b32 exec_hi, 0xffff')
        a(f'buffer_store_dwordx2 {vr(MX,2)}, v{MRA}, {RWS}, 0 offen sc1')
        a('s_mov_b64 exec, -1')
    UP, CX, RX, RS = 96, 120, 128, 144
    def cvtU(t): return [f'v_cvt_pk_bf16_f32 v{UP+8*t+i}, v{U+16*t+2*i}, v{U+16*t+2*i+1}' for i in range(8)]
    def pj(src, tt, t, first=False):
        return f'{MF16} {vr(CX+4*tt,4)}, {vr(WV+(tt*3+t)*4,4)}, {vr(src,4)}, {"0" if first else vr(CX+4*tt,4)}'
    def snd(t, hi): return f'ds_write_b128 v{XP}, {vr(UP+8*t+4*hi,4)} offset:{1024*t+256*hi}'
    def own(t): return f'ds_read_b128 {vr(RS+4*t,4)}, v{XO} offset:{1024*t}'
    EN = T2
    enc = [f'v_cndmask_b32 v{EN}, v{LA}, v{LA+1}, s[44:45]', f'v_and_b32 v{EN+2}, s46, v{EN}', f'v_sub_f32 v{EN}, v{EN}, v{EN+2}',
           f'v_cndmask_b32 v{EN}, v{EN+2}, v{EN}, s[52:53]', f'v_bfi_b32 v{EN}, s46, v{EN}, v{T2+1}']
    c0, c1, c2 = cvtU(0), cvtU(1), cvtU(2)
    E = [enc, f'ds_write_b32 v{XLW}, v{EN} offset:3072',
         c0[:4], snd(0,0), c0[4:], snd(0,1), c1[:4], snd(1,0), own(0), c1[4:], snd(1,1), c2[:4], snd(2,0), own(1), c2[4:], snd(2,1),
         f'ds_write_b32 v{FP}, v{ONE}', own(2)]
    if cfg.xv == 0:
        def swp(t): return [f'v_permlane16_swap_b32 v{UP+8*t+i}, v{UP+8*t+4+i}' for i in range(4)]
        def snd(t, hi=0): return f'ds_write_b128 v{XP}, {vr(UP+8*t+4,4)} offset:{1024*t}'
        E = [enc, f'ds_write_b32 v{XLW}, v{EN} offset:3072',
             c0, c1[:2], swp(0), c1[2:4], snd(0), c1[4:8], c2[:2], swp(1), c2[2:4], snd(1), c2[4:8], 's_nop 0', swp(2), 's_nop 0', snd(2),
             f'ds_write_b32 v{FP}, v{ONE}']
    for l in flat(E):
        if cfg.etr and not slow and l == snd(0,0): a(f"{TM(cfg)} s[{STAMP0+22}:{STAMP0+23}]")
        if cfg.etr and not slow and l.startswith(f'ds_write_b32 v{FP}'): a(f"{TM(cfg)} s[{STAMP0+24}:{STAMP0+25}]")
        a(l)
    def poll():
        a(f'ds_read_b32 v15, v{FO}')
        for t in range(3): a(f'ds_read_b128 {vr(RX+4*t,4)}, v{XO} offset:{3072+1024*t}')
        a(f'ds_read_b32 v{RX+12}, v{XLR} offset:6144')
    if cfg.xv == 0:
        mm = [pj(UP,0,0,True), pj(UP,1,0,True), pj(UP+8,0,1), pj(UP+8,1,1), pj(UP+16,0,2), pj(UP+16,1,2)]
        for l in mm[:cfg.xd]: a(l)
        poll()
        for l in mm[cfg.xd:]: a(l)
    else:
        poll()
        a('s_waitcnt lgkmcnt(7)')
        a(pj(RS,0,0,True)); a(pj(RS,1,0,True)); a(pj(RS+4,0,1)); a(pj(RS+4,1,1))
        a('s_waitcnt lgkmcnt(5)')
        a(pj(RS+8,0,2)); a(pj(RS+8,1,2))
    if cfg.etr and not slow: a(f"{TM(cfg)} s[{STAMP0+26}:{STAMP0+27}]")
    a(f'{Z}_xw:')
    a('s_waitcnt lgkmcnt(4)')
    a('v_cmp_eq_u32 vcc, 0, v15')
    a(f's_cbranch_vccnz {Z}_xr')
    if cfg.etr and not slow: a(f"{TM(cfg)} s[{STAMP0+28}:{STAMP0+29}]")
    for t in range(3):
        a(f's_waitcnt lgkmcnt({3-t})')
        a(pj(RX+4*t,0,t)); a(pj(RX+4*t,1,t))
    a('s_waitcnt lgkmcnt(0)')
    a(f'v_cndmask_b32 v{EN}, v{EN}, v{RX+12}, s[44:45]')
    a(f'v_cvt_pk_bf16_f32 v{CX}, v{CX}, v{CX+1}')
    a(f'v_cvt_pk_bf16_f32 v{CX+1}, v{CX+2}, v{CX+3}')
    a(f'v_mov_b32 v{CX+3}, v{EN}')
    a(f'v_cvt_pk_bf16_f32 v{CX+2}, v{CX+4}, v{CX+5}')
    a(f'v_cvt_pk_bf16_f32 v{CX+4}, v{CX+6}, v{CX+7}')
    a(f'v_permlane32_swap_b32 v{CX+2}, v{CX+4}')
    a(f'buffer_store_dwordx4 {vr(CX,4)}, v{REC}, {RWS}, 0 offen sc1')
    stamp(a, cfg, 10)
    a('s_cmp_ge_u32 s2, 16')
    a('s_cbranch_scc1 L_exit')
    if slow:
        a(f'v_mov_b32 v14, {CNT + 4*7}')
        a(f'v_mov_b32 v15, 0x101')
        a('s_mov_b64 exec, 1')
        a('ds_add_u32 v14, v15')
        a('s_mov_b64 exec, -1')
        a('s_setprio 0')
        a('s_branch Z_comb')
        a('Z_xr:'); poll(); a('s_branch Z_xw')
        nonce_slow(a, 'Z_getnonce', 'Z_getnonce_d', T2)
        a('Z_wait:')
        a('Z_blk:')
        a(f'ds_read_b64 {vr(T2+4,2)}, v10')
        a('s_waitcnt lgkmcnt(0)')
        a(f'v_min_u32 v{T2+4}, v{T2+4}, v{T2+5}')
        a(f'v_readfirstlane_b32 s50, v{T2+4}')
        a(f's_cmp_lt_u32 s50, {sR}')
        a('s_cbranch_scc1 Z_wait')
        for l in slow_tile(0) + slow_tile(6144) + B.adv(): a(l)
        a(f's_add_u32 {sR}, {sR}, 1')
        a(f's_setpc_b64 {RET}')
        return
    arrive(a, 7, 14, 15)
    a('s_setprio 0')
    a('s_branch L_comb')
    a('C_xr:'); poll(); a('s_branch C_xw')
    for f in OOL: f()

def tag_halves(a):
    a('s_bfe_u32 s50, s47, 0xe0001')
    a('s_and_b32 s51, s47, 0x8000')
    a('s_or_b32 s50, s50, s51')
    a('s_lshr_b32 s46, s47, 15')
    a('s_and_b32 s46, s46, 0x8000')
    a('s_bfe_u32 s51, s47, 0xe0010')
    a('s_or_b32 s51, s51, s46')

def mk_tag(a, v):
    tag_halves(a)
    a('s_mov_b32 s46, 0xffff0000')
    a(f'v_mov_b32 v{v}, s50')
    a(f'v_mov_b32 v{v+1}, s51')
    a(f'v_cndmask_b32 v{v}, v{v}, v{v+1}, s[52:53]')

def comb_tag(a, v):
    tag_halves(a)
    a('s_mov_b32 s48, 0xaaaaaaaa\ns_mov_b32 s49, 0xaaaaaaaa')
    a(f'v_mov_b32 v{v}, s50')
    a(f'v_mov_b32 v{v+1}, s51')
    a(f'v_cndmask_b32 v{v}, v{v}, v{v+1}, s[48:49]')

def comb_q(a):
    a('v_and_b32 v6, 15, v1')
    a('s_lshl_b32 s43, s3, 4')
    a('v_add_u32 v6, s43, v6')
    a('v_min_u32 v6, 95, v6')
    a('s_mul_i32 s44, s2, 96')
    a('v_add_u32 v6, s44, v6')
    a('v_lshlrev_b32 v6, 1, v6')
    a(f'global_load_ushort v7, v6, {SQ}')

def comb_setup(a, withq=True):
    if withq: comb_q(a)
    a('v_lshl_add_u32 v29, v16, 3, v28')
    a('v_mul_u32_u24 v29, 192, v29')
    a('v_lshl_add_u32 v29, v19, 3, v29')
    a('s_lshl_b32 s45, s3, 5')
    a(f'v_add_u32 v14, s45, v29')
    a('v_and_b32 v28, 15, v1')
    a('v_mul_u32_u24 v15, 384, v16')
    a('v_lshl_add_u32 v15, v28, 4, v15')
    a('s_mul_i32 s45, s3, 1536')
    a(f's_add_u32 s45, s45, {FIN}')
    a(f'v_add_u32 v15, s45, v15')
    a('v_and_b32 v29, 7, v1')
    a('v_lshlrev_b32 v8, 2, v29')
    a('s_mov_b32 s45, 0x75316240')
    a('v_bfe_u32 v8, s45, v8, 4')
    a('v_add_u32 v8, 48, v8')
    a('v_cmp_lt_u32 vcc, 7, v28')
    a('v_lshlrev_b32 v17, 6, v16')
    a('v_cndmask_b32 v8, v29, v8, vcc')
    a('v_lshl_add_u32 v8, v8, 3, v17')
    a(f'v_add_u32 v8, {FIN}, v8')
    a('s_lshl_b32 s45, s3, 8')
    a(f's_add_u32 s45, s45, {CTX}')
    a('v_lshlrev_b32 v9, 2, v28')
    a('v_mad_u32_u24 v9, v16, 48, v9')
    a('v_mov_b32 v29, 192')
    a('v_cmp_lt_u32 vcc, 11, v28')
    a('v_lshlrev_b32 v10, 4, v16')
    a('v_add_u32 v10, s45, v10')
    a('v_cndmask_b32 v9, v9, v29, vcc')
    a('v_add_u32 v9, s45, v9')

def gen_slow_combine(a, cfg):
    D, ACC, T = 32, 20, 28
    MA, MW = 64, 96
    a('Z_comb:')
    a('v_lshlrev_b32 v2, 4, v1')
    a(f's_mul_i32 s40, s2, {65536 + cfg.skew}')
    a('s_lshl_b32 s41, s3, 13')
    a('s_add_u32 s40, s40, s41')
    a('s_add_u32 s41, s40, 4096')
    a('v_lshrrev_b32 v16, 4, v1')
    a('v_bfe_u32 v28, v1, 2, 2')
    a('v_and_b32 v19, 3, v1')
    a('v_lshlrev_b32 v3, 11, v28')
    a('v_lshl_add_u32 v4, v16, 3, v3')
    a('v_lshl_add_u32 v3, v16, 9, v3')
    a('v_lshl_add_u32 v3, v19, 7, v3')
    a(f's_lshl_b32 s42, s2, 13\ns_add_u32 s42, s42, {MREC}')
    a(f's_lshl_b32 s52, s3, 8\ns_add_u32 s52, s52, s42')
    comb_setup(a)
    comb_tag(a, 12)
    for i in range(8): a(f'v_mov_b32 v{ACC+i}, 0')
    a('Z_again:')
    a('Z_poll:')
    for i in range(8): a(f'buffer_load_dwordx4 {vr(D+4*i,4)}, v2, {RWS}, {"s40" if i<4 else "s41"} offen offset:{1024*(i%4)} sc1')
    for i in range(8): a(f'buffer_load_dwordx4 {vr(MA+4*i,4)}, v3, {RWS}, s42 offen offset:{16*i} sc1')
    for i in range(8): a(f'buffer_load_dwordx2 {vr(MW+2*i,2)}, v4, {RWS}, s52 offen offset:{32*i} sc1')
    a('s_waitcnt vmcnt(0)')
    a(f'v_mov_b32 v{T}, 0')
    for i in range(8):
        a(f'v_xor_b32 v{T+1}, v12, v{D+4*i+3}')
        a(f'v_and_b32 v{T+1}, 0xffff, v{T+1}')
        a(f'v_or_b32 v{T}, v{T}, v{T+1}')
    for t in [MA+2*i+1 for i in range(16)] + [MW+2*i+1 for i in range(8)]:
        a(f'v_xor_b32 v{T+1}, s47, v{t}')
        a(f'v_or_b32 v{T}, v{T}, v{T+1}')
    a(f'v_cmp_ne_u32 vcc, 0, v{T}')
    a('s_nop 4')
    a('s_cbranch_vccnz Z_again')
    M = MA
    for i in range(1, 16): a(f'v_max_f32 v{M}, v{M}, v{MA+2*i}')
    a('s_nop 1')
    a(f'v_mov_b32_dpp v{M+1}, v{M} quad_perm:[1,0,3,2] row_mask:0xf bank_mask:0xf')
    a(f'v_max_f32 v{M}, v{M}, v{M+1}')
    a('s_nop 1')
    a(f'v_mov_b32_dpp v{M+1}, v{M} quad_perm:[2,3,0,1] row_mask:0xf bank_mask:0xf')
    a(f'v_max_f32 v{M}, v{M}, v{M+1}')
    def allrows(r, op):
        for sw in ('v_permlane16_swap_b32', 'v_permlane32_swap_b32'):
            a(f'v_mov_b32 v{T}, v{r}')
            a('s_nop 1')
            a(f'{sw} v{r}, v{T}')
            a('s_nop 1')
            a(f'{op} v{r}, v{r}, v{T}')
    allrows(M, 'v_max_f32')
    a('s_mov_b32 s46, 0xffff0000')
    for i in range(8):
        a(f'v_sub_f32 v{MW+2*i}, v{MW+2*i}, v{M}')
        a(f'v_exp_f32 v{MW+2*i}, v{MW+2*i}')
        a('s_nop 1')
        for j in range(4):
            a(f'v_lshlrev_b32 v{T}, 16, v{D+4*i+j}')
            a(f'v_and_b32 v{T+1}, s46, v{D+4*i+j}')
            if j < 3: a(f'v_fmac_f32 v{ACC+2*j}, v{T}, v{MW+2*i}')
            a(f'v_fmac_f32 v{ACC+2*j+1}, v{T+1}, v{MW+2*i}')
    for j in range(8): allrows(ACC+j, 'v_add_f32')
    a('v_cmp_eq_u32 vcc, 0, v16')
    a('s_nop 1')
    for j in range(4): a(f'v_cndmask_b32 v{ACC+j}, v{ACC+4+j}, v{ACC+j}, vcc')
    a('s_nop 1')
    a('s_branch K_red')

def gen_combine(a, cfg):
    D, ACC, T = 128, 20, 28
    NS = 9
    a('L_comb:')
    if cfg.trp: a('s_branch L_exit')
    a('v_lshlrev_b32 v2, 4, v1')
    a(f's_mul_i32 s40, s2, {65536 + cfg.skew}')
    a('s_lshl_b32 s41, s3, 13')
    a('s_add_u32 s40, s40, s41')
    a('s_add_u32 s41, s40, 4096')
    def load(i):
        a(f'buffer_load_dwordx4 {vr(D+4*i,4)}, v2, {RWS}, {"s40" if i<4 else "s41"} offen offset:{1024*(i%4)} sc1' + (' nt' if cfg.pollnt else ''))
    PM = lambda i: f's[{6+2*i}:{7+2*i}]'
    SEL = 24
    stamp(a, cfg, 11)
    if cfg.ktrace:
        for j in list(range(1, 8)) + [12]: a(f's_mov_b64 s[{STAMP0+2*j}:{STAMP0+2*j+1}], 0')
    if cfg.roll or cfg.dyn: comb_q(a)
    for i in range(8): load(i)
    a('v_lshrrev_b32 v16, 4, v1')
    a('v_bfe_u32 v28, v1, 2, 2')
    a('v_and_b32 v19, 3, v1')
    comb_setup(a, not (cfg.roll or cfg.dyn))
    comb_tag(a, 12)
    a('v_and_b32 v29, 1, v1')
    a('v_lshlrev_b32 v29, 4, v29')
    a('v_mov_b32 v17, 0x3f80')
    a('v_lshlrev_b32 v29, v29, v17')
    a('v_lshrrev_b32 v28, 1, v28')
    for r in range(4):
        a(f'v_cmp_eq_u32 vcc, {r}, v28')
        a(f'v_cndmask_b32 v{SEL+r}, 0, v29, vcc')
    if cfg.dyn:
        K = cfg.dyn
        J = lambda k: f's{6+k}'
        for i in range(4): a(f'v_mov_b32 v{ACC+i}, 0')
        a('s_mov_b32 s42, 0xff')
        a('s_mov_b32 s43, 7')
        def pick(k):
            a('s_lshl_b32 s44, -2, s43')
            a('s_and_b32 s44, s44, s42')
            a('s_cselect_b32 s44, s44, s42')
            a('s_ff1_i32_b32 s43, s44')
            a('s_lshl_b32 s44, s43, 10')
            a('s_add_u32 s44, s44, s40')
            a(f's_mov_b32 {J(k)}, s43')
            a(f'buffer_load_dwordx4 {vr(D+4*k,4)}, v2, {RWS}, s44 offen sc1')
        for i in range(8):
            a(f's_waitcnt vmcnt({7-i+min(i,K)})')
            if i == 0: stamp(a, cfg, 12)
            a(f'v_cmp_ne_u16 vcc, v12, v{D+4*i+3}')
            a(f's_cbranch_vccnz K_f{i}')
            a(f'{MF16} {vr(ACC,4)}, {vr(SEL,4)}, {vr(D+4*i,4)}, {vr(ACC,4)}')
            a(f's_bitset0_b32 s42, {i}')
            if i == 7:
                a('s_cmp_eq_u32 s42, 0')
                a('s_cbranch_scc1 K_red0')
            a(f'K_f{i}:')
            if i < K: pick(i)
        a('K_chk:')
        for k in range(K):
            a(f's_waitcnt vmcnt({K-1})')
            if cfg.ktrace and k == 0:
                a('s_waitcnt lgkmcnt(0)')
                for j in range(1, 7): a(f's_mov_b64 s[{STAMP0+2*j}:{STAMP0+2*j+1}], s[{STAMP0+2*j+2}:{STAMP0+2*j+3}]')
                a(f's_mov_b64 s[{STAMP0+14}:{STAMP0+15}], s[{STAMP0+24}:{STAMP0+25}]')
                stamp(a, cfg, 12)
            a(f'v_cmp_ne_u16 vcc, v12, v{D+4*k+3}')
            a(f's_cbranch_vccnz K_n{k}')
            a(f's_bitcmp0_b32 s42, {J(k)}')
            a(f's_cbranch_scc1 K_n{k}')
            a(f'{MF16} {vr(ACC,4)}, {vr(SEL,4)}, {vr(D+4*k,4)}, {vr(ACC,4)}')
            a(f's_bitset0_b32 s42, {J(k)}')
            a('s_cmp_eq_u32 s42, 0')
            a('s_cbranch_scc1 K_red0')
            a(f'K_n{k}:')
            pick(k)
        a('s_branch K_chk')
        a('K_red0:')
    elif cfg.roll:
        for i in range(4): a(f'v_mov_b32 v{ACC+i}, 0')
        a('s_mov_b32 s42, 0xff')
        a('K_chk:')
        for i in range(8):
            a('s_waitcnt vmcnt(7)')
            if cfg.ktrace and i == 0:
                a('s_waitcnt lgkmcnt(0)')
                for j in range(1, 7): a(f's_mov_b64 s[{STAMP0+2*j}:{STAMP0+2*j+1}], s[{STAMP0+2*j+2}:{STAMP0+2*j+3}]')
                a(f's_mov_b64 s[{STAMP0+14}:{STAMP0+15}], s[{STAMP0+24}:{STAMP0+25}]')
            if i == 0: stamp(a, cfg, 12)
            a(f'v_cmp_ne_u16 vcc, v12, v{D+4*i+3}')
            a('s_cmp_lg_u64 vcc, 0')
            a('s_cselect_b64 exec, -1, 0')
            load(i)
            a('s_mov_b64 exec, -1')
            a(f's_cbranch_scc1 K_n{i}')
            a(f's_bitcmp0_b32 s42, {i}')
            a(f's_cbranch_scc1 K_n{i}')
            a(f'{MF16} {vr(ACC,4)}, {vr(SEL,4)}, {vr(D+4*i,4)}, {vr(ACC,4)}')
            a(f's_bitset0_b32 s42, {i}')
            a('s_cmp_eq_u32 s42, 0')
            a('s_cbranch_scc1 K_red0')
            a(f'K_n{i}:')
        a('s_branch K_chk')
        a('K_red0:')
        a('s_nop 4')
    else:
        a('K_chk:')
        a('s_waitcnt vmcnt(0)')
        if cfg.ktrace:
            a('s_waitcnt lgkmcnt(0)')
            for j in range(1, 7): a(f's_mov_b64 s[{STAMP0+2*j}:{STAMP0+2*j+1}], s[{STAMP0+2*j+2}:{STAMP0+2*j+3}]')
            a(f's_mov_b64 s[{STAMP0+14}:{STAMP0+15}], s[{STAMP0+24}:{STAMP0+25}]')
        stamp(a, cfg, 12)
        for i in range(8):
            a(f'v_cmp_ne_u16 {PM(i)}, v12, v{D+4*i+3}')
            a(f'{MF16} {vr(ACC,4)}, {vr(SEL,4)}, {vr(D+4*i,4)}, {"0" if i == 0 else vr(ACC,4)}')
            if i == 2: a(f's_or_b64 s[50:51], {PM(0)}, {PM(1)}')
            if i > 2: a(f's_or_b64 s[50:51], s[50:51], {PM(i-1)}')
        a(f's_or_b64 s[50:51], s[50:51], {PM(7)}')
        a('s_cbranch_scc1 K_retry')
    a('K_red:')
    stamp(a, cfg, 13)
    a('s_cmp_ge_u32 s3, 6')
    a('s_cbranch_scc1 K_67')
    a('s_nop 2')
    a(f'ds_write_b128 v15, {vr(ACC,4)}')
    Bq, C = 40, 56
    a('s_waitcnt lgkmcnt(0)')
    a('s_barrier')
    if cfg.fine: stamp(a, cfg, 15)
    for k in range(4): a(f'ds_read2st64_b64 {vr(C+4*k,4)}, v8 offset0:{6*k} offset1:{6*k+3}')
    for s in range(3):
        for sec in range(2):
            a(f'ds_read_b64_tr_b16 {vr(Bq+4*s+2*sec,2)}, v14 offset:{s*6144+sec*768}')
    a('v_lshlrev_b32 v7, 16, v7')
    a('s_waitcnt lgkmcnt(8)')
    for i in range(4): a(f'v_add_f32 v{C+i}, v{C+i}, v{C+4+i}')
    a('s_waitcnt lgkmcnt(6)')
    for i in range(4): a(f'v_add_f32 v{C+8+i}, v{C+8+i}, v{C+12+i}')
    for i in (0, 2, 1, 3): a(f'v_add_f32 v{C+i}, v{C+i}, v{C+8+i}')
    a(f'v_add_f32 v{C}, v{C}, v{C+2}')
    a(f'v_add_f32 v{C+1}, v{C+1}, v{C+3}')
    a(f'v_add_f32_dpp v{C+2}, v{C+1}, v{C+1} quad_perm:[1,0,3,2] row_mask:0xf bank_mask:0xf')
    a(f'v_add_f32_dpp v{C+2}, v{C+2}, v{C+2} quad_perm:[2,3,0,1] row_mask:0xf bank_mask:0xf')
    a(f'v_mov_b32_dpp v{C+2}, v{C+2} row_newbcast:12 row_mask:0xf bank_mask:0xf')
    a(f'v_rcp_f32 v{C+2}, v{C+2}')
    a(f'v_mul_f32 v{C}, v{C}, v{C+2}')
    a(f'v_mul_f32 v{C+1}, v{C+1}, v{C+2}')
    a(f'v_cvt_pk_bf16_f32 v{C}, v{C}, v{C+1}')
    a(f'ds_write_b32 v9, v{C}')
    for s in range(3): a(f'ds_read_b128 {vr(C+4+4*s,4)}, v10 offset:{64*s}')
    for s in range(3):
        c = '0' if s == 0 else 'v[88:91]'
        a(f's_waitcnt lgkmcnt({2-s})')
        a(f'{MF16} v[88:91], {vr(C+4+4*s,4)}, {vr(Bq+4*s,4)}, {c}')
    a('v_cvt_pk_bf16_f32 v88, v88, v88')
    a('v_and_b32 v88, 0xffff0000, v88')
    a('v_add_f32 v88, v88, v7')
    a('v_cvt_pk_bf16_f32 v88, v88, v88')
    a('s_mov_b64 exec, 0xffff')
    a('s_waitcnt vmcnt(0)')
    a(f'global_store_short v6, v88, {SOUT}')
    a('s_mov_b64 exec, -1')
    stamp(a, cfg, 14)
    if cfg.diag:
        a('s_memrealtime s[98:99]')
        a('s_waitcnt lgkmcnt(0)')
        a('v_mov_b32 v20, s98\nv_mov_b32 v21, 36')
        a('s_mov_b64 exec, 1')
        a(f'global_atomic_umax v21, v20, {SDBG}')
        a('s_mov_b64 exec, -1')
    a('L_exit:')
    if cfg.diag:
        a('s_cmp_eq_u32 s3, 4')
        a('s_cbranch_scc0 L_end')
        a('s_memrealtime s[98:99]')
        a('s_getreg_b32 s50, hwreg(HW_REG_XCC_ID, 0, 4)')
        a('s_and_b32 s50, s50, 7')
        a('s_lshl_b32 s50, s50, 2')
        a('s_add_u32 s50, s50, 4')
        a('s_waitcnt lgkmcnt(0)')
        a('v_mov_b32 v20, s96\nv_mov_b32 v21, s50\nv_mov_b32 v22, s98\nv_mov_b32 v23, 40')
        a('s_mov_b64 exec, 1')
        a(f'global_store_dword v21, v20, {SDBG}')
        a('s_cmp_lt_u32 s2, 16')
        a('s_cbranch_scc1 L_end')
        a(f'global_atomic_umax v23, v22, {SDBG}')
        a('s_mov_b64 exec, -1')
    stamp_flush(a, cfg)
    a('L_end:')
    a('s_endpgm')
    a('K_67:')
    a('s_nop 2')
    a(f'ds_write_b128 v15, {vr(ACC,4)}')
    a('s_waitcnt lgkmcnt(0)')
    a('s_barrier')
    a('s_waitcnt vmcnt(0)')
    a('s_branch L_exit')
    if cfg.roll or cfg.dyn: return
    a('K_retry:')
    if cfg.ksleep: a(f's_sleep {cfg.ksleep}')
    for i in range(8):
        a(f's_cmp_lg_u64 {PM(i)}, 0')
        a('s_cselect_b64 exec, -1, 0')
        load(i)
    a('s_mov_b64 exec, -1')
    a('s_branch K_chk')

HEADER = """
Fused FPN-fuse + LayerNorm + masked cross-attention, one workgroup (8 waves) per CU, 576 keys each.
  A'[h*16+q] = (2*bf16(q w_q[h]) w_k[h]^T + q w_m) * 96^-0.5 * log2(e)      (scores in log2 units)
  waves 0-3: stream f_hi / f_lo into LDS, lateral GEMM, LayerNorm, write kv (bf16) back in place
  waves 4-7: S = kv A'^T, p = exp2(S - shift), U += p^T kv, l += sum p, ctx = U w_v, publish to d_ws
  workgroups 0-15: gather the 256 partials of one query, normalise, project with w_o, add q
Softmax shift: |S| <= sqrt(96) * |A' row| because kv is LayerNorm output.  Every workgroup evaluates that
bound at run time (Gram matrix of A').  If it is <= 80 the shift 0 cannot overflow or lose terms
(C_* / K_* code); otherwise the Z_* code runs with the true (online) row maximum.
"""

def build(cfg):
    a = Asm()
    a.raw(f'; @launch grid=(256,1,1) block=(512,1,1) lds={LDS_BYTES}')
    for l in HEADER.strip().split('\n'): a.raw('; ' + l)
    a.raw('.amdgcn_target "amdgcn-amd-amdhsa--gfx950"')
    a.raw('.text')
    a.raw(f'.globl {KNAME}'); a.raw('.p2align 8'); a.raw(f'.type {KNAME},@function'); a.raw(f'{KNAME}:')
    gen_entry(a, cfg)
    gen_producer(a, cfg)
    gen_consumer(a, cfg)
    gen_combine(a, cfg)
    a.raw('L_codeend:')
    cons_main(a, cfg, True)
    gen_slow_combine(a, cfg)
    txt = a.finish(verbose=True)
    txt = txt.replace('    ; ', '; ')
    txt += f'''.section .rodata,"a"
.p2align 6
.amdhsa_kernel {KNAME}
  .amdhsa_next_free_vgpr 256
  .amdhsa_next_free_sgpr {102 if cfg.stamps else 100}
  .amdhsa_accum_offset 256
  .amdhsa_group_segment_fixed_size 0
  .amdhsa_kernarg_size 96
  .amdhsa_user_sgpr_count 2
  .amdhsa_user_sgpr_kernarg_segment_ptr 1
  .amdhsa_system_sgpr_workgroup_id_x 1
.end_amdhsa_kernel
'''
    return txt

if __name__ == '__main__':
    cfg = Cfg()
    out = sys.argv[1]
    for o in sys.argv[2:]:
        if '=' in o:
            k, v = o.split('='); setattr(cfg, k, int(v))
        else: setattr(cfg, o, True)
    open(out, 'w').write(build(cfg))
```

```python
import sys, math, struct
from asmlib import Asm, autowait
import blocks as B
from blocks import vr, f32, MF32, MF16, flat

KNAME = 'standalone__detection_seg_mask2former__vision_kernel'

HI = 0
WM = 12 * 6144
QS = 15 * 6144
WQ = 16 * 6144
LO = 110592 + 6144
WREG = LO + 27648
SCR = WREG + 18432
TOT = SCR
PF = SCR + 512
TKT = SCR + 528
CNT = SCR + 544
WST = SCR + 640
XCH = LO
XST = 6912
WO = 0
FIN = 20480
CTX = 32768
LDS_BYTES = SCR + 1024
assert LDS_BYTES <= 163840 and LO <= XCH and XCH + 4 * XST <= WREG
B.C.TB = 6144
LREC = 17 * 256 * 256 + 16 * 4096
MREC = LREC
REC_BYTES = MREC + 16 * 4 * 256 * 8
BOUND = 80.0
THR = BOUND * BOUND / 96 / (1 + 2 ** -8) ** 2
STAMP_OFF = 4 << 20
FSW = sum(((((-(px >> 2)) & 3) ^ ((px >> 1) & 1)) << (2 * px)) for px in range(16))

class Cfg:
    stamps = False
    cyc = False
    repf = 0
    cvar = 0
    g0pos = 1
    fine = 0
    wvpos = 2
    h0pos = 1
    cpp = 0
    cmain = 0
    pp = 0
    deep = 1
    h1early = 0
    pwait = 1
    ksleep = 0
    r1late = 0
    pm = 2
    pv = 0
    pl = 2
    cearly = 0
    trp = 0
    trc = 0
    touch = 3
    t0pre = 0
    wkpos = 2
    dry = 0
    tokpos = -1
    wvr = 2
    ktrace = 0
    pollnt = 0
    roll = 0
    dyn = 5
    diag = 0
    early = 0
    tok2 = 1
    bist = 0
    mfirst = 1
    b2 = 0
    wvar = 0
    etr = 0
    xv = 0
    xd = 2
    fake = 0
    fsc = 0
    wsl = 0
    pk = 0
    uni = 1
    spec = 1
    tlb = 0
    spf = 0
    spn = 15
    wsum = 0
    st2 = 1
    pro = 1
    wmtok = 0
    ctop = 0
    skew = 0
    zl = 0
    tok3 = 1
    prog = 1
    tord = 0
    lopos = -1
    pair = 1
    deep2 = 0
    fl = 0
    mix = 1
    tk6 = 1
    late4 = 1
    sw0 = 0
    c2 = None
    c3 = None
    c4 = None

SQ, SHI, SLO, SWL, SWQ, SWK, SWV, SWO, SWM, SOUT, SDBG, SWS = [f's[{4+2*i}:{5+2*i}]' for i in range(12)]
RHI, RLO, RWS = 's[28:31]', 's[32:35]', 's[36:39]'
SF = 's63'
STAMP0 = 64

def TM(cfg): return 's_memtime' if cfg.cyc else 's_memrealtime'

def stamp(a, cfg, i, inner=False):
    if cfg.b2 and i in (11, 12, 13, 14, 15) : return
    if cfg.bist:
        import inspect
        src = inspect.stack()[1].code_context[0]
        if 'bist' not in src and i in (4, 5, 6, 7, 8, 11, 12, 13, 14) and inspect.stack()[1].function != 'script': return
    if cfg.trp and not inner and i != 0: return
    if inner and not cfg.trp: return
    if cfg.stamps: a(f"{'s_memtime' if cfg.cyc else 's_memrealtime'} s[{STAMP0+2*i}:{STAMP0+2*i+1}]")

def stamp_flush(a, cfg, tmpv=100):
    if not cfg.stamps: return
    a('s_cmp_eq_u32 s100, 0')
    a('s_cbranch_scc1 L_nosl')
    a('s_sleep 100')
    a('L_nosl:')
    a('s_waitcnt lgkmcnt(0)')
    a('s_lshl_b32 s61, s2, 3\ns_add_u32 s61, s61, s3')
    a(f's_lshl_b32 s62, s61, 7')
    a(f's_add_u32 s62, s62, {STAMP_OFF}')
    for i in range(32): a(f'v_mov_b32 v{tmpv+i}, s{STAMP0+i}')
    a(f'v_mov_b32 v{tmpv+32}, 0')
    a('s_mov_b64 exec, 1')
    a('s_mov_b32 s56, s26\ns_mov_b32 s57, s27\ns_mov_b32 s58, 0x1000000\ns_mov_b32 s59, 0x20000')
    for i in range(8):
        a(f'buffer_store_dwordx4 {vr(tmpv+4*i,4)}, v{tmpv+32}, s[56:59], s62 offen offset:{16*i}')
    a('s_mov_b64 exec, -1')

def dma_swz(a, dst, k, tmp, dst2):
    a(f'v_add_u32 v{tmp}, {64*k if isinstance(k,int) else k}, v1')
    a(f'v_mul_u32_u24 v{tmp}, 0xaaab, v{tmp}')
    a(f'v_lshrrev_b32 v{tmp}, 18, v{tmp}')
    a(f'v_and_b32 v{dst2}, 0x1e, v{tmp}')
    a(f'v_bfe_u32 v{tmp}, {SF}, v{dst2}, 2')
    a(f'v_xor_b32 v{tmp}, v{tmp}, v1')
    a(f'v_lshlrev_b32 v{dst}, 4, v{tmp}')

def dma_part(a, ptr, ldsbase, voff, spart):
    lo = int(ptr[2:ptr.index(':')])
    a(f's_add_u32 m0, {spart}, {ldsbase}')
    a(f's_add_u32 s50, s{lo}, 4096')
    for k in range(4): a(f'global_load_lds_dwordx4 v{voff}, {ptr} offset:{1024*k}')
    a(f's_addc_u32 s51, s{lo+1}, 0')
    a(f's_add_u32 m0, {spart}, {ldsbase+4096}')
    a('s_mov_b32 exec_hi, 0')
    a(f'global_load_lds_dwordx4 v{voff}, s[50:51]')
    a('s_mov_b32 exec_hi, -1')

def dma_extra(a, ptr, ldsbase, voff, sbase):
    lo = int(ptr[2:ptr.index(':')])
    a(f's_add_u32 s50, s{lo}, 4096')
    a(f's_addc_u32 s51, s{lo+1}, 0')
    a(f's_add_u32 m0, {sbase}, {ldsbase+4096}')
    a('s_nop 0')
    a(f'global_load_lds_dwordx4 v{voff}, s[50:51]')

def dma_main(a, ptr, ldsbase, voff, sbase):
    a(f's_add_u32 m0, {sbase}, {ldsbase}')
    a('s_nop 0')
    for k in range(4): a(f'global_load_lds_dwordx4 v{voff}, {ptr} offset:{1024*k}')

def arrive(a, which, va, vd, rtn=False):
    a(f'v_mov_b32 v{va}, {CNT + 4*which}')
    a(f'v_mov_b32 v{vd}, 1')
    a('s_mov_b64 exec, 1')
    a(f'ds_add_rtn_u32 v{vd}, v{va}, v{vd}' if rtn else f'ds_add_u32 v{va}, v{vd}')
    a('s_mov_b64 exec, -1')

def await_cnt(a, which, tag, va, vd, n=4, setaddr=True):
    if setaddr: a(f'v_mov_b32 v{va}, {CNT + 4*which}')
    a(f'{tag}:')
    a(f'ds_read_b32 v{vd}, v{va}')
    a('s_waitcnt lgkmcnt(0)')
    a(f'v_readfirstlane_b32 s50, v{vd}')
    a(f's_cmp_lt_u32 s50, {n}')
    a(f's_cbranch_scc1 {tag}')

def lds_sync(a, which, tag, va, vd, n=4):
    arrive(a, which, va, vd, rtn=True)
    a('s_waitcnt lgkmcnt(0)')
    a(f'v_readfirstlane_b32 s50, v{vd}')
    a(f's_cmp_ge_u32 s50, {n-1}')
    a(f's_cbranch_scc1 {tag}_ok')
    await_cnt(a, which, tag + '_spin', va, vd, n, setaddr=False)
    a(f'{tag}_ok:')

def code_prefetch(a, tag, vt, tidoff, sp='s[44:45]', start=KNAME):
    lo = int(sp[2:sp.index(':')])
    a(f's_getpc_b64 {sp}')
    a(f'{tag}:')
    a(f's_add_u32 s{lo}, s{lo}, {start}-{tag}')
    a(f's_addc_u32 s{lo+1}, s{lo+1}, {"-1" if start == KNAME else "0"}')
    a(f'v_add_u32 v{vt}, {tidoff}, v0')
    a(f'v_lshlrev_b32 v{vt}, 7, v{vt}')
    a(f'v_min_u32 v{vt}, L_codeend-{start}-4, v{vt}')
    a(f'global_load_dword v{201 if vt == 0 else vt+1}, v{vt}, {sp}')

def nonce_slow(a, tag, back, v):
    a(f'{tag}:')
    a('s_memrealtime s[50:51]')
    a('s_waitcnt lgkmcnt(0)')
    a('s_or_b32 s47, s50, 1')
    a(f'v_mov_b32 v{v}, s47\nv_mov_b32 v{v+1}, 0\nv_mov_b32 v{v+2}, 0')
    a('s_mov_b64 exec, 1')
    a(f'global_atomic_cmpswap v{v}, v{v+2}, {vr(v,2)}, {SDBG} sc0 sc1')
    a('s_mov_b64 exec, -1')
    a('s_waitcnt vmcnt(0)')
    a(f'v_readfirstlane_b32 s50, v{v}')
    a('s_cmp_eq_u32 s50, 0')
    a('s_cselect_b32 s47, s47, s50')
    a(f's_branch {back}')

def gen_entry(a, cfg):
    a('s_cmp_ge_u32 s2, 256')
    a('s_cbranch_scc1 L_end')
    if cfg.stamps:
        for i in range(32): a(f's_mov_b32 s{STAMP0+i}, 0')
        a('s_mov_b32 s100, 1')
    stamp(a, cfg, 0)
    if cfg.diag: a('s_memrealtime s[96:97]')
    a('s_load_dwordx16 s[4:19], s[0:1], 0')
    a('s_load_dwordx8 s[20:27], s[0:1], 64')
    a('v_lshrrev_b32 v2, 6, v0')
    a('v_and_b32 v1, 63, v0')
    a('v_readfirstlane_b32 s3, v2')
    a(f's_mov_b32 {SF}, {FSW:#x}')
    a(f's_mov_b32 s62, {f32(96.0 if cfg.st2 else 1/96)}')
    a('s_cmp_ge_u32 s3, 4')
    a('s_cbranch_scc1 L_cons')

def gen_producer(a, cfg):
    W0, W1, W2, RA0, RA1, RL0, RL1 = 2, 3, 4, 5, 6, 7, 8
    S0, S1, S2 = 9, 10, 11
    WL, LT, X, F = B.P.WL, B.P.LT, B.P.X, B.P.F
    ID, OP, SM, SL, T = B.P.ID, B.P.OP, B.P.SM, B.P.SL, B.P.T
    FLA, FLV = 14, 15
    U = 232
    F0 = U + 12
    sP = 's3'
    sH0, sHS, sH8, sLo0, sSh = 's40', 's41', 's42', 's43', 's44'
    sSlot, sLoP, RET = 's45', 's46', 's[48:49]'
    t0, t1, t2 = 's52', 's53', 's54'
    M1, O1, M2, O2 = 's55', 's56', 's58', 's59'
    for k, (w, sw) in enumerate(((W0, S0), (W1, S1), (W2, S2))): dma_swz(a, w, k, U, sw)
    a(f'v_lshlrev_b32 v{U+3}, 4, v1')
    for i in range(4): a(f'v_mov_b32 v{U+4+i}, 0')
    a(f'v_add_u32 v{U+8}, {SCR}, v{U+3}')
    a(f'ds_write_b128 v{U+8}, {vr(U+4,4)}')
    a(f's_lshl_b32 s58, s2, 2')
    a(f's_add_u32 s58, s58, {sP}')
    a(f's_mul_i32 {sLo0}, s58, 6144')
    a(f's_mul_i32 {sSlot}, {sP}, 6144')
    a(f's_add_u32 {sLoP}, {sSlot}, {LO}')
    a('s_mov_b32 s34, 7077888\ns_mov_b32 s35, 0x20000')
    a('s_add_u32 s60, s2, 2048')
    a('s_mul_i32 s61, s60, 3072')
    a(f's_cmp_lt_u32 {sP}, 2')
    a(f's_cselect_b32 s55, s61, {sLo0}')
    a(f's_cselect_b32 s56, {LO+8*3072}, {sLoP}')
    a('s_mov_b32 s30, 28311552\ns_mov_b32 s31, 0x20000')
    a(f's_min_u32 {t0}, {sP}, 2')
    a(f's_lshl_b32 s47, {sP}, 2')
    a(f's_add_u32 s47, s47, {t0}')
    a(f's_lshl_b32 s47, s47, 10')
    a(f'v_add_u32 v15, s47, v{U+3}')
    a(f's_mul_i32 {t0}, s58, 43691')
    a(f's_lshr_b32 {t0}, {t0}, 18')
    a(f's_mul_i32 {t0}, {t0}, 73728')
    a(f's_mul_i32 {sH0}, s58, 12288')
    a(f's_add_u32 {sH0}, {sH0}, {t0}')
    a(f's_mul_i32 {t0}, s60, 43691')
    a(f's_lshr_b32 {t0}, {t0}, 19')
    a(f's_add_u32 {t0}, {t0}, {sP}')
    a(f's_mul_i32 {t0}, {t0}, 73728')
    a(f's_mul_i32 {sH8}, s60, 6144')
    a(f's_add_u32 {sH8}, {sH8}, {t0}')
    a(f's_cmp_lt_u32 {sP}, 2')
    a(f's_cselect_b32 s57, {sH8}, {sH0}')
    a(f's_cselect_b32 {sSh}, 1, 0')
    a(f's_cselect_b32 {t0}, 0, 96')
    a(f's_lshr_b32 {sHS}, 6144, {sSh}')
    if cfg.bist: stamp(a, cfg, 12)
    a(f's_cmp_lt_u32 {sP}, 2')
    a('s_waitcnt lgkmcnt(0)')
    if cfg.bist: stamp(a, cfg, 13)
    def half(srd, soff, regs=(W0, W1, W2)):
        return [f'buffer_load_dwordx4 v{w}, {srd}, {soff} offen offset:{1024*k} nt lds' for k, w in enumerate(regs)]
    a('s_mov_b32 s32, s8\ns_mov_b32 s33, s9')
    a('s_cbranch_scc1 P_sm')
    a(f's_add_u32 m0, s56, 3072')
    a(f's_add_u32 {t1}, s55, 3072')
    for l in half(RLO, t1): a(l)
    a('s_branch P_nox')
    a('P_sm:')
    dma_extra(a, SWL, WREG, 15, 's47')
    a('P_nox:')
    dma_main(a, SWL, WREG, 15, 's47')
    a(f's_mov_b32 m0, s56')
    a('s_mov_b32 s28, s6')
    for l in half(RLO, 's55'): a(l)
    a('s_mov_b32 s29, s7')
    SR = (S0, S1, S2)
    def issue_h(soff, rnd, hf, add=0):
        a(f's_add_u32 m0, {sSlot}, {rnd*4*6144+3072*hf}')
        if add + hf:
            a(f's_add_u32 {t0}, {soff}, {add+6144*hf}'); src = t0
        else:
            a('s_nop 0'); src = soff
        for l in half(RHI, src, SR): a(l)
    def issue_first(hf):
        a(f's_add_u32 m0, {sSlot}, {3072*hf}')
        if hf:
            a(f's_add_u32 {t0}, s57, {sHS}'); src = t0
        else:
            a('s_nop 0'); src = 's57'
        for l in half(RHI, src, (F0, F0+1, F0+2)): a(l)
    def issue_first2():
        if not cfg.pair or cfg.mix == 3:
            for hf in range(2): issue_first(hf)
            return
        a(f's_cmp_lt_u32 {sP}, 2')
        a('s_cbranch_scc1 P_f1')
        if cfg.pair & 1:
            for hf in range(2):
                issue_h(sH0, 0, hf, 0); issue_h(sH0, 1, hf, 192)
        else:
            for hf in range(2): issue_h(sH0, 0, hf, 0)
            for hf in range(2): issue_h(sH0, 1, hf, 192)
        a('s_branch P_f2')
        a('P_f1:')
        for hf in range(2): issue_first(hf)
        a('P_f2:')
    if cfg.tlb:
        a(f's_load_dword s96, {SHI}, s57')
        a(f's_add_u32 s97, {sH0}, 79000')
        a(f's_min_u32 s97, s97, 28311548')
        a(f's_and_b32 s97, s97, -4')
        a(f's_load_dword s97, {SHI}, s97')
    if cfg.bist: stamp(a, cfg, 11)
    a('s_barrier')
    for k, (w, sw) in enumerate(((W0, S0), (W1, S1), (W2, S2))):
        a(f'v_mad_u32_u24 v{F0+k}, v{sw}, {t0}, v{w}')
        a(f'v_mul_u32_u24 v{sw}, 96, v{sw}')
        a(f'v_add_u32 v{sw}, v{sw}, v{w}')
    stamp(a, cfg, 1)
    a(f'v_and_b32 v{U}, 31, v1')
    a(f'v_lshrrev_b32 v{U+1}, 5, v1')
    def rdaddr(d0, d1, px, base):
        a(f'v_lshlrev_b32 v{U+2}, 1, v{px}')
        a(f'v_and_b32 v{U+2}, 0x1e, v{U+2}')
        a(f'v_bfe_u32 v{U+2}, {SF}, v{U+2}, 2')
        a(f'v_xor_b32 v{U+2}, v{U+2}, v{U+1}')
        a(f'v_xor_b32 v{U+3}, 2, v{U+2}')
        a(f'v_mul_u32_u24 v{U+4}, 192, v{px}')
        a(f'v_add_u32 v{U+4}, {base}, v{U+4}')
        a(f'v_lshl_add_u32 v{d0}, v{U+2}, 4, v{U+4}')
        a(f'v_lshl_add_u32 v{d1}, v{U+3}, 4, v{U+4}')
    rdaddr(RA0, RA1, U, sSlot)
    a(f'v_lshrrev_b32 v{U+5}, {sSh}, v{U}')
    rdaddr(RL0, RL1, U+5, 's56')
    a(f'v_bfe_u32 v14, v1, 2, 2')
    a(f'v_lshl_add_u32 v14, v{U+1}, 3, v14')
    a(f'v_mul_u32_u24 v14, 192, v14')
    a(f'v_bfe_u32 v{U+8}, v1, 4, 1')
    a(f'v_lshl_add_u32 v14, v{U+8}, 5, v14')
    a(f'v_and_b32 v{U+3}, 1, v1')
    a(f'v_lshl_add_u32 v14, v{U+3}, 4, v14')
    a(f'v_bfe_u32 v{U+3}, v1, 1, 1')
    a(f'v_lshl_add_u32 v14, v{U+3}, 3, v14')
    a(f'v_add_u32 v14, {WREG}, v14')
    a(f'v_bfe_u32 v{U+2}, v1, 3, 1')
    a(f'v_and_b32 v{U+3}, 3, v1')
    a(f'v_lshl_add_u32 v{U+2}, v{U+2}, 2, v{U+3}')
    a(f'v_bfe_u32 v{U+3}, v1, 2, 1')
    a(f'v_cmp_eq_u32 vcc, v{U+3}, v{U+1}')
    a(f'v_and_b32 v{U+6}, 1, v{U+2}')
    a(f'v_lshlrev_b32 v{U+6}, 4, v{U+6}')
    a(f'v_mov_b32 v{U+4}, 0x3f80')
    a(f'v_lshlrev_b32 v{U+6}, v{U+6}, v{U+4}')
    a(f'v_cndmask_b32 v{U+6}, 0, v{U+6}, vcc')
    a(f'v_lshrrev_b32 v{U+2}, 1, v{U+2}')
    a(f'v_lshl_add_u32 v{U+2}, v{U+8}, 2, v{U+2}')
    a(f'v_cmp_eq_u32 s[58:59], v{U+3}, v{U+8}')
    a(f'v_mov_b32 v{U+7}, 0x3f803f80')
    if cfg.wsum:
        a(f'v_mov_b32 v{WSA}, {WST+192}')
        a(f'v_mov_b32 v{U+4}, {WST}')
        a(f'v_cndmask_b32 v{WSA}, v{WSA}, v{U+4}, s[58:59]')
        a(f'v_lshl_add_u32 v{WSA}, v{U+1}, 4, v{WSA}')
        a(f's_min_u32 {t0}, {sP}, 2')
        a(f's_lshl_b32 {t0}, {t0}, 5')
        a(f'v_add_u32 v{WSA+1}, {t0}, v{U}')
        a(f'v_mul_u32_u24 v{WSA+2}, 192, v{WSA+1}')
        a(f'v_lshl_add_u32 v{WSA+2}, v{U+1}, 4, v{WSA+2}')
        a(f'v_add_u32 v{WSA+2}, {WREG}, v{WSA+2}')
        a(f'v_lshlrev_b32 v{WSA+1}, 1, v{WSA+1}')
        a(f'v_add_u32 v{WSA+1}, {WST}, v{WSA+1}')
    for i in range(0, 8, 2):
        a(f'v_cmp_eq_u32 vcc, {i}, v{U+2}')
        a(f'v_cmp_eq_u32 s[60:61], {i+1}, v{U+2}')
        a(f'v_cndmask_b32 v{OP+i//2}, 0, v{U+7}, s[58:59]')
        a(f'v_cndmask_b32 v{ID+i}, 0, v{U+6}, vcc')
        a(f'v_cndmask_b32 v{ID+i+1}, 0, v{U+6}, s[60:61]')
    if cfg.dry:
        a('s_mov_b64 exec, 0')
        a(f's_cmp_eq_u32 {sP}, 1')
        a('s_cbranch_scc1 P_dry1')
        a(f's_cmp_eq_u32 {sP}, 2')
        a('s_cbranch_scc1 P_dry2')
        a(f's_cmp_eq_u32 {sP}, 3')
        a('s_cbranch_scc1 P_dryd')
        a(f's_call_b64 {RET}, P_h0')
        a('P_dryd:')
        a('s_mov_b64 exec, -1')
        stamp(a, cfg, 15)
    if cfg.tokpos == 0 and cfg.t0pre < 2:
        await_cnt(a, 5, 'P_sy5', 12, 13, 4)
        for hf in range(cfg.t0pre, 2): issue_h('s57', 0, hf)
        a(f's_waitcnt vmcnt(6)')
    else:
        a(f's_waitcnt vmcnt({3*cfg.t0pre})')
    stamp(a, cfg, 10)
    arrive(a, 0, 12, 13)
    def lo_reads(r0, r1, off=0):
        return [f'ds_read_b128 {vr(X+4*s,4)}, v{r1 if s&1 else r0} offset:{off+64*(s>>1)}' for s in range(6)]
    if cfg.mix == 1:
        a(f's_lshr_b32 {t0}, {sP}, 1')
        a(f's_lshl_b32 {t0}, {t0}, 2')
        a(f's_add_u32 {t0}, {t0}, {CNT + 4*5}')
        a(f'v_mov_b32 v15, {t0}')
        await_cnt(a, 5, 'P_sy5', 15, 13, 4, setaddr=False)
    else:
        await_cnt(a, 5, 'P_sy5', 15, 13, 4)
    issue_first2()
    for l in lo_reads(RL0, RL1): a(l)
    await_cnt(a, 0, 'P_sy0', 12, 13, 4, setaddr=False)
    stamp(a, cfg, 2)
    def wl_reads(t, s):
        return [f'ds_read_b64_tr_b16 {vr(WL+(t*6+s)*4+2*sec,2)}, v14 offset:{s*3072+sec*768+t*64}' for sec in range(2)]
    def lat_mfma(t, s):
        c = '0' if s == 0 else vr(LT+16*t,16)
        return f'{MF32} {vr(LT+16*t,16)}, {vr(WL+(t*6+s)*4,4)}, {vr(X+4*s,4)}, {c}'
    def lateral(first):
        pend = []
        L = [wl_reads(0, s) for s in range(4)] if first else []
        seq = [(t, s) for t in range(3) for s in range(6)]
        for i, (t, s) in enumerate(seq):
            L.append(lat_mfma(t, s))
            if first and i + 4 < 18: L.append(wl_reads(*seq[i+4]))
            if s >= 1: L.append(pend[:4]); del pend[:4]
            if s == 5:
                pend += [f'v_mov_b32 v{SL}, v{LT}' if (t == 0 and j == 0) else f'v_add_f32 v{SL}, v{SL}, v{LT+16*t+j}' for j in range(16)]
        return flat(L), pend
    def sl_fin():
        return [f'v_mov_b32 v{SL+1}, v{SL}', 's_nop 1', f'v_permlane32_swap_b32 v{SL}, v{SL+1}', f'v_add_f32 v{SL}, v{SL}, v{SL+1}']
    L, pend = lateral(True)
    if cfg.wsum == 2:
        for i in range(4): a(f'v_mov_b32 v{U+i}, 0x3f803f80')
        M = []; k = 0
        for l in L:
            M.append(l)
            if l.startswith('v_mfma'):
                k += 1
                if 2 <= k < 8: M.append(f'ds_read_b128 {vr(F+4*(k-2),4)}, v{WSA+2} offset:{32*(k-2)}')
                if k >= 6 and k % 2 == 0 and k < 18:
                    s_ = (k - 6) // 2
                    M.append(f'{MF32} {vr(X+24,16)}, {vr(U,4)}, {vr(F+4*s_,4)}, {"0" if s_ == 0 else vr(X+24,16)}')
        L = M
    L = autowait(L, age=99)
    if cfg.tokpos > 0 and cfg.t0pre < 2:
        k = [i for i, l in enumerate(L) if l.startswith('v_mfma')][cfg.tokpos]
        for l in L[:k]: a(l)
        a('s_waitcnt lgkmcnt(0)')
        await_cnt(a, 5, 'P_sy5', 12, 13, 4)
        for hf in range(cfg.t0pre, 2): issue_h('s57', 0, hf)
        L = L[k:]
    for l in L: a(l)
    if cfg.wsum == 2:
        a(f'v_cvt_pk_bf16_f32 v{X+24}, v{X+24}, v{X+24}')
        a(f'ds_write_b16 v{WSA+1}, v{X+24}')
    if cfg.wsum == 1:
        for s_ in range(6): a(f'ds_read_b128 {vr(F+4*s_,4)}, v{WSA+2} offset:{32*s_}')
        for i in range(4): a(f'v_mov_b32 v{U+i}, 0x3f803f80')
        for l in pend[:8]: a(l)
        del pend[:8]
        for s_ in range(6):
            a(f's_waitcnt lgkmcnt({5-s_})')
            a(f'{MF32} {vr(X,16)}, {vr(U,4)}, {vr(F+4*s_,4)}, {"0" if s_ == 0 else vr(X,16)}')
            for l in pend[:2]: a(l)
            del pend[:2]
    for l in pend + sl_fin(): a(l)
    if cfg.wsum == 1:
        a(f'v_cvt_pk_bf16_f32 v{X}, v{X}, v{X}')
        a(f'ds_write_b16 v{WSA+1}, v{X}')
    if cfg.wsum: a('s_waitcnt lgkmcnt(0)')
    arrive(a, 16, 12, 13)
    stamp(a, cfg, 3)
    a(f's_lshl_b32 {t0}, {sP}, 2')
    a(f's_add_u32 {t0}, {t0}, {PF}')
    a(f'v_mov_b32 v{FLA}, {t0}')
    a(f'v_mov_b32 v{FLV}, 0')
    if cfg.st2: a(f's_mov_b32 s61, {f32(1e-5 * 9216)}')
    if cfg.tok3: await_cnt(a, 6, 'P_sy6', 12, 13, 4)
    a(f's_cmp_lt_u32 {sP}, 2')
    a('s_cbranch_scc0 P_scriptB')
    def script(tag, tiles, lats, los):
        n = len(tiles)
        q = ['h0', 'h1']
        nxt = [2]
        done = set()
        def guard(r):
            if r >= 3 and not done:
                done.add(r); await_cnt(a, 4, f'P_w{tag}{r}', 12, 13, 4)
        def param(M, O):
            h = nxt[0]; r, hf = divmod(h, 2)
            guard(r)
            a(f's_add_u32 {M}, {sSlot}, {r*4*6144+3072*hf}')
            a(f's_add_u32 {O}, {tiles[r][0]}, {tiles[r][1]+6144*hf}')
            nxt[0] += 1
            return f'h{h}'
        def now_h():
            h = nxt[0]; r, hf = divmod(h, 2)
            guard(r)
            issue_h(tiles[r][0], r, hf, tiles[r][1]); nxt[0] += 1
            q.append(f'h{h}')
        def now_lo(key):
            for hf in range(2):
                a(f's_add_u32 m0, {sLoP}, {3072*hf}')
                a(f's_add_u32 {t0}, {sLo0}, {3072*hf}')
                for l in half(RLO, t0): a(l)
                q.append(key if hf else 'lox')
        if cfg.t0pre == 2 and cfg.tok2: await_cnt(a, 5, f'P_sy5{tag}', 12, 13, 4)
        if cfg.pair and tag == 'b':
            q[:] = ['h0', 'h2', 'h1', 'h3'] if (cfg.pair & 1 and cfg.mix != 3) else ['h0', 'h1', 'h2', 'h3']; nxt[0] = 4
            if cfg.mix == 3:
                for hf in range(2): issue_h(sH0, 1, hf, 192)
        if cfg.late4 != 2:
            for key in los.get(-1, []): now_lo(key)
        for _ in range(cfg.early): now_h()
        for r in range(n):
            ng = min(2, 2*n - nxt[0])
            if r == 1 and cfg.r1late: ng = 1
            new = []
            if cfg.pair:
                ng = 4 if (nxt[0] == 2*r + 2 and nxt[0] < 2*n) else 0
                late = cfg.late4 and tag == 'a' and r == 0
                if late: ng = 0
                if ng:
                    h = nxt[0]; guard(h // 2 + 1)
                    param(M1, O1); param(M2, O2); nxt[0] += 2
                    new = [f'h{h}', f'h{h+2}', f'h{h+1}', f'h{h+3}'] if cfg.pair in (1, 4) else [f'h{h+i}' for i in range(4)]
            elif cfg.deep2 and r == cfg.deep2 - 1:
                ng = 4; h = nxt[0]
                param(M1, O1); nxt[0] += 1; param(M2, O2); nxt[0] += 1
                new = [f'h{h}', f'h{h+1}', f'h{h+2}', f'h{h+3}']
            else:
                if ng >= 1: new.append(param(M1, O1))
                if ng >= 2: new.append(param(M2, O2))
            last = r == n - 1
            if cfg.b2 and r >= 1: a(f"{TM(cfg)} s[{STAMP0+2*(10+r)}:{STAMP0+2*(10+r)+1}]")
            if lats[r] is not None:
                key = lats[r]
                if key in q:
                    i2 = q.index(key)
                    a(f's_waitcnt vmcnt({3*(len(q)-1-i2)})'); del q[:i2+1]
                off = LO - r * 24576
                a(f'v_add_u32 v12, {off}, v{RA0}\nv_add_u32 v13, {off}, v{RA1}')
                a(f's_call_b64 {RET}, P_lat')
            idx = max([q.index(x) for x in (f'h{2*r}', f'h{2*r+1}') if x in q] + [-1])
            if cfg.b2 and lats[r] is not None: a(f"{TM(cfg)} s[{STAMP0+2*(1 if r < 2 else 2)}:{STAMP0+2*(1 if r < 2 else 2)+1}]")
            if last and tag == 'a':
                a(f's_call_b64 {RET}, P_h0w'); break
            a(f's_waitcnt vmcnt({3*(len(q)-1-idx)})'); stamp(a, cfg, 4+r)
            del q[:idx+1]; q.extend(new)
            if last: break
            a(f's_call_b64 {RET}, P_h{ng}')
            if cfg.pair and late:
                if cfg.late4 == 2:
                    for key in los.get(-1, []): now_lo(key)
                for hf in range(2):
                    issue_h(tiles[1][0], 1, hf, tiles[1][1]); issue_h(tiles[2][0], 2, hf, tiles[2][1])
                q.extend(['h2', 'h4', 'h3', 'h5']); nxt[0] = 6
            if r == 1 and cfg.r1late: now_h()
            for key in los.get(r, []): now_lo(key)
            if tag == 'b' and r == cfg.wvr:
                await_cnt(a, 16, 'P_wl', 12, 13, 4)
                a(f's_sub_u32 {t0}, {sP}, 2\ns_mul_i32 {t0}, {t0}, 9216')
                a(f'v_lshlrev_b32 v12, 4, v1\nv_add_u32 v12, {t0}, v12')
                for k in range(3):
                    a(f's_add_u32 m0, {t0}, {WREG+3072*k}')
                    a(f's_add_u32 s50, s16, {3072*k}\ns_addc_u32 s51, s17, 0')
                    for j in range(3): a(f'global_load_lds_dwordx4 v12, s[50:51] offset:{1024*j}')
                    q.append('wv')
                if cfg.touch:
                    a(f's_mov_b32 s36, s26\ns_mov_b32 s37, s27\ns_mov_b32 s38, {REC_BYTES}\ns_mov_b32 s39, 0x20000')
                    if cfg.fl:
                        a('v_and_b32 v12, 7, v1\nv_lshlrev_b32 v12, 17, v12')
                        a('v_lshrrev_b32 v13, 3, v1\nv_lshl_add_u32 v12, v13, 6, v12')
                        a(f's_lshl_b32 {t0}, s2, 9')
                    else:
                        a('v_and_b32 v12, 15, v1\nv_lshlrev_b32 v12, 16, v12')
                        a('v_lshrrev_b32 v13, 4, v1\nv_lshl_add_u32 v12, v13, 6, v12')
                        a(f's_lshl_b32 {t0}, s2, 8')
                    a(f'buffer_load_dword v232, v12, {RWS}, {t0} offen' + (' sc1' if cfg.touch == 3 else ''))
                    a(f'v_mov_b32 v12, 0')
                    a(f'global_load_dword v234, v12, {SOUT}')
                    a(f'global_load_dword v233, v12, {SQ}')
                    q.append('touch')
    TL = [(sH0, 0), (sH0, 192), (sH0, 73728), (sH0, 73728+192)]
    if cfg.tord: TL = [TL[0], TL[2], TL[1], TL[3]]
    script('a', [None] + TL, [None, 'lo0', None, None, None], {cfg.lopos: ['lo0']})
    if cfg.b2: a(f"{TM(cfg)} s[{STAMP0+30}:{STAMP0+31}]")
    a('s_branch P_fin')
    a('P_scriptB:')
    script('b', [None] + TL[1:], [None, None, None, None], {})
    a(f's_call_b64 {RET}, P_h0')
    if cfg.b2: a(f"{TM(cfg)} s[{STAMP0+30}:{STAMP0+31}]")
    a(f'v_mov_b32 v{FLV}, 5')
    a('s_waitcnt vmcnt(0)')
    a(f'ds_write_b32 v{FLA}, v{FLV}')
    if cfg.trp: a('s_branch L_exit')
    if cfg.stamps: a('s_mov_b32 s100, 0')
    a('s_cmp_ge_u32 s2, 16')
    a('s_cbranch_scc1 L_exit')
    if cfg.stamps: a('s_mov_b32 s100, 1')
    if cfg.prog:
        a(f'v_mov_b32 v12, {CNT+48}')
        a('P_w17:')
        a('ds_read_b128 v[232:235], v12')
        a('s_waitcnt lgkmcnt(0)')
        a('v_min_u32 v232, v232, v233')
        a('v_min3_u32 v232, v232, v234, v235')
        a('v_cmp_gt_u32 vcc, 24576, v232')
        a('s_cbranch_vccnz P_w17')
    else:
        await_cnt(a, 17, 'P_w17', 12, 13, 4)
    a(f's_sub_u32 {t0}, {sP}, 2\ns_mul_i32 {t0}, {t0}, 9216')
    a(f'v_lshlrev_b32 v12, 4, v1\nv_add_u32 v12, {t0}, v12')
    for k in range(3):
        a(f's_add_u32 m0, {t0}, {WO+3072*k}')
        a(f's_add_u32 s50, s18, {3072*k}\ns_addc_u32 s51, s19, 0')
        for j in range(3): a(f'global_load_lds_dwordx4 v12, s[50:51] offset:{1024*j}')
    a('P_fin:')
    if cfg.trp: a('s_branch L_exit')
    stamp(a, cfg, 9)
    a('s_cmp_ge_u32 s2, 16')
    a('s_cbranch_scc1 L_exit')
    a('s_setprio 0')
    a(f's_load_dword s47, {SDBG}, 0')
    a('s_waitcnt lgkmcnt(0)')
    a('s_cmp_eq_u32 s47, 0')
    a('s_cbranch_scc1 P_getnonce')
    a('P_getnonce_d:')
    a(f's_mov_b32 s36, s26\ns_mov_b32 s37, s27\ns_mov_b32 s38, {REC_BYTES}\ns_mov_b32 s39, 0x20000')
    await_cnt(a, 7, 'P_w7', 12, 13, 4)
    a('s_cmp_lt_u32 s50, 0x100')
    a('s_cbranch_scc1 L_comb')
    a('s_branch Z_comb')
    nonce_slow(a, 'P_getnonce', 'P_getnonce_d', 20)
    if cfg.dry:
        a('P_dry1:')
        a('s_call_b64 s[60:61], C_blk2')
        a('s_branch P_dryd')
        a('P_dry2:')
        a(f's_call_b64 {RET}, P_lat')
        a('s_branch P_dryd')
    a('P_lat:')
    if cfg.pp: a(f's_setprio {cfg.pl}')
    if cfg.wsum:
        wsr = [f'ds_read_b128 {vr(F+4*s_,4)}, v{WSA} offset:{32*s_}' for s_ in range(6)]
        L = lo_reads(12, 13)
        for i, (t, s_) in enumerate([(t, s_) for t in range(3) for s_ in range(6)]):
            L.append(lat_mfma(t, s_))
            if i < 6: L.append(wsr[i])
            if i >= 6 and i % 2 == 0: L.append(f'{MF16} {vr(SL,4)}, {vr(F+4*((i-6)//2),4)}, {vr(X+4*((i-6)//2),4)}, {"0" if i == 6 else vr(SL,4)}')
        for l in autowait(L, age=99): a(l)
        a(f's_setpc_b64 {RET}')
    else:
        L, pend = lateral(False)
        for l in autowait(lo_reads(12, 13) + L, age=99): a(l)
        a('s_nop 9')
        for l in pend + sl_fin(): a(l)
        a(f's_setpc_b64 {RET}')
    hp = cfg.pm if cfg.pp else None
    g1 = [f's_mov_b32 m0, {M1}', 's_nop 0'] + half(RHI, O1, SR)
    g2 = [f's_mov_b32 m0, {M2}', 's_nop 0'] + half(RHI, O2, SR)
    def traced(lines, first, n):
        step = max(1, len(lines) // n); k = first
        for i, l in enumerate(lines):
            if i % step == 0 and k < first + n:
                stamp(a, cfg, k, True); k += 1
            a(l)
    if not cfg.pair:
        a('P_h2:')
        traced(B.p_head(g1, g2, hp), 2, 3)
        a('s_branch P_s1')
    if cfg.pair:
        a('P_h4:')
        def grp(M, O): return [f's_mov_b32 m0, {M}', f's_add_u32 {t1}, {O}, 192'] + half(RHI, O, SR) + [f's_add_u32 m0, {M}, 24576', 's_nop 0'] + half(RHI, t1, SR)
        G1, G2 = grp(M1, O1), grp(M2, O2)
        if cfg.pair not in (1, 4):
            G1 = [f's_mov_b32 m0, {M1}', f's_add_u32 {t1}, {O1}, 192'] + half(RHI, O1, SR) + [f's_mov_b32 m0, {M2}', f's_add_u32 {t2}, {O2}, 192'] + half(RHI, O2, SR)
            G2 = [f's_add_u32 m0, {M1}, 24576', 's_nop 0'] + half(RHI, t1, SR) + [f's_add_u32 m0, {M2}, 24576', 's_nop 0'] + half(RHI, t2, SR)
        H = B.p_head(G1, (), hp)
        k1 = [i for i, l in enumerate(H) if l.startswith('v_mfma')]
        H = H[:k1[0]+1] + G2[:5] + H[k1[0]+1:k1[1]+1] + G2[5:] + H[k1[1]+1:]
        for l in H: a(l)
        a('s_branch P_s1')
    elif cfg.deep2:
        a('P_h4:')
        def grp(M, O): return [f's_mov_b32 m0, {M}', f's_add_u32 {t1}, {O}, 6144'] + half(RHI, O, SR) + [f's_add_u32 m0, {M}, 3072', 's_nop 0'] + half(RHI, t1, SR)
        H = B.p_head(grp(M1, O1), (), hp)
        G2 = grp(M2, O2)
        k1 = [i for i, l in enumerate(H) if l.startswith('v_mfma')]
        H = H[:k1[0]+1] + G2[:5] + H[k1[0]+1:k1[1]+1] + G2[5:] + H[k1[1]+1:]
        for l in H: a(l)
        a('s_branch P_s1')
    else:
        a('P_h1:')
        traced(B.p_head(g1, (), hp), 2, 3)
        a('s_branch P_s1')
    a('P_h0w:')
    a('s_waitcnt vmcnt(0)')
    stamp(a, cfg, 8)
    a('P_h0:')
    for l in B.p_head((), (), hp): a(l)
    a('P_s1:')
    tail = B.p_tail(0, cfg.pv if cfg.pp else None) if not cfg.pk else B.p_tail_pk(cfg.pv if cfg.pp else None, bool(cfg.pk & 1), bool(cfg.pk & 2))
    if cfg.st2: tail = B.p_tail2(cfg.pv if cfg.pp else None, cfg.st2 == 1)
    traced(tail[:-1], 5, 9)
    if not cfg.st2: a(f'v_add_u32 v{FLV}, 1, v{FLV}')
    a('s_waitcnt lgkmcnt(0)')
    a(f'ds_write_b32 v{FLA}, v{FLV}')
    a(f's_setpc_b64 {RET}')

def gen_consumer(a, cfg):
    sH = 's40'
    t0, t1 = 's41', 's42'
    RET = 's[60:61]'
    sR = 's43'
    LIN, REC, WVA, XA = 2, 3, 8, 9
    CA0, CA1, CT0, CT1 = B.C.CA0, B.C.CA1, B.C.CT0, B.C.CT1
    PART = 12
    AP, U, LA, OP = B.C.AP, B.C.U, B.C.LA, B.C.OP
    WV = B.C.WV
    QB, WK, ME, QT, QP, TA, QF = 96, 108, 132, 156, 164, 168, 16
    T = 240
    T2 = 248
    a('L_cons:')
    if cfg.cearly: a(f's_setprio {cfg.cpp}')
    a('s_memrealtime s[58:59]')
    code_prefetch(a, 'L_pc', 0, -256)
    a(f's_sub_u32 {sH}, s3, 4')
    a(f'v_lshlrev_b32 v{LIN}, 4, v1')
    a(f's_mul_i32 s48, {sH}, 4608')
    a(f'v_add_u32 v{PART}, s48, v{LIN}')
    a(f's_min_u32 {t0}, {sH}, 2')
    a(f's_lshl_b32 s46, {sH}, 2')
    a(f's_add_u32 s46, s46, {t0}')
    a(f's_lshl_b32 s46, s46, 10')
    a(f'v_add_u32 v13, s46, v{LIN}')
    a(f's_lshl_b32 s54, {t0}, 10')
    a(f'v_add_u32 v10, s54, v{LIN}')
    a('s_lshr_b32 s50, s2, 3\ns_and_b32 s50, s50, 31\ns_mul_i32 s50, s50, 640')
    a(f'v_lshlrev_b32 v14, 7, v1')
    a(f'v_add_u32 v14, s50, v14')
    a(f'v_min_u32 v14, 18428, v14')
    N, G, RHO, KAP = T+4, T+5, T+6, T+7
    a(f'v_and_b32 v{N}, 15, v1')
    a(f'v_lshrrev_b32 v{G}, 4, v1')
    a(f'v_bfe_u32 v{RHO}, v1, 2, 2')
    a(f'v_and_b32 v{KAP}, 3, v1')
    a(f'v_mul_u32_u24 v{T+8}, 192, v{N}')
    a(f'v_lshl_add_u32 v{T+8}, v{G}, 4, v{T+8}')
    a(f'v_lshl_add_u32 v{T+9}, v{RHO}, 3, v{KAP}')
    a(f'v_mul_u32_u24 v{T+9}, 48, v{T+9}')
    a(f'v_lshl_add_u32 v{T+9}, v{G}, 4, v{T+9}')
    a(f'v_add_u32 v{T+9}, s48, v{T+9}')
    if cfg.spf & 6:
        a(f's_cmp_lt_u32 {sH}, 2')
        a(f's_cselect_b32 s96, 8, {sH}')
        a(f's_cselect_b32 s97, {sH}, 0')
        a('s_add_u32 s96, s96, s57')
        a('s_mul_i32 s98, s96, 43691')
        a('s_lshr_b32 s98, s98, 19')
        a('s_add_u32 s98, s98, s97')
        a('s_mul_i32 s98, s98, 73728')
        a('s_mul_i32 s96, s96, 6144')
        a('s_add_u32 s97, s96, s98')
    if cfg.bist: stamp(a, cfg, 12)
    a('s_waitcnt lgkmcnt(0)')
    if cfg.bist: stamp(a, cfg, 13)
    if cfg.spf & 6:
        a('s_add_u32 s98, s6, s97\ns_addc_u32 s99, s7, 0')
    a(f's_cmp_eq_u32 {sH}, 0\ns_cselect_b64 s[50:51], {SWV}, {SWQ}')
    a(f's_cmp_eq_u32 {sH}, 2\ns_cselect_b64 s[50:51], {SWK}, s[50:51]')
    a(f's_cmp_eq_u32 {sH}, 3\ns_cselect_b64 s[50:51], {SWM}, s[50:51]')
    a('s_mov_b64 exec, 31')
    a(f'global_load_dword v200, v14, s[50:51]')
    a('s_mov_b64 exec, -1')
    o2 = cfg.spn if cfg.spf & 1 else 0
    if cfg.spf & 2:
        for i in range(cfg.spn): a(f's_load_dword s96, s[98:99], {128*(o2+i)}')
        o2 += cfg.spn
    if cfg.bist: stamp(a, cfg, 11)
    a('s_barrier')
    if cfg.bist: stamp(a, cfg, 14)
    a(f's_lshl_b32 s50, s2, 2\ns_xor_b32 s50, s50, {sH}\ns_cmp_eq_u32 s50, 3')
    a('s_cbranch_scc1 C_mknonce')
    a('C_mknonce_d:')
    if cfg.fake: arrive(a, 5, 14, 15)
    def wk_loads():
        a('s_mov_b32 exec_hi, 0xffff')
        for s in range(3):
            for tt in range(2):
                a(f'global_load_dwordx4 {vr(WK+(2*s+tt)*4,4)}, v{T+9}, {SWK} offset:{1536*s+192*tt}')
        a('s_mov_b32 exec_hi, -1')
    if cfg.pro == 2:
        for s in range(3): a(f'global_load_dwordx4 {vr(QB+4*s,4)}, v{T+8}, {SQ} offset:{64*s}')
        dma_part(a, SWQ, WQ, PART, 's48')
        if cfg.wkpos == 2: arrive(a, 5, 14, 15)
        a('s_mov_b32 s57, s46')
        a(f'v_mov_b32 v{PART}, v13')
        for i in range(24): a(f'v_mov_b32 v{WK+i}, 0')
        wk_loads()
        if cfg.wkpos == 1: arrive(a, 5, 14, 15)
    elif not cfg.fake:
        M1S, M1L, M2S, M2L = (SWM, WM, SWQ, WQ) if cfg.mfirst else (SWQ, WQ, SWM, WM)
        a(f's_cmp_ge_u32 {sH}, 3')
        a('s_cbranch_scc1 C_noy')
        a(f's_add_u32 m0, s54, {QS}')
        a(f's_cmp_ge_u32 {sH}, 2')
        a(f'global_load_lds_dwordx4 v10, {SQ}')
        a('s_cbranch_scc1 C_noy')
        dma_extra(a, M1S, M1L, 13, 's46')
        a('C_noy:')
        dma_main(a, M1S, M1L, 13, 's46')
        if cfg.wkpos == 2: arrive(a, 5, 14, 15)
        a('s_mov_b32 s57, s46')
        a(f'v_mov_b32 v{PART}, v13')
        for i in range(24): a(f'v_mov_b32 v{WK+i}, 0')
    stamp(a, cfg, 1)
    a(f's_mov_b32 s36, s26\ns_mov_b32 s37, s27\ns_mov_b32 s38, {REC_BYTES}\ns_mov_b32 s39, 0x20000')
    a(f's_and_b32 s49, {sH}, 1\ns_lshl_b32 s55, s49, 1\ns_lshr_b32 s56, {sH}, 1\ns_add_u32 s55, s55, s56')
    a(f's_lshl_b32 {t0}, s2, 2\ns_add_u32 {t0}, {t0}, s55\ns_lshl_b32 {t0}, {t0}, 6')
    a(f'v_mul_u32_u24 v{REC}, {65536 + cfg.skew}, v{N}')
    a(f'v_lshl_add_u32 v{REC}, v{G}, 4, v{REC}')
    a(f'v_add_u32 v{REC}, {t0}, v{REC}')
    a('s_mul_i32 s52, s56, 12288')
    a(f'v_and_b32 v{T+10}, 31, v1')
    a(f'v_lshrrev_b32 v{T+11}, 5, v1')
    a(f'v_lshlrev_b32 v{T+12}, 1, v{N}')
    a(f'v_bfe_u32 v{T+12}, {SF}, v{T+12}, 2')
    a(f'v_xor_b32 v{T+12}, v{T+12}, v{T+11}')
    a(f'v_mul_u32_u24 v{T+13}, 192, v{T+10}')
    a(f'v_add_u32 v{T+13}, s52, v{T+13}')
    a(f'v_lshl_add_u32 v{CA0}, v{T+12}, 4, v{T+13}')
    a(f'v_xor_b32 v{T+12}, 2, v{T+12}')
    a(f'v_lshl_add_u32 v{CA1}, v{T+12}, 4, v{T+13}')
    a(f'v_lshl_add_u32 v{T+12}, v{T+11}, 2, v{RHO}')
    a(f'v_bfe_u32 v{T+13}, v1, 4, 1')
    a(f'v_lshrrev_b32 v{T+14}, 1, v{KAP}')
    a(f'v_lshl_add_u32 v{T+14}, v{T+13}, 1, v{T+14}')
    a(f'v_and_b32 v{T+15}, 1, v{KAP}')
    a(f'v_lshlrev_b32 v{T+15}, 3, v{T+15}')
    a(f'v_add_u32 v{T+15}, s52, v{T+15}')
    for sec, dst in ((0, CT0), (1, CT1)):
        if sec: a(f'v_add_u32 v{T+12}, 8, v{T+12}')
        a(f'v_lshlrev_b32 v{dst}, 1, v{T+12}')
        a(f'v_bfe_u32 v{dst}, {SF}, v{dst}, 2')
        a(f'v_xor_b32 v{dst}, v{dst}, v{T+14}')
        a(f'v_lshl_add_u32 v{dst}, v{dst}, 4, v{T+15}')
        a(f'v_mul_u32_u24 v10, 192, v{T+12}')
        a(f'v_add_u32 v{dst}, v{dst}, v10')
    a(f'v_lshl_add_u32 v{WVA}, v{T+11}, 2, v{RHO}')
    a(f'v_lshl_add_u32 v{WVA}, v{T+13}, 4, v{WVA}')
    a(f'v_mul_u32_u24 v{WVA}, 48, v{WVA}')
    a(f'v_lshl_add_u32 v{WVA}, v{KAP}, 3, v{WVA}')
    a(f'v_add_u32 v{WVA}, {WREG}, v{WVA}')
    a(f's_xor_b32 {t0}, s55, 1')
    a(f's_mul_i32 s53, {t0}, 4608')
    a(f's_mul_i32 s46, s55, 4608')
    a(f'v_mov_b32 v10, s46')
    a(f'v_mov_b32 v11, s53')
    a(f'v_cmp_eq_u32 vcc, 0, v{T+13}')
    a(f'v_mul_u32_u24 v{XA}, 192, v{N}')
    a(f'v_lshl_add_u32 v{XA}, v{T+11}, 4, v{XA}')
    a(f'v_cndmask_b32 v10, v11, v10, vcc')
    a(f'v_add_u32 v{XA}, v{XA}, v10')
    a(f'v_add_u32 v{XA}, {WQ}, v{XA}')
    a(f'v_lshl_add_u32 v{T+12}, v{G}, 3, v{RHO}')
    a(f'v_mul_u32_u24 v10, 48, v{T+12}')
    a(f'v_min_u32 v11, 2, v{KAP}')
    a(f'v_lshl_add_u32 v10, v11, 4, v10')
    a(f's_add_u32 {t0}, s48, {WQ}')
    a(f'v_add_u32 v10, {t0}, v10')
    a(f'v_add_u32 v13, {t0}, v{T+8}')
    a(f'v_add_u32 v{T+8}, {QS}, v{T+8}')
    a(f'v_mul_u32_u24 v11, 192, v{T+12}')
    a(f'v_lshl_add_u32 v11, v{KAP}, 4, v11')
    a(f'v_add_u32 v11, {WM}, v11')
    a(f'v_and_b32 v{T+12}, 1, v1')
    a(f'v_cmp_eq_u32 vcc, v{T+12}, v{T+13}')
    a(f'v_mov_b32 v{T+12}, 0x3f803f80')
    for i in range(52 - cfg.zl):
        a(f'v_mov_b32 v{U+i}, 0')
        if i == 1:
            for k in range(4): a(f'v_cndmask_b32 v{OP+k}, 0, v{T+12}, vcc')
    if cfg.fake:
        a(f's_add_u32 s58, s58, {cfg.fake}')
        a('C_fk:')
        a('s_memrealtime s[50:51]')
        a('s_waitcnt lgkmcnt(0)')
        a('s_sub_u32 s50, s50, s58')
        a('s_cmp_lt_i32 s50, 0')
        a('s_cbranch_scc1 C_fk')
        stamp(a, cfg, 2)
        a(f's_mul_i32 s50, {sH}, 3072')
        a(f's_add_u32 s50, s50, {8<<20}')
        a(f's_add_u32 s50, s26, s50\ns_addc_u32 s51, s27, 0')
        a(f's_add_u32 m0, s48, {WQ}')
        a('s_nop 0')
        for k in range(3): a(f'global_load_lds_dwordx4 v{LIN}, s[50:51] offset:{1024*k}' + (' sc1' if cfg.fsc else ''))
        a('s_waitcnt vmcnt(0)')
        stamp(a, cfg, 15)
        lds_sync(a, 3, 'C_sy3', 14, 15)
        a('s_cmp_eq_u32 s2, 999')
        a('s_cbranch_scc1 Z_sy3')
    else:
        def me_rd(sp, st): return [f'ds_read_b64_tr_b16 {vr(TA+(sp*6+st)*4+2*sec,2)}, v11 offset:{sp*6144+sec*768+(st>>1)*64+(st&1)*8}' for sec in range(2)]
        def q_rd(s, tt): return [f'ds_read_b64_tr_b16 {vr(QF+(tt*3+s)*4+2*sec,2)}, v10 offset:{s*1536+sec*192+tt*8}' for sec in range(2)]
        def q_mm(s, tt): return f'{MF16} {vr(QT+4*tt,4)}, {vr(QF+(tt*3+s)*4,4)}, {vr(QB+4*s,4)}, {"0" if s == 0 else vr(QT+4*tt,4)}'
        if cfg.pro == 2:
            if cfg.wkpos == 3: arrive(a, 5, 14, 15)
            if cfg.wmtok: await_cnt(a, 6, 'C_tk6', 14, 15, 4)
            if cfg.bist: stamp(a, cfg, 7)
            a(f's_cmp_ge_u32 {sH}, 2')
            a('s_cbranch_scc1 C_nox')
            dma_extra(a, SWM, WM, PART, 's57')
            a('C_nox:')
            dma_main(a, SWM, WM, PART, 's57')
            if cfg.wkpos == 0: arrive(a, 5, 14, 15)
            epi_setup(a, cfg)
            if cfg.bist: stamp(a, cfg, 6)
            a('s_waitcnt vmcnt(10)')
            if cfg.bist: stamp(a, cfg, 5)
            if cfg.cpp: a(f's_setprio {cfg.cpp}')
            stamp(a, cfg, 2)
            qseq = [(s, tt) for s in range(3) for tt in range(2)]
            L = [q_rd(*x) for x in qseq] + [q_mm(*x) for x in qseq]
            for l in autowait(flat(L), age=99): a(l)
            for i in range(8): a(f'v_add_f32 v{QT+i}, v{QT+i}, v{QT+i}')
            for i in range(4): a(f'v_cvt_pk_bf16_f32 v{QP+i}, v{QT+2*i}, v{QT+2*i+1}')
            a('s_waitcnt vmcnt(4)')
            for st in range(6):
                a(f'{MF16} {vr(ME+4*st,4)}, {vr(WK+4*st,4)}, {vr(QP,4)}, 0')
            if cfg.bist: stamp(a, cfg, 4)
            a('s_waitcnt vmcnt(0)')
            lds_sync(a, 1, 'C_sy1', 14, 15)
            if cfg.bist: stamp(a, cfg, 8)
            stamp(a, cfg, 15)
            seq = [(sp, st) for sp in range(3) for st in range(6)]
            L = [me_rd(*seq[i]) for i in range(7)]
            for i, (sp, st) in enumerate(seq):
                L.append(f'{MF16} {vr(ME+4*st,4)}, {vr(TA+(sp*6+st)*4,4)}, {vr(QB+4*sp,4)}, {vr(ME+4*st,4)}')
                if i + 7 < 18: L.append(me_rd(*seq[i+7]))
            for l in autowait(flat(L), age=99): a(l)
        else:
            if cfg.spf & 4:
                for i in range(min(cfg.spn, 48 - o2)): a(f's_load_dword s96, s[98:99], {128*(o2+i)}')
            if cfg.bist: stamp(a, cfg, 7)
            if cfg.wkpos == 3: arrive(a, 5, 14, 15)
            a(f's_cmp_ge_u32 {sH}, 2')
            a('s_cbranch_scc1 C_nox')
            dma_extra(a, M2S, M2L, PART, 's57')
            a('C_nox:')
            dma_main(a, M2S, M2L, PART, 's57')
            if cfg.wkpos == 1: arrive(a, 5, 14, 15)
            if cfg.tk6 == 1: arrive(a, 6, 14, 15)
            a('s_mov_b32 exec_hi, 0xffff')
            for s in range(3):
                for tt in range(2):
                    a(f'global_load_dwordx4 {vr(WK+(2*s+tt)*4,4)}, v{T+9}, {SWK} offset:{1536*s+192*tt}')
            a('s_mov_b32 exec_hi, -1')
            if cfg.wkpos == 0: arrive(a, 5, 14, 15)
            if (cfg.tok3 or cfg.mix) and cfg.tk6 == 0: arrive(a, 6, 14, 15)
            epi_setup(a, cfg)
            if cfg.bist: stamp(a, cfg, 6)
            a('s_waitcnt vmcnt(6)')
            if cfg.bist: stamp(a, cfg, 5)
            lds_sync(a, 1, 'C_sy1', 14, 15)
            if cfg.cpp: a(f's_setprio {cfg.cpp}')
            stamp(a, cfg, 2)
            def me_rd(sp, st): return [f'ds_read_b64_tr_b16 {vr(TA+(sp*6+st)*4+2*sec,2)}, v11 offset:{sp*6144+sec*768+(st>>1)*64+(st&1)*8}' for sec in range(2)]
            def q_rd(s, tt): return [f'ds_read_b64_tr_b16 {vr(QF+(tt*3+s)*4+2*sec,2)}, v10 offset:{s*1536+sec*192+tt*8}' for sec in range(2)]
            def q_mm(s, tt): return f'{MF16} {vr(QT+4*tt,4)}, {vr(QF+(tt*3+s)*4,4)}, {vr(QB+4*s,4)}, {"0" if s == 0 else vr(QT+4*tt,4)}'
            def me_mm(sp, st): return f'{MF16} {vr(ME+4*st,4)}, {vr(TA+(sp*6+st)*4,4)}, {vr(QB+4*sp,4)}, {"0" if sp == 0 else vr(ME+4*st,4)}'
            seq = [(sp, st) for sp in range(3) for st in range(6)]
            qseq = [(s, tt) for s in range(3) for tt in range(2)]
            qb = [f'ds_read_b128 {vr(QB+4*s,4)}, v{T+8} offset:{64*s}' for s in range(3)]
            L = [qb[0], q_rd(0,0), q_rd(0,1), qb[1], q_rd(1,0), q_rd(1,1), qb[2], q_rd(2,0), q_rd(2,1)]
            for i, (s_, tt) in enumerate(qseq):
                L.append(q_mm(s_, tt)); L.append(me_rd(*seq[i]))
            post = [f'v_add_f32 v{QT+i}, v{QT+i}, v{QT+i}' for i in range(8)] + [f'v_cvt_pk_bf16_f32 v{QP+i}, v{QT+2*i}, v{QT+2*i+1}' for i in range(4)]
            for i, (sp, st) in enumerate(seq):
                L.append(me_mm(sp, st))
                if i + 6 < 18: L.append(me_rd(*seq[i+6]))
                if i >= 3: L.append(post[:1]); del post[:1]
            L.append(post)
            for l in autowait(flat(L), age=99): a(l)
            if cfg.bist: stamp(a, cfg, 4)
            a('s_waitcnt vmcnt(0)')
            if cfg.bist: stamp(a, cfg, 8)
            stamp(a, cfg, 15)
            for st in range(6):
                a(f'{MF16} {vr(ME+4*st,4)}, {vr(WK+4*st,4)}, {vr(QP,4)}, {vr(ME+4*st,4)}')
        sc = 96 ** -0.5 * math.log2(math.e)
        a(f's_mov_b32 {t0}, {f32(sc)}')
        for s in range(3):
            for i in range(8): a(f'v_mul_f32 v{ME+8*s+i}, {t0}, v{ME+8*s+i}')
            for i in range(4): a(f'v_cvt_pk_bf16_f32 v{ME+8*s+i}, v{ME+8*s+2*i}, v{ME+8*s+2*i+1}')
            a(f'ds_write_b128 v13, {vr(ME+8*s,4)} offset:{64*s}')
            a(f'{MF16} {vr(QT,4)}, {vr(ME+8*s,4)}, {vr(ME+8*s,4)}, {"0" if s == 0 else vr(QT,4)}')
        a(f's_mov_b32 {t0}, {f32(THR)}')
        a(f'v_mov_b32 v14, {CNT + 4*3}')
        a(f'v_max3_f32 v{QT}, v{QT}, v{QT+1}, v{QT+2}')
        a(f'v_max_f32 v{QT}, v{QT}, v{QT+3}')
        a(f'v_cmp_nge_f32 vcc, {t0}, v{QT}')
        a('s_cmp_eq_u64 vcc, 0')
        a('s_cselect_b32 s51, 1, 0x101')
        a('v_mov_b32 v15, s51')
        a('s_waitcnt lgkmcnt(0)')
        a('s_mov_b64 exec, 1')
        a('ds_add_rtn_u32 v15, v14, v15')
        a('s_mov_b64 exec, -1')
        a('s_waitcnt lgkmcnt(0)')
        a('v_readfirstlane_b32 s50, v15')
        a('s_add_u32 s50, s50, s51')
        a('s_cmp_eq_u32 s50, 4')
        a('s_cbranch_scc1 C_sy3_ok')
        await_cnt(a, 3, 'C_sy3', 14, 15, 4, setaddr=False)
        a('s_cmp_eq_u32 s50, 4')
        a('s_cbranch_scc0 Z_sy3')
    if not cfg.fake: a('C_sy3_ok:')
    stamp(a, cfg, 3)
    cons_main(a, cfg, False)
    a('C_mknonce:')
    a('s_or_b32 s50, s58, 1')
    a('v_mov_b32 v20, s50\nv_mov_b32 v21, 0\nv_mov_b32 v22, 0')
    a('s_mov_b64 exec, 1')
    a(f'global_atomic_cmpswap v22, v[20:21], {SDBG} sc1')
    a('s_mov_b64 exec, -1')
    a('s_branch C_mknonce_d')
    nonce_slow(a, 'C_getnonce', 'C_getnonce_d', T2)

def slow_rescale(NEW):
    MX = 160; U, LA = B.C.U, B.C.LA
    L = [f'v_max_f32 v{NEW}, v{NEW}, v{MX}',
         f'v_sub_f32 v{MX+4}, v{MX}, v{NEW}',
         f'v_exp_f32 v{MX+4}, v{MX+4}',
         f'v_mov_b32 v{MX}, v{NEW}', 's_nop 1',
         f'v_mov_b32 v{MX+5}, v{MX+4}', f'v_mov_b32 v{MX+6}, v{MX+4}', 's_nop 1',
         f'v_permlane16_swap_b32 v{MX+5}, v{MX+6}', 's_nop 1']
    L += [f'v_mul_f32 v{U+i}, v{U+i}, v{MX+4}' for i in range(48)]
    L += [f'v_mul_f32 v{LA+i}, v{LA+i}, v{MX+5+(i&1)}' for i in range(4)]
    return L

def slow_tile(off):
    MX = 160; S = B.C.S[0]
    tb = B.C.TB
    B.C.TB = off
    sv = (B.C.KA, B.C.KT, B.C.S, B.C.P)
    B.C.KA = [sv[0][0]] * 2; B.C.KT = [sv[1][0]] * 2; B.C.S = [S] * 2; B.C.P = [S] * 2
    L = [B.ka(1, s) for s in range(6)] + ['s_waitcnt lgkmcnt(0)']
    L += [B.kt(1, ks, t) for ks in range(2) for t in range(3)]
    L += [B.sm(1, s) for s in range(6)] + ['s_nop 15', 's_nop 15']
    L += [f'v_max3_f32 v{MX+1}, v{S}, v{S+1}, v{S+2}']
    L += [f'v_max3_f32 v{MX+1}, v{MX+1}, v{S+3+2*i}, v{S+4+2*i}' for i in range(6)]
    L += [f'v_max_f32 v{MX+1}, v{MX+1}, v{S+15}', f'v_mov_b32 v{MX+2}, v{MX+1}', 's_nop 1',
          f'v_permlane32_swap_b32 v{MX+1}, v{MX+2}', 's_nop 1', f'v_max_f32 v{MX+1}, v{MX+1}, v{MX+2}']
    L += slow_rescale(MX+1)
    L += [f'v_sub_f32 v{S+i}, v{S+i}, v{MX}' for i in range(16)]
    L += [B.ex(1, i) for i in range(16)] + ['s_nop 1'] + [B.cv(1, i) for i in range(8)]
    L += ['s_waitcnt lgkmcnt(0)', 's_nop 1']
    L += [B.pv(1, ks, t) for ks in range(2) for t in range(4)] + ['s_nop 15', 's_nop 15']
    B.C.TB = tb
    B.C.KA, B.C.KT, B.C.S, B.C.P = sv
    return flat(L)

EPI_REGS = (8, 240, 241, 242, 243, 0, 251, 254, 255, 244, 245)
def epi_setup(a, cfg):
    for i in range(52 - cfg.zl, 52): a(f'v_mov_b32 v{B.C.U+i}, 0')
    sH = 's40'
    t0, t1 = 's41', 's42'
    LIN, WVA = 2, 8
    WA0, FLA, XO, XP, FO, FP, ONE, MRA, THRV, XLW, XLR = EPI_REGS
    THR, INC = 246, 247
    a(f'v_add_u32 v{WA0}, s46, v{WVA}')
    a(f's_mul_i32 {t0}, {sH}, {XST}')
    a(f's_xor_b32 {t1}, {sH}, 2')
    a(f's_mul_i32 {t1}, {t1}, {XST}')
    a(f's_add_u32 {t0}, {t0}, {XCH}')
    a(f's_add_u32 {t1}, {t1}, {XCH+3072}')
    a(f'v_add_u32 v{XO}, {t0}, v{LIN}')
    a(f'v_lshlrev_b32 v{XLR}, 2, v1')
    a(f'v_add_u32 v{XLW}, {t1}, v{XLR}')
    a(f'v_add_u32 v{XLR}, {t0}, v{XLR}')
    a(f's_mov_b32 s52, 0xffff0000\ns_mov_b32 s53, 0xffff0000')
    if cfg.xv == 0:
        a(f'v_add_u32 v{XP}, {t1}, v{LIN}')
    else:
        a(f'v_mov_b32 v{XP}, {t0}')
        a(f'v_mov_b32 v14, {t1}')
        a(f'v_and_b32 v15, 15, v1')
        a(f'v_cndmask_b32 v{XP}, v{XP}, v14, s[52:53]')
        a(f'v_lshl_add_u32 v{XP}, v15, 4, v{XP}')
        a(f'v_lshrrev_b32 v15, 5, v1')
        a(f'v_lshl_add_u32 v{XP}, v15, 9, v{XP}')
    a(f'v_and_b32 v{FLA}, 3, v1')
    a(f's_xor_b32 {t0}, s56, 1')
    a(f'v_cmp_eq_u32 vcc, {t0}, v{FLA}')
    a(f'v_lshlrev_b32 v{FLA}, 2, v{FLA}')
    a(f'v_add_u32 v{FLA}, {PF}, v{FLA}')
    a(f'v_cndmask_b32 v{THRV}, 5, 4, vcc')
    a(f's_lshl_b32 {t0}, {sH}, 2')
    a(f's_add_u32 {t0}, {t0}, {CNT+32}')
    a(f'v_mov_b32 v{FO}, {t0}')
    a(f'v_xor_b32 v{FP}, 8, v{FO}')
    a(f'v_mov_b32 v{ONE}, 1')
    a('s_mov_b32 s44, 0\ns_mov_b32 s45, -1')
    a(f'v_bfe_u32 v{INC}, v1, 1, 1')
    a(f'v_cmp_eq_u32 vcc, s56, v{INC}')
    if cfg.uni == 2:
        a('s_mov_b32 s61, 4')
        a('s_mul_i32 s59, s56, -6144')
        a('s_add_u32 s59, s59, 24576')
    else:
        a('s_add_u32 s61, s56, 3')
        a('s_mov_b32 s59, -6144')
    a('s_mov_b32 s43, 0')
    a(f'v_cndmask_b32 v{INC}, 0, 1, vcc')
    if cfg.sw0:
        a(f'v_xor_b32 v{THR}, 1, v{INC}')
        a('s_mul_i32 s96, s56, -24576')
        a('s_add_u32 s96, s96, 12288')
        a('s_sub_u32 s58, 24576, s96')
        for r in (B.C.CA0, B.C.CA1, B.C.CT0, B.C.CT1): a(f'v_add_u32 v{r}, s96, v{r}')
    else:
        a(f'v_mov_b32 v{THR}, v{INC}')

def cons_main(a, cfg, slow):
    sH = 's40'
    t0, t1 = 's41', 's42'
    RET = 's[60:61]'
    sR = 's43'
    LIN, REC, WVA, XA = 2, 3, 8, 9
    CA0, CA1, CT0, CT1 = B.C.CA0, B.C.CA1, B.C.CT0, B.C.CT1
    AP, U, LA, OP = B.C.AP, B.C.U, B.C.LA, B.C.OP
    WV = B.C.WV
    T2 = 248
    Z = 'Z' if slow else 'C'
    prog = cfg.prog
    sw0 = cfg.sw0
    OOL = []
    MX = 160
    if slow:
        xv = cfg.xv; cfg = Cfg(); cfg.stamps = False; cfg.xv = xv
        a('Z_sy3:')
        a('ds_read_b32 v15, v14')
        a('s_waitcnt lgkmcnt(0)')
        a('v_readfirstlane_b32 s50, v15')
        a('s_and_b32 s50, s50, 0xff')
        a('s_cmp_lt_u32 s50, 4')
        a('s_cbranch_scc1 Z_sy3')
        a(f'v_mov_b32 v{MX}, {f32(-3e38)}')
        if sw0:
            for r in (CA0, CA1, CT0, CT1): a(f'v_subrev_u32 v{r}, s96, v{r}')
    WA0, FLA, XO, XP, FO, FP, ONE, MRA, THRV, XLW, XLR = EPI_REGS
    for s in range(6): a(f'ds_read_b128 {vr(AP+4*s,4)}, v{XA} offset:{32*s}')
    if slow:
        a(f's_lshl_b32 {t0}, s56, 3\ns_add_u32 {t0}, {t0}, {PF}')
        a(f'v_mov_b32 v10, {t0}')
        a(f's_mov_b32 {sR}, 1')
        a('s_waitcnt lgkmcnt(0)')
        arrive(a, 4, 14, 15)
    if slow:
        a(f's_lshl_b32 {t0}, s55, 8\ns_add_u32 {t0}, {t0}, s2\ns_lshl_b32 {t0}, {t0}, 3\ns_add_u32 {t0}, {t0}, {MREC}')
        a(f'v_and_b32 v{MRA}, 15, v1')
        a(f'v_lshlrev_b32 v{MRA}, 13, v{MRA}')
        a(f'v_add_u32 v{MRA}, {t0}, v{MRA}')
    wvr = [f'ds_read_b64_tr_b16 {vr(WV+(tt*3+t)*4+2*sec,2)}, v{WA0} offset:{t*1536+sec*384+tt*32}'
           for t in range(3) for tt in range(2) for sec in range(2)]
    if not slow:
        VF, THR, INC = T2+4, 246, 247
        sAdv, sStop = 's60', 's61'
        flag = f'ds_read_b32 v{VF}, v{FLA}'
        def waitloop(tag, go, prio=None):
            a(f'{tag}:')
            if cfg.wsl: a(f's_sleep {cfg.wsl}')
            a(flag)
            a('s_waitcnt lgkmcnt(0)')
            a(f'v_cmp_lt_u32 vcc, v{VF}, v{THR}')
            a(f's_cbranch_vccnz {tag}')
            for s_ in range(6): a(B.ka(0, s_))
            a(f's_branch {go}')
        def check(wait, go):
            a('s_waitcnt lgkmcnt(6)')
            a(f'v_cmp_lt_u32 vcc, v{VF}, v{THR}')
            a(f's_cbranch_vccnz {wait}')
            a(f'{go}:')
        class Lst:
            def __init__(s_): s_.l = []
            def __call__(s_, t): s_.l += [x.strip() for x in t.split('\n') if x.strip()]
        hook = Lst()
        if not cfg.prog: arrive(hook, 17, 14, 15)
        mk_tag(hook, T2+1)
        a(flag)
        for s_ in range(6): a(B.ka(0, s_))
        a(f'v_mov_b32 v14, {CNT + 4*4}')
        a('s_waitcnt lgkmcnt(7)')
        a('s_mov_b64 exec, 1')
        a(f'ds_add_u32 v14, v{ONE}')
        a('s_mov_b64 exec, -1')
        if cfg.cpp or cfg.cmain: a(f's_setprio {cfg.cmain}')
        if cfg.sw0:
            check('C_w0', 'C_g0')
            a(f'v_mov_b32 v{THR}, v{INC}')
            a('s_branch C_go')
            waitloop('C_w0', 'C_g0')
        a('C_loop:')
        check('C_wait', 'C_go')
        if cfg.stamps and not cfg.b2:
            pass
        if cfg.b2 and not cfg.etr:
            for j in (11, 12, 13): a(f's_mov_b64 s[{STAMP0+2*j}:{STAMP0+2*j+1}], s[{STAMP0+2*j+2}:{STAMP0+2*j+3}]')
            a(f"{TM(cfg)} s[{STAMP0+28}:{STAMP0+29}]")
        top = ([f's_setprio {cfg.ctop}'] if cfg.ctop else []) + [f's_add_u32 {sR}, {sR}, 1', f'v_add_u32 v{THR}, v{THR}, v{INC}', f's_cmp_eq_u32 {sR}, 4', f's_cselect_b32 {sAdv}, s59, 24576'] + ([f's_cmp_eq_u32 {sR}, 1', f's_cselect_b32 {sAdv}, s58, {sAdv}'] if cfg.sw0 else []) + ([f'ds_write_b32 v{FO}, v{CA0} offset:16'] if cfg.prog else [])
        advl = [f'v_add_u32 v{r}, {sAdv}, v{r}' for r in (CA0, CA1, CT0, CT1)]
        for l in B.cons2p(advl, flag, top): a(l)
        if cfg.stamps:
            for j in (5, 6): a(f's_mov_b64 s[{STAMP0+2*j}:{STAMP0+2*j+1}], s[{STAMP0+2*j+2}:{STAMP0+2*j+3}]')
            stamp(a, cfg, 7)
        a(f's_cmp_eq_u32 {sR}, {sStop}')
        a('s_cbranch_scc1 C_done')
        a(f's_load_dword s47, {SDBG}, 0')
        a('s_branch C_loop')
        waitloop('C_wait', 'C_go')
        a('C_done:')
        a('s_cmp_eq_u32 s47, 0')
        a('s_cbranch_scc1 C_getnonce')
        a('C_getnonce_d:')
        def specloop(tag, go):
            a(f'{tag}:')
            a(flag)
            for s_ in range(6): a(B.ka(0, s_))
            a('s_waitcnt lgkmcnt(6)')
            a(f'v_cmp_lt_u32 vcc, v{VF}, v{THR}')
            a(f's_cbranch_vccz {go}')
            a(f's_branch {tag}')
        if cfg.uni:
            a(f'v_mov_b32 v{THR}, v{THRV}')
            stamp(a, cfg, 4)
            check('C_w13', 'C_g13')
            stamp(a, cfg, 8)
            a('s_setprio 3')
            for l in (B.cons1x(wvr, True, hook.l) if cfg.uni == 2 else B.cons2x(wvr, 24576, True, hook.l)): a(l)
            OOL.append(lambda: (specloop if cfg.spec else waitloop)('C_w13', 'C_g13'))
        else:
            a('s_cmp_eq_u32 s56, 0')
            a('s_cbranch_scc1 C_r3s')
            a(f'v_mov_b32 v{THR}, v{THRV}')
            stamp(a, cfg, 4)
            check('C_w13', 'C_g13')
            stamp(a, cfg, 8)
            a('s_setprio 3')
            for l in B.cons2x(wvr, 24576, True, hook.l): a(l)
            a('s_branch C_epi')
            (specloop if cfg.spec else waitloop)('C_w13', 'C_g13')
            waitloop('C_w12', 'C_g12')
            (specloop if cfg.spec else waitloop)('C_w16', 'C_g16')
            a('C_r3s:')
            check('C_w12', 'C_g12')
            adv = [f'v_add_u32 v{r}, 24576, v{r}' for r in (CA0, CA1, CT0, CT1)]
            for l in B.cons1p(adv, flag, hook.l + [f'v_mov_b32 v{THR}, v{THRV}']): a(l)
            stamp(a, cfg, 4)
            check('C_w16', 'C_g16')
            stamp(a, cfg, 8)
            a('s_setprio 3')
            for l in B.cons1x(wvr, True): a(l)
    if slow:
        if cfg.cpp: a(f's_setprio {cfg.cmain}')
        a(f's_call_b64 {RET}, {Z}_blk')
        stamp(a, cfg, 5)
        a(f's_load_dword s47, {SDBG}, 0')
        if cfg.c2 is not None: a(f's_setprio {cfg.c2}')
        a(f's_call_b64 {RET}, {Z}_blk')
        stamp(a, cfg, 6)
        if prog: a(f'ds_write_b32 v{FO}, v{CA0} offset:16')
        else: arrive(a, 17, 14, 15)
        a('s_cmp_eq_u32 s47, 0')
        a(f's_cbranch_scc1 {Z}_getnonce')
        a(f'{Z}_getnonce_d:')
        mk_tag(a, T2+1)
        if cfg.c3 is not None: a(f's_setprio {cfg.c3}')
        a(f's_call_b64 {RET}, {Z}_blk')
        stamp(a, cfg, 7)
        if cfg.c4 is not None: a(f's_setprio {cfg.c4}')
        def lastwait(tag):
            a(f'{tag}:')
            a(f'ds_read_b32 v{T2+4}, v{FLA}')
            a('s_waitcnt lgkmcnt(0)')
            a(f'v_cmp_lt_u32 vcc, v{T2+4}, v{THRV}')
            a(f's_cbranch_vccnz {tag}')
            stamp(a, cfg, 8)
            a('s_setprio 3')
        a('s_cmp_eq_u32 s56, 0')
        a(f's_cbranch_scc1 {Z}_r3s')
        a(f's_call_b64 {RET}, {Z}_blk')
        a(f's_mov_b32 s51, {(13 - 18) * 6144}')
        for r in (CA0, CA1, CT0, CT1): a(f'v_add_u32 v{r}, s51, v{r}')
        stamp(a, cfg, 4)
        lastwait(f'{Z}_r4w1')
        if slow:
            for l in slow_tile(0) + slow_tile(24576) + autowait(wvr, final=0): a(l)
        else:
            for l in B.cons2x(wvr, 24576): a(l)
        a(f's_branch {Z}_epi')
        a(f'{Z}_r3s:')
        a(f'v_mov_b32 v10, {PF}')
        a(f'{Z}_r3w:')
        a(f'ds_read_b32 v{T2+4}, v10')
        a('s_waitcnt lgkmcnt(0)')
        a(f'v_readfirstlane_b32 s50, v{T2+4}')
        a('s_cmp_lt_u32 s50, 4')
        a(f's_cbranch_scc1 {Z}_r3w')
        adv = [f'v_add_u32 v{r}, 24576, v{r}' for r in (CA0, CA1, CT0, CT1)]
        for l in (slow_tile(0) + adv if slow else B.cons1(extra_mid=adv)): a(l)
        stamp(a, cfg, 4)
        lastwait(f'{Z}_r4w0')
        if slow:
            for l in slow_tile(0) + autowait(wvr, final=0): a(l)
        else:
            for l in B.cons1x(wvr): a(l)
    a(f'{Z}_epi:')
    stamp(a, cfg, 9)
    if slow:
        a(f's_lshl_b32 {t0}, {sH}, 7')
        a(f's_add_u32 {t0}, {t0}, {TOT}')
        a(f'v_and_b32 v{MX+1}, 31, v1')
        a(f'v_lshlrev_b32 v{MX+1}, 2, v{MX+1}')
        a(f'v_add_u32 v{MX+1}, {t0}, v{MX+1}')
        a(f'ds_write_b32 v{MX+1}, v{MX}')
        a('s_waitcnt lgkmcnt(0)')
        lds_sync(a, 18, 'Z_sy18', MX+2, MX+3)
        a(f'v_xor_b32 v{MX+1}, {256+64}, v{MX+1}')
        a(f'ds_read_b32 v{MX+2}, v{MX+1}')
        a('s_waitcnt lgkmcnt(0)')
        for l in slow_rescale(MX+2): a(l)
        a(f'v_mov_b32 v{MX+1}, s47')
        a('s_mov_b32 exec_lo, 0\ns_mov_b32 exec_hi, 0xffff')
        a(f'buffer_store_dwordx2 {vr(MX,2)}, v{MRA}, {RWS}, 0 offen sc1')
        a('s_mov_b64 exec, -1')
    UP, CX, RX, RS = 96, 120, 128, 144
    def cvtU(t): return [f'v_cvt_pk_bf16_f32 v{UP+8*t+i}, v{U+16*t+2*i}, v{U+16*t+2*i+1}' for i in range(8)]
    def pj(src, tt, t, first=False):
        return f'{MF16} {vr(CX+4*tt,4)}, {vr(WV+(tt*3+t)*4,4)}, {vr(src,4)}, {"0" if first else vr(CX+4*tt,4)}'
    def snd(t, hi): return f'ds_write_b128 v{XP}, {vr(UP+8*t+4*hi,4)} offset:{1024*t+256*hi}'
    def own(t): return f'ds_read_b128 {vr(RS+4*t,4)}, v{XO} offset:{1024*t}'
    EN = T2
    enc = [f'v_cndmask_b32 v{EN}, v{LA}, v{LA+1}, s[44:45]', f'v_and_b32 v{EN+2}, s46, v{EN}', f'v_sub_f32 v{EN}, v{EN}, v{EN+2}',
           f'v_cndmask_b32 v{EN}, v{EN+2}, v{EN}, s[52:53]', f'v_bfi_b32 v{EN}, s46, v{EN}, v{T2+1}']
    c0, c1, c2 = cvtU(0), cvtU(1), cvtU(2)
    E = [enc, f'ds_write_b32 v{XLW}, v{EN} offset:3072',
         c0[:4], snd(0,0), c0[4:], snd(0,1), c1[:4], snd(1,0), own(0), c1[4:], snd(1,1), c2[:4], snd(2,0), own(1), c2[4:], snd(2,1),
         f'ds_write_b32 v{FP}, v{ONE}', own(2)]
    if cfg.xv == 0:
        def swp(t): return [f'v_permlane16_swap_b32 v{UP+8*t+i}, v{UP+8*t+4+i}' for i in range(4)]
        def snd(t, hi=0): return f'ds_write_b128 v{XP}, {vr(UP+8*t+4,4)} offset:{1024*t}'
        E = [enc, f'ds_write_b32 v{XLW}, v{EN} offset:3072',
             c0, c1[:2], swp(0), c1[2:4], snd(0), c1[4:8], c2[:2], swp(1), c2[2:4], snd(1), c2[4:8], 's_nop 0', swp(2), 's_nop 0', snd(2),
             f'ds_write_b32 v{FP}, v{ONE}']
    for l in flat(E):
        if cfg.etr and not slow and l == snd(0,0): a(f"{TM(cfg)} s[{STAMP0+22}:{STAMP0+23}]")
        if cfg.etr and not slow and l.startswith(f'ds_write_b32 v{FP}'): a(f"{TM(cfg)} s[{STAMP0+24}:{STAMP0+25}]")
        a(l)
    def poll():
        a(f'ds_read_b32 v15, v{FO}')
        for t in range(3): a(f'ds_read_b128 {vr(RX+4*t,4)}, v{XO} offset:{3072+1024*t}')
        a(f'ds_read_b32 v{RX+12}, v{XLR} offset:6144')
    if cfg.xv == 0:
        mm = [pj(UP,0,0,True), pj(UP,1,0,True), pj(UP+8,0,1), pj(UP+8,1,1), pj(UP+16,0,2), pj(UP+16,1,2)]
        for l in mm[:cfg.xd]: a(l)
        poll()
        for l in mm[cfg.xd:]: a(l)
    else:
        poll()
        a('s_waitcnt lgkmcnt(7)')
        a(pj(RS,0,0,True)); a(pj(RS,1,0,True)); a(pj(RS+4,0,1)); a(pj(RS+4,1,1))
        a('s_waitcnt lgkmcnt(5)')
        a(pj(RS+8,0,2)); a(pj(RS+8,1,2))
    if cfg.etr and not slow: a(f"{TM(cfg)} s[{STAMP0+26}:{STAMP0+27}]")
    a(f'{Z}_xw:')
    a('s_waitcnt lgkmcnt(4)')
    a('v_cmp_eq_u32 vcc, 0, v15')
    a(f's_cbranch_vccnz {Z}_xr')
    if cfg.etr and not slow: a(f"{TM(cfg)} s[{STAMP0+28}:{STAMP0+29}]")
    for t in range(3):
        a(f's_waitcnt lgkmcnt({3-t})')
        a(pj(RX+4*t,0,t)); a(pj(RX+4*t,1,t))
    a('s_waitcnt lgkmcnt(0)')
    a(f'v_cndmask_b32 v{EN}, v{EN}, v{RX+12}, s[44:45]')
    a(f'v_cvt_pk_bf16_f32 v{CX}, v{CX}, v{CX+1}')
    a(f'v_cvt_pk_bf16_f32 v{CX+1}, v{CX+2}, v{CX+3}')
    a(f'v_mov_b32 v{CX+3}, v{EN}')
    a(f'v_cvt_pk_bf16_f32 v{CX+2}, v{CX+4}, v{CX+5}')
    a(f'v_cvt_pk_bf16_f32 v{CX+4}, v{CX+6}, v{CX+7}')
    a(f'v_permlane32_swap_b32 v{CX+2}, v{CX+4}')
    a(f'buffer_store_dwordx4 {vr(CX,4)}, v{REC}, {RWS}, 0 offen sc1')
    stamp(a, cfg, 10)
    a('s_cmp_ge_u32 s2, 16')
    a('s_cbranch_scc1 L_exit')
    if slow:
        a(f'v_mov_b32 v14, {CNT + 4*7}')
        a(f'v_mov_b32 v15, 0x101')
        a('s_mov_b64 exec, 1')
        a('ds_add_u32 v14, v15')
        a('s_mov_b64 exec, -1')
        a('s_setprio 0')
        a('s_branch Z_comb')
        a('Z_xr:'); poll(); a('s_branch Z_xw')
        nonce_slow(a, 'Z_getnonce', 'Z_getnonce_d', T2)
        a('Z_wait:')
        a('Z_blk:')
        a(f'ds_read_b64 {vr(T2+4,2)}, v10')
        a('s_waitcnt lgkmcnt(0)')
        a(f'v_min_u32 v{T2+4}, v{T2+4}, v{T2+5}')
        a(f'v_readfirstlane_b32 s50, v{T2+4}')
        a(f's_cmp_lt_u32 s50, {sR}')
        a('s_cbranch_scc1 Z_wait')
        for l in slow_tile(0) + slow_tile(6144) + B.adv(): a(l)
        a(f's_add_u32 {sR}, {sR}, 1')
        a(f's_setpc_b64 {RET}')
        return
    arrive(a, 7, 14, 15)
    a('s_setprio 0')
    a('s_branch L_comb')
    a('C_xr:'); poll(); a('s_branch C_xw')
    for f in OOL: f()

def tag_halves(a):
    a('s_bfe_u32 s50, s47, 0xe0001')
    a('s_and_b32 s51, s47, 0x8000')
    a('s_or_b32 s50, s50, s51')
    a('s_lshr_b32 s46, s47, 15')
    a('s_and_b32 s46, s46, 0x8000')
    a('s_bfe_u32 s51, s47, 0xe0010')
    a('s_or_b32 s51, s51, s46')

def mk_tag(a, v):
    tag_halves(a)
    a('s_mov_b32 s46, 0xffff0000')
    a(f'v_mov_b32 v{v}, s50')
    a(f'v_mov_b32 v{v+1}, s51')
    a(f'v_cndmask_b32 v{v}, v{v}, v{v+1}, s[52:53]')

def comb_tag(a, v):
    tag_halves(a)
    a('s_mov_b32 s48, 0xaaaaaaaa\ns_mov_b32 s49, 0xaaaaaaaa')
    a(f'v_mov_b32 v{v}, s50')
    a(f'v_mov_b32 v{v+1}, s51')
    a(f'v_cndmask_b32 v{v}, v{v}, v{v+1}, s[48:49]')

def comb_q(a):
    a('v_and_b32 v6, 15, v1')
    a('s_lshl_b32 s43, s3, 4')
    a('v_add_u32 v6, s43, v6')
    a('v_min_u32 v6, 95, v6')
    a('s_mul_i32 s44, s2, 96')
    a('v_add_u32 v6, s44, v6')
    a('v_lshlrev_b32 v6, 1, v6')
    a(f'global_load_ushort v7, v6, {SQ}')

def comb_setup(a, withq=True):
    if withq: comb_q(a)
    a('v_lshl_add_u32 v29, v16, 3, v28')
    a('v_mul_u32_u24 v29, 192, v29')
    a('v_lshl_add_u32 v29, v19, 3, v29')
    a('s_lshl_b32 s45, s3, 5')
    a(f'v_add_u32 v14, s45, v29')
    a('v_and_b32 v28, 15, v1')
    a('v_mul_u32_u24 v15, 384, v16')
    a('v_lshl_add_u32 v15, v28, 4, v15')
    a('s_mul_i32 s45, s3, 1536')
    a(f's_add_u32 s45, s45, {FIN}')
    a(f'v_add_u32 v15, s45, v15')
    a('v_and_b32 v29, 7, v1')
    a('v_lshlrev_b32 v8, 2, v29')
    a('s_mov_b32 s45, 0x75316240')
    a('v_bfe_u32 v8, s45, v8, 4')
    a('v_add_u32 v8, 48, v8')
    a('v_cmp_lt_u32 vcc, 7, v28')
    a('v_lshlrev_b32 v17, 6, v16')
    a('v_cndmask_b32 v8, v29, v8, vcc')
    a('v_lshl_add_u32 v8, v8, 3, v17')
    a(f'v_add_u32 v8, {FIN}, v8')
    a('s_lshl_b32 s45, s3, 8')
    a(f's_add_u32 s45, s45, {CTX}')
    a('v_lshlrev_b32 v9, 2, v28')
    a('v_mad_u32_u24 v9, v16, 48, v9')
    a('v_mov_b32 v29, 192')
    a('v_cmp_lt_u32 vcc, 11, v28')
    a('v_lshlrev_b32 v10, 4, v16')
    a('v_add_u32 v10, s45, v10')
    a('v_cndmask_b32 v9, v9, v29, vcc')
    a('v_add_u32 v9, s45, v9')

def gen_slow_combine(a, cfg):
    D, ACC, T = 32, 20, 28
    MA, MW = 64, 96
    a('Z_comb:')
    a('v_lshlrev_b32 v2, 4, v1')
    a(f's_mul_i32 s40, s2, {65536 + cfg.skew}')
    a('s_lshl_b32 s41, s3, 13')
    a('s_add_u32 s40, s40, s41')
    a('s_add_u32 s41, s40, 4096')
    a('v_lshrrev_b32 v16, 4, v1')
    a('v_bfe_u32 v28, v1, 2, 2')
    a('v_and_b32 v19, 3, v1')
    a('v_lshlrev_b32 v3, 11, v28')
    a('v_lshl_add_u32 v4, v16, 3, v3')
    a('v_lshl_add_u32 v3, v16, 9, v3')
    a('v_lshl_add_u32 v3, v19, 7, v3')
    a(f's_lshl_b32 s42, s2, 13\ns_add_u32 s42, s42, {MREC}')
    a(f's_lshl_b32 s52, s3, 8\ns_add_u32 s52, s52, s42')
    comb_setup(a)
    comb_tag(a, 12)
    for i in range(8): a(f'v_mov_b32 v{ACC+i}, 0')
    a('Z_again:')
    a('Z_poll:')
    for i in range(8): a(f'buffer_load_dwordx4 {vr(D+4*i,4)}, v2, {RWS}, {"s40" if i<4 else "s41"} offen offset:{1024*(i%4)} sc1')
    for i in range(8): a(f'buffer_load_dwordx4 {vr(MA+4*i,4)}, v3, {RWS}, s42 offen offset:{16*i} sc1')
    for i in range(8): a(f'buffer_load_dwordx2 {vr(MW+2*i,2)}, v4, {RWS}, s52 offen offset:{32*i} sc1')
    a('s_waitcnt vmcnt(0)')
    a(f'v_mov_b32 v{T}, 0')
    for i in range(8):
        a(f'v_xor_b32 v{T+1}, v12, v{D+4*i+3}')
        a(f'v_and_b32 v{T+1}, 0xffff, v{T+1}')
        a(f'v_or_b32 v{T}, v{T}, v{T+1}')
    for t in [MA+2*i+1 for i in range(16)] + [MW+2*i+1 for i in range(8)]:
        a(f'v_xor_b32 v{T+1}, s47, v{t}')
        a(f'v_or_b32 v{T}, v{T}, v{T+1}')
    a(f'v_cmp_ne_u32 vcc, 0, v{T}')
    a('s_nop 4')
    a('s_cbranch_vccnz Z_again')
    M = MA
    for i in range(1, 16): a(f'v_max_f32 v{M}, v{M}, v{MA+2*i}')
    a('s_nop 1')
    a(f'v_mov_b32_dpp v{M+1}, v{M} quad_perm:[1,0,3,2] row_mask:0xf bank_mask:0xf')
    a(f'v_max_f32 v{M}, v{M}, v{M+1}')
    a('s_nop 1')
    a(f'v_mov_b32_dpp v{M+1}, v{M} quad_perm:[2,3,0,1] row_mask:0xf bank_mask:0xf')
    a(f'v_max_f32 v{M}, v{M}, v{M+1}')
    def allrows(r, op):
        for sw in ('v_permlane16_swap_b32', 'v_permlane32_swap_b32'):
            a(f'v_mov_b32 v{T}, v{r}')
            a('s_nop 1')
            a(f'{sw} v{r}, v{T}')
            a('s_nop 1')
            a(f'{op} v{r}, v{r}, v{T}')
    allrows(M, 'v_max_f32')
    a('s_mov_b32 s46, 0xffff0000')
    for i in range(8):
        a(f'v_sub_f32 v{MW+2*i}, v{MW+2*i}, v{M}')
        a(f'v_exp_f32 v{MW+2*i}, v{MW+2*i}')
        a('s_nop 1')
        for j in range(4):
            a(f'v_lshlrev_b32 v{T}, 16, v{D+4*i+j}')
            a(f'v_and_b32 v{T+1}, s46, v{D+4*i+j}')
            if j < 3: a(f'v_fmac_f32 v{ACC+2*j}, v{T}, v{MW+2*i}')
            a(f'v_fmac_f32 v{ACC+2*j+1}, v{T+1}, v{MW+2*i}')
    for j in range(8): allrows(ACC+j, 'v_add_f32')
    a('v_cmp_eq_u32 vcc, 0, v16')
    a('s_nop 1')
    for j in range(4): a(f'v_cndmask_b32 v{ACC+j}, v{ACC+4+j}, v{ACC+j}, vcc')
    a('s_nop 1')
    a('s_branch K_red')

def gen_combine(a, cfg):
    D, ACC, T = 128, 20, 28
    NS = 9
    a('L_comb:')
    if cfg.trp: a('s_branch L_exit')
    a('v_lshlrev_b32 v2, 4, v1')
    a(f's_mul_i32 s40, s2, {65536 + cfg.skew}')
    a('s_lshl_b32 s41, s3, 13')
    a('s_add_u32 s40, s40, s41')
    a('s_add_u32 s41, s40, 4096')
    def load(i):
        a(f'buffer_load_dwordx4 {vr(D+4*i,4)}, v2, {RWS}, {"s40" if i<4 else "s41"} offen offset:{1024*(i%4)} sc1' + (' nt' if cfg.pollnt else ''))
    PM = lambda i: f's[{6+2*i}:{7+2*i}]'
    SEL = 24
    stamp(a, cfg, 11)
    if cfg.ktrace:
        for j in list(range(1, 8)) + [12]: a(f's_mov_b64 s[{STAMP0+2*j}:{STAMP0+2*j+1}], 0')
    if cfg.roll or cfg.dyn: comb_q(a)
    for i in range(8): load(i)
    a('v_lshrrev_b32 v16, 4, v1')
    a('v_bfe_u32 v28, v1, 2, 2')
    a('v_and_b32 v19, 3, v1')
    comb_setup(a, not (cfg.roll or cfg.dyn))
    comb_tag(a, 12)
    a('v_and_b32 v29, 1, v1')
    a('v_lshlrev_b32 v29, 4, v29')
    a('v_mov_b32 v17, 0x3f80')
    a('v_lshlrev_b32 v29, v29, v17')
    a('v_lshrrev_b32 v28, 1, v28')
    for r in range(4):
        a(f'v_cmp_eq_u32 vcc, {r}, v28')
        a(f'v_cndmask_b32 v{SEL+r}, 0, v29, vcc')
    if cfg.dyn:
        K = cfg.dyn
        J = lambda k: f's{6+k}'
        for i in range(4): a(f'v_mov_b32 v{ACC+i}, 0')
        a('s_mov_b32 s42, 0xff')
        a('s_mov_b32 s43, 7')
        def pick(k):
            a('s_lshl_b32 s44, -2, s43')
            a('s_and_b32 s44, s44, s42')
            a('s_cselect_b32 s44, s44, s42')
            a('s_ff1_i32_b32 s43, s44')
            a('s_lshl_b32 s44, s43, 10')
            a('s_add_u32 s44, s44, s40')
            a(f's_mov_b32 {J(k)}, s43')
            a(f'buffer_load_dwordx4 {vr(D+4*k,4)}, v2, {RWS}, s44 offen sc1')
        for i in range(8):
            a(f's_waitcnt vmcnt({7-i+min(i,K)})')
            if i == 0: stamp(a, cfg, 12)
            a(f'v_cmp_ne_u16 vcc, v12, v{D+4*i+3}')
            a(f's_cbranch_vccnz K_f{i}')
            a(f'{MF16} {vr(ACC,4)}, {vr(SEL,4)}, {vr(D+4*i,4)}, {vr(ACC,4)}')
            a(f's_bitset0_b32 s42, {i}')
            if i == 7:
                a('s_cmp_eq_u32 s42, 0')
                a('s_cbranch_scc1 K_red0')
            a(f'K_f{i}:')
            if i < K: pick(i)
        a('K_chk:')
        for k in range(K):
            a(f's_waitcnt vmcnt({K-1})')
            if cfg.ktrace and k == 0:
                a('s_waitcnt lgkmcnt(0)')
                for j in range(1, 7): a(f's_mov_b64 s[{STAMP0+2*j}:{STAMP0+2*j+1}], s[{STAMP0+2*j+2}:{STAMP0+2*j+3}]')
                a(f's_mov_b64 s[{STAMP0+14}:{STAMP0+15}], s[{STAMP0+24}:{STAMP0+25}]')
                stamp(a, cfg, 12)
            a(f'v_cmp_ne_u16 vcc, v12, v{D+4*k+3}')
            a(f's_cbranch_vccnz K_n{k}')
            a(f's_bitcmp0_b32 s42, {J(k)}')
            a(f's_cbranch_scc1 K_n{k}')
            a(f'{MF16} {vr(ACC,4)}, {vr(SEL,4)}, {vr(D+4*k,4)}, {vr(ACC,4)}')
            a(f's_bitset0_b32 s42, {J(k)}')
            a('s_cmp_eq_u32 s42, 0')
            a('s_cbranch_scc1 K_red0')
            a(f'K_n{k}:')
            pick(k)
        a('s_branch K_chk')
        a('K_red0:')
    elif cfg.roll:
        for i in range(4): a(f'v_mov_b32 v{ACC+i}, 0')
        a('s_mov_b32 s42, 0xff')
        a('K_chk:')
        for i in range(8):
            a('s_waitcnt vmcnt(7)')
            if cfg.ktrace and i == 0:
                a('s_waitcnt lgkmcnt(0)')
                for j in range(1, 7): a(f's_mov_b64 s[{STAMP0+2*j}:{STAMP0+2*j+1}], s[{STAMP0+2*j+2}:{STAMP0+2*j+3}]')
                a(f's_mov_b64 s[{STAMP0+14}:{STAMP0+15}], s[{STAMP0+24}:{STAMP0+25}]')
            if i == 0: stamp(a, cfg, 12)
            a(f'v_cmp_ne_u16 vcc, v12, v{D+4*i+3}')
            a('s_cmp_lg_u64 vcc, 0')
            a('s_cselect_b64 exec, -1, 0')
            load(i)
            a('s_mov_b64 exec, -1')
            a(f's_cbranch_scc1 K_n{i}')
            a(f's_bitcmp0_b32 s42, {i}')
            a(f's_cbranch_scc1 K_n{i}')
            a(f'{MF16} {vr(ACC,4)}, {vr(SEL,4)}, {vr(D+4*i,4)}, {vr(ACC,4)}')
            a(f's_bitset0_b32 s42, {i}')
            a('s_cmp_eq_u32 s42, 0')
            a('s_cbranch_scc1 K_red0')
            a(f'K_n{i}:')
        a('s_branch K_chk')
        a('K_red0:')
        a('s_nop 4')
    else:
        a('K_chk:')
        a('s_waitcnt vmcnt(0)')
        if cfg.ktrace:
            a('s_waitcnt lgkmcnt(0)')
            for j in range(1, 7): a(f's_mov_b64 s[{STAMP0+2*j}:{STAMP0+2*j+1}], s[{STAMP0+2*j+2}:{STAMP0+2*j+3}]')
            a(f's_mov_b64 s[{STAMP0+14}:{STAMP0+15}], s[{STAMP0+24}:{STAMP0+25}]')
        stamp(a, cfg, 12)
        for i in range(8):
            a(f'v_cmp_ne_u16 {PM(i)}, v12, v{D+4*i+3}')
            a(f'{MF16} {vr(ACC,4)}, {vr(SEL,4)}, {vr(D+4*i,4)}, {"0" if i == 0 else vr(ACC,4)}')
            if i == 2: a(f's_or_b64 s[50:51], {PM(0)}, {PM(1)}')
            if i > 2: a(f's_or_b64 s[50:51], s[50:51], {PM(i-1)}')
        a(f's_or_b64 s[50:51], s[50:51], {PM(7)}')
        a('s_cbranch_scc1 K_retry')
    a('K_red:')
    stamp(a, cfg, 13)
    a('s_cmp_ge_u32 s3, 6')
    a('s_cbranch_scc1 K_67')
    a('s_nop 2')
    a(f'ds_write_b128 v15, {vr(ACC,4)}')
    Bq, C = 40, 56
    a('s_waitcnt lgkmcnt(0)')
    a('s_barrier')
    if cfg.fine: stamp(a, cfg, 15)
    for k in range(4): a(f'ds_read2st64_b64 {vr(C+4*k,4)}, v8 offset0:{6*k} offset1:{6*k+3}')
    for s in range(3):
        for sec in range(2):
            a(f'ds_read_b64_tr_b16 {vr(Bq+4*s+2*sec,2)}, v14 offset:{s*6144+sec*768}')
    a('v_lshlrev_b32 v7, 16, v7')
    a('s_waitcnt lgkmcnt(8)')
    for i in range(4): a(f'v_add_f32 v{C+i}, v{C+i}, v{C+4+i}')
    a('s_waitcnt lgkmcnt(6)')
    for i in range(4): a(f'v_add_f32 v{C+8+i}, v{C+8+i}, v{C+12+i}')
    for i in (0, 2, 1, 3): a(f'v_add_f32 v{C+i}, v{C+i}, v{C+8+i}')
    a(f'v_add_f32 v{C}, v{C}, v{C+2}')
    a(f'v_add_f32 v{C+1}, v{C+1}, v{C+3}')
    a(f'v_add_f32_dpp v{C+2}, v{C+1}, v{C+1} quad_perm:[1,0,3,2] row_mask:0xf bank_mask:0xf')
    a(f'v_add_f32_dpp v{C+2}, v{C+2}, v{C+2} quad_perm:[2,3,0,1] row_mask:0xf bank_mask:0xf')
    a(f'v_mov_b32_dpp v{C+2}, v{C+2} row_newbcast:12 row_mask:0xf bank_mask:0xf')
    a(f'v_rcp_f32 v{C+2}, v{C+2}')
    a(f'v_mul_f32 v{C}, v{C}, v{C+2}')
    a(f'v_mul_f32 v{C+1}, v{C+1}, v{C+2}')
    a(f'v_cvt_pk_bf16_f32 v{C}, v{C}, v{C+1}')
    a(f'ds_write_b32 v9, v{C}')
    for s in range(3): a(f'ds_read_b128 {vr(C+4+4*s,4)}, v10 offset:{64*s}')
    for s in range(3):
        c = '0' if s == 0 else 'v[88:91]'
        a(f's_waitcnt lgkmcnt({2-s})')
        a(f'{MF16} v[88:91], {vr(C+4+4*s,4)}, {vr(Bq+4*s,4)}, {c}')
    a('v_cvt_pk_bf16_f32 v88, v88, v88')
    a('v_and_b32 v88, 0xffff0000, v88')
    a('v_add_f32 v88, v88, v7')
    a('v_cvt_pk_bf16_f32 v88, v88, v88')
    a('s_mov_b64 exec, 0xffff')
    a('s_waitcnt vmcnt(0)')
    a(f'global_store_short v6, v88, {SOUT}')
    a('s_mov_b64 exec, -1')
    stamp(a, cfg, 14)
    if cfg.diag:
        a('s_memrealtime s[98:99]')
        a('s_waitcnt lgkmcnt(0)')
        a('v_mov_b32 v20, s98\nv_mov_b32 v21, 36')
        a('s_mov_b64 exec, 1')
        a(f'global_atomic_umax v21, v20, {SDBG}')
        a('s_mov_b64 exec, -1')
    a('L_exit:')
    if cfg.diag:
        a('s_cmp_eq_u32 s3, 4')
        a('s_cbranch_scc0 L_end')
        a('s_memrealtime s[98:99]')
        a('s_getreg_b32 s50, hwreg(HW_REG_XCC_ID, 0, 4)')
        a('s_and_b32 s50, s50, 7')
        a('s_lshl_b32 s50, s50, 2')
        a('s_add_u32 s50, s50, 4')
        a('s_waitcnt lgkmcnt(0)')
        a('v_mov_b32 v20, s96\nv_mov_b32 v21, s50\nv_mov_b32 v22, s98\nv_mov_b32 v23, 40')
        a('s_mov_b64 exec, 1')
        a(f'global_store_dword v21, v20, {SDBG}')
        a('s_cmp_lt_u32 s2, 16')
        a('s_cbranch_scc1 L_end')
        a(f'global_atomic_umax v23, v22, {SDBG}')
        a('s_mov_b64 exec, -1')
    stamp_flush(a, cfg)
    a('L_end:')
    a('s_endpgm')
    a('K_67:')
    a('s_nop 2')
    a(f'ds_write_b128 v15, {vr(ACC,4)}')
    a('s_waitcnt lgkmcnt(0)')
    a('s_barrier')
    a('s_waitcnt vmcnt(0)')
    a('s_branch L_exit')
    if cfg.roll or cfg.dyn: return
    a('K_retry:')
    if cfg.ksleep: a(f's_sleep {cfg.ksleep}')
    for i in range(8):
        a(f's_cmp_lg_u64 {PM(i)}, 0')
        a('s_cselect_b64 exec, -1, 0')
        load(i)
    a('s_mov_b64 exec, -1')
    a('s_branch K_chk')

HEADER = """
Fused FPN-fuse + LayerNorm + masked cross-attention, one workgroup (8 waves) per CU, 576 keys each.
  A'[h*16+q] = (2*bf16(q w_q[h]) w_k[h]^T + q w_m) * 96^-0.5 * log2(e)      (scores in log2 units)
  waves 0-3: stream f_hi / f_lo into LDS, lateral GEMM, LayerNorm, write kv (bf16) back in place
  waves 4-7: S = kv A'^T, p = exp2(S - shift), U += p^T kv, l += sum p, ctx = U w_v, publish to d_ws
  workgroups 0-15: gather the 256 partials of one query, normalise, project with w_o, add q
Softmax shift: |S| <= sqrt(96) * |A' row| because kv is LayerNorm output.  Every workgroup evaluates that
bound at run time (Gram matrix of A').  If it is <= 80 the shift 0 cannot overflow or lose terms
(C_* / K_* code); otherwise the Z_* code runs with the true (online) row maximum.
"""

def build(cfg):
    a = Asm()
    a.raw(f'; @launch grid=(256,1,1) block=(512,1,1) lds={LDS_BYTES}')
    for l in HEADER.strip().split('\n'): a.raw('; ' + l)
    a.raw('.amdgcn_target "amdgcn-amd-amdhsa--gfx950"')
    a.raw('.text')
    a.raw(f'.globl {KNAME}'); a.raw('.p2align 8'); a.raw(f'.type {KNAME},@function'); a.raw(f'{KNAME}:')
    gen_entry(a, cfg)
    gen_producer(a, cfg)
    gen_consumer(a, cfg)
    gen_combine(a, cfg)
    a.raw('L_codeend:')
    cons_main(a, cfg, True)
    gen_slow_combine(a, cfg)
    txt = a.finish(verbose=True)
    txt = txt.replace('    ; ', '; ')
    txt += f'''.section .rodata,"a"
.p2align 6
.amdhsa_kernel {KNAME}
  .amdhsa_next_free_vgpr 256
  .amdhsa_next_free_sgpr {102 if cfg.stamps else 100}
  .amdhsa_accum_offset 256
  .amdhsa_group_segment_fixed_size 0
  .amdhsa_kernarg_size 96
  .amdhsa_user_sgpr_count 2
  .amdhsa_user_sgpr_kernarg_segment_ptr 1
  .amdhsa_system_sgpr_workgroup_id_x 1
.end_amdhsa_kernel
'''
    return txt

if __name__ == '__main__':
    cfg = Cfg()
    out = sys.argv[1]
    for o in sys.argv[2:]:
        if '=' in o:
            k, v = o.split('='); setattr(cfg, k, int(v))
        else: setattr(cfg, o, True)
    open(out, 'w').write(build(cfg))
```
